```python
import torch

def _softmax(x, axis=-1):
    return torch.softmax(x, dim=axis)
def _gelu(x):
    return torch.nn.functional.gelu(x, approximate="tanh")
def _silu(x):
    return torch.nn.functional.silu(x)
def _sigmoid(x):
    return torch.sigmoid(x)
def _layernorm(x, axis=-1, eps=1e-5):
    m = x.mean(dim=axis, keepdim=True)
    v = x.var(dim=axis, keepdim=True, unbiased=False)
    return (x - m) / torch.sqrt(v + eps)
def _scatter_add(tgt, idx, src, axis=0):
    return tgt.clone().index_add_(axis, idx, src)
def _segment_sum(src, seg, n):
    out = torch.zeros((n,) + src.shape[1:], dtype=src.dtype)
    return out.index_add_(0, seg, src)
def _pad(x, pw):
    flat = tuple(v for pair in reversed(pw) for v in pair)
    return torch.nn.functional.pad(x, flat)

kernel_name = 'recurrent_scan__ssm_conv_h3__dense_activation_silu__prompt'

def setup_inputs():

    _w = (lambda a: (lambda t: t.to(torch.bfloat16) if t.is_floating_point() else t)(torch.as_tensor(a)))
    def _A_setup():
        B, S, D = 1, 2048, 512
        ks = 4
        return {
            "q": _w((lambda *s: torch.randn(*s, dtype=torch.bfloat16) * 0.05)(B, S, D)),
            "k": _w((lambda *s: torch.randn(*s, dtype=torch.bfloat16) * 0.8)(B, S, D)),
            "v": _w((lambda *s: torch.randn(*s, dtype=torch.bfloat16) * 0.8)(B, S, D)),
            "shift_k": _w((lambda *s: torch.randn(*s, dtype=torch.bfloat16) * 0.8)(D, ks) * 0.5),
            "ssm_k": _w((lambda *s: torch.randn(*s, dtype=torch.bfloat16) * 0.8)(D, S) * (1.0 / S ** 0.5)),
            "ssm_D": _w((lambda *s: torch.randn(*s, dtype=torch.bfloat16) * 0.8)(D)),
        }
    _A_in = _A_setup()

    def _B_setup():
        B, S, D, F = 1, 2048, 512, 1792
        return {
            "x": _w((lambda *s: torch.randn(*s, dtype=torch.bfloat16) * 0.05)(B, S, D)),
            "w1": _w((lambda *s: torch.randn(*s, dtype=torch.bfloat16) * 0.8)(D, F) * (D ** -0.5)),
            "w2": _w((lambda *s: torch.randn(*s, dtype=torch.bfloat16) * 0.2)(F, D) * (F ** -0.5)),
        }
    _B_in = _B_setup()

    return {
        "A_q": _A_in["q"],
        "A_k": _A_in["k"],
        "A_v": _A_in["v"],
        "A_shift_k": _A_in["shift_k"],
        "A_ssm_k": _A_in["ssm_k"],
        "A_ssm_D": _A_in["ssm_D"],
        "B_x": _B_in["x"],
        "B_w1": _B_in["w1"],
        "B_w2": _B_in["w2"],
    }

def reference(A_q, A_k, A_v, A_shift_k, A_ssm_k, A_ssm_D, B_x, B_w1, B_w2):
    def _A_ref(q, k, v, shift_k, ssm_k, ssm_D):
        B, S, D = q.shape
        ks = shift_k.shape[-1]
        k_pad = _pad(k, ((0, 0), (ks - 1, 0), (0, 0)))
        k_shift = torch.zeros_like(k)
        for t in range(ks):
            k_shift = k_shift + k_pad[:, t:t + S, :] * shift_k[:, ks - 1 - t][None, None, :]
        kv = k_shift * v
        L = 2 * S
        kv_pad = _pad(kv, ((0, 0), (0, S), (0, 0)))
        kf_pad = _pad(ssm_k, ((0, 0), (0, S)))
        kv_f = (lambda x, axes=(-2,-1): torch.fft.rfft2(x.float(), dim=axes))(kv_pad[:, None, :, :], axes=(1, 2))
        kf_f = (lambda x, axes=(-2,-1): torch.fft.rfft2(x.float(), dim=axes))(kf_pad[:, None, :], axes=(1, 2))
        kf_f = (lambda x, *d: x.permute(*d))(kf_f, 1, 2, 0)
        y_f = kv_f * kf_f[None, :, :, :]
        y = (lambda x, s, axes=(-2,-1): torch.fft.irfft2(x, s=s, dim=axes).to(torch.bfloat16))(y_f, (1, L), axes=(1, 2))[:, 0, :S, :]
        y = y + kv * ssm_D[None, None, :]
        return q * y

    def _B_ref(x, w1, w2):
        h = torch.einsum("bsd,df->bsf", x, w1)
        h = _silu(h)
        out = torch.einsum("bsf,fd->bsd", h, w2)
        return out

    x = A_q
    xn = _layernorm(x, axis=-1)
    s = _A_ref(xn, A_k, A_v, A_shift_k, A_ssm_k, A_ssm_D)
    g = _silu(_B_ref(xn, B_w1, B_w2))
    return x + s * g
```

```python
import re

def _expand(tok):
    tok = tok.strip()
    neg = tok.lstrip('-|').rstrip('|')
    if neg.startswith('abs(') : neg = neg[4:-1]
    m = re.fullmatch(r'([vas])\[(\d+):(\d+)\]', neg)
    if m: return [f"{m.group(1)}{i}" for i in range(int(m.group(2)), int(m.group(3)) + 1)]
    m = re.fullmatch(r'([vas])(\d+)', neg)
    if m: return [neg]
    if neg == 'vcc': return ['vcc_lo', 'vcc_hi']
    if neg == 'exec': return ['exec_lo', 'exec_hi']
    if neg in ('vcc_lo', 'vcc_hi', 'exec_lo', 'exec_hi', 'm0', 'scc'): return [neg]
    return []

TRANS = ('v_exp_f32', 'v_log_f32', 'v_rcp_f32', 'v_rsq_f32', 'v_sqrt_f32', 'v_sin_f32', 'v_cos_f32')

class Ins:
    __slots__ = ('text', 'op', 'rd', 'wr', 'cls', 'tag', 'dpp', 'size', 'arg', 'srcC', 'srcAB', 'wide')
    def __init__(self, text, tag=None):
        self.text = text; self.tag = tag; self.arg = None
        self.rd = set(); self.wr = set(); self.dpp = False; self.srcC = set(); self.srcAB = set(); self.wide = False
        t = text.split(';')[0].strip()
        if t.endswith(':'):
            self.op = 'label'; self.cls = 'label'; self.size = 0; return
        if t.startswith('.'):
            self.op = t.split()[0]; self.cls = 'directive'; self.size = 0; return
        parts = t.split(None, 1)
        op = parts[0]; self.op = op
        rest = parts[1] if len(parts) > 1 else ''
        ops = [o.strip() for o in rest.split(',')] if rest else []
        mods = ''
        if ops:
            last = ops[-1].split(None, 1)
            ops[-1] = last[0]
            mods = last[1] if len(last) > 1 else ''
            clean = []
            for i, o in enumerate(ops):
                sp = o.split(None, 1)
                clean.append(sp[0])
                if len(sp) > 1:
                    mods = sp[1] + ',' + ','.join(ops[i+1:]) + ' ' + mods
                    break
            ops = clean
        base = re.sub(r'_(e32|e64|dpp|sdwa)$', '', op)
        R = lambda i: _expand(ops[i]) if i < len(ops) else []
        allr = lambda frm: [r for i in range(frm, len(ops)) for r in R(i)]
        lit = any(re.fullmatch(r'-?(0x[0-9a-fA-F]+|\d+)', o) and not (-16 <= int(o, 0) <= 64) for o in ops) or \
              any(re.fullmatch(r'-?\d+\.\d+(e[-+]?\d+)?', o) and o not in ('0.5','-0.5','1.0','-1.0','2.0','-2.0','4.0','-4.0') for o in ops)
        self.size = 4
        if op.startswith('v_mfma'):
            self.cls = 'mfma8' if '32x32x16' in op else 'mfma4'
            self.wr = set(R(0)); self.srcAB = set(R(1) + R(2)); self.srcC = set(R(3)); self.rd = self.srcAB | self.srcC; self.size = 8
        elif op.startswith('buffer_') or op.startswith('global_'):
            self.size = 8
            if 'load' in op:
                if re.search(r'\blds\b', mods):
                    self.cls = 'dma'; self.rd = set(allr(0)) | {'m0'}
                else:
                    self.cls = 'vmem_ld'; self.wr = set(R(0)); self.rd = set(allr(1))
            else:
                self.cls = 'vmem_st'; self.rd = set(allr(0)); self.wide = ('x3' in op or 'x4' in op)
                self.arg = set(R(0))
            self.rd |= {'exec_lo', 'exec_hi'}
        elif op.startswith('ds_'):
            self.size = 8
            if op.startswith('ds_read'):
                self.cls = 'ds_ld'; self.wr = set(R(0)); self.rd = set(allr(1))
            else:
                self.cls = 'ds_st'; self.rd = set(allr(0))
        elif op.startswith('s_load') or op in ('s_memtime', 's_memrealtime'):
            self.cls = 'smem'; self.wr = set(R(0)); self.rd = set(allr(1)); self.size = 8
        elif op.startswith('s_'):
            self.cls = 'salu'
            if op in ('s_waitcnt', 's_nop', 's_barrier', 's_endpgm', 's_sleep', 's_setprio', 's_branch'):
                self.cls = 'ctl'
            elif op.startswith('s_cbranch'):
                self.cls = 'ctl'
                self.rd = {'scc'} if 'scc' in op else ({'vcc_lo', 'vcc_hi'} if 'vcc' in op else {'exec_lo', 'exec_hi'})
            elif op.startswith('s_cmp') or op.startswith('s_bitcmp'):
                self.rd = set(allr(0)); self.wr = {'scc'}
            else:
                self.wr = set(R(0)); self.rd = set(allr(1))
                if op.startswith('s_cselect') or op.startswith('s_addc'): self.rd.add('scc')
                if not (op.startswith('s_mov') or op.startswith('s_cselect') or op.startswith('s_mul') or op.startswith('s_getpc') or op.startswith('s_getreg')): self.wr.add('scc')
            if (lit or any(o.startswith('L_') for o in ops)) and self.cls == 'salu': self.size = 8
        elif op.startswith('v_'):
            self.cls = 'trans' if base in TRANS else 'valu'
            self.dpp = op.endswith('_dpp') or 'quad_perm' in mods or 'row_' in mods
            if base.startswith('v_cmp'):
                self.wr = set(R(0)); self.rd = set(allr(1))
            elif base in ('v_permlane16_swap_b32', 'v_permlane32_swap_b32', 'v_swap_b32'):
                self.wr = set(R(0) + R(1)); self.rd = set(R(0) + R(1))
            else:
                self.wr = set(R(0)); self.rd = set(allr(1))
                if base in ('v_fmac_f32',) or self.dpp: self.rd |= set(R(0))
            vop3_only = ('v_fma_f32', 'v_mul_lo_u32', 'v_mad_u32_u24', 'v_lshl_add_u32', 'v_add_lshl_u32', 'v_and_or_b32', 'v_lshl_or_b32',
                         'v_bfe_u32', 'v_add3_u32', 'v_cvt_pk_bf16_f32', 'v_perm_b32', 'v_alignbit_b32', 'v_or3_b32', 'v_xad_u32', 'v_accvgpr_read_b32',
                         'v_accvgpr_write_b32', 'v_readlane_b32', 'v_writelane_b32', 'v_med3_f32', 'v_bfi_b32', 'v_mul_hi_u32')
            is3 = op.endswith('_e64') or base in vop3_only or base.startswith('v_pk_') or self.dpp
            if base.startswith('v_cmp') and ops and ops[0] != 'vcc': is3 = True
            if base == 'v_cndmask_b32' and len(ops) > 3 and ops[3] != 'vcc': is3 = True
            if not is3 and len(ops) >= 3 and not base.startswith('v_cmp') and base not in ('v_permlane16_swap_b32',) and not ops[2].startswith('v'): is3 = True
            if not is3 and any(o.startswith('-v') or o.startswith('-s') or o.startswith('|') or o.startswith('abs') for o in ops[1:]): is3 = True
            self.size = 8 if (is3 or lit) else 4
        else:
            raise ValueError("unknown instruction: " + text)

class Pseudo:
    def __init__(self, kind, arg=None):
        self.cls = 'pseudo'; self.op = kind; self.arg = arg; self.size = 0; self.rd = set(); self.wr = set(); self.tag = None
        self.text = f"; {kind} {arg}"

class Stream(list):
    def __call__(self, text, tag=None):
        for ln in text.strip().split('\n'):
            ln = ln.strip()
            if ln and not ln.startswith(';'): self.append(Ins(ln, tag))
        return self
    def waitvm(self, tag): self.append(Pseudo('WAITVM', tag))
    def waitlg(self, tag=None): self.append(Pseudo('WAITLG', tag))
    def fill(self, n): self.append(Pseudo('FILL', n))
    def mark(self, name): self.append(Pseudo('MARK', name))
    def atomic(self, items):
        g = Pseudo('GROUP', list(items)); self.append(g)

def merge(main, fills):
    marks = {x.arg: i for i, x in enumerate(main) if x.cls == 'pseudo' and x.op == 'MARK'}
    cap = {i: x.arg for i, x in enumerate(main) if x.cls == 'pseudo' and x.op == 'FILL'}
    ins_at = {i: [] for i in range(len(main) + 1)}
    for fl in fills:
        a, b, st = fl[:3]; early = len(fl) > 3
        ia, ib = marks[a], marks[b]
        slots = [i for i in sorted(cap) if ia < i < ib]
        items = list(st)
        cost = lambda it: (sum(1 for y in it.arg if y.cls != 'pseudo') if (it.cls == 'pseudo' and it.op == 'GROUP') else (0 if it.cls == 'pseudo' else 1))
        total = sum(cost(it) for it in items); room = sum(cap[i] for i in slots)
        k = 0; placed = 0; seen = 0
        for i in slots:
            seen += cap[i]
            quota = total * seen / max(room, 1) if (room >= total and not early) else seen
            while k < len(items) and (cost(items[k]) == 0 or (placed + cost(items[k]) <= quota + 0.5 and cap[i] > 0)):
                c = cost(items[k]); ins_at[i].append(items[k]); cap[i] -= c; placed += c; k += 1
        if k < len(items):
            left = sum(cost(it) for it in items[k:])
            ins_at[ib].extend(items[k:])
    out = Stream()
    for i, x in enumerate(main):
        for it in ins_at[i]:
            if it.cls == 'pseudo' and it.op == 'GROUP': out.extend(it.arg)
            else: out.append(it)
        if not (x.cls == 'pseudo' and x.op == 'FILL'): out.append(x)
    return out

def flatten(st):
    out = Stream()
    for it in st:
        if it.cls == 'pseudo' and it.op == 'GROUP': out.extend(flatten(it.arg))
        elif it.cls == 'pseudo' and it.op == 'FILL': pass
        else: out.append(it)
    return out

def autowait(st):
    out = Stream()
    vm_n = 0; lg_n = 0; vm_done = 0; lg_done = 0
    reg_vm = {}; reg_lg = {}; reg_sm = set(); smem_out = False
    tag_vm = {}; tag_lg = {}
    for x in st:
        need_vm = None; need_lg = None
        def nv(idx):
            nonlocal need_vm
            if idx > vm_done:
                c = vm_n - idx; need_vm = c if need_vm is None else min(need_vm, c)
        def nl(idx):
            nonlocal need_lg
            if idx > lg_done:
                c = lg_n - idx; need_lg = c if need_lg is None else min(need_lg, c)
        if x.cls == 'pseudo':
            if x.op == 'WAITVM':
                if x.arg is None: nv(vm_n) if vm_n > vm_done else None
                else: nv(tag_vm[x.arg])
            elif x.op == 'WAITLG':
                if x.arg is None:
                    if lg_n > lg_done or smem_out: need_lg = 0
                else: nl(tag_lg[x.arg])
        else:
            for r in (x.rd | x.wr):
                if r in reg_vm: nv(reg_vm[r])
                if r in reg_lg: nl(reg_lg[r])
                if r in reg_sm: need_lg = 0
        if need_vm is not None and need_vm > 63: need_vm = None
        if need_lg is not None and need_lg > 15: need_lg = None
        if need_vm is not None or need_lg is not None:
            p = []
            if need_vm is not None: p.append(f"vmcnt({need_vm})"); vm_done = max(vm_done, vm_n - need_vm)
            if need_lg is not None:
                p.append(f"lgkmcnt({need_lg})"); lg_done = max(lg_done, lg_n - need_lg)
                if need_lg == 0: smem_out = False; reg_sm.clear()
            out.append(Ins("s_waitcnt " + " ".join(p)))
            reg_vm = {r: i for r, i in reg_vm.items() if i > vm_done}
            reg_lg = {r: i for r, i in reg_lg.items() if i > lg_done}
        if x.cls == 'pseudo':
            if x.op == 'MARK': out.append(x)
            continue
        if x.cls in ('vmem_ld', 'vmem_st', 'dma'):
            vm_n += 1
            for r in x.wr: reg_vm[r] = vm_n
            if x.tag: tag_vm[x.tag] = vm_n
        elif x.cls in ('ds_ld', 'ds_st'):
            lg_n += 1
            for r in x.wr: reg_lg[r] = lg_n
            if x.tag: tag_lg[x.tag] = lg_n
        elif x.cls == 'smem':
            smem_out = True
            for r in x.wr: reg_sm.add(r)
        elif x.op == 's_waitcnt':
            m = re.search(r'vmcnt\((\d+)\)', x.text)
            if m: vm_done = max(vm_done, vm_n - int(m.group(1)))
            m = re.search(r'lgkmcnt\((\d+)\)', x.text)
            if m:
                if int(m.group(1)) == 0: smem_out = False; reg_sm.clear(); lg_done = lg_n
                else: lg_done = max(lg_done, lg_n - int(m.group(1)))
            reg_vm = {r: i for r, i in reg_vm.items() if i > vm_done}
            reg_lg = {r: i for r, i in reg_lg.items() if i > lg_done}
        out.append(x)
    return out

def _states(x):
    if x.cls in ('label', 'directive', 'pseudo'): return 0
    if x.op == 's_nop': return int(x.text.split()[1], 0) + 1
    return 1

def hazards(st):
    out = Stream()
    isv = lambda r: r[0] in 'va' and r[1:].isdigit()
    iss = lambda r: (r[0] == 's' and r[1:].isdigit()) or r.startswith('vcc')
    for x in st:
        if x.cls in ('label', 'directive', 'pseudo'):
            out.append(x); continue
        need = 0; dist = 0
        valu = x.cls in ('valu', 'trans'); mf = x.cls in ('mfma4', 'mfma8')
        mem = x.cls in ('vmem_ld', 'vmem_st', 'dma', 'ds_ld', 'ds_st')
        base = re.sub(r'_(e32|e64|dpp|sdwa)$', '', x.op)
        for p in reversed(out):
            if dist >= 20: break
            if p.cls in ('label', 'directive', 'pseudo'): continue
            req = 0
            pv = p.cls in ('valu', 'trans')
            if pv:
                wv = {r for r in p.wr if isv(r)}; ws = {r for r in p.wr if iss(r)}
                if mf and (wv & x.rd): req = max(req, 2)
                if valu and x.dpp and (wv & x.rd): req = max(req, 2)
                if base.startswith('v_permlane') and (wv & x.rd): req = max(req, 2)
                if base in ('v_readfirstlane_b32', 'v_readlane_b32') and (wv & x.rd): req = max(req, 1)
                if p.cls == 'trans' and (valu or mf or mem) and (wv & x.rd): req = max(req, 1)
                if valu and (ws & x.rd): req = max(req, 2)
                if x.cls in ('vmem_ld', 'vmem_st', 'dma') and (ws & x.rd): req = max(req, 5)
                if x.cls in ('salu', 'smem', 'ctl') and (ws & x.rd): req = max(req, 2)
                if base in ('v_readlane_b32', 'v_writelane_b32') and (ws & x.rd): req = max(req, 4)
            if p.cls in ('mfma4', 'mfma8'):
                e = p.cls == 'mfma8'
                if mf:
                    if p.wr & x.srcAB: req = max(req, 12 if e else 8)
                    if (p.wr & x.srcC) and not (p.wr == x.srcC and p.cls == x.cls): req = max(req, 10 if e else 6)
                    if (p.wr & x.wr) and not (p.wr == x.srcC and p.cls == x.cls): req = max(req, 12 if e else 8)
                elif (valu or mem) and (p.wr & (x.rd | x.wr)): req = max(req, 12 if e else 8)
                if valu and (p.srcC & x.wr): req = max(req, 7 if e else 3)
            if p.cls == 'salu' and 'm0' in p.wr and x.cls == 'dma': req = max(req, 1)
            if p.cls == 'vmem_st' and p.wide and (p.arg & x.wr): req = max(req, 2)
            if p.cls == 'salu' and ('exec_lo' in p.wr) and valu and x.dpp: req = max(req, 2)
            need = max(need, req - dist)
            dist += _states(p)
        while need > 0:
            n = min(need, 16); out.append(Ins(f"s_nop {n-1}")); need -= n
        out.append(x)
    return out

E64OK = ('v_exp_f32', 'v_rcp_f32', 'v_add_f32', 'v_mul_f32', 'v_sub_f32', 'v_mov_b32', 'v_lshlrev_b32', 'v_and_b32', 'v_sqrt_f32',
         'v_add_u32', 'v_or_b32', 'v_xor_b32', 'v_lshrrev_b32', 'v_fmac_f32', 'v_max_f32', 'v_min_f32')
def align8(st):
    off = 0; last4 = None; out = Stream()
    for x in st:
        if x.cls == 'directive' and x.op == '.p2align': off = 0; last4 = None
        if x.size == 8 and off % 8 == 4 and last4 is not None:
            y = out[last4]; z = Ins(y.text.replace(y.op, y.op + '_e64', 1), y.tag); assert z.size == 8
            out[last4] = z; off += 4
        if x.size == 8: last4 = None
        if x.size == 4:
            last4 = len(out) if x.op in E64OK else (last4 if off % 8 == 4 else None)
        if x.cls == 'label': last4 = None
        out.append(x); off += x.size
    return out

def text(st):
    return "\n".join((x.text if x.cls in ('label', 'directive') else "    " + x.text) for x in st) + "\n"
```

```python
import sys, struct
from ir import *

NAME = "recurrent_scan__ssm_conv_h3__dense_activation_silu__prompt"
OPT = dict(prof=0, stats_fill=0, hring=16, flagB_at=60, codepf=1)
for a in sys.argv[2:]:
    k, v = a.split('='); OPT[k] = int(v)

HWS = 0; KVR = 0x700000; YT = 0x900000; STATS = 0xB00000; FLA = 0xB10000; FLB = 0xB30000; FLC = 0xB50000
PROF = 0xB80000; WS_SIZE = 0xC00000
E = 131072; KT = E; VT = E + 9360; HC = E; UR = E + 17680; CS = E + 26896; DUMP = CS + 512
LDS_BYTES = 163840
OOB = 0x80000000
f2u = lambda f: struct.unpack('<I', struct.pack('<f', f))[0]
NLOG2E = f2u(-1.4426950408889634)

sX, sJ, sW, sT0, sT1 = 3, 4, 5, 6, 7
Q1, QF, SKK, SVV, W1, W2, SSK, WS, WSH, OUT, DBG, SHK, KZ = 8, 12, 16, 20, 24, 28, 32, 36, 40, 44, 48, 52, 60
sDptr = 56; sN = 58; sDv = 59
sQoff = 64; sWoff = 72
sM0b = 80; sW2off = 81; sStatC = 82; sPad = 83; sStatW = 84; sFH = 85; sTH = 86; sH0 = 87
CODE = 88; sHst = 88
sM0q = 92; sM0w = 93; sP = 94; sCnt = 96
sRB1, sCB1, sRB2, sCB2, sCH = 97, 98, 99, 100, 101
sKV0, sKV1, sFAo, sFAp, sU, sFBo, sFBp, sYs = 16, 17, 18, 19, 20, 21, 22, 23
sFCo, sFCp, sHL, sYl = 52, 53, 54, 55
sXO, sStatF, sHC, sHLo = 60, 61, 62, 63
def srd(b): return f"s[{b}:{b+3}]"

vL = 1; vL16 = 2; vL0 = 3
vQD = 4; vWD = 8; vBD = 12
vQA = 16; vWA = 24
vN = 28; vSTV = 29; vCSW = 30; vCSA = 31
vTA = 33; vCA = 37
vCB = 41; vCU = 42; vCD = 43; vCX = 44; vCXR = 45; vCY = 46
vPA = 47; vPB = 48; vPC = 49
vXD = 50; vYL = 51; vOS = 52
vXA = 53; vYW = 54; vYA = 55; vOW = 56; vOR = 57; vRW = 58; vRR = 59
vPROF = 62; vT = 63
ACC = 64; FR = 128
CSX = 160; CSACC = 168; SEL = 172; CSV = 176
STL = 208; MR = 216
def vr(b, n=1): return f"v{b}" if n == 1 else f"v[{b}:{b+n-1}]"
def ar(b, n): return f"a[{b}:{b+n-1}]"

rare = Stream(); nrare = [0]
def check_poll(S, reloads, tagregs):
    k = nrare[0]; nrare[0] += 1
    def cmp(T):
        if len(tagregs) == 1:
            T(f"v_cmp_ne_u32 vcc, s{sN}, v{tagregs[0]}")
        else:
            T(f"v_xor_b32 v{vT}, s{sN}, v{tagregs[0]}")
            for r in tagregs[1:]:
                T(f"v_xor_b32 v{r}, s{sN}, v{r}\nv_or_b32 v{vT}, v{vT}, v{r}")
            T(f"v_cmp_ne_u32 vcc, 0, v{vT}")
    g = Stream(); cmp(g); g(f"s_cbranch_vccnz L_rare{k}\nL_back{k}:")
    S.atomic(g)
    rare(f"L_rare{k}:\ns_mov_b32 s{sCnt}, 0\nL_rl{k}:\ns_sleep 1")
    for t in reloads: rare(t)
    rare("s_waitcnt vmcnt(0)")
    cmp(rare)
    rare(f"s_nop 1\ns_cbranch_vccz L_back{k}\ns_add_u32 s{sCnt}, s{sCnt}, 1\ns_cmp_lt_u32 s{sCnt}, 0x4000\ns_cbranch_scc1 L_rl{k}\ns_branch L_back{k}")

stamp_names = []
def stamp(S, name):
    if not OPT['prof']: return
    k = len(stamp_names); stamp_names.append(name)
    g = Stream(); g(f"s_memrealtime s[{sP}:{sP+1}]\ns_waitcnt lgkmcnt(0)\nv_writelane_b32 v{vPROF}, s{sP}, {k}")
    S.atomic(g)

def dma_n(S, vbase, srdb, soff, m0txt, tag, n=4, samev=False):
    g = Stream(); g(m0txt)
    for i in range(n):
        g(f"buffer_load_dwordx4 v{vbase + (0 if samev else i)}, {srd(srdb)}, s{soff} offen" + (f" offset:{i*1024}" if i else "") + " lds", tag if i == n-1 else None)
    S.atomic(g)

def chunk_dma(i, sq=None, sw=None):
    S = Stream(); slot = i & 3
    dma_n(S, vQD, Q1, sQoff + i if sq is None else sq, f"s_add_u32 m0, s{sM0q}, {slot*32768}", None)
    dma_n(S, vWD, W1, sWoff + i if sw is None else sw, f"s_add_u32 m0, s{sM0w}, {slot*32768}", f"c{i}")
    return S

def w2_dma(b):
    S = Stream(); slot = b & 3
    dma_n(S, vBD, W2, sW2off, f"s_add_u32 m0, s{sM0b}, {slot*32768}", None)
    S(f"s_add_u32 s{sW2off}, s{sW2off}, 32768")
    dma_n(S, vBD, W2, sW2off, f"s_add_u32 m0, s{sM0b}, {slot*32768+4096}", f"b{b}")
    S(f"s_add_u32 s{sW2off}, s{sW2off}, 32768")
    return S

def w2_tr(b):
    S = Stream(); slot = b & 3; hi = slot >> 1
    S.waitvm(f"b{b}")
    for k4 in range(4):
        for u in range(2):
            a = ((4*b + k4) * 2 + u) * 4
            for rd in range(2):
                off = (slot & 1) * 32768 + k4 * 2048 + rd * 1024
                S(f"ds_read_b64_tr_b16 {ar(a+2*rd, 2)}, v{vTA+2*hi+u} offset:{off}", f"tr{b}")
    return S

vROW = 220
vSHK = 228
def entry():
    S = Stream()
    S(f"""
    s_load_dwordx16 s[64:79], s[0:1], 0
    s_load_dwordx8 s[80:87], s[0:1], 64
    s_cmp_ge_u32 s2, 256
    s_cbranch_scc1 L_end
    v_lshrrev_b32 v{vT}, 6, v0
    v_and_b32 v{vL}, 63, v0
    s_and_b32 s{sX}, s2, 7
    v_readfirstlane_b32 s{sW}, v{vT}
    s_lshr_b32 s{sJ}, s2, 3
    s_lshr_b32 s{sCB1}, s{sJ}, 1
    s_and_b32 s{sT0}, s{sJ}, 1
    s_lshl_b32 s{sRB1}, s{sX}, 1
    s_add_u32 s{sRB1}, s{sRB1}, s{sT0}
    s_lshr_b32 s{sT1}, s{sJ}, 3
    s_lshl_b32 s{sRB2}, s{sX}, 2
    s_add_u32 s{sRB2}, s{sRB2}, s{sT1}
    s_and_b32 s{sCB2}, s{sJ}, 7
    s_lshl_b32 s{sT0}, s{sT0}, 2
    s_add_u32 s{sT0}, s{sT0}, s{sCB1}
    s_add_u32 s{sT0}, s{sT0}, s{sX}
    s_and_b32 s{sT0}, s{sT0}, 7
    s_cmp_lt_u32 s{sCB1}, 14
    s_cselect_b32 s{Q1+2}, 0x200000, 0
    s_cselect_b32 s{W1+2}, 0x1c0000, 0
    s_cselect_b32 s{WSH+2}, {WS_SIZE}, 0
    s_mov_b32 s{QF+2}, 0x200000
    s_mov_b32 s{QF+3}, 0x20000
    s_mov_b32 s{Q1+3}, 0x20000
    s_mov_b32 s{W1+3}, 0x20000
    s_lshl_b32 s88, s{sX}, 5
    s_add_u32 s88, s88, s{sJ}
    s_lshl_b32 s88, s88, 2
    s_add_u32 s88, s88, s{sW}
    s_lshl_b32 s88, s88, 11
    s_lshl_b32 s89, s{sRB1}, 2
    s_add_u32 s89, s89, s{sW}
    s_lshl_b32 s89, s89, 15
    s_mul_i32 s90, s{sW}, {16*3584}
    s_lshl_b32 s{sT1}, s{sCB1}, 8
    s_add_u32 s90, s90, s{sT1}
    s_lshl_b32 s58, s{sT0}, 7
    s_add_u32 s58, s58, s89
    s_mul_i32 s59, s{sT0}, {64*3584}
    s_add_u32 s59, s59, s90
    s_lshl_b32 s{sM0q}, s{sW}, 12
    s_add_u32 s{sM0w}, s{sM0q}, 16384
    """)
    if OPT['prof']: S(f"v_mov_b32 v{vPROF}, 0")
    a, b, c, d = 232, 233, 234, 235
    S(f"""
    v_lshlrev_b32 v{vL16}, 4, v{vL}
    v_lshrrev_b32 v{a}, 5, v{vL}
    v_and_b32 v{b}, 31, v{vL}
    v_lshlrev_b32 v{b}, 4, v{b}
    v_lshl_add_u32 v236, v{a}, 10, v{b}
    v_lshrrev_b32 v{a}, 3, v{vL}
    v_and_b32 v{b}, 7, v{vL}
    v_lshrrev_b32 v{c}, 4, v{vL}
    v_xor_b32 v{d}, v{b}, v{c}
    v_lshlrev_b32 v{d}, 4, v{d}
    v_lshl_add_u32 v{vQD}, v{a}, 10, v{d}
    v_xor_b32 v{d}, 64, v{vQD}
    v_add_u32 v{vQD+1}, 7168, v{d}
    v_add_u32 v{vQD+2}, 14336, v{vQD}
    v_add_u32 v{vQD+3}, 21504, v{d}
    v_and_b32 v{d}, 15, v{vL}
    v_lshlrev_b32 v237, 2, v{c}
    v_xor_b32 v{d}, v{d}, v237
    v_lshlrev_b32 v{d}, 4, v{d}
    v_mul_u32_u24 v237, 3584, v{c}
    v_add_u32 v{vWD}, v237, v{d}
    v_add_u32 v{vWD+1}, {4*3584-1024}, v{vWD}
    v_add_u32 v{vWD+2}, {8*3584-2048}, v{vWD}
    v_add_u32 v{vWD+3}, {12*3584-3072}, v{vWD}
    v_lshlrev_b32 v{b}, 4, v{b}
    v_lshl_add_u32 v237, v{a}, 10, v{b}
    v_lshlrev_b32 v238, 4, v{a}
    """)
    S(f"""
    s_cmp_lg_u32 s{sRB2}, 0
    s_cselect_b32 s{KZ+2}, 0x200000, 0
    """)
    for bb, n in ((SKK, 0x200000), (SVV, 0x200000), (W2, 0x1c0000), (SSK, 0x200000), (WS, WS_SIZE), (OUT, 0x200000), (DBG, 256), (SHK, 4096)):
        S(f"s_mov_b32 s{bb+2}, {n}")
    for bb in (SKK, KZ, SVV, W2, SSK, WS, WSH, OUT, DBG, SHK):
        S(f"s_mov_b32 s{bb+3}, 0x20000")
    S.waitlg()
    stamp(S, "karg")
    S(f"""
    s_mov_b64 s[{QF}:{QF+1}], s[64:65]
    s_mov_b64 s[{Q1}:{Q1+1}], s[64:65]
    s_mov_b64 s[{W1}:{W1+1}], s[78:79]
    buffer_load_dwordx4 v[{vROW}:{vROW+3}], v236, {srd(QF)}, s88 offen
    buffer_load_dwordx4 v[{vROW+4}:{vROW+7}], v236, {srd(QF)}, s88 offen offset:512
    """)
    S.extend(chunk_dma(0, 58, 59))
    S(f"""
    s_mov_b64 s[{SKK}:{SKK+1}], s[66:67]
    s_mov_b64 s[{KZ}:{KZ+1}], s[66:67]
    s_mov_b64 s[{SVV}:{SVV+1}], s[68:69]
    s_mov_b64 s[{SHK}:{SHK+1}], s[70:71]
    s_mov_b64 s[{SSK}:{SSK+1}], s[72:73]
    s_mov_b64 s[{sDptr}:{sDptr+1}], s[74:75]
    s_mov_b64 s[{W2}:{W2+1}], s[80:81]
    s_mov_b64 s[{OUT}:{OUT+1}], s[82:83]
    s_mov_b64 s[{DBG}:{DBG+1}], s[84:85]
    s_mov_b64 s[{WS}:{WS+1}], s[86:87]
    s_mov_b64 s[{WSH}:{WSH+1}], s[86:87]
    """)
    S(f"""
    s_cmp_lt_u32 s2, 8
    s_cselect_b32 s{sT1}, s{sW}, 1
    s_cmp_eq_u32 s{sT1}, 0
    s_cbranch_scc0 L_nonce_done
    s_memrealtime s[{sP}:{sP+1}]
    v_mov_b32 v241, 0
    s_waitcnt lgkmcnt(0)
    s_or_b32 s{sT1}, s{sP}, 1
    v_mov_b32 v240, s{sT1}
    s_mov_b64 exec, 1
    global_atomic_cmpswap v241, v[240:241], s[84:85] sc1
    s_mov_b64 exec, -1
    L_nonce_done:
    """)
    S[-3].cls = 'other'
    def coff(i):
        S(f"""
        s_add_u32 s{sT1}, s{sT0}, {i}
        s_and_b32 s{sT1}, s{sT1}, 7
        s_lshl_b32 s{sQoff+i}, s{sT1}, 7
        s_add_u32 s{sQoff+i}, s{sQoff+i}, s89
        s_mul_i32 s{sWoff+i}, s{sT1}, {64*3584}
        s_add_u32 s{sWoff+i}, s{sWoff+i}, s90
        """)
    coff(1); S.extend(chunk_dma(1))
    S(f"""
    s_lshl_b32 s{sT1}, s{sRB2}, 16
    s_lshl_b32 s91, s{sCB2}, 7
    s_add_u32 s{sT1}, s{sT1}, s91
    s_lshl_b32 s91, s{sW}, 13
    s_add_u32 s91, s91, s{sT1}
    s_mul_i32 s{sCnt}, s{sW}, 1040
    s_add_u32 m0, s{sCnt}, {KT+1040}
    s_sub_u32 s{sT1}, s{sT1}, 8192
    buffer_load_dwordx4 v237, {srd(SKK)}, s91 offen lds
    s_add_u32 m0, s{sCnt}, {VT}
    s_max_i32 s{sT1}, s{sT1}, 0
    buffer_load_dwordx4 v237, {srd(SVV)}, s91 offen lds
    s_add_u32 m0, s{sCnt}, {KT+5*1040}
    s_add_u32 s91, s91, 32768
    buffer_load_dwordx4 v237, {srd(SKK)}, s91 offen lds
    s_add_u32 m0, s{sCnt}, {VT+4*1040}
    v_cmp_gt_u32 vcc, 40, v{vL}
    buffer_load_dwordx4 v237, {srd(SVV)}, s91 offen lds
    v_mov_b32 v239, {OOB}
    s_mov_b32 m0, {KT}
    v_cndmask_b32 v237, v237, v239, vcc
    s_lshl_b32 s91, s{sCB2}, 9
    s_lshl_b32 s{sCnt}, s{sW}, 7
    buffer_load_dwordx4 v237, {srd(KZ)}, s{sT1} offen lds
    s_add_u32 s91, s91, s{sCnt}
    buffer_load_dwordx4 v[{vSHK}:{vSHK+3}], v238, {srd(SHK)}, s91 offen
    """)
    coff(2); S.extend(chunk_dma(2))
    coff(3); S.extend(chunk_dma(3))
    for i in range(4, 8): coff(i)
    if OPT['codepf']:
        S(f"""
        s_getpc_b64 s[{CODE}:{CODE+1}]
        L_pc:
        s_mov_b32 s{CODE+2}, L_codeend-L_pc
        s_mov_b32 s{CODE+3}, 0x20000
        s_lshl_b32 s{sT1}, s{sJ}, 10
        buffer_load_dwordx4 a[252:255], v{vL16}, {srd(CODE)}, s{sT1} offen
        """)
    return S

def setup():
    S = Stream()
    S(f"""
    s_and_b32 s{sFH}, s{sW}, 1
    s_lshr_b32 s{sTH}, s{sW}, 1
    s_lshl_b32 s{sCH}, s2, 1
    s_add_u32 s{sCH}, s{sCH}, s{sTH}
    s_lshl_b32 s{sT0}, s2, 2
    s_lshl_b32 s{sT1}, s{sCH}, 12
    s_load_dword s{sDv}, s[{sDptr}:{sDptr+1}], s{sT0}
    s_load_dword s{sH0}, s[{SSK}:{SSK+1}], s{sT1}
    s_lshl_b32 s{sM0b}, s{sW}, 13
    s_mul_i32 s{sW2off}, s{sW}, {448*1024}
    s_lshl_b32 s{sT0}, s{sCB2}, 7
    s_add_u32 s{sW2off}, s{sW2off}, s{sT0}
    s_lshl_b32 s{sStatC}, s{sRB1}, 1
    s_add_u32 s{sStatC}, s{sStatC}, s{sTH}
    s_lshl_b32 s{sFBo}, s{sStatC}, 5
    s_mul_i32 s{sHst}, s{sStatC}, {2*112*1024}
    s_lshl_b32 s{sStatC}, s{sStatC}, 10
    s_add_u32 s{sStatC}, s{sStatC}, {STATS}
    s_lshl_b32 s{sT0}, s{sCB1}, 1
    s_add_u32 s{sT0}, s{sT0}, s{sFH}
    s_add_u32 s{sFBo}, s{sFBo}, s{sT0}
    s_lshl_b32 s{sFBo}, s{sFBo}, 7
    s_add_u32 s{sFBo}, s{sFBo}, {FLB}
    s_lshl_b32 s{sT0}, s{sT0}, 12
    s_add_u32 s{sHst}, s{sHst}, s{sT0}
    s_lshl_b32 s{sT0}, s{sTH}, 11
    s_xor_b32 s{sT1}, s{sT0}, 2048
    s_add_u32 s{sHst+2}, s{sHst}, s{sT1}
    s_add_u32 s{sHst}, s{sHst}, s{sT0}
    s_add_u32 s{sHst+1}, s{sHst}, {112*1024}
    s_add_u32 s{sHst+3}, s{sHst+2}, {112*1024}
    s_lshl_b32 s{sStatW}, s{sX}, 5
    s_add_u32 s{sStatW}, s{sStatW}, s{sJ}
    s_lshl_b32 s{sStatW}, s{sStatW}, 7
    s_lshl_b32 s{sT0}, s{sW}, 4
    s_add_u32 s{sStatW}, s{sStatW}, s{sT0}
    s_add_u32 s{sStatW}, s{sStatW}, {STATS}
    s_lshl_b32 s{sT0}, s{sCB2}, 2
    s_add_u32 s{sT0}, s{sT0}, s{sW}
    s_lshl_b32 s{sKV0}, s{sT0}, 16
    s_lshl_b32 s{sT1}, s{sRB2}, 7
    s_sub_u32 s{sKV0}, s{sKV0}, s{sT1}
    s_add_u32 s{sKV0}, s{sKV0}, {KVR + 1984*2}
    s_add_u32 s{sKV1}, s{sKV0}, 4096
    s_lshl_b32 s{sFAo}, s{sT0}, 5
    s_add_u32 s{sFAo}, s{sFAo}, s{sRB2}
    s_lshl_b32 s{sFAo}, s{sFAo}, 7
    s_add_u32 s{sFAo}, s{sFAo}, {FLA}
    s_lshr_b32 s{sFAp}, s{sCH}, 4
    s_lshl_b32 s{sFAp}, s{sFAp}, 12
    s_lshl_b32 s{sT0}, s{sFH}, 11
    s_sub_u32 s{sFAp}, s{sFAp}, s{sT0}
    s_add_u32 s{sFAp}, s{sFAp}, {FLA + 2048}
    s_lshl_b32 s{sHC}, s{sCH}, 12
    s_add_u32 s{sU}, s{sHC}, s{sT0}
    s_add_u32 s{sYs}, s{sU}, {YT}
    s_add_u32 s{sU}, s{sU}, {KVR}
    s_lshl_b32 s{sT0}, s{sFH}, 1
    s_add_u32 s{sHC}, s{sHC}, s{sT0}
    s_lshl_b32 s{sFBp}, s{sRB2}, 5
    s_mul_i32 s{sT0}, s{sW}, 7
    s_add_u32 s{sFBp}, s{sFBp}, s{sT0}
    s_lshl_b32 s{sFBp}, s{sFBp}, 7
    s_add_u32 s{sFBp}, s{sFBp}, {FLB}
    s_lshl_b32 s{sFCo}, s{sCH}, 1
    s_add_u32 s{sFCo}, s{sFCo}, s{sFH}
    s_lshl_b32 s{sFCo}, s{sFCo}, 7
    s_add_u32 s{sFCo}, s{sFCo}, {FLC}
    s_lshl_b32 s{sT0}, s{sCB2}, 1
    s_add_u32 s{sT0}, s{sT0}, s{sFH}
    s_lshl_b32 s{sFCp}, s{sT0}, 13
    s_lshr_b32 s{sT1}, s{sRB2}, 4
    s_lshl_b32 s{sT1}, s{sT1}, 7
    s_add_u32 s{sFCp}, s{sFCp}, s{sT1}
    s_add_u32 s{sFCp}, s{sFCp}, {FLC}
    s_lshl_b32 s{sYl}, s{sT0}, 17
    s_lshl_b32 s{sXO}, s{sT0}, 6
    s_lshl_b32 s{sT0}, s{sRB2}, 1
    s_add_u32 s{sT0}, s{sT0}, s{sTH}
    s_lshl_b32 s{sT1}, s{sT0}, 6
    s_add_u32 s{sYl}, s{sYl}, s{sT1}
    s_add_u32 s{sYl}, s{sYl}, {YT}
    s_lshl_b32 s{sT1}, s{sT0}, 15
    s_add_u32 s{sXO}, s{sXO}, s{sT1}
    s_lshl_b32 s{sStatF}, s{sT0}, 9
    s_add_u32 s{sStatF}, s{sStatF}, {STATS}
    s_mul_i32 s{sHLo}, s{sT0}, {112*1024}
    s_xor_b32 s{sT0}, s{sT0}, 1
    s_mul_i32 s{sHL}, s{sT0}, {112*1024}
    s_mul_i32 s{sT0}, s{sW}, {28*1024}
    s_add_u32 s{sHL}, s{sHL}, s{sT0}
    s_add_u32 s{sHLo}, s{sHLo}, s{sT0}
    """)
    a, b, c, d, e, f = 240, 241, 242, 243, 244, 245
    a, b, c, d, e, f = 244, 245, 246, 247, 248, 249
    S(f"""
    v_mov_b32 v{a}, {OOB}
    v_cmp_eq_u32 vcc, 0, v{vL}
    v_and_b32 v{b}, 31, v{vL}
    v_lshrrev_b32 v{c}, 5, v{vL}
    v_cndmask_b32 v{vL0}, v{a}, 0, vcc
    v_lshrrev_b32 v{d}, 3, v{b}
    v_and_b32 v{e}, 7, v{vL}
    v_lshlrev_b32 v{e}, 3, v{e}
    v_lshl_add_u32 v{vSTV}, v{d}, 7, v{e}
    """)
    S(f"""
    v_lshrrev_b32 v{d}, 1, v{b}
    v_and_b32 v{d}, 7, v{d}
    v_xor_b32 v{d}, v{d}, v{c}
    v_lshlrev_b32 v{d}, 4, v{d}
    v_lshl_add_u32 v{d}, v{b}, 7, v{d}
    s_lshl_b32 s{sT0}, s{sTH}, 13
    v_add_u32 v{vQA}, s{sT0}, v{d}
    v_xor_b32 v{vQA+1}, 32, v{vQA}
    v_xor_b32 v{vQA+2}, 64, v{vQA}
    v_xor_b32 v{vQA+3}, 0x60, v{vQA}
    """)
    for k in range(4): S(f"v_add_u32 v{vQA+4+k}, 0x10000, v{vQA+k}")
    S(f"""
    v_bfe_u32 v{d}, v{vL}, 2, 2
    v_and_b32 v{e}, 3, v{vL}
    v_lshlrev_b32 v{e}, 3, v{e}
    v_bfe_u32 v{f}, v{vL}, 4, 1
    v_lshl_add_u32 v{e}, v{f}, 5, v{e}
    s_lshl_b32 s{sT0}, s{sFH}, 1
    s_add_u32 s{sT0}, s{sT0}, s{sTH}
    v_xor_b32 v{f}, s{sT0}, v{d}
    v_lshl_add_u32 v{f}, v{f}, 6, v{e}
    v_lshl_add_u32 v{f}, v{d}, 8, v{f}
    v_lshl_add_u32 v{vWA}, v{c}, 11, v{f}
    v_xor_b32 v{vWA+1}, 64, v{vWA}
    v_add_u32 v{vWA+2}, 0x10000, v{vWA}
    v_add_u32 v{vWA+3}, 0x10000, v{vWA+1}
    v_lshrrev_b32 v{f}, 1, v{d}
    v_xor_b32 v{f}, s{sFH}, v{f}
    v_lshl_add_u32 v{f}, v{f}, 6, v{e}
    v_lshl_add_u32 v{f}, v{d}, 7, v{f}
    v_lshl_add_u32 v{f}, v{c}, 9, v{f}
    v_add_u32 v{vTA}, s{sM0b}, v{f}
    v_xor_b32 v{vTA+1}, 64, v{vTA}
    v_add_u32 v{vTA+2}, 0x10000, v{vTA}
    v_add_u32 v{vTA+3}, 0x10000, v{vTA+1}
    v_lshl_add_u32 v{f}, v{d}, 6, v{e}
    v_lshl_add_u32 v{f}, v{c}, 8, v{f}
    s_add_u32 s{sT0}, s{sM0b}, {32768 + 6144}
    v_add_u32 v{vYA}, s{sT0}, v{f}
    v_add_u32 v{vYW}, s{sT0}, v{vL16}
    """)
    n, g = d, e
    S(f"""
    v_and_b32 v{n}, 15, v{vL}
    v_lshrrev_b32 v{g}, 4, v{vL}
    v_and_b32 v{f}, 1, v{g}
    v_cmp_eq_u32 vcc, v{n}, v{f}
    v_mov_b32 v{f}, 0x3f803f80
    v_lshlrev_b32 v{a}, 4, v{g}
    v_cndmask_b32 v{SEL}, 0, v{f}, vcc
    v_lshl_add_u32 v{a}, v{n}, 6, v{a}
    v_mov_b32 v{SEL+1}, v{SEL}
    v_mov_b32 v{SEL+2}, v{SEL}
    v_mov_b32 v{SEL+3}, v{SEL}
    s_lshl_b32 s{sT0}, s{sFH}, 8
    s_lshl_b32 s{sT1}, s{sTH}, 7
    s_add_u32 s{sT0}, s{sT0}, s{sT1}
    s_add_u32 s{sT0}, s{sT0}, {CS}
    v_add_u32 v{a}, s{sT0}, v{a}
    v_add_u32 v{f}, {DUMP}, v{vL16}
    v_cmp_gt_u32 vcc, 2, v{n}
    v_lshlrev_b32 v{b}, 4, v{c}
    v_add_u32 v{vCSA}, s{sT0}, v{b}
    v_cndmask_b32 v{vCSW}, v{f}, v{a}, vcc
    v_xor_b32 v{vCSA+1}, 0x80, v{vCSA}
    """)
    assert CS % 256 == 16 or True
    S(f"""
    v_lshrrev_b32 v{a}, 3, v{vL}
    v_and_b32 v{b}, 7, v{vL}
    v_bfe_u32 v{f}, v{vL}, 4, 1
    v_lshlrev_b32 v{f}, 2, v{f}
    v_xor_b32 v{b}, v{b}, v{f}
    v_lshlrev_b32 v{b}, 4, v{b}
    v_lshl_add_u32 v{vBD}, v{a}, 10, v{b}
    v_add_u32 v{vBD+1}, 7168, v{vBD}
    v_add_u32 v{vBD+2}, 14336, v{vBD}
    v_add_u32 v{vBD+3}, 21504, v{vBD}
    """)
    S(f"""
    v_lshlrev_b32 v{a}, 1, v{n}
    v_lshl_add_u32 v{a}, v{g}, 4, v{a}
    v_and_b32 v{b}, 1, v{n}
    v_cmp_eq_u32 vcc, 0, v{b}
    v_mov_b32 v{f}, {4160 - 2}
    s_mul_i32 s{sT0}, s{sTH}, 8320
    s_lshl_b32 s{sT1}, s{sFH}, 6
    v_cndmask_b32 v{b}, 0, v{f}, vcc
    s_add_u32 s{sT0}, s{sT0}, s{sT1}
    s_add_u32 s{sT0}, s{sT0}, {HC + 32 - 30}
    v_add3_u32 v{vCA}, v{a}, v{b}, s{sT0}
    v_add_u32 v{vCA+1}, 1024, v{vCA}
    v_add_u32 v{vCA+2}, 2048, v{vCA}
    v_add_u32 v{vCA+3}, 3072, v{vCA}
    s_mul_i32 s{sT0}, s{sTH}, 4608
    s_add_u32 s{sT0}, s{sT0}, {UR}
    v_lshlrev_b32 v{a}, 5, v{n}
    v_lshlrev_b32 v{b}, 4, v{g}
    v_sub_u32 v{b}, v{b}, v{a}
    s_add_u32 s{sT1}, s{sT1}, s{sT0}
    s_add_u32 s{sT1}, s{sT1}, 480
    v_add_u32 v{vCB}, s{sT1}, v{b}
    v_lshl_add_u32 v{b}, v{g}, 3, v{a}
    s_lshl_b32 s{sT1}, s{sFH}, 11
    s_sub_u32 s{sCnt}, s{sT0}, s{sT1}
    s_add_u32 s{sCnt}, s{sCnt}, {4088 - 1536}
    v_sub_u32 v{vCD}, s{sCnt}, v{b}
    s_add_u32 s{sT1}, s{sT1}, s{sT0}
    v_add_u32 v{vCU}, s{sT1}, v{vL16}
    v_and_b32 v{b}, 0x1f0, v{vL16}
    s_add_u32 s{sT0}, s{sT0}, 4096
    v_add_u32 v{b}, s{sT0}, v{b}
    v_mov_b32 v252, 0
    v_mov_b32 v253, 0
    v_mov_b32 v254, 0
    v_mov_b32 v255, 0
    ds_write_b128 v{b}, v[252:255]
    s_add_u32 s{sT0}, s{sM0b}, {3*32768}
    v_add_u32 v{vCX}, s{sT0}, v{vL16}
    v_xor_b32 v{vCXR}, 0x2000, v{vCX}
    v_and_b32 v{b}, 1, v{g}
    v_lshl_add_u32 v{a}, v{b}, 9, v{a}
    v_lshrrev_b32 v{b}, 1, v{g}
    v_lshl_add_u32 v{vCY}, v{b}, 4, v{a}
    v_lshlrev_b32 v{vPA}, 7, v{n}
    v_min_u32 v{a}, 6, v{vL}
    v_lshlrev_b32 v{vPB}, 7, v{a}
    v_and_b32 v{a}, 31, v{vL}
    v_lshlrev_b32 v{vPC}, 8, v{a}
    """)
    S(f"""
    v_lshrrev_b32 v{b}, 2, v{vL}
    v_and_b32 v{f}, 3, v{vL}
    v_lshlrev_b32 v{f}, 4, v{f}
    v_lshl_add_u32 v{vOS}, v{b}, 10, v{f}
    v_lshl_add_u32 v{vYL}, v{b}, 12, v{f}
    v_lshlrev_b32 v{d}, 4, v{g}
    v_xor_b32 v{vXD}, v{vOS}, v{d}
    v_mul_u32_u24 v{b}, 80, v{b}
    s_add_u32 s{sT0}, s{sM0b}, 65536
    v_add3_u32 v{vOR}, v{b}, v{f}, s{sT0}
    v_mul_u32_u24 v{b}, 80, v{a}
    v_lshl_add_u32 v{b}, v{c}, 3, v{b}
    v_add_u32 v{vOW}, s{sT0}, v{b}
    v_bfe_u32 v{b}, v{vL}, 2, 2
    v_lshlrev_b32 v{b}, 4, v{b}
    v_lshl_add_u32 v{b}, v{a}, 6, v{b}
    v_lshl_add_u32 v{b}, v{c}, 3, v{b}
    s_add_u32 s{sT0}, s{sM0b}, {32768 + 4096}
    v_add_u32 v{vXA}, s{sT0}, v{b}
    v_add_u32 v{vRW}, s{sM0b}, v{vL16}
    v_xor_b32 v{vRR}, 0x4000, v{vRW}
    v_xor_b32 v{vRR+1}, 0x6000, v{vRW}
    v_xor_b32 v{vRR+2}, 0x2000, v{vRW}
    """)
    S.waitlg()
    S(f"""
    s_lshl_b32 s{sT0}, s{sDv}, 16
    s_and_b32 s{sDv}, s{sDv}, 0xffff0000
    s_cmp_eq_u32 s{sTH}, 0
    s_cselect_b32 s{sDv}, s{sT0}, s{sDv}
    s_lshl_b32 s{sPad}, s{sH0}, 16
    s_cmp_eq_u32 s{sFH}, 0
    s_cselect_b32 s{sPad}, 0, s{sPad}
    """)
    return S

def nonce_get():
    S = Stream()
    S(f"s_load_dword s{sN}, s[{DBG}:{DBG+1}], 0 glc")
    return S
def nonce_use():
    S = Stream(); g = Stream()
    g(f"s_waitcnt lgkmcnt(0)\ns_cmp_eq_u32 s{sN}, 0\ns_cbranch_scc1 L_rareN\nL_backN:\nv_mov_b32 v{vN}, s{sN}")
    S.atomic(g)
    rare(f"""
    L_rareN:
    s_mov_b32 s{sCnt}, 0
    L_rlN:
    s_load_dword s{sN}, s[{DBG}:{DBG+1}], 0 glc
    s_waitcnt lgkmcnt(0)
    s_cmp_lg_u32 s{sN}, 0
    s_cbranch_scc1 L_backN
    s_add_u32 s{sCnt}, s{sCnt}, 1
    s_cmp_lt_u32 s{sCnt}, 0x4000
    s_cbranch_scc1 L_rlN
    s_branch L_backN
    """)
    return S

def stats():
    S = Stream(); X = 176; A = 192; B = 193; C = 194
    for i in range(8):
        S(f"v_lshlrev_b32 v{X+2*i}, 16, v{vROW+i}\nv_and_b32 v{X+2*i+1}, 0xffff0000, v{vROW+i}")
    def allred(r):
        for m in ("quad_perm:[1,0,3,2]", "quad_perm:[2,3,0,1]", "row_half_mirror", "row_mirror"):
            S(f"v_add_f32_dpp v{r}, v{r}, v{r} {m} row_mask:0xf bank_mask:0xf")
        S(f"v_mov_b32 v{C}, v{r}\nv_permlane16_swap_b32 v{r}, v{C}\nv_add_f32 v{r}, v{r}, v{C}")
    S(f"v_add_f32 v{A}, v{X}, v{X+1}\nv_add_f32 v{B}, v{X+2}, v{X+3}")
    for i in range(4, 16, 2): S(f"v_add_f32 v{A}, v{A}, v{X+i}\nv_add_f32 v{B}, v{B}, v{X+i+1}")
    S(f"v_add_f32 v{A}, v{A}, v{B}")
    allred(A)
    S(f"v_mul_f32 v{A}, {f2u(1/512):#x}, v{A}")
    for i in range(16): S(f"v_sub_f32 v{X+i}, v{X+i}, v{A}")
    S(f"v_mul_f32 v{B}, v{X}, v{X}\nv_mul_f32 v{C+1}, v{X+1}, v{X+1}")
    for i in range(2, 16, 2): S(f"v_fmac_f32 v{B}, v{X+i}, v{X+i}\nv_fmac_f32 v{C+1}, v{X+i+1}, v{X+i+1}")
    S(f"v_add_f32 v{B}, v{B}, v{C+1}")
    allred(B)
    S(f"""
    v_mul_f32 v{B}, {f2u(1/512):#x}, v{B}
    v_cvt_pk_bf16_f32 v{B}, v{B}, v{B}
    v_lshlrev_b32 v{B}, 16, v{B}
    v_add_f32 v{B}, {f2u(1e-5):#x}, v{B}
    v_cvt_pk_bf16_f32 v{B}, v{B}, v{B}
    v_lshlrev_b32 v{B}, 16, v{B}
    v_sqrt_f32 v{B}, v{B}
    v_and_b32 v{C}, 31, v{vL}
    v_cvt_pk_bf16_f32 v196, v{A}, v{B}
    v_lshrrev_b32 v{A}, 2, v{vL}
    v_mov_b32 v{B}, {OOB}
    """)
    g = Stream(); g(f"v_cmp_eq_u32 vcc, 0, v{C}\nv_cndmask_b32 v198, v{B}, v{A}, vcc"); S.atomic(g)
    return S
def stats_store():
    S = Stream()
    S(f"v_mov_b32 v197, v{vN}\nbuffer_store_dwordx2 v[196:197], v198, {srd(WS)}, s{sStatW} offen sc1")
    return S

def kvpre():
    S = Stream()
    KR = 232; VR = 244; WF = 200; KL = 176; O = 208 - 16 - 4
    KR = 232
    VR = 244
    KL = 176
    WF = 188
    O = 208
    a1, a2, a3 = 252, 253, 254
    S(f"""
    v_and_b32 v{a1}, 7, v{vL}
    v_mul_u32_u24 v{a2}, 1040, v{a1}
    v_lshrrev_b32 v{a3}, 3, v{vL}
    v_lshl_add_u32 v{a2}, v{a3}, 2, v{a2}
    s_lshl_b32 s{sT0}, s{sW}, 5
    s_add_u32 s{sT0}, s{sT0}, {KT}
    v_add_u32 v{a2}, s{sT0}, v{a2}
    v_add_u32 v255, 1040, v{a2}
    ds_read2_b32 v[{KR}:{KR+1}], v{a2} offset0:160 offset1:192
    ds_read_b32 v{KR+2}, v{a2} offset:896
    """)
    for p in range(4): S(f"ds_read2_b32 v[{KR+4+2*p}:{KR+5+2*p}], v255 offset0:{64*p} offset1:{64*p+32}")
    S(f"v_add_u32 v{a2}, {VT-KT}, v{a2}")
    for p in range(4): S(f"ds_read2_b32 v[{VR+2*p}:{VR+1+2*p}], v{a2} offset0:{64*p} offset1:{64*p+32}")
    S(f"v_xor_b32 v{a1}, 7, v{a1}\nv_lshlrev_b32 v{a1}, 4, v{a1}\nv_lshl_add_u32 v{a1}, v{a3}, 13, v{a1}")
    for i in range(4):
        S(f"v_lshlrev_b32 v{WF+2*i}, 16, v{vSHK+i}\nv_and_b32 v{WF+2*i+1}, 0xffff0000, v{vSHK+i}")
    ri = lambda r: r + 3 if r < 0 else r + 4
    for r in range(-3, 8):
        S(f"v_lshlrev_b32 v{KL+ri(r)}, 16, v{KR+ri(r)}\nv_and_b32 v{KR+ri(r)}, 0xffff0000, v{KR+ri(r)}")
    OA = 200; OB = 220
    for ch, (K, Oo) in enumerate(((KL, OA), (KR, OB))):
        for t in range(8): S(f"v_mul_f32 v{Oo+t}, v{K+ri(t)}, v{WF+4*ch}")
        for jj in range(1, 4):
            for t in range(8): S(f"v_fmac_f32 v{Oo+t}, v{K+ri(t-jj)}, v{WF+4*ch+jj}")
    for t in range(8):
        S(f"v_lshlrev_b32 v{KL+t}, 16, v{VR+t}\nv_and_b32 v{VR+t}, 0xffff0000, v{VR+t}")
    for t in range(8):
        S(f"v_mul_f32 v{OA+t}, v{OA+t}, v{KL+t}\nv_mul_f32 v{OB+t}, v{OB+t}, v{VR+t}")
    for ch, (Oo, P) in enumerate(((OA, 232), (OB, 236))):
        for q in range(4): S(f"v_cvt_pk_bf16_f32 v{P+q}, v{Oo+7-2*q}, v{Oo+6-2*q}")
        S(f"buffer_store_dwordx4 v[{P}:{P+3}], v{a1}, {srd(WS)}, s{sKV0+ch} offen sc1", f"kv{ch}")
    return S
def flag_store(soff, srdb, tag):
    S = Stream(); S.waitvm(tag)
    S(f"buffer_store_dword v{vN}, v{vL0}, {srd(srdb)}, s{soff} offen sc1")
    return S

def hcopy_dma():
    S = Stream()
    S(f"s_mul_i32 s{sT0}, s{sW}, 4160\nv_and_b32 v252, 7, v{vL}\nv_mov_b32 v253, s{sPad}")
    dma_n(S, vL16, SSK, sHC, f"s_add_u32 m0, s{sT0}, {HC+32}", "hc", samev=True)
    g = Stream(); g(f"v_cmp_eq_u32 vcc, 7, v252\nv_lshlrev_b32 v252, 2, v252\ns_add_u32 s{sT0}, s{sT0}, {HC}\nv_cndmask_b32 v253, 0, v253, vcc\nv_add_u32 v252, s{sT0}, v252\nds_write_b32 v252, v253")
    S.atomic(g)
    return S

def g1_reads(i, ks):
    st = FR + 16 * ((4*i + ks) & 1); slot = i & 3; hi = slot >> 1; off = (slot & 1) * 32768
    L = []
    for u in range(2):
        for rd in range(2):
            L.append(f"ds_read_b64_tr_b16 v[{st+4*u+2*rd}:{st+4*u+2*rd+1}], v{vWA+2*hi+u} offset:{off+16384+ks*4096+rd*1024}")
    for tt in range(2):
        L.append(f"ds_read_b128 v[{st+8+4*tt}:{st+11+4*tt}], v{vQA+4*hi+ks} offset:{off+tt*4096}")
    return [L[0], L[1], L[4], L[5], L[2], L[3]]

def stat_loads(att):
    return [f"buffer_load_dwordx2 v[{STL+4*att+2*tt}:{STL+4*att+2*tt+1}], v{vSTV}, {srd(WS)}, s{sStatC} offen offset:{tt*512} sc1" for tt in range(2)]

def gemm1():
    S = Stream()
    S.waitvm("c0"); S("s_barrier")
    stamp(S, "c0")
    for t in g1_reads(0, 0): S(t)
    for i in range(8):
        S.mark(f"c{i}a")
        for ks in range(4):
            st = FR + 16 * ((4*i + ks) & 1); first = (i == 0 and ks == 0)
            nxt = g1_reads(i, ks+1) if ks < 3 else (g1_reads(i+1, 0) if i < 7 else [])
            extra = []
            if i == 7 and ks == 0:
                for k2 in (2, 3):
                    for rd in range(2):
                        extra.append(f"ds_read_b64_tr_b16 v[{CSX+4*(k2-2)+2*rd}:{CSX+4*(k2-2)+2*rd+1}], v{vWA+2} offset:{32768+16384+k2*4096+rd*1024}")
            rds = nxt + extra
            order = [(0, 0), (0, 1), (1, 0), (1, 1)]
            small = []
            if i < 7 or ks < 2: small.append(f"v[{st}:{st+3}]")
            if i == 7 and ks == 1: small += [f"v[{CSX}:{CSX+3}]", f"v[{CSX+4}:{CSX+7}]"]
            for n, (u, tt) in enumerate(order):
                acc = ACC + 16 * (2*u + tt)
                c = "0" if first else vr(acc, 16)
                S(f"v_mfma_f32_32x32x16_bf16 {vr(acc,16)}, v[{st+4*u}:{st+4*u+3}], v[{st+8+4*tt}:{st+11+4*tt}], {c}")
                k = 0
                while rds and k < 3: S(rds.pop(0)); k += 1
                if i == 7 and ks == 2 and n == 2:
                    S(f"ds_write_b128 v{vCSW}, v[{CSACC}:{CSACC+3}]"); k += 1
                S.fill(6 - k)
                if n == 0:
                    for sm in small:
                        c = "0" if first else vr(CSACC, 4)
                        S(f"v_mfma_f32_16x16x32_bf16 {vr(CSACC,4)}, {sm}, v[{SEL}:{SEL+3}], {c}")
                        S.fill(2)
            if ks == 1 and i < 7:
                S.mark(f"c{i}m")
                S.waitvm(f"c{i+1}"); S("s_barrier")
                S.mark(f"c{i}b")
            if ks == 2 and i == 7:
                S.mark("c7m"); S.waitlg(); S("s_barrier"); S.mark("c7b")
        S.mark(f"c{i}e")
    return S

def cs_reads():
    S = Stream()
    for u in range(2):
        for j in range(4): S(f"ds_read_b128 v[{CSV+16*u+4*j}:{CSV+16*u+4*j+3}], v{vCSA+u} offset:{32*j}")
    return S

def stats_consume():
    S = Stream()
    for tt in range(2):
        a0 = STL + 2*tt; a1 = STL + 4 + 2*tt
        g = Stream(); g(f"v_cmp_eq_u32 vcc, s{sN}, v{a0+1}\nv_cndmask_b32 v{a1}, v{a1}, v{a0}, vcc\nv_cndmask_b32 v{a1+1}, v{a1+1}, v{a0+1}, vcc"); S.atomic(g)
    check_poll(S, stat_loads(1), [STL+5, STL+7])
    for tt in range(2):
        a1 = STL + 4 + 2*tt
        S(f"v_and_b32 v{MR+2*tt+1}, 0xffff0000, v{a1}\nv_rcp_f32 v{MR+2*tt+1}, v{MR+2*tt+1}\nv_lshlrev_b32 v{MR+2*tt}, 16, v{a1}\nv_mul_f32 v{MR+2*tt+1}, {NLOG2E:#x}, v{MR+2*tt+1}")
    return S

def epi1(inserts):
    S = Stream(); n = 0
    for u in range(2):
        for tt in range(2):
            for s in range(2):
                acc = ACC + 16*(2*u+tt) + 8*s; cs = CSV + 16*u + 8*s; W = FR + 16*(n & 1); P = FR + 8 + 16*(n & 1)
                mr = f"v[{MR+2*tt}:{MR+2*tt+1}]"
                for p in range(4): S(f"v_pk_fma_f32 v[{acc+2*p}:{acc+2*p+1}], v[{cs+2*p}:{cs+2*p+1}], {mr}, v[{acc+2*p}:{acc+2*p+1}] op_sel_hi:[1,0,1] neg_lo:[0,1,0] neg_hi:[0,1,0]")
                for p in range(4): S(f"v_pk_mul_f32 v[{W+2*p}:{W+2*p+1}], v[{acc+2*p}:{acc+2*p+1}], {mr} op_sel:[0,1] op_sel_hi:[1,1]")
                for p in range(8): S(f"v_exp_f32_e64 v{W+p}, v{W+p}")
                for p in range(4): S(f"v_pk_add_f32 v[{W+2*p}:{W+2*p+1}], v[{W+2*p}:{W+2*p+1}], 1.0 op_sel_hi:[1,0]")
                for p in range(8): S(f"v_rcp_f32_e64 v{W+p}, v{W+p}")
                for p in range(4): S(f"v_pk_mul_f32 v[{W+2*p}:{W+2*p+1}], v[{acc+2*p}:{acc+2*p+1}], v[{W+2*p}:{W+2*p+1}]")
                for p in range(4): S(f"v_cvt_pk_bf16_f32 v{P+p}, v{W+2*p}, v{W+2*p+1}")
                S(f"buffer_store_dwordx4 v[{P}:{P+3}], v{vL16}, {srd(WSH)}, s{sHst+2*u+tt} offen" + (" offset:1024" if s else "") + " sc1", "hst")
                if n in inserts: S.extend(inserts[n])
                n += 1
    return S

CB = 128; CACC = 64; CAF = 96; NA = 6; UST = 220
def pollA_load(): return f"buffer_load_dword v228, v{vPA}, {srd(WS)}, s{sFAp} offen sc1"
def u_loads():
    S = Stream()
    check_poll(S, [pollA_load()], [228])
    S(f"buffer_load_dwordx4 v[{UST}:{UST+3}], v{vL16}, {srd(WS)}, s{sU} offen sc1")
    S(f"buffer_load_dwordx4 v[{UST+4}:{UST+7}], v{vL16}, {srd(WS)}, s{sU} offen offset:1024 sc1")
    return S

def conv():
    S = Stream()
    S(f"ds_write_b128 v{vCU}, v[{UST}:{UST+3}]\nds_write_b128 v{vCU}, v[{UST+4}:{UST+7}] offset:1024")
    S.waitvm("hc"); S.waitlg(); S("s_barrier")
    stamp(S, "conv0")
    order = []
    for m in range(16): order += [m, 31 - m]
    seq = [(m, T) for m in order for T in range(m >> 2, 8)]
    nB = lambda m, T: m + 28 - 4*T
    ldA = lambda idx: [f"ds_read2_b32 v[{CAF+4*(idx%NA)+2*h}:{CAF+4*(idx%NA)+2*h+1}], v{vCA+(order[idx]>>3)} offset0:{32*(order[idx]&7)+2*h} offset1:{32*(order[idx]&7)+2*h+1}" for h in range(2)]
    ldB = lambda n: f"ds_read_b128 v[{CB+4*n}:{CB+4*n+3}], v{vCB} offset:{128*n}"
    first = []; seenB = set(); pos = 0
    for idx, m in enumerate(order):
        for t in ldA(idx): first.append((pos, t, idx))
        for T in range(m >> 2, 8):
            n = nB(m, T)
            if n not in seenB: seenB.add(n); first.append((pos, ldB(n), None))
            pos += 1
    start = {}; pos = 0
    for idx, m in enumerate(order): start[idx] = pos; pos += 8 - (m >> 2)
    LEAD = 10
    k = 0
    def issue(p, lim):
        nonlocal k
        c = 0
        while k < len(first) and c < lim and first[k][0] <= p + LEAD:
            idx = first[k][2]
            if idx is not None and idx >= NA and start[idx - NA + 1] > p: break
            S(first[k][1]); k += 1; c += 1
        return c
    issue(0, 12)
    S.mark("cva")
    seenT = set(); idx_of = {m: i for i, m in enumerate(order)}
    for p, (m, T) in enumerate(seq):
        while k < len(first) and first[k][0] <= p: S(first[k][1]); k += 1
        a = CAF + 4*(idx_of[m] % NA); b = CB + 4*nB(m, T); acc = CACC + 4*T
        c = vr(acc, 4) if T in seenT else "0"; seenT.add(T)
        S(f"v_mfma_f32_16x16x32_bf16 {vr(acc,4)}, v[{a}:{a+3}], v[{b}:{b+3}], {c}")
        c = issue(p + 1, 2)
        S.fill(2 - c)
        if p == OPT['flagB_at']: S.mark("cvf")
        if p == OPT['flagB_at'] + 6: S.mark("cvg")
    S.mark("cve")
    return S

def conv_epi():
    S = Stream(); U = 96; R = 104; Y = 120
    stamp(S, "conv1")
    for T in range(4): S(f"ds_read_b64 v[{U+2*T}:{U+2*T+1}], v{vCD} offset:{(3-T)*512}")
    S(f"s_nop 7\ns_cmp_eq_u32 s{sFH}, 0\ns_cbranch_scc1 L_noswap")
    for r in range(16): S(f"v_swap_b32 v{CACC+r}, v{CACC+16+r}")
    S("L_noswap:")
    for T in range(4): S(f"ds_write_b128 v{vCX}, v[{CACC+16+4*T}:{CACC+19+4*T}] offset:{1024*T}")
    t = 128
    for T in range(4):
        a = CACC + 4*T
        S(f"""v_and_b32 v{t}, 0xffff0000, v{U+2*T+1}
        v_lshlrev_b32 v{t+1}, 16, v{U+2*T+1}
        v_and_b32 v{t+2}, 0xffff0000, v{U+2*T}
        v_lshlrev_b32 v{t+3}, 16, v{U+2*T}""")
        for r in range(4): S(f"v_fmac_f32 v{a+r}, s{sDv}, v{t+r}")
    S.waitlg(); S("s_barrier")
    for T in range(4): S(f"ds_read_b128 v[{R+4*T}:{R+4*T+3}], v{vCXR} offset:{1024*T}")
    for pr in range(2):
        for T in (2*pr, 2*pr+1):
            a = CACC + 4*T
            S(f"v_pk_add_f32 v[{a}:{a+1}], v[{a}:{a+1}], v[{R+4*T}:{R+4*T+1}]\nv_pk_add_f32 v[{a+2}:{a+3}], v[{a+2}:{a+3}], v[{R+4*T+2}:{R+4*T+3}]")
            y = Y + 4*pr + 2*(T & 1)
            S(f"v_cvt_pk_bf16_f32 v{y}, v{a}, v{a+1}\nv_cvt_pk_bf16_f32 v{y+1}, v{a+2}, v{a+3}")
        y = Y + 4*pr
        S(f"v_permlane16_swap_b32 v{y}, v{y+2}\nv_permlane16_swap_b32 v{y+1}, v{y+3}")
        S(f"buffer_store_dwordx4 v[{y}:{y+3}], v{vCY}, {srd(WS)}, s{sYs} offen" + (" offset:1024" if pr else "") + " sc1", "yst")
    return S

HR = 128; XF = 224; SF = 240; TP = 192
def pollB_load(): return f"buffer_load_dword v4, v{vPB}, {srd(WS)}, s{sFBp} offen sc1"
def pollC_load(): return f"buffer_load_dword v5, v{vPC}, {srd(WS)}, s{sFCp} offen sc1"
def gemm2():
    S = Stream(); D = OPT['hring']
    def hload(n):
        p, k = divmod(n, 28); so = sHL if p == 0 else sHLo
        T = Stream()
        T(f"buffer_load_dwordx4 v[{HR+4*(n%D)}:{HR+4*(n%D)+3}], v{vL16}, {srd(WS)}, s{so} offen" + (f" offset:{(k&3)*1024}" if k & 3 else "") + " sc1")
        if k & 3 == 3: T(f"s_add_u32 s{so}, s{so}, 4096")
        return T
    check_poll(S, [pollB_load()], [4])
    stamp(S, "hflag")
    for n in range(D): S.extend(hload(n))
    S.mark("g2s")
    for n in range(56):
        p, k = divmod(n, 28); h = HR + 4*(n % D)
        for u in range(2):
            acc = ACC + 32*(1-p) + 16*u; a = (2*k + u) * 4
            c = "0" if k == 0 else vr(acc, 16)
            S(f"v_mfma_f32_32x32x16_bf16 {vr(acc,16)}, {ar(a,4)}, v[{h}:{h+3}], {c}")
            used = 0
            if u == 1 and n + D < 56:
                T = hload(n + D); S.extend(T); used = len(T)
            S.fill(5 - used)
        S.mark(f"g2_{n}")
    return S

def red_early_w():
    S = Stream()
    for u in range(2):
        for j in range(4): S(f"ds_write_b128 v{vRW}, v[{ACC+32+16*u+4*j}:{ACC+35+16*u+4*j}] offset:{4096*u+1024*j}")
    g = Stream(); g.waitlg(); g("s_barrier"); S.atomic(g)
    return S
def red_early_r():
    S = Stream(); A = ACC + 32; B = ACC + 48
    for j in range(4): S(f"ds_read_b128 v[{A+4*j}:{A+4*j+3}], v{vRR} offset:{1024*j}")
    for j in range(4): S(f"ds_read_b128 v[{B+4*j}:{B+4*j+3}], v{vRR+1} offset:{4096+1024*j}")
    for r in range(16): S(f"v_add_f32 v{A+r}, v{A+r}, v{B+r}")
    return S

FS = TP + 2
def prep_x():
    S = Stream()
    g = Stream()
    g(f"s_add_u32 m0, s{sM0b}, {32768+4096}\ns_add_u32 s{sT0}, s{sXO}, 15360\nbuffer_load_dwordx4 v{vXD}, {srd(QF)}, s{sXO} offen lds")
    g(f"buffer_load_dwordx4 v{vXD}, {srd(QF)}, s{sT0} offen offset:1024 lds", "xd")
    S.atomic(g)
    S(f"buffer_load_dwordx2 v[{FS}:{FS+1}], v{vSTV}, {srd(WS)}, s{sStatF} offen sc1")
    return S
def prep_x2():
    S = Stream(); XR = TP + 8
    check_poll(S, [f"buffer_load_dwordx2 v[{FS}:{FS+1}], v{vSTV}, {srd(WS)}, s{sStatF} offen sc1"], [FS+1])
    S(f"v_and_b32 v{FS+1}, 0xffff0000, v{FS}\nv_rcp_f32 v{FS+1}, v{FS+1}\nv_lshlrev_b32 v{FS}, 16, v{FS}\nv_mul_f32 v{FS+2}, v{FS+1}, v{FS+1}\nv_mul_f32 v{FS+1}, {NLOG2E:#x}, v{FS+1}")
    S.waitvm("xd")
    for j in range(4):
        if j: S(f"v_xor_b32 v{FS+3}, {16*j}, v{vXA}")
        S(f"ds_read_b64 v[{XR+2*j}:{XR+2*j+1}], v{FS+3 if j else vXA}")
    for q in range(8):
        S(f"v_lshlrev_b32 v{XF+2*q}, 16, v{XR+q}\nv_and_b32 v{XF+2*q+1}, 0xffff0000, v{XR+q}")
    for r in range(16): S(f"v_sub_f32 v{SF+r}, v{XF+r}, v{FS}")
    for r in range(16): S(f"v_mul_f32 v{SF+r}, v{SF+r}, v{FS+2}")
    return S
def prep_y():
    S = Stream(); YS = TP + 8
    check_poll(S, [pollC_load()], [5])
    S(f"s_add_u32 s{sT0}, s{sYl}, 65536")
    S(f"buffer_load_dwordx4 v[{YS}:{YS+3}], v{vYL}, {srd(WS)}, s{sYl} offen sc1\nbuffer_load_dwordx4 v[{YS+4}:{YS+7}], v{vYL}, {srd(WS)}, s{sT0} offen sc1")
    return S
def prep_y2():
    S = Stream(); YS = TP + 8; YR = TP + 16; t = TP + 24
    S(f"ds_write_b128 v{vYW}, v[{YS}:{YS+3}]\nds_write_b128 v{vYW}, v[{YS+4}:{YS+7}] offset:1024")
    for j in range(4): S(f"ds_read_b64_tr_b16 v[{YR+2*j}:{YR+2*j+1}], v{vYA} offset:{512*j}")
    for q in range(8):
        S(f"v_lshlrev_b32 v{t+(q&1)*2}, 16, v{YR+q}\nv_and_b32 v{t+(q&1)*2+1}, 0xffff0000, v{YR+q}")
        S(f"v_mul_f32 v{SF+2*q}, v{SF+2*q}, v{t+(q&1)*2}\nv_mul_f32 v{SF+2*q+1}, v{SF+2*q+1}, v{t+(q&1)*2+1}")
    return S

def final():
    S = Stream(); A = ACC; F = ACC + 16; Ee = ACC + 32; W = HR; P = HR + 16
    stamp(S, "g2end")
    for j in range(4): S(f"ds_write_b128 v{vRW}, v[{F+4*j}:{F+4*j+3}] offset:{32768+1024*j}")
    for p in range(8): S(f"v_pk_add_f32 v[{A+2*p}:{A+2*p+1}], v[{A+2*p}:{A+2*p+1}], v[{Ee+2*p}:{Ee+2*p+1}]")
    S.waitlg(); S("s_barrier")
    for j in range(4): S(f"ds_read_b128 v[{Ee+4*j}:{Ee+4*j+3}], v{vRR+2} offset:{32768+1024*j}")
    mr = f"v[{FS}:{FS+1}]"
    for h in range(2):
        ps = range(4*h, 4*h+4)
        for p in ps: S(f"v_pk_add_f32 v[{A+2*p}:{A+2*p+1}], v[{A+2*p}:{A+2*p+1}], v[{Ee+2*p}:{Ee+2*p+1}]")
        for p in ps: S(f"v_pk_mul_f32 v[{W+2*p}:{W+2*p+1}], v[{A+2*p}:{A+2*p+1}], {mr} op_sel:[0,1] op_sel_hi:[1,1]")
        for p in ps: S(f"v_exp_f32_e64 v{W+2*p}, v{W+2*p}\nv_exp_f32_e64 v{W+2*p+1}, v{W+2*p+1}")
        for p in ps: S(f"v_pk_add_f32 v[{W+2*p}:{W+2*p+1}], v[{W+2*p}:{W+2*p+1}], 1.0 op_sel_hi:[1,0]")
        for p in ps: S(f"v_rcp_f32_e64 v{W+2*p}, v{W+2*p}\nv_rcp_f32_e64 v{W+2*p+1}, v{W+2*p+1}")
        for p in ps: S(f"v_pk_mul_f32 v[{A+2*p}:{A+2*p+1}], v[{A+2*p}:{A+2*p+1}], v[{SF+2*p}:{SF+2*p+1}]")
        for p in ps: S(f"v_pk_fma_f32 v[{W+2*p}:{W+2*p+1}], v[{A+2*p}:{A+2*p+1}], v[{W+2*p}:{W+2*p+1}], v[{XF+2*p}:{XF+2*p+1}]")
        for p in ps: S(f"v_cvt_pk_bf16_f32 v{P+p}, v{W+2*p}, v{W+2*p+1}")
        for j in (2*h, 2*h+1): S(f"ds_write_b64 v{vOW}, v[{P+2*j}:{P+2*j+1}] offset:{16*j}")
    S(f"s_add_u32 s{sT0}, s{sXO}, 16384")
    S(f"ds_read_b128 v[{W}:{W+3}], v{vOR}\nds_read_b128 v[{W+4}:{W+7}], v{vOR} offset:1280")
    S(f"buffer_store_dwordx4 v[{W}:{W+3}], v{vOS}, {srd(OUT)}, s{sXO} offen\nbuffer_store_dwordx4 v[{W+4}:{W+7}], v{vOS}, {srd(OUT)}, s{sT0} offen")
    if OPT['prof']:
        stamp(S, "outst"); S("s_waitcnt vmcnt(0)"); stamp(S, "end")
        S(f"s_lshl_b32 s{sT0}, s2, 2\ns_add_u32 s{sT0}, s{sT0}, s{sW}\ns_lshl_b32 s{sT0}, s{sT0}, 8\ns_add_u32 s{sT0}, s{sT0}, {PROF}\nv_lshlrev_b32 v{vT}, 2, v{vL}")
        S(f"buffer_store_dword v{vPROF}, v{vT}, {srd(WS)}, s{sT0} offen")
    return S

def cat(*ss):
    o = Stream()
    for s in ss: o.extend(s)
    return o
def one(t, tag=None):
    s = Stream(); s(t, tag); return s

def build():
    P = Stream()
    P.extend(entry()); P.extend(setup())
    pre = cat(one(pollA_load().replace("v228,", "a249,")), one(pollB_load().replace("v4,", "a250,")), one(pollC_load().replace("v5,", "a251,")))
    P.extend(pre)
    stamp(P, "setup")
    g1f = []
    if OPT['stats_fill']:
        g1f.append(("c0a", "c1m", cat(nonce_get(), stats(), nonce_use(), stats_store())))
    else:
        P.extend(stats()); stamp(P, "stats")
        g1f.append(("c0a", "c0m", cat(nonce_get(), nonce_use(), stats_store())))
    for i in range(1, 5): g1f.append((f"c{i}b", f"c{i}e", chunk_dma(i + 3), 1))
    g1f.append(("c1b", "c4m", kvpre()))
    g1f.append(("c5a", "c5m", hcopy_dma()))
    g1f.append(("c5b", "c5e", cat(flag_store(sFAo, WS, "kv1"), *[one(t) for t in stat_loads(0)], w2_dma(0)), 1))
    g1f.append(("c6b", "c6e", cat(*[one(t) for t in stat_loads(1)], w2_dma(1)), 1))
    g1f.append(("c7a", "c7m", stats_consume()))
    g1f.append(("c7b", "c7e", cat(cs_reads(), one(pollA_load())), 1))
    P.extend(merge(gemm1(), g1f))
    stamp(P, "g1end")
    P.extend(epi1({0: w2_dma(2), 1: w2_dma(3), 3: u_loads()}))
    stamp(P, "epi1")
    cf = [("cva", "cvf", cat(w2_tr(0), w2_tr(1), w2_tr(2))),
          ("cvf", "cvg", cat(flag_store(sFBo, WSH, "hst"))),
          ("cvg", "cve", cat(Stream([Pseudo('WAITLG', 'tr2')]), w2_dma(4), w2_dma(5), w2_dma(6), w2_tr(3), one(pollB_load())))]
    P.extend(merge(conv(), cf))
    P.extend(Stream([Pseudo('WAITLG', 'tr3')]))
    P.extend(conv_epi())
    stamp(P, "conv2")
    P.extend(cat(w2_tr(4), w2_tr(5), w2_tr(6)))
    P.waitlg()
    P.extend(prep_x())
    gf = [("g2s", "g2_2", flag_store(sFCo, WS, "yst")),
          ("g2_4", "g2_22", prep_x2()),
          ("g2_24", "g2_26", one(pollC_load())),
          ("g2_28", "g2_32", red_early_w()),
          ("g2_32", "g2_36", prep_y()),
          ("g2_36", "g2_44", red_early_r()),
          ("g2_44", "g2_54", prep_y2())]
    P.extend(merge(gemm2(), gf))
    P.extend(final())
    P("L_end:\ns_endpgm")
    P = flatten(P)
    P = autowait(P); P = hazards(P)
    R = hazards(flatten(rare))
    P.extend(R); P("L_codeend:")
    P = align8(P)
    return P

HEAD = open("cdna_kernels/" + NAME + ".s.ref").read().split("; Override launch")[0]
def emit():
    P = build()
    size = sum(x.size for x in P)
    o = HEAD + f"; @launch grid=(256,1,1) block=(256,1,1) lds={LDS_BYTES}\n"
    o += f'.amdgcn_target "amdgcn-amd-amdhsa--gfx950"\n.text\n.globl {NAME}_kernel\n.p2align 8\n.type {NAME}_kernel,@function\n{NAME}_kernel:\n'
    o += "\n".join(l for l in text(P).split("\n") if not l.strip().startswith("; MARK"))
    o += f""".section .rodata,"a"
.p2align 6
.amdhsa_kernel {NAME}_kernel
  .amdhsa_next_free_vgpr 512
  .amdhsa_next_free_sgpr 102
  .amdhsa_accum_offset 256
  .amdhsa_group_segment_fixed_size 0
  .amdhsa_kernarg_size 96
  .amdhsa_user_sgpr_count 2
  .amdhsa_user_sgpr_kernarg_segment_ptr 1
  .amdhsa_system_sgpr_workgroup_id_x 1
.end_amdhsa_kernel
"""
    return o, size

if __name__ == "__main__":
    o, size = emit()
    open(sys.argv[1], "w").write(o)
    print("code bytes (estimate):", size, "stamps:", stamp_names)
    open(sys.argv[1] + ".stamps", "w").write(",".join(stamp_names))
```

```python
import sys, struct
from ir import *

NAME = "recurrent_scan__ssm_conv_h3__dense_activation_silu__prompt"
OPT = dict(cap=5, spare=1, prof=0, stats_fill=0, hring=16, flagB_at=60, codepf=1)
for a in sys.argv[2:]:
    k, v = a.split('='); OPT[k] = int(v)

HWS = 0; KVR = 0x700000; YT = 0x900000; STATS = 0xB00000; FLA = 0xB10000; FLB = 0xB30000; FLC = 0xB50000
PROF = 0xB80000; WS_SIZE = 0xC00000
E = 131072; KT = E; VT = E + 9360; HC = E; UR = E + 17680; CS = E + 26896; DUMP = CS + 512
LDS_BYTES = 163840
OOB = 0x80000000
f2u = lambda f: struct.unpack('<I', struct.pack('<f', f))[0]
NLOG2E = f2u(-1.4426950408889634)

sX, sJ, sW, sT0, sT1 = 3, 4, 5, 6, 7
Q1, QF, SKK, SVV, W1, W2, SSK, WS, WSH, OUT, DBG, SHK, KZ = 8, 12, 16, 20, 24, 28, 32, 36, 40, 44, 48, 52, 60
sDptr = 56; sN = 58; sDv = 59
sQoff = 64; sWoff = 72
sM0b = 80; sW2off = 81; sStatC = 82; sRot = 83; sStatW = 84; sFH = 85; sTH = 86; sH0 = 87
CODE = 88; sHst = 88
sM0q = 92; sM0w = 93; sP = 94; sCnt = 96
sRB1, sCB1, sRB2, sCB2, sCH = 97, 98, 99, 100, 101
sKV0, sKV1, sFAo, sFAp, sU, sFBo, sFBp, sYs = 16, 17, 18, 19, 20, 21, 22, 23
sFCo, sFCp, sHL, sYl = 52, 53, 54, 55
sXO, sStatF, sHC, sHLo = 60, 61, 62, 63
def srd(b): return f"s[{b}:{b+3}]"

vL = 1; vL16 = 2; vL0 = 3
vQD = 4; vWD = 8; vBD = 12
vQA = 16; vWA = 24
vN = 28; vSTV = 29; vCSW = 30; vCSA = 31
vTA = 33; vCA = 37
vCB = 41; vCU = 42; vCD = 43; vCX = 44; vCXR = 45; vCY = 46
vPA = 47; vPB = 48; vPC = 49
vXD = 50; vYL = 51; vOS = 52
vXA = 53; vYW = 54; vYA = 55; vOW = 56; vOR = 57; vRW = 58; vRR = 59
vPROF = 62; vT = 63
vDV = 215; vH0 = 214
ACC = 64; FR = 128
CSACC = 244; SEL = 240; CSV = 176
STL = 208; MR = 216
def vr(b, n=1): return f"v{b}" if n == 1 else f"v[{b}:{b+n-1}]"
def ar(b, n): return f"a[{b}:{b+n-1}]"

rare = Stream(); nrare = [0]
def check_poll(S, reloads, tagregs):
    k = nrare[0]; nrare[0] += 1
    def cmp(T):
        if len(tagregs) == 1:
            T(f"v_cmp_ne_u32 vcc, s{sN}, v{tagregs[0]}")
        else:
            T(f"v_xor_b32 v{vT}, s{sN}, v{tagregs[0]}")
            for r in tagregs[1:]:
                T(f"v_xor_b32 v{r}, s{sN}, v{r}\nv_or_b32 v{vT}, v{vT}, v{r}")
            T(f"v_cmp_ne_u32 vcc, 0, v{vT}")
    g = Stream(); cmp(g); g(f"s_cbranch_vccnz L_rare{k}\nL_back{k}:")
    S.atomic(g)
    rare(f"L_rare{k}:\ns_mov_b32 s{sCnt}, 0\nL_rl{k}:\ns_sleep 1")
    for t in reloads: rare(t)
    rare("s_waitcnt vmcnt(0)")
    cmp(rare)
    rare(f"s_nop 1\ns_cbranch_vccz L_back{k}\ns_add_u32 s{sCnt}, s{sCnt}, 1\ns_cmp_lt_u32 s{sCnt}, 0x4000\ns_cbranch_scc1 L_rl{k}\ns_branch L_back{k}")

stamp_names = []
def stamp(S, name):
    if not OPT['prof']: return
    k = len(stamp_names); stamp_names.append(name)
    g = Stream()
    if OPT['prof'] == 1:
        g(f"s_memrealtime s[{sP}:{sP+1}]\ns_waitcnt lgkmcnt(0)\nv_writelane_b32 v{vPROF}, s{sP}, {k}")
        g(f"s_memtime s[{sP}:{sP+1}]\ns_waitcnt lgkmcnt(0)\nv_writelane_b32 v{vPROF}, s{sP}, {k+32}")
    else:
        g(f"s_memtime s[{sP}:{sP+1}]\ns_waitcnt lgkmcnt(0)\nv_writelane_b32 v{vPROF}, s{sP}, {k}")
    S.atomic(g)

def dma_n(S, vbase, srdb, soff, m0txt, tag, n=4, samev=False):
    for i in range(n):
        g = Stream()
        if i == 0: g(m0txt)
        g(f"buffer_load_dwordx4 v{vbase + (0 if samev else i)}, {srd(srdb)}, s{soff} offen" + (f" offset:{i*1024}" if i else "") + " lds", tag if i == n-1 else None)
        S.atomic(g)

def chunk_dma(i, sq=None, sw=None):
    S = Stream(); slot = i & 3
    dma_n(S, vQD, Q1, sQoff + i if sq is None else sq, f"s_add_u32 m0, s{sM0q}, {slot*32768}", None)
    dma_n(S, vWD, W1, sWoff + i if sw is None else sw, f"s_add_u32 m0, s{sM0w}, {slot*32768}", f"c{i}")
    return S

def w2_half(b, h):
    S = Stream(); slot = b & 3
    dma_n(S, vBD, W2, sW2off, f"s_add_u32 m0, s{sM0b}, {slot*32768 + 4096*h}", f"b{b}" if h else None)
    if h == 0: S(f"s_add_u32 s{sW2off}, s{sW2off}, 32768")
    elif b < 6:
        g = Stream(); g(f"s_cmp_eq_u32 s{sRot}, {6-b}\ns_cselect_b32 s{sCnt}, {7*65536}, 0\ns_add_u32 s{sW2off}, s{sW2off}, 32768\ns_sub_u32 s{sW2off}, s{sW2off}, s{sCnt}"); S.atomic(g)
    return S
def w2_dma(b):
    S = w2_half(b, 0); S.extend(w2_half(b, 1)); return S

def w2_tr(b):
    S = Stream(); slot = b & 3; hi = slot >> 1
    S.waitvm(f"b{b}")
    for k4 in range(4):
        for u in range(2):
            a = ((4*b + k4) * 2 + u) * 4
            for rd in range(2):
                off = (slot & 1) * 32768 + k4 * 2048 + rd * 1024
                S(f"ds_read_b64_tr_b16 {ar(a+2*rd, 2)}, v{vTA+2*hi+u} offset:{off}", f"tr{b}")
    return S

vROW = 220
vSHK = 228
def entry():
    S0 = Stream()
    if OPT['spare']:
        A = f"s_cselect_b32 s{Q1+2}, 0x200000, s{sP}\ns_cselect_b32 s{W1+2}, s{sP}, 0x200000"
        B = f"s_cmp_lt_u32 s{sCB1}, 14\ns_cselect_b64 s[{Q1}:{Q1+1}], s[64:65], s[80:81]\ns_cselect_b64 s[{W1}:{W1+1}], s[78:79], s[72:73]"
    else:
        A = f"s_cselect_b32 s{Q1+2}, 0x200000, 0\ns_cselect_b32 s{W1+2}, 0x1c0000, 0"
        B = f"s_mov_b64 s[{Q1}:{Q1+1}], s[64:65]\ns_mov_b64 s[{W1}:{W1+1}], s[78:79]"
    class SS(Stream):
        def __call__(self, text, tag=None): return Stream.__call__(self, text.replace("SPARE_A", A).replace("SPARE_B", B), tag)
    S = SS()
    S(f"""
    s_load_dwordx16 s[64:79], s[0:1], 0
    s_load_dwordx8 s[80:87], s[0:1], 64
    s_cmp_ge_u32 s2, 256
    s_cbranch_scc1 L_end
    v_lshrrev_b32 v{vT}, 6, v0
    v_and_b32 v{vL}, 63, v0
    s_and_b32 s{sX}, s2, 7
    v_readfirstlane_b32 s{sW}, v{vT}
    s_lshr_b32 s{sJ}, s2, 3
    s_lshr_b32 s{sCB1}, s{sJ}, 1
    s_and_b32 s{sT0}, s{sJ}, 1
    s_lshl_b32 s{sRB1}, s{sX}, 1
    s_add_u32 s{sRB1}, s{sRB1}, s{sT0}
    s_lshr_b32 s{sT1}, s{sJ}, 3
    s_lshl_b32 s{sRB2}, s{sX}, 2
    s_add_u32 s{sRB2}, s{sRB2}, s{sT1}
    s_and_b32 s{sCB2}, s{sJ}, 7
    s_lshl_b32 s{sT0}, s{sT0}, 2
    s_add_u32 s{sT0}, s{sT0}, s{sCB1}
    s_add_u32 s{sT0}, s{sT0}, s{sX}
    s_and_b32 s{sT0}, s{sT0}, 7
    s_mov_b32 s{sP}, 0x1c0000
    s_lshl_b32 s88, s{sX}, 2
    s_and_b32 s89, s{sJ}, 3
    s_add_u32 s88, s88, s89
    s_lshr_b32 s89, s88, 4
    s_and_b32 s88, s88, 15
    s_lshl_b32 s89, s89, 2
    s_cmp_lt_u32 s{sCB1}, 14
    s_cselect_b32 s91, s{sRB1}, s88
    s_cselect_b32 s{sCnt}, s{sCB1}, s88
    s_cselect_b32 s{sT0}, s{sT0}, s89
    SPARE_A
    s_cselect_b32 s{WSH+2}, {WS_SIZE}, 0
    s_mov_b32 s{QF+2}, 0x200000
    s_mov_b32 s{QF+3}, 0x20000
    s_mov_b32 s{Q1+3}, 0x20000
    s_mov_b32 s{W1+3}, 0x20000
    s_lshl_b32 s88, s{sX}, 5
    s_add_u32 s88, s88, s{sJ}
    s_lshl_b32 s88, s88, 2
    s_add_u32 s88, s88, s{sW}
    s_lshl_b32 s88, s88, 11
    s_lshl_b32 s89, s91, 2
    s_add_u32 s89, s89, s{sW}
    s_lshl_b32 s89, s89, 15
    s_mul_i32 s90, s{sW}, {16*3584}
    s_lshl_b32 s{sT1}, s{sCnt}, 8
    s_add_u32 s90, s90, s{sT1}
    s_lshl_b32 s58, s{sT0}, 7
    s_add_u32 s58, s58, s89
    s_mul_i32 s59, s{sT0}, {64*3584}
    s_add_u32 s59, s59, s90
    s_lshl_b32 s{sM0q}, s{sW}, 12
    s_add_u32 s{sM0w}, s{sM0q}, 16384
    """)
    if OPT['prof']: S(f"v_mov_b32 v{vPROF}, 0")
    a, b, c, d = 232, 233, 234, 235
    S(f"""
    v_lshlrev_b32 v{vL16}, 4, v{vL}
    v_lshrrev_b32 v{a}, 5, v{vL}
    v_and_b32 v{b}, 31, v{vL}
    v_lshlrev_b32 v{b}, 4, v{b}
    v_lshl_add_u32 v236, v{a}, 10, v{b}
    v_lshrrev_b32 v{a}, 3, v{vL}
    v_and_b32 v{b}, 7, v{vL}
    v_lshrrev_b32 v{c}, 4, v{vL}
    v_xor_b32 v{d}, v{b}, v{c}
    v_lshlrev_b32 v{d}, 4, v{d}
    v_lshl_add_u32 v{vQD}, v{a}, 10, v{d}
    v_xor_b32 v{d}, 64, v{vQD}
    v_add_u32 v{vQD+1}, 7168, v{d}
    v_add_u32 v{vQD+2}, 14336, v{vQD}
    v_add_u32 v{vQD+3}, 21504, v{d}
    v_and_b32 v{d}, 15, v{vL}
    v_lshlrev_b32 v237, 2, v{c}
    v_xor_b32 v{d}, v{d}, v237
    v_lshlrev_b32 v{d}, 4, v{d}
    v_mul_u32_u24 v237, 3584, v{c}
    v_add_u32 v{vWD}, v237, v{d}
    v_add_u32 v{vWD+1}, {4*3584-1024}, v{vWD}
    v_add_u32 v{vWD+2}, {8*3584-2048}, v{vWD}
    v_add_u32 v{vWD+3}, {12*3584-3072}, v{vWD}
    v_lshlrev_b32 v{b}, 4, v{b}
    v_lshl_add_u32 v237, v{a}, 10, v{b}
    v_lshlrev_b32 v238, 4, v{a}
    """)
    S(f"""
    s_cmp_lg_u32 s{sRB2}, 0
    s_cselect_b32 s{KZ+2}, 0x200000, 0
    """)
    for bb, n in ((SKK, 0x200000), (SVV, 0x200000), (W2, 0x1c0000), (SSK, 0x200000), (WS, WS_SIZE), (OUT, 0x200000), (DBG, 256), (SHK, 4096)):
        S(f"s_mov_b32 s{bb+2}, {n}")
    for bb in (SKK, KZ, SVV, W2, SSK, WS, WSH, OUT, DBG, SHK):
        S(f"s_mov_b32 s{bb+3}, 0x20000")
    S.waitlg()
    stamp(S, "karg")
    S(f"""
    s_mov_b64 s[{QF}:{QF+1}], s[64:65]
    SPARE_B
    buffer_load_dwordx4 v[{vROW}:{vROW+3}], v236, {srd(QF)}, s88 offen
    buffer_load_dwordx4 v[{vROW+4}:{vROW+7}], v236, {srd(QF)}, s88 offen offset:512
    """)
    S.extend(chunk_dma(0, 58, 59))
    S(f"""
    s_mov_b64 s[{SKK}:{SKK+1}], s[66:67]
    s_mov_b64 s[{KZ}:{KZ+1}], s[66:67]
    s_mov_b64 s[{SVV}:{SVV+1}], s[68:69]
    s_mov_b64 s[{SHK}:{SHK+1}], s[70:71]
    s_mov_b64 s[{SSK}:{SSK+1}], s[72:73]
    s_mov_b64 s[{sDptr}:{sDptr+1}], s[74:75]
    s_mov_b64 s[{W2}:{W2+1}], s[80:81]
    s_mov_b64 s[{OUT}:{OUT+1}], s[82:83]
    s_mov_b64 s[{DBG}:{DBG+1}], s[84:85]
    s_mov_b64 s[{WS}:{WS+1}], s[86:87]
    s_mov_b64 s[{WSH}:{WSH+1}], s[86:87]
    """)
    S(f"""
    s_cmp_lt_u32 s2, 8
    s_cselect_b32 s{sT1}, s{sW}, 1
    s_cmp_eq_u32 s{sT1}, 0
    s_cbranch_scc0 L_nonce_done
    s_memrealtime s[{sP}:{sP+1}]
    v_mov_b32 v241, 0
    s_waitcnt lgkmcnt(0)
    s_or_b32 s{sT1}, s{sP}, 1
    v_mov_b32 v240, s{sT1}
    s_mov_b64 exec, 1
    global_atomic_cmpswap v241, v[240:241], s[84:85] sc1
    s_mov_b64 exec, -1
    L_nonce_done:
    """)
    S[-3].cls = 'other'
    def coff(i):
        S(f"""
        s_add_u32 s{sT1}, s{sT0}, {i}
        s_and_b32 s{sT1}, s{sT1}, 7
        s_lshl_b32 s{sQoff+i}, s{sT1}, 7
        s_add_u32 s{sQoff+i}, s{sQoff+i}, s89
        s_mul_i32 s{sWoff+i}, s{sT1}, {64*3584}
        s_add_u32 s{sWoff+i}, s{sWoff+i}, s90
        """)
    for i in range(1, 8): coff(i)
    if OPT['codepf']:
        S(f"""
        s_getpc_b64 s[{CODE}:{CODE+1}]
        L_pc:
        s_mov_b32 s{CODE+2}, L_codeend-L_pc
        s_mov_b32 s{CODE+3}, 0x20000
        s_lshl_b32 s{sT1}, s{sJ}, 10
        buffer_load_dwordx4 a[252:255], v{vL16}, {srd(CODE)}, s{sT1} offen
        """)
    return S

def kv_dma():
    S = Stream()
    S(f"""
    s_lshl_b32 s{sT1}, s{sRB2}, 16
    s_lshl_b32 s87, s{sCB2}, 7
    s_add_u32 s{sT1}, s{sT1}, s87
    s_lshl_b32 s87, s{sW}, 13
    s_add_u32 s87, s87, s{sT1}
    s_mul_i32 s{sCnt}, s{sW}, 1040
    s_add_u32 m0, s{sCnt}, {KT+1040}
    s_sub_u32 s{sT1}, s{sT1}, 8192
    buffer_load_dwordx4 v237, {srd(SKK)}, s87 offen lds
    s_add_u32 m0, s{sCnt}, {VT}
    s_max_i32 s{sT1}, s{sT1}, 0
    buffer_load_dwordx4 v237, {srd(SVV)}, s87 offen lds
    s_add_u32 m0, s{sCnt}, {KT+5*1040}
    s_add_u32 s87, s87, 32768
    buffer_load_dwordx4 v237, {srd(SKK)}, s87 offen lds
    s_add_u32 m0, s{sCnt}, {VT+4*1040}
    v_cmp_gt_u32 vcc, 40, v{vL}
    buffer_load_dwordx4 v237, {srd(SVV)}, s87 offen lds
    v_mov_b32 v239, {OOB}
    s_mov_b32 m0, {KT}
    v_cndmask_b32 v237, v237, v239, vcc
    s_lshl_b32 s87, s{sCB2}, 9
    s_lshl_b32 s{sCnt}, s{sW}, 7
    buffer_load_dwordx4 v237, {srd(KZ)}, s{sT1} offen lds
    s_add_u32 s87, s87, s{sCnt}
    buffer_load_dwordx4 v[{vSHK}:{vSHK+3}], v238, {srd(SHK)}, s87 offen
    """)
    return S

def setup():
    S = Stream()
    S(f"""
    s_and_b32 s{sFH}, s{sW}, 1
    s_lshr_b32 s{sTH}, s{sW}, 1
    s_lshl_b32 s{sCH}, s2, 1
    s_add_u32 s{sCH}, s{sCH}, s{sTH}
    s_lshl_b32 s{sT0}, s2, 2
    s_lshl_b32 s{sT1}, s{sCH}, 12
    v_mov_b32 v{vDV}, s{sT0}
    v_mov_b32 v{vH0}, 0
    global_load_dword v{vDV}, v{vDV}, s[{sDptr}:{sDptr+1}]
    buffer_load_dword v{vH0}, v{vH0}, {srd(SSK)}, s{sT1} offen
    s_lshl_b32 s{sM0b}, s{sW}, 13
    s_mul_i32 s{sW2off}, s{sW}, {448*1024}
    s_lshl_b32 s{sT0}, s{sCB2}, 7
    s_add_u32 s{sW2off}, s{sW2off}, s{sT0}
    s_add_u32 s{sRot}, s{sCB2}, s{sRB2}
    s_mul_i32 s{sT0}, s{sRot}, 37
    s_lshr_b32 s{sT0}, s{sT0}, 8
    s_mul_i32 s{sT0}, s{sT0}, 7
    s_sub_u32 s{sRot}, s{sRot}, s{sT0}
    s_lshl_b32 s{sT0}, s{sRot}, 16
    s_add_u32 s{sW2off}, s{sW2off}, s{sT0}
    s_lshl_b32 s{sStatC}, s{sRB1}, 1
    s_add_u32 s{sStatC}, s{sStatC}, s{sTH}
    s_mul_i32 s{sHst}, s{sStatC}, {2*112*1024}
    s_lshl_b32 s{sStatC}, s{sStatC}, 10
    s_add_u32 s{sStatC}, s{sStatC}, {STATS}
    s_lshl_b32 s{sT0}, s{sCB1}, 1
    s_add_u32 s{sT0}, s{sT0}, s{sFH}
    s_lshl_b32 s{sT0}, s{sT0}, 12
    s_add_u32 s{sHst}, s{sHst}, s{sT0}
    s_lshl_b32 s{sT0}, s{sTH}, 11
    s_xor_b32 s{sT1}, s{sT0}, 2048
    s_add_u32 s{sHst+2}, s{sHst}, s{sT1}
    s_add_u32 s{sHst}, s{sHst}, s{sT0}
    s_add_u32 s{sHst+1}, s{sHst}, {112*1024}
    s_add_u32 s{sHst+3}, s{sHst+2}, {112*1024}
    s_lshl_b32 s{sStatW}, s{sX}, 5
    s_add_u32 s{sStatW}, s{sStatW}, s{sJ}
    s_lshl_b32 s{sStatW}, s{sStatW}, 7
    s_lshl_b32 s{sT0}, s{sW}, 4
    s_add_u32 s{sStatW}, s{sStatW}, s{sT0}
    s_add_u32 s{sStatW}, s{sStatW}, {STATS}
    """)
    a, b, c, d, e, f = 240, 241, 242, 243, 244, 245
    a, b, c, d, e, f = 244, 245, 246, 247, 248, 249
    S(f"""
    v_mov_b32 v{a}, {OOB}
    v_cmp_eq_u32 vcc, 0, v{vL}
    v_and_b32 v{b}, 31, v{vL}
    v_lshrrev_b32 v{c}, 5, v{vL}
    v_cndmask_b32 v{vL0}, v{a}, 0, vcc
    v_lshrrev_b32 v{d}, 3, v{b}
    v_and_b32 v{e}, 7, v{vL}
    v_lshlrev_b32 v{e}, 3, v{e}
    v_lshl_add_u32 v{vSTV}, v{d}, 7, v{e}
    """)
    S(f"""
    v_lshrrev_b32 v{d}, 1, v{b}
    v_and_b32 v{d}, 7, v{d}
    v_xor_b32 v{d}, v{d}, v{c}
    v_lshlrev_b32 v{d}, 4, v{d}
    v_lshl_add_u32 v{d}, v{b}, 7, v{d}
    s_lshl_b32 s{sT0}, s{sTH}, 13
    v_add_u32 v{vQA}, s{sT0}, v{d}
    v_xor_b32 v{vQA+1}, 32, v{vQA}
    v_xor_b32 v{vQA+2}, 64, v{vQA}
    v_xor_b32 v{vQA+3}, 0x60, v{vQA}
    """)
    for k in range(4): S(f"v_add_u32 v{vQA+4+k}, 0x10000, v{vQA+k}")
    S(f"""
    v_bfe_u32 v{d}, v{vL}, 2, 2
    v_and_b32 v{e}, 3, v{vL}
    v_lshlrev_b32 v{e}, 3, v{e}
    v_bfe_u32 v{f}, v{vL}, 4, 1
    v_lshl_add_u32 v{e}, v{f}, 5, v{e}
    s_lshl_b32 s{sT0}, s{sFH}, 1
    s_add_u32 s{sT0}, s{sT0}, s{sTH}
    v_xor_b32 v{f}, s{sT0}, v{d}
    v_lshl_add_u32 v{f}, v{f}, 6, v{e}
    v_lshl_add_u32 v{f}, v{d}, 8, v{f}
    v_lshl_add_u32 v{vWA}, v{c}, 11, v{f}
    v_xor_b32 v{vWA+1}, 64, v{vWA}
    v_add_u32 v{vWA+2}, 0x10000, v{vWA}
    v_add_u32 v{vWA+3}, 0x10000, v{vWA+1}
    v_lshrrev_b32 v{f}, 1, v{d}
    v_xor_b32 v{f}, s{sFH}, v{f}
    v_lshl_add_u32 v{f}, v{f}, 6, v{e}
    v_lshl_add_u32 v{f}, v{d}, 7, v{f}
    v_lshl_add_u32 v{f}, v{c}, 9, v{f}
    v_add_u32 v{vTA}, s{sM0b}, v{f}
    v_xor_b32 v{vTA+1}, 64, v{vTA}
    v_add_u32 v{vTA+2}, 0x10000, v{vTA}
    v_add_u32 v{vTA+3}, 0x10000, v{vTA+1}
    v_lshl_add_u32 v{f}, v{d}, 6, v{e}
    v_lshl_add_u32 v{f}, v{c}, 8, v{f}
    s_add_u32 s{sT0}, s{sM0b}, {E + 2048}
    v_add_u32 v{vYA}, s{sT0}, v{f}
    v_add_u32 v{vYW}, s{sT0}, v{vL16}
    """)
    n, g = d, e
    S(f"""
    v_and_b32 v{n}, 15, v{vL}
    v_lshrrev_b32 v{g}, 4, v{vL}
    v_and_b32 v{f}, 1, v{g}
    v_cmp_eq_u32 vcc, v{n}, v{f}
    v_mov_b32 v{f}, 0x3f803f80
    v_lshlrev_b32 v{a}, 4, v{g}
    v_cndmask_b32 v{f}, 0, v{f}, vcc
    v_lshl_add_u32 v{a}, v{n}, 6, v{a}
    v_accvgpr_write_b32 a{SEL}, v{f}
    v_accvgpr_write_b32 a{SEL+1}, v{f}
    v_accvgpr_write_b32 a{SEL+2}, v{f}
    v_accvgpr_write_b32 a{SEL+3}, v{f}
    s_lshl_b32 s{sT0}, s{sFH}, 8
    s_lshl_b32 s{sT1}, s{sTH}, 7
    s_add_u32 s{sT0}, s{sT0}, s{sT1}
    s_add_u32 s{sT0}, s{sT0}, {CS}
    v_add_u32 v{a}, s{sT0}, v{a}
    v_add_u32 v{f}, {DUMP}, v{vL16}
    v_cmp_gt_u32 vcc, 2, v{n}
    v_lshlrev_b32 v{b}, 4, v{c}
    v_add_u32 v{vCSA}, s{sT0}, v{b}
    v_cndmask_b32 v{vCSW}, v{f}, v{a}, vcc
    v_xor_b32 v{vCSA+1}, 0x80, v{vCSA}
    """)
    assert CS % 256 == 16 or True
    S(f"""
    v_lshrrev_b32 v{a}, 3, v{vL}
    v_and_b32 v{b}, 7, v{vL}
    v_bfe_u32 v{f}, v{vL}, 4, 1
    v_lshlrev_b32 v{f}, 2, v{f}
    v_xor_b32 v{b}, v{b}, v{f}
    v_lshlrev_b32 v{b}, 4, v{b}
    v_lshl_add_u32 v{vBD}, v{a}, 10, v{b}
    v_add_u32 v{vBD+1}, 7168, v{vBD}
    v_add_u32 v{vBD+2}, 14336, v{vBD}
    v_add_u32 v{vBD+3}, 21504, v{vBD}
    """)
    S(f"""
    v_lshlrev_b32 v{a}, 1, v{n}
    v_lshl_add_u32 v{a}, v{g}, 4, v{a}
    v_and_b32 v{b}, 1, v{n}
    v_cmp_eq_u32 vcc, 0, v{b}
    v_mov_b32 v{f}, {4160 - 2}
    s_mul_i32 s{sT0}, s{sTH}, 8320
    s_lshl_b32 s{sT1}, s{sFH}, 6
    v_cndmask_b32 v{b}, 0, v{f}, vcc
    s_add_u32 s{sT0}, s{sT0}, s{sT1}
    s_add_u32 s{sT0}, s{sT0}, {HC + 32 - 30}
    v_add3_u32 v{vCA}, v{a}, v{b}, s{sT0}
    v_add_u32 v{vCA+1}, 1024, v{vCA}
    v_add_u32 v{vCA+2}, 2048, v{vCA}
    v_add_u32 v{vCA+3}, 3072, v{vCA}
    s_mul_i32 s{sT0}, s{sTH}, 4608
    s_add_u32 s{sT0}, s{sT0}, {UR}
    v_lshlrev_b32 v{a}, 5, v{n}
    v_lshlrev_b32 v{b}, 4, v{g}
    v_sub_u32 v{b}, v{b}, v{a}
    s_add_u32 s{sT1}, s{sT1}, s{sT0}
    s_add_u32 s{sT1}, s{sT1}, 480
    v_add_u32 v{vCB}, s{sT1}, v{b}
    v_lshl_add_u32 v{b}, v{g}, 3, v{a}
    s_lshl_b32 s{sT1}, s{sFH}, 11
    s_sub_u32 s{sCnt}, s{sT0}, s{sT1}
    s_add_u32 s{sCnt}, s{sCnt}, {4088 - 1536}
    v_sub_u32 v{vCD}, s{sCnt}, v{b}
    s_add_u32 s{sT1}, s{sT1}, s{sT0}
    v_add_u32 v{vCU}, s{sT1}, v{vL16}
    v_and_b32 v{b}, 0x1f0, v{vL16}
    s_add_u32 s{sT0}, s{sT0}, 4096
    v_add_u32 v{b}, s{sT0}, v{b}
    v_mov_b32 v252, 0
    v_mov_b32 v253, 0
    v_mov_b32 v254, 0
    v_mov_b32 v255, 0
    ds_write_b128 v{b}, v[252:255]
    s_add_u32 s{sT0}, s{sM0b}, {3*32768}
    v_add_u32 v{vCX}, s{sT0}, v{vL16}
    v_xor_b32 v{vCXR}, 0x2000, v{vCX}
    v_and_b32 v{b}, 1, v{g}
    v_lshl_add_u32 v{a}, v{b}, 9, v{a}
    v_lshrrev_b32 v{b}, 1, v{g}
    v_lshl_add_u32 v{vCY}, v{b}, 4, v{a}
    v_lshlrev_b32 v{vPA}, 7, v{n}
    v_min_u32 v{a}, 6, v{vL}
    v_lshlrev_b32 v{vPB}, 7, v{a}
    v_and_b32 v{a}, 31, v{vL}
    v_lshlrev_b32 v{vPC}, 8, v{a}
    """)
    S(f"""
    v_lshrrev_b32 v{b}, 2, v{vL}
    v_and_b32 v{f}, 3, v{vL}
    v_lshlrev_b32 v{f}, 4, v{f}
    v_lshl_add_u32 v{vOS}, v{b}, 10, v{f}
    v_lshl_add_u32 v{vYL}, v{b}, 12, v{f}
    v_lshlrev_b32 v{d}, 4, v{g}
    v_xor_b32 v{vXD}, v{vOS}, v{d}
    v_mul_u32_u24 v{b}, 80, v{b}
    s_add_u32 s{sT0}, s{sM0b}, {E + 4096}
    v_add3_u32 v{vOR}, v{b}, v{f}, s{sT0}
    v_mul_u32_u24 v{b}, 80, v{a}
    v_lshl_add_u32 v{b}, v{c}, 3, v{b}
    v_add_u32 v{vOW}, s{sT0}, v{b}
    v_bfe_u32 v{b}, v{vL}, 2, 2
    v_lshlrev_b32 v{b}, 4, v{b}
    v_lshl_add_u32 v{b}, v{a}, 6, v{b}
    v_lshl_add_u32 v{b}, v{c}, 3, v{b}
    s_add_u32 s{sT0}, s{sM0b}, {E}
    v_add_u32 v{vXA}, s{sT0}, v{b}
    v_add_u32 v{vRW}, s{sM0b}, v{vL16}
    v_xor_b32 v{vRR}, 0x4000, v{vRW}
    v_xor_b32 v{vRR+1}, 0x6000, v{vRW}
    v_xor_b32 v{vRR+2}, 0x2000, v{vRW}
    """)
    return S

def setup_b():
    S = Stream()
    S(f"""
    s_lshl_b32 s{sFBo}, s{sRB1}, 1
    s_add_u32 s{sFBo}, s{sFBo}, s{sTH}
    s_lshl_b32 s{sFBo}, s{sFBo}, 5
    s_lshl_b32 s{sT0}, s{sCB1}, 1
    s_add_u32 s{sT0}, s{sT0}, s{sFH}
    s_add_u32 s{sFBo}, s{sFBo}, s{sT0}
    s_lshl_b32 s{sFBo}, s{sFBo}, 7
    s_add_u32 s{sFBo}, s{sFBo}, {FLB}
    s_lshl_b32 s{sT0}, s{sCB2}, 2
    s_add_u32 s{sT0}, s{sT0}, s{sW}
    s_lshl_b32 s{sKV0}, s{sT0}, 16
    s_lshl_b32 s{sT1}, s{sRB2}, 7
    s_sub_u32 s{sKV0}, s{sKV0}, s{sT1}
    s_add_u32 s{sKV0}, s{sKV0}, {KVR + 1984*2}
    s_add_u32 s{sKV1}, s{sKV0}, 4096
    s_lshl_b32 s{sFAo}, s{sT0}, 5
    s_add_u32 s{sFAo}, s{sFAo}, s{sRB2}
    s_lshl_b32 s{sFAo}, s{sFAo}, 7
    s_add_u32 s{sFAo}, s{sFAo}, {FLA}
    s_lshr_b32 s{sFAp}, s{sCH}, 4
    s_lshl_b32 s{sFAp}, s{sFAp}, 12
    s_lshl_b32 s{sT0}, s{sFH}, 11
    s_sub_u32 s{sFAp}, s{sFAp}, s{sT0}
    s_add_u32 s{sFAp}, s{sFAp}, {FLA + 2048}
    s_lshl_b32 s{sHC}, s{sCH}, 12
    s_add_u32 s{sU}, s{sHC}, s{sT0}
    s_add_u32 s{sYs}, s{sU}, {YT}
    s_add_u32 s{sU}, s{sU}, {KVR}
    s_lshl_b32 s{sT0}, s{sFH}, 1
    s_add_u32 s{sHC}, s{sHC}, s{sT0}
    s_lshl_b32 s{sFBp}, s{sRB2}, 5
    s_mul_i32 s{sT0}, s{sW}, 7
    s_add_u32 s{sFBp}, s{sFBp}, s{sT0}
    s_lshl_b32 s{sFBp}, s{sFBp}, 7
    s_add_u32 s{sFBp}, s{sFBp}, {FLB}
    s_lshl_b32 s{sFCo}, s{sCH}, 1
    s_add_u32 s{sFCo}, s{sFCo}, s{sFH}
    s_lshl_b32 s{sFCo}, s{sFCo}, 7
    s_add_u32 s{sFCo}, s{sFCo}, {FLC}
    s_lshl_b32 s{sT0}, s{sCB2}, 1
    s_add_u32 s{sT0}, s{sT0}, s{sFH}
    s_lshl_b32 s{sFCp}, s{sT0}, 13
    s_lshr_b32 s{sT1}, s{sRB2}, 4
    s_lshl_b32 s{sT1}, s{sT1}, 7
    s_add_u32 s{sFCp}, s{sFCp}, s{sT1}
    s_add_u32 s{sFCp}, s{sFCp}, {FLC}
    s_lshl_b32 s{sYl}, s{sT0}, 17
    s_lshl_b32 s{sXO}, s{sT0}, 6
    s_lshl_b32 s{sT0}, s{sRB2}, 1
    s_add_u32 s{sT0}, s{sT0}, s{sTH}
    s_lshl_b32 s{sT1}, s{sT0}, 6
    s_add_u32 s{sYl}, s{sYl}, s{sT1}
    s_add_u32 s{sYl}, s{sYl}, {YT}
    s_lshl_b32 s{sT1}, s{sT0}, 15
    s_add_u32 s{sXO}, s{sXO}, s{sT1}
    s_lshl_b32 s{sStatF}, s{sT0}, 9
    s_add_u32 s{sStatF}, s{sStatF}, {STATS}
    s_mul_i32 s{sHLo}, s{sT0}, {112*1024}
    s_xor_b32 s{sT0}, s{sT0}, 1
    s_mul_i32 s{sHL}, s{sT0}, {112*1024}
    s_mul_i32 s{sT0}, s{sW}, {28*1024}
    s_lshl_b32 s{sT1}, s{sRot}, 12
    s_add_u32 s{sT0}, s{sT0}, s{sT1}
    s_add_u32 s{sHL}, s{sHL}, s{sT0}
    s_add_u32 s{sHLo}, s{sHLo}, s{sT0}
    """)
    return S

def hoffs():
    S = Stream()
    S(f"s_sub_u32 s{sHLo}, s{sHLo}, s{sHL}")
    for g in range(7):
        if g == 0: S(f"s_mov_b32 s64, s{sHL}")
        else:
            t = Stream(); t(f"s_cmp_eq_u32 s{sRot}, {7-g}\ns_cselect_b32 s78, {7*4096}, 0\ns_add_u32 s{64+g}, s{63+g}, 4096\ns_sub_u32 s{64+g}, s{64+g}, s78"); S.atomic(t)
        S(f"s_add_u32 s{71+g}, s{64+g}, s{sHLo}")
    return S

def nonce_get():
    S = Stream()
    S(f"s_load_dword s{sN}, s[{DBG}:{DBG+1}], 0")
    return S
def nonce_use():
    S = Stream(); g = Stream()
    g(f"s_waitcnt lgkmcnt(0)\ns_cmp_eq_u32 s{sN}, 0\ns_cbranch_scc1 L_rareN\nL_backN:\nv_mov_b32 v{vN}, s{sN}")
    S.atomic(g)
    rare(f"""
    L_rareN:
    s_mov_b32 s{sCnt}, 0
    L_rlN:
    s_sleep 2
    buffer_load_dword v{vN}, off, {srd(DBG)}, 0 sc1
    s_waitcnt vmcnt(0)
    v_readfirstlane_b32 s{sN}, v{vN}
    s_cmp_lg_u32 s{sN}, 0
    s_cbranch_scc1 L_backN
    s_add_u32 s{sCnt}, s{sCnt}, 1
    s_cmp_lt_u32 s{sCnt}, 0x4000
    s_cbranch_scc1 L_rlN
    s_branch L_backN
    """)
    return S

def stats():
    S = Stream(); X = 176; A = 192; B = 193; C = 194
    for i in range(8):
        S(f"v_lshlrev_b32 v{X+2*i}, 16, v{vROW+i}\nv_and_b32 v{X+2*i+1}, 0xffff0000, v{vROW+i}")
    def allred(r):
        for m in ("quad_perm:[1,0,3,2]", "quad_perm:[2,3,0,1]", "row_half_mirror", "row_mirror"):
            S(f"v_add_f32_dpp v{r}, v{r}, v{r} {m} row_mask:0xf bank_mask:0xf")
        S(f"v_mov_b32 v{C}, v{r}\nv_permlane16_swap_b32 v{r}, v{C}\nv_add_f32 v{r}, v{r}, v{C}")
    S(f"v_add_f32 v{A}, v{X}, v{X+1}\nv_add_f32 v{B}, v{X+2}, v{X+3}")
    for i in range(4, 16, 2): S(f"v_add_f32 v{A}, v{A}, v{X+i}\nv_add_f32 v{B}, v{B}, v{X+i+1}")
    S(f"v_add_f32 v{A}, v{A}, v{B}")
    allred(A)
    S(f"v_mul_f32 v{A}, {f2u(1/512):#x}, v{A}")
    for i in range(16): S(f"v_sub_f32 v{X+i}, v{X+i}, v{A}")
    S(f"v_mul_f32 v{B}, v{X}, v{X}\nv_mul_f32 v{C+1}, v{X+1}, v{X+1}")
    for i in range(2, 16, 2): S(f"v_fmac_f32 v{B}, v{X+i}, v{X+i}\nv_fmac_f32 v{C+1}, v{X+i+1}, v{X+i+1}")
    S(f"v_add_f32 v{B}, v{B}, v{C+1}")
    allred(B)
    S(f"""
    v_mul_f32 v{B}, {f2u(1/512):#x}, v{B}
    v_cvt_pk_bf16_f32 v{B}, v{B}, v{B}
    v_lshlrev_b32 v{B}, 16, v{B}
    v_add_f32 v{B}, {f2u(1e-5):#x}, v{B}
    v_cvt_pk_bf16_f32 v{B}, v{B}, v{B}
    v_lshlrev_b32 v{B}, 16, v{B}
    v_sqrt_f32 v{B}, v{B}
    v_and_b32 v{C}, 31, v{vL}
    v_cvt_pk_bf16_f32 v196, v{A}, v{B}
    v_lshrrev_b32 v{A}, 2, v{vL}
    v_mov_b32 v{B}, {OOB}
    """)
    g = Stream(); g(f"v_cmp_eq_u32 vcc, 0, v{C}\nv_cndmask_b32 v198, v{B}, v{A}, vcc"); S.atomic(g)
    return S
def stats_store():
    S = Stream()
    S(f"v_mov_b32 v197, v{vN}\nbuffer_store_dwordx2 v[196:197], v198, {srd(WS)}, s{sStatW} offen sc1")
    return S

def kvpre():
    S = Stream()
    KR = 232; VR = 244; WF = 200; KL = 176; O = 208 - 16 - 4
    KR = 232
    VR = 244
    KL = 176
    WF = 188
    O = 208
    a1, a2, a3 = 252, 253, 254
    S(f"""
    v_and_b32 v{a1}, 7, v{vL}
    v_mul_u32_u24 v{a2}, 1040, v{a1}
    v_lshrrev_b32 v{a3}, 3, v{vL}
    v_lshl_add_u32 v{a2}, v{a3}, 2, v{a2}
    s_lshl_b32 s{sT0}, s{sW}, 5
    s_add_u32 s{sT0}, s{sT0}, {KT}
    v_add_u32 v{a2}, s{sT0}, v{a2}
    v_add_u32 v255, 1040, v{a2}
    ds_read2_b32 v[{KR}:{KR+1}], v{a2} offset0:160 offset1:192
    ds_read_b32 v{KR+2}, v{a2} offset:896
    """)
    for p in range(4): S(f"ds_read2_b32 v[{KR+4+2*p}:{KR+5+2*p}], v255 offset0:{64*p} offset1:{64*p+32}")
    S(f"v_add_u32 v{a2}, {VT-KT}, v{a2}")
    for p in range(4): S(f"ds_read2_b32 v[{VR+2*p}:{VR+1+2*p}], v{a2} offset0:{64*p} offset1:{64*p+32}")
    S(f"v_xor_b32 v{a1}, 7, v{a1}\nv_lshlrev_b32 v{a1}, 4, v{a1}\nv_lshl_add_u32 v{a1}, v{a3}, 13, v{a1}")
    for i in range(4):
        S(f"v_lshlrev_b32 v{WF+2*i}, 16, v{vSHK+i}\nv_and_b32 v{WF+2*i+1}, 0xffff0000, v{vSHK+i}")
    ri = lambda r: r + 3 if r < 0 else r + 4
    for r in range(-3, 8):
        S(f"v_lshlrev_b32 v{KL+ri(r)}, 16, v{KR+ri(r)}\nv_and_b32 v{KR+ri(r)}, 0xffff0000, v{KR+ri(r)}")
    OA = 200; OB = 220
    for ch, (K, Oo) in enumerate(((KL, OA), (KR, OB))):
        for t in range(8): S(f"v_mul_f32 v{Oo+t}, v{K+ri(t)}, v{WF+4*ch}")
        for jj in range(1, 4):
            for t in range(8): S(f"v_fmac_f32 v{Oo+t}, v{K+ri(t-jj)}, v{WF+4*ch+jj}")
    for t in range(8):
        S(f"v_lshlrev_b32 v{KL+t}, 16, v{VR+t}\nv_and_b32 v{VR+t}, 0xffff0000, v{VR+t}")
    for t in range(8):
        S(f"v_mul_f32 v{OA+t}, v{OA+t}, v{KL+t}\nv_mul_f32 v{OB+t}, v{OB+t}, v{VR+t}")
    for ch, (Oo, P) in enumerate(((OA, 232), (OB, 236))):
        for q in range(4): S(f"v_cvt_pk_bf16_f32 v{P+q}, v{Oo+7-2*q}, v{Oo+6-2*q}")
        S(f"buffer_store_dwordx4 v[{P}:{P+3}], v{a1}, {srd(WS)}, s{sKV0+ch} offen sc1", f"kv{ch}")
    return S
def flag_store(soff, srdb, tag):
    S = Stream(); S.waitvm(tag)
    S(f"buffer_store_dword v{vN}, v{vL0}, {srd(srdb)}, s{soff} offen sc1")
    return S

def hcopy_dma():
    S = Stream()
    S(f"s_lshl_b32 s{sT0}, s{sTH}, 4\nv_lshrrev_b32 v252, s{sT0}, v{vDV}\nv_lshlrev_b32 v252, 16, v252\nv_lshlrev_b32 v253, 16, v{vH0}\nv_mul_lo_u32 v253, v253, s{sFH}\nv_readfirstlane_b32 s{sDv}, v252")
    S(f"s_mul_i32 s{sT0}, s{sW}, 4160\nv_and_b32 v252, 7, v{vL}")
    dma_n(S, vL16, SSK, sHC, f"s_add_u32 m0, s{sT0}, {HC+32}", "hc", samev=True)
    g = Stream(); g(f"v_cmp_eq_u32 vcc, 7, v252\nv_lshlrev_b32 v252, 2, v252\ns_add_u32 s{sT0}, s{sT0}, {HC}\nv_cndmask_b32 v253, 0, v253, vcc\nv_add_u32 v252, s{sT0}, v252\nds_write_b32 v252, v253")
    S.atomic(g)
    return S

def g1_set(n): return FR + 16 * (n % 3)
def g1_reads(n):
    if n >= 32: return []
    i, ks = divmod(n, 4)
    st = g1_set(n); slot = i & 3; hi = slot >> 1; off = (slot & 1) * 32768
    L = []
    for u in range(2):
        for rd in range(2):
            L.append(f"ds_read_b64_tr_b16 v[{st+4*u+2*rd}:{st+4*u+2*rd+1}], v{vWA+2*hi+u} offset:{off+16384+ks*4096+rd*1024}")
    for tt in range(2):
        L.append(f"ds_read_b128 v[{st+8+4*tt}:{st+11+4*tt}], v{vQA+4*hi+ks} offset:{off+tt*4096}")
    return [L[0], L[1], L[4], L[5], L[2], L[3]]

def stat_loads(att):
    return [f"buffer_load_dwordx2 v[{STL+4*att+2*tt}:{STL+4*att+2*tt+1}], v{vSTV}, {srd(WS)}, s{sStatC} offen offset:{tt*512} sc1" for tt in range(2)]

def gemm1():
    S = Stream(); CAP = OPT['cap']
    S.waitvm("c0"); S("s_barrier")
    stamp(S, "c0")
    for t in g1_reads(0) + g1_reads(1): S(t)
    for i in range(8):
        S.mark(f"c{i}a")
        for ks in range(4):
            n0 = 4*i + ks; st = g1_set(n0); first = n0 == 0
            rds = g1_reads(n0 + 2)
            small = [st] if n0 < 30 else ([st, g1_set(31)] if n0 == 30 else [])
            for n, (u, tt) in enumerate([(0, 0), (0, 1), (1, 0), (1, 1)]):
                acc = ACC + 16 * (2*u + tt)
                c = "0" if first else vr(acc, 16)
                S(f"v_mfma_f32_32x32x16_bf16 {vr(acc,16)}, v[{st+4*u}:{st+4*u+3}], v[{st+8+4*tt}:{st+11+4*tt}], {c}")
                k = 0
                while rds and k < 2: S(rds.pop(0)); k += 1
                if n0 == 30 and n == 3:
                    S(f"ds_write_b128 v{vCSW}, a[{CSACC}:{CSACC+3}]"); k += 1
                S.fill(CAP - k)
                if n == 0:
                    for sm in small:
                        c = "0" if first else ar(CSACC, 4)
                        S(f"v_mfma_f32_16x16x32_bf16 {ar(CSACC,4)}, v[{sm}:{sm+3}], {ar(SEL,4)}, {c}")
                        S.fill(1)
            if (ks == 1 and i < 7) or n0 == 30:
                S.mark(f"c{i}m")
                if i < 7: S.waitvm(f"c{i+1}")
                if OPT['prof'] > 1: stamp(S, f"w{i}")
                S.waitlg(); S("s_barrier")
                S.mark(f"c{i}b")
        S.mark(f"c{i}e")
    return S

def cs_reads():
    S = Stream()
    for u in range(2):
        for j in range(4): S(f"ds_read_b128 v[{CSV+16*u+4*j}:{CSV+16*u+4*j+3}], v{vCSA+u} offset:{32*j}")
    return S

def stats_consume():
    S = Stream()
    for tt in range(2):
        a0 = STL + 2*tt; a1 = STL + 4 + 2*tt
        g = Stream(); g(f"v_cmp_eq_u32 vcc, s{sN}, v{a0+1}\nv_cndmask_b32 v{a1}, v{a1}, v{a0}, vcc\nv_cndmask_b32 v{a1+1}, v{a1+1}, v{a0+1}, vcc"); S.atomic(g)
    check_poll(S, stat_loads(1), [STL+5, STL+7])
    for tt in range(2):
        a1 = STL + 4 + 2*tt
        S(f"v_and_b32 v{MR+2*tt+1}, 0xffff0000, v{a1}\nv_rcp_f32 v{MR+2*tt+1}, v{MR+2*tt+1}\nv_lshlrev_b32 v{MR+2*tt}, 16, v{a1}\nv_mul_f32 v{MR+2*tt+1}, {NLOG2E:#x}, v{MR+2*tt+1}")
    return S

def epi1(inserts):
    S = Stream(); n = 0
    for u in range(2):
        for tt in range(2):
            for s in range(2):
                acc = ACC + 16*(2*u+tt) + 8*s; cs = CSV + 16*u + 8*s; W = FR + 16*(n & 1); P = FR + 8 + 16*(n & 1)
                mr = f"v[{MR+2*tt}:{MR+2*tt+1}]"
                for p in range(4): S(f"v_pk_fma_f32 v[{acc+2*p}:{acc+2*p+1}], v[{cs+2*p}:{cs+2*p+1}], {mr}, v[{acc+2*p}:{acc+2*p+1}] op_sel_hi:[1,0,1] neg_lo:[0,1,0] neg_hi:[0,1,0]")
                for p in range(4): S(f"v_pk_mul_f32 v[{W+2*p}:{W+2*p+1}], v[{acc+2*p}:{acc+2*p+1}], {mr} op_sel:[0,1] op_sel_hi:[1,1]")
                for p in range(8): S(f"v_exp_f32_e64 v{W+p}, v{W+p}")
                for p in range(4): S(f"v_pk_add_f32 v[{W+2*p}:{W+2*p+1}], v[{W+2*p}:{W+2*p+1}], 1.0 op_sel_hi:[1,0]")
                for p in range(8): S(f"v_rcp_f32_e64 v{W+p}, v{W+p}")
                for p in range(4): S(f"v_pk_mul_f32 v[{W+2*p}:{W+2*p+1}], v[{acc+2*p}:{acc+2*p+1}], v[{W+2*p}:{W+2*p+1}]")
                for p in range(4): S(f"v_cvt_pk_bf16_f32 v{P+p}, v{W+2*p}, v{W+2*p+1}")
                S(f"buffer_store_dwordx4 v[{P}:{P+3}], v{vL16}, {srd(WSH)}, s{sHst+2*u+tt} offen" + (" offset:1024" if s else "") + " sc1", "hst")
                if n in inserts: S.extend(inserts[n])
                n += 1
    return S

CB = 128; CACC = 64; CAF = 96; NA = 6; UST = 220
def pollA_load(): return f"buffer_load_dword v228, v{vPA}, {srd(WS)}, s{sFAp} offen sc1"
def u_loads():
    S = Stream()
    check_poll(S, [pollA_load()], [228])
    S(f"buffer_load_dwordx4 v[{UST}:{UST+3}], v{vL16}, {srd(WS)}, s{sU} offen sc1")
    S(f"buffer_load_dwordx4 v[{UST+4}:{UST+7}], v{vL16}, {srd(WS)}, s{sU} offen offset:1024 sc1")
    return S

def conv():
    S = Stream()
    S(f"ds_write_b128 v{vCU}, v[{UST}:{UST+3}]\nds_write_b128 v{vCU}, v[{UST+4}:{UST+7}] offset:1024")
    S.waitvm("hc"); S.waitlg(); S("s_barrier")
    stamp(S, "conv0")
    order = []
    for m in range(16): order += [m, 31 - m]
    seq = [(m, T) for m in order for T in range(m >> 2, 8)]
    nB = lambda m, T: m + 28 - 4*T
    ldA = lambda idx: [f"ds_read2_b32 v[{CAF+4*(idx%NA)+2*h}:{CAF+4*(idx%NA)+2*h+1}], v{vCA+(order[idx]>>3)} offset0:{32*(order[idx]&7)+2*h} offset1:{32*(order[idx]&7)+2*h+1}" for h in range(2)]
    ldB = lambda n: f"ds_read_b128 v[{CB+4*n}:{CB+4*n+3}], v{vCB} offset:{128*n}"
    first = []; seenB = set(); pos = 0
    for idx, m in enumerate(order):
        for t in ldA(idx): first.append((pos, t, idx))
        for T in range(m >> 2, 8):
            n = nB(m, T)
            if n not in seenB: seenB.add(n); first.append((pos, ldB(n), None))
            pos += 1
    start = {}; pos = 0
    for idx, m in enumerate(order): start[idx] = pos; pos += 8 - (m >> 2)
    LEAD = 10
    k = 0
    def issue(p, lim):
        nonlocal k
        c = 0
        while k < len(first) and c < lim and first[k][0] <= p + LEAD:
            idx = first[k][2]
            if idx is not None and idx >= NA and start[idx - NA + 1] > p: break
            S(first[k][1]); k += 1; c += 1
        return c
    issue(0, 12)
    S.mark("cva")
    seenT = set(); idx_of = {m: i for i, m in enumerate(order)}
    for p, (m, T) in enumerate(seq):
        while k < len(first) and first[k][0] <= p: S(first[k][1]); k += 1
        a = CAF + 4*(idx_of[m] % NA); b = CB + 4*nB(m, T); acc = CACC + 4*T
        c = vr(acc, 4) if T in seenT else "0"; seenT.add(T)
        S(f"v_mfma_f32_16x16x32_bf16 {vr(acc,4)}, v[{a}:{a+3}], v[{b}:{b+3}], {c}")
        c = issue(p + 1, 2)
        S.fill(2 - c)
        if p == OPT['flagB_at']: S.mark("cvf")
        if p == OPT['flagB_at'] + 6: S.mark("cvg")
        if p == 26: S.mark("cv1")
        if p == 52: S.mark("cv2")
        if p == 78: S.mark("cv3")
        if p == 112: S.mark("cvh")
    S.mark("cve")
    return S

def conv_epi():
    S = Stream(); U = 96; R = 104; Y = 120
    stamp(S, "conv1")
    for T in range(4): S(f"ds_read_b64 v[{U+2*T}:{U+2*T+1}], v{vCD} offset:{(3-T)*512}")
    S(f"s_nop 7\ns_cmp_eq_u32 s{sFH}, 0\ns_cbranch_scc1 L_noswap")
    for r in range(16): S(f"v_swap_b32 v{CACC+r}, v{CACC+16+r}")
    S("L_noswap:")
    for T in range(4): S(f"ds_write_b128 v{vCX}, v[{CACC+16+4*T}:{CACC+19+4*T}] offset:{1024*T}")
    t = 128
    for T in range(4):
        a = CACC + 4*T
        S(f"""v_and_b32 v{t}, 0xffff0000, v{U+2*T+1}
        v_lshlrev_b32 v{t+1}, 16, v{U+2*T+1}
        v_and_b32 v{t+2}, 0xffff0000, v{U+2*T}
        v_lshlrev_b32 v{t+3}, 16, v{U+2*T}""")
        for r in range(4): S(f"v_fmac_f32 v{a+r}, s{sDv}, v{t+r}")
    S.waitlg(); S("s_barrier")
    for T in range(4): S(f"ds_read_b128 v[{R+4*T}:{R+4*T+3}], v{vCXR} offset:{1024*T}")
    for pr in range(2):
        for T in (2*pr, 2*pr+1):
            a = CACC + 4*T
            S(f"v_pk_add_f32 v[{a}:{a+1}], v[{a}:{a+1}], v[{R+4*T}:{R+4*T+1}]\nv_pk_add_f32 v[{a+2}:{a+3}], v[{a+2}:{a+3}], v[{R+4*T+2}:{R+4*T+3}]")
            y = Y + 4*pr + 2*(T & 1)
            S(f"v_cvt_pk_bf16_f32 v{y}, v{a}, v{a+1}\nv_cvt_pk_bf16_f32 v{y+1}, v{a+2}, v{a+3}")
        y = Y + 4*pr
        S(f"v_permlane16_swap_b32 v{y}, v{y+2}\nv_permlane16_swap_b32 v{y+1}, v{y+3}")
        S(f"buffer_store_dwordx4 v[{y}:{y+3}], v{vCY}, {srd(WS)}, s{sYs} offen" + (" offset:1024" if pr else "") + " sc1", "yst")
    return S

HR = 128; XF = 224; SF = 240; TP = 192
def pollB_load(): return f"buffer_load_dword v4, v{vPB}, {srd(WS)}, s{sFBp} offen sc1"
def pollC_load(): return f"buffer_load_dword v5, v{vPC}, {srd(WS)}, s{sFCp} offen sc1"
def gemm2():
    S = Stream(); D = OPT['hring']
    def hload(n):
        p, k = divmod(n, 28); so = 64 + 7*p + (k >> 2)
        T = Stream()
        T(f"buffer_load_dwordx4 v[{HR+4*(n%D)}:{HR+4*(n%D)+3}], v{vL16}, {srd(WS)}, s{so} offen" + (f" offset:{(k&3)*1024}" if k & 3 else "") + " sc1")
        return T
    check_poll(S, [pollB_load()], [4])
    stamp(S, "hflag")
    for n in range(D): S.extend(hload(n))
    S.mark("g2s")
    for n in range(56):
        p, k = divmod(n, 28); h = HR + 4*(n % D)
        for u in range(2):
            acc = ACC + 32*(1-p) + 16*u; a = (2*k + u) * 4
            c = "0" if k == 0 else vr(acc, 16)
            S(f"v_mfma_f32_32x32x16_bf16 {vr(acc,16)}, {ar(a,4)}, v[{h}:{h+3}], {c}")
            used = 0
            if u == 1 and n + D < 56:
                T = hload(n + D); S.extend(T); used = len(T)
            S.fill(5 - used)
        S.mark(f"g2_{n}")
        if OPT['prof'] > 1 and n in (0, 13, 27, 34, 41): stamp(S, f"g2_{n}")
    return S

def red_early_w():
    S = Stream()
    for u in range(2):
        for j in range(4): S(f"ds_write_b128 v{vRW}, v[{ACC+32+16*u+4*j}:{ACC+35+16*u+4*j}] offset:{4096*u+1024*j}")
    g = Stream(); g.waitlg(); g("s_barrier"); S.atomic(g)
    return S
def red_early_r():
    S = Stream(); A = ACC + 32; B = ACC + 48
    for j in range(4): S(f"ds_read_b128 v[{A+4*j}:{A+4*j+3}], v{vRR} offset:{1024*j}")
    for j in range(4): S(f"ds_read_b128 v[{B+4*j}:{B+4*j+3}], v{vRR+1} offset:{4096+1024*j}")
    for r in range(16): S(f"v_add_f32 v{A+r}, v{A+r}, v{B+r}")
    return S

FS = TP + 2
def prep_x():
    S = Stream()
    g = Stream()
    g(f"s_add_u32 m0, s{sM0b}, {E}\ns_add_u32 s{sT0}, s{sXO}, 15360\nbuffer_load_dwordx4 v{vXD}, {srd(QF)}, s{sXO} offen lds")
    g(f"buffer_load_dwordx4 v{vXD}, {srd(QF)}, s{sT0} offen offset:1024 lds", "xd")
    S.atomic(g)
    S(f"buffer_load_dwordx2 v[{FS}:{FS+1}], v{vSTV}, {srd(WS)}, s{sStatF} offen sc1")
    return S
def prep_x2():
    S = Stream(); XR = TP + 8
    check_poll(S, [f"buffer_load_dwordx2 v[{FS}:{FS+1}], v{vSTV}, {srd(WS)}, s{sStatF} offen sc1"], [FS+1])
    S(f"v_and_b32 v{FS+1}, 0xffff0000, v{FS}\nv_rcp_f32 v{FS+1}, v{FS+1}\nv_lshlrev_b32 v{FS}, 16, v{FS}\nv_mul_f32 v{FS+2}, v{FS+1}, v{FS+1}\nv_mul_f32 v{FS+1}, {NLOG2E:#x}, v{FS+1}")
    S.waitvm("xd")
    for j in range(4):
        if j: S(f"v_xor_b32 v{FS+3}, {16*j}, v{vXA}")
        S(f"ds_read_b64 v[{XR+2*j}:{XR+2*j+1}], v{FS+3 if j else vXA}")
    for q in range(8):
        S(f"v_lshlrev_b32 v{XF+2*q}, 16, v{XR+q}\nv_and_b32 v{XF+2*q+1}, 0xffff0000, v{XR+q}")
    for r in range(16): S(f"v_sub_f32 v{SF+r}, v{XF+r}, v{FS}")
    for r in range(16): S(f"v_mul_f32 v{SF+r}, v{SF+r}, v{FS+2}")
    return S
def prep_y():
    S = Stream(); YS = TP + 8
    check_poll(S, [pollC_load()], [5])
    S(f"s_add_u32 s{sT0}, s{sYl}, 65536")
    S(f"buffer_load_dwordx4 v[{YS}:{YS+3}], v{vYL}, {srd(WS)}, s{sYl} offen sc1\nbuffer_load_dwordx4 v[{YS+4}:{YS+7}], v{vYL}, {srd(WS)}, s{sT0} offen sc1")
    return S
def prep_y2():
    S = Stream(); YS = TP + 8; YR = TP + 16; t = TP + 24
    S(f"ds_write_b128 v{vYW}, v[{YS}:{YS+3}]\nds_write_b128 v{vYW}, v[{YS+4}:{YS+7}] offset:1024")
    for j in range(4): S(f"ds_read_b64_tr_b16 v[{YR+2*j}:{YR+2*j+1}], v{vYA} offset:{512*j}")
    for q in range(8):
        S(f"v_lshlrev_b32 v{t+(q&1)*2}, 16, v{YR+q}\nv_and_b32 v{t+(q&1)*2+1}, 0xffff0000, v{YR+q}")
        S(f"v_mul_f32 v{SF+2*q}, v{SF+2*q}, v{t+(q&1)*2}\nv_mul_f32 v{SF+2*q+1}, v{SF+2*q+1}, v{t+(q&1)*2+1}")
    return S

def final():
    S = Stream(); A = ACC; F = ACC + 16; Ee = ACC + 32; W = HR; P = HR + 16
    stamp(S, "g2end")
    for j in range(4): S(f"ds_write_b128 v{vRW}, v[{F+4*j}:{F+4*j+3}] offset:{32768+1024*j}")
    for p in range(8): S(f"v_pk_add_f32 v[{A+2*p}:{A+2*p+1}], v[{A+2*p}:{A+2*p+1}], v[{Ee+2*p}:{Ee+2*p+1}]")
    S.waitlg(); S("s_barrier")
    for j in range(4): S(f"ds_read_b128 v[{Ee+4*j}:{Ee+4*j+3}], v{vRR+2} offset:{32768+1024*j}")
    mr = f"v[{FS}:{FS+1}]"
    for h in range(2):
        ps = range(4*h, 4*h+4)
        for p in ps: S(f"v_pk_add_f32 v[{A+2*p}:{A+2*p+1}], v[{A+2*p}:{A+2*p+1}], v[{Ee+2*p}:{Ee+2*p+1}]")
        for p in ps: S(f"v_pk_mul_f32 v[{W+2*p}:{W+2*p+1}], v[{A+2*p}:{A+2*p+1}], {mr} op_sel:[0,1] op_sel_hi:[1,1]")
        for p in ps: S(f"v_exp_f32_e64 v{W+2*p}, v{W+2*p}\nv_exp_f32_e64 v{W+2*p+1}, v{W+2*p+1}")
        for p in ps: S(f"v_pk_add_f32 v[{W+2*p}:{W+2*p+1}], v[{W+2*p}:{W+2*p+1}], 1.0 op_sel_hi:[1,0]")
        for p in ps: S(f"v_rcp_f32_e64 v{W+2*p}, v{W+2*p}\nv_rcp_f32_e64 v{W+2*p+1}, v{W+2*p+1}")
        for p in ps: S(f"v_pk_mul_f32 v[{A+2*p}:{A+2*p+1}], v[{A+2*p}:{A+2*p+1}], v[{SF+2*p}:{SF+2*p+1}]")
        for p in ps: S(f"v_pk_fma_f32 v[{W+2*p}:{W+2*p+1}], v[{A+2*p}:{A+2*p+1}], v[{W+2*p}:{W+2*p+1}], v[{XF+2*p}:{XF+2*p+1}]")
        for p in ps: S(f"v_cvt_pk_bf16_f32 v{P+p}, v{W+2*p}, v{W+2*p+1}")
        for j in (2*h, 2*h+1): S(f"ds_write_b64 v{vOW}, v[{P+2*j}:{P+2*j+1}] offset:{16*j}")
    S(f"s_add_u32 s{sT0}, s{sXO}, 16384")
    S(f"ds_read_b128 v[{W}:{W+3}], v{vOR}\nds_read_b128 v[{W+4}:{W+7}], v{vOR} offset:1280")
    S(f"buffer_store_dwordx4 v[{W}:{W+3}], v{vOS}, {srd(OUT)}, s{sXO} offen\nbuffer_store_dwordx4 v[{W+4}:{W+7}], v{vOS}, {srd(OUT)}, s{sT0} offen")
    if OPT['prof']:
        stamp(S, "outst"); S("s_waitcnt vmcnt(0)"); stamp(S, "end")
        S(f"s_lshl_b32 s{sT0}, s2, 2\ns_add_u32 s{sT0}, s{sT0}, s{sW}\ns_lshl_b32 s{sT0}, s{sT0}, 8\ns_add_u32 s{sT0}, s{sT0}, {PROF}\nv_lshlrev_b32 v{vT}, 2, v{vL}")
        S(f"buffer_store_dword v{vPROF}, v{vT}, {srd(WS)}, s{sT0} offen")
    return S

def stS(name):
    s = Stream(); stamp(s, name); return s
def cat(*ss):
    o = Stream()
    for s in ss: o.extend(s)
    return o
def one(t, tag=None):
    s = Stream(); s(t, tag); return s

def spread(S, items, every):
    o = Stream(); items = list(items); n = 0
    for x in S:
        o.append(x); n += 1
        if items and n % every == 0:
            while items and items[0].cls == 'pseudo' and items[0].op != 'GROUP': o.append(items.pop(0))
            if items: o.append(items.pop(0))
    o.extend(items)
    return o

def build():
    P = Stream()
    P.extend(entry())
    P.extend(spread(setup(), chunk_dma(1), 14))
    stamp(P, "setup")
    P.extend(stats()); P.extend(kv_dma())
    P.extend(spread(setup_b(), chunk_dma(2), 11))
    pre = cat(one(pollA_load().replace("v228,", "a249,")), one(pollB_load().replace("v4,", "a250,")), one(pollC_load().replace("v5,", "a251,")))
    g1f = [("c0a", "c0m", chunk_dma(3))]
    for i in range(4): g1f.append((f"c{i}b", f"c{i+1}m", chunk_dma(i + 4)))
    g1f.append(("c4b", "c5m", cat(hcopy_dma(), w2_half(0, 0))))
    g1f.append(("c5b", "c6m", cat(*[one(t) for t in stat_loads(0)], w2_half(0, 1))))
    g1f.append(("c6b", "c7m", cat(*[one(t) for t in stat_loads(1)], w2_half(1, 0))))
    g1f.append(("c0a", "c0m", nonce_get(), 1))
    g1f.append(("c0b", "c1a", cat(nonce_use(), stats_store()), 1))
    g1f.append(("c1b", "c4m", kvpre()))
    g1f.append(("c5b", "c5e", flag_store(sFAo, WS, "kv1"), 1))
    g1f.append(("c5a", "c6e", hoffs()))
    g1f.append(("c7a", "c7m", stats_consume()))
    g1f.append(("c7b", "c7e", cat(cs_reads(), one(pollA_load())), 1))
    P.extend(merge(gemm1(), g1f))
    stamp(P, "g1end")
    P.extend(spread(epi1({5: u_loads()}), cat(w2_half(1, 1), w2_dma(2)), 18))
    stamp(P, "epi1")
    W = lambda t: Stream([Pseudo('WAITLG', t)])
    cf = [("cvf", "cvg", cat(flag_store(sFBo, WSH, "hst"))),
          ("cva", "cvh", cat(w2_dma(3), W('tr0'), w2_dma(4), W('tr1'), w2_dma(5), W('tr2'), w2_dma(6))),
          ("cva", "cv1", w2_tr(0)), ("cv1", "cv2", w2_tr(1)), ("cv2", "cv3", w2_tr(2)), ("cv3", "cve", w2_tr(3)),
          ("cvh", "cve", one(pollB_load()))]
    P.extend(merge(conv(), cf))
    P.extend(W('tr3'))
    P.extend(conv_epi())
    stamp(P, "conv2")
    P.extend(prep_x())
    gf = [("g2s", "g2_2", flag_store(sFCo, WS, "yst")),
          ("g2s", "g2_14", cat(w2_tr(4), w2_tr(5), w2_tr(6))),
          ("g2_8", "g2_26", prep_x2()),
          ("g2_28", "g2_32", red_early_w()),
          ("g2_30", "g2_32", one(pollC_load())),
          ("g2_36", "g2_40", prep_y()),
          ("g2_34", "g2_44", red_early_r()),
          ("g2_46", "g2_55", prep_y2())]
    P.extend(merge(gemm2(), gf))
    P.extend(final())
    P("L_end:\ns_endpgm")
    P = flatten(P)
    P = autowait(P); P = hazards(P)
    R = hazards(flatten(rare))
    P.extend(R); P("L_codeend:")
    P = align8(P)
    return P

HEAD = open("cdna_kernels/" + NAME + ".s.ref").read().split("; Override launch")[0]
def emit():
    P = build()
    size = sum(x.size for x in P)
    o = HEAD + f"; @launch grid=(256,1,1) block=(256,1,1) lds={LDS_BYTES}\n"
    o += f'.amdgcn_target "amdgcn-amd-amdhsa--gfx950"\n.text\n.globl {NAME}_kernel\n.p2align 8\n.type {NAME}_kernel,@function\n{NAME}_kernel:\n'
    o += "\n".join(l for l in text(P).split("\n") if not l.strip().startswith("; MARK"))
    o += f""".section .rodata,"a"
.p2align 6
.amdhsa_kernel {NAME}_kernel
  .amdhsa_next_free_vgpr 512
  .amdhsa_next_free_sgpr 102
  .amdhsa_accum_offset 256
  .amdhsa_group_segment_fixed_size 0
  .amdhsa_kernarg_size 96
  .amdhsa_user_sgpr_count 2
  .amdhsa_user_sgpr_kernarg_segment_ptr 1
  .amdhsa_system_sgpr_workgroup_id_x 1
.end_amdhsa_kernel
"""
    return o, size

if __name__ == "__main__":
    o, size = emit()
    open(sys.argv[1], "w").write(o)
    print("code bytes (estimate):", size, "stamps:", stamp_names)
    open(sys.argv[1] + ".stamps", "w").write(",".join(stamp_names))
```

```python
import re

def _expand(tok):
    tok = tok.strip()
    neg = tok.lstrip('-|').rstrip('|')
    if neg.startswith('abs(') : neg = neg[4:-1]
    m = re.fullmatch(r'([vas])\[(\d+):(\d+)\]', neg)
    if m: return [f"{m.group(1)}{i}" for i in range(int(m.group(2)), int(m.group(3)) + 1)]
    m = re.fullmatch(r'([vas])(\d+)', neg)
    if m: return [neg]
    if neg == 'vcc': return ['vcc_lo', 'vcc_hi']
    if neg == 'exec': return ['exec_lo', 'exec_hi']
    if neg in ('vcc_lo', 'vcc_hi', 'exec_lo', 'exec_hi', 'm0', 'scc'): return [neg]
    return []

TRANS = ('v_exp_f32', 'v_log_f32', 'v_rcp_f32', 'v_rsq_f32', 'v_sqrt_f32', 'v_sin_f32', 'v_cos_f32')

class Ins:
    __slots__ = ('text', 'op', 'rd', 'wr', 'cls', 'tag', 'dpp', 'size', 'arg', 'srcC', 'srcAB', 'wide')
    def __init__(self, text, tag=None):
        self.text = text; self.tag = tag; self.arg = None
        self.rd = set(); self.wr = set(); self.dpp = False; self.srcC = set(); self.srcAB = set(); self.wide = False
        t = text.split(';')[0].strip()
        if t.endswith(':'):
            self.op = 'label'; self.cls = 'label'; self.size = 0; return
        if t.startswith('.'):
            self.op = t.split()[0]; self.cls = 'directive'; self.size = 0; return
        parts = t.split(None, 1)
        op = parts[0]; self.op = op
        rest = parts[1] if len(parts) > 1 else ''
        ops = [o.strip() for o in rest.split(',')] if rest else []
        mods = ''
        if ops:
            last = ops[-1].split(None, 1)
            ops[-1] = last[0]
            mods = last[1] if len(last) > 1 else ''
            clean = []
            for i, o in enumerate(ops):
                sp = o.split(None, 1)
                clean.append(sp[0])
                if len(sp) > 1:
                    mods = sp[1] + ',' + ','.join(ops[i+1:]) + ' ' + mods
                    break
            ops = clean
        base = re.sub(r'_(e32|e64|dpp|sdwa)$', '', op)
        R = lambda i: _expand(ops[i]) if i < len(ops) else []
        allr = lambda frm: [r for i in range(frm, len(ops)) for r in R(i)]
        lit = any(re.fullmatch(r'-?(0x[0-9a-fA-F]+|\d+)', o) and not (-16 <= int(o, 0) <= 64) for o in ops) or \
              any(re.fullmatch(r'-?\d+\.\d+(e[-+]?\d+)?', o) and o not in ('0.5','-0.5','1.0','-1.0','2.0','-2.0','4.0','-4.0') for o in ops)
        self.size = 4
        if op.startswith('v_mfma'):
            self.cls = 'mfma8' if '32x32x16' in op else 'mfma4'
            self.wr = set(R(0)); self.srcAB = set(R(1) + R(2)); self.srcC = set(R(3)); self.rd = self.srcAB | self.srcC; self.size = 8
        elif op.startswith('buffer_') or op.startswith('global_'):
            self.size = 8
            if 'load' in op:
                if re.search(r'\blds\b', mods):
                    self.cls = 'dma'; self.rd = set(allr(0)) | {'m0'}
                else:
                    self.cls = 'vmem_ld'; self.wr = set(R(0)); self.rd = set(allr(1))
            else:
                self.cls = 'vmem_st'; self.rd = set(allr(0)); self.wide = ('x3' in op or 'x4' in op)
                self.arg = set(R(0))
            self.rd |= {'exec_lo', 'exec_hi'}
        elif op.startswith('ds_'):
            self.size = 8
            if op.startswith('ds_read'):
                self.cls = 'ds_ld'; self.wr = set(R(0)); self.rd = set(allr(1))
            else:
                self.cls = 'ds_st'; self.rd = set(allr(0))
        elif op.startswith('s_load') or op in ('s_memtime', 's_memrealtime'):
            self.cls = 'smem'; self.wr = set(R(0)); self.rd = set(allr(1)); self.size = 8
        elif op.startswith('s_'):
            self.cls = 'salu'
            if op in ('s_waitcnt', 's_nop', 's_barrier', 's_endpgm', 's_sleep', 's_setprio', 's_branch'):
                self.cls = 'ctl'
            elif op.startswith('s_cbranch'):
                self.cls = 'ctl'
                self.rd = {'scc'} if 'scc' in op else ({'vcc_lo', 'vcc_hi'} if 'vcc' in op else {'exec_lo', 'exec_hi'})
            elif op.startswith('s_cmp') or op.startswith('s_bitcmp'):
                self.rd = set(allr(0)); self.wr = {'scc'}
            else:
                self.wr = set(R(0)); self.rd = set(allr(1))
                if op.startswith('s_cselect') or op.startswith('s_addc'): self.rd.add('scc')
                if not (op.startswith('s_mov') or op.startswith('s_cselect') or op.startswith('s_mul') or op.startswith('s_getpc') or op.startswith('s_getreg')): self.wr.add('scc')
            if (lit or any(o.startswith('L_') for o in ops)) and self.cls == 'salu': self.size = 8
        elif op.startswith('v_'):
            self.cls = 'trans' if base in TRANS else 'valu'
            self.dpp = op.endswith('_dpp') or 'quad_perm' in mods or 'row_' in mods
            if base.startswith('v_cmp'):
                self.wr = set(R(0)); self.rd = set(allr(1))
            elif base in ('v_permlane16_swap_b32', 'v_permlane32_swap_b32', 'v_swap_b32'):
                self.wr = set(R(0) + R(1)); self.rd = set(R(0) + R(1))
            else:
                self.wr = set(R(0)); self.rd = set(allr(1))
                if base in ('v_fmac_f32',) or self.dpp: self.rd |= set(R(0))
            vop3_only = ('v_fma_f32', 'v_mul_lo_u32', 'v_mad_u32_u24', 'v_lshl_add_u32', 'v_add_lshl_u32', 'v_and_or_b32', 'v_lshl_or_b32',
                         'v_bfe_u32', 'v_add3_u32', 'v_cvt_pk_bf16_f32', 'v_perm_b32', 'v_alignbit_b32', 'v_or3_b32', 'v_xad_u32', 'v_accvgpr_read_b32',
                         'v_accvgpr_write_b32', 'v_readlane_b32', 'v_writelane_b32', 'v_med3_f32', 'v_bfi_b32', 'v_mul_hi_u32')
            is3 = op.endswith('_e64') or base in vop3_only or base.startswith('v_pk_') or self.dpp
            if base.startswith('v_cmp') and ops and ops[0] != 'vcc': is3 = True
            if base == 'v_cndmask_b32' and len(ops) > 3 and ops[3] != 'vcc': is3 = True
            if not is3 and len(ops) >= 3 and not base.startswith('v_cmp') and base not in ('v_permlane16_swap_b32',) and not ops[2].startswith('v'): is3 = True
            if not is3 and any(o.startswith('-v') or o.startswith('-s') or o.startswith('|') or o.startswith('abs') for o in ops[1:]): is3 = True
            self.size = 8 if (is3 or lit) else 4
        else:
            raise ValueError("unknown instruction: " + text)

class Pseudo:
    def __init__(self, kind, arg=None):
        self.cls = 'pseudo'; self.op = kind; self.arg = arg; self.size = 0; self.rd = set(); self.wr = set(); self.tag = None
        self.text = f"; {kind} {arg}"

class Stream(list):
    def __call__(self, text, tag=None):
        for ln in text.strip().split('\n'):
            ln = ln.strip()
            if ln and not ln.startswith(';'): self.append(Ins(ln, tag))
        return self
    def waitvm(self, tag): self.append(Pseudo('WAITVM', tag))
    def waitlg(self, tag=None): self.append(Pseudo('WAITLG', tag))
    def fill(self, n): self.append(Pseudo('FILL', n))
    def mark(self, name): self.append(Pseudo('MARK', name))
    def gate(self, name): self.append(Pseudo('GATE', name))
    def pace(self, n): self.append(Pseudo('PACE', n))
    def atomic(self, items):
        g = Pseudo('GROUP', list(items)); self.append(g)

def merge(main, fills):
    marks = {x.arg: i for i, x in enumerate(main) if x.cls == 'pseudo' and x.op == 'MARK'}
    cap = {i: x.arg for i, x in enumerate(main) if x.cls == 'pseudo' and x.op == 'FILL'}
    ins_at = {i: [] for i in range(len(main) + 1)}
    for fl in fills:
        a, b, st = fl[:3]; early = len(fl) > 3
        ia, ib = marks[a], marks[b]
        slots = [i for i in sorted(cap) if ia < i < ib]
        items = list(st)
        cost = lambda it: (sum(1 for y in it.arg if y.cls != 'pseudo') if (it.cls == 'pseudo' and it.op == 'GROUP') else (0 if it.cls == 'pseudo' else 1))
        total = sum(cost(it) for it in items); room = sum(cap[i] for i in slots)
        k = 0; placed = 0; seen = 0
        if early and isinstance(fl[3], tuple):
            pace = fl[3][0]; since = pace
            isvm = lambda it: any(y.cls in ('dma', 'vmem_ld', 'vmem_st') for y in (it.arg if (it.cls == 'pseudo' and it.op == 'GROUP') else [it]))
            for i in slots:
                since += 1
                while k < len(items):
                    it = items[k]
                    if it.cls == 'pseudo' and it.op == 'GATE':
                        if marks[it.arg] < i: k += 1; continue
                        break
                    if it.cls == 'pseudo' and it.op == 'PACE': pace = it.arg; k += 1; continue
                    if isvm(it):
                        if since < pace: break
                        since = 0
                    elif cost(it) and cap[i] <= 0: break
                    ins_at[i].append(it); cap[i] -= cost(it); k += 1
            slots = []
        for i in slots:
            seen += cap[i]
            quota = total * seen / max(room, 1) if (room >= total and not early) else seen
            while k < len(items) and (cost(items[k]) == 0 or (placed + cost(items[k]) <= quota + 0.5 and cap[i] > 0)):
                c = cost(items[k]); ins_at[i].append(items[k]); cap[i] -= c; placed += c; k += 1
        if k < len(items):
            left = sum(cost(it) for it in items[k:])
            ins_at[ib].extend(items[k:])
    out = Stream()
    for i, x in enumerate(main):
        for it in ins_at[i]:
            if it.cls == 'pseudo' and it.op == 'GROUP': out.extend(it.arg)
            else: out.append(it)
        if not (x.cls == 'pseudo' and x.op == 'FILL'): out.append(x)
    return out

def flatten(st):
    out = Stream()
    for it in st:
        if it.cls == 'pseudo' and it.op == 'GROUP': out.extend(flatten(it.arg))
        elif it.cls == 'pseudo' and it.op in ('FILL', 'GATE', 'PACE'): pass
        else: out.append(it)
    return out

def autowait(st):
    out = Stream()
    vm_n = 0; lg_n = 0; vm_done = 0; lg_done = 0
    reg_vm = {}; reg_lg = {}; reg_sm = set(); smem_out = False
    tag_vm = {}; tag_lg = {}
    for x in st:
        need_vm = None; need_lg = None
        def nv(idx):
            nonlocal need_vm
            if idx > vm_done:
                c = vm_n - idx; need_vm = c if need_vm is None else min(need_vm, c)
        def nl(idx):
            nonlocal need_lg
            if idx > lg_done:
                c = lg_n - idx; need_lg = c if need_lg is None else min(need_lg, c)
        if x.cls == 'pseudo':
            if x.op == 'WAITVM':
                if x.arg is None: nv(vm_n) if vm_n > vm_done else None
                else: nv(tag_vm[x.arg])
            elif x.op == 'WAITLG':
                if x.arg is None:
                    if lg_n > lg_done or smem_out: need_lg = 0
                else: nl(tag_lg[x.arg])
        else:
            for r in (x.rd | x.wr):
                if r in reg_vm: nv(reg_vm[r])
                if r in reg_lg: nl(reg_lg[r])
                if r in reg_sm: need_lg = 0
        if need_vm is not None and need_vm > 63: need_vm = None
        if need_lg is not None and need_lg > 15: need_lg = None
        if need_vm is not None or need_lg is not None:
            p = []
            if need_vm is not None: p.append(f"vmcnt({need_vm})"); vm_done = max(vm_done, vm_n - need_vm)
            if need_lg is not None:
                p.append(f"lgkmcnt({need_lg})"); lg_done = max(lg_done, lg_n - need_lg)
                if need_lg == 0: smem_out = False; reg_sm.clear()
            out.append(Ins("s_waitcnt " + " ".join(p)))
            reg_vm = {r: i for r, i in reg_vm.items() if i > vm_done}
            reg_lg = {r: i for r, i in reg_lg.items() if i > lg_done}
        if x.cls == 'pseudo':
            if x.op == 'MARK': out.append(x)
            if x.op == 'CMPVM':
                tag, sreg = x.arg; n = min(vm_n - tag_vm[tag], 63)
                out.append(Ins(f"s_cmp_le_u32 s{sreg}, {(n & 15) | ((n >> 4) << 22):#x}"))
            continue
        if x.cls in ('vmem_ld', 'vmem_st', 'dma'):
            vm_n += 1
            for r in x.wr: reg_vm[r] = vm_n
            if x.tag: tag_vm[x.tag] = vm_n
        elif x.cls in ('ds_ld', 'ds_st'):
            lg_n += 1
            for r in x.wr: reg_lg[r] = lg_n
            if x.tag: tag_lg[x.tag] = lg_n
        elif x.cls == 'smem':
            smem_out = True
            for r in x.wr: reg_sm.add(r)
        elif x.op == 's_waitcnt':
            m = re.search(r'vmcnt\((\d+)\)', x.text)
            if m: vm_done = max(vm_done, vm_n - int(m.group(1)))
            m = re.search(r'lgkmcnt\((\d+)\)', x.text)
            if m:
                if int(m.group(1)) == 0: smem_out = False; reg_sm.clear(); lg_done = lg_n
                else: lg_done = max(lg_done, lg_n - int(m.group(1)))
            reg_vm = {r: i for r, i in reg_vm.items() if i > vm_done}
            reg_lg = {r: i for r, i in reg_lg.items() if i > lg_done}
        out.append(x)
    return out

def _states(x):
    if x.cls in ('label', 'directive', 'pseudo'): return 0
    if x.op == 's_nop': return int(x.text.split()[1], 0) + 1
    return 1

def hazards(st):
    out = Stream()
    isv = lambda r: r[0] in 'va' and r[1:].isdigit()
    iss = lambda r: (r[0] == 's' and r[1:].isdigit()) or r.startswith('vcc')
    for x in st:
        if x.cls in ('label', 'directive', 'pseudo'):
            out.append(x); continue
        need = 0; dist = 0
        valu = x.cls in ('valu', 'trans'); mf = x.cls in ('mfma4', 'mfma8')
        mem = x.cls in ('vmem_ld', 'vmem_st', 'dma', 'ds_ld', 'ds_st')
        base = re.sub(r'_(e32|e64|dpp|sdwa)$', '', x.op)
        for p in reversed(out):
            if dist >= 20: break
            if p.cls in ('label', 'directive', 'pseudo'): continue
            req = 0
            pv = p.cls in ('valu', 'trans')
            if pv:
                wv = {r for r in p.wr if isv(r)}; ws = {r for r in p.wr if iss(r)}
                if mf and (wv & x.rd): req = max(req, 2)
                if valu and x.dpp and (wv & x.rd): req = max(req, 2)
                if base.startswith('v_permlane') and (wv & x.rd): req = max(req, 2)
                if base in ('v_readfirstlane_b32', 'v_readlane_b32') and (wv & x.rd): req = max(req, 1)
                if p.cls == 'trans' and (valu or mf or mem) and (wv & x.rd): req = max(req, 1)
                if valu and (ws & x.rd): req = max(req, 2)
                if x.cls in ('vmem_ld', 'vmem_st', 'dma') and (ws & x.rd): req = max(req, 5)
                if x.cls in ('salu', 'smem', 'ctl') and (ws & x.rd): req = max(req, 2)
                if base in ('v_readlane_b32', 'v_writelane_b32') and (ws & x.rd): req = max(req, 4)
            if p.cls in ('mfma4', 'mfma8'):
                e = p.cls == 'mfma8'
                if mf:
                    if p.wr & x.srcAB: req = max(req, 12 if e else 8)
                    if (p.wr & x.srcC) and not (p.wr == x.srcC and p.cls == x.cls): req = max(req, 10 if e else 6)
                    if (p.wr & x.wr) and not (p.wr == x.srcC and p.cls == x.cls): req = max(req, 12 if e else 8)
                elif (valu or mem) and (p.wr & (x.rd | x.wr)): req = max(req, 12 if e else 8)
                if valu and (p.srcC & x.wr): req = max(req, 7 if e else 3)
            if p.cls == 'salu' and 'm0' in p.wr and x.cls == 'dma': req = max(req, 1)
            if x.op == 's_getreg_b32' and p.cls in ('vmem_ld', 'vmem_st', 'dma'): req = max(req, 4)
            if p.cls == 'vmem_st' and p.wide and (p.arg & x.wr): req = max(req, 2)
            if p.cls == 'salu' and ('exec_lo' in p.wr) and valu and x.dpp: req = max(req, 2)
            need = max(need, req - dist)
            dist += _states(p)
        while need > 0:
            n = min(need, 16); out.append(Ins(f"s_nop {n-1}")); need -= n
        out.append(x)
    return out

E64OK = ('v_exp_f32', 'v_rcp_f32', 'v_add_f32', 'v_mul_f32', 'v_sub_f32', 'v_mov_b32', 'v_lshlrev_b32', 'v_and_b32', 'v_sqrt_f32',
         'v_add_u32', 'v_or_b32', 'v_xor_b32', 'v_lshrrev_b32', 'v_fmac_f32', 'v_max_f32', 'v_min_f32')
def align8(st):
    off = 0; last4 = None; out = Stream()
    for x in st:
        if x.cls == 'directive' and x.op == '.p2align': off = 0; last4 = None
        if x.size == 8 and off % 8 == 4 and last4 is not None:
            y = out[last4]; z = Ins(y.text.replace(y.op, y.op + '_e64', 1), y.tag); assert z.size == 8
            out[last4] = z; off += 4
        if x.size == 8: last4 = None
        if x.size == 4:
            last4 = len(out) if x.op in E64OK else (last4 if off % 8 == 4 else None)
        if x.cls == 'label': last4 = None
        out.append(x); off += x.size
    return out

def text(st):
    return "\n".join((x.text if x.cls in ('label', 'directive') else "    " + x.text) for x in st) + "\n"
```

```python
import sys, struct
from ir import *

NAME = "recurrent_scan__ssm_conv_h3__dense_activation_silu__prompt"
OPT = dict(rotk=0, rotx=0, htouch=0, x_w2null=0, x_hcnull=0, x_hplain=0, n1=16, n2=28, d4=66, fa=6, pat=-1, cvpace=3, t0=14, t1=36, t2=56, t3=76, pretouch=0, c2n=4, p0=2, p1=2, p2=2, b1n=5, b2n=5, esp=8, yat=36, ylag=9, ylate=1, map47=0, tlb=0, nonce_at=0, slowat=4, nt=1, c1n=2, kvpos=2, w2pace=3, sweep=1, uat=2, x_nokv=0, x_nocs=0, x_nodma=0, x_nobar=0, x_now2=0, onewait=1, kvend=4, cap=5, spare=1, prof=0, stats_fill=0, hring=16, flagB_at=30, codepf=1)
for a in sys.argv[2:]:
    k, v = a.split('='); OPT[k] = int(v)

HWS = 0; KVR = 0x700000; YT = 0x900000; STATS = 0xB00000; FLA = 0xB10000; FLB = 0xB30000; FLC = 0xB50000
PROF = 0xB80000; WS_SIZE = 0xC00000
E = 131072; KT = E; VT = E + 9360; HC = E; UR = E + 17680; CS = E + 26896; DUMP = CS + 512
LDS_BYTES = 163840
OOB = 0x80000000
f2u = lambda f: struct.unpack('<I', struct.pack('<f', f))[0]
NLOG2E = f2u(-1.4426950408889634)

sX, sJ, sW, sT0, sT1 = 3, 4, 5, 6, 7
Q1, QF, SKK, SVV, W1, W2, SSK, WS, WSH, OUT, DBG, SHK, KZ = 8, 12, 16, 20, 24, 28, 32, 36, 40, 44, 48, 52, 60
sDptr = 56; sN = 58; sDv = 59
WSB = 8
sQoff = 64; sWoff = 72
sM0b = 80; sW2off = 81; sStatC = 82; sRot = 83; sStatW = 84; sFH = 85; sTH = 86; sH0 = 87
CODE = 88; sHst = 88
sM0q = 92; sM0w = 93; sP = 94; sCnt = 96; sC0 = sT0
sRB1, sCB1, sRB2, sCB2, sCH = 97, 98, 99, 100, 101
sKV0, sKV1, sFAo, sFAp, sU, sFBo, sFBp, sYs = 16, 17, 18, 19, 20, 21, 22, 23
sFCo, sFCp, sHL, sYl = 52, 53, 54, 55
sXO, sStatF, sHC, sHLo = 60, 61, 62, 63
def srd(b): return f"s[{b}:{b+3}]"

vL = 1; vL16 = 2; vL0 = 3
vQD = 4; vWD = 8; vBD = 12
vQA = 16; vWA = 24
vN = 28; vSTV = 29; vCSW = 30; vCSA = 31
vTA = 33; vCA = 37
vCB = 41; vCU = 42; vCD = 43; vCX = 44; vCXR = 45; vCY = 46
vPA = 47; vPB = 48; vPC = 49
vXD = 50; vYL = 51; vOS = 52
vXA = 53; vYW = 54; vYA = 55; vOW = 56; vOR = 57; vRW = 58; vRR = 59
vPROF = 62; vT = 63
vDV = 215; vH0 = 214
ACC = 64; FR = 128
CSACC = 244; SEL = 240; CSV = 176
STL = 208; MR = 216
def vr(b, n=1): return f"v{b}" if n == 1 else f"v[{b}:{b+n-1}]"
def ar(b, n): return f"a[{b}:{b+n-1}]"

rare = Stream(); nrare = [0]
def check_poll(S, reloads, tagregs):
    k = nrare[0]; nrare[0] += 1
    def cmp(T):
        if len(tagregs) == 1:
            T(f"v_cmp_ne_u32 vcc, s{sN}, v{tagregs[0]}")
        else:
            T(f"v_xor_b32 v{vT}, s{sN}, v{tagregs[0]}")
            for r in tagregs[1:]:
                T(f"v_xor_b32 v{r}, s{sN}, v{r}\nv_or_b32 v{vT}, v{vT}, v{r}")
            T(f"v_cmp_ne_u32 vcc, 0, v{vT}")
    g = Stream(); cmp(g); g(f"s_cbranch_vccnz L_rare{k}\nL_back{k}:")
    S.atomic(g)
    rare(f"L_rare{k}:\ns_mov_b32 s{sCnt}, 0")
    if OPT['prof']: rare(f"v_writelane_b32 v{vPROF}, 1, {52+k}")
    rare(f"L_rl{k}:\ns_sleep 1")
    for t in reloads: rare(t)
    rare("s_waitcnt vmcnt(0)")
    cmp(rare)
    rare(f"s_nop 1\ns_cbranch_vccz L_back{k}\ns_add_u32 s{sCnt}, s{sCnt}, 1\ns_cmp_lt_u32 s{sCnt}, 0x4000\ns_cbranch_scc1 L_rl{k}\ns_branch L_back{k}")

WSO = 24
def note_poll(S, tagreg, sres):
    g = Stream(); g(f"v_cmp_ne_u32 vcc, s{sN}, v{tagreg}\ns_or_b32 s{sres}, vcc_lo, vcc_hi\ns_cselect_b32 s{WSO+2}, 0, {WS_SIZE}"); S.atomic(g)
def repair(S, sres, first, reload, tagreg, redo):
    k = nrare[0]; nrare[0] += 1
    g = Stream(); g(f"s_cmp_lg_u32 s{sres}, 0\ns_cbranch_scc1 L_rare{k}\nL_back{k}:"); S.atomic(g)
    R = Stream()
    R(f"L_rare{k}:\ns_mov_b32 s{sCnt}, 0\ns_waitcnt vmcnt(0) lgkmcnt(0)")
    if OPT['prof']: R(f"v_writelane_b32 v{vPROF}, 1, {52+k}")
    R.extend(first)
    R(f"L_rl{k}:\n{reload}\ns_waitcnt vmcnt(0)\nv_cmp_ne_u32 vcc, s{sN}, v{tagreg}\ns_nop 1\ns_cbranch_vccz L_ok{k}\ns_sleep 1\ns_add_u32 s{sCnt}, s{sCnt}, 1\ns_cmp_lt_u32 s{sCnt}, 0x4000\ns_cbranch_scc1 L_rl{k}\nL_ok{k}:")
    R(f"s_mov_b32 s{WSO+2}, {WS_SIZE}")
    R.extend(autowait(flatten(redo)))
    R(f"s_waitcnt vmcnt(0) lgkmcnt(0)\ns_nop 4\ns_branch L_back{k}")
    rare.extend(R)

stamp_names = []
def stamp(S, name):
    if not OPT['prof']: return
    k = len(stamp_names); stamp_names.append(name)
    g = Stream()
    if OPT['prof'] == 1:
        g(f"s_memrealtime s[{sP}:{sP+1}]\ns_waitcnt lgkmcnt(0)\nv_writelane_b32 v{vPROF}, s{sP}, {k}")
        g(f"s_memtime s[{sP}:{sP+1}]\ns_waitcnt lgkmcnt(0)\nv_writelane_b32 v{vPROF}, s{sP}, {k+32}")
    elif OPT['prof'] == 4:
        g(f"s_memrealtime s[{sP}:{sP+1}]\ns_waitcnt lgkmcnt(0)\nv_writelane_b32 v{vPROF}, s{sP}, {k}")
    else:
        g(f"s_memtime s[{sP}:{sP+1}]\ns_waitcnt lgkmcnt(0)\nv_writelane_b32 v{vPROF}, s{sP}, {k}")
    S.atomic(g)

def dma_n(S, vbase, srdb, soff, m0txt, tag, n=4, samev=False):
    for i in range(n):
        g = Stream()
        if i == 0: g(m0txt)
        g(f"buffer_load_dwordx4 v{vbase + (0 if samev else i)}, {srd(srdb)}, s{soff} offen" + (f" offset:{i*1024}" if i else "") + " lds", tag if i == n-1 else None)
        g[-1].arg = m0txt
        S.atomic(g)

def chunk_dma(i, sq=None, sw=None):
    S = Stream(); slot = i & 3
    dma_n(S, vQD, Q1, sQoff + i if sq is None else sq, f"s_add_u32 m0, s{sM0q}, {slot*32768}", None)
    dma_n(S, vWD, W1, sWoff + i if sw is None else sw, f"s_add_u32 m0, s{sM0w}, {slot*32768}", f"c{i}")
    return S

def w2_half(b, h):
    S = Stream(); slot = b & 3
    dma_n(S, vBD, W2, sW2off, f"s_add_u32 m0, s{sM0b}, {slot*32768 + 4096*h}", f"b{b}" if h else None)
    if h == 0: S(f"s_add_u32 s{sW2off}, s{sW2off}, 32768")
    elif b < 6:
        g = Stream(); g(f"s_cmp_eq_u32 s{sRot}, {6-b}\ns_cselect_b32 s{sCnt}, {7*65536}, 0\ns_add_u32 s{sW2off}, s{sW2off}, 32768\ns_sub_u32 s{sW2off}, s{sW2off}, s{sCnt}"); S.atomic(g)
    return S
def w2_dma(b):
    S = w2_half(b, 0); S.extend(w2_half(b, 1)); return S

def w2_tr(b):
    S = Stream(); slot = b & 3; hi = slot >> 1
    S.waitvm(f"b{b}")
    for k4 in range(4):
        for u in range(2):
            a = ((4*b + k4) * 2 + u) * 4
            for rd in range(2):
                off = (slot & 1) * 32768 + k4 * 2048 + rd * 1024
                S(f"ds_read_b64_tr_b16 {ar(a+2*rd, 2)}, v{vTA+2*hi+u} offset:{off}", f"tr{b}")
    return S

vROW = 220
vSHK = 228
MAP = [f"""
    s_lshr_b32 s{sCB1}, s{sJ}, 1
    s_and_b32 s{sT0}, s{sJ}, 1
    s_lshl_b32 s{sRB1}, s{sX}, 1
    s_add_u32 s{sRB1}, s{sRB1}, s{sT0}
    s_lshl_b32 s{sT0}, s{sT0}, 2
    s_add_u32 s{sT0}, s{sT0}, s{sCB1}
    s_add_u32 s{sT0}, s{sT0}, s{sX}
    s_and_b32 s{sT0}, s{sT0}, 7
""", f"""
    s_and_b32 s{sT0}, s{sJ}, 3
    s_lshr_b32 s{sT1}, s{sX}, 1
    s_lshl_b32 s{sRB1}, s{sT1}, 2
    s_add_u32 s{sRB1}, s{sRB1}, s{sT0}
    s_lshl_b32 s{sT0}, s{sT0}, 1
    s_add_u32 s{sT0}, s{sT0}, s{sT1}
    s_lshr_b32 s{sT1}, s{sJ}, 2
    s_add_u32 s{sT0}, s{sT0}, s{sT1}
    s_and_b32 s{sT0}, s{sT0}, 7
    s_and_b32 s{sCB1}, s{sX}, 1
    s_mul_i32 s{sCB1}, s{sCB1}, 7
    s_add_u32 s{sCB1}, s{sCB1}, s{sT1}
    s_cmp_eq_u32 s{sT1}, 7
    s_cselect_b32 s{sCB1}, 14, s{sCB1}
"""]
def entry():
    class SS(Stream):
        def __call__(self, text, tag=None): return Stream.__call__(self, text.replace(' NT', ' nt' if OPT['nt'] else '').replace('MAPPING', MAP[OPT['map47']]), tag)
    S = SS()
    S(f"""
    s_load_dwordx16 s[64:79], s[0:1], 0
    s_load_dwordx8 s[80:87], s[0:1], 64
    s_memrealtime s[40:41]
    s_cmp_ge_u32 s2, 256
    s_cbranch_scc1 L_end
    v_lshrrev_b32 v{vT}, 6, v0
    v_and_b32 v{vL}, 63, v0
    s_and_b32 s{sX}, s2, 7
    v_readfirstlane_b32 s{sW}, v{vT}
    s_lshr_b32 s{sJ}, s2, 3
    MAPPING
    s_mov_b32 s{QF+2}, 0x200000
    s_mov_b32 s{QF+3}, 0x20000
    s_cmp_lt_u32 s{sCB1}, 14
    s_cselect_b32 s{Q1+2}, 0x200000, 0
    s_cselect_b32 s{W1+2}, 0x1c0000, 0
    s_mov_b32 s{Q1+3}, 0x20000
    s_mov_b32 s{W1+3}, 0x20000
    s_lshl_b32 s88, s{sX}, 5
    s_add_u32 s88, s88, s{sJ}
    s_lshl_b32 s88, s88, 2
    s_add_u32 s88, s88, s{sW}
    s_lshl_b32 s88, s88, 11
    s_lshl_b32 s89, s{sRB1}, 2
    s_add_u32 s89, s89, s{sW}
    s_lshl_b32 s89, s89, 15
    s_mul_i32 s90, s{sW}, {16*3584}
    s_lshl_b32 s{sT1}, s{sCB1}, 8
    s_add_u32 s90, s90, s{sT1}
    s_lshl_b32 s58, s{sT0}, 7
    s_add_u32 s58, s58, s89
    s_mul_i32 s59, s{sT0}, {64*3584}
    s_add_u32 s59, s59, s90
    s_lshl_b32 s{sM0q}, s{sW}, 12
    s_add_u32 s{sM0w}, s{sM0q}, 16384
    s_lshr_b32 s{sT1}, s{sJ}, 3
    s_lshl_b32 s{sRB2}, s{sX}, 2
    s_add_u32 s{sRB2}, s{sRB2}, s{sT1}
    s_and_b32 s{sCB2}, s{sJ}, 7
    s_lshl_b32 s42, s{sW}, 3
    s_or_b32 s42, s42, s2
    """)
    if OPT['prof']: S(f"v_mov_b32 v{vPROF}, 0")
    a, b, c, d = 232, 233, 234, 235
    S(f"""
    v_lshlrev_b32 v{vL16}, 4, v{vL}
    v_lshrrev_b32 v{a}, 5, v{vL}
    v_and_b32 v{b}, 31, v{vL}
    v_lshlrev_b32 v{b}, 4, v{b}
    v_lshl_add_u32 v236, v{a}, 10, v{b}
    v_lshrrev_b32 v{a}, 3, v{vL}
    v_and_b32 v{b}, 7, v{vL}
    v_lshrrev_b32 v{c}, 4, v{vL}
    v_xor_b32 v{d}, v{b}, v{c}
    v_lshlrev_b32 v{d}, 4, v{d}
    v_lshl_add_u32 v{vQD}, v{a}, 10, v{d}
    v_xor_b32 v{d}, 64, v{vQD}
    v_add_u32 v{vQD+1}, 7168, v{d}
    v_add_u32 v{vQD+2}, 14336, v{vQD}
    v_add_u32 v{vQD+3}, 21504, v{d}
    v_and_b32 v{d}, 15, v{vL}
    v_lshlrev_b32 v237, 2, v{c}
    v_xor_b32 v{d}, v{d}, v237
    v_lshlrev_b32 v{d}, 4, v{d}
    v_mul_u32_u24 v237, 3584, v{c}
    v_add_u32 v{vWD}, v237, v{d}
    v_add_u32 v{vWD+1}, {4*3584-1024}, v{vWD}
    v_add_u32 v{vWD+2}, {8*3584-2048}, v{vWD}
    v_add_u32 v{vWD+3}, {12*3584-3072}, v{vWD}
    v_lshlrev_b32 v{b}, 4, v{b}
    v_lshl_add_u32 v237, v{a}, 10, v{b}
    v_lshlrev_b32 v238, 4, v{a}
    """)
    for bb, n in ((W2, 0x1c0000), (SSK, 0x200000), (WS, WS_SIZE), (OUT, 0x200000), (DBG, 256)):
        S(f"s_mov_b32 s{bb+2}, {0 if (bb == W2 and OPT['x_w2null']) or (bb == SSK and OPT['x_hcnull']) else n}")
    for bb in (W2, SSK, WS, OUT, DBG):
        S(f"s_mov_b32 s{bb+3}, 0x20000")
    S.waitlg()
    stamp(S, "karg")
    S(f"""
    s_cmp_gt_u32 s42, 7
    s_cbranch_scc1 L_nonce_done
    s_or_b32 s40, s40, 1
    v_mov_b32 v241, 0
    v_mov_b32 v240, s40
    s_mov_b64 exec, 1
    global_atomic_cmpswap v241, v[240:241], s[84:85] sc1
    s_mov_b64 exec, -1
    L_nonce_done:
    """)
    S[-3].cls = 'other'
    S(f"""
    s_mov_b64 s[{QF}:{QF+1}], s[64:65]
    s_mov_b64 s[{Q1}:{Q1+1}], s[64:65]
    s_mov_b64 s[{W1}:{W1+1}], s[78:79]
    buffer_load_dwordx4 v[{vROW}:{vROW+3}], v236, {srd(QF)}, s88 offen NT
    buffer_load_dwordx4 v[{vROW+4}:{vROW+7}], v236, {srd(QF)}, s88 offen offset:512 NT
    """)
    mv = Stream()
    mv(f"""
    s_mov_b64 s[{SKK}:{SKK+1}], s[66:67]
    s_mov_b64 s[{KZ}:{KZ+1}], s[66:67]
    s_mov_b64 s[{SVV}:{SVV+1}], s[68:69]
    s_mov_b64 s[{SHK}:{SHK+1}], s[70:71]
    s_mov_b64 s[{SSK}:{SSK+1}], s[72:73]
    s_mov_b64 s[{sDptr}:{sDptr+1}], s[74:75]
    s_mov_b64 s[{W2}:{W2+1}], s[80:81]
    s_mov_b64 s[{OUT}:{OUT+1}], s[82:83]
    s_mov_b64 s[{DBG}:{DBG+1}], s[84:85]
    s_mov_b64 s[{WS}:{WS+1}], s[86:87]
    """)
    S.extend(chunk_dma(0, 58, 59)); S.extend(mv)
    if OPT['tlb']:
        S(f"""
        v_min_u32 v240, 5, v{vL}
        v_lshlrev_b32 v240, 21, v240
        v_mov_b32 v241, 0
        buffer_load_dword a240, v240, {srd(WS)}, 0 offen
        global_load_dword a241, v241, s[66:67]
        global_load_dword a242, v241, s[68:69]
        global_load_dword a243, v241, s[80:81]
        global_load_dword a244, v241, s[82:83]
        """.replace("a24", "a23"))
    S.extend(coff(1))
    return S

def coff(i):
    S = Stream()
    S(f"""
    s_add_u32 s{sT1}, s{sC0}, {i}
    s_and_b32 s{sT1}, s{sT1}, 7
    s_lshl_b32 s{sQoff+i}, s{sT1}, 7
    s_add_u32 s{sQoff+i}, s{sQoff+i}, s89
    s_mul_i32 s{sWoff+i}, s{sT1}, {64*3584}
    s_add_u32 s{sWoff+i}, s{sWoff+i}, s90
    """)
    return S
def codepf():
    S = Stream()
    if OPT['codepf']:
        S(f"""
        s_getpc_b64 s[{CODE}:{CODE+1}]
        L_pc:
        s_mov_b32 s{CODE+2}, L_codeend-L_pc
        s_mov_b32 s{CODE+3}, 0x20000
        s_lshl_b32 s{sT1}, s{sJ}, 10
        buffer_load_dwordx4 a[252:255], v{vL16}, {srd(CODE)}, s{sT1} offen
        """)
    return S

def kv_pro():
    S = Stream()
    S(f"""
    s_cmp_lg_u32 s{sRB2}, 0
    s_cselect_b32 s{KZ+2}, 0x200000, 0
    s_mov_b32 s{KZ+3}, 0x20000
    s_mov_b32 s{SKK+2}, 0x200000
    s_mov_b32 s{SKK+3}, 0x20000
    s_mov_b32 s{SVV+2}, 0x200000
    s_mov_b32 s{SVV+3}, 0x20000
    s_mov_b32 s{SHK+2}, 4096
    s_mov_b32 s{SHK+3}, 0x20000
    s_lshl_b32 s40, s{sRB2}, 16
    s_lshl_b32 s41, s{sCB2}, 7
    s_add_u32 s40, s40, s41
    s_lshl_b32 s41, s{sW}, 13
    s_add_u32 s41, s41, s40
    s_add_u32 s42, s41, 32768
    s_sub_u32 s40, s40, 8192
    s_max_i32 s40, s40, 0
    s_mul_i32 s43, s{sW}, 1040
    s_lshl_b32 s87, s{sCB2}, 9
    s_lshl_b32 s{sT1}, s{sW}, 7
    s_add_u32 s87, s87, s{sT1}
    v_cmp_gt_u32 vcc, 40, v{vL}
    v_mov_b32 v239, {OOB}
    v_cndmask_b32 v239, v237, v239, vcc
    """)
    return S
def kv_dma():
    S = Stream(); nt = "nt " if OPT['nt'] else ""
    for m0, v, sr, so in ((f"s_add_u32 m0, s43, {KT+1040}", 237, SKK, 41), (f"s_add_u32 m0, s43, {VT}", 237, SVV, 41),
                          (f"s_add_u32 m0, s43, {KT+5*1040}", 237, SKK, 42), (f"s_add_u32 m0, s43, {VT+4*1040}", 237, SVV, 42),
                          (f"s_mov_b32 m0, {KT}", 239, KZ, 40)):
        g = Stream(); g(f"{m0}\nbuffer_load_dwordx4 v{v}, {srd(sr)}, s{so} offen {nt}lds"); S.atomic(g)
    S(f"buffer_load_dwordx4 v[{vSHK}:{vSHK+3}], v238, {srd(SHK)}, s87 offen", "kvd")
    return S

def setup():
    S = Stream()
    S(f"""
    s_and_b32 s{sFH}, s{sW}, 1
    s_lshr_b32 s{sTH}, s{sW}, 1
    s_lshl_b32 s{sCH}, s2, 1
    s_add_u32 s{sCH}, s{sCH}, s{sTH}
    s_lshl_b32 s{sT0}, s2, 2
    s_lshl_b32 s{sT1}, s{sCH}, 12
    v_mov_b32 v244, s{sT0}
    global_load_dword a248, v244, s[{sDptr}:{sDptr+1}]
    buffer_load_dword a249, off, {srd(SSK)}, s{sT1}
    s_lshl_b32 s{sM0b}, s{sW}, 13
    s_mul_i32 s{sW2off}, s{sW}, {448*1024}
    s_lshl_b32 s{sT0}, s{sCB2}, 7
    s_add_u32 s{sW2off}, s{sW2off}, s{sT0}
    s_lshr_b32 s{sRot}, s{sJ}, 3
    s_mul_i32 s{sRot}, s{sRot}, {OPT['rotk']}
    s_add_u32 s{sRot}, s{sRot}, s{sCB2}
    s_mul_i32 s{sT0}, s{sX}, {OPT['rotx']}
    s_add_u32 s{sRot}, s{sRot}, s{sT0}
    s_mul_i32 s{sT0}, s{sRot}, 37
    s_lshr_b32 s{sT0}, s{sT0}, 8
    s_mul_i32 s{sT0}, s{sT0}, 7
    s_sub_u32 s{sRot}, s{sRot}, s{sT0}
    s_lshl_b32 s{sT0}, s{sRot}, 16
    s_add_u32 s{sW2off}, s{sW2off}, s{sT0}
    s_lshl_b32 s{sStatC}, s{sRB1}, 1
    s_add_u32 s{sStatC}, s{sStatC}, s{sTH}
    s_mul_i32 s{sHst}, s{sStatC}, {2*112*1024}
    s_lshl_b32 s{sStatC}, s{sStatC}, 10
    s_add_u32 s{sStatC}, s{sStatC}, {STATS}
    s_lshl_b32 s{sT0}, s{sCB1}, 1
    s_add_u32 s{sT0}, s{sT0}, s{sFH}
    s_lshl_b32 s{sT0}, s{sT0}, 12
    s_add_u32 s{sHst}, s{sHst}, s{sT0}
    s_lshl_b32 s{sT0}, s{sTH}, 11
    s_xor_b32 s{sT1}, s{sT0}, 2048
    s_add_u32 s{sHst+2}, s{sHst}, s{sT1}
    s_add_u32 s{sHst}, s{sHst}, s{sT0}
    s_add_u32 s{sHst+1}, s{sHst}, {112*1024}
    s_add_u32 s{sHst+3}, s{sHst+2}, {112*1024}
    s_lshl_b32 s{sStatW}, s{sX}, 5
    s_add_u32 s{sStatW}, s{sStatW}, s{sJ}
    s_lshl_b32 s{sStatW}, s{sStatW}, 7
    s_lshl_b32 s{sT0}, s{sW}, 4
    s_add_u32 s{sStatW}, s{sStatW}, s{sT0}
    s_add_u32 s{sStatW}, s{sStatW}, {STATS}
    """)
    a, b, c, d, e, f = 240, 241, 242, 243, 244, 245
    a, b, c, d, e, f = 244, 245, 246, 247, 248, 249
    S(f"""
    v_mov_b32 v{a}, {OOB}
    v_cmp_eq_u32 vcc, 0, v{vL}
    v_and_b32 v{b}, 31, v{vL}
    v_lshrrev_b32 v{c}, 5, v{vL}
    v_cndmask_b32 v{vL0}, v{a}, 0, vcc
    v_lshrrev_b32 v{d}, 3, v{b}
    v_and_b32 v{e}, 7, v{vL}
    v_lshlrev_b32 v{e}, 3, v{e}
    v_lshl_add_u32 v{vSTV}, v{d}, 7, v{e}
    """)
    S(f"""
    v_lshrrev_b32 v{d}, 1, v{b}
    v_and_b32 v{d}, 7, v{d}
    v_xor_b32 v{d}, v{d}, v{c}
    v_lshlrev_b32 v{d}, 4, v{d}
    v_lshl_add_u32 v{d}, v{b}, 7, v{d}
    s_lshl_b32 s{sT0}, s{sTH}, 13
    v_add_u32 v{vQA}, s{sT0}, v{d}
    v_xor_b32 v{vQA+1}, 32, v{vQA}
    v_xor_b32 v{vQA+2}, 64, v{vQA}
    v_xor_b32 v{vQA+3}, 0x60, v{vQA}
    """)
    for k in range(4): S(f"v_add_u32 v{vQA+4+k}, 0x10000, v{vQA+k}")
    S(f"""
    v_bfe_u32 v{d}, v{vL}, 2, 2
    v_and_b32 v{e}, 3, v{vL}
    v_lshlrev_b32 v{e}, 3, v{e}
    v_bfe_u32 v{f}, v{vL}, 4, 1
    v_lshl_add_u32 v{e}, v{f}, 5, v{e}
    s_lshl_b32 s{sT0}, s{sFH}, 1
    s_add_u32 s{sT0}, s{sT0}, s{sTH}
    v_xor_b32 v{f}, s{sT0}, v{d}
    v_lshl_add_u32 v{f}, v{f}, 6, v{e}
    v_lshl_add_u32 v{f}, v{d}, 8, v{f}
    v_lshl_add_u32 v{vWA}, v{c}, 11, v{f}
    v_xor_b32 v{vWA+1}, 64, v{vWA}
    v_add_u32 v{vWA+2}, 0x10000, v{vWA}
    v_add_u32 v{vWA+3}, 0x10000, v{vWA+1}
    v_lshrrev_b32 v{f}, 1, v{d}
    v_xor_b32 v{f}, s{sFH}, v{f}
    v_lshl_add_u32 v{f}, v{f}, 6, v{e}
    v_lshl_add_u32 v{f}, v{d}, 7, v{f}
    v_lshl_add_u32 v{f}, v{c}, 9, v{f}
    v_add_u32 v{vTA}, s{sM0b}, v{f}
    v_xor_b32 v{vTA+1}, 64, v{vTA}
    v_add_u32 v{vTA+2}, 0x10000, v{vTA}
    v_add_u32 v{vTA+3}, 0x10000, v{vTA+1}
    v_lshl_add_u32 v{f}, v{d}, 6, v{e}
    v_lshl_add_u32 v{f}, v{c}, 8, v{f}
    s_add_u32 s{sT0}, s{sM0b}, {E + 2048}
    v_add_u32 v{vYA}, s{sT0}, v{f}
    v_add_u32 v{vYW}, s{sT0}, v{vL16}
    """)
    n, g = d, e
    S(f"""
    v_and_b32 v{n}, 15, v{vL}
    v_lshrrev_b32 v{g}, 4, v{vL}
    v_and_b32 v{f}, 1, v{g}
    v_cmp_eq_u32 vcc, v{n}, v{f}
    v_mov_b32 v{f}, 0x3f803f80
    v_lshlrev_b32 v{a}, 4, v{g}
    v_cndmask_b32 v{f}, 0, v{f}, vcc
    v_lshl_add_u32 v{a}, v{n}, 6, v{a}
    v_accvgpr_write_b32 a{SEL}, v{f}
    v_accvgpr_write_b32 a{SEL+1}, v{f}
    v_accvgpr_write_b32 a{SEL+2}, v{f}
    v_accvgpr_write_b32 a{SEL+3}, v{f}
    s_lshl_b32 s{sT0}, s{sFH}, 8
    s_lshl_b32 s{sT1}, s{sTH}, 7
    s_add_u32 s{sT0}, s{sT0}, s{sT1}
    s_add_u32 s{sT0}, s{sT0}, {CS}
    v_add_u32 v{a}, s{sT0}, v{a}
    v_add_u32 v{f}, {DUMP}, v{vL16}
    v_cmp_gt_u32 vcc, 2, v{n}
    v_lshlrev_b32 v{b}, 4, v{c}
    v_add_u32 v{vCSA}, s{sT0}, v{b}
    v_cndmask_b32 v{vCSW}, v{f}, v{a}, vcc
    v_xor_b32 v{vCSA+1}, 0x80, v{vCSA}
    """)
    assert CS % 256 == 16 or True
    S(f"""
    v_lshrrev_b32 v{a}, 3, v{vL}
    v_and_b32 v{b}, 7, v{vL}
    v_bfe_u32 v{f}, v{vL}, 4, 1
    v_lshlrev_b32 v{f}, 2, v{f}
    v_xor_b32 v{b}, v{b}, v{f}
    v_lshlrev_b32 v{b}, 4, v{b}
    v_lshl_add_u32 v{vBD}, v{a}, 10, v{b}
    v_add_u32 v{vBD+1}, 7168, v{vBD}
    v_add_u32 v{vBD+2}, 14336, v{vBD}
    v_add_u32 v{vBD+3}, 21504, v{vBD}
    """)
    S(f"""
    v_lshlrev_b32 v{a}, 1, v{n}
    v_lshl_add_u32 v{a}, v{g}, 4, v{a}
    v_and_b32 v{b}, 1, v{n}
    v_cmp_eq_u32 vcc, 0, v{b}
    v_mov_b32 v{f}, {4160 - 2}
    s_mul_i32 s{sT0}, s{sTH}, 8320
    s_lshl_b32 s{sT1}, s{sFH}, 6
    v_cndmask_b32 v{b}, 0, v{f}, vcc
    s_add_u32 s{sT0}, s{sT0}, s{sT1}
    s_add_u32 s{sT0}, s{sT0}, {HC + 32 - 30}
    v_add3_u32 v{vCA}, v{a}, v{b}, s{sT0}
    v_add_u32 v{vCA+1}, 1024, v{vCA}
    v_add_u32 v{vCA+2}, 2048, v{vCA}
    v_add_u32 v{vCA+3}, 3072, v{vCA}
    s_mul_i32 s{sT0}, s{sTH}, 4608
    s_add_u32 s{sT0}, s{sT0}, {UR}
    v_lshlrev_b32 v{a}, 5, v{n}
    v_lshlrev_b32 v{b}, 4, v{g}
    v_sub_u32 v{b}, v{b}, v{a}
    s_add_u32 s{sT1}, s{sT1}, s{sT0}
    s_add_u32 s{sT1}, s{sT1}, 480
    v_add_u32 v{vCB}, s{sT1}, v{b}
    v_lshl_add_u32 v{b}, v{g}, 3, v{a}
    s_lshl_b32 s{sT1}, s{sFH}, 11
    s_sub_u32 s{sCnt}, s{sT0}, s{sT1}
    s_add_u32 s{sCnt}, s{sCnt}, {4088 - 1536}
    v_sub_u32 v{vCD}, s{sCnt}, v{b}
    s_add_u32 s{sT1}, s{sT1}, s{sT0}
    v_add_u32 v{vCU}, s{sT1}, v{vL16}
    v_and_b32 v{b}, 0x1f0, v{vL16}
    s_add_u32 s{sT0}, s{sT0}, 4096
    v_add_u32 v{b}, s{sT0}, v{b}
    v_mov_b32 v252, 0
    v_mov_b32 v253, 0
    v_mov_b32 v254, 0
    v_mov_b32 v255, 0
    ds_write_b128 v{b}, v[252:255]
    s_add_u32 s{sT0}, s{sM0b}, {3*32768}
    v_add_u32 v{vCX}, s{sT0}, v{vL16}
    v_xor_b32 v{vCXR}, 0x2000, v{vCX}
    v_and_b32 v{b}, 1, v{g}
    v_lshl_add_u32 v{a}, v{b}, 9, v{a}
    v_lshrrev_b32 v{b}, 1, v{g}
    v_lshl_add_u32 v{vCY}, v{b}, 4, v{a}
    v_lshlrev_b32 v{vPA}, 7, v{n}
    v_min_u32 v{a}, 6, v{vL}
    v_lshlrev_b32 v{vPB}, 7, v{a}
    v_and_b32 v{a}, 31, v{vL}
    v_lshlrev_b32 v{vPC}, 8, v{a}
    """)
    S(f"""
    v_lshrrev_b32 v{b}, 2, v{vL}
    v_and_b32 v{f}, 3, v{vL}
    v_lshlrev_b32 v{f}, 4, v{f}
    v_lshl_add_u32 v{vOS}, v{b}, 10, v{f}
    v_lshl_add_u32 v{vYL}, v{b}, 12, v{f}
    v_lshlrev_b32 v{d}, 4, v{g}
    v_xor_b32 v{vXD}, v{vOS}, v{d}
    v_mul_u32_u24 v{b}, 80, v{b}
    s_add_u32 s{sT0}, s{sM0b}, {E + 4096}
    v_add3_u32 v{vOR}, v{b}, v{f}, s{sT0}
    v_mul_u32_u24 v{b}, 80, v{a}
    v_lshl_add_u32 v{b}, v{c}, 3, v{b}
    v_add_u32 v{vOW}, s{sT0}, v{b}
    v_bfe_u32 v{b}, v{vL}, 2, 2
    v_lshlrev_b32 v{b}, 4, v{b}
    v_lshl_add_u32 v{b}, v{a}, 6, v{b}
    v_lshl_add_u32 v{b}, v{c}, 3, v{b}
    s_add_u32 s{sT0}, s{sM0b}, {E}
    v_add_u32 v{vXA}, s{sT0}, v{b}
    v_add_u32 v{vRW}, s{sM0b}, v{vL16}
    v_xor_b32 v{vRR}, 0x4000, v{vRW}
    v_xor_b32 v{vRR+1}, 0x6000, v{vRW}
    v_xor_b32 v{vRR+2}, 0x2000, v{vRW}
    """)
    return S

def setup_b():
    S = Stream()
    S(f"""
    s_lshl_b32 s{sFBo}, s{sRB1}, 1
    s_add_u32 s{sFBo}, s{sFBo}, s{sTH}
    s_lshl_b32 s{sFBo}, s{sFBo}, 5
    s_lshl_b32 s{sT0}, s{sCB1}, 1
    s_add_u32 s{sT0}, s{sT0}, s{sFH}
    s_add_u32 s{sFBo}, s{sFBo}, s{sT0}
    s_lshl_b32 s{sFBo}, s{sFBo}, 7
    s_add_u32 s{sFBo}, s{sFBo}, {FLB}
    s_lshl_b32 s{sT0}, s{sCB2}, 2
    s_add_u32 s{sT0}, s{sT0}, s{sW}
    s_lshl_b32 s{sKV0}, s{sT0}, 16
    s_lshl_b32 s{sT1}, s{sRB2}, 7
    s_sub_u32 s{sKV0}, s{sKV0}, s{sT1}
    s_add_u32 s{sKV0}, s{sKV0}, {KVR + 1984*2}
    s_add_u32 s{sKV1}, s{sKV0}, 4096
    s_lshl_b32 s{sFAo}, s{sT0}, 5
    s_add_u32 s{sFAo}, s{sFAo}, s{sRB2}
    s_lshl_b32 s{sFAo}, s{sFAo}, 7
    s_add_u32 s{sFAo}, s{sFAo}, {FLA}
    s_lshr_b32 s{sFAp}, s{sCH}, 4
    s_lshl_b32 s{sFAp}, s{sFAp}, 12
    s_lshl_b32 s{sT0}, s{sFH}, 11
    s_sub_u32 s{sFAp}, s{sFAp}, s{sT0}
    s_add_u32 s{sFAp}, s{sFAp}, {FLA + 2048}
    s_lshl_b32 s{sHC}, s{sCH}, 12
    s_add_u32 s{sU}, s{sHC}, s{sT0}
    s_add_u32 s{sYs}, s{sU}, {YT}
    s_add_u32 s{sU}, s{sU}, {KVR}
    s_lshl_b32 s{sT0}, s{sFH}, 1
    s_add_u32 s{sHC}, s{sHC}, s{sT0}
    """)
    return S
def setup_c():
    S = Stream()
    S(f"""
    s_lshl_b32 s{sFBp}, s{sRB2}, 5
    s_mul_i32 s42, s{sW}, 7
    s_add_u32 s{sFBp}, s{sFBp}, s42
    s_lshl_b32 s{sFBp}, s{sFBp}, 7
    s_add_u32 s{sFBp}, s{sFBp}, {FLB}
    s_lshl_b32 s{sFCo}, s{sCH}, 1
    s_add_u32 s{sFCo}, s{sFCo}, s{sFH}
    s_lshl_b32 s{sFCo}, s{sFCo}, 7
    s_add_u32 s{sFCo}, s{sFCo}, {FLC}
    s_lshl_b32 s42, s{sCB2}, 1
    s_add_u32 s42, s42, s{sFH}
    s_lshl_b32 s{sFCp}, s42, 13
    s_lshr_b32 s43, s{sRB2}, 4
    s_lshl_b32 s43, s43, 7
    s_add_u32 s{sFCp}, s{sFCp}, s43
    s_add_u32 s{sFCp}, s{sFCp}, {FLC}
    s_lshl_b32 s{sYl}, s42, 17
    s_lshl_b32 s{sXO}, s42, 6
    s_lshl_b32 s42, s{sRB2}, 1
    s_add_u32 s42, s42, s{sTH}
    s_lshl_b32 s43, s42, 6
    s_add_u32 s{sYl}, s{sYl}, s43
    s_add_u32 s{sYl}, s{sYl}, {YT}
    s_lshl_b32 s43, s42, 15
    s_add_u32 s{sXO}, s{sXO}, s43
    s_lshl_b32 s{sStatF}, s42, 9
    s_add_u32 s{sStatF}, s{sStatF}, {STATS}
    s_mul_i32 s{sHLo}, s42, {112*1024}
    s_xor_b32 s42, s42, 1
    s_mul_i32 s{sHL}, s42, {112*1024}
    s_mul_i32 s42, s{sW}, {28*1024}
    s_lshl_b32 s43, s{sRot}, 12
    s_add_u32 s42, s42, s43
    s_add_u32 s{sHL}, s{sHL}, s42
    s_add_u32 s{sHLo}, s{sHLo}, s42
    """)
    return S

def hoffs2():
    S = Stream([Pseudo('GATE', 'c5m')]); S.extend(hoffs()); return Stream(S[1:])
def hoffs():
    S = Stream()
    g = Stream(); g(f"s_mov_b64 s[{WSO}:{WSO+1}], s[{WS}:{WS+1}]"); S.atomic(g)
    S(f"s_sub_u32 s{sHLo}, s{sHLo}, s{sHL}")
    for g in range(7):
        if g == 0: S(f"s_mov_b32 s64, s{sHL}")
        else:
            t = Stream(); t(f"s_cmp_eq_u32 s{sRot}, {7-g}\ns_cselect_b32 s78, {7*4096}, 0\ns_add_u32 s{64+g}, s{63+g}, 4096\ns_sub_u32 s{64+g}, s{64+g}, s78"); S.atomic(t)
        S(f"s_add_u32 s{71+g}, s{64+g}, s{sHLo}")
    return S

def nonce_get():
    S = Stream()
    S(f"s_load_dword s{sN}, s[{DBG}:{DBG+1}], 0")
    return S
def nonce_use(N='N'):
    S = Stream(); g = Stream()
    g(f"s_waitcnt lgkmcnt(0)\ns_cmp_eq_u32 s{sN}, 0\ns_cbranch_scc1 L_rare{N}\nL_back{N}:\nv_mov_b32 v{vN}, s{sN}")
    S.atomic(g)
    rare(f"""
    L_rare{N}:
    s_mov_b32 s{sCnt}, 0
    {"v_writelane_b32 v62, 1, 51" if OPT['prof'] else ""}
    L_rl{N}:
    s_sleep 2
    buffer_load_dword v{vN}, off, {srd(DBG)}, 0 sc1
    s_waitcnt vmcnt(0)
    v_readfirstlane_b32 s{sN}, v{vN}
    s_cmp_lg_u32 s{sN}, 0
    s_cbranch_scc1 L_back{N}
    s_add_u32 s{sCnt}, s{sCnt}, 1
    s_cmp_lt_u32 s{sCnt}, 0x4000
    s_cbranch_scc1 L_rl{N}
    s_branch L_back{N}
    """)
    return S

def stats():
    S = Stream(); X = 176; A = 192; B = 193; C = 194
    for i in range(8):
        S(f"v_lshlrev_b32 v{X+2*i}, 16, v{vROW+i}\nv_and_b32 v{X+2*i+1}, 0xffff0000, v{vROW+i}")
    def allred(r):
        for m in ("quad_perm:[1,0,3,2]", "quad_perm:[2,3,0,1]", "row_half_mirror", "row_mirror"):
            S(f"v_add_f32_dpp v{r}, v{r}, v{r} {m} row_mask:0xf bank_mask:0xf")
        S(f"v_mov_b32 v{C}, v{r}\nv_permlane16_swap_b32 v{r}, v{C}\nv_add_f32 v{r}, v{r}, v{C}")
    S(f"v_add_f32 v{A}, v{X}, v{X+1}\nv_add_f32 v{B}, v{X+2}, v{X+3}")
    for i in range(4, 16, 2): S(f"v_add_f32 v{A}, v{A}, v{X+i}\nv_add_f32 v{B}, v{B}, v{X+i+1}")
    S(f"v_add_f32 v{A}, v{A}, v{B}")
    allred(A)
    S(f"v_mul_f32 v{A}, {f2u(1/512):#x}, v{A}")
    for i in range(16): S(f"v_sub_f32 v{X+i}, v{X+i}, v{A}")
    S(f"v_mul_f32 v{B}, v{X}, v{X}\nv_mul_f32 v{C+1}, v{X+1}, v{X+1}")
    for i in range(2, 16, 2): S(f"v_fmac_f32 v{B}, v{X+i}, v{X+i}\nv_fmac_f32 v{C+1}, v{X+i+1}, v{X+i+1}")
    S(f"v_add_f32 v{B}, v{B}, v{C+1}")
    allred(B)
    S(f"""
    v_mul_f32 v{B}, {f2u(1/512):#x}, v{B}
    v_cvt_pk_bf16_f32 v{B}, v{B}, v{B}
    v_lshlrev_b32 v{B}, 16, v{B}
    v_add_f32 v{B}, {f2u(1e-5):#x}, v{B}
    v_cvt_pk_bf16_f32 v{B}, v{B}, v{B}
    v_lshlrev_b32 v{B}, 16, v{B}
    v_sqrt_f32 v{B}, v{B}
    v_and_b32 v{C}, 31, v{vL}
    v_cvt_pk_bf16_f32 v196, v{A}, v{B}
    v_lshrrev_b32 v{A}, 2, v{vL}
    v_mov_b32 v{B}, {OOB}
    """)
    g = Stream(); g(f"v_cmp_eq_u32 vcc, 0, v{C}\nv_cndmask_b32 v198, v{B}, v{A}, vcc"); S.atomic(g)
    return S
def stats_store():
    S = Stream()
    S(f"v_mov_b32 v197, v{vN}\nbuffer_store_dwordx2 v[196:197], v198, {srd(WS)}, s{sStatW} offen sc1")
    return S

def flag_store(soff, srdb, tag):
    S = Stream(); S.waitvm(tag)
    S(f"buffer_store_dword v{vN}, v{vL0}, {srd(srdb)}, s{soff} offen sc1")
    return S

def kvpre():
    S = Stream()
    KR = 232; VR = 244; KL = 176; WF = 188; OA = 200; OB = 220
    a1, a2, a3 = 252, 253, 254
    S(f"""
    v_and_b32 v{a1}, 7, v{vL}
    v_mul_u32_u24 v{a2}, 1040, v{a1}
    v_lshrrev_b32 v{a3}, 3, v{vL}
    v_lshl_add_u32 v{a2}, v{a3}, 2, v{a2}
    s_lshl_b32 s{sT0}, s{sW}, 5
    s_add_u32 s{sT0}, s{sT0}, {KT}
    v_add_u32 v{a2}, s{sT0}, v{a2}
    v_add_u32 v255, 1040, v{a2}
    ds_read2_b32 v[{KR}:{KR+1}], v{a2} offset0:160 offset1:192
    ds_read_b32 v{KR+2}, v{a2} offset:896
    """)
    for p in range(4): S(f"ds_read2_b32 v[{KR+4+2*p}:{KR+5+2*p}], v255 offset0:{64*p} offset1:{64*p+32}")
    S(f"v_add_u32 v{a2}, {VT-KT}, v{a2}")
    for p in range(4): S(f"ds_read2_b32 v[{VR+2*p}:{VR+1+2*p}], v{a2} offset0:{64*p} offset1:{64*p+32}")
    S(f"v_xor_b32 v{a1}, 7, v{a1}\nv_lshlrev_b32 v{a1}, 4, v{a1}\nv_lshl_add_u32 v{a1}, v{a3}, 13, v{a1}")
    for i in range(4):
        S(f"v_lshlrev_b32 v{WF+2*i}, 16, v{vSHK+i}\nv_and_b32 v{WF+2*i+1}, 0xffff0000, v{vSHK+i}")
    ri = lambda r: r + 3 if r < 0 else r + 4
    for r in range(-3, 8):
        S(f"v_lshlrev_b32 v{KL+ri(r)}, 16, v{KR+ri(r)}\nv_and_b32 v{KR+ri(r)}, 0xffff0000, v{KR+ri(r)}")
    for ch, (K, Oo) in enumerate(((KL, OA), (KR, OB))):
        for t in range(8): S(f"v_mul_f32 v{Oo+t}, v{K+ri(t)}, v{WF+4*ch}")
        for jj in range(1, 4):
            for t in range(8): S(f"v_fmac_f32 v{Oo+t}, v{K+ri(t-jj)}, v{WF+4*ch+jj}")
    for t in range(8):
        S(f"v_lshlrev_b32 v{KL+t}, 16, v{VR+t}\nv_and_b32 v{VR+t}, 0xffff0000, v{VR+t}")
    for t in range(8):
        S(f"v_mul_f32 v{OA+t}, v{OA+t}, v{KL+t}\nv_mul_f32 v{OB+t}, v{OB+t}, v{VR+t}")
    for ch, (Oo, Pk) in enumerate(((OA, 232), (OB, 236))):
        for q in range(4): S(f"v_cvt_pk_bf16_f32 v{Pk+q}, v{Oo+7-2*q}, v{Oo+6-2*q}")
        S(f"buffer_store_dwordx4 v[{Pk}:{Pk+3}], v{a1}, {srd(WS)}, s{sKV0+ch} offen sc1", f"kv{ch}")
    return S

def spare1():
    S = Stream()
    S("L_spare1:")
    S.extend(kv_dma())
    S(f"""
    s_lshl_b32 s40, s{sX}, 2
    s_and_b32 s41, s{sJ}, 3
    s_add_u32 s40, s40, s41
    s_lshl_b32 s40, s40, 2
    s_add_u32 s40, s40, s{sW}
    s_mul_i32 s41, s40, 14336
    s_lshl_b32 s40, s40, 14
    """)
    if OPT['sweep']:
        for n in range(14):
            S(f"buffer_load_dwordx4 a[{4*n}:{4*n+3}], v{vL16}, {srd(W2)}, s41 offen" + (f" offset:{(n&3)*1024}" if n & 3 else ""))
            if n & 3 == 3: S("s_add_u32 s41, s41, 4096")
    S.extend(nonce_get()); S.extend(setup_b()); S.extend(setup_c()); S.extend(nonce_use('M')); S.extend(stats_store())
    S.waitvm("kvd"); S("s_barrier")
    S.extend(kvpre())
    if OPT['sweep']:
        for n in range(16):
            S(f"buffer_load_dwordx4 a[{4*n}:{4*n+3}], v{vL16}, {srd(SSK)}, s40 offen" + (f" offset:{(n&3)*1024}" if n & 3 else ""))
            if n & 3 == 3: S("s_add_u32 s40, s40, 4096")
    S.extend(flag_store(sFAo, WS, "kv1")); S.extend(flag_init()); S(f"s_mov_b32 s{sDone}, 0x80000000")
    stamp(S, "kvpub")
    S("s_barrier")
    S.extend(SPARE_W2); S.extend(hoffs())
    S(pollA_load()); S.extend(u_loads(True))
    S("s_waitcnt vmcnt(0) lgkmcnt(0)\ns_branch L_join")
    return S

def htouch():
    S = Stream()
    if OPT['htouch']:
        S(f"v_and_b32 v230, 31, v{vL}\nv_lshrrev_b32 v231, 5, v{vL}\nv_mul_u32_u24 v231, {112*1024}, v231\nv_lshl_add_u32 v230, v230, 7, v231\ns_lshl_b32 s87, s{sTH}, 11\ns_sub_u32 s87, s{sHst}, s87")
        S(f"buffer_load_dword a236, v230, {srd(WS)}, s87 offen")
        if OPT['htouch'] > 1: S(f"buffer_load_dword a237, v230, {srd(WS)}, s87 offen offset:64")
    return S

WSF = 48; sDone = 87
def flag_try(soff, tag, last=False, first=False):
    S = Stream(); g = Stream()
    if last:
        g.waitvm(tag); g(f"s_cmp_eq_u32 s{sDone}, 0")
    else:
        g(f"s_getreg_b32 s{WSF+2}, hwreg(HW_REG_IB_STS)\ns_and_b32 s{WSF+2}, s{WSF+2}, 0xc0000f\ns_or_b32 s{WSF+2}, s{WSF+2}, s{sDone}")
        g.append(Pseudo('CMPVM', (tag, WSF+2)))
    g(f"s_cselect_b32 s{WSF+2}, {WS_SIZE}, 0")
    g(f"s_mov_b32 s{sDone}, 0" if last else f"s_cselect_b32 s{sDone}, 0x80000000, s{sDone}")
    g(f"buffer_store_dword v{vN}, v{vL0}, {srd(WSF)}, s{soff} offen sc1")
    S.atomic(g)
    return S
def flag_init():
    S = Stream(); S(f"s_mov_b64 s[{WSF}:{WSF+1}], s[{WS}:{WS+1}]\ns_mov_b32 s{sDone}, 0"); return S

def hcopy_dma():
    S = Stream()
    S(f"v_accvgpr_read_b32 v230, a248\nv_accvgpr_read_b32 v231, a249\ns_lshl_b32 s{sT0}, s{sTH}, 4\nv_lshrrev_b32 v230, s{sT0}, v230\nv_lshlrev_b32 v230, 16, v230\nv_lshlrev_b32 v231, 16, v231\nv_mul_lo_u32 v231, v231, s{sFH}\nv_readfirstlane_b32 s{sDv}, v230")
    S(f"s_mul_i32 s{sT0}, s{sW}, 4160\nv_and_b32 v230, 7, v{vL}")
    dma_n(S, vL16, SSK, sHC, f"s_add_u32 m0, s{sT0}, {HC+32}", "hc", samev=True)
    g = Stream(); g(f"v_cmp_eq_u32 vcc, 7, v230\nv_lshlrev_b32 v230, 2, v230\ns_add_u32 s{sT0}, s{sT0}, {HC}\nv_cndmask_b32 v231, 0, v231, vcc\nv_add_u32 v230, s{sT0}, v230\nds_write_b32 v230, v231")
    S.atomic(g)
    return S

def g1_set(n): return FR + 16 * (n % 3)
def g1_reads(n):
    if n >= 32: return []
    i, ks = divmod(n, 4)
    st = g1_set(n); slot = i & 3; hi = slot >> 1; off = (slot & 1) * 32768
    L = []
    for u in range(2):
        for rd in range(2):
            L.append(f"ds_read_b64_tr_b16 v[{st+4*u+2*rd}:{st+4*u+2*rd+1}], v{vWA+2*hi+u} offset:{off+16384+ks*4096+rd*1024}")
    for tt in range(2):
        L.append(f"ds_read_b128 v[{st+8+4*tt}:{st+11+4*tt}], v{vQA+4*hi+ks} offset:{off+tt*4096}")
    return [L[0], L[1], L[4], L[5], L[2], L[3]]

def stat_loads(att):
    return [f"buffer_load_dwordx2 v[{STL+4*att+2*tt}:{STL+4*att+2*tt+1}], v{vSTV}, {srd(WS)}, s{sStatC} offen offset:{tt*512} sc1" for tt in range(2)]

def gemm1():
    S = Stream(); CAP = OPT['cap']
    S.waitvm("c0"); S("s_barrier")
    stamp(S, "c0")
    for t in g1_reads(0): S(t)
    for t in g1_reads(1): S(t, 'fr1')
    for i in range(8):
        S.mark(f"c{i}a")
        for ks in range(4):
            n0 = 4*i + ks; st = g1_set(n0); first = n0 == 0
            rds = g1_reads(n0 + 2)
            bar = (ks == 1 and i < 7) or n0 == 30
            if n0 == 1: S.mark("c0h")
            if n0 > 0: S.waitlg(f'fr{n0}')
            small = [st] if n0 < 30 else ([st, g1_set(31)] if n0 == 30 else [])
            for n, (u, tt) in enumerate([(0, 0), (0, 1), (1, 0), (1, 1)]):
                acc = ACC + 16 * (2*u + tt)
                c = "0" if first else vr(acc, 16)
                if bar and n == 3:
                    S.mark(f"c{i}m")
                    if i < 7: S.waitvm(f"c{i+1}")
                    if OPT['prof'] in (2, 4): stamp(S, f"w{i}")
                    S.waitlg()
                S(f"v_mfma_f32_32x32x16_bf16 {vr(acc,16)}, v[{st+4*u}:{st+4*u+3}], v[{st+8+4*tt}:{st+11+4*tt}], {c}")
                k = 0
                if bar and n == 3:
                    S("s_barrier"); S.mark(f"c{i}b"); k = 2
                while rds and k < (3 if bar else 2): S(rds.pop(0), f'fr{n0+2}'); k += 1
                if n0 == 30 and n == 2:
                    S(f"ds_write_b128 v{vCSW}, a[{CSACC}:{CSACC+3}]"); k += 1
                S.fill(CAP - k)
                if n == 0:
                    for sm in small:
                        c = "0" if first else ar(CSACC, 4)
                        S(f"v_mfma_f32_16x16x32_bf16 {ar(CSACC,4)}, v[{sm}:{sm+3}], {ar(SEL,4)}, {c}")
                        S.fill(1)
        S.mark(f"c{i}e")
    return S

def cs_reads():
    S = Stream()
    for u in range(2):
        for j in range(4): S(f"ds_read_b128 v[{CSV+16*u+4*j}:{CSV+16*u+4*j+3}], v{vCSA+u} offset:{32*j}")
    return S

def stats_consume():
    S = Stream()
    check_poll(S, stat_loads(1), [STL+5, STL+7])
    for tt in range(2):
        a1 = STL + 4 + 2*tt
        S(f"v_and_b32 v{MR+2*tt+1}, 0xffff0000, v{a1}\nv_rcp_f32 v{MR+2*tt+1}, v{MR+2*tt+1}\nv_lshlrev_b32 v{MR+2*tt}, 16, v{a1}\nv_mul_f32 v{MR+2*tt+1}, {NLOG2E:#x}, v{MR+2*tt+1}")
    return S

def epi1(inserts):
    S = Stream(); n = 0
    for u in range(2):
        for tt in range(2):
            for s in range(2):
                acc = ACC + 16*(2*u+tt) + 8*s; cs = CSV + 16*u + 8*s; W = FR + 16*(n & 1); P = FR + 8 + 16*(n & 1)
                mr = f"v[{MR+2*tt}:{MR+2*tt+1}]"
                for p in range(4): S(f"v_pk_fma_f32 v[{acc+2*p}:{acc+2*p+1}], v[{cs+2*p}:{cs+2*p+1}], {mr}, v[{acc+2*p}:{acc+2*p+1}] op_sel_hi:[1,0,1] neg_lo:[0,1,0] neg_hi:[0,1,0]")
                for p in range(4): S(f"v_pk_mul_f32 v[{W+2*p}:{W+2*p+1}], v[{acc+2*p}:{acc+2*p+1}], {mr} op_sel:[0,1] op_sel_hi:[1,1]")
                for p in range(8): S(f"v_exp_f32_e64 v{W+p}, v{W+p}")
                for p in range(4): S(f"v_pk_add_f32 v[{W+2*p}:{W+2*p+1}], v[{W+2*p}:{W+2*p+1}], 1.0 op_sel_hi:[1,0]")
                for p in range(8): S(f"v_rcp_f32_e64 v{W+p}, v{W+p}")
                for p in range(4): S(f"v_pk_mul_f32 v[{W+2*p}:{W+2*p+1}], v[{acc+2*p}:{acc+2*p+1}], v[{W+2*p}:{W+2*p+1}]")
                for p in range(4): S(f"v_cvt_pk_bf16_f32 v{P+p}, v{W+2*p}, v{W+2*p+1}")
                S(f"buffer_store_dwordx4 v[{P}:{P+3}], v{vL16}, {srd(WS)}, s{sHst+2*u+tt} offen" + (" offset:1024" if s else "") + [" sc1", "", " nt", " sc0"][OPT['x_hplain']], "hst")
                if OPT['prof'] == 3: stamp(S, f"e{n}")
                if n in inserts:
                    S.extend(inserts[n])
                    if OPT['prof'] == 3: stamp(S, f"u{n}")
                n += 1
    return S

CB = 128; CACC = 64; CAF = 96; NA = 6; UST = 220
def pollA_load(): return f"buffer_load_dword v228, v{vPA}, {srd(WS)}, s{sFAp} offen sc1"
sResA = 40; sResC = 41
def u_loads(block=False):
    S = Stream()
    if block: check_poll(S, [pollA_load()], [228]); S(f"s_mov_b32 s{sResA}, 0\ns_mov_b32 s{WSO+2}, {WS_SIZE}")
    elif block is False: note_poll(S, 228, sResA)
    S(f"buffer_load_dwordx4 v[{UST}:{UST+3}], v{vL16}, {srd(WSO)}, s{sU} offen sc1")
    S(f"buffer_load_dwordx4 v[{UST+4}:{UST+7}], v{vL16}, {srd(WSO)}, s{sU} offen offset:1024 sc1")
    return S

DU = 96
def conv():
    S = Stream()
    repair(S, sResA, one(f"s_mov_b32 s{WSF+2}, {WS_SIZE}\ns_mov_b32 s{sDone}, 0x80000000\nbuffer_store_dword v{vN}, v{vL0}, {srd(WSF)}, s{sFBo} offen sc1"), pollA_load(), 228, u_loads(None))
    if OPT['prof'] == 3: stamp(S, "rep")
    S(f"ds_write_b128 v{vCU}, v[{UST}:{UST+3}]\nds_write_b128 v{vCU}, v[{UST+4}:{UST+7}] offset:1024")
    S.waitvm("hc"); S.waitlg(); S("s_barrier")
    stamp(S, "conv0")
    rA = lambda c, a: CB + 64*(c & 1) + 4*a
    rB = lambda c, b: CB + 64*(c & 1) + 32 + 4*b
    def ldA(c, a):
        m = 4*a + c
        return [f"ds_read2_b32 v[{rA(c,a)+2*h}:{rA(c,a)+2*h+1}], v{vCA+(m>>3)} offset0:{32*(m&7)+2*h} offset1:{32*(m&7)+2*h+1}" for h in range(2)]
    ldB = lambda c, b: [f"ds_read_b128 v[{rB(c,b)}:{rB(c,b)+3}], v{vCB} offset:{128*(4*b+c)}"]
    pairs = [(a, b) for a in range(8) for b in range(7, a - 1, -1)]
    def loads(c):
        L = ldA(c, 0)
        for b in range(7, -1, -1): L += ldB(c, b)
        for a in range(1, 8): L += ldA(c, a)
        return L
    q = loads(0)
    for t in q[:6]: S(t)
    q = q[6:]
    S.mark("cva"); seenT = set(); p = 0
    for c in range(4):
        nq = loads(c + 1) if c < 3 else []
        for i, (a, b) in enumerate(pairs):
            T = a + 7 - b; acc = CACC + 4*T
            cc = vr(acc, 4) if T in seenT else "0"; seenT.add(T)
            S(f"v_mfma_f32_16x16x32_bf16 {vr(acc,4)}, v[{rA(c,a)}:{rA(c,a)+3}], v[{rB(c,b)}:{rB(c,b)+3}], {cc}")
            k = 0
            if q:
                for _ in range(2 if len(q) > 14 else 1):
                    if q: S(q.pop(0)); k += 1
            elif nq and (c == 0 or i % 3 != 2) and i >= 1: S(nq.pop(0)); k += 1
            S.fill(2 - k)
            S.mark(f"cv{p}")
            if OPT['prof'] == 3 and p in (35, 71, 107): stamp(S, f"cv{p}")
            p += 1
        for t in nq: S(t)
    S.mark("cve")
    return S

def conv_du():
    S = Stream(); U = 112
    for T in range(4): S(f"ds_read_b64 v[{U+2*T}:{U+2*T+1}], v{vCD} offset:{(3-T)*512}")
    for T in range(4):
        a = DU + 4*T
        S(f"""v_and_b32 v{a}, 0xffff0000, v{U+2*T+1}
        v_lshlrev_b32 v{a+1}, 16, v{U+2*T+1}
        v_and_b32 v{a+2}, 0xffff0000, v{U+2*T}
        v_lshlrev_b32 v{a+3}, 16, v{U+2*T}""")
        for r in range(4): S(f"v_mul_f32 v{a+r}, s{sDv}, v{a+r}")
    return S

def conv_epi(tail):
    S = Stream(); R = 128; Y = 120
    stamp(S, "conv1")
    S(f"s_nop 5\ns_cmp_eq_u32 s{sFH}, 0\ns_cbranch_scc0 L_odd")
    def half(T_, keep, send):
        for T in range(4): T_(f"ds_write_b128 v{vCX}, v[{send+4*T}:{send+4*T+3}] offset:{1024*T}")
        for p in range(8): T_(f"v_pk_add_f32 v[{DU+2*p}:{DU+2*p+1}], v[{DU+2*p}:{DU+2*p+1}], v[{keep+2*p}:{keep+2*p+1}]")
    half(S, CACC, CACC + 16)
    S("L_oddback:")
    O = Stream(); O("L_odd:"); half(O, CACC + 16, CACC); O("s_branch L_oddback"); rare.extend(O)
    S.waitlg(); S("s_barrier")
    for T in range(4): S(f"ds_read_b128 v[{R+4*T}:{R+4*T+3}], v{vCXR} offset:{1024*T}")
    S.extend(tail)
    for pr in range(2):
        for T in (2*pr, 2*pr+1):
            a = DU + 4*T
            S(f"v_pk_add_f32 v[{a}:{a+1}], v[{a}:{a+1}], v[{R+4*T}:{R+4*T+1}]\nv_pk_add_f32 v[{a+2}:{a+3}], v[{a+2}:{a+3}], v[{R+4*T+2}:{R+4*T+3}]")
            y = Y + 4*pr + 2*(T & 1)
            S(f"v_cvt_pk_bf16_f32 v{y}, v{a}, v{a+1}\nv_cvt_pk_bf16_f32 v{y+1}, v{a+2}, v{a+3}")
        y = Y + 4*pr
        S(f"v_permlane16_swap_b32 v{y}, v{y+2}\nv_permlane16_swap_b32 v{y+1}, v{y+3}")
        S(f"buffer_store_dwordx4 v[{y}:{y+3}], v{vCY}, {srd(WS)}, s{sYs} offen" + (" offset:1024" if pr else "") + " sc1", "yst")
    return S

HR = 128; XF = 224; SF = 240; TP = 192
def pollB_load(): return f"buffer_load_dword v4, v{vPB}, {srd(WS)}, s{sFBp} offen sc1"
def pollC_load(): return f"buffer_load_dword v5, v{vPC}, {srd(WS)}, s{sFCp} offen sc1"
def gemm2():
    S = Stream(); D = OPT['hring']
    def hload(n):
        p, k = divmod(n, 28); so = 64 + 7*p + (k >> 2)
        T = Stream()
        T(f"buffer_load_dwordx4 v[{HR+4*(n%D)}:{HR+4*(n%D)+3}], v{vL16}, {srd(WS)}, s{so} offen" + (f" offset:{(k&3)*1024}" if k & 3 else "") + " sc1")
        return T
    check_poll(S, [pollB_load()], [4])
    stamp(S, "hflag")
    for n in range(D): S.extend(hload(n))
    S.extend(flag_store(sFCo, WS, "yst"))
    S.mark("g2s")
    for n in range(56):
        p, k = divmod(n, 28); h = HR + 4*(n % D)
        for u in range(2):
            acc = ACC + 32*(1-p) + 16*u; a = (2*k + u) * 4
            c = "0" if k == 0 else vr(acc, 16)
            S(f"v_mfma_f32_32x32x16_bf16 {vr(acc,16)}, {ar(a,4)}, v[{h}:{h+3}], {c}")
            used = 0
            if u == 1 and n + D < 56:
                T = hload(n + D); S.extend(T); used = len(T)
            S.fill(5 - used)
        S.mark(f"g2_{n}")
        if OPT['prof'] > 1 and n in (0, 13, 27, 34, 41): stamp(S, f"g2_{n}")
    return S

def red_early_w():
    S = Stream()
    for u in range(2):
        for j in range(4): S(f"ds_write_b128 v{vRW}, v[{ACC+32+16*u+4*j}:{ACC+35+16*u+4*j}] offset:{4096*u+1024*j}")
    g = Stream(); g.waitlg(); g("s_barrier"); S.atomic(g)
    return S
def red_early_r():
    S = Stream(); A = ACC + 32; B = ACC + 48
    for j in range(4): S(f"ds_read_b128 v[{A+4*j}:{A+4*j+3}], v{vRR} offset:{1024*j}")
    for j in range(4): S(f"ds_read_b128 v[{B+4*j}:{B+4*j+3}], v{vRR+1} offset:{4096+1024*j}")
    for r in range(16): S(f"v_add_f32 v{A+r}, v{A+r}, v{B+r}")
    return S

FS = TP + 2
def prep_x():
    S = Stream()
    g = Stream()
    g(f"s_add_u32 m0, s{sM0b}, {E}\ns_add_u32 s{sT0}, s{sXO}, 15360\nbuffer_load_dwordx4 v{vXD}, {srd(QF)}, s{sXO} offen lds")
    g(f"buffer_load_dwordx4 v{vXD}, {srd(QF)}, s{sT0} offen offset:1024 lds", "xd")
    S.atomic(g)
    S(f"buffer_load_dwordx2 v[{FS}:{FS+1}], v{vSTV}, {srd(WS)}, s{sStatF} offen sc1")
    return S
def prep_x2():
    S = Stream(); XR = TP + 8
    check_poll(S, [f"buffer_load_dwordx2 v[{FS}:{FS+1}], v{vSTV}, {srd(WS)}, s{sStatF} offen sc1"], [FS+1])
    S(f"v_and_b32 v{FS+1}, 0xffff0000, v{FS}\nv_rcp_f32 v{FS+1}, v{FS+1}\nv_lshlrev_b32 v{FS}, 16, v{FS}\nv_mul_f32 v{FS+2}, v{FS+1}, v{FS+1}\nv_mul_f32 v{FS+1}, {NLOG2E:#x}, v{FS+1}")
    S.waitvm("xd")
    for j in range(4):
        if j: S(f"v_xor_b32 v{FS+3}, {16*j}, v{vXA}")
        S(f"ds_read_b64 v[{XR+2*j}:{XR+2*j+1}], v{FS+3 if j else vXA}")
    for q in range(8):
        S(f"v_lshlrev_b32 v{XF+2*q}, 16, v{XR+q}\nv_and_b32 v{XF+2*q+1}, 0xffff0000, v{XR+q}")
    for r in range(16): S(f"v_sub_f32 v{SF+r}, v{XF+r}, v{FS}")
    for r in range(16): S(f"v_mul_f32 v{SF+r}, v{SF+r}, v{FS+2}")
    return S
S2 = ACC + 48
def prep_y(note=True):
    S = Stream(); YS = TP + 8
    if note: note_poll(S, 5, sResC)
    S(f"s_add_u32 s{sT0}, s{sYl}, 65536")
    S(f"buffer_load_dwordx4 v[{YS}:{YS+3}], v{vYL}, {srd(WSO)}, s{sYl} offen sc1\nbuffer_load_dwordx4 v[{YS+4}:{YS+7}], v{vYL}, {srd(WSO)}, s{sT0} offen sc1")
    return S
def prep_y2():
    S = Stream(); YS = TP + 8; YR = TP + 16; t = TP + 24
    S(f"ds_write_b128 v{vYW}, v[{YS}:{YS+3}]\nds_write_b128 v{vYW}, v[{YS+4}:{YS+7}] offset:1024")
    for j in range(4): S(f"ds_read_b64_tr_b16 v[{YR+2*j}:{YR+2*j+1}], v{vYA} offset:{512*j}")
    for q in range(8):
        S(f"v_lshlrev_b32 v{t+(q&1)*2}, 16, v{YR+q}\nv_and_b32 v{t+(q&1)*2+1}, 0xffff0000, v{YR+q}")
        S(f"v_mul_f32 v{S2+2*q}, v{SF+2*q}, v{t+(q&1)*2}\nv_mul_f32 v{S2+2*q+1}, v{SF+2*q+1}, v{t+(q&1)*2+1}")
    return S

def final():
    S = Stream(); A = ACC; F = ACC + 16; Ee = ACC + 32; W = HR; P = HR + 16
    stamp(S, "g2end")
    for j in range(4): S(f"ds_write_b128 v{vRW}, v[{F+4*j}:{F+4*j+3}] offset:{32768+1024*j}")
    for p in range(8): S(f"v_pk_add_f32 v[{A+2*p}:{A+2*p+1}], v[{A+2*p}:{A+2*p+1}], v[{Ee+2*p}:{Ee+2*p+1}]")
    if OPT['ylate']: S.extend(prep_y2())
    S.waitlg(); S("s_barrier")
    repair(S, sResC, Stream(), pollC_load(), 5, cat(prep_y(False), prep_y2()))
    for j in range(4): S(f"ds_read_b128 v[{Ee+4*j}:{Ee+4*j+3}], v{vRR+2} offset:{32768+1024*j}")
    mr = f"v[{FS}:{FS+1}]"
    for h in range(2):
        ps = range(4*h, 4*h+4)
        for p in ps: S(f"v_pk_add_f32 v[{A+2*p}:{A+2*p+1}], v[{A+2*p}:{A+2*p+1}], v[{Ee+2*p}:{Ee+2*p+1}]")
        for p in ps: S(f"v_pk_mul_f32 v[{W+2*p}:{W+2*p+1}], v[{A+2*p}:{A+2*p+1}], {mr} op_sel:[0,1] op_sel_hi:[1,1]")
        for p in ps: S(f"v_exp_f32_e64 v{W+2*p}, v{W+2*p}\nv_exp_f32_e64 v{W+2*p+1}, v{W+2*p+1}")
        for p in ps: S(f"v_pk_add_f32 v[{W+2*p}:{W+2*p+1}], v[{W+2*p}:{W+2*p+1}], 1.0 op_sel_hi:[1,0]")
        for p in ps: S(f"v_rcp_f32_e64 v{W+2*p}, v{W+2*p}\nv_rcp_f32_e64 v{W+2*p+1}, v{W+2*p+1}")
        for p in ps: S(f"v_pk_mul_f32 v[{A+2*p}:{A+2*p+1}], v[{A+2*p}:{A+2*p+1}], v[{S2+2*p}:{S2+2*p+1}]")
        for p in ps: S(f"v_pk_fma_f32 v[{W+2*p}:{W+2*p+1}], v[{A+2*p}:{A+2*p+1}], v[{W+2*p}:{W+2*p+1}], v[{XF+2*p}:{XF+2*p+1}]")
        for p in ps: S(f"v_cvt_pk_bf16_f32 v{P+p}, v{W+2*p}, v{W+2*p+1}")
        for j in (2*h, 2*h+1): S(f"ds_write_b64 v{vOW}, v[{P+2*j}:{P+2*j+1}] offset:{16*j}")
    S(f"s_add_u32 s{sT0}, s{sXO}, 16384")
    S(f"ds_read_b128 v[{W}:{W+3}], v{vOR}\nds_read_b128 v[{W+4}:{W+7}], v{vOR} offset:1280")
    S(f"buffer_store_dwordx4 v[{W}:{W+3}], v{vOS}, {srd(OUT)}, s{sXO} offen\nbuffer_store_dwordx4 v[{W+4}:{W+7}], v{vOS}, {srd(OUT)}, s{sT0} offen")
    if OPT['prof']:
        stamp(S, "outst"); S("s_waitcnt vmcnt(0)"); stamp(S, "end")
        S(f"s_lshl_b32 s{sT0}, s2, 2\ns_add_u32 s{sT0}, s{sT0}, s{sW}\ns_lshl_b32 s{sT0}, s{sT0}, 8\ns_add_u32 s{sT0}, s{sT0}, {PROF}\nv_lshlrev_b32 v{vT}, 2, v{vL}")
        S(f"buffer_store_dword v{vPROF}, v{vT}, {srd(WS)}, s{sT0} offen")
    return S

def stS(name):
    s = Stream(); stamp(s, name); return s
def cat(*ss):
    o = Stream()
    for s in ss: o.extend(s)
    return o
def one(t, tag=None):
    s = Stream(); s(t, tag); return s

def spread(S, items, every):
    o = Stream(); items = list(items); n = 0
    for x in S:
        o.append(x); n += 1
        if items and n % every == 0:
            while items and items[0].cls == 'pseudo' and items[0].op != 'GROUP': o.append(items.pop(0))
            if items: o.append(items.pop(0))
    o.extend(items)
    return o

def build():
    P = Stream()
    P.extend(entry())
    c1 = chunk_dma(1)
    P.extend(spread(cat(*[coff(i) for i in range(2, 8)], codepf(), setup(), kv_pro()), c1[:OPT['c1n']], 20))
    stamp(P, "setup")
    st = stats()
    c2 = chunk_dma(2)
    P.extend(st[:16]); P.extend(spread(Stream(st[16:]), cat(c1[OPT['c1n']:], c2[:OPT['c2n']]), 7))
    P(f"s_cmp_ge_u32 s{sCB1}, 14\ns_cbranch_scc1 L_spare1")
    kp = OPT['kvpos']; g1f = []
    pre = cat(one(pollA_load().replace("v228,", "a233,")), one(pollB_load().replace("v4,", "a234,")), one(pollC_load().replace("v5,", "a235,"))) if OPT['pretouch'] else Stream()
    if OPT['c2n'] < 8: g1f.append(("c0a", "c0m", Stream(c2[OPT['c2n']:]), (OPT['p0'],)))
    g1f.append(("c0b", "c1m", cat(kv_dma(), chunk_dma(3)) if kp == 2 else chunk_dma(3), (OPT['p1'],)))
    g1f.append(("c1b", "c2m", cat(kv_dma(), chunk_dma(4)) if kp == 3 else chunk_dma(4), (OPT['p2'],)))
    D = Stream()
    for c in range(5, 8):
        D.gate(f"c{c-4}b"); D.extend(chunk_dma(c))
    D.gate("c4b"); D.extend(cat(*[one(t) for t in stat_loads(1)], pre, htouch())); D.pace(OPT['w2pace'])
    W2S = cat(hcopy_dma(), w2_dma(0), Stream([Pseudo('GATE', 'c5b')]), w2_dma(1), Stream([Pseudo('GATE', 'c6b')]), w2_dma(2), w2_dma(3))
    isld = lambda it: it.cls == 'pseudo' and it.op == 'GROUP' and any(y.cls == 'dma' for y in it.arg)
    idx = [i for i, it in enumerate(W2S) if isld(it)]
    cut1 = idx[OPT['n1']] if OPT['n1'] < len(idx) else len(W2S); cut2 = idx[OPT['n2']] if OPT['n2'] < len(idx) else len(W2S)
    D.extend(W2S[:cut1])
    g1f.append(("c2b", "c7m", D, (2,)))
    na, nb = (("c0a", "c0m"), ("c0b", "c1a")) if OPT['nonce_at'] == 0 else (("c0b", "c1a"), ("c1b", "c2a"))
    g1f.append((*na, nonce_get(), 1))
    g1f.append((*nb, cat(nonce_use(), stats_store()), 1))
    g1f.append(("c2a", "c2m", flag_init(), 1))
    g1f.append((f"c{kp-1}b", f"c{kp}m", setup_b()))
    g1f.append((f"c{kp}b", f"c{OPT['kvend']}m", kvpre()))
    ke = OPT['kvend']
    for (a, b) in [(f"c{c}{x}", f"c{c}{y}") for c in range(ke + 1, 8) for x, y in (("a", "m"), ("b", "e"))][1:-1]:
        g1f.append((a, b, flag_try(sFAo, "kv1"), 1))
    g1f.append((f"c{OPT['kvend']}b", "c7m", cat(setup_c(), hoffs2())))
    g1f.append(("c7a", "c7m", stats_consume()))
    g1f.append(("c7b", "c7e", cat(cs_reads(), one(pollA_load())) if OPT['pat'] < 0 else cs_reads(), 1))
    P.extend(merge(gemm1(), g1f))
    stamp(P, "g1end")
    ins = {OPT['uat']: u_loads()}
    if OPT['pat'] >= 0: ins[OPT['pat']] = one(pollA_load())
    P.extend(flag_try(sFAo, "kv1", True))
    nog = lambda st: Stream([x for x in st if not (x.cls == 'pseudo' and x.op == 'GATE')])
    P.extend(spread(epi1(ins), nog(W2S[cut1:cut2]), OPT['esp']))
    stamp(P, "epi1")
    P("L_join:")
    W = lambda t: Stream([Pseudo('WAITLG', t)])
    G = lambda m: Stream([Pseudo('GATE', m)])
    fb = OPT['flagB_at']; t0, t1, t2, t3 = OPT['t0'], OPT['t1'], OPT['t2'], OPT['t3']
    cf = [(f"cv{x}", f"cv{x+4}", flag_try(sFBo, "hst", x == fb + 60), 1) for x in range(fb, fb + 61, 20)]
    cf += [
          ("cva", "cve", cat(nog(W2S[cut2:]), G(f"cv{OPT['d4']}"), W('tr0'), w2_dma(4), W('tr1'), w2_dma(5), W('tr2'), w2_dma(6), one(pollB_load())), (OPT['cvpace'],)),
          (f"cv{t0}", f"cv{t1}", w2_tr(0)), (f"cv{t1}", f"cv{t2}", w2_tr(1)), (f"cv{t2}", f"cv{t3}", w2_tr(2)),
          (f"cv{t3}", "cv125", w2_tr(3)), ("cv100", "cve", conv_du())]
    P.extend(merge(conv(), cf))
    P.extend(W('tr3'))
    P.extend(conv_epi(prep_x()))
    global SPARE_W2
    SPARE_W2 = nog(W2S[:cut2])
    stamp(P, "conv2")
    D = OPT['ylag']
    gf = [
          ("g2s", "g2_14", cat(w2_tr(4), w2_tr(5), w2_tr(6))),
          ("g2_8", "g2_26", prep_x2()),
          ("g2_28", "g2_33", red_early_w()),
          ("g2_35", "g2_44", red_early_r()),
          (f"g2_{OPT['yat']}", f"g2_{OPT['yat']+1}", one(pollC_load())),
          (f"g2_{OPT['yat']+D}", f"g2_{OPT['yat']+D+2}", prep_y()),
          ]
    if not OPT['ylate']: gf.append((f"g2_{min(OPT['yat']+2*D+1, 51)}", "g2_55", prep_y2()))
    P.extend(merge(gemm2(), gf))
    P.extend(final())
    P("L_end:\ns_endpgm")
    P = flatten(P)
    kv_last = max(i for i, x in enumerate(P) if x.tag == 'kvd')
    sb_first = min(i for i, x in enumerate(P) if x.cls == 'salu' and f"s{sFBo}" in x.wr and 'mov' not in x.op)
    assert kv_last < sb_first, "k/v SRDs overwritten before use"
    last = None
    for x in P:
        if x.cls == 'salu' and 'm0' in x.wr: last = x.text
        if x.cls == 'dma' and x.arg is not None: assert x.arg == last, ("m0 changed under a DMA group", x.text, last)
        if x.cls == 'label' and x.text.startswith('L_join'): last = None
    c7_last = max(i for i, x in enumerate(P) if x.tag == 'c7')
    ho_first = min(i for i, x in enumerate(P) if x.text.startswith(f"s_mov_b64 s[{WSO}:{WSO+1}], s[{WS}"))
    assert c7_last < ho_first, "GEMM1 SRDs / offsets overwritten before the last chunk load"
    P = autowait(P); P = hazards(P)
    pre_ag = Stream(); pre_ag("global_load_dword a248, v0, s[0:1]\nglobal_load_dword a249, v0, s[0:1]")
    SP = hazards(autowait(cat(pre_ag, flatten(spare1()))))
    P.extend(SP[2:])
    R = hazards(flatten(rare))
    P.extend(R); P("L_codeend:")
    P = align8(P)
    return P

HEAD = open("cdna_kernels/" + NAME + ".s.ref").read().split("; Override launch")[0]
def emit():
    P = build()
    size = sum(x.size for x in P)
    o = HEAD + f"; @launch grid=(256,1,1) block=(256,1,1) lds={LDS_BYTES}\n"
    o += f'.amdgcn_target "amdgcn-amd-amdhsa--gfx950"\n.text\n.globl {NAME}_kernel\n.p2align 8\n.type {NAME}_kernel,@function\n{NAME}_kernel:\n'
    o += "\n".join(l for l in text(P).split("\n") if not l.strip().startswith("; MARK"))
    o += f""".section .rodata,"a"
.p2align 6
.amdhsa_kernel {NAME}_kernel
  .amdhsa_next_free_vgpr 512
  .amdhsa_next_free_sgpr 102
  .amdhsa_accum_offset 256
  .amdhsa_group_segment_fixed_size 0
  .amdhsa_kernarg_size 96
  .amdhsa_user_sgpr_count 2
  .amdhsa_user_sgpr_kernarg_segment_ptr 1
  .amdhsa_system_sgpr_workgroup_id_x 1
.end_amdhsa_kernel
"""
    return o, size

if __name__ == "__main__":
    o, size = emit()
    open(sys.argv[1], "w").write(o)
    print("code bytes (estimate):", size, "stamps:", stamp_names)
    open(sys.argv[1] + ".stamps", "w").write(",".join(stamp_names))
```

```python
import sys, struct
from ir import *

NAME = "recurrent_scan__ssm_conv_h3__dense_activation_silu__prompt"
OPT = dict(dbgout=0, rotk=0, rotx=0, htouch=0, x_w2null=0, x_hcnull=0, x_hplain=0, n1=16, n2=28, d4=66, fa=6, pat=-1, cvpace=3, t0=14, t1=36, t2=56, t3=76, pretouch=0, c2n=4, p0=2, p1=2, p2=2, b1n=5, b2n=5, esp=8, yat=36, ylag=9, ylate=1, map47=0, tlb=0, nonce_at=0, slowat=4, nt=1, c1n=2, kvpos=2, w2pace=3, sweep=1, uat=2, x_nokv=0, x_nocs=0, x_nodma=0, x_nobar=0, x_now2=0, onewait=1, kvend=4, cap=5, spare=1, prof=0, stats_fill=0, hring=16, flagB_at=30, codepf=1)
for a in sys.argv[2:]:
    k, v = a.split('='); OPT[k] = int(v)

HWS = 0; KVR = 0x700000; YT = 0x900000; STATS = 0xB00000; FLA = 0xB10000; FLB = 0xB30000; FLC = 0xB50000
PROF = 0xB80000; WS_SIZE = 0xC00000
E = 131072; KT = E; VT = E + 9360; HC = E; UR = E + 17680; CS = E + 26896; DUMP = CS + 512
LDS_BYTES = 163840
OOB = 0x80000000
f2u = lambda f: struct.unpack('<I', struct.pack('<f', f))[0]
NLOG2E = f2u(-1.4426950408889634)

sX, sJ, sW, sT0, sT1 = 3, 4, 5, 6, 7
Q1, QF, SKK, SVV, W1, W2, SSK, WS, WSH, OUT, DBG, SHK, KZ = 8, 12, 16, 20, 24, 28, 32, 36, 40, 44, 48, 52, 60
sDptr = 56; sN = 58; sDv = 59
WSB = 8
sQoff = 64; sWoff = 72
sM0b = 80; sW2off = 81; sStatC = 82; sRot = 83; sStatW = 84; sFH = 85; sTH = 86; sH0 = 87
CODE = 88; sHst = 88
sM0q = 92; sM0w = 93; sP = 94; sCnt = 96; sC0 = sT0
sRB1, sCB1, sRB2, sCB2, sCH = 97, 98, 99, 100, 101
sKV0, sKV1, sFAo, sFAp, sU, sFBo, sFBp, sYs = 16, 17, 18, 19, 20, 21, 22, 23
sFCo, sFCp, sHL, sYl = 52, 53, 54, 55
sXO, sStatF, sHC, sHLo = 60, 61, 62, 63
def srd(b): return f"s[{b}:{b+3}]"

vL = 1; vL16 = 2; vL0 = 3
vQD = 4; vWD = 8; vBD = 12
vQA = 16; vWA = 24
vN = 28; vSTV = 29; vCSW = 30; vCSA = 31
vTA = 33; vCA = 37
vCB = 41; vCU = 42; vCD = 43; vCX = 44; vCXR = 45; vCY = 46
vPA = 47; vPB = 48; vPC = 49
vXD = 50; vYL = 51; vOS = 52
vXA = 53; vYW = 54; vYA = 55; vOW = 56; vOR = 57; vRW = 58; vRR = 59
vPROF = 62; vT = 63
vDV = 215; vH0 = 214
ACC = 64; FR = 128
CSACC = 244; SEL = 240; CSV = 176
STL = 208; MR = 216
def vr(b, n=1): return f"v{b}" if n == 1 else f"v[{b}:{b+n-1}]"
def ar(b, n): return f"a[{b}:{b+n-1}]"

rare = Stream(); nrare = [0]
def check_poll(S, reloads, tagregs):
    k = nrare[0]; nrare[0] += 1
    def cmp(T):
        if len(tagregs) == 1:
            T(f"v_cmp_ne_u32 vcc, s{sN}, v{tagregs[0]}")
        else:
            T(f"v_xor_b32 v{vT}, s{sN}, v{tagregs[0]}")
            for r in tagregs[1:]:
                T(f"v_xor_b32 v{r}, s{sN}, v{r}\nv_or_b32 v{vT}, v{vT}, v{r}")
            T(f"v_cmp_ne_u32 vcc, 0, v{vT}")
    g = Stream(); cmp(g); g(f"s_cbranch_vccnz L_rare{k}\nL_back{k}:")
    S.atomic(g)
    rare(f"L_rare{k}:\ns_mov_b32 s{sCnt}, 0")
    if OPT['prof']: rare(f"v_writelane_b32 v{vPROF}, 1, {52+k}")
    rare(f"L_rl{k}:\ns_sleep 1")
    for t in reloads: rare(t)
    rare("s_waitcnt vmcnt(0)")
    cmp(rare)
    rare(f"s_nop 1\ns_cbranch_vccz L_back{k}\ns_add_u32 s{sCnt}, s{sCnt}, 1\ns_cmp_lt_u32 s{sCnt}, 0x4000\ns_cbranch_scc1 L_rl{k}\ns_branch L_back{k}")

WSO = 24
def note_poll(S, tagreg, sres):
    g = Stream(); g(f"v_cmp_ne_u32 vcc, s{sN}, v{tagreg}\ns_or_b32 s{sres}, vcc_lo, vcc_hi\ns_cselect_b32 s{WSO+2}, 0, {WS_SIZE}"); S.atomic(g)
def repair(S, sres, first, reload, tagreg, redo):
    k = nrare[0]; nrare[0] += 1
    g = Stream(); g(f"s_cmp_lg_u32 s{sres}, 0\ns_cbranch_scc1 L_rare{k}\nL_back{k}:"); S.atomic(g)
    R = Stream()
    R(f"L_rare{k}:\ns_mov_b32 s{sCnt}, 0\ns_waitcnt vmcnt(0) lgkmcnt(0)")
    if OPT['prof']: R(f"v_writelane_b32 v{vPROF}, 1, {52+k}")
    R.extend(first)
    R(f"L_rl{k}:\n{reload}\ns_waitcnt vmcnt(0)\nv_cmp_ne_u32 vcc, s{sN}, v{tagreg}\ns_nop 1\ns_cbranch_vccz L_ok{k}\ns_sleep 1\ns_add_u32 s{sCnt}, s{sCnt}, 1\ns_cmp_lt_u32 s{sCnt}, 0x4000\ns_cbranch_scc1 L_rl{k}\nL_ok{k}:")
    R(f"s_mov_b32 s{WSO+2}, {WS_SIZE}")
    R.extend(autowait(flatten(redo)))
    R(f"s_waitcnt vmcnt(0) lgkmcnt(0)\ns_nop 4\ns_branch L_back{k}")
    rare.extend(R)

stamp_names = []
def stamp(S, name):
    if not OPT['prof']: return
    k = len(stamp_names); stamp_names.append(name)
    g = Stream()
    if OPT['prof'] == 1:
        g(f"s_memrealtime s[{sP}:{sP+1}]\ns_waitcnt lgkmcnt(0)\nv_writelane_b32 v{vPROF}, s{sP}, {k}")
        g(f"s_memtime s[{sP}:{sP+1}]\ns_waitcnt lgkmcnt(0)\nv_writelane_b32 v{vPROF}, s{sP}, {k+32}")
    elif OPT['prof'] == 4:
        g(f"s_memrealtime s[{sP}:{sP+1}]\ns_waitcnt lgkmcnt(0)\nv_writelane_b32 v{vPROF}, s{sP}, {k}")
    else:
        g(f"s_memtime s[{sP}:{sP+1}]\ns_waitcnt lgkmcnt(0)\nv_writelane_b32 v{vPROF}, s{sP}, {k}")
    S.atomic(g)

def dma_n(S, vbase, srdb, soff, m0txt, tag, n=4, samev=False):
    for i in range(n):
        g = Stream()
        if i == 0: g(m0txt)
        g(f"buffer_load_dwordx4 v{vbase + (0 if samev else i)}, {srd(srdb)}, s{soff} offen" + (f" offset:{i*1024}" if i else "") + " lds", tag if i == n-1 else None)
        g[-1].arg = m0txt
        S.atomic(g)

def chunk_dma(i, sq=None, sw=None):
    S = Stream(); slot = i & 3
    dma_n(S, vQD, Q1, sQoff + i if sq is None else sq, f"s_add_u32 m0, s{sM0q}, {slot*32768}", None)
    dma_n(S, vWD, W1, sWoff + i if sw is None else sw, f"s_add_u32 m0, s{sM0w}, {slot*32768}", f"c{i}")
    return S

def w2_half(b, h):
    S = Stream(); slot = b & 3
    dma_n(S, vBD, W2, sW2off, f"s_add_u32 m0, s{sM0b}, {slot*32768 + 4096*h}", f"b{b}" if h else None)
    if h == 0: S(f"s_add_u32 s{sW2off}, s{sW2off}, 32768")
    elif b < 6:
        g = Stream(); g(f"s_cmp_eq_u32 s{sRot}, {6-b}\ns_cselect_b32 s{sCnt}, {7*65536}, 0\ns_add_u32 s{sW2off}, s{sW2off}, 32768\ns_sub_u32 s{sW2off}, s{sW2off}, s{sCnt}"); S.atomic(g)
    return S
def w2_dma(b):
    S = w2_half(b, 0); S.extend(w2_half(b, 1)); return S

def w2_tr(b):
    S = Stream(); slot = b & 3; hi = slot >> 1
    S.waitvm(f"b{b}")
    for k4 in range(4):
        for u in range(2):
            a = ((4*b + k4) * 2 + u) * 4
            for rd in range(2):
                off = (slot & 1) * 32768 + k4 * 2048 + rd * 1024
                S(f"ds_read_b64_tr_b16 {ar(a+2*rd, 2)}, v{vTA+2*hi+u} offset:{off}", f"tr{b}")
    return S

vROW = 220
vSHK = 228
MAP = [f"""
    s_lshr_b32 s{sCB1}, s{sJ}, 1
    s_and_b32 s{sT0}, s{sJ}, 1
    s_lshl_b32 s{sRB1}, s{sX}, 1
    s_add_u32 s{sRB1}, s{sRB1}, s{sT0}
    s_lshl_b32 s{sT0}, s{sT0}, 2
    s_add_u32 s{sT0}, s{sT0}, s{sCB1}
    s_add_u32 s{sT0}, s{sT0}, s{sX}
    s_and_b32 s{sT0}, s{sT0}, 7
""", f"""
    s_and_b32 s{sT0}, s{sJ}, 3
    s_lshr_b32 s{sT1}, s{sX}, 1
    s_lshl_b32 s{sRB1}, s{sT1}, 2
    s_add_u32 s{sRB1}, s{sRB1}, s{sT0}
    s_lshl_b32 s{sT0}, s{sT0}, 1
    s_add_u32 s{sT0}, s{sT0}, s{sT1}
    s_lshr_b32 s{sT1}, s{sJ}, 2
    s_add_u32 s{sT0}, s{sT0}, s{sT1}
    s_and_b32 s{sT0}, s{sT0}, 7
    s_and_b32 s{sCB1}, s{sX}, 1
    s_mul_i32 s{sCB1}, s{sCB1}, 7
    s_add_u32 s{sCB1}, s{sCB1}, s{sT1}
    s_cmp_eq_u32 s{sT1}, 7
    s_cselect_b32 s{sCB1}, 14, s{sCB1}
"""]
def entry():
    class SS(Stream):
        def __call__(self, text, tag=None): return Stream.__call__(self, text.replace(' NT', ' nt' if OPT['nt'] else '').replace('MAPPING', MAP[OPT['map47']]), tag)
    S = SS()
    S(f"""
    s_load_dwordx16 s[64:79], s[0:1], 0
    s_load_dwordx8 s[80:87], s[0:1], 64
    s_memrealtime s[40:41]
    s_cmp_ge_u32 s2, 256
    s_cbranch_scc1 L_end
    v_lshrrev_b32 v{vT}, 6, v0
    v_and_b32 v{vL}, 63, v0
    s_and_b32 s{sX}, s2, 7
    v_readfirstlane_b32 s{sW}, v{vT}
    s_lshr_b32 s{sJ}, s2, 3
    MAPPING
    s_mov_b32 s{QF+2}, 0x200000
    s_mov_b32 s{QF+3}, 0x20000
    s_cmp_lt_u32 s{sCB1}, 14
    s_cselect_b32 s{Q1+2}, 0x200000, 0
    s_cselect_b32 s{W1+2}, 0x1c0000, 0
    s_mov_b32 s{Q1+3}, 0x20000
    s_mov_b32 s{W1+3}, 0x20000
    s_lshl_b32 s88, s{sX}, 5
    s_add_u32 s88, s88, s{sJ}
    s_lshl_b32 s88, s88, 2
    s_add_u32 s88, s88, s{sW}
    s_lshl_b32 s88, s88, 11
    s_lshl_b32 s89, s{sRB1}, 2
    s_add_u32 s89, s89, s{sW}
    s_lshl_b32 s89, s89, 15
    s_mul_i32 s90, s{sW}, {16*3584}
    s_lshl_b32 s{sT1}, s{sCB1}, 8
    s_add_u32 s90, s90, s{sT1}
    s_lshl_b32 s58, s{sT0}, 7
    s_add_u32 s58, s58, s89
    s_mul_i32 s59, s{sT0}, {64*3584}
    s_add_u32 s59, s59, s90
    s_lshl_b32 s{sM0q}, s{sW}, 12
    s_add_u32 s{sM0w}, s{sM0q}, 16384
    s_lshr_b32 s{sT1}, s{sJ}, 3
    s_lshl_b32 s{sRB2}, s{sX}, 2
    s_add_u32 s{sRB2}, s{sRB2}, s{sT1}
    s_and_b32 s{sCB2}, s{sJ}, 7
    s_lshl_b32 s42, s{sW}, 3
    s_or_b32 s42, s42, s2
    """)
    if OPT['prof']: S(f"v_mov_b32 v{vPROF}, 0")
    a, b, c, d = 232, 233, 234, 235
    S(f"""
    v_lshlrev_b32 v{vL16}, 4, v{vL}
    v_lshrrev_b32 v{a}, 5, v{vL}
    v_and_b32 v{b}, 31, v{vL}
    v_lshlrev_b32 v{b}, 4, v{b}
    v_lshl_add_u32 v236, v{a}, 10, v{b}
    v_lshrrev_b32 v{a}, 3, v{vL}
    v_and_b32 v{b}, 7, v{vL}
    v_lshrrev_b32 v{c}, 4, v{vL}
    v_xor_b32 v{d}, v{b}, v{c}
    v_lshlrev_b32 v{d}, 4, v{d}
    v_lshl_add_u32 v{vQD}, v{a}, 10, v{d}
    v_xor_b32 v{d}, 64, v{vQD}
    v_add_u32 v{vQD+1}, 7168, v{d}
    v_add_u32 v{vQD+2}, 14336, v{vQD}
    v_add_u32 v{vQD+3}, 21504, v{d}
    v_and_b32 v{d}, 15, v{vL}
    v_lshlrev_b32 v237, 2, v{c}
    v_xor_b32 v{d}, v{d}, v237
    v_lshlrev_b32 v{d}, 4, v{d}
    v_mul_u32_u24 v237, 3584, v{c}
    v_add_u32 v{vWD}, v237, v{d}
    v_add_u32 v{vWD+1}, {4*3584-1024}, v{vWD}
    v_add_u32 v{vWD+2}, {8*3584-2048}, v{vWD}
    v_add_u32 v{vWD+3}, {12*3584-3072}, v{vWD}
    v_lshlrev_b32 v{b}, 4, v{b}
    v_lshl_add_u32 v237, v{a}, 10, v{b}
    v_lshlrev_b32 v238, 4, v{a}
    """)
    for bb, n in ((W2, 0x1c0000), (SSK, 0x200000), (WS, WS_SIZE), (OUT, 0x200000), (DBG, 256)):
        S(f"s_mov_b32 s{bb+2}, {0 if (bb == W2 and OPT['x_w2null']) or (bb == SSK and OPT['x_hcnull']) else n}")
    for bb in (W2, SSK, WS, OUT, DBG):
        S(f"s_mov_b32 s{bb+3}, 0x20000")
    S.waitlg()
    stamp(S, "karg")
    S(f"""
    s_cmp_gt_u32 s42, 7
    s_cbranch_scc1 L_nonce_done
    s_or_b32 s40, s40, 1
    v_mov_b32 v241, 0
    v_mov_b32 v240, s40
    s_mov_b64 exec, 1
    global_atomic_cmpswap v241, v[240:241], s[84:85] sc1
    s_mov_b64 exec, -1
    L_nonce_done:
    """)
    S[-3].cls = 'other'
    S(f"""
    s_mov_b64 s[{QF}:{QF+1}], s[64:65]
    s_mov_b64 s[{Q1}:{Q1+1}], s[64:65]
    s_mov_b64 s[{W1}:{W1+1}], s[78:79]
    buffer_load_dwordx4 v[{vROW}:{vROW+3}], v236, {srd(QF)}, s88 offen NT
    buffer_load_dwordx4 v[{vROW+4}:{vROW+7}], v236, {srd(QF)}, s88 offen offset:512 NT
    """)
    mv = Stream()
    mv(f"""
    s_mov_b64 s[{SKK}:{SKK+1}], s[66:67]
    s_mov_b64 s[{KZ}:{KZ+1}], s[66:67]
    s_mov_b64 s[{SVV}:{SVV+1}], s[68:69]
    s_mov_b64 s[{SHK}:{SHK+1}], s[70:71]
    s_mov_b64 s[{SSK}:{SSK+1}], s[72:73]
    s_mov_b64 s[{sDptr}:{sDptr+1}], s[74:75]
    s_mov_b64 s[{W2}:{W2+1}], s[80:81]
    s_mov_b64 s[{OUT}:{OUT+1}], s[82:83]
    s_mov_b64 s[{DBG}:{DBG+1}], s[84:85]
    s_mov_b64 s[{WS}:{WS+1}], s[86:87]
    """)
    S.extend(chunk_dma(0, 58, 59)); S.extend(mv)
    if OPT['tlb']:
        S(f"""
        v_min_u32 v240, 5, v{vL}
        v_lshlrev_b32 v240, 21, v240
        v_mov_b32 v241, 0
        buffer_load_dword a240, v240, {srd(WS)}, 0 offen
        global_load_dword a241, v241, s[66:67]
        global_load_dword a242, v241, s[68:69]
        global_load_dword a243, v241, s[80:81]
        global_load_dword a244, v241, s[82:83]
        """.replace("a24", "a23"))
    S.extend(coff(1))
    return S

def coff(i):
    S = Stream()
    S(f"""
    s_add_u32 s{sT1}, s{sC0}, {i}
    s_and_b32 s{sT1}, s{sT1}, 7
    s_lshl_b32 s{sQoff+i}, s{sT1}, 7
    s_add_u32 s{sQoff+i}, s{sQoff+i}, s89
    s_mul_i32 s{sWoff+i}, s{sT1}, {64*3584}
    s_add_u32 s{sWoff+i}, s{sWoff+i}, s90
    """)
    return S
def codepf():
    S = Stream()
    if OPT['codepf']:
        S(f"""
        s_getpc_b64 s[{CODE}:{CODE+1}]
        L_pc:
        s_mov_b32 s{CODE+2}, L_codeend-L_pc
        s_mov_b32 s{CODE+3}, 0x20000
        s_lshl_b32 s{sT1}, s{sJ}, 10
        buffer_load_dwordx4 a[252:255], v{vL16}, {srd(CODE)}, s{sT1} offen
        """)
    return S

def kv_pro():
    S = Stream()
    S(f"""
    s_cmp_lg_u32 s{sRB2}, 0
    s_cselect_b32 s{KZ+2}, 0x200000, 0
    s_mov_b32 s{KZ+3}, 0x20000
    s_mov_b32 s{SKK+2}, 0x200000
    s_mov_b32 s{SKK+3}, 0x20000
    s_mov_b32 s{SVV+2}, 0x200000
    s_mov_b32 s{SVV+3}, 0x20000
    s_mov_b32 s{SHK+2}, 4096
    s_mov_b32 s{SHK+3}, 0x20000
    s_lshl_b32 s40, s{sRB2}, 16
    s_lshl_b32 s41, s{sCB2}, 7
    s_add_u32 s40, s40, s41
    s_lshl_b32 s41, s{sW}, 13
    s_add_u32 s41, s41, s40
    s_add_u32 s42, s41, 32768
    s_sub_u32 s40, s40, 8192
    s_max_i32 s40, s40, 0
    s_mul_i32 s43, s{sW}, 1040
    s_lshl_b32 s87, s{sCB2}, 9
    s_lshl_b32 s{sT1}, s{sW}, 7
    s_add_u32 s87, s87, s{sT1}
    v_cmp_gt_u32 vcc, 40, v{vL}
    v_mov_b32 v239, {OOB}
    v_cndmask_b32 v239, v237, v239, vcc
    """)
    return S
def kv_dma():
    S = Stream(); nt = "nt " if OPT['nt'] else ""
    for m0, v, sr, so in ((f"s_add_u32 m0, s43, {KT+1040}", 237, SKK, 41), (f"s_add_u32 m0, s43, {VT}", 237, SVV, 41),
                          (f"s_add_u32 m0, s43, {KT+5*1040}", 237, SKK, 42), (f"s_add_u32 m0, s43, {VT+4*1040}", 237, SVV, 42),
                          (f"s_mov_b32 m0, {KT}", 239, KZ, 40)):
        g = Stream(); g(f"{m0}\nbuffer_load_dwordx4 v{v}, {srd(sr)}, s{so} offen {nt}lds"); S.atomic(g)
    S(f"buffer_load_dwordx4 v[{vSHK}:{vSHK+3}], v238, {srd(SHK)}, s87 offen", "kvd")
    return S

def setup():
    S = Stream()
    S(f"""
    s_and_b32 s{sFH}, s{sW}, 1
    s_lshr_b32 s{sTH}, s{sW}, 1
    s_lshl_b32 s{sCH}, s2, 1
    s_add_u32 s{sCH}, s{sCH}, s{sTH}
    s_lshl_b32 s{sT0}, s2, 2
    s_lshl_b32 s{sT1}, s{sCH}, 12
    v_mov_b32 v244, s{sT0}
    global_load_dword a248, v244, s[{sDptr}:{sDptr+1}]
    buffer_load_dword a249, off, {srd(SSK)}, s{sT1}
    s_lshl_b32 s{sM0b}, s{sW}, 13
    s_mul_i32 s{sW2off}, s{sW}, {448*1024}
    s_lshl_b32 s{sT0}, s{sCB2}, 7
    s_add_u32 s{sW2off}, s{sW2off}, s{sT0}
    s_lshr_b32 s{sRot}, s{sJ}, 3
    s_mul_i32 s{sRot}, s{sRot}, {OPT['rotk']}
    s_add_u32 s{sRot}, s{sRot}, s{sCB2}
    s_mul_i32 s{sT0}, s{sX}, {OPT['rotx']}
    s_add_u32 s{sRot}, s{sRot}, s{sT0}
    s_mul_i32 s{sT0}, s{sRot}, 37
    s_lshr_b32 s{sT0}, s{sT0}, 8
    s_mul_i32 s{sT0}, s{sT0}, 7
    s_sub_u32 s{sRot}, s{sRot}, s{sT0}
    s_lshl_b32 s{sT0}, s{sRot}, 16
    s_add_u32 s{sW2off}, s{sW2off}, s{sT0}
    s_lshl_b32 s{sStatC}, s{sRB1}, 1
    s_add_u32 s{sStatC}, s{sStatC}, s{sTH}
    s_mul_i32 s{sHst}, s{sStatC}, {2*112*1024}
    s_lshl_b32 s{sStatC}, s{sStatC}, 10
    s_add_u32 s{sStatC}, s{sStatC}, {STATS}
    s_lshl_b32 s{sT0}, s{sCB1}, 1
    s_add_u32 s{sT0}, s{sT0}, s{sFH}
    s_lshl_b32 s{sT0}, s{sT0}, 12
    s_add_u32 s{sHst}, s{sHst}, s{sT0}
    s_lshl_b32 s{sT0}, s{sTH}, 11
    s_xor_b32 s{sT1}, s{sT0}, 2048
    s_add_u32 s{sHst+2}, s{sHst}, s{sT1}
    s_add_u32 s{sHst}, s{sHst}, s{sT0}
    s_add_u32 s{sHst+1}, s{sHst}, {112*1024}
    s_add_u32 s{sHst+3}, s{sHst+2}, {112*1024}
    s_lshl_b32 s{sStatW}, s{sX}, 5
    s_add_u32 s{sStatW}, s{sStatW}, s{sJ}
    s_lshl_b32 s{sStatW}, s{sStatW}, 7
    s_lshl_b32 s{sT0}, s{sW}, 4
    s_add_u32 s{sStatW}, s{sStatW}, s{sT0}
    s_add_u32 s{sStatW}, s{sStatW}, {STATS}
    """)
    a, b, c, d, e, f = 240, 241, 242, 243, 244, 245
    a, b, c, d, e, f = 244, 245, 246, 247, 248, 249
    S(f"""
    v_mov_b32 v{a}, {OOB}
    v_cmp_eq_u32 vcc, 0, v{vL}
    v_and_b32 v{b}, 31, v{vL}
    v_lshrrev_b32 v{c}, 5, v{vL}
    v_cndmask_b32 v{vL0}, v{a}, 0, vcc
    v_lshrrev_b32 v{d}, 3, v{b}
    v_and_b32 v{e}, 7, v{vL}
    v_lshlrev_b32 v{e}, 3, v{e}
    v_lshl_add_u32 v{vSTV}, v{d}, 7, v{e}
    """)
    S(f"""
    v_lshrrev_b32 v{d}, 1, v{b}
    v_and_b32 v{d}, 7, v{d}
    v_xor_b32 v{d}, v{d}, v{c}
    v_lshlrev_b32 v{d}, 4, v{d}
    v_lshl_add_u32 v{d}, v{b}, 7, v{d}
    s_lshl_b32 s{sT0}, s{sTH}, 13
    v_add_u32 v{vQA}, s{sT0}, v{d}
    v_xor_b32 v{vQA+1}, 32, v{vQA}
    v_xor_b32 v{vQA+2}, 64, v{vQA}
    v_xor_b32 v{vQA+3}, 0x60, v{vQA}
    """)
    for k in range(4): S(f"v_add_u32 v{vQA+4+k}, 0x10000, v{vQA+k}")
    S(f"""
    v_bfe_u32 v{d}, v{vL}, 2, 2
    v_and_b32 v{e}, 3, v{vL}
    v_lshlrev_b32 v{e}, 3, v{e}
    v_bfe_u32 v{f}, v{vL}, 4, 1
    v_lshl_add_u32 v{e}, v{f}, 5, v{e}
    s_lshl_b32 s{sT0}, s{sFH}, 1
    s_add_u32 s{sT0}, s{sT0}, s{sTH}
    v_xor_b32 v{f}, s{sT0}, v{d}
    v_lshl_add_u32 v{f}, v{f}, 6, v{e}
    v_lshl_add_u32 v{f}, v{d}, 8, v{f}
    v_lshl_add_u32 v{vWA}, v{c}, 11, v{f}
    v_xor_b32 v{vWA+1}, 64, v{vWA}
    v_add_u32 v{vWA+2}, 0x10000, v{vWA}
    v_add_u32 v{vWA+3}, 0x10000, v{vWA+1}
    v_lshrrev_b32 v{f}, 1, v{d}
    v_xor_b32 v{f}, s{sFH}, v{f}
    v_lshl_add_u32 v{f}, v{f}, 6, v{e}
    v_lshl_add_u32 v{f}, v{d}, 7, v{f}
    v_lshl_add_u32 v{f}, v{c}, 9, v{f}
    v_add_u32 v{vTA}, s{sM0b}, v{f}
    v_xor_b32 v{vTA+1}, 64, v{vTA}
    v_add_u32 v{vTA+2}, 0x10000, v{vTA}
    v_add_u32 v{vTA+3}, 0x10000, v{vTA+1}
    v_lshl_add_u32 v{f}, v{d}, 6, v{e}
    v_lshl_add_u32 v{f}, v{c}, 8, v{f}
    s_add_u32 s{sT0}, s{sM0b}, {E + 2048}
    v_add_u32 v{vYA}, s{sT0}, v{f}
    v_add_u32 v{vYW}, s{sT0}, v{vL16}
    """)
    n, g = d, e
    S(f"""
    v_and_b32 v{n}, 15, v{vL}
    v_lshrrev_b32 v{g}, 4, v{vL}
    v_and_b32 v{f}, 1, v{g}
    v_cmp_eq_u32 vcc, v{n}, v{f}
    v_mov_b32 v{f}, 0x3f803f80
    v_lshlrev_b32 v{a}, 4, v{g}
    v_cndmask_b32 v{f}, 0, v{f}, vcc
    v_lshl_add_u32 v{a}, v{n}, 6, v{a}
    v_accvgpr_write_b32 a{SEL}, v{f}
    v_accvgpr_write_b32 a{SEL+1}, v{f}
    v_accvgpr_write_b32 a{SEL+2}, v{f}
    v_accvgpr_write_b32 a{SEL+3}, v{f}
    s_lshl_b32 s{sT0}, s{sFH}, 8
    s_lshl_b32 s{sT1}, s{sTH}, 7
    s_add_u32 s{sT0}, s{sT0}, s{sT1}
    s_add_u32 s{sT0}, s{sT0}, {CS}
    v_add_u32 v{a}, s{sT0}, v{a}
    v_add_u32 v{f}, {DUMP}, v{vL16}
    v_cmp_gt_u32 vcc, 2, v{n}
    v_lshlrev_b32 v{b}, 4, v{c}
    v_add_u32 v{vCSA}, s{sT0}, v{b}
    v_cndmask_b32 v{vCSW}, v{f}, v{a}, vcc
    v_xor_b32 v{vCSA+1}, 0x80, v{vCSA}
    """)
    assert CS % 256 == 16 or True
    S(f"""
    v_lshrrev_b32 v{a}, 3, v{vL}
    v_and_b32 v{b}, 7, v{vL}
    v_bfe_u32 v{f}, v{vL}, 4, 1
    v_lshlrev_b32 v{f}, 2, v{f}
    v_xor_b32 v{b}, v{b}, v{f}
    v_lshlrev_b32 v{b}, 4, v{b}
    v_lshl_add_u32 v{vBD}, v{a}, 10, v{b}
    v_add_u32 v{vBD+1}, 7168, v{vBD}
    v_add_u32 v{vBD+2}, 14336, v{vBD}
    v_add_u32 v{vBD+3}, 21504, v{vBD}
    """)
    S(f"""
    v_lshlrev_b32 v{a}, 1, v{n}
    v_lshl_add_u32 v{a}, v{g}, 4, v{a}
    v_and_b32 v{b}, 1, v{n}
    v_cmp_eq_u32 vcc, 0, v{b}
    v_mov_b32 v{f}, {4160 - 2}
    s_mul_i32 s{sT0}, s{sTH}, 8320
    s_lshl_b32 s{sT1}, s{sFH}, 6
    v_cndmask_b32 v{b}, 0, v{f}, vcc
    s_add_u32 s{sT0}, s{sT0}, s{sT1}
    s_add_u32 s{sT0}, s{sT0}, {HC + 32 - 30}
    v_add3_u32 v{vCA}, v{a}, v{b}, s{sT0}
    v_add_u32 v{vCA+1}, 1024, v{vCA}
    v_add_u32 v{vCA+2}, 2048, v{vCA}
    v_add_u32 v{vCA+3}, 3072, v{vCA}
    s_mul_i32 s{sT0}, s{sTH}, 4608
    s_add_u32 s{sT0}, s{sT0}, {UR}
    v_lshlrev_b32 v{a}, 5, v{n}
    v_lshlrev_b32 v{b}, 4, v{g}
    v_sub_u32 v{b}, v{b}, v{a}
    s_add_u32 s{sT1}, s{sT1}, s{sT0}
    s_add_u32 s{sT1}, s{sT1}, 480
    v_add_u32 v{vCB}, s{sT1}, v{b}
    v_lshl_add_u32 v{b}, v{g}, 3, v{a}
    s_lshl_b32 s{sT1}, s{sFH}, 11
    s_sub_u32 s{sCnt}, s{sT0}, s{sT1}
    s_add_u32 s{sCnt}, s{sCnt}, {4088 - 1536}
    v_sub_u32 v{vCD}, s{sCnt}, v{b}
    s_add_u32 s{sT1}, s{sT1}, s{sT0}
    v_add_u32 v{vCU}, s{sT1}, v{vL16}
    v_and_b32 v{b}, 0x1f0, v{vL16}
    s_add_u32 s{sT0}, s{sT0}, 4096
    v_add_u32 v{b}, s{sT0}, v{b}
    v_mov_b32 v252, 0
    v_mov_b32 v253, 0
    v_mov_b32 v254, 0
    v_mov_b32 v255, 0
    ds_write_b128 v{b}, v[252:255]
    s_add_u32 s{sT0}, s{sM0b}, {3*32768}
    v_add_u32 v{vCX}, s{sT0}, v{vL16}
    v_xor_b32 v{vCXR}, 0x2000, v{vCX}
    v_and_b32 v{b}, 1, v{g}
    v_lshl_add_u32 v{a}, v{b}, 9, v{a}
    v_lshrrev_b32 v{b}, 1, v{g}
    v_lshl_add_u32 v{vCY}, v{b}, 4, v{a}
    v_lshlrev_b32 v{vPA}, 7, v{n}
    v_min_u32 v{a}, 6, v{vL}
    v_lshlrev_b32 v{vPB}, 7, v{a}
    v_and_b32 v{a}, 31, v{vL}
    v_lshlrev_b32 v{vPC}, 8, v{a}
    """)
    S(f"""
    v_lshrrev_b32 v{b}, 2, v{vL}
    v_and_b32 v{f}, 3, v{vL}
    v_lshlrev_b32 v{f}, 4, v{f}
    v_lshl_add_u32 v{vOS}, v{b}, 10, v{f}
    v_lshl_add_u32 v{vYL}, v{b}, 12, v{f}
    v_lshlrev_b32 v{d}, 4, v{g}
    v_xor_b32 v{vXD}, v{vOS}, v{d}
    v_mul_u32_u24 v{b}, 80, v{b}
    s_add_u32 s{sT0}, s{sM0b}, {E + 4096}
    v_add3_u32 v{vOR}, v{b}, v{f}, s{sT0}
    v_mul_u32_u24 v{b}, 80, v{a}
    v_lshl_add_u32 v{b}, v{c}, 3, v{b}
    v_add_u32 v{vOW}, s{sT0}, v{b}
    v_bfe_u32 v{b}, v{vL}, 2, 2
    v_lshlrev_b32 v{b}, 4, v{b}
    v_lshl_add_u32 v{b}, v{a}, 6, v{b}
    v_lshl_add_u32 v{b}, v{c}, 3, v{b}
    s_add_u32 s{sT0}, s{sM0b}, {E}
    v_add_u32 v{vXA}, s{sT0}, v{b}
    v_add_u32 v{vRW}, s{sM0b}, v{vL16}
    v_xor_b32 v{vRR}, 0x4000, v{vRW}
    v_xor_b32 v{vRR+1}, 0x6000, v{vRW}
    v_xor_b32 v{vRR+2}, 0x2000, v{vRW}
    """)
    return S

def setup_b():
    S = Stream()
    S(f"""
    s_lshl_b32 s{sFBo}, s{sRB1}, 1
    s_add_u32 s{sFBo}, s{sFBo}, s{sTH}
    s_lshl_b32 s{sFBo}, s{sFBo}, 5
    s_lshl_b32 s{sT0}, s{sCB1}, 1
    s_add_u32 s{sT0}, s{sT0}, s{sFH}
    s_add_u32 s{sFBo}, s{sFBo}, s{sT0}
    s_lshl_b32 s{sFBo}, s{sFBo}, 7
    s_add_u32 s{sFBo}, s{sFBo}, {FLB}
    s_lshl_b32 s{sT0}, s{sCB2}, 2
    s_add_u32 s{sT0}, s{sT0}, s{sW}
    s_lshl_b32 s{sKV0}, s{sT0}, 16
    s_lshl_b32 s{sT1}, s{sRB2}, 7
    s_sub_u32 s{sKV0}, s{sKV0}, s{sT1}
    s_add_u32 s{sKV0}, s{sKV0}, {KVR + 1984*2}
    s_add_u32 s{sKV1}, s{sKV0}, 4096
    s_lshl_b32 s{sFAo}, s{sT0}, 5
    s_add_u32 s{sFAo}, s{sFAo}, s{sRB2}
    s_lshl_b32 s{sFAo}, s{sFAo}, 7
    s_add_u32 s{sFAo}, s{sFAo}, {FLA}
    s_lshr_b32 s{sFAp}, s{sCH}, 4
    s_lshl_b32 s{sFAp}, s{sFAp}, 12
    s_lshl_b32 s{sT0}, s{sFH}, 11
    s_sub_u32 s{sFAp}, s{sFAp}, s{sT0}
    s_add_u32 s{sFAp}, s{sFAp}, {FLA + 2048}
    s_lshl_b32 s{sHC}, s{sCH}, 12
    s_add_u32 s{sU}, s{sHC}, s{sT0}
    s_add_u32 s{sYs}, s{sU}, {YT}
    s_add_u32 s{sU}, s{sU}, {KVR}
    s_lshl_b32 s{sT0}, s{sFH}, 1
    s_add_u32 s{sHC}, s{sHC}, s{sT0}
    """)
    return S
def setup_c():
    S = Stream()
    S(f"""
    s_lshl_b32 s{sFBp}, s{sRB2}, 5
    s_mul_i32 s42, s{sW}, 7
    s_add_u32 s{sFBp}, s{sFBp}, s42
    s_lshl_b32 s{sFBp}, s{sFBp}, 7
    s_add_u32 s{sFBp}, s{sFBp}, {FLB}
    s_lshl_b32 s{sFCo}, s{sCH}, 1
    s_add_u32 s{sFCo}, s{sFCo}, s{sFH}
    s_lshl_b32 s{sFCo}, s{sFCo}, 7
    s_add_u32 s{sFCo}, s{sFCo}, {FLC}
    s_lshl_b32 s42, s{sCB2}, 1
    s_add_u32 s42, s42, s{sFH}
    s_lshl_b32 s{sFCp}, s42, 13
    s_lshr_b32 s43, s{sRB2}, 4
    s_lshl_b32 s43, s43, 7
    s_add_u32 s{sFCp}, s{sFCp}, s43
    s_add_u32 s{sFCp}, s{sFCp}, {FLC}
    s_lshl_b32 s{sYl}, s42, 17
    s_lshl_b32 s{sXO}, s42, 6
    s_lshl_b32 s42, s{sRB2}, 1
    s_add_u32 s42, s42, s{sTH}
    s_lshl_b32 s43, s42, 6
    s_add_u32 s{sYl}, s{sYl}, s43
    s_add_u32 s{sYl}, s{sYl}, {YT}
    s_lshl_b32 s43, s42, 15
    s_add_u32 s{sXO}, s{sXO}, s43
    s_lshl_b32 s{sStatF}, s42, 9
    s_add_u32 s{sStatF}, s{sStatF}, {STATS}
    s_mul_i32 s{sHLo}, s42, {112*1024}
    s_xor_b32 s42, s42, 1
    s_mul_i32 s{sHL}, s42, {112*1024}
    s_mul_i32 s42, s{sW}, {28*1024}
    s_lshl_b32 s43, s{sRot}, 12
    s_add_u32 s42, s42, s43
    s_add_u32 s{sHL}, s{sHL}, s42
    s_add_u32 s{sHLo}, s{sHLo}, s42
    """)
    return S

def hoffs2():
    S = Stream([Pseudo('GATE', 'c5m')]); S.extend(hoffs()); return Stream(S[1:])
def hoffs():
    S = Stream()
    g = Stream(); g(f"s_mov_b64 s[{WSO}:{WSO+1}], s[{WS}:{WS+1}]"); S.atomic(g)
    S(f"s_sub_u32 s{sHLo}, s{sHLo}, s{sHL}")
    for g in range(7):
        if g == 0: S(f"s_mov_b32 s64, s{sHL}")
        else:
            t = Stream(); t(f"s_cmp_eq_u32 s{sRot}, {7-g}\ns_cselect_b32 s78, {7*4096}, 0\ns_add_u32 s{64+g}, s{63+g}, 4096\ns_sub_u32 s{64+g}, s{64+g}, s78"); S.atomic(t)
        S(f"s_add_u32 s{71+g}, s{64+g}, s{sHLo}")
    return S

def nonce_get():
    S = Stream()
    S(f"s_load_dword s{sN}, s[{DBG}:{DBG+1}], 0")
    return S
def nonce_use(N='N'):
    S = Stream(); g = Stream()
    g(f"s_waitcnt lgkmcnt(0)\ns_cmp_eq_u32 s{sN}, 0\ns_cbranch_scc1 L_rare{N}\nL_back{N}:\nv_mov_b32 v{vN}, s{sN}")
    S.atomic(g)
    rare(f"""
    L_rare{N}:
    s_mov_b32 s{sCnt}, 0
    {"v_writelane_b32 v62, 1, 51" if OPT['prof'] else ""}
    L_rl{N}:
    s_sleep 2
    buffer_load_dword v{vN}, off, {srd(DBG)}, 0 sc1
    s_waitcnt vmcnt(0)
    v_readfirstlane_b32 s{sN}, v{vN}
    s_cmp_lg_u32 s{sN}, 0
    s_cbranch_scc1 L_back{N}
    s_add_u32 s{sCnt}, s{sCnt}, 1
    s_cmp_lt_u32 s{sCnt}, 0x4000
    s_cbranch_scc1 L_rl{N}
    s_branch L_back{N}
    """)
    return S

def stats():
    S = Stream(); X = 176; A = 192; B = 193; C = 194
    for i in range(8):
        S(f"v_lshlrev_b32 v{X+2*i}, 16, v{vROW+i}\nv_and_b32 v{X+2*i+1}, 0xffff0000, v{vROW+i}")
    def allred(r):
        for m in ("quad_perm:[1,0,3,2]", "quad_perm:[2,3,0,1]", "row_half_mirror", "row_mirror"):
            S(f"v_add_f32_dpp v{r}, v{r}, v{r} {m} row_mask:0xf bank_mask:0xf")
        S(f"v_mov_b32 v{C}, v{r}\nv_permlane16_swap_b32 v{r}, v{C}\nv_add_f32 v{r}, v{r}, v{C}")
    S(f"v_add_f32 v{A}, v{X}, v{X+1}\nv_add_f32 v{B}, v{X+2}, v{X+3}")
    for i in range(4, 16, 2): S(f"v_add_f32 v{A}, v{A}, v{X+i}\nv_add_f32 v{B}, v{B}, v{X+i+1}")
    S(f"v_add_f32 v{A}, v{A}, v{B}")
    allred(A)
    S(f"v_mul_f32 v{A}, {f2u(1/512):#x}, v{A}")
    for i in range(16): S(f"v_sub_f32 v{X+i}, v{X+i}, v{A}")
    S(f"v_mul_f32 v{B}, v{X}, v{X}\nv_mul_f32 v{C+1}, v{X+1}, v{X+1}")
    for i in range(2, 16, 2): S(f"v_fmac_f32 v{B}, v{X+i}, v{X+i}\nv_fmac_f32 v{C+1}, v{X+i+1}, v{X+i+1}")
    S(f"v_add_f32 v{B}, v{B}, v{C+1}")
    allred(B)
    S(f"""
    v_mul_f32 v{B}, {f2u(1/512):#x}, v{B}
    v_cvt_pk_bf16_f32 v{B}, v{B}, v{B}
    v_lshlrev_b32 v{B}, 16, v{B}
    v_add_f32 v{B}, {f2u(1e-5):#x}, v{B}
    v_cvt_pk_bf16_f32 v{B}, v{B}, v{B}
    v_lshlrev_b32 v{B}, 16, v{B}
    v_sqrt_f32 v{B}, v{B}
    v_and_b32 v{C}, 31, v{vL}
    v_cvt_pk_bf16_f32 v196, v{A}, v{B}
    v_lshrrev_b32 v{A}, 2, v{vL}
    v_mov_b32 v{B}, {OOB}
    """)
    g = Stream(); g(f"v_cmp_eq_u32 vcc, 0, v{C}\nv_cndmask_b32 v198, v{B}, v{A}, vcc"); S.atomic(g)
    return S
def stats_store():
    S = Stream()
    S(f"v_mov_b32 v197, v{vN}\nbuffer_store_dwordx2 v[196:197], v198, {srd(WS)}, s{sStatW} offen sc1")
    return S

def flag_store(soff, srdb, tag):
    S = Stream(); S.waitvm(tag)
    S(f"buffer_store_dword v{vN}, v{vL0}, {srd(srdb)}, s{soff} offen sc1")
    return S

def kvpre():
    S = Stream()
    KR = 232; VR = 244; KL = 176; WF = 188; OA = 200; OB = 220
    a1, a2, a3 = 252, 253, 254
    S(f"""
    v_and_b32 v{a1}, 7, v{vL}
    v_mul_u32_u24 v{a2}, 1040, v{a1}
    v_lshrrev_b32 v{a3}, 3, v{vL}
    v_lshl_add_u32 v{a2}, v{a3}, 2, v{a2}
    s_lshl_b32 s{sT0}, s{sW}, 5
    s_add_u32 s{sT0}, s{sT0}, {KT}
    v_add_u32 v{a2}, s{sT0}, v{a2}
    v_add_u32 v255, 1040, v{a2}
    ds_read2_b32 v[{KR}:{KR+1}], v{a2} offset0:160 offset1:192
    ds_read_b32 v{KR+2}, v{a2} offset:896
    """)
    for p in range(4): S(f"ds_read2_b32 v[{KR+4+2*p}:{KR+5+2*p}], v255 offset0:{64*p} offset1:{64*p+32}")
    S(f"v_add_u32 v{a2}, {VT-KT}, v{a2}")
    for p in range(4): S(f"ds_read2_b32 v[{VR+2*p}:{VR+1+2*p}], v{a2} offset0:{64*p} offset1:{64*p+32}")
    S(f"v_xor_b32 v{a1}, 7, v{a1}\nv_lshlrev_b32 v{a1}, 4, v{a1}\nv_lshl_add_u32 v{a1}, v{a3}, 13, v{a1}")
    for i in range(4):
        S(f"v_lshlrev_b32 v{WF+2*i}, 16, v{vSHK+i}\nv_and_b32 v{WF+2*i+1}, 0xffff0000, v{vSHK+i}")
    ri = lambda r: r + 3 if r < 0 else r + 4
    for r in range(-3, 8):
        S(f"v_lshlrev_b32 v{KL+ri(r)}, 16, v{KR+ri(r)}\nv_and_b32 v{KR+ri(r)}, 0xffff0000, v{KR+ri(r)}")
    for ch, (K, Oo) in enumerate(((KL, OA), (KR, OB))):
        for t in range(8): S(f"v_mul_f32 v{Oo+t}, v{K+ri(t)}, v{WF+4*ch}")
        for jj in range(1, 4):
            for t in range(8): S(f"v_fmac_f32 v{Oo+t}, v{K+ri(t-jj)}, v{WF+4*ch+jj}")
    for t in range(8):
        S(f"v_lshlrev_b32 v{KL+t}, 16, v{VR+t}\nv_and_b32 v{VR+t}, 0xffff0000, v{VR+t}")
    for t in range(8):
        S(f"v_mul_f32 v{OA+t}, v{OA+t}, v{KL+t}\nv_mul_f32 v{OB+t}, v{OB+t}, v{VR+t}")
    for ch, (Oo, Pk) in enumerate(((OA, 232), (OB, 236))):
        for q in range(4): S(f"v_cvt_pk_bf16_f32 v{Pk+q}, v{Oo+7-2*q}, v{Oo+6-2*q}")
        S(f"buffer_store_dwordx4 v[{Pk}:{Pk+3}], v{a1}, {srd(WS)}, s{sKV0+ch} offen sc1", f"kv{ch}")
    return S

def spare1():
    S = Stream()
    S("L_spare1:")
    S.extend(kv_dma())
    S(f"""
    s_lshl_b32 s40, s{sX}, 2
    s_and_b32 s41, s{sJ}, 3
    s_add_u32 s40, s40, s41
    s_lshl_b32 s40, s40, 2
    s_add_u32 s40, s40, s{sW}
    s_mul_i32 s41, s40, 14336
    s_lshl_b32 s40, s40, 14
    """)
    if OPT['sweep']:
        for n in range(14):
            S(f"buffer_load_dwordx4 a[{4*n}:{4*n+3}], v{vL16}, {srd(W2)}, s41 offen" + (f" offset:{(n&3)*1024}" if n & 3 else ""))
            if n & 3 == 3: S("s_add_u32 s41, s41, 4096")
    S.extend(nonce_get()); S.extend(setup_b()); S.extend(setup_c()); S.extend(nonce_use('M')); S.extend(stats_store())
    S.waitvm("kvd"); S("s_barrier")
    S.extend(kvpre())
    if OPT['sweep']:
        for n in range(16):
            S(f"buffer_load_dwordx4 a[{4*n}:{4*n+3}], v{vL16}, {srd(SSK)}, s40 offen" + (f" offset:{(n&3)*1024}" if n & 3 else ""))
            if n & 3 == 3: S("s_add_u32 s40, s40, 4096")
    S.extend(flag_store(sFAo, WS, "kv1")); S.extend(flag_init()); S(f"s_mov_b32 s{sDone}, 0x80000000")
    stamp(S, "kvpub")
    S("s_barrier")
    S.extend(SPARE_W2); S.extend(hoffs())
    S(pollA_load()); S.extend(u_loads(True))
    S("s_waitcnt vmcnt(0) lgkmcnt(0)\ns_branch L_join")
    return S

def htouch():
    S = Stream()
    if OPT['htouch']:
        S(f"v_and_b32 v230, 31, v{vL}\nv_lshrrev_b32 v231, 5, v{vL}\nv_mul_u32_u24 v231, {112*1024}, v231\nv_lshl_add_u32 v230, v230, 7, v231\ns_lshl_b32 s87, s{sTH}, 11\ns_sub_u32 s87, s{sHst}, s87")
        S(f"buffer_load_dword a236, v230, {srd(WS)}, s87 offen")
        if OPT['htouch'] > 1: S(f"buffer_load_dword a237, v230, {srd(WS)}, s87 offen offset:64")
    return S

WSF = 48; sDone = 87
def flag_try(soff, tag, last=False, first=False):
    S = Stream(); g = Stream()
    if last:
        g.waitvm(tag); g(f"s_cmp_eq_u32 s{sDone}, 0")
    else:
        g(f"s_getreg_b32 s{WSF+2}, hwreg(HW_REG_IB_STS)\ns_and_b32 s{WSF+2}, s{WSF+2}, 0xc0000f\ns_or_b32 s{WSF+2}, s{WSF+2}, s{sDone}")
        g.append(Pseudo('CMPVM', (tag, WSF+2)))
    g(f"s_cselect_b32 s{WSF+2}, {WS_SIZE}, 0")
    g(f"s_mov_b32 s{sDone}, 0" if last else f"s_cselect_b32 s{sDone}, 0x80000000, s{sDone}")
    g(f"buffer_store_dword v{vN}, v{vL0}, {srd(WSF)}, s{soff} offen sc1")
    S.atomic(g)
    return S
def flag_init():
    S = Stream(); S(f"s_mov_b64 s[{WSF}:{WSF+1}], s[{WS}:{WS+1}]\ns_mov_b32 s{sDone}, 0"); return S

def hcopy_dma():
    S = Stream()
    S(f"v_accvgpr_read_b32 v230, a248\nv_accvgpr_read_b32 v231, a249\ns_lshl_b32 s{sT0}, s{sTH}, 4\nv_lshrrev_b32 v230, s{sT0}, v230\nv_lshlrev_b32 v230, 16, v230\nv_lshlrev_b32 v231, 16, v231\nv_mul_lo_u32 v231, v231, s{sFH}\nv_readfirstlane_b32 s{sDv}, v230")
    S(f"s_mul_i32 s{sT0}, s{sW}, 4160\nv_and_b32 v230, 7, v{vL}")
    dma_n(S, vL16, SSK, sHC, f"s_add_u32 m0, s{sT0}, {HC+32}", "hc", samev=True)
    g = Stream(); g(f"v_cmp_eq_u32 vcc, 7, v230\nv_lshlrev_b32 v230, 2, v230\ns_add_u32 s{sT0}, s{sT0}, {HC}\nv_cndmask_b32 v231, 0, v231, vcc\nv_add_u32 v230, s{sT0}, v230\nds_write_b32 v230, v231")
    S.atomic(g)
    return S

def g1_set(n): return FR + 16 * (n % 3)
def g1_reads(n):
    if n >= 32: return []
    i, ks = divmod(n, 4)
    st = g1_set(n); slot = i & 3; hi = slot >> 1; off = (slot & 1) * 32768
    L = []
    for u in range(2):
        for rd in range(2):
            L.append(f"ds_read_b64_tr_b16 v[{st+4*u+2*rd}:{st+4*u+2*rd+1}], v{vWA+2*hi+u} offset:{off+16384+ks*4096+rd*1024}")
    for tt in range(2):
        L.append(f"ds_read_b128 v[{st+8+4*tt}:{st+11+4*tt}], v{vQA+4*hi+ks} offset:{off+tt*4096}")
    return [L[0], L[1], L[4], L[5], L[2], L[3]]

def stat_loads(att):
    return [f"buffer_load_dwordx2 v[{STL+4*att+2*tt}:{STL+4*att+2*tt+1}], v{vSTV}, {srd(WS)}, s{sStatC} offen offset:{tt*512} sc1" for tt in range(2)]

def gemm1():
    S = Stream(); CAP = OPT['cap']
    S.waitvm("c0"); S("s_barrier")
    stamp(S, "c0")
    for t in g1_reads(0): S(t)
    for t in g1_reads(1): S(t, 'fr1')
    for i in range(8):
        S.mark(f"c{i}a")
        for ks in range(4):
            n0 = 4*i + ks; st = g1_set(n0); first = n0 == 0
            rds = g1_reads(n0 + 2)
            bar = (ks == 1 and i < 7) or n0 == 30
            if n0 == 1: S.mark("c0h")
            if n0 > 0: S.waitlg(f'fr{n0}')
            small = [st] if n0 < 30 else ([st, g1_set(31)] if n0 == 30 else [])
            for n, (u, tt) in enumerate([(0, 0), (0, 1), (1, 0), (1, 1)]):
                acc = ACC + 16 * (2*u + tt)
                c = "0" if first else vr(acc, 16)
                if bar and n == 3:
                    S.mark(f"c{i}m")
                    if i < 7: S.waitvm(f"c{i+1}")
                    if OPT['prof'] in (2, 4): stamp(S, f"w{i}")
                    S.waitlg()
                S(f"v_mfma_f32_32x32x16_bf16 {vr(acc,16)}, v[{st+4*u}:{st+4*u+3}], v[{st+8+4*tt}:{st+11+4*tt}], {c}")
                k = 0
                if bar and n == 3:
                    S("s_barrier"); S.mark(f"c{i}b"); k = 2
                while rds and k < (3 if bar else 2): S(rds.pop(0), f'fr{n0+2}'); k += 1
                if n0 == 30 and n == 2:
                    S(f"ds_write_b128 v{vCSW}, a[{CSACC}:{CSACC+3}]"); k += 1
                S.fill(CAP - k)
                if n == 0:
                    for sm in small:
                        c = "0" if first else ar(CSACC, 4)
                        S(f"v_mfma_f32_16x16x32_bf16 {ar(CSACC,4)}, v[{sm}:{sm+3}], {ar(SEL,4)}, {c}")
                        S.fill(1)
        S.mark(f"c{i}e")
    return S

def cs_reads():
    S = Stream()
    for u in range(2):
        for j in range(4): S(f"ds_read_b128 v[{CSV+16*u+4*j}:{CSV+16*u+4*j+3}], v{vCSA+u} offset:{32*j}")
    return S

def stats_consume():
    S = Stream()
    check_poll(S, stat_loads(1), [STL+5, STL+7])
    for tt in range(2):
        a1 = STL + 4 + 2*tt
        S(f"v_and_b32 v{MR+2*tt+1}, 0xffff0000, v{a1}\nv_rcp_f32 v{MR+2*tt+1}, v{MR+2*tt+1}\nv_lshlrev_b32 v{MR+2*tt}, 16, v{a1}\nv_mul_f32 v{MR+2*tt+1}, {NLOG2E:#x}, v{MR+2*tt+1}")
    return S

def epi1(inserts):
    S = Stream(); n = 0
    for u in range(2):
        for tt in range(2):
            for s in range(2):
                acc = ACC + 16*(2*u+tt) + 8*s; cs = CSV + 16*u + 8*s; W = FR + 16*(n & 1); P = FR + 8 + 16*(n & 1)
                mr = f"v[{MR+2*tt}:{MR+2*tt+1}]"
                for p in range(4): S(f"v_pk_fma_f32 v[{acc+2*p}:{acc+2*p+1}], v[{cs+2*p}:{cs+2*p+1}], {mr}, v[{acc+2*p}:{acc+2*p+1}] op_sel_hi:[1,0,1] neg_lo:[0,1,0] neg_hi:[0,1,0]")
                for p in range(4): S(f"v_pk_mul_f32 v[{W+2*p}:{W+2*p+1}], v[{acc+2*p}:{acc+2*p+1}], {mr} op_sel:[0,1] op_sel_hi:[1,1]")
                for p in range(8): S(f"v_exp_f32_e64 v{W+p}, v{W+p}")
                for p in range(4): S(f"v_pk_add_f32 v[{W+2*p}:{W+2*p+1}], v[{W+2*p}:{W+2*p+1}], 1.0 op_sel_hi:[1,0]")
                for p in range(8): S(f"v_rcp_f32_e64 v{W+p}, v{W+p}")
                for p in range(4): S(f"v_pk_mul_f32 v[{W+2*p}:{W+2*p+1}], v[{acc+2*p}:{acc+2*p+1}], v[{W+2*p}:{W+2*p+1}]")
                for p in range(4): S(f"v_cvt_pk_bf16_f32 v{P+p}, v{W+2*p}, v{W+2*p+1}")
                S(f"buffer_store_dwordx4 v[{P}:{P+3}], v{vL16}, {srd(WS)}, s{sHst+2*u+tt} offen" + (" offset:1024" if s else "") + [" sc1", "", " nt", " sc0"][OPT['x_hplain']], "hst")
                if OPT['prof'] == 3: stamp(S, f"e{n}")
                if n in inserts:
                    S.extend(inserts[n])
                    if OPT['prof'] == 3: stamp(S, f"u{n}")
                n += 1
    return S

CB = 128; CACC = 64; CAF = 96; NA = 6; UST = 220
def pollA_load(): return f"buffer_load_dword v228, v{vPA}, {srd(WS)}, s{sFAp} offen sc1"
sResA = 40; sResC = 41
def u_loads(block=False):
    S = Stream()
    if block: check_poll(S, [pollA_load()], [228]); S(f"s_mov_b32 s{sResA}, 0\ns_mov_b32 s{WSO+2}, {WS_SIZE}")
    elif block is False: note_poll(S, 228, sResA)
    S(f"buffer_load_dwordx4 v[{UST}:{UST+3}], v{vL16}, {srd(WSO)}, s{sU} offen sc1")
    S(f"buffer_load_dwordx4 v[{UST+4}:{UST+7}], v{vL16}, {srd(WSO)}, s{sU} offen offset:1024 sc1")
    return S

DU = 96
def conv():
    S = Stream()
    repair(S, sResA, one(f"s_mov_b32 s{WSF+2}, {WS_SIZE}\ns_mov_b32 s{sDone}, 0x80000000\nbuffer_store_dword v{vN}, v{vL0}, {srd(WSF)}, s{sFBo} offen sc1"), pollA_load(), 228, u_loads(None))
    if OPT['prof'] == 3: stamp(S, "rep")
    S(f"ds_write_b128 v{vCU}, v[{UST}:{UST+3}]\nds_write_b128 v{vCU}, v[{UST+4}:{UST+7}] offset:1024")
    S.waitvm("hc"); S.waitlg(); S("s_barrier")
    stamp(S, "conv0")
    rA = lambda c, a: CB + 64*(c & 1) + 4*a
    rB = lambda c, b: CB + 64*(c & 1) + 32 + 4*b
    def ldA(c, a):
        m = 4*a + c
        return [f"ds_read2_b32 v[{rA(c,a)+2*h}:{rA(c,a)+2*h+1}], v{vCA+(m>>3)} offset0:{32*(m&7)+2*h} offset1:{32*(m&7)+2*h+1}" for h in range(2)]
    ldB = lambda c, b: [f"ds_read_b128 v[{rB(c,b)}:{rB(c,b)+3}], v{vCB} offset:{128*(4*b+c)}"]
    pairs = [(a, b) for a in range(8) for b in range(7, a - 1, -1)]
    def loads(c):
        L = ldA(c, 0)
        for b in range(7, -1, -1): L += ldB(c, b)
        for a in range(1, 8): L += ldA(c, a)
        return L
    q = loads(0)
    for t in q[:6]: S(t)
    q = q[6:]
    S.mark("cva"); seenT = set(); p = 0
    for c in range(4):
        nq = loads(c + 1) if c < 3 else []
        for i, (a, b) in enumerate(pairs):
            T = a + 7 - b; acc = CACC + 4*T
            cc = vr(acc, 4) if T in seenT else "0"; seenT.add(T)
            S(f"v_mfma_f32_16x16x32_bf16 {vr(acc,4)}, v[{rA(c,a)}:{rA(c,a)+3}], v[{rB(c,b)}:{rB(c,b)+3}], {cc}")
            k = 0
            if q:
                for _ in range(2 if len(q) > 14 else 1):
                    if q: S(q.pop(0)); k += 1
            elif nq and (c == 0 or i % 3 != 2) and i >= 1: S(nq.pop(0)); k += 1
            S.fill(2 - k)
            S.mark(f"cv{p}")
            if OPT['prof'] == 3 and p in (35, 71, 107): stamp(S, f"cv{p}")
            p += 1
        for t in nq: S(t)
    S.mark("cve")
    return S

def conv_du():
    S = Stream(); U = 112
    for T in range(4): S(f"ds_read_b64 v[{U+2*T}:{U+2*T+1}], v{vCD} offset:{(3-T)*512}")
    for T in range(4):
        a = DU + 4*T
        S(f"""v_and_b32 v{a}, 0xffff0000, v{U+2*T+1}
        v_lshlrev_b32 v{a+1}, 16, v{U+2*T+1}
        v_and_b32 v{a+2}, 0xffff0000, v{U+2*T}
        v_lshlrev_b32 v{a+3}, 16, v{U+2*T}""")
        for r in range(4): S(f"v_mul_f32 v{a+r}, s{sDv}, v{a+r}")
    return S

def conv_epi(tail):
    S = Stream(); R = 128; Y = 120
    stamp(S, "conv1")
    S(f"s_nop 5\ns_cmp_eq_u32 s{sFH}, 0\ns_cbranch_scc0 L_odd")
    def half(T_, keep, send):
        for T in range(4): T_(f"ds_write_b128 v{vCX}, v[{send+4*T}:{send+4*T+3}] offset:{1024*T}")
        for p in range(8): T_(f"v_pk_add_f32 v[{DU+2*p}:{DU+2*p+1}], v[{DU+2*p}:{DU+2*p+1}], v[{keep+2*p}:{keep+2*p+1}]")
    half(S, CACC, CACC + 16)
    S("L_oddback:")
    O = Stream(); O("L_odd:"); half(O, CACC + 16, CACC); O("s_branch L_oddback"); rare.extend(O)
    S.waitlg(); S("s_barrier")
    for T in range(4): S(f"ds_read_b128 v[{R+4*T}:{R+4*T+3}], v{vCXR} offset:{1024*T}")
    S.extend(tail)
    for pr in range(2):
        for T in (2*pr, 2*pr+1):
            a = DU + 4*T
            S(f"v_pk_add_f32 v[{a}:{a+1}], v[{a}:{a+1}], v[{R+4*T}:{R+4*T+1}]\nv_pk_add_f32 v[{a+2}:{a+3}], v[{a+2}:{a+3}], v[{R+4*T+2}:{R+4*T+3}]")
            y = Y + 4*pr + 2*(T & 1)
            S(f"v_cvt_pk_bf16_f32 v{y}, v{a}, v{a+1}\nv_cvt_pk_bf16_f32 v{y+1}, v{a+2}, v{a+3}")
        y = Y + 4*pr
        S(f"v_permlane16_swap_b32 v{y}, v{y+2}\nv_permlane16_swap_b32 v{y+1}, v{y+3}")
        S(f"buffer_store_dwordx4 v[{y}:{y+3}], v{vCY}, {srd(WS)}, s{sYs} offen" + (" offset:1024" if pr else "") + " sc1", "yst")
    return S

HR = 128; XF = 224; SF = 240; TP = 192
def pollB_load(): return f"buffer_load_dword v4, v{vPB}, {srd(WS)}, s{sFBp} offen sc1"
def pollC_load(): return f"buffer_load_dword v5, v{vPC}, {srd(WS)}, s{sFCp} offen sc1"
def gemm2():
    S = Stream(); D = OPT['hring']
    def hload(n):
        p, k = divmod(n, 28); so = 64 + 7*p + (k >> 2)
        T = Stream()
        T(f"buffer_load_dwordx4 v[{HR+4*(n%D)}:{HR+4*(n%D)+3}], v{vL16}, {srd(WS)}, s{so} offen" + (f" offset:{(k&3)*1024}" if k & 3 else "") + " sc1")
        return T
    check_poll(S, [pollB_load()], [4])
    stamp(S, "hflag")
    for n in range(D): S.extend(hload(n))
    S.extend(flag_store(sFCo, WS, "yst"))
    S.mark("g2s")
    for n in range(56):
        p, k = divmod(n, 28); h = HR + 4*(n % D)
        for u in range(2):
            acc = ACC + 32*(1-p) + 16*u; a = (2*k + u) * 4
            c = "0" if k == 0 else vr(acc, 16)
            S(f"v_mfma_f32_32x32x16_bf16 {vr(acc,16)}, {ar(a,4)}, v[{h}:{h+3}], {c}")
            used = 0
            if u == 1 and n + D < 56:
                T = hload(n + D); S.extend(T); used = len(T)
            S.fill(5 - used)
        S.mark(f"g2_{n}")
        if OPT['prof'] > 1 and n in (0, 13, 27, 34, 41): stamp(S, f"g2_{n}")
    return S

def red_early_w():
    S = Stream()
    for u in range(2):
        for j in range(4): S(f"ds_write_b128 v{vRW}, v[{ACC+32+16*u+4*j}:{ACC+35+16*u+4*j}] offset:{4096*u+1024*j}")
    g = Stream(); g.waitlg(); g("s_barrier"); S.atomic(g)
    return S
def red_early_r():
    S = Stream(); A = ACC + 32; B = ACC + 48
    for j in range(4): S(f"ds_read_b128 v[{A+4*j}:{A+4*j+3}], v{vRR} offset:{1024*j}")
    for j in range(4): S(f"ds_read_b128 v[{B+4*j}:{B+4*j+3}], v{vRR+1} offset:{4096+1024*j}")
    for r in range(16): S(f"v_add_f32 v{A+r}, v{A+r}, v{B+r}")
    return S

FS = TP + 2
def prep_x():
    S = Stream()
    g = Stream()
    g(f"s_add_u32 m0, s{sM0b}, {E}\ns_add_u32 s{sT0}, s{sXO}, 15360\nbuffer_load_dwordx4 v{vXD}, {srd(QF)}, s{sXO} offen lds")
    g(f"buffer_load_dwordx4 v{vXD}, {srd(QF)}, s{sT0} offen offset:1024 lds", "xd")
    S.atomic(g)
    S(f"buffer_load_dwordx2 v[{FS}:{FS+1}], v{vSTV}, {srd(WS)}, s{sStatF} offen sc1")
    return S
def prep_x2():
    S = Stream(); XR = TP + 8
    check_poll(S, [f"buffer_load_dwordx2 v[{FS}:{FS+1}], v{vSTV}, {srd(WS)}, s{sStatF} offen sc1"], [FS+1])
    S(f"v_and_b32 v{FS+1}, 0xffff0000, v{FS}\nv_rcp_f32 v{FS+1}, v{FS+1}\nv_lshlrev_b32 v{FS}, 16, v{FS}\nv_mul_f32 v{FS+2}, v{FS+1}, v{FS+1}\nv_mul_f32 v{FS+1}, {NLOG2E:#x}, v{FS+1}")
    S.waitvm("xd")
    for j in range(4):
        if j: S(f"v_xor_b32 v{FS+3}, {16*j}, v{vXA}")
        S(f"ds_read_b64 v[{XR+2*j}:{XR+2*j+1}], v{FS+3 if j else vXA}")
    for q in range(8):
        S(f"v_lshlrev_b32 v{XF+2*q}, 16, v{XR+q}\nv_and_b32 v{XF+2*q+1}, 0xffff0000, v{XR+q}")
    for r in range(16): S(f"v_sub_f32 v{SF+r}, v{XF+r}, v{FS}")
    for r in range(16): S(f"v_mul_f32 v{SF+r}, v{SF+r}, v{FS+2}")
    return S
S2 = ACC + 48
def prep_y(note=True):
    S = Stream(); YS = TP + 8
    if note: note_poll(S, 5, sResC)
    S(f"s_add_u32 s{sT0}, s{sYl}, 65536")
    S(f"buffer_load_dwordx4 v[{YS}:{YS+3}], v{vYL}, {srd(WSO)}, s{sYl} offen sc1\nbuffer_load_dwordx4 v[{YS+4}:{YS+7}], v{vYL}, {srd(WSO)}, s{sT0} offen sc1")
    return S
def prep_y2():
    S = Stream(); YS = TP + 8; YR = TP + 16; t = TP + 24
    S(f"ds_write_b128 v{vYW}, v[{YS}:{YS+3}]\nds_write_b128 v{vYW}, v[{YS+4}:{YS+7}] offset:1024")
    for j in range(4): S(f"ds_read_b64_tr_b16 v[{YR+2*j}:{YR+2*j+1}], v{vYA} offset:{512*j}")
    for q in range(8):
        S(f"v_lshlrev_b32 v{t+(q&1)*2}, 16, v{YR+q}\nv_and_b32 v{t+(q&1)*2+1}, 0xffff0000, v{YR+q}")
        S(f"v_mul_f32 v{S2+2*q}, v{SF+2*q}, v{t+(q&1)*2}\nv_mul_f32 v{S2+2*q+1}, v{SF+2*q+1}, v{t+(q&1)*2+1}")
    return S

def final():
    S = Stream(); A = ACC; F = ACC + 16; Ee = ACC + 32; W = HR; P = HR + 16
    stamp(S, "g2end")
    for j in range(4): S(f"ds_write_b128 v{vRW}, v[{F+4*j}:{F+4*j+3}] offset:{32768+1024*j}")
    for p in range(8): S(f"v_pk_add_f32 v[{A+2*p}:{A+2*p+1}], v[{A+2*p}:{A+2*p+1}], v[{Ee+2*p}:{Ee+2*p+1}]")
    if OPT['ylate']: S.extend(prep_y2())
    S.waitlg(); S("s_barrier")
    repair(S, sResC, Stream(), pollC_load(), 5, cat(prep_y(False), prep_y2()))
    for j in range(4): S(f"ds_read_b128 v[{Ee+4*j}:{Ee+4*j+3}], v{vRR+2} offset:{32768+1024*j}")
    mr = f"v[{FS}:{FS+1}]"
    for h in range(2):
        ps = range(4*h, 4*h+4)
        for p in ps: S(f"v_pk_add_f32 v[{A+2*p}:{A+2*p+1}], v[{A+2*p}:{A+2*p+1}], v[{Ee+2*p}:{Ee+2*p+1}]")
        for p in ps: S(f"v_pk_mul_f32 v[{W+2*p}:{W+2*p+1}], v[{A+2*p}:{A+2*p+1}], {mr} op_sel:[0,1] op_sel_hi:[1,1]")
        for p in ps: S(f"v_exp_f32_e64 v{W+2*p}, v{W+2*p}\nv_exp_f32_e64 v{W+2*p+1}, v{W+2*p+1}")
        for p in ps: S(f"v_pk_add_f32 v[{W+2*p}:{W+2*p+1}], v[{W+2*p}:{W+2*p+1}], 1.0 op_sel_hi:[1,0]")
        for p in ps: S(f"v_rcp_f32_e64 v{W+2*p}, v{W+2*p}\nv_rcp_f32_e64 v{W+2*p+1}, v{W+2*p+1}")
        for p in ps: S(f"v_pk_mul_f32 v[{A+2*p}:{A+2*p+1}], v[{A+2*p}:{A+2*p+1}], v[{S2+2*p}:{S2+2*p+1}]")
        for p in ps: S(f"v_pk_fma_f32 v[{W+2*p}:{W+2*p+1}], v[{A+2*p}:{A+2*p+1}], v[{W+2*p}:{W+2*p+1}], v[{XF+2*p}:{XF+2*p+1}]")
        for p in ps: S(f"v_cvt_pk_bf16_f32 v{P+p}, v{W+2*p}, v{W+2*p+1}")
        for j in (2*h, 2*h+1): S(f"ds_write_b64 v{vOW}, v[{P+2*j}:{P+2*j+1}] offset:{16*j}")
    S(f"s_add_u32 s{sT0}, s{sXO}, 16384")
    S(f"ds_read_b128 v[{W}:{W+3}], v{vOR}\nds_read_b128 v[{W+4}:{W+7}], v{vOR} offset:1280")
    S(f"buffer_store_dwordx4 v[{W}:{W+3}], v{vOS}, {srd(OUT)}, s{sXO} offen\nbuffer_store_dwordx4 v[{W+4}:{W+7}], v{vOS}, {srd(OUT)}, s{sT0} offen")
    if OPT['prof']:
        stamp(S, "outst"); S("s_waitcnt vmcnt(0)"); stamp(S, "end")
        S(f"s_lshl_b32 s{sT0}, s2, 2\ns_add_u32 s{sT0}, s{sT0}, s{sW}\ns_lshl_b32 s{sT0}, s{sT0}, 8\ns_add_u32 s{sT0}, s{sT0}, {PROF}\nv_lshlrev_b32 v{vT}, 2, v{vL}")
        S(f"buffer_store_dword v{vPROF}, v{vT}, {srd(WS)}, s{sT0} offen")
        if OPT['dbgout']:
            e = stamp_names.index("end")
            S(f"""
            s_load_dwordx2 s[64:65], s[0:1], 80
            v_readlane_b32 s66, v{vPROF}, 0
            v_readlane_b32 s67, v{vPROF}, {e}
            s_not_b32 s66, s66
            v_mov_b32 v130, s67
            v_mov_b32 v131, s66
            v_mov_b32 v132, 56
            v_mov_b32 v133, 60
            s_waitcnt lgkmcnt(0)
            s_mov_b64 exec, 1
            global_atomic_umax v132, v130, s[64:65] sc1
            global_atomic_umax v133, v131, s[64:65] sc1
            s_lshl_b32 s66, s2, 2
            s_add_u32 s66, s66, s{sW}
            s_cmp_eq_u32 s66, {4*OPT['dbgout']}
            s_cbranch_scc0 L_end
            s_mov_b64 exec, 0x1fff
            v_add_u32 v{vT}, 4, v{vT}
            global_store_dword v{vT}, v{vPROF}, s[64:65]
            """)
    return S

def stS(name):
    s = Stream(); stamp(s, name); return s
def cat(*ss):
    o = Stream()
    for s in ss: o.extend(s)
    return o
def one(t, tag=None):
    s = Stream(); s(t, tag); return s

def spread(S, items, every):
    o = Stream(); items = list(items); n = 0
    for x in S:
        o.append(x); n += 1
        if items and n % every == 0:
            while items and items[0].cls == 'pseudo' and items[0].op != 'GROUP': o.append(items.pop(0))
            if items: o.append(items.pop(0))
    o.extend(items)
    return o

def build():
    P = Stream()
    P.extend(entry())
    c1 = chunk_dma(1)
    P.extend(spread(cat(*[coff(i) for i in range(2, 8)], codepf(), setup(), kv_pro()), c1[:OPT['c1n']], 20))
    stamp(P, "setup")
    st = stats()
    c2 = chunk_dma(2)
    P.extend(st[:16]); P.extend(spread(Stream(st[16:]), cat(c1[OPT['c1n']:], c2[:OPT['c2n']]), 7))
    P(f"s_cmp_ge_u32 s{sCB1}, 14\ns_cbranch_scc1 L_spare1")
    kp = OPT['kvpos']; g1f = []
    pre = cat(one(pollA_load().replace("v228,", "a233,")), one(pollB_load().replace("v4,", "a234,")), one(pollC_load().replace("v5,", "a235,"))) if OPT['pretouch'] else Stream()
    if OPT['c2n'] < 8: g1f.append(("c0a", "c0m", Stream(c2[OPT['c2n']:]), (OPT['p0'],)))
    g1f.append(("c0b", "c1m", cat(kv_dma(), chunk_dma(3)) if kp == 2 else chunk_dma(3), (OPT['p1'],)))
    g1f.append(("c1b", "c2m", cat(kv_dma(), chunk_dma(4)) if kp == 3 else chunk_dma(4), (OPT['p2'],)))
    D = Stream()
    for c in range(5, 8):
        D.gate(f"c{c-4}b"); D.extend(chunk_dma(c))
    D.gate("c4b"); D.extend(cat(*[one(t) for t in stat_loads(1)], pre, htouch())); D.pace(OPT['w2pace'])
    W2S = cat(hcopy_dma(), w2_dma(0), Stream([Pseudo('GATE', 'c5b')]), w2_dma(1), Stream([Pseudo('GATE', 'c6b')]), w2_dma(2), w2_dma(3))
    isld = lambda it: it.cls == 'pseudo' and it.op == 'GROUP' and any(y.cls == 'dma' for y in it.arg)
    idx = [i for i, it in enumerate(W2S) if isld(it)]
    cut1 = idx[OPT['n1']] if OPT['n1'] < len(idx) else len(W2S); cut2 = idx[OPT['n2']] if OPT['n2'] < len(idx) else len(W2S)
    D.extend(W2S[:cut1])
    g1f.append(("c2b", "c7m", D, (2,)))
    na, nb = (("c0a", "c0m"), ("c0b", "c1a")) if OPT['nonce_at'] == 0 else (("c0b", "c1a"), ("c1b", "c2a"))
    g1f.append((*na, nonce_get(), 1))
    g1f.append((*nb, cat(nonce_use(), stats_store()), 1))
    g1f.append(("c2a", "c2m", flag_init(), 1))
    g1f.append((f"c{kp-1}b", f"c{kp}m", setup_b()))
    g1f.append((f"c{kp}b", f"c{OPT['kvend']}m", kvpre()))
    ke = OPT['kvend']
    for (a, b) in [(f"c{c}{x}", f"c{c}{y}") for c in range(ke + 1, 8) for x, y in (("a", "m"), ("b", "e"))][1:-1]:
        g1f.append((a, b, flag_try(sFAo, "kv1"), 1))
    g1f.append((f"c{OPT['kvend']}b", "c7m", cat(setup_c(), hoffs2())))
    g1f.append(("c7a", "c7m", stats_consume()))
    g1f.append(("c7b", "c7e", cat(cs_reads(), one(pollA_load())) if OPT['pat'] < 0 else cs_reads(), 1))
    P.extend(merge(gemm1(), g1f))
    stamp(P, "g1end")
    ins = {OPT['uat']: u_loads()}
    if OPT['pat'] >= 0: ins[OPT['pat']] = one(pollA_load())
    P.extend(flag_try(sFAo, "kv1", True))
    nog = lambda st: Stream([x for x in st if not (x.cls == 'pseudo' and x.op == 'GATE')])
    P.extend(spread(epi1(ins), nog(W2S[cut1:cut2]), OPT['esp']))
    stamp(P, "epi1")
    P("L_join:")
    W = lambda t: Stream([Pseudo('WAITLG', t)])
    G = lambda m: Stream([Pseudo('GATE', m)])
    fb = OPT['flagB_at']; t0, t1, t2, t3 = OPT['t0'], OPT['t1'], OPT['t2'], OPT['t3']
    cf = [(f"cv{x}", f"cv{x+4}", flag_try(sFBo, "hst", x == fb + 60), 1) for x in range(fb, fb + 61, 20)]
    cf += [
          ("cva", "cve", cat(nog(W2S[cut2:]), G(f"cv{OPT['d4']}"), W('tr0'), w2_dma(4), W('tr1'), w2_dma(5), W('tr2'), w2_dma(6), one(pollB_load())), (OPT['cvpace'],)),
          (f"cv{t0}", f"cv{t1}", w2_tr(0)), (f"cv{t1}", f"cv{t2}", w2_tr(1)), (f"cv{t2}", f"cv{t3}", w2_tr(2)),
          (f"cv{t3}", "cv125", w2_tr(3)), ("cv100", "cve", conv_du())]
    P.extend(merge(conv(), cf))
    P.extend(W('tr3'))
    P.extend(conv_epi(prep_x()))
    global SPARE_W2
    SPARE_W2 = nog(W2S[:cut2])
    stamp(P, "conv2")
    D = OPT['ylag']
    gf = [
          ("g2s", "g2_14", cat(w2_tr(4), w2_tr(5), w2_tr(6))),
          ("g2_8", "g2_26", prep_x2()),
          ("g2_28", "g2_33", red_early_w()),
          ("g2_35", "g2_44", red_early_r()),
          (f"g2_{OPT['yat']}", f"g2_{OPT['yat']+1}", one(pollC_load())),
          (f"g2_{OPT['yat']+D}", f"g2_{OPT['yat']+D+2}", prep_y()),
          ]
    if not OPT['ylate']: gf.append((f"g2_{min(OPT['yat']+2*D+1, 51)}", "g2_55", prep_y2()))
    P.extend(merge(gemm2(), gf))
    P.extend(final())
    P("L_end:\ns_endpgm")
    P = flatten(P)
    kv_last = max(i for i, x in enumerate(P) if x.tag == 'kvd')
    sb_first = min(i for i, x in enumerate(P) if x.cls == 'salu' and f"s{sFBo}" in x.wr and 'mov' not in x.op)
    assert kv_last < sb_first, "k/v SRDs overwritten before use"
    last = None
    for x in P:
        if x.cls == 'salu' and 'm0' in x.wr: last = x.text
        if x.cls == 'dma' and x.arg is not None: assert x.arg == last, ("m0 changed under a DMA group", x.text, last)
        if x.cls == 'label' and x.text.startswith('L_join'): last = None
    c7_last = max(i for i, x in enumerate(P) if x.tag == 'c7')
    ho_first = min(i for i, x in enumerate(P) if x.text.startswith(f"s_mov_b64 s[{WSO}:{WSO+1}], s[{WS}"))
    assert c7_last < ho_first, "GEMM1 SRDs / offsets overwritten before the last chunk load"
    P = autowait(P); P = hazards(P)
    pre_ag = Stream(); pre_ag("global_load_dword a248, v0, s[0:1]\nglobal_load_dword a249, v0, s[0:1]")
    SP = hazards(autowait(cat(pre_ag, flatten(spare1()))))
    P.extend(SP[2:])
    R = hazards(flatten(rare))
    P.extend(R); P("L_codeend:")
    P = align8(P)
    return P

HEAD = open("cdna_kernels/" + NAME + ".s.ref").read().split("; Override launch")[0]
def emit():
    P = build()
    size = sum(x.size for x in P)
    o = HEAD + f"; @launch grid=(256,1,1) block=(256,1,1) lds={LDS_BYTES}\n"
    o += f'.amdgcn_target "amdgcn-amd-amdhsa--gfx950"\n.text\n.globl {NAME}_kernel\n.p2align 8\n.type {NAME}_kernel,@function\n{NAME}_kernel:\n'
    o += "\n".join(l for l in text(P).split("\n") if not l.strip().startswith("; MARK"))
    o += f""".section .rodata,"a"
.p2align 6
.amdhsa_kernel {NAME}_kernel
  .amdhsa_next_free_vgpr 512
  .amdhsa_next_free_sgpr 102
  .amdhsa_accum_offset 256
  .amdhsa_group_segment_fixed_size 0
  .amdhsa_kernarg_size 96
  .amdhsa_user_sgpr_count 2
  .amdhsa_user_sgpr_kernarg_segment_ptr 1
  .amdhsa_system_sgpr_workgroup_id_x 1
.end_amdhsa_kernel
"""
    return o, size

if __name__ == "__main__":
    o, size = emit()
    open(sys.argv[1], "w").write(o)
    print("code bytes (estimate):", size, "stamps:", stamp_names)
    open(sys.argv[1] + ".stamps", "w").write(",".join(stamp_names))
```

```python
import sys, struct
from ir import *

NAME = "recurrent_scan__ssm_conv_h3__dense_activation_silu__prompt"
OPT = dict(tpp=2, packb=1, he1=4, he2=8, x_cv=0, cvwait=1, fbs=25, fbn=3, trg1=0, trpre=1, tp=-1, pb=138, d3=0, c5e=1, stat_at='c4a', x_notry=0, x_late=0, dp=2, dstart='c2b', kvn=1, ft0=2, c3b=3, c3a=4, sw3=7, swn=1, swflag=0, c3pf=1, hcnt=1, qnt=0, hearly=0, ntail=4, dbgout=0, rotk=0, rotx=1, htouch=0, x_w2null=0, x_hcnull=0, x_hplain=0, n1=20, n2=28, d4=66, fa=6, pat=-1, cvpace=3, t0=14, t1=36, t2=56, t3=76, pretouch=0, c2n=4, p0=2, p1=2, p2=2, b1n=5, b2n=5, esp=8, yat=40, ylag=9, ylate=1, map47=0, tlb=0, nonce_at=0, slowat=4, nt=1, c1n=1, kvpos=2, w2pace=4, sweep=4, uat=2, x_nokv=0, x_nocs=0, x_nodma=0, x_nobar=0, x_now2=0, onewait=1, kvend=4, cap=5, spare=1, prof=0, stats_fill=0, hring=16, flagB_at=40, codepf=1)
for a in sys.argv[2:]:
    k, v = a.split('='); OPT[k] = int(v) if v.lstrip('-').isdigit() else v

HWS = 0; KVR = 0x700000; YT = 0x900000; STATS = 0xB00000; FLA = 0xB10000; FLB = 0xB30000; FLC = 0xB50000
PROF = 0xB80000; WS_SIZE = 0xC00000
E = 131072; KT = E; VT = E + 9360; HC = E; UR = E + 17680; CS = E + 26896; DUMP = CS + 512
LDS_BYTES = 163840
OOB = 0x80000000
f2u = lambda f: struct.unpack('<I', struct.pack('<f', f))[0]
NLOG2E = f2u(-1.4426950408889634)

sX, sJ, sW, sT0, sT1 = 3, 4, 5, 6, 7
Q1, QF, SKK, SVV, W1, W2, SSK, WS, WSH, OUT, DBG, SHK, KZ = 8, 12, 16, 20, 24, 28, 32, 36, 40, 44, 48, 52, 60
sDptr = 56; sN = 58; sDv = 59
WSB = 8
sQoff = 64; sWoff = 72
sM0b = 80; sW2off = 81; sStatC = 82; sRot = 83; sStatW = 84; sFH = 85; sTH = 86; sH0 = 87
CODE = 88; sHst = 88
sM0q = 92; sM0w = 93; sP = 94; sCnt = 96; sC0 = sT0
sRB1, sCB1, sRB2, sCB2, sCH = 97, 98, 99, 100, 101
sKV0, sKV1, sFAo, sFAp, sU, sFBo, sFBp, sYs = 16, 17, 18, 19, 20, 21, 22, 23
sFCo, sFCp, sHL, sYl = 52, 53, 54, 55
sXO, sStatF, sHC, sHLo = 60, 61, 62, 63
def srd(b): return f"s[{b}:{b+3}]"

vL = 1; vL16 = 2; vL0 = 3
vQD = 4; vWD = 8; vBD = 12
vQA = 16; vWA = 24
vN = 28; vSTV = 29; vCSW = 30; vCSA = 31
vTA = 33; vCA = 37
vCB = 41; vCU = 42; vCD = 43; vCX = 44; vCXR = 45; vCY = 46
vPA = 47; vPB = 48; vPC = 49
vXD = 50; vYL = 51; vOS = 52
vXA = 53; vYW = 54; vYA = 55; vOW = 56; vOR = 57; vRW = 58; vRR = 59
vPROF = 62; vT = 63
vDV = 215; vH0 = 214
ACC = 64; FR = 128
CSACC = 244; SEL = 240; CSV = 176
STL = 208; MR = 216
def vr(b, n=1): return f"v{b}" if n == 1 else f"v[{b}:{b+n-1}]"
def ar(b, n): return f"a[{b}:{b+n-1}]"

rare = Stream(); nrare = [0]
def check_poll(S, reloads, tagregs):
    k = nrare[0]; nrare[0] += 1
    def cmp(T):
        if len(tagregs) == 1:
            T(f"v_cmp_ne_u32 vcc, s{sN}, v{tagregs[0]}")
        else:
            T(f"v_xor_b32 v{vT}, s{sN}, v{tagregs[0]}")
            for r in tagregs[1:]:
                T(f"v_xor_b32 v{r}, s{sN}, v{r}\nv_or_b32 v{vT}, v{vT}, v{r}")
            T(f"v_cmp_ne_u32 vcc, 0, v{vT}")
    g = Stream(); cmp(g); g(f"s_cbranch_vccnz L_rare{k}\nL_back{k}:")
    S.atomic(g)
    rare(f"L_rare{k}:\ns_mov_b32 s{sCnt}, 0")
    if OPT['prof']: rare(f"v_writelane_b32 v{vPROF}, 1, {52+k}")
    rare(f"L_rl{k}:\ns_sleep 1")
    for t in reloads: rare(t)
    rare("s_waitcnt vmcnt(0)")
    cmp(rare)
    rare(f"s_nop 1\ns_cbranch_vccz L_back{k}\ns_add_u32 s{sCnt}, s{sCnt}, 1\ns_cmp_lt_u32 s{sCnt}, 0x4000\ns_cbranch_scc1 L_rl{k}\ns_branch L_back{k}")

WSO = 24
def note_poll(S, tagreg, sres):
    g = Stream(); g(f"v_cmp_ne_u32 vcc, s{sN}, v{tagreg}\ns_or_b32 s{sres}, vcc_lo, vcc_hi\ns_cselect_b32 s{WSO+2}, 0, {WS_SIZE}"); S.atomic(g)
def repair(S, sres, first, reload, tagreg, redo):
    k = nrare[0]; nrare[0] += 1
    g = Stream(); g(f"s_cmp_lg_u32 s{sres}, 0\ns_cbranch_scc1 L_rare{k}\nL_back{k}:"); S.atomic(g)
    R = Stream()
    R(f"L_rare{k}:\ns_mov_b32 s{sCnt}, 0\ns_waitcnt vmcnt(0) lgkmcnt(0)")
    if OPT['prof']: R(f"v_writelane_b32 v{vPROF}, 1, {52+k}")
    R.extend(first)
    R(f"L_rl{k}:\n{reload}\ns_waitcnt vmcnt(0)\nv_cmp_ne_u32 vcc, s{sN}, v{tagreg}\ns_nop 1\ns_cbranch_vccz L_ok{k}\ns_sleep 1\ns_add_u32 s{sCnt}, s{sCnt}, 1\ns_cmp_lt_u32 s{sCnt}, 0x4000\ns_cbranch_scc1 L_rl{k}\nL_ok{k}:")
    R(f"s_mov_b32 s{WSO+2}, {WS_SIZE}")
    R.extend(autowait(flatten(redo)))
    R(f"s_waitcnt vmcnt(0) lgkmcnt(0)\ns_nop 4\ns_branch L_back{k}")
    rare.extend(R)

stamp_names = []
def stamp(S, name):
    if not OPT['prof']: return
    k = len(stamp_names); stamp_names.append(name)
    g = Stream()
    if OPT['prof'] == 1:
        g(f"s_memrealtime s[{sP}:{sP+1}]\ns_waitcnt lgkmcnt(0)\nv_writelane_b32 v{vPROF}, s{sP}, {k}")
        g(f"s_memtime s[{sP}:{sP+1}]\ns_waitcnt lgkmcnt(0)\nv_writelane_b32 v{vPROF}, s{sP}, {k+32}")
    elif OPT['prof'] == 4:
        g(f"s_memrealtime s[{sP}:{sP+1}]\ns_waitcnt lgkmcnt(0)\nv_writelane_b32 v{vPROF}, s{sP}, {k}")
    else:
        g(f"s_memtime s[{sP}:{sP+1}]\ns_waitcnt lgkmcnt(0)\nv_writelane_b32 v{vPROF}, s{sP}, {k}")
    S.atomic(g)

def dma_n(S, vbase, srdb, soff, m0txt, tag, n=4, samev=False, nt=False):
    for i in range(n):
        g = Stream()
        if i == 0: g(m0txt)
        g(f"buffer_load_dwordx4 v{vbase + (0 if samev else i)}, {srd(srdb)}, s{soff} offen" + (f" offset:{i*1024}" if i else "") + (" nt" if nt else "") + " lds", tag if i == n-1 else None)
        g[-1].arg = m0txt
        S.atomic(g)

def chunk_dma(i, sq=None, sw=None):
    S = Stream(); slot = i & 3
    dma_n(S, vQD, Q1, sQoff + i if sq is None else sq, f"s_add_u32 m0, s{sM0q}, {slot*32768}", None, nt=OPT['qnt'])
    dma_n(S, vWD, W1, sWoff + i if sw is None else sw, f"s_add_u32 m0, s{sM0w}, {slot*32768}", f"c{i}")
    return S

def w2_half(b, h):
    S = Stream(); slot = b & 3
    dma_n(S, vBD, W2, sW2off, f"s_add_u32 m0, s{sM0b}, {slot*32768 + 4096*h}", f"b{b}" if h else None)
    if h == 0: S(f"s_add_u32 s{sW2off}, s{sW2off}, 32768")
    elif b < 6:
        g = Stream(); g(f"s_cmp_eq_u32 s{sRot}, {6-b}\ns_cselect_b32 s{sCnt}, {7*65536}, 0\ns_add_u32 s{sW2off}, s{sW2off}, 32768\ns_sub_u32 s{sW2off}, s{sW2off}, s{sCnt}"); S.atomic(g)
    return S
def w2_dma(b):
    S = w2_half(b, 0); S.extend(w2_half(b, 1)); return S

def w2_tr(b):
    S = Stream(); slot = b & 3; hi = slot >> 1
    S.waitvm(f"b{b}")
    for k4 in range(4):
        for u in range(2):
            a = ((4*b + k4) * 2 + u) * 4
            for rd in range(2):
                off = (slot & 1) * 32768 + k4 * 2048 + rd * 1024
                S(f"ds_read_b64_tr_b16 {ar(a+2*rd, 2)}, v{vTA+2*hi+u} offset:{off}", f"tr{b}")
    return S

vROW = 220
vSHK = 228
MAP = [f"""
    s_lshr_b32 s{sCB1}, s{sJ}, 1
    s_and_b32 s{sT0}, s{sJ}, 1
    s_lshl_b32 s{sRB1}, s{sX}, 1
    s_add_u32 s{sRB1}, s{sRB1}, s{sT0}
    s_lshl_b32 s{sT0}, s{sT0}, 2
    s_add_u32 s{sT0}, s{sT0}, s{sCB1}
    s_add_u32 s{sT0}, s{sT0}, s{sX}
    s_and_b32 s{sT0}, s{sT0}, 7
""", f"""
    s_and_b32 s{sT0}, s{sJ}, 3
    s_lshr_b32 s{sT1}, s{sX}, 1
    s_lshl_b32 s{sRB1}, s{sT1}, 2
    s_add_u32 s{sRB1}, s{sRB1}, s{sT0}
    s_lshl_b32 s{sT0}, s{sT0}, 1
    s_add_u32 s{sT0}, s{sT0}, s{sT1}
    s_lshr_b32 s{sT1}, s{sJ}, 2
    s_add_u32 s{sT0}, s{sT0}, s{sT1}
    s_and_b32 s{sT0}, s{sT0}, 7
    s_and_b32 s{sCB1}, s{sX}, 1
    s_mul_i32 s{sCB1}, s{sCB1}, 7
    s_add_u32 s{sCB1}, s{sCB1}, s{sT1}
    s_cmp_eq_u32 s{sT1}, 7
    s_cselect_b32 s{sCB1}, 14, s{sCB1}
"""]
def entry():
    class SS(Stream):
        def __call__(self, text, tag=None): return Stream.__call__(self, text.replace(' NT', ' nt' if OPT['nt'] else '').replace('MAPPING', MAP[OPT['map47']]), tag)
    S = SS()
    S(f"""
    s_load_dwordx16 s[64:79], s[0:1], 0
    s_load_dwordx8 s[80:87], s[0:1], 64
    s_memrealtime s[40:41]
    s_cmp_ge_u32 s2, 256
    s_cbranch_scc1 L_end
    v_lshrrev_b32 v{vT}, 6, v0
    v_and_b32 v{vL}, 63, v0
    s_and_b32 s{sX}, s2, 7
    v_readfirstlane_b32 s{sW}, v{vT}
    s_lshr_b32 s{sJ}, s2, 3
    MAPPING
    s_mov_b32 s{QF+2}, 0x200000
    s_mov_b32 s{QF+3}, 0x20000
    s_cmp_lt_u32 s{sCB1}, 14
    s_cselect_b32 s{Q1+2}, 0x200000, 0
    s_cselect_b32 s{W1+2}, 0x1c0000, 0
    s_mov_b32 s{Q1+3}, 0x20000
    s_mov_b32 s{W1+3}, 0x20000
    s_lshl_b32 s88, s{sX}, 5
    s_add_u32 s88, s88, s{sJ}
    s_lshl_b32 s88, s88, 2
    s_add_u32 s88, s88, s{sW}
    s_lshl_b32 s88, s88, 11
    s_lshl_b32 s89, s{sRB1}, 2
    s_add_u32 s89, s89, s{sW}
    s_lshl_b32 s89, s89, 15
    s_mul_i32 s90, s{sW}, {16*3584}
    s_lshl_b32 s{sT1}, s{sCB1}, 8
    s_add_u32 s90, s90, s{sT1}
    s_lshl_b32 s58, s{sT0}, 7
    s_add_u32 s58, s58, s89
    s_mul_i32 s59, s{sT0}, {64*3584}
    s_add_u32 s59, s59, s90
    s_lshl_b32 s{sM0q}, s{sW}, 12
    s_add_u32 s{sM0w}, s{sM0q}, 16384
    s_lshr_b32 s{sT1}, s{sJ}, 3
    s_lshl_b32 s{sRB2}, s{sX}, 2
    s_add_u32 s{sRB2}, s{sRB2}, s{sT1}
    s_and_b32 s{sCB2}, s{sJ}, 7
    s_lshl_b32 s42, s{sW}, 3
    s_or_b32 s42, s42, s2
    """)
    if OPT['prof']: S(f"v_mov_b32 v{vPROF}, 0")
    S.extend(codepf())
    a, b, c, d = 232, 233, 234, 235
    S(f"""
    v_lshlrev_b32 v{vL16}, 4, v{vL}
    v_lshrrev_b32 v{a}, 5, v{vL}
    v_and_b32 v{b}, 31, v{vL}
    v_lshlrev_b32 v{b}, 4, v{b}
    v_lshl_add_u32 v236, v{a}, 10, v{b}
    v_lshrrev_b32 v{a}, 3, v{vL}
    v_and_b32 v{b}, 7, v{vL}
    v_lshrrev_b32 v{c}, 4, v{vL}
    v_xor_b32 v{d}, v{b}, v{c}
    v_lshlrev_b32 v{d}, 4, v{d}
    v_lshl_add_u32 v{vQD}, v{a}, 10, v{d}
    v_xor_b32 v{d}, 64, v{vQD}
    v_add_u32 v{vQD+1}, 7168, v{d}
    v_add_u32 v{vQD+2}, 14336, v{vQD}
    v_add_u32 v{vQD+3}, 21504, v{d}
    v_and_b32 v{d}, 15, v{vL}
    v_lshlrev_b32 v237, 2, v{c}
    v_xor_b32 v{d}, v{d}, v237
    v_lshlrev_b32 v{d}, 4, v{d}
    v_mul_u32_u24 v237, 3584, v{c}
    v_add_u32 v{vWD}, v237, v{d}
    v_add_u32 v{vWD+1}, {4*3584-1024}, v{vWD}
    v_add_u32 v{vWD+2}, {8*3584-2048}, v{vWD}
    v_add_u32 v{vWD+3}, {12*3584-3072}, v{vWD}
    v_lshlrev_b32 v{b}, 4, v{b}
    v_lshl_add_u32 v237, v{a}, 10, v{b}
    v_lshlrev_b32 v238, 4, v{a}
    """)
    for bb, n in ((W2, 0x1c0000), (SSK, 0x200000), (WS, WS_SIZE), (OUT, 0x200000), (DBG, 256)):
        S(f"s_mov_b32 s{bb+2}, {0 if (bb == W2 and OPT['x_w2null']) or (bb == SSK and OPT['x_hcnull']) else n}")
    for bb in (W2, SSK, WS, OUT, DBG):
        S(f"s_mov_b32 s{bb+3}, 0x20000")
    S.waitlg()
    stamp(S, "karg")
    S(f"""
    s_cmp_gt_u32 s42, 7
    s_cbranch_scc1 L_nonce_done
    s_or_b32 s40, s40, 1
    v_mov_b32 v241, 0
    v_mov_b32 v240, s40
    s_mov_b64 exec, 1
    global_atomic_cmpswap v241, v[240:241], s[84:85] sc1
    s_mov_b64 exec, -1
    L_nonce_done:
    """)
    S[-3].cls = 'other'
    S(f"""
    s_mov_b64 s[{QF}:{QF+1}], s[64:65]
    s_mov_b64 s[{Q1}:{Q1+1}], s[64:65]
    s_mov_b64 s[{W1}:{W1+1}], s[78:79]
    buffer_load_dwordx4 v[{vROW}:{vROW+3}], v236, {srd(QF)}, s88 offen NT
    buffer_load_dwordx4 v[{vROW+4}:{vROW+7}], v236, {srd(QF)}, s88 offen offset:512 NT
    """)
    mv = Stream()
    mv(f"""
    s_mov_b64 s[{SKK}:{SKK+1}], s[66:67]
    s_mov_b64 s[{KZ}:{KZ+1}], s[66:67]
    s_mov_b64 s[{SVV}:{SVV+1}], s[68:69]
    s_mov_b64 s[{SHK}:{SHK+1}], s[70:71]
    s_mov_b64 s[{SSK}:{SSK+1}], s[72:73]
    s_mov_b64 s[{sDptr}:{sDptr+1}], s[74:75]
    s_mov_b64 s[{W2}:{W2+1}], s[80:81]
    s_mov_b64 s[{OUT}:{OUT+1}], s[82:83]
    s_mov_b64 s[{DBG}:{DBG+1}], s[84:85]
    s_mov_b64 s[{WS}:{WS+1}], s[86:87]
    """)
    S.extend(chunk_dma(0, 58, 59)); S.extend(mv)
    if OPT['tlb']:
        S(f"""
        v_min_u32 v240, 5, v{vL}
        v_lshlrev_b32 v240, 21, v240
        v_mov_b32 v241, 0
        buffer_load_dword a240, v240, {srd(WS)}, 0 offen
        global_load_dword a241, v241, s[66:67]
        global_load_dword a242, v241, s[68:69]
        global_load_dword a243, v241, s[80:81]
        global_load_dword a244, v241, s[82:83]
        """.replace("a24", "a23"))
    S.extend(coff(1))
    return S

def coff(i):
    S = Stream()
    S(f"""
    s_add_u32 s{sT1}, s{sC0}, {i}
    s_and_b32 s{sT1}, s{sT1}, 7
    s_lshl_b32 s{sQoff+i}, s{sT1}, 7
    s_add_u32 s{sQoff+i}, s{sQoff+i}, s89
    s_mul_i32 s{sWoff+i}, s{sT1}, {64*3584}
    s_add_u32 s{sWoff+i}, s{sWoff+i}, s90
    """)
    return S
def codepf():
    S = Stream()
    if OPT['codepf']:
        S(f"""
        s_getpc_b64 s[16:17]
        L_pc:
        s_mov_b32 s18, L_codeend-L_pc
        s_mov_b32 s19, 0x20000
        s_lshl_b32 s20, s{sJ}, 2
        s_add_u32 s20, s20, s{sW}
        s_lshl_b32 s20, s20, 8
        v_lshlrev_b32 v238, 2, v{vL}
        buffer_load_dword a252, v238, s[16:19], s20 offen
        """)
    return S

def kv_pro():
    S = Stream()
    S(f"""
    s_cmp_lg_u32 s{sRB2}, 0
    s_cselect_b32 s{KZ+2}, 0x200000, 0
    s_mov_b32 s{KZ+3}, 0x20000
    s_mov_b32 s{SKK+2}, 0x200000
    s_mov_b32 s{SKK+3}, 0x20000
    s_mov_b32 s{SVV+2}, 0x200000
    s_mov_b32 s{SVV+3}, 0x20000
    s_mov_b32 s{SHK+2}, 4096
    s_mov_b32 s{SHK+3}, 0x20000
    s_lshl_b32 s40, s{sRB2}, 16
    s_lshl_b32 s41, s{sCB2}, 7
    s_add_u32 s40, s40, s41
    s_lshl_b32 s41, s{sW}, 13
    s_add_u32 s41, s41, s40
    s_add_u32 s42, s41, 32768
    s_sub_u32 s40, s40, 8192
    s_max_i32 s40, s40, 0
    s_mul_i32 s43, s{sW}, 1040
    s_lshl_b32 s87, s{sCB2}, 9
    s_lshl_b32 s{sT1}, s{sW}, 7
    s_add_u32 s87, s87, s{sT1}
    v_cmp_gt_u32 vcc, 40, v{vL}
    v_mov_b32 v239, {OOB}
    v_cndmask_b32 v239, v237, v239, vcc
    """)
    return S
def kv_dma():
    S = Stream(); nt = "nt " if OPT['nt'] else ""
    for m0, v, sr, so in ((f"s_add_u32 m0, s43, {KT+1040}", 237, SKK, 41), (f"s_add_u32 m0, s43, {VT}", 237, SVV, 41),
                          (f"s_add_u32 m0, s43, {KT+5*1040}", 237, SKK, 42), (f"s_add_u32 m0, s43, {VT+4*1040}", 237, SVV, 42),
                          (f"s_mov_b32 m0, {KT}", 239, KZ, 40)):
        g = Stream(); g(f"{m0}\nbuffer_load_dwordx4 v{v}, {srd(sr)}, s{so} offen {nt}lds"); S.atomic(g)
    S(f"buffer_load_dwordx4 v[{vSHK}:{vSHK+3}], v238, {srd(SHK)}, s87 offen", "kvd")
    return S

def setup():
    S = Stream()
    S(f"""
    s_and_b32 s{sFH}, s{sW}, 1
    s_lshr_b32 s{sTH}, s{sW}, 1
    s_lshl_b32 s{sCH}, s2, 1
    s_add_u32 s{sCH}, s{sCH}, s{sTH}
    s_lshl_b32 s{sM0b}, s{sW}, 13
    s_mul_i32 s{sW2off}, s{sW}, {448*1024}
    s_lshl_b32 s{sT0}, s{sCB2}, 7
    s_add_u32 s{sW2off}, s{sW2off}, s{sT0}
    s_lshr_b32 s{sRot}, s{sJ}, 3
    s_mul_i32 s{sRot}, s{sRot}, {OPT['rotk']}
    s_add_u32 s{sRot}, s{sRot}, s{sCB2}
    s_mul_i32 s{sT0}, s{sX}, {OPT['rotx']}
    s_add_u32 s{sRot}, s{sRot}, s{sT0}
    s_mul_i32 s{sT0}, s{sRot}, 37
    s_lshr_b32 s{sT0}, s{sT0}, 8
    s_mul_i32 s{sT0}, s{sT0}, 7
    s_sub_u32 s{sRot}, s{sRot}, s{sT0}
    s_lshl_b32 s{sT0}, s{sRot}, 16
    s_add_u32 s{sW2off}, s{sW2off}, s{sT0}
    s_lshl_b32 s{sStatC}, s{sRB1}, 1
    s_add_u32 s{sStatC}, s{sStatC}, s{sTH}
    s_mul_i32 s{sHst}, s{sStatC}, {2*112*1024}
    s_lshl_b32 s{sStatC}, s{sStatC}, 10
    s_add_u32 s{sStatC}, s{sStatC}, {STATS}
    s_lshl_b32 s{sT0}, s{sCB1}, 1
    s_add_u32 s{sT0}, s{sT0}, s{sFH}
    s_lshl_b32 s{sT0}, s{sT0}, 12
    s_add_u32 s{sHst}, s{sHst}, s{sT0}
    s_lshl_b32 s{sT0}, s{sTH}, 11
    s_xor_b32 s{sT1}, s{sT0}, 2048
    s_add_u32 s{sHst+2}, s{sHst}, s{sT1}
    s_add_u32 s{sHst}, s{sHst}, s{sT0}
    s_add_u32 s{sHst+1}, s{sHst}, {112*1024}
    s_add_u32 s{sHst+3}, s{sHst+2}, {112*1024}
    s_lshl_b32 s{sStatW}, s{sX}, 5
    s_add_u32 s{sStatW}, s{sStatW}, s{sJ}
    s_lshl_b32 s{sStatW}, s{sStatW}, 7
    s_lshl_b32 s{sT0}, s{sW}, 4
    s_add_u32 s{sStatW}, s{sStatW}, s{sT0}
    s_add_u32 s{sStatW}, s{sStatW}, {STATS}
    """)
    a, b, c, d, e, f = 240, 241, 242, 243, 244, 245
    a, b, c, d, e, f = 244, 245, 246, 247, 248, 249
    S(f"""
    v_mov_b32 v{a}, {OOB}
    v_cmp_eq_u32 vcc, 0, v{vL}
    v_and_b32 v{b}, 31, v{vL}
    v_lshrrev_b32 v{c}, 5, v{vL}
    v_cndmask_b32 v{vL0}, v{a}, 0, vcc
    v_lshrrev_b32 v{d}, 3, v{b}
    v_and_b32 v{e}, 7, v{vL}
    v_lshlrev_b32 v{e}, 3, v{e}
    v_lshl_add_u32 v{vSTV}, v{d}, 7, v{e}
    """)
    S(f"""
    v_lshrrev_b32 v{d}, 1, v{b}
    v_and_b32 v{d}, 7, v{d}
    v_xor_b32 v{d}, v{d}, v{c}
    v_lshlrev_b32 v{d}, 4, v{d}
    v_lshl_add_u32 v{d}, v{b}, 7, v{d}
    s_lshl_b32 s{sT0}, s{sTH}, 13
    v_add_u32 v{vQA}, s{sT0}, v{d}
    v_xor_b32 v{vQA+1}, 32, v{vQA}
    v_xor_b32 v{vQA+2}, 64, v{vQA}
    v_xor_b32 v{vQA+3}, 0x60, v{vQA}
    """)
    for k in range(4): S(f"v_add_u32 v{vQA+4+k}, 0x10000, v{vQA+k}")
    S(f"""
    v_bfe_u32 v{d}, v{vL}, 2, 2
    v_and_b32 v{e}, 3, v{vL}
    v_lshlrev_b32 v{e}, 3, v{e}
    v_bfe_u32 v{f}, v{vL}, 4, 1
    v_lshl_add_u32 v{e}, v{f}, 5, v{e}
    s_lshl_b32 s{sT0}, s{sFH}, 1
    s_add_u32 s{sT0}, s{sT0}, s{sTH}
    v_xor_b32 v{f}, s{sT0}, v{d}
    v_lshl_add_u32 v{f}, v{f}, 6, v{e}
    v_lshl_add_u32 v{f}, v{d}, 8, v{f}
    v_lshl_add_u32 v{vWA}, v{c}, 11, v{f}
    v_xor_b32 v{vWA+1}, 64, v{vWA}
    v_add_u32 v{vWA+2}, 0x10000, v{vWA}
    v_add_u32 v{vWA+3}, 0x10000, v{vWA+1}
    v_lshrrev_b32 v{f}, 1, v{d}
    v_xor_b32 v{f}, s{sFH}, v{f}
    v_lshl_add_u32 v{f}, v{f}, 6, v{e}
    v_lshl_add_u32 v{f}, v{d}, 7, v{f}
    v_lshl_add_u32 v{f}, v{c}, 9, v{f}
    v_add_u32 v{vTA}, s{sM0b}, v{f}
    v_xor_b32 v{vTA+1}, 64, v{vTA}
    v_add_u32 v{vTA+2}, 0x10000, v{vTA}
    v_add_u32 v{vTA+3}, 0x10000, v{vTA+1}
    v_lshl_add_u32 v{f}, v{d}, 6, v{e}
    v_lshl_add_u32 v{f}, v{c}, 8, v{f}
    s_add_u32 s{sT0}, s{sM0b}, {E + 2048}
    v_add_u32 v{vYA}, s{sT0}, v{f}
    v_add_u32 v{vYW}, s{sT0}, v{vL16}
    """)
    n, g = d, e
    S(f"""
    v_and_b32 v{n}, 15, v{vL}
    v_lshrrev_b32 v{g}, 4, v{vL}
    v_and_b32 v{f}, 1, v{g}
    v_cmp_eq_u32 vcc, v{n}, v{f}
    v_mov_b32 v{f}, 0x3f803f80
    v_lshlrev_b32 v{a}, 4, v{g}
    v_cndmask_b32 v{f}, 0, v{f}, vcc
    v_lshl_add_u32 v{a}, v{n}, 6, v{a}
    v_accvgpr_write_b32 a{SEL}, v{f}
    v_accvgpr_write_b32 a{SEL+1}, v{f}
    v_accvgpr_write_b32 a{SEL+2}, v{f}
    v_accvgpr_write_b32 a{SEL+3}, v{f}
    s_lshl_b32 s{sT0}, s{sFH}, 8
    s_lshl_b32 s{sT1}, s{sTH}, 7
    s_add_u32 s{sT0}, s{sT0}, s{sT1}
    s_add_u32 s{sT0}, s{sT0}, {CS}
    v_add_u32 v{a}, s{sT0}, v{a}
    v_add_u32 v{f}, {DUMP}, v{vL16}
    v_cmp_gt_u32 vcc, 2, v{n}
    v_lshlrev_b32 v{b}, 4, v{c}
    v_add_u32 v{vCSA}, s{sT0}, v{b}
    v_cndmask_b32 v{vCSW}, v{f}, v{a}, vcc
    v_xor_b32 v{vCSA+1}, 0x80, v{vCSA}
    """)
    assert CS % 256 == 16 or True
    S(f"""
    v_lshrrev_b32 v{a}, 3, v{vL}
    v_and_b32 v{b}, 7, v{vL}
    v_bfe_u32 v{f}, v{vL}, 4, 1
    v_lshlrev_b32 v{f}, 2, v{f}
    v_xor_b32 v{b}, v{b}, v{f}
    v_lshlrev_b32 v{b}, 4, v{b}
    v_lshl_add_u32 v{vBD}, v{a}, 10, v{b}
    v_add_u32 v{vBD+1}, 7168, v{vBD}
    v_add_u32 v{vBD+2}, 14336, v{vBD}
    v_add_u32 v{vBD+3}, 21504, v{vBD}
    """)
    S(f"""
    v_lshlrev_b32 v{a}, 1, v{n}
    v_lshl_add_u32 v{a}, v{g}, 4, v{a}
    v_and_b32 v{b}, 1, v{n}
    v_cmp_eq_u32 vcc, 0, v{b}
    v_mov_b32 v{f}, {4160 - 2}
    s_mul_i32 s{sT0}, s{sTH}, 8320
    s_lshl_b32 s{sT1}, s{sFH}, 6
    v_cndmask_b32 v{b}, 0, v{f}, vcc
    s_add_u32 s{sT0}, s{sT0}, s{sT1}
    s_add_u32 s{sT0}, s{sT0}, {HC + 32 - 30}
    v_add3_u32 v{vCA}, v{a}, v{b}, s{sT0}
    v_add_u32 v{vCA+1}, 1024, v{vCA}
    v_add_u32 v{vCA+2}, 2048, v{vCA}
    v_add_u32 v{vCA+3}, 3072, v{vCA}
    s_mul_i32 s{sT0}, s{sTH}, 4608
    s_add_u32 s{sT0}, s{sT0}, {UR}
    v_lshlrev_b32 v{a}, 5, v{n}
    v_lshlrev_b32 v{b}, 4, v{g}
    v_sub_u32 v{b}, v{b}, v{a}
    s_add_u32 s{sT1}, s{sT1}, s{sT0}
    s_add_u32 s{sT1}, s{sT1}, 480
    v_add_u32 v{vCB}, s{sT1}, v{b}
    v_lshl_add_u32 v{b}, v{g}, 3, v{a}
    s_lshl_b32 s{sT1}, s{sFH}, 11
    s_sub_u32 s{sCnt}, s{sT0}, s{sT1}
    s_add_u32 s{sCnt}, s{sCnt}, {4088 - 1536}
    v_sub_u32 v{vCD}, s{sCnt}, v{b}
    s_add_u32 s{sT1}, s{sT1}, s{sT0}
    v_add_u32 v{vCU}, s{sT1}, v{vL16}
    v_and_b32 v{b}, 0x1f0, v{vL16}
    s_add_u32 s{sT0}, s{sT0}, 4096
    v_add_u32 v{b}, s{sT0}, v{b}
    v_mov_b32 v252, 0
    v_mov_b32 v253, 0
    v_mov_b32 v254, 0
    v_mov_b32 v255, 0
    ds_write_b128 v{b}, v[252:255]
    s_add_u32 s{sT0}, s{sM0b}, {3*32768}
    v_add_u32 v{vCX}, s{sT0}, v{vL16}
    v_xor_b32 v{vCXR}, 0x2000, v{vCX}
    v_and_b32 v{b}, 1, v{g}
    v_lshl_add_u32 v{a}, v{b}, 9, v{a}
    v_lshrrev_b32 v{b}, 1, v{g}
    v_lshl_add_u32 v{vCY}, v{b}, 4, v{a}
    v_lshlrev_b32 v{vPA}, 7, v{n}
    v_min_u32 v{a}, 6, v{vL}
    v_lshlrev_b32 v{vPB}, {2 if OPT['packb'] else 7}, v{a}
    v_and_b32 v{a}, 31, v{vL}
    v_lshlrev_b32 v{vPC}, 8, v{a}
    """)
    S(f"""
    v_lshrrev_b32 v{b}, 2, v{vL}
    v_and_b32 v{f}, 3, v{vL}
    v_lshlrev_b32 v{f}, 4, v{f}
    v_lshl_add_u32 v{vOS}, v{b}, 10, v{f}
    v_lshl_add_u32 v{vYL}, v{b}, 12, v{f}
    v_lshlrev_b32 v{d}, 4, v{g}
    v_xor_b32 v{vXD}, v{vOS}, v{d}
    v_mul_u32_u24 v{b}, 80, v{b}
    s_add_u32 s{sT0}, s{sM0b}, {E + 4096}
    v_add3_u32 v{vOR}, v{b}, v{f}, s{sT0}
    v_mul_u32_u24 v{b}, 80, v{a}
    v_lshl_add_u32 v{b}, v{c}, 3, v{b}
    v_add_u32 v{vOW}, s{sT0}, v{b}
    v_bfe_u32 v{b}, v{vL}, 2, 2
    v_lshlrev_b32 v{b}, 4, v{b}
    v_lshl_add_u32 v{b}, v{a}, 6, v{b}
    v_lshl_add_u32 v{b}, v{c}, 3, v{b}
    s_add_u32 s{sT0}, s{sM0b}, {E}
    v_add_u32 v{vXA}, s{sT0}, v{b}
    v_add_u32 v{vRW}, s{sM0b}, v{vL16}
    v_xor_b32 v{vRR}, 0x4000, v{vRW}
    v_xor_b32 v{vRR+1}, 0x6000, v{vRW}
    v_xor_b32 v{vRR+2}, 0x2000, v{vRW}
    """)
    return S

def setup_b():
    if OPT['packb']:
        pk = f"s_mul_i32 s{sT1}, s{sT0}, 37\ns_lshr_b32 s{sT1}, s{sT1}, 8\ns_lshr_b32 s{sFBo}, s{sFBo}, 3\ns_add_u32 s{sFBo}, s{sFBo}, s{sT1}\ns_lshl_b32 s{sFBo}, s{sFBo}, 7\ns_mul_i32 s{sT1}, s{sT1}, 7\ns_sub_u32 s{sT0}, s{sT0}, s{sT1}\ns_lshl_b32 s{sT0}, s{sT0}, 2\ns_add_u32 s{sFBo}, s{sFBo}, s{sT0}\ns_add_u32 s{sFBo}, s{sFBo}, {FLB}"
    else:
        pk = f"s_add_u32 s{sFBo}, s{sFBo}, s{sT0}\ns_lshl_b32 s{sFBo}, s{sFBo}, 7\ns_add_u32 s{sFBo}, s{sFBo}, {FLB}"
    class SS(Stream):
        def __call__(self, text, tag=None): return Stream.__call__(self, text.replace('PACKB', pk), tag)
    S = SS()
    S(f"""
    s_lshl_b32 s{sFBo}, s{sRB1}, 1
    s_add_u32 s{sFBo}, s{sFBo}, s{sTH}
    s_lshl_b32 s{sFBo}, s{sFBo}, 5
    s_lshl_b32 s{sT0}, s{sCB1}, 1
    s_add_u32 s{sT0}, s{sT0}, s{sFH}
    PACKB
    s_lshl_b32 s{sT0}, s{sCB2}, 2
    s_add_u32 s{sT0}, s{sT0}, s{sW}
    s_lshl_b32 s{sKV0}, s{sT0}, 16
    s_lshl_b32 s{sT1}, s{sRB2}, 7
    s_sub_u32 s{sKV0}, s{sKV0}, s{sT1}
    s_add_u32 s{sKV0}, s{sKV0}, {KVR + 1984*2}
    s_add_u32 s{sKV1}, s{sKV0}, 4096
    s_lshl_b32 s{sFAo}, s{sT0}, 5
    s_add_u32 s{sFAo}, s{sFAo}, s{sRB2}
    s_lshl_b32 s{sFAo}, s{sFAo}, 7
    s_add_u32 s{sFAo}, s{sFAo}, {FLA}
    s_lshr_b32 s{sFAp}, s{sCH}, 4
    s_lshl_b32 s{sFAp}, s{sFAp}, 12
    s_lshl_b32 s{sT0}, s{sFH}, 11
    s_sub_u32 s{sFAp}, s{sFAp}, s{sT0}
    s_add_u32 s{sFAp}, s{sFAp}, {FLA + 2048}
    s_lshl_b32 s{sHC}, s{sCH}, 12
    s_add_u32 s{sU}, s{sHC}, s{sT0}
    s_add_u32 s{sYs}, s{sU}, {YT}
    s_add_u32 s{sU}, s{sU}, {KVR}
    s_lshl_b32 s{sT0}, s{sFH}, 1
    s_add_u32 s{sHC}, s{sHC}, s{sT0}
    """)
    return S
def setup_c():
    S = Stream()
    S(f"""
    s_lshl_b32 s{sFBp}, s{sRB2}, {2 if OPT['packb'] else 5}
    s_mul_i32 s42, s{sW}, {1 if OPT['packb'] else 7}
    s_add_u32 s{sFBp}, s{sFBp}, s42
    s_lshl_b32 s{sFBp}, s{sFBp}, 7
    s_add_u32 s{sFBp}, s{sFBp}, {FLB}
    s_lshl_b32 s{sFCo}, s{sCH}, 1
    s_add_u32 s{sFCo}, s{sFCo}, s{sFH}
    s_lshl_b32 s{sFCo}, s{sFCo}, 7
    s_add_u32 s{sFCo}, s{sFCo}, {FLC}
    s_lshl_b32 s42, s{sCB2}, 1
    s_add_u32 s42, s42, s{sFH}
    s_lshl_b32 s{sFCp}, s42, 13
    s_lshr_b32 s43, s{sRB2}, 4
    s_lshl_b32 s43, s43, 7
    s_add_u32 s{sFCp}, s{sFCp}, s43
    s_add_u32 s{sFCp}, s{sFCp}, {FLC}
    s_lshl_b32 s{sYl}, s42, 17
    s_lshl_b32 s{sXO}, s42, 6
    s_lshl_b32 s42, s{sRB2}, 1
    s_add_u32 s42, s42, s{sTH}
    s_lshl_b32 s43, s42, 6
    s_add_u32 s{sYl}, s{sYl}, s43
    s_add_u32 s{sYl}, s{sYl}, {YT}
    s_lshl_b32 s43, s42, 15
    s_add_u32 s{sXO}, s{sXO}, s43
    s_lshl_b32 s{sStatF}, s42, 9
    s_add_u32 s{sStatF}, s{sStatF}, {STATS}
    s_mul_i32 s{sHLo}, s42, {112*1024}
    s_xor_b32 s42, s42, 1
    s_mul_i32 s{sHL}, s42, {112*1024}
    s_mul_i32 s42, s{sW}, {28*1024}
    s_lshl_b32 s43, s{sRot}, 12
    s_add_u32 s42, s42, s43
    s_add_u32 s{sHL}, s{sHL}, s42
    s_add_u32 s{sHLo}, s{sHLo}, s42
    """)
    return S

def hoffs2():
    S = Stream([Pseudo('GATE', 'c5m')]); S.extend(hoffs()); return Stream(S[1:])
def hoffs():
    S = Stream()
    g = Stream(); g(f"s_mov_b64 s[{WSO}:{WSO+1}], s[{WS}:{WS+1}]"); S.atomic(g)
    S(f"s_sub_u32 s{sHLo}, s{sHLo}, s{sHL}")
    for g in range(7):
        if g == 0: S(f"s_mov_b32 s64, s{sHL}")
        else:
            t = Stream(); t(f"s_cmp_eq_u32 s{sRot}, {7-g}\ns_cselect_b32 s78, {7*4096}, 0\ns_add_u32 s{64+g}, s{63+g}, 4096\ns_sub_u32 s{64+g}, s{64+g}, s78"); S.atomic(t)
        S(f"s_add_u32 s{71+g}, s{64+g}, s{sHLo}")
    return S

def nonce_get():
    S = Stream()
    S(f"s_load_dword s{sN}, s[{DBG}:{DBG+1}], 0")
    return S
def nonce_use(N='N'):
    S = Stream(); g = Stream()
    g(f"s_waitcnt lgkmcnt(0)\ns_cmp_eq_u32 s{sN}, 0\ns_cbranch_scc1 L_rare{N}\nL_back{N}:\nv_mov_b32 v{vN}, s{sN}")
    S.atomic(g)
    rare(f"""
    L_rare{N}:
    s_mov_b32 s{sCnt}, 0
    {"v_writelane_b32 v62, 1, 51" if OPT['prof'] else ""}
    L_rl{N}:
    s_sleep 2
    buffer_load_dword v{vN}, off, {srd(DBG)}, 0 sc1
    s_waitcnt vmcnt(0)
    v_readfirstlane_b32 s{sN}, v{vN}
    s_cmp_lg_u32 s{sN}, 0
    s_cbranch_scc1 L_back{N}
    s_add_u32 s{sCnt}, s{sCnt}, 1
    s_cmp_lt_u32 s{sCnt}, 0x4000
    s_cbranch_scc1 L_rl{N}
    s_branch L_back{N}
    """)
    return S

def stats():
    S = Stream(); X = 176; A = 192; B = 193; C = 194
    for i in range(8):
        S(f"v_lshlrev_b32 v{X+2*i}, 16, v{vROW+i}\nv_and_b32 v{X+2*i+1}, 0xffff0000, v{vROW+i}")
    def allred(r):
        for m in ("quad_perm:[1,0,3,2]", "quad_perm:[2,3,0,1]", "row_half_mirror", "row_mirror"):
            S(f"v_add_f32_dpp v{r}, v{r}, v{r} {m} row_mask:0xf bank_mask:0xf")
        S(f"v_mov_b32 v{C}, v{r}\nv_permlane16_swap_b32 v{r}, v{C}\nv_add_f32 v{r}, v{r}, v{C}")
    S(f"v_add_f32 v{A}, v{X}, v{X+1}\nv_add_f32 v{B}, v{X+2}, v{X+3}")
    for i in range(4, 16, 2): S(f"v_add_f32 v{A}, v{A}, v{X+i}\nv_add_f32 v{B}, v{B}, v{X+i+1}")
    S(f"v_add_f32 v{A}, v{A}, v{B}")
    allred(A)
    S(f"v_mul_f32 v{A}, {f2u(1/512):#x}, v{A}")
    for i in range(16): S(f"v_sub_f32 v{X+i}, v{X+i}, v{A}")
    S(f"v_mul_f32 v{B}, v{X}, v{X}\nv_mul_f32 v{C+1}, v{X+1}, v{X+1}")
    for i in range(2, 16, 2): S(f"v_fmac_f32 v{B}, v{X+i}, v{X+i}\nv_fmac_f32 v{C+1}, v{X+i+1}, v{X+i+1}")
    S(f"v_add_f32 v{B}, v{B}, v{C+1}")
    allred(B)
    S(f"""
    v_mul_f32 v{B}, {f2u(1/512):#x}, v{B}
    v_cvt_pk_bf16_f32 v{B}, v{B}, v{B}
    v_lshlrev_b32 v{B}, 16, v{B}
    v_add_f32 v{B}, {f2u(1e-5):#x}, v{B}
    v_cvt_pk_bf16_f32 v{B}, v{B}, v{B}
    v_lshlrev_b32 v{B}, 16, v{B}
    v_sqrt_f32 v{B}, v{B}
    v_and_b32 v{C}, 31, v{vL}
    v_cvt_pk_bf16_f32 v196, v{A}, v{B}
    v_lshrrev_b32 v{A}, 2, v{vL}
    v_mov_b32 v{B}, {OOB}
    """)
    g = Stream(); g(f"v_cmp_eq_u32 vcc, 0, v{C}\nv_cndmask_b32 v198, v{B}, v{A}, vcc"); S.atomic(g)
    return S
def stats_store():
    S = Stream()
    S(f"v_mov_b32 v197, v{vN}\nbuffer_store_dwordx2 v[196:197], v198, {srd(WS)}, s{sStatW} offen sc1")
    return S

def flag_store(soff, srdb, tag):
    S = Stream(); S.waitvm(tag)
    S(f"buffer_store_dword v{vN}, v{vL0}, {srd(srdb)}, s{soff} offen sc1")
    return S

def kv_addr():
    S = Stream(); a1, a2, a3 = 252, 253, 254
    S(f"""
    v_and_b32 v{a1}, 7, v{vL}
    v_mul_u32_u24 v{a2}, 1040, v{a1}
    v_lshrrev_b32 v{a3}, 3, v{vL}
    v_lshl_add_u32 v{a2}, v{a3}, 2, v{a2}
    s_lshl_b32 s{sT0}, s{sW}, 5
    s_add_u32 s{sT0}, s{sT0}, {KT}
    v_add_u32 v{a2}, s{sT0}, v{a2}
    v_add_u32 v255, 1040, v{a2}
    v_xor_b32 v{a1}, 7, v{a1}
    v_lshlrev_b32 v{a1}, 4, v{a1}
    v_lshl_add_u32 v{a1}, v{a3}, 13, v{a1}
    v_add_u32 v{a3}, {VT-KT}, v{a2}
    """)
    return S
def kvpre():
    S = Stream()
    KR = 232; VR = 244; KP = 176; WF = 220; O = 200
    S(f"ds_read2_b32 v[{KR}:{KR+1}], v253 offset0:160 offset1:192\nds_read_b32 v{KR+2}, v253 offset:896")
    for p in range(4): S(f"ds_read2_b32 v[{KR+4+2*p}:{KR+5+2*p}], v255 offset0:{64*p} offset1:{64*p+32}")
    for p in range(4): S(f"ds_read2_b32 v[{VR+2*p}:{VR+1+2*p}], v254 offset0:{64*p} offset1:{64*p+32}")
    for j in range(4):
        for c in range(2):
            src = vSHK + 2*c + (j >> 1)
            S(f"v_and_b32 v{WF+2*j+c}, 0xffff0000, v{src}" if j & 1 else f"v_lshlrev_b32 v{WF+2*j+c}, 16, v{src}")
    ri = lambda r: r + 3 if r < 0 else r + 4
    pr = lambda b: f"v[{b}:{b+1}]"
    for r in range(-3, 8):
        S(f"v_lshlrev_b32 v{KP+2*ri(r)}, 16, v{KR+ri(r)}\nv_and_b32 v{KP+2*ri(r)+1}, 0xffff0000, v{KR+ri(r)}")
    for t in range(8): S(f"v_pk_mul_f32 {pr(O+2*t)}, {pr(KP+2*ri(t))}, {pr(WF)}")
    for jj in range(1, 4):
        for t in range(8): S(f"v_pk_fma_f32 {pr(O+2*t)}, {pr(KP+2*ri(t-jj))}, {pr(WF+2*jj)}, {pr(O+2*t)}")
    for t in range(8): S(f"v_lshlrev_b32 v{KP+2*t}, 16, v{VR+t}\nv_and_b32 v{KP+2*t+1}, 0xffff0000, v{VR+t}")
    for t in range(8): S(f"v_pk_mul_f32 {pr(O+2*t)}, {pr(O+2*t)}, {pr(KP+2*t)}")
    for ch, Pk in enumerate((232, 236)):
        for q in range(4): S(f"v_cvt_pk_bf16_f32 v{Pk+q}, v{O+2*(7-2*q)+ch}, v{O+2*(6-2*q)+ch}")
        S(f"buffer_store_dwordx4 v[{Pk}:{Pk+3}], v252, {srd(WS)}, s{sKV0+ch} offen sc1", f"kv{ch}")
    return S

def spare1():
    S = Stream()
    S("L_spare1:")
    S(f"""
    s_lshl_b32 s64, s{sX}, 2
    s_and_b32 s65, s{sJ}, 3
    s_add_u32 s64, s64, s65
    s_lshl_b32 s64, s64, 16
    s_lshl_b32 s66, s{sW}, 13
    s_add_u32 s64, s64, s66
    s_add_u32 s64, s64, 384
    s_add_u32 s66, s64, 32768
    """)
    if OPT['c3pf']:
        S(f"""
        buffer_load_dwordx4 a[64:67], v237, {srd(SKK)}, s64 offen
        buffer_load_dwordx4 a[68:71], v237, {srd(SVV)}, s64 offen
        buffer_load_dwordx4 a[72:75], v237, {srd(SKK)}, s66 offen
        buffer_load_dwordx4 a[76:79], v237, {srd(SVV)}, s66 offen
        """)
    if OPT['kvpos'] >= 2: S.extend(kv_dma())
    S(f"v_mov_b32 v4, v237")
    S.extend(nonce_get()); S.extend(setup_b()); S.extend(setup_c()); S.extend(nonce_use('M')); S.extend(stats_store())
    S.extend(kv_addr())
    S(f"""
    s_mul_i32 s64, s65, {448*1024}
    s_lshl_b32 s66, s{sW}, 14
    s_add_u32 s70, s64, s66
    s_add_u32 s70, s70, 384
    s_mul_i32 s65, s{sX}, {OPT['rotx']}
    s_add_u32 s71, s65, 3
    """)
    def c3(n):
        for i in range(n):
            S(f"""
            s_mul_i32 s69, s71, 37
            s_lshr_b32 s69, s69, 8
            s_mul_i32 s69, s69, 7
            s_sub_u32 s67, s71, s69
            s_lshl_b32 s67, s67, 16
            s_add_u32 s67, s67, s70
            s_add_u32 s68, s67, 8192
            s_add_u32 s71, s71, 1
            buffer_load_dwordx4 a[80:83], v4, {srd(W2)}, s67 offen
            buffer_load_dwordx4 a[84:87], v4, {srd(W2)}, s68 offen
            """)
            S[-1].wr = set(); S[-2].wr = set()
    if OPT['kvpos'] >= 2:
        c3(OPT['c3a']); S.waitvm("kvd")
    else:
        c3(OPT['c3a']); S(f"s_waitcnt vmcnt({2*OPT['c3a'] + 1 + (4 if OPT['c3pf'] else 0)})")
    S("s_barrier")
    S.extend(kvpre())
    S.extend(flag_init()); S(f"s_mov_b32 s{sDone}, 0x80000000")
    S("s_barrier")
    if OPT['kvpos'] >= 2: S.extend(dh_loads())
    S.extend(SPARE_W2[:8])
    S.extend(flag_store(sFAo, WS, "kv1"))
    stamp(S, "kvpub")
    S.extend(SPARE_W2[8:])
    c3(OPT['c3b'])
    if OPT['tp'] >= 0: S.extend(w2touch(range(OPT['tp'], 7)))
    if OPT['sweep']:
        S(f"""
        s_lshl_b32 s66, s{sW}, 7
        s_add_u32 s64, s64, s66
        s_add_u32 s65, s65, s{sW}
        s_mov_b32 s66, {OPT['swn']}
        s_cmp_eq_u32 s{sW}, 3
        s_cbranch_scc1 L_swe
        L_sw:
        s_mul_i32 s69, s65, 37
        s_lshr_b32 s69, s69, 8
        s_mul_i32 s69, s69, 7
        s_sub_u32 s67, s65, s69
        s_lshl_b32 s67, s67, 16
        s_add_u32 s67, s67, s64
        """)
        for n in range(8):
            S(f"buffer_load_dwordx4 a[232:235], v4, {srd(W2)}, s67 offen\ns_add_u32 s67, s67, 8192"); S[-2].cls = 'other'
        S(f"""
        s_add_u32 s65, s65, 1
        s_sub_u32 s66, s66, 1
        s_cmp_lg_u32 s66, 0
        s_cbranch_scc1 L_sw
        L_swe:
        s_waitcnt vmcnt(0)
        """)
    S.extend(hpad()); S.extend(hoffs())
    if OPT['trg1'] >= 1: S.extend(Stream(w2_tr(0)[1:]))
    S(pollA_load()); S.extend(u_loads(True))
    S("s_waitcnt vmcnt(0) lgkmcnt(0)\ns_branch L_join")
    return S

def w2touch(ps):
    S = Stream(); a, b = 250, 251
    g = Stream(); g(f"""v_cmp_gt_u32 vcc, 16, v{vL}
    v_lshlrev_b32 v{a}, 10, v{vL}
    v_mov_b32 v{b}, {OOB}
    v_cndmask_b32 v{a}, v{b}, v{a}, vcc"""); S.atomic(g)
    S(f"""s_lshr_b32 s79, s{sJ}, 3
    s_lshl_b32 s79, s79, 14
    s_mul_i32 s71, s{sW}, {448*1024}
    s_add_u32 s79, s79, s71
    s_lshl_b32 s71, s{sCB2}, 7
    s_add_u32 s79, s79, s71""")
    for p in ps:
        g = Stream(); g(f"""s_add_u32 s{sCnt}, s{sRot}, {p}
        s_cmp_ge_u32 s{sCnt}, 7
        s_cselect_b32 s71, 7, 0
        s_sub_u32 s{sCnt}, s{sCnt}, s71
        s_lshl_b32 s{sCnt}, s{sCnt}, 16
        s_add_u32 s{sCnt}, s{sCnt}, s79
        buffer_load_dword a236, v{a}, {srd(W2)}, s{sCnt} offen"""); g[-1].wr = set(); S.atomic(g)
    return S

def htouch():
    S = Stream()
    if OPT['htouch']:
        S(f"v_and_b32 v230, 31, v{vL}\nv_lshrrev_b32 v231, 5, v{vL}\nv_mul_u32_u24 v231, {112*1024}, v231\nv_lshl_add_u32 v230, v230, 7, v231\ns_lshl_b32 s87, s{sTH}, 11\ns_sub_u32 s87, s{sHst}, s87")
        S(f"buffer_load_dword a236, v230, {srd(WS)}, s87 offen")
        if OPT['htouch'] > 1: S(f"buffer_load_dword a237, v230, {srd(WS)}, s87 offen offset:64")
    return S

WSF = 48; sDone = 87
def flag_try(soff, tag, last=False, first=False):
    S = Stream(); g = Stream()
    if last:
        g.waitvm(tag); g(f"s_cmp_eq_u32 s{sDone}, 0")
    else:
        g(f"s_getreg_b32 s{WSF+2}, hwreg(HW_REG_IB_STS)\ns_and_b32 s{WSF+2}, s{WSF+2}, 0xc0000f\ns_or_b32 s{WSF+2}, s{WSF+2}, s{sDone}")
        g.append(Pseudo('CMPVM', (tag, WSF+2)))
    g(f"s_cselect_b32 s{WSF+2}, {WS_SIZE}, 0")
    g(f"s_mov_b32 s{sDone}, 0" if last else f"s_cselect_b32 s{sDone}, 0x80000000, s{sDone}")
    g(f"buffer_store_dword v{vN}, v{vL0}, {srd(WSF)}, s{soff} offen sc1")
    S.atomic(g)
    return S
def flag_init():
    S = Stream(); S(f"s_mov_b64 s[{WSF}:{WSF+1}], s[{WS}:{WS+1}]\ns_mov_b32 s{sDone}, 0"); return S

def dh_loads():
    S = Stream()
    g = Stream(); g(f"s_lshl_b32 s{sDv}, s2, 2\nv_mov_b32 v219, s{sDv}\nglobal_load_dword a248, v219, s[{sDptr}:{sDptr+1}]"); S.atomic(g)
    g = Stream(); g(f"s_lshl_b32 s{sDv}, s{sCH}, 12\nbuffer_load_dword a249, off, {srd(SSK)}, s{sDv}"); S.atomic(g)
    return S

def hcopy_dma():
    S = Stream()
    S(f"s_mul_i32 s{sT0}, s{sW}, 4160")
    dma_n(S, vL16, SSK, sHC, f"s_add_u32 m0, s{sT0}, {HC+32}", "hc", samev=True, nt=OPT['hcnt'])
    return S
def hpad():
    S = Stream()
    S(f"v_accvgpr_read_b32 v230, a248\nv_accvgpr_read_b32 v231, a249\ns_lshl_b32 s{sT1}, s{sTH}, 4\nv_lshrrev_b32 v230, s{sT1}, v230\nv_lshlrev_b32 v230, 16, v230\nv_lshlrev_b32 v231, 16, v231\nv_mul_lo_u32 v231, v231, s{sFH}\nv_readfirstlane_b32 s{sDv}, v230")
    S(f"s_mul_i32 s{sT1}, s{sW}, 4160\nv_and_b32 v230, 7, v{vL}")
    g = Stream(); g(f"v_cmp_eq_u32 vcc, 7, v230\nv_lshlrev_b32 v230, 2, v230\ns_add_u32 s{sT1}, s{sT1}, {HC}\nv_cndmask_b32 v231, 0, v231, vcc\nv_add_u32 v230, s{sT1}, v230\nds_write_b32 v230, v231")
    S.atomic(g)
    return S

def g1_set(n): return FR + 16 * (n % 3)
def g1_reads(n):
    if n >= 32: return []
    i, ks = divmod(n, 4)
    st = g1_set(n); slot = i & 3; hi = slot >> 1; off = (slot & 1) * 32768
    L = []
    for u in range(2):
        for rd in range(2):
            L.append(f"ds_read_b64_tr_b16 v[{st+4*u+2*rd}:{st+4*u+2*rd+1}], v{vWA+2*hi+u} offset:{off+16384+ks*4096+rd*1024}")
    for tt in range(2):
        L.append(f"ds_read_b128 v[{st+8+4*tt}:{st+11+4*tt}], v{vQA+4*hi+ks} offset:{off+tt*4096}")
    return [L[0], L[1], L[4], L[5], L[2], L[3]]

def stat_loads(att):
    return [f"buffer_load_dwordx2 v[{STL+4*att+2*tt}:{STL+4*att+2*tt+1}], v{vSTV}, {srd(WS)}, s{sStatC} offen offset:{tt*512} sc1" for tt in range(2)]

def gemm1():
    S = Stream(); CAP = OPT['cap']
    S.waitvm("c0"); S("s_barrier")
    stamp(S, "c0")
    for t in g1_reads(0): S(t)
    for t in g1_reads(1): S(t, 'fr1')
    for i in range(8):
        S.mark(f"c{i}a")
        for ks in range(4):
            n0 = 4*i + ks; st = g1_set(n0); first = n0 == 0
            rds = g1_reads(n0 + 2)
            bar = (ks == 1 and i < 7) or n0 == 30
            if n0 == 1: S.mark("c0h")
            if n0 > 0: S.waitlg(f'fr{n0}')
            small = [st] if n0 < 30 else ([st, g1_set(31)] if n0 == 30 else [])
            for n, (u, tt) in enumerate([(0, 0), (0, 1), (1, 0), (1, 1)]):
                acc = ACC + 16 * (2*u + tt)
                c = "0" if first else vr(acc, 16)
                if bar and n == 3:
                    S.mark(f"c{i}m")
                    if i == OPT['kvpos']:
                        S.waitvm("kvd"); S("s_barrier"); S.extend(kvpre())
                        if OPT['prof'] in (2, 4): stamp(S, "kvp")
                    if i < 7: S.waitvm(f"c{i+1}")
                    if OPT['prof'] in (2, 4): stamp(S, f"w{i}")
                    S.waitlg()
                S(f"v_mfma_f32_32x32x16_bf16 {vr(acc,16)}, v[{st+4*u}:{st+4*u+3}], v[{st+8+4*tt}:{st+11+4*tt}], {c}")
                k = 0
                if bar and n == 3:
                    S("s_barrier"); S.mark(f"c{i}b"); k = 2
                while rds and k < (3 if bar else 2): S(rds.pop(0), f'fr{n0+2}'); k += 1
                if n0 == 30 and n == 2:
                    S(f"ds_write_b128 v{vCSW}, a[{CSACC}:{CSACC+3}]"); k += 1
                S.fill(CAP - k)
                if n == 0 and not (OPT['x_nocs'] and n0 > 0):
                    for sm in small:
                        c = "0" if first else ar(CSACC, 4)
                        S(f"v_mfma_f32_16x16x32_bf16 {ar(CSACC,4)}, v[{sm}:{sm+3}], {ar(SEL,4)}, {c}")
                        S.fill(1)
        S.mark(f"c{i}e")
    return S

def cs_reads():
    S = Stream()
    for u in range(2):
        for j in range(4): S(f"ds_read_b128 v[{CSV+16*u+4*j}:{CSV+16*u+4*j+3}], v{vCSA+u} offset:{32*j}")
    return S

def stats_consume():
    S = Stream()
    check_poll(S, stat_loads(1), [STL+5, STL+7])
    for tt in range(2):
        a1 = STL + 4 + 2*tt
        S(f"v_and_b32 v{MR+2*tt+1}, 0xffff0000, v{a1}\nv_rcp_f32 v{MR+2*tt+1}, v{MR+2*tt+1}\nv_lshlrev_b32 v{MR+2*tt}, 16, v{a1}\nv_mul_f32 v{MR+2*tt+1}, {NLOG2E:#x}, v{MR+2*tt+1}")
    return S

def epi1(inserts):
    S = Stream(); n = 0
    for u in range(2):
        for tt in range(2):
            for s in range(2):
                acc = ACC + 16*(2*u+tt) + 8*s; cs = CSV + 16*u + 8*s; W = FR + 16*(n & 1); P = FR + 8 + 16*(n & 1)
                mr = f"v[{MR+2*tt}:{MR+2*tt+1}]"
                for p in range(4): S(f"v_pk_fma_f32 v[{acc+2*p}:{acc+2*p+1}], v[{cs+2*p}:{cs+2*p+1}], {mr}, v[{acc+2*p}:{acc+2*p+1}] op_sel_hi:[1,0,1] neg_lo:[0,1,0] neg_hi:[0,1,0]")
                for p in range(4): S(f"v_pk_mul_f32 v[{W+2*p}:{W+2*p+1}], v[{acc+2*p}:{acc+2*p+1}], {mr} op_sel:[0,1] op_sel_hi:[1,1]")
                for p in range(8): S(f"v_exp_f32_e64 v{W+p}, v{W+p}")
                for p in range(4): S(f"v_pk_add_f32 v[{W+2*p}:{W+2*p+1}], v[{W+2*p}:{W+2*p+1}], 1.0 op_sel_hi:[1,0]")
                for p in range(8): S(f"v_rcp_f32_e64 v{W+p}, v{W+p}")
                for p in range(4): S(f"v_pk_mul_f32 v[{W+2*p}:{W+2*p+1}], v[{acc+2*p}:{acc+2*p+1}], v[{W+2*p}:{W+2*p+1}]")
                for p in range(4): S(f"v_cvt_pk_bf16_f32 v{P+p}, v{W+2*p}, v{W+2*p+1}")
                S(f"buffer_store_dwordx4 v[{P}:{P+3}], v{vL16}, {srd(WS)}, s{sHst+2*u+tt} offen" + (" offset:1024" if s else "") + [" sc1", "", " nt", " sc0"][OPT['x_hplain']], "hst")
                if OPT['prof'] == 3: stamp(S, f"e{n}")
                if n in inserts:
                    S.extend(inserts[n])
                    if OPT['prof'] == 3: stamp(S, f"u{n}")
                n += 1
    return S

CB = 128; CACC = 64; CAF = 96; NA = 6; UST = 220
def pollA_load(): return f"buffer_load_dword v228, v{vPA}, {srd(WS)}, s{sFAp} offen sc1"
sResA = 40; sResC = 41
def u_loads(block=False):
    S = Stream()
    if block: check_poll(S, [pollA_load()], [228]); S(f"s_mov_b32 s{sResA}, 0\ns_mov_b32 s{WSO+2}, {WS_SIZE}")
    elif block is False: note_poll(S, 228, sResA)
    S(f"buffer_load_dwordx4 v[{UST}:{UST+3}], v{vL16}, {srd(WSO)}, s{sU} offen sc1")
    S(f"buffer_load_dwordx4 v[{UST+4}:{UST+7}], v{vL16}, {srd(WSO)}, s{sU} offen offset:1024 sc1")
    return S

DU = 96
def conv():
    S = Stream()
    repair(S, sResA, one(f"s_mov_b32 s{WSF+2}, {WS_SIZE}\ns_mov_b32 s{sDone}, 0x80000000\nbuffer_store_dword v{vN}, v{vL0}, {srd(WSF)}, s{sFBo} offen sc1"), pollA_load(), 228, u_loads(None))
    if OPT['prof'] == 3: stamp(S, "rep")
    S(f"ds_write_b128 v{vCU}, v[{UST}:{UST+3}]\nds_write_b128 v{vCU}, v[{UST+4}:{UST+7}] offset:1024")
    S.waitvm("hc"); S.waitlg(); S("s_barrier")
    stamp(S, "conv0")
    rA = lambda c, a: CB + 64*(c & 1) + 4*a
    rB = lambda c, b: CB + 64*(c & 1) + 32 + 4*b
    def ldA(c, a):
        m = 4*a + c
        return [f"ds_read2_b32 v[{rA(c,a)+2*h}:{rA(c,a)+2*h+1}], v{vCA+(m>>3)} offset0:{32*(m&7)+2*h} offset1:{32*(m&7)+2*h+1}" for h in range(2)]
    ldB = lambda c, b: [f"ds_read_b128 v[{rB(c,b)}:{rB(c,b)+3}], v{vCB} offset:{128*(4*b+c)}"]
    pairs = [(a, b) for a in range(8) for b in range(7, a - 1, -1)]
    def loads(c):
        L = ldA(c, 0)
        for b in range(7, -1, -1): L += ldB(c, b)
        for a in range(1, 8): L += ldA(c, a)
        return L
    q = loads(0)
    for t in q[:6]: S(t)
    q = q[6:]
    S.mark("cva"); seenT = set(); p = 0
    for c in range(4):
        nq = loads(c + 1) if c < 3 else []
        if c > 0 and OPT['cvwait']: S.waitlg(f"cl{c}")
        for i, (a, b) in enumerate(pairs):
            T = a + 7 - b; acc = CACC + 4*T
            cc = vr(acc, 4) if T in seenT else "0"; seenT.add(T)
            S(f"v_mfma_f32_16x16x32_bf16 {vr(acc,4)}, v[{rA(c,a)}:{rA(c,a)+3}], v[{rB(c,b)}:{rB(c,b)+3}], {cc}")
            k = 0
            if q:
                for _ in range(2 if len(q) > 14 else 1):
                    if q: S(q.pop(0)); k += 1
            elif nq and (c == 0 or i % 4 != 3) and i >= 1: S(nq.pop(0), f"cl{c+1}"); k += 1
            S.fill(2 - k)
            S.mark(f"cv{p}")
            if OPT['prof'] == 3 and p in (35, 71, 107): stamp(S, f"cv{p}")
            p += 1
        for t in nq: S(t, f"cl{c+1}")
    S.mark("cve")
    stamp(S, "conv1")
    return S

def conv_du():
    S = Stream(); U = 112
    for T in range(4): S(f"ds_read_b64 v[{U+2*T}:{U+2*T+1}], v{vCD} offset:{(3-T)*512}")
    for T in range(4):
        a = DU + 4*T
        S(f"""v_and_b32 v{a}, 0xffff0000, v{U+2*T+1}
        v_lshlrev_b32 v{a+1}, 16, v{U+2*T+1}
        v_and_b32 v{a+2}, 0xffff0000, v{U+2*T}
        v_lshlrev_b32 v{a+3}, 16, v{U+2*T}""")
        for r in range(4): S(f"v_mul_f32 v{a+r}, s{sDv}, v{a+r}")
    return S

def conv_epi(tail):
    S = Stream(); R = 224; Y = 120
    S(f"s_nop 5\ns_cmp_eq_u32 s{sFH}, 0\ns_cbranch_scc0 L_odd")
    def half(T_, keep, send):
        for T in range(4): T_(f"ds_write_b128 v{vCX}, v[{send+4*T}:{send+4*T+3}] offset:{1024*T}")
        for p in range(8): T_(f"v_pk_add_f32 v[{DU+2*p}:{DU+2*p+1}], v[{DU+2*p}:{DU+2*p+1}], v[{keep+2*p}:{keep+2*p+1}]")
    half(S, CACC, CACC + 16)
    S("L_oddback:")
    O = Stream(); O("L_odd:"); half(O, CACC + 16, CACC); O("s_branch L_oddback"); rare.extend(O)
    S.waitlg(); S("s_barrier")
    for T in range(4): S(f"ds_read_b128 v[{R+4*T}:{R+4*T+3}], v{vCXR} offset:{1024*T}")
    S.extend(tail)
    for pr in range(2):
        for T in (2*pr, 2*pr+1):
            a = DU + 4*T
            S(f"v_pk_add_f32 v[{a}:{a+1}], v[{a}:{a+1}], v[{R+4*T}:{R+4*T+1}]\nv_pk_add_f32 v[{a+2}:{a+3}], v[{a+2}:{a+3}], v[{R+4*T+2}:{R+4*T+3}]")
            y = Y + 4*pr + 2*(T & 1)
            S(f"v_cvt_pk_bf16_f32 v{y}, v{a}, v{a+1}\nv_cvt_pk_bf16_f32 v{y+1}, v{a+2}, v{a+3}")
        y = Y + 4*pr
        S(f"v_permlane16_swap_b32 v{y}, v{y+2}\nv_permlane16_swap_b32 v{y+1}, v{y+3}")
        S(f"buffer_store_dwordx4 v[{y}:{y+3}], v{vCY}, {srd(WS)}, s{sYs} offen" + (" offset:1024" if pr else "") + " sc1", "yst")
    return S

HR = 128; XF = 224; SF = 240; TP = 192
def pollB_load(): return f"buffer_load_dword v4, v{vPB}, {srd(WS)}, s{sFBp} offen sc1"
def pollC_load(): return f"buffer_load_dword v5, v{vPC}, {srd(WS)}, s{sFCp} offen sc1"
sFBq = sFBp
def spollB_load():
    return one(f"s_load_dwordx4 s[8:11], s[{WS}:{WS+1}], s{sFBp} glc\ns_load_dwordx4 s[88:91], s[{WS}:{WS+1}], s{sFBp} offset:16 glc")
def spollB_check(S):
    k = nrare[0]; nrare[0] += 1
    g = Stream()
    g(f"s_xor_b32 s8, s8, s{sN}")
    for r in (9, 10, 11, 88, 89, 90): g(f"s_xor_b32 s{r}, s{r}, s{sN}\ns_or_b32 s8, s8, s{r}")
    g(f"s_cbranch_scc1 L_rare{k}\nL_back{k}:")
    S.atomic(g)
    rare(f"L_rare{k}:\ns_mov_b32 s{sCnt}, 0")
    if OPT['prof']: rare(f"v_writelane_b32 v{vPROF}, 1, {52+k}")
    rare(f"L_rl{k}:\ns_sleep 1\nbuffer_load_dword v4, v{vPB}, {srd(WS)}, s{sFBq} offen sc1\ns_waitcnt vmcnt(0)\nv_cmp_ne_u32 vcc, s{sN}, v4")
    rare(f"s_nop 1\ns_cbranch_vccz L_back{k}\ns_add_u32 s{sCnt}, s{sCnt}, 1\ns_cmp_lt_u32 s{sCnt}, 0x4000\ns_cbranch_scc1 L_rl{k}\ns_branch L_back{k}")
def hload(n):
    D = OPT['hring']; p, k = divmod(n, 28); so = 64 + 7*p + (k >> 2)
    return one(f"buffer_load_dwordx4 v[{HR+4*(n%D)}:{HR+4*(n%D)+3}], v{vL16}, {srd(WS)}, s{so} offen" + (f" offset:{(k&3)*1024}" if k & 3 else "") + " sc1")
def gemm2():
    S = Stream(); D = OPT['hring']; NT = OPT['ntail']
    S.mark("g2s")
    def mf(n, u):
        p, k = divmod(n, 28); h = HR + 4*(n % D)
        acc = ACC + 32*(1-p) + 16*u; a = (2*k + u) * 4
        S(f"v_mfma_f32_32x32x16_bf16 {vr(acc,16)}, {ar(a,4)}, v[{h}:{h+3}], {'0' if k == 0 else vr(acc, 16)}")
    for n in range(56 - NT):
        for u in range(2):
            mf(n, u); used = 0
            if u == 1 and n + D < 56: S.extend(hload(n + D)); used = 1
            S.fill(5 - used)
        S.mark(f"g2_{n}")
        if OPT['prof'] > 1 and n in (0, 13, 27, 34, 41): stamp(S, f"g2_{n}")
    for n in range(56 - NT, 56): mf(n, 1); S.fill(5)
    S.mark("g2t")
    F = ACC + 16; Ee = ACC + 32
    tail = [f"ds_write_b128 v{vRW}, v[{F+4*j}:{F+4*j+3}] offset:{32768+1024*j}" for j in range(4)]
    for i, n in enumerate(range(56 - NT, 56)):
        mf(n, 0)
        if i == min(1, NT - 1):
            for t in tail: S(t)
    S.waitlg(); S("s_barrier")
    for j in range(4): S(f"ds_read_b128 v[{F+4*j}:{F+4*j+3}], v{vRR+2} offset:{32768+1024*j}")
    return S

def red_early_w():
    S = Stream()
    for u in range(2):
        for j in range(4): S(f"ds_write_b128 v{vRW}, v[{ACC+32+16*u+4*j}:{ACC+35+16*u+4*j}] offset:{4096*u+1024*j}")
    g = Stream(); g.waitlg(); g("s_barrier"); S.atomic(g)
    return S
def red_early_r():
    S = Stream(); A = ACC + 32; B = ACC + 48
    for j in range(4): S(f"ds_read_b128 v[{A+4*j}:{A+4*j+3}], v{vRR} offset:{1024*j}")
    for j in range(4): S(f"ds_read_b128 v[{B+4*j}:{B+4*j+3}], v{vRR+1} offset:{4096+1024*j}")
    for r in range(16): S(f"v_add_f32 v{A+r}, v{A+r}, v{B+r}")
    return S

FS = 8
def prep_x():
    S = Stream()
    g = Stream()
    g(f"s_add_u32 m0, s{sM0b}, {E}\ns_add_u32 s{sT0}, s{sXO}, 15360\nbuffer_load_dwordx4 v{vXD}, {srd(QF)}, s{sXO} offen lds")
    g(f"buffer_load_dwordx4 v{vXD}, {srd(QF)}, s{sT0} offen offset:1024 lds", "xd")
    S.atomic(g)
    S(f"buffer_load_dwordx2 v[{FS}:{FS+1}], v{vSTV}, {srd(WS)}, s{sStatF} offen sc1")
    return S
def prep_x2():
    S = Stream(); XR = 16
    check_poll(S, [f"buffer_load_dwordx2 v[{FS}:{FS+1}], v{vSTV}, {srd(WS)}, s{sStatF} offen sc1"], [FS+1])
    S(f"v_and_b32 v{FS+1}, 0xffff0000, v{FS}\nv_rcp_f32 v{FS+1}, v{FS+1}\nv_lshlrev_b32 v{FS}, 16, v{FS}\nv_mul_f32 v{FS+2}, v{FS+1}, v{FS+1}\nv_mul_f32 v{FS+1}, {NLOG2E:#x}, v{FS+1}")
    S.waitvm("xd")
    for j in range(4):
        if j: S(f"v_xor_b32 v{FS+3}, {16*j}, v{vXA}")
        S(f"ds_read_b64 v[{XR+2*j}:{XR+2*j+1}], v{FS+3 if j else vXA}")
    for q in range(8):
        S(f"v_lshlrev_b32 v{XF+2*q}, 16, v{XR+q}\nv_and_b32 v{XF+2*q+1}, 0xffff0000, v{XR+q}")
    for r in range(16): S(f"v_sub_f32 v{SF+r}, v{XF+r}, v{FS}")
    for r in range(16): S(f"v_mul_f32 v{SF+r}, v{SF+r}, v{FS+2}")
    return S
YSR = ACC + 48
def prep_y(note=True):
    S = Stream(); YS = YSR
    if note: note_poll(S, 5, sResC)
    S(f"s_add_u32 s{sT0}, s{sYl}, 65536")
    S(f"buffer_load_dwordx4 v[{YS}:{YS+3}], v{vYL}, {srd(WSO)}, s{sYl} offen sc1\nbuffer_load_dwordx4 v[{YS+4}:{YS+7}], v{vYL}, {srd(WSO)}, s{sT0} offen sc1")
    return S
YR = 16
def prep_y2():
    S = Stream(); YS = YSR
    S(f"ds_write_b128 v{vYW}, v[{YS}:{YS+3}]\nds_write_b128 v{vYW}, v[{YS+4}:{YS+7}] offset:1024")
    for j in range(4): S(f"ds_read_b64_tr_b16 v[{YR+2*j}:{YR+2*j+1}], v{vYA} offset:{512*j}")
    return S

def final():
    S = Stream(); A = ACC; F = ACC + 16; Ee = ACC + 32; W = HR; P = HR + 16; Yf = HR + 32
    stamp(S, "g2end")
    pr = lambda b, p: f"v[{b+2*p}:{b+2*p+1}]"
    mr = f"v[{FS}:{FS+1}]"
    for p in range(8): S(f"v_pk_add_f32 {pr(A,p)}, {pr(A,p)}, {pr(Ee,p)}")
    for p in range(8): S(f"v_pk_add_f32 {pr(A,p)}, {pr(A,p)}, {pr(F,p)}")
    for p in range(8): S(f"v_pk_mul_f32 {pr(W,p)}, {pr(A,p)}, {mr} op_sel:[0,1] op_sel_hi:[1,1]")
    for p in range(16): S(f"v_exp_f32_e64 v{W+p}, v{W+p}")
    S.extend(prep_y2())
    for p in range(8): S(f"v_pk_add_f32 {pr(W,p)}, {pr(W,p)}, 1.0 op_sel_hi:[1,0]")
    for p in range(16): S(f"v_rcp_f32_e64 v{W+p}, v{W+p}")
    for p in range(8): S(f"v_pk_mul_f32 {pr(A,p)}, {pr(A,p)}, {pr(SF,p)}")
    for p in range(8): S(f"v_pk_mul_f32 {pr(A,p)}, {pr(A,p)}, {pr(W,p)}")
    repair(S, sResC, Stream(), pollC_load(), 5, cat(prep_y(False), prep_y2()))
    for j in range(4):
        for q in (2*j, 2*j+1): S(f"v_lshlrev_b32 v{Yf+2*q}, 16, v{YR+q}\nv_and_b32 v{Yf+2*q+1}, 0xffff0000, v{YR+q}")
        for p in (2*j, 2*j+1): S(f"v_pk_fma_f32 {pr(W,p)}, {pr(A,p)}, {pr(Yf,p)}, {pr(XF,p)}")
        for p in (2*j, 2*j+1): S(f"v_cvt_pk_bf16_f32 v{P+p}, v{W+2*p}, v{W+2*p+1}")
        S(f"ds_write_b64 v{vOW}, v[{P+2*j}:{P+2*j+1}] offset:{16*j}")
    S(f"s_add_u32 s{sT0}, s{sXO}, 16384")
    S(f"ds_read_b128 v[{W}:{W+3}], v{vOR}\nds_read_b128 v[{W+4}:{W+7}], v{vOR} offset:1280")
    S(f"buffer_store_dwordx4 v[{W}:{W+3}], v{vOS}, {srd(OUT)}, s{sXO} offen\nbuffer_store_dwordx4 v[{W+4}:{W+7}], v{vOS}, {srd(OUT)}, s{sT0} offen")
    if OPT['prof']:
        stamp(S, "outst"); S("s_waitcnt vmcnt(0)"); stamp(S, "end")
        S(f"s_lshl_b32 s{sT0}, s2, 2\ns_add_u32 s{sT0}, s{sT0}, s{sW}\ns_lshl_b32 s{sT0}, s{sT0}, 8\ns_add_u32 s{sT0}, s{sT0}, {PROF}\nv_lshlrev_b32 v{vT}, 2, v{vL}")
        S(f"buffer_store_dword v{vPROF}, v{vT}, {srd(WS)}, s{sT0} offen")
    return S

def stS(name):
    s = Stream(); stamp(s, name); return s
def cat(*ss):
    o = Stream()
    for s in ss: o.extend(s)
    return o
def one(t, tag=None):
    s = Stream(); s(t, tag); return s

def spread(S, items, every):
    o = Stream(); items = list(items); n = 0
    for x in S:
        o.append(x); n += 1
        if items and n % every == 0:
            while items and items[0].cls == 'pseudo' and items[0].op != 'GROUP': o.append(items.pop(0))
            if items: o.append(items.pop(0))
    o.extend(items)
    return o

def build():
    P = Stream()
    P.extend(entry())
    c1 = chunk_dma(1); c2 = chunk_dma(2); kp = OPT['kvpos']; g1f = []
    st = stats()
    pre = cat(one(pollA_load().replace("v228,", "a233,")), one(pollB_load().replace("v4,", "a234,")), one(pollC_load().replace("v5,", "a235,"))) if OPT['pretouch'] else Stream()
    br = one(f"s_cmp_ge_u32 s{sCB1}, 14\ns_cbranch_scc1 L_spare1")
    if kp >= 2:
        P.extend(spread(cat(*[coff(i) for i in range(2, 8)], setup(), kv_pro()), c1[:OPT['c1n']], 20))
        stamp(P, "setup")
        P.extend(st[:16]); P.extend(spread(Stream(st[16:]), cat(c1[OPT['c1n']:], c2[:OPT['c2n']]), 7)); P.extend(br)
        if OPT['c2n'] < 8: g1f.append(("c0a", "c0m", Stream(c2[OPT['c2n']:]), (OPT['p0'],)))
        g1f.append(("c0b", "c1m", cat(kv_dma(), dh_loads(), chunk_dma(3)) if kp == 2 else cat(dh_loads(), chunk_dma(3)), (OPT['p1'],)))
        g1f.append(("c1b", "c2m", cat(kv_dma(), chunk_dma(4)) if kp == 3 else (cat(chunk_dma(4), chunk_dma(5)) if OPT['c5e'] else chunk_dma(4)), (OPT['p2'],)))
        g1f.append((f"c{kp-1}b", f"c{kp}m", cat(setup_b(), kv_addr())))
    else:
        kd = kv_dma(); n0 = OPT['kvn']
        P.extend(kv_pro())
        early = Stream(kd[:n0]) if kp == 0 else Stream(c1[:OPT['c1n']])
        P.extend(spread(cat(*[coff(i) for i in range(2, 8)], setup(), kv_addr()), early, 20))
        stamp(P, "setup")
        late = cat(kd[n0:], dh_loads(), c1) if kp == 0 else cat(c1[OPT['c1n']:], kd, dh_loads())
        P.extend(st[:16]); P.extend(spread(Stream(st[16:]), late, 6)); P.extend(br)
        g1f.append(("c0a", "c0m", setup_b()))
        if kp == 0:
            g1f.append(("c0a", "c0m", c2, (OPT['p0'],)))
            g1f.append(("c0b", "c1m", chunk_dma(3), (OPT['p1'],)))
            g1f.append(("c1b", "c2m", chunk_dma(4), (OPT['p2'],)))
        else:
            g1f.append(("c0a", "c0m", Stream(c2[:4]), (OPT['p0'],)))
            g1f.append(("c0b", "c1m", cat(c2[4:], chunk_dma(3)), (OPT['p1'],)))
            g1f.append(("c1b", "c2m", chunk_dma(4), (OPT['p2'],)))
    D = Stream()
    for c in range(6 if OPT['c5e'] else 5, 8):
        D.gate(f"c{c-4}b"); D.extend(chunk_dma(c))
    D.gate(OPT['stat_at']); D.pace(OPT['tpp']); D.extend(cat(*[one(t) for t in stat_loads(1)], pre, htouch(), w2touch(range(OPT['tp'], 7)) if OPT['tp'] >= 0 else Stream())); D.pace(OPT['w2pace'])
    W2S = cat(hcopy_dma(), Stream([Pseudo('GATE', 'c4b')]), w2_dma(0), Stream([Pseudo('GATE', 'c5b')]), w2_dma(1), Stream([Pseudo('GATE', 'c6b')]), w2_dma(2), w2_dma(3))
    isld = lambda it: it.cls == 'pseudo' and it.op == 'GROUP' and any(y.cls == 'dma' for y in it.arg)
    idx = [i for i, it in enumerate(W2S) if isld(it)]
    cut1 = idx[OPT['n1']] if OPT['n1'] < len(idx) else len(W2S); cut2 = idx[OPT['n2']] if OPT['n2'] < len(idx) else len(W2S)
    D.extend(W2S[:cut1])
    g1f.append((OPT['dstart'], "c7m", D, (OPT['dp'],)))
    na, nb = (("c0a", "c0m"), ("c0b", "c1a")) if OPT['nonce_at'] == 0 else (("c0b", "c1a"), ("c1b", "c2a"))
    g1f.append((*na, nonce_get(), 1))
    g1f.append((*nb, cat(nonce_use(), stats_store()), 1))
    g1f.append(("c1a", "c1m", flag_init(), 1))
    ke = kp
    for (a, b) in [(f"c{c}{x}", f"c{c}{y}") for c in range(ke + 1, min(ke + 4, 8)) for x, y in (("a", "m"), ("b", "e"))][OPT['ft0']:-1]:
        if not OPT['x_notry']: g1f.append((a, b, flag_try(sFAo, "kv1"), 1))
    g1f.append((f"c{ke+3}b", f"c{ke+3}e", flag_try(sFAo, "kv1", True), 1))
    g1f.append(("c3a", "c5a", setup_c()) if not OPT['x_late'] else ("c7b", "c7e", setup_c())); g1f.append(("c6a", "c7m", hoffs()) if not OPT['x_late'] else ("c7b", "c7e", hoffs()))
    g1f.append(("c7a", "c7m", stats_consume()))
    if OPT['trg1'] >= 1: g1f.append(("c6b", "c7m", w2_tr(0)))
    g1f.append(("c4b", "c5m", hpad()))
    g1f.append(("c7b", "c7e", cat(cs_reads(), one(pollA_load())) if OPT['pat'] < 0 else cs_reads(), 1))
    P.extend(merge(gemm1(), g1f))
    stamp(P, "g1end")
    ins = {OPT['uat']: u_loads()}
    if OPT['pat'] >= 0: ins[OPT['pat']] = one(pollA_load())

    nog = lambda st: Stream([x for x in st if not (x.cls == 'pseudo' and x.op == 'GATE')])
    P.extend(spread(epi1(ins), nog(W2S[cut1:cut2]), OPT['esp']))
    stamp(P, "epi1")
    P("L_join:")
    W = lambda t: Stream([Pseudo('WAITLG', t)])
    G = lambda m: Stream([Pseudo('GATE', m)])
    fb = OPT['flagB_at']; t0, t1, t2, t3 = OPT['t0'], OPT['t1'], OPT['t2'], OPT['t3']; fs = OPT['fbs']; fn = OPT['fbn']
    cf = [(f"cv{fb+fs*i}", f"cv{fb+fs*i+6}", flag_try(sFBo, "hst", i == fn - 1), 1) for i in range(fn)]
    cf += [("cva", "cve", cat(G(f"cv{OPT['d3']}"), nog(W2S[cut2:]), G(f"cv{OPT['d4']}"), W('tr0'), w2_dma(4), W('tr1'), w2_dma(5), W('tr2'), w2_dma(6)), (OPT['cvpace'],)),
          (f"cv{OPT['pb']}", "cve", spollB_load() if OPT['packb'] else one(pollB_load()), 1)]
    if OPT['trg1'] < 1: cf.append((f"cv{t0}", f"cv{t1}", w2_tr(0)))
    if OPT['trg1'] < 2: cf.append((f"cv{t1}", f"cv{t2}", w2_tr(1)))
    cf += [(f"cv{t2}", f"cv{t3}", w2_tr(2)), (f"cv{t3}", "cv125", w2_tr(3)), ("cv100", "cve", conv_du())]
    if OPT['trg1'] == 2: P.extend(w2_tr(1))
    post = Stream()
    if OPT['x_cv']:
        keep = []
        for f in cf:
            txt = " ".join(x.text for x in flatten(f[2]) if x.cls != 'pseudo')
            kind = 1 if " lds" in txt else 2 if "tr_b16" in txt else 4 if "s_getreg" in txt or "s_cmp_eq_u32 s87" in txt else 8
            if OPT['x_cv'] & kind: post.append((kind, f[2]))
            else: keep.append(f)
        cf = keep
    P.extend(merge(conv(), cf))
    for kind in (4, 2, 1, 8):
        for k2, st2 in post:
            if k2 == kind and not (kind == 2 and any(x.tag == 'tr3' for x in st2)): P.extend(nog(st2))
    for k2, st2 in post:
        if k2 == 2 and any(x.tag == 'tr3' for x in st2): P.extend(nog(st2))
    P.extend(W('tr3'))
    HL = cat(*[hload(n) for n in range(OPT['hring'])])
    chk = Stream()
    if OPT['packb']: spollB_check(chk)
    else: check_poll(chk, [pollB_load()], [4])
    stamp(chk, "hflag")
    if OPT['hearly']:
        ce = conv_epi(Stream())
        ib = [i for i, x in enumerate(ce) if x.op == 's_barrier'][0]
        h1 = OPT['he1']; h2 = OPT['he2']
        P.extend(chk); P.extend(HL[:h1]); P.extend(ce[:ib]); P.extend(HL[h1:h2]); P.extend(spread(Stream(ce[ib:]), HL[h2:OPT['hearly']], 2))
        stamp(P, "conv2"); P.extend(HL[OPT['hearly']:]); P.extend(prep_x())
    else:
        P.extend(conv_epi(prep_x())); stamp(P, "conv2")
        P.extend(chk); P.extend(HL); P.extend(flag_store(sFCo, WS, "yst"))
    global SPARE_W2
    SPARE_W2 = nog(W2S[:cut2])
    D = OPT['ylag']
    gf = [(f"g2_{x}", f"g2_{x+1}", flag_try(sFCo, "yst", x == 15), 1) for x in (0, 3, 6, 10, 15)] if OPT['hearly'] else []
    if OPT['trpre']: P.extend(cat(w2_tr(4), w2_tr(5), w2_tr(6)))
    else: gf.append(("g2s", "g2_14", cat(w2_tr(4), w2_tr(5), w2_tr(6))))
    gf += [
          ("g2_14", "g2_27", prep_x2()),
          ("g2_28", "g2_33", red_early_w()),
          ("g2_35", "g2_44", red_early_r()),
          (f"g2_{OPT['yat']}", f"g2_{OPT['yat']+1}", one(pollC_load())),
          (f"g2_{OPT['yat']+D}", "g2t", prep_y(), 1)]
    P.extend(merge(gemm2(), gf))
    P.extend(final())
    P("L_end:\ns_endpgm")
    P = flatten(P)
    kv_last = max(i for i, x in enumerate(P) if x.tag == 'kvd')
    sb_first = min(i for i, x in enumerate(P) if x.cls == 'salu' and f"s{sFBo}" in x.wr and 'mov' not in x.op)
    assert kv_last < sb_first, "k/v SRDs overwritten before use"
    last = None
    for x in P:
        if x.cls == 'salu' and 'm0' in x.wr: last = x.text
        if x.cls == 'dma' and x.arg is not None: assert x.arg == last, ("m0 changed under a DMA group", x.text, last)
        if x.cls == 'label' and x.text.startswith('L_join'): last = None
    c7_last = max(i for i, x in enumerate(P) if x.tag == 'c7')
    ho_first = min(i for i, x in enumerate(P) if x.text.startswith(f"s_mov_b64 s[{WSO}:{WSO+1}], s[{WS}"))
    assert c7_last < ho_first, "GEMM1 SRDs / offsets overwritten before the last chunk load"
    P = autowait(P); P = hazards(P)
    P.extend(hazards(autowait(flatten(spare1()))))
    R = hazards(flatten(rare))
    P.extend(R); P("L_codeend:")
    P = align8(P)
    return P

HEAD = open("cdna_kernels/" + NAME + ".s.ref").read().split("; Override launch")[0]
def emit():
    P = build()
    size = sum(x.size for x in P)
    o = HEAD + f"; @launch grid=(256,1,1) block=(256,1,1) lds={LDS_BYTES}\n"
    o += f'.amdgcn_target "amdgcn-amd-amdhsa--gfx950"\n.text\n.globl {NAME}_kernel\n.p2align 8\n.type {NAME}_kernel,@function\n{NAME}_kernel:\n'
    o += "\n".join(l for l in text(P).split("\n") if not l.strip().startswith("; MARK"))
    o += f""".section .rodata,"a"
.p2align 6
.amdhsa_kernel {NAME}_kernel
  .amdhsa_next_free_vgpr 512
  .amdhsa_next_free_sgpr 102
  .amdhsa_accum_offset 256
  .amdhsa_group_segment_fixed_size 0
  .amdhsa_kernarg_size 96
  .amdhsa_user_sgpr_count 2
  .amdhsa_user_sgpr_kernarg_segment_ptr 1
  .amdhsa_system_sgpr_workgroup_id_x 1
.end_amdhsa_kernel
"""
    return o, size

if __name__ == "__main__":
    o, size = emit()
    open(sys.argv[1], "w").write(o)
    print("code bytes (estimate):", size, "stamps:", stamp_names)
    open(sys.argv[1] + ".stamps", "w").write(",".join(stamp_names))
```

```python
import sys, struct
from ir import *

NAME = "recurrent_scan__ssm_conv_h3__dense_activation_silu__prompt"
OPT = dict(x_pad=0, tr0at='c7a', hcv=0, hcat=108, hcp=4, msw=0, cspub=2, csg='c7a', cshare=0, ownw2=10, stch=2, st0=5, r0=4, r1=20, c4e=0, packa=1, hold=1, tpp=2, packb=1, he1=6, he2=10, x_cv=0, cvwait=1, fbs=25, fbn=3, trg1=0, trpre=1, tp=-1, pb=115, d3=0, c5e=1, stat_at='c4a', x_notry=0, x_late=0, dp=2, dstart='c2b', kvn=1, ft0=2, c3b=0, c3a=4, sw3=7, swn=1, swflag=0, c3pf=1, hcnt=1, qnt=0, hearly=0, ntail=4, dbgout=0, rotk=0, rotx=1, htouch=0, x_w2null=0, x_hcnull=0, x_hplain=0, n1=20, n2=28, d4=66, fa=6, pat=0, cvpace=3, t0=14, t1=36, t2=56, t3=76, pretouch=0, c2n=4, p0=2, p1=2, p2=2, b1n=5, b2n=5, esp=8, yat=40, ylag=9, ylate=1, map47=0, tlb=0, nonce_at=0, slowat=4, nt=1, c1n=1, kvpos=2, w2pace=4, sweep=0, uat=3, x_nokv=0, x_nocs=0, x_nodma=0, x_nobar=0, x_now2=0, onewait=1, kvend=4, cap=5, spare=1, prof=0, stats_fill=0, hring=16, flagB_at=40, codepf=1)
for a in sys.argv[2:]:
    k, v = a.split('='); OPT[k] = int(v) if v.lstrip('-').isdigit() else v

HWS = 0; KVR = 0x700000; YT = 0x900000; STATS = 0xB00000; FLA = 0xB10000; FLB = 0xB30000; FLC = 0xB50000; CSP = 0xB70000
PROF = 0xB80000; WS_SIZE = 0xC00000
E = 131072; KT = E; VT = E + 9360; HC = E; UR = E + 17680; CS = E + 26896; DUMP = CS + 512
LDS_BYTES = 163840
OOB = 0x80000000
f2u = lambda f: struct.unpack('<I', struct.pack('<f', f))[0]
NLOG2E = f2u(-1.4426950408889634)

sX, sJ, sW, sT0, sT1 = 3, 4, 5, 6, 7
Q1, QF, SKK, SVV, W1, W2, SSK, WS, WSH, OUT, DBG, SHK, KZ = 8, 12, 16, 20, 24, 28, 32, 36, 40, 44, 48, 52, 60
sDptr = 56; sN = 58; sDv = 59
sCsW = 64; sCsR = 72; sCsN = 95
WSB = 8
sQoff = 64; sWoff = 72
sM0b = 80; sW2off = 81; sStatC = 82; sRot = 83; sStatW = 84; sFH = 85; sTH = 86; sH0 = 87
CODE = 88; sHst = 88
sM0q = 92; sM0w = 93; sP = 94; sCnt = 96; sC0 = sT0
sRB1, sCB1, sRB2, sCB2, sCH = 97, 98, 99, 100, 101
sKV0, sKV1, sFAo, sFAp, sU, sFBo, sFBp, sYs = 16, 17, 18, 19, 20, 21, 22, 23
sFCo, sFCp, sHL, sYl = 52, 53, 54, 55
sXO, sStatF, sHC, sHLo = 60, 61, 62, 63
def srd(b): return f"s[{b}:{b+3}]"

vL = 1; vL16 = 2; vL0 = 3
vQD = 4; vWD = 8; vBD = 12
vQA = 16; vWA = 24
vN = 28; vSTV = 29; vCSW = 30; vCSA = 31
vTA = 33; vCA = 37
vCB = 41; vCU = 42; vCD = 43; vCX = 44; vCXR = 45; vCY = 46
vPA = 47; vPB = 48; vPC = 49
vXD = 50; vYL = 51; vOS = 52
vXA = 53; vYW = 54; vYA = 55; vOW = 56; vOR = 57; vRW = 58; vRR = 59
vPROF = 62; vT = 63
vDV = 215; vH0 = 214
ACC = 64; FR = 128
CSACC = 244; SEL = 240; CSV = 176
STL = 208; MR = 216
def vr(b, n=1): return f"v{b}" if n == 1 else f"v[{b}:{b+n-1}]"
def ar(b, n): return f"a[{b}:{b+n-1}]"

rare = Stream(); nrare = [0]
def check_poll(S, reloads, tagregs):
    k = nrare[0]; nrare[0] += 1
    def cmp(T):
        if len(tagregs) == 1:
            T(f"v_cmp_ne_u32 vcc, s{sN}, v{tagregs[0]}")
        else:
            T(f"v_xor_b32 v{vT}, s{sN}, v{tagregs[0]}")
            for r in tagregs[1:]:
                T(f"v_xor_b32 v{r}, s{sN}, v{r}\nv_or_b32 v{vT}, v{vT}, v{r}")
            T(f"v_cmp_ne_u32 vcc, 0, v{vT}")
    g = Stream(); cmp(g); g(f"s_cbranch_vccnz L_rare{k}\nL_back{k}:")
    S.atomic(g)
    rare(f"L_rare{k}:\ns_mov_b32 s{sCnt}, 0")
    if OPT['prof']: rare(f"v_writelane_b32 v{vPROF}, 1, {52+k}")
    rare(f"L_rl{k}:\ns_sleep 1")
    for t in reloads: rare(t)
    rare("s_waitcnt vmcnt(0)")
    cmp(rare)
    rare(f"s_nop 1\ns_cbranch_vccz L_back{k}\ns_add_u32 s{sCnt}, s{sCnt}, 1\ns_cmp_lt_u32 s{sCnt}, 0x4000\ns_cbranch_scc1 L_rl{k}\ns_branch L_back{k}")

WSO = 24
def note_poll(S, tagreg, sres):
    g = Stream(); g(f"v_cmp_ne_u32 vcc, s{sN}, v{tagreg}\ns_or_b32 s{sres}, vcc_lo, vcc_hi\ns_cselect_b32 s{WSO+2}, 0, {WS_SIZE}"); S.atomic(g)
def repair(S, sres, first, reload, tagreg, redo):
    k = nrare[0]; nrare[0] += 1
    g = Stream(); g(f"s_cmp_lg_u32 s{sres}, 0\ns_cbranch_scc1 L_rare{k}\nL_back{k}:"); S.atomic(g)
    R = Stream()
    R(f"L_rare{k}:\ns_mov_b32 s{sCnt}, 0\ns_waitcnt vmcnt(0) lgkmcnt(0)")
    if OPT['prof']: R(f"v_writelane_b32 v{vPROF}, 1, {52+k}")
    R.extend(first)
    R(f"L_rl{k}:\n{reload}\ns_waitcnt vmcnt(0)\nv_cmp_ne_u32 vcc, s{sN}, v{tagreg}\ns_nop 1\ns_cbranch_vccz L_ok{k}\ns_sleep 1\ns_add_u32 s{sCnt}, s{sCnt}, 1\ns_cmp_lt_u32 s{sCnt}, 0x4000\ns_cbranch_scc1 L_rl{k}\nL_ok{k}:")
    R(f"s_mov_b32 s{WSO+2}, {WS_SIZE}")
    R.extend(autowait(flatten(redo)))
    R(f"s_waitcnt vmcnt(0) lgkmcnt(0)\ns_nop 4\ns_branch L_back{k}")
    rare.extend(R)

stamp_names = []
def stamp(S, name):
    if not OPT['prof']: return
    k = len(stamp_names); stamp_names.append(name)
    g = Stream()
    if OPT['prof'] == 1:
        g(f"s_memrealtime s[{sP}:{sP+1}]\ns_waitcnt lgkmcnt(0)\nv_writelane_b32 v{vPROF}, s{sP}, {k}")
        g(f"s_memtime s[{sP}:{sP+1}]\ns_waitcnt lgkmcnt(0)\nv_writelane_b32 v{vPROF}, s{sP}, {k+32}")
    elif OPT['prof'] == 4:
        g(f"s_memrealtime s[{sP}:{sP+1}]\ns_waitcnt lgkmcnt(0)\nv_writelane_b32 v{vPROF}, s{sP}, {k}")
    else:
        g(f"s_memtime s[{sP}:{sP+1}]\ns_waitcnt lgkmcnt(0)\nv_writelane_b32 v{vPROF}, s{sP}, {k}")
    S.atomic(g)

def dma_n(S, vbase, srdb, soff, m0txt, tag, n=4, samev=False, nt=False):
    for i in range(n):
        g = Stream()
        if i == 0: g(m0txt)
        g(f"buffer_load_dwordx4 v{vbase + (0 if samev else i)}, {srd(srdb)}, s{soff} offen" + (f" offset:{i*1024}" if i else "") + (" nt" if nt else "") + " lds", tag if i == n-1 else None)
        g[-1].arg = m0txt
        S.atomic(g)

def chunk_dma(i, sq=None, sw=None):
    S = Stream(); slot = i & 3
    dma_n(S, vQD, Q1, sQoff + i if sq is None else sq, f"s_add_u32 m0, s{sM0q}, {slot*32768}", None, nt=OPT['qnt'])
    dma_n(S, vWD, W1, sWoff + i if sw is None else sw, f"s_add_u32 m0, s{sM0w}, {slot*32768}", f"c{i}")
    return S

def w2_half(b, h):
    S = Stream(); slot = b & 3
    dma_n(S, vBD, W2, sW2off, f"s_add_u32 m0, s{sM0b}, {slot*32768 + 4096*h}", f"b{b}" if h else None)
    if h == 0: S(f"s_add_u32 s{sW2off}, s{sW2off}, 32768")
    elif b < 6:
        g = Stream(); g(f"s_cmp_eq_u32 s{sRot}, {6-b}\ns_cselect_b32 s{sCnt}, {7*65536}, 0\ns_add_u32 s{sW2off}, s{sW2off}, 32768\ns_sub_u32 s{sW2off}, s{sW2off}, s{sCnt}"); S.atomic(g)
    return S
def w2_dma(b):
    S = w2_half(b, 0); S.extend(w2_half(b, 1)); return S

def w2_tr(b):
    S = Stream(); slot = b & 3; hi = slot >> 1
    S.waitvm(f"b{b}")
    for k4 in range(4):
        for u in range(2):
            a = ((4*b + k4) * 2 + u) * 4
            for rd in range(2):
                off = (slot & 1) * 32768 + k4 * 2048 + rd * 1024
                S(f"ds_read_b64_tr_b16 {ar(a+2*rd, 2)}, v{vTA+2*hi+u} offset:{off}", f"tr{b}")
    return S

vROW = 220
vSHK = 228
MAP = [f"""
    s_lshr_b32 s{sCB1}, s{sJ}, 1
    s_and_b32 s{sT0}, s{sJ}, 1
    s_lshl_b32 s{sRB1}, s{sX}, 1
    s_add_u32 s{sRB1}, s{sRB1}, s{sT0}
    s_lshl_b32 s{sT0}, s{sT0}, 2
    s_add_u32 s{sT0}, s{sT0}, s{sCB1}
    s_add_u32 s{sT0}, s{sT0}, s{sX}
    s_and_b32 s{sT0}, s{sT0}, 7
""", f"""
    s_and_b32 s{sT0}, s{sJ}, 3
    s_lshr_b32 s{sT1}, s{sX}, 1
    s_lshl_b32 s{sRB1}, s{sT1}, 2
    s_add_u32 s{sRB1}, s{sRB1}, s{sT0}
    s_lshl_b32 s{sT0}, s{sT0}, 1
    s_add_u32 s{sT0}, s{sT0}, s{sT1}
    s_lshr_b32 s{sT1}, s{sJ}, 2
    s_add_u32 s{sT0}, s{sT0}, s{sT1}
    s_and_b32 s{sT0}, s{sT0}, 7
    s_and_b32 s{sCB1}, s{sX}, 1
    s_mul_i32 s{sCB1}, s{sCB1}, 7
    s_add_u32 s{sCB1}, s{sCB1}, s{sT1}
    s_cmp_eq_u32 s{sT1}, 7
    s_cselect_b32 s{sCB1}, 14, s{sCB1}
"""]
def entry():
    class SS(Stream):
        def __call__(self, text, tag=None): return Stream.__call__(self, text.replace(' NT', ' nt' if OPT['nt'] else '').replace('MAPPING', MAP[OPT['map47']]), tag)
    S = SS()
    S(f"""
    s_load_dwordx16 s[64:79], s[0:1], 0
    s_load_dwordx8 s[80:87], s[0:1], 64
    s_memrealtime s[40:41]
    s_cmp_ge_u32 s2, 256
    s_cbranch_scc1 L_end
    v_lshrrev_b32 v{vT}, 6, v0
    v_and_b32 v{vL}, 63, v0
    s_and_b32 s{sX}, s2, 7
    v_readfirstlane_b32 s{sW}, v{vT}
    s_lshr_b32 s{sJ}, s2, 3
    MAPPING
    s_mov_b32 s{QF+2}, 0x200000
    s_mov_b32 s{QF+3}, 0x20000
    s_cmp_lt_u32 s{sCB1}, 14
    s_cselect_b32 s{Q1+2}, 0x200000, 0
    s_cselect_b32 s{W1+2}, 0x1c0000, 0
    s_mov_b32 s{Q1+3}, 0x20000
    s_mov_b32 s{W1+3}, 0x20000
    s_lshl_b32 s88, s{sX}, 5
    s_add_u32 s88, s88, s{sJ}
    s_lshl_b32 s88, s88, 2
    s_add_u32 s88, s88, s{sW}
    s_lshl_b32 s88, s88, 11
    s_lshl_b32 s89, s{sRB1}, 2
    s_add_u32 s89, s89, s{sW}
    s_lshl_b32 s89, s89, 15
    s_mul_i32 s90, s{sW}, {16*3584}
    s_lshl_b32 s{sT1}, s{sCB1}, 8
    s_add_u32 s90, s90, s{sT1}
    s_lshl_b32 s58, s{sT0}, 7
    s_add_u32 s58, s58, s89
    s_mul_i32 s59, s{sT0}, {64*3584}
    s_add_u32 s59, s59, s90
    s_lshl_b32 s{sM0q}, s{sW}, 12
    s_add_u32 s{sM0w}, s{sM0q}, 16384
    s_lshr_b32 s{sT1}, s{sJ}, 3
    s_lshl_b32 s{sRB2}, s{sX}, 2
    s_add_u32 s{sRB2}, s{sRB2}, s{sT1}
    s_and_b32 s{sCB2}, s{sJ}, 7
    s_lshl_b32 s42, s{sW}, 3
    s_or_b32 s42, s42, s2
    """)
    if OPT['prof']: S(f"v_mov_b32 v{vPROF}, 0")
    S.extend(codepf())
    a, b, c, d = 232, 233, 234, 235
    S(f"""
    v_lshlrev_b32 v{vL16}, 4, v{vL}
    v_lshrrev_b32 v{a}, 5, v{vL}
    v_and_b32 v{b}, 31, v{vL}
    v_lshlrev_b32 v{b}, 4, v{b}
    v_lshl_add_u32 v236, v{a}, 10, v{b}
    v_lshrrev_b32 v{a}, 3, v{vL}
    v_and_b32 v{b}, 7, v{vL}
    v_lshrrev_b32 v{c}, 4, v{vL}
    v_xor_b32 v{d}, v{b}, v{c}
    v_lshlrev_b32 v{d}, 4, v{d}
    v_lshl_add_u32 v{vQD}, v{a}, 10, v{d}
    v_xor_b32 v{d}, 64, v{vQD}
    v_add_u32 v{vQD+1}, 7168, v{d}
    v_add_u32 v{vQD+2}, 14336, v{vQD}
    v_add_u32 v{vQD+3}, 21504, v{d}
    v_and_b32 v{d}, 15, v{vL}
    v_lshlrev_b32 v237, 2, v{c}
    v_xor_b32 v{d}, v{d}, v237
    v_lshlrev_b32 v{d}, 4, v{d}
    v_mul_u32_u24 v237, 3584, v{c}
    v_add_u32 v{vWD}, v237, v{d}
    v_add_u32 v{vWD+1}, {4*3584-1024}, v{vWD}
    v_add_u32 v{vWD+2}, {8*3584-2048}, v{vWD}
    v_add_u32 v{vWD+3}, {12*3584-3072}, v{vWD}
    v_lshlrev_b32 v{b}, 4, v{b}
    v_lshl_add_u32 v237, v{a}, 10, v{b}
    v_lshlrev_b32 v238, 4, v{a}
    """)
    for bb, n in ((W2, 0x1c0000), (SSK, 0x200000), (WS, WS_SIZE), (OUT, 0x200000), (DBG, 256)):
        S(f"s_mov_b32 s{bb+2}, {0 if (bb == W2 and OPT['x_w2null']) or (bb == SSK and OPT['x_hcnull']) else n}")
    for bb in (W2, SSK, WS, OUT, DBG):
        S(f"s_mov_b32 s{bb+3}, 0x20000")
    S.waitlg()
    stamp(S, "karg")
    S(f"""
    s_cmp_gt_u32 s42, 7
    s_cbranch_scc1 L_nonce_done
    s_or_b32 s40, s40, 1
    v_mov_b32 v241, 0
    v_mov_b32 v240, s40
    s_mov_b64 exec, 1
    global_atomic_cmpswap v241, v[240:241], s[84:85] sc1
    s_mov_b64 exec, -1
    L_nonce_done:
    """)
    S[-3].cls = 'other'
    S(f"""
    s_mov_b64 s[{QF}:{QF+1}], s[64:65]
    s_mov_b64 s[{Q1}:{Q1+1}], s[64:65]
    s_mov_b64 s[{W1}:{W1+1}], s[78:79]
    buffer_load_dwordx4 v[{vROW}:{vROW+3}], v236, {srd(QF)}, s88 offen NT
    buffer_load_dwordx4 v[{vROW+4}:{vROW+7}], v236, {srd(QF)}, s88 offen offset:512 NT
    """)
    mv = Stream()
    mv(f"""
    s_mov_b64 s[{SKK}:{SKK+1}], s[66:67]
    s_mov_b64 s[{KZ}:{KZ+1}], s[66:67]
    s_mov_b64 s[{SVV}:{SVV+1}], s[68:69]
    s_mov_b64 s[{SHK}:{SHK+1}], s[70:71]
    s_mov_b64 s[{SSK}:{SSK+1}], s[72:73]
    s_mov_b64 s[{sDptr}:{sDptr+1}], s[74:75]
    s_mov_b64 s[{W2}:{W2+1}], s[80:81]
    s_mov_b64 s[{OUT}:{OUT+1}], s[82:83]
    s_mov_b64 s[{DBG}:{DBG+1}], s[84:85]
    s_mov_b64 s[{WS}:{WS+1}], s[86:87]
    """)
    S.extend(chunk_dma(0, 58, 59)); S.extend(mv)
    if OPT['tlb']:
        S(f"""
        v_min_u32 v240, 5, v{vL}
        v_lshlrev_b32 v240, 21, v240
        v_mov_b32 v241, 0
        buffer_load_dword a240, v240, {srd(WS)}, 0 offen
        global_load_dword a241, v241, s[66:67]
        global_load_dword a242, v241, s[68:69]
        global_load_dword a243, v241, s[80:81]
        global_load_dword a244, v241, s[82:83]
        """.replace("a24", "a23"))
    S.extend(coff(1))
    return S

def coff(i):
    S = Stream()
    S(f"""
    s_add_u32 s{sT1}, s{sC0}, {i}
    s_and_b32 s{sT1}, s{sT1}, 7
    s_lshl_b32 s{sQoff+i}, s{sT1}, 7
    s_add_u32 s{sQoff+i}, s{sQoff+i}, s89
    s_mul_i32 s{sWoff+i}, s{sT1}, {64*3584}
    s_add_u32 s{sWoff+i}, s{sWoff+i}, s90
    """)
    return S
def codepf():
    S = Stream()
    if OPT['codepf']:
        S(f"""
        s_getpc_b64 s[16:17]
        L_pc:
        s_mov_b32 s18, L_codeend-L_pc
        s_mov_b32 s19, 0x20000
        s_lshl_b32 s20, s{sJ}, 2
        s_add_u32 s20, s20, s{sW}
        s_lshl_b32 s20, s20, 8
        v_lshlrev_b32 v238, 2, v{vL}
        buffer_load_dword a252, v238, s[16:19], s20 offen
        """)
    return S

def kv_pro():
    S = Stream()
    S(f"""
    s_cmp_lg_u32 s{sRB2}, 0
    s_cselect_b32 s{KZ+2}, 0x200000, 0
    s_mov_b32 s{KZ+3}, 0x20000
    s_mov_b32 s{SKK+2}, 0x200000
    s_mov_b32 s{SKK+3}, 0x20000
    s_mov_b32 s{SVV+2}, 0x200000
    s_mov_b32 s{SVV+3}, 0x20000
    s_mov_b32 s{SHK+2}, 4096
    s_mov_b32 s{SHK+3}, 0x20000
    s_lshl_b32 s40, s{sRB2}, 16
    s_lshl_b32 s41, s{sCB2}, 7
    s_add_u32 s40, s40, s41
    s_lshl_b32 s41, s{sW}, 13
    s_add_u32 s41, s41, s40
    s_add_u32 s42, s41, 32768
    s_sub_u32 s40, s40, 8192
    s_max_i32 s40, s40, 0
    s_mul_i32 s43, s{sW}, 1040
    s_lshl_b32 s87, s{sCB2}, 9
    s_lshl_b32 s{sT1}, s{sW}, 7
    s_add_u32 s87, s87, s{sT1}
    v_cmp_gt_u32 vcc, 40, v{vL}
    v_mov_b32 v239, {OOB}
    v_cndmask_b32 v239, v237, v239, vcc
    """)
    return S
def kv_dma():
    S = Stream(); nt = "nt " if OPT['nt'] else ""
    for m0, v, sr, so in ((f"s_add_u32 m0, s43, {KT+1040}", 237, SKK, 41), (f"s_add_u32 m0, s43, {VT}", 237, SVV, 41),
                          (f"s_add_u32 m0, s43, {KT+5*1040}", 237, SKK, 42), (f"s_add_u32 m0, s43, {VT+4*1040}", 237, SVV, 42),
                          (f"s_mov_b32 m0, {KT}", 239, KZ, 40)):
        g = Stream(); g(f"{m0}\nbuffer_load_dwordx4 v{v}, {srd(sr)}, s{so} offen {nt}lds"); S.atomic(g)
    S(f"buffer_load_dwordx4 v[{vSHK}:{vSHK+3}], v238, {srd(SHK)}, s87 offen", "kvd")
    return S

def setup():
    S = Stream()
    if OPT['cshare']:
        S(f"""
        s_lshl_b32 s{sCsR}, s{sCB1}, 13
        s_add_u32 s{sCsR}, s{sCsR}, {CSP}
        s_lshl_b32 s{sCsW}, s{sC0}, 10
        s_add_u32 s{sCsW}, s{sCsW}, s{sCsR}
        s_and_b32 s{sT1}, s{sW}, 1
        s_lshl_b32 s{sT1}, s{sT1}, 9
        s_add_u32 s{sCsW}, s{sCsW}, s{sT1}
        s_lshr_b32 s{sT1}, s{sW}, 1
        s_lshl_b32 s{sT1}, s{sT1}, 8
        s_add_u32 s{sCsW}, s{sCsW}, s{sT1}
        s_lshl_b32 s{sT1}, s{sW}, 8
        s_add_u32 s{sCsR}, s{sCsR}, s{sT1}
        """)
    S(f"""
    s_and_b32 s{sFH}, s{sW}, 1
    s_lshr_b32 s{sTH}, s{sW}, 1
    s_lshl_b32 s{sCH}, s2, 1
    s_add_u32 s{sCH}, s{sCH}, s{sTH}
    s_lshl_b32 s{sM0b}, s{sW}, 13
    s_mul_i32 s{sW2off}, s{sW}, {448*1024}
    s_lshl_b32 s{sT0}, s{sCB2}, 7
    s_add_u32 s{sW2off}, s{sW2off}, s{sT0}
    s_lshr_b32 s{sRot}, s{sJ}, 3
    s_mul_i32 s{sRot}, s{sRot}, {OPT['rotk']}
    s_add_u32 s{sRot}, s{sRot}, s{sCB2}
    s_mul_i32 s{sT0}, s{sX}, {OPT['rotx']}
    s_add_u32 s{sRot}, s{sRot}, s{sT0}
    s_mul_i32 s{sT0}, s{sRot}, 37
    s_lshr_b32 s{sT0}, s{sT0}, 8
    s_mul_i32 s{sT0}, s{sT0}, 7
    s_sub_u32 s{sRot}, s{sRot}, s{sT0}
    s_lshl_b32 s{sT0}, s{sRot}, 16
    s_add_u32 s{sW2off}, s{sW2off}, s{sT0}
    s_lshl_b32 s{sStatC}, s{sRB1}, 1
    s_add_u32 s{sStatC}, s{sStatC}, s{sTH}
    s_mul_i32 s{sHst}, s{sStatC}, {2*112*1024}
    s_lshl_b32 s{sStatC}, s{sStatC}, 10
    s_add_u32 s{sStatC}, s{sStatC}, {STATS}
    s_lshl_b32 s{sT0}, s{sCB1}, 1
    s_add_u32 s{sT0}, s{sT0}, s{sFH}
    s_lshl_b32 s{sT0}, s{sT0}, 12
    s_add_u32 s{sHst}, s{sHst}, s{sT0}
    s_lshl_b32 s{sT0}, s{sTH}, 11
    s_xor_b32 s{sT1}, s{sT0}, 2048
    s_add_u32 s{sHst+2}, s{sHst}, s{sT1}
    s_add_u32 s{sHst}, s{sHst}, s{sT0}
    s_add_u32 s{sHst+1}, s{sHst}, {112*1024}
    s_add_u32 s{sHst+3}, s{sHst+2}, {112*1024}
    s_lshl_b32 s{sStatW}, s{sX}, 5
    s_add_u32 s{sStatW}, s{sStatW}, s{sJ}
    s_lshl_b32 s{sStatW}, s{sStatW}, 7
    s_lshl_b32 s{sT0}, s{sW}, 4
    s_add_u32 s{sStatW}, s{sStatW}, s{sT0}
    s_add_u32 s{sStatW}, s{sStatW}, {STATS}
    """)
    a, b, c, d, e, f = 240, 241, 242, 243, 244, 245
    a, b, c, d, e, f = 244, 245, 246, 247, 248, 249
    S(f"""
    v_mov_b32 v{a}, {OOB}
    v_cmp_eq_u32 vcc, 0, v{vL}
    v_and_b32 v{b}, 31, v{vL}
    v_lshrrev_b32 v{c}, 5, v{vL}
    v_cndmask_b32 v{vL0}, v{a}, 0, vcc
    v_lshrrev_b32 v{d}, 3, v{b}
    v_and_b32 v{e}, 7, v{vL}
    v_lshlrev_b32 v{e}, 3, v{e}
    v_lshl_add_u32 v{vSTV}, v{d}, 7, v{e}
    """)
    S(f"""
    v_lshrrev_b32 v{d}, 1, v{b}
    v_and_b32 v{d}, 7, v{d}
    v_xor_b32 v{d}, v{d}, v{c}
    v_lshlrev_b32 v{d}, 4, v{d}
    v_lshl_add_u32 v{d}, v{b}, 7, v{d}
    s_lshl_b32 s{sT0}, s{sTH}, 13
    v_add_u32 v{vQA}, s{sT0}, v{d}
    v_xor_b32 v{vQA+1}, 32, v{vQA}
    v_xor_b32 v{vQA+2}, 64, v{vQA}
    v_xor_b32 v{vQA+3}, 0x60, v{vQA}
    """)
    for k in range(4): S(f"v_add_u32 v{vQA+4+k}, 0x10000, v{vQA+k}")
    S(f"""
    v_bfe_u32 v{d}, v{vL}, 2, 2
    v_and_b32 v{e}, 3, v{vL}
    v_lshlrev_b32 v{e}, 3, v{e}
    v_bfe_u32 v{f}, v{vL}, 4, 1
    v_lshl_add_u32 v{e}, v{f}, 5, v{e}
    s_lshl_b32 s{sT0}, s{sFH}, 1
    s_add_u32 s{sT0}, s{sT0}, s{sTH}
    v_xor_b32 v{f}, s{sT0}, v{d}
    v_lshl_add_u32 v{f}, v{f}, 6, v{e}
    v_lshl_add_u32 v{f}, v{d}, 8, v{f}
    v_lshl_add_u32 v{vWA}, v{c}, 11, v{f}
    v_xor_b32 v{vWA+1}, 64, v{vWA}
    v_add_u32 v{vWA+2}, 0x10000, v{vWA}
    v_add_u32 v{vWA+3}, 0x10000, v{vWA+1}
    v_lshrrev_b32 v{f}, 1, v{d}
    v_xor_b32 v{f}, s{sFH}, v{f}
    v_lshl_add_u32 v{f}, v{f}, 6, v{e}
    v_lshl_add_u32 v{f}, v{d}, 7, v{f}
    v_lshl_add_u32 v{f}, v{c}, 9, v{f}
    v_add_u32 v{vTA}, s{sM0b}, v{f}
    v_xor_b32 v{vTA+1}, 64, v{vTA}
    v_add_u32 v{vTA+2}, 0x10000, v{vTA}
    v_add_u32 v{vTA+3}, 0x10000, v{vTA+1}
    v_lshl_add_u32 v{f}, v{d}, 6, v{e}
    v_lshl_add_u32 v{f}, v{c}, 8, v{f}
    s_add_u32 s{sT0}, s{sM0b}, {E + 2048}
    v_add_u32 v{vYA}, s{sT0}, v{f}
    v_add_u32 v{vYW}, s{sT0}, v{vL16}
    """)
    n, g = d, e
    S0 = S
    class SX(Stream):
        def __call__(self, text, tag=None):
            r = f"v_and_b32 v{a}, 31, v{vL}\nv_lshlrev_b32 v{a}, 3, v{a}\nv_lshl_add_u32 v{vCSW}, v{c}, 12, v{a}" if OPT['cshare'] else f"v_cndmask_b32 v{vCSW}, v{f}, v{a}, vcc"
            return S0(text.replace("CSWDEF", r), tag)
    SX()(f"""
    v_and_b32 v{n}, 15, v{vL}
    v_lshrrev_b32 v{g}, 4, v{vL}
    v_and_b32 v{f}, 1, v{g}
    v_cmp_eq_u32 vcc, v{n}, v{f}
    v_mov_b32 v{f}, 0x3f803f80
    v_lshlrev_b32 v{a}, 4, v{g}
    v_cndmask_b32 v{f}, 0, v{f}, vcc
    v_lshl_add_u32 v{a}, v{n}, 6, v{a}
    v_accvgpr_write_b32 a{SEL}, v{f}
    v_accvgpr_write_b32 a{SEL+1}, v{f}
    v_accvgpr_write_b32 a{SEL+2}, v{f}
    v_accvgpr_write_b32 a{SEL+3}, v{f}
    s_lshl_b32 s{sT0}, s{sFH}, 8
    s_lshl_b32 s{sT1}, s{sTH}, 7
    s_add_u32 s{sT0}, s{sT0}, s{sT1}
    s_add_u32 s{sT0}, s{sT0}, {CS}
    v_add_u32 v{a}, s{sT0}, v{a}
    v_add_u32 v{f}, {DUMP}, v{vL16}
    v_cmp_gt_u32 vcc, 2, v{n}
    v_lshlrev_b32 v{b}, 4, v{c}
    v_add_u32 v{vCSA}, s{sT0}, v{b}
    CSWDEF
    v_xor_b32 v{vCSA+1}, 0x80, v{vCSA}
    """)
    assert CS % 256 == 16 or True
    S(f"""
    v_lshrrev_b32 v{a}, 3, v{vL}
    v_and_b32 v{b}, 7, v{vL}
    v_bfe_u32 v{f}, v{vL}, 4, 1
    v_lshlrev_b32 v{f}, 2, v{f}
    v_xor_b32 v{b}, v{b}, v{f}
    v_lshlrev_b32 v{b}, 4, v{b}
    v_lshl_add_u32 v{vBD}, v{a}, 10, v{b}
    v_add_u32 v{vBD+1}, 7168, v{vBD}
    v_add_u32 v{vBD+2}, 14336, v{vBD}
    v_add_u32 v{vBD+3}, 21504, v{vBD}
    """)
    S(f"""
    v_lshlrev_b32 v{a}, 1, v{n}
    v_lshl_add_u32 v{a}, v{g}, 4, v{a}
    v_and_b32 v{b}, 1, v{n}
    v_cmp_eq_u32 vcc, 0, v{b}
    v_mov_b32 v{f}, {4160 - 2}
    s_mul_i32 s{sT0}, s{sTH}, 8320
    s_lshl_b32 s{sT1}, s{sFH}, 6
    v_cndmask_b32 v{b}, 0, v{f}, vcc
    s_add_u32 s{sT0}, s{sT0}, s{sT1}
    s_add_u32 s{sT0}, s{sT0}, {HC + 32 - 30}
    v_add3_u32 v{vCA}, v{a}, v{b}, s{sT0}
    v_add_u32 v{vCA+1}, 1024, v{vCA}
    v_add_u32 v{vCA+2}, 2048, v{vCA}
    v_add_u32 v{vCA+3}, 3072, v{vCA}
    s_mul_i32 s{sT0}, s{sTH}, 4608
    s_add_u32 s{sT0}, s{sT0}, {UR}
    v_lshlrev_b32 v{a}, 5, v{n}
    v_lshlrev_b32 v{b}, 4, v{g}
    v_sub_u32 v{b}, v{b}, v{a}
    s_add_u32 s{sT1}, s{sT1}, s{sT0}
    s_add_u32 s{sT1}, s{sT1}, 480
    v_add_u32 v{vCB}, s{sT1}, v{b}
    v_lshl_add_u32 v{b}, v{g}, 3, v{a}
    s_lshl_b32 s{sT1}, s{sFH}, 11
    s_sub_u32 s{sCnt}, s{sT0}, s{sT1}
    s_add_u32 s{sCnt}, s{sCnt}, {4088 - 1536}
    v_sub_u32 v{vCD}, s{sCnt}, v{b}
    s_add_u32 s{sT1}, s{sT1}, s{sT0}
    v_add_u32 v{vCU}, s{sT1}, v{vL16}
    v_and_b32 v{b}, 0x1f0, v{vL16}
    s_add_u32 s{sT0}, s{sT0}, 4096
    v_add_u32 v{b}, s{sT0}, v{b}
    v_mov_b32 v252, 0
    v_mov_b32 v253, 0
    v_mov_b32 v254, 0
    v_mov_b32 v255, 0
    ds_write_b128 v{b}, v[252:255]
    s_add_u32 s{sT0}, s{sM0b}, {3*32768}
    v_add_u32 v{vCX}, s{sT0}, v{vL16}
    v_xor_b32 v{vCXR}, 0x2000, v{vCX}
    v_and_b32 v{b}, 1, v{g}
    v_lshl_add_u32 v{a}, v{b}, 9, v{a}
    v_lshrrev_b32 v{b}, 1, v{g}
    v_lshl_add_u32 v{vCY}, v{b}, 4, v{a}
    v_lshlrev_b32 v{vPA}, {2 if OPT['packa'] else 7}, v{n}
    v_min_u32 v{a}, 6, v{vL}
    v_lshlrev_b32 v{vPB}, {2 if OPT['packb'] else 7}, v{a}
    v_and_b32 v{a}, 31, v{vL}
    v_lshlrev_b32 v{vPC}, 8, v{a}
    """)
    S(f"""
    v_lshrrev_b32 v{b}, 2, v{vL}
    v_and_b32 v{f}, 3, v{vL}
    v_lshlrev_b32 v{f}, 4, v{f}
    v_lshl_add_u32 v{vOS}, v{b}, 10, v{f}
    v_lshl_add_u32 v{vYL}, v{b}, 12, v{f}
    v_lshlrev_b32 v{d}, 4, v{g}
    v_xor_b32 v{vXD}, v{vOS}, v{d}
    v_mul_u32_u24 v{b}, 80, v{b}
    s_add_u32 s{sT0}, s{sM0b}, {E + 4096}
    v_add3_u32 v{vOR}, v{b}, v{f}, s{sT0}
    v_mul_u32_u24 v{b}, 80, v{a}
    v_lshl_add_u32 v{b}, v{c}, 3, v{b}
    v_add_u32 v{vOW}, s{sT0}, v{b}
    v_bfe_u32 v{b}, v{vL}, 2, 2
    v_lshlrev_b32 v{b}, 4, v{b}
    v_lshl_add_u32 v{b}, v{a}, 6, v{b}
    v_lshl_add_u32 v{b}, v{c}, 3, v{b}
    s_add_u32 s{sT0}, s{sM0b}, {E}
    v_add_u32 v{vXA}, s{sT0}, v{b}
    v_add_u32 v{vRW}, s{sM0b}, v{vL16}
    v_xor_b32 v{vRR}, 0x4000, v{vRW}
    v_xor_b32 v{vRR+1}, 0x6000, v{vRW}
    v_xor_b32 v{vRR+2}, 0x2000, v{vRW}
    """)
    return S

def setup_b():
    if OPT['packb']:
        pk = f"s_mul_i32 s{sT1}, s{sT0}, 37\ns_lshr_b32 s{sT1}, s{sT1}, 8\ns_lshr_b32 s{sFBo}, s{sFBo}, 3\ns_add_u32 s{sFBo}, s{sFBo}, s{sT1}\ns_lshl_b32 s{sFBo}, s{sFBo}, 7\ns_mul_i32 s{sT1}, s{sT1}, 7\ns_sub_u32 s{sT0}, s{sT0}, s{sT1}\ns_lshl_b32 s{sT0}, s{sT0}, 2\ns_add_u32 s{sFBo}, s{sFBo}, s{sT0}\ns_add_u32 s{sFBo}, s{sFBo}, {FLB}"
    else:
        pk = f"s_add_u32 s{sFBo}, s{sFBo}, s{sT0}\ns_lshl_b32 s{sFBo}, s{sFBo}, 7\ns_add_u32 s{sFBo}, s{sFBo}, {FLB}"
    if OPT['packa']:
        pa = f"s_lshl_b32 s{sFAo}, s{sT0}, 1\ns_lshr_b32 s{sT1}, s{sRB2}, 4\ns_add_u32 s{sFAo}, s{sFAo}, s{sT1}\ns_lshl_b32 s{sFAo}, s{sFAo}, 7\ns_and_b32 s{sT1}, s{sRB2}, 15\ns_lshl_b32 s{sT1}, s{sT1}, 2\ns_add_u32 s{sFAo}, s{sFAo}, s{sT1}\ns_add_u32 s{sFAo}, s{sFAo}, {FLA}\n"
        pa += f"s_lshr_b32 s{sFAp}, s{sCH}, 4\ns_lshl_b32 s{sFAp}, s{sFAp}, 8\ns_lshl_b32 s{sT0}, s{sFH}, 7\ns_sub_u32 s{sFAp}, s{sFAp}, s{sT0}\ns_add_u32 s{sFAp}, s{sFAp}, {FLA + 128}"
    else:
        pa = f"s_lshl_b32 s{sFAo}, s{sT0}, 5\ns_add_u32 s{sFAo}, s{sFAo}, s{sRB2}\ns_lshl_b32 s{sFAo}, s{sFAo}, 7\ns_add_u32 s{sFAo}, s{sFAo}, {FLA}\n"
        pa += f"s_lshr_b32 s{sFAp}, s{sCH}, 4\ns_lshl_b32 s{sFAp}, s{sFAp}, 12\ns_lshl_b32 s{sT0}, s{sFH}, 11\ns_sub_u32 s{sFAp}, s{sFAp}, s{sT0}\ns_add_u32 s{sFAp}, s{sFAp}, {FLA + 2048}"
    class SS(Stream):
        def __call__(self, text, tag=None): return Stream.__call__(self, text.replace('PACKB', pk).replace('PACKA', pa), tag)
    S = SS()
    S(f"""
    s_lshl_b32 s{sFBo}, s{sRB1}, 1
    s_add_u32 s{sFBo}, s{sFBo}, s{sTH}
    s_lshl_b32 s{sFBo}, s{sFBo}, 5
    s_lshl_b32 s{sT0}, s{sCB1}, 1
    s_add_u32 s{sT0}, s{sT0}, s{sFH}
    PACKB
    s_lshl_b32 s{sT0}, s{sCB2}, 2
    s_add_u32 s{sT0}, s{sT0}, s{sW}
    s_lshl_b32 s{sKV0}, s{sT0}, 16
    s_lshl_b32 s{sT1}, s{sRB2}, 7
    s_sub_u32 s{sKV0}, s{sKV0}, s{sT1}
    s_add_u32 s{sKV0}, s{sKV0}, {KVR + 1984*2}
    s_add_u32 s{sKV1}, s{sKV0}, 4096
    PACKA
    s_lshl_b32 s{sT0}, s{sFH}, 11
    s_lshl_b32 s{sHC}, s{sCH}, 12
    s_add_u32 s{sU}, s{sHC}, s{sT0}
    s_add_u32 s{sYs}, s{sU}, {YT}
    s_add_u32 s{sU}, s{sU}, {KVR}
    s_lshl_b32 s{sT0}, s{sFH}, 1
    s_add_u32 s{sHC}, s{sHC}, s{sT0}
    """)
    return S
def setup_c():
    S = Stream()
    S(f"""
    s_lshl_b32 s{sFBp}, s{sRB2}, {2 if OPT['packb'] else 5}
    s_mul_i32 s42, s{sW}, {1 if OPT['packb'] else 7}
    s_add_u32 s{sFBp}, s{sFBp}, s42
    s_lshl_b32 s{sFBp}, s{sFBp}, 7
    s_add_u32 s{sFBp}, s{sFBp}, {FLB}
    s_lshl_b32 s{sFCo}, s{sCH}, 1
    s_add_u32 s{sFCo}, s{sFCo}, s{sFH}
    s_lshl_b32 s{sFCo}, s{sFCo}, 7
    s_add_u32 s{sFCo}, s{sFCo}, {FLC}
    s_lshl_b32 s42, s{sCB2}, 1
    s_add_u32 s42, s42, s{sFH}
    s_lshl_b32 s{sFCp}, s42, 13
    s_lshr_b32 s43, s{sRB2}, 4
    s_lshl_b32 s43, s43, 7
    s_add_u32 s{sFCp}, s{sFCp}, s43
    s_add_u32 s{sFCp}, s{sFCp}, {FLC}
    s_lshl_b32 s{sYl}, s42, 17
    s_lshl_b32 s{sXO}, s42, 6
    s_lshl_b32 s42, s{sRB2}, 1
    s_add_u32 s42, s42, s{sTH}
    s_lshl_b32 s43, s42, 6
    s_add_u32 s{sYl}, s{sYl}, s43
    s_add_u32 s{sYl}, s{sYl}, {YT}
    s_lshl_b32 s43, s42, 15
    s_add_u32 s{sXO}, s{sXO}, s43
    s_lshl_b32 s{sStatF}, s42, 9
    s_add_u32 s{sStatF}, s{sStatF}, {STATS}
    s_mul_i32 s{sHLo}, s42, {112*1024}
    s_xor_b32 s42, s42, 1
    s_mul_i32 s{sHL}, s42, {112*1024}
    s_mul_i32 s42, s{sW}, {28*1024}
    s_lshl_b32 s43, s{sRot}, 12
    s_add_u32 s42, s42, s43
    s_add_u32 s{sHL}, s{sHL}, s42
    s_add_u32 s{sHLo}, s{sHLo}, s42
    """)
    return S

def hoffs2():
    return Stream()
def hoffs():
    S = Stream()
    g = Stream(); g(f"s_mov_b64 s[{WSO}:{WSO+1}], s[{WS}:{WS+1}]"); S.atomic(g)
    S(f"s_sub_u32 s{sHLo}, s{sHLo}, s{sHL}")
    for g in range(7):
        if g == 0: S(f"s_mov_b32 s64, s{sHL}")
        else:
            t = Stream(); t(f"s_cmp_eq_u32 s{sRot}, {7-g}\ns_cselect_b32 s78, {7*4096}, 0\ns_add_u32 s{64+g}, s{63+g}, 4096\ns_sub_u32 s{64+g}, s{64+g}, s78"); S.atomic(t)
        S(f"s_add_u32 s{71+g}, s{64+g}, s{sHLo}")
    return S

def nonce_get():
    S = Stream()
    S(f"s_load_dword s{sN}, s[{DBG}:{DBG+1}], 0")
    return S
def nonce_use(N='N'):
    S = Stream(); g = Stream()
    g(f"s_waitcnt lgkmcnt(0)\ns_cmp_eq_u32 s{sN}, 0\ns_cbranch_scc1 L_rare{N}\nL_back{N}:\nv_mov_b32 v{vN}, s{sN}")
    S.atomic(g)
    rare(f"""
    L_rare{N}:
    s_mov_b32 s{sCnt}, 0
    {"v_writelane_b32 v62, 1, 51" if OPT['prof'] else ""}
    L_rl{N}:
    s_sleep 2
    buffer_load_dword v{vN}, off, {srd(DBG)}, 0 sc1
    s_waitcnt vmcnt(0)
    v_readfirstlane_b32 s{sN}, v{vN}
    s_cmp_lg_u32 s{sN}, 0
    s_cbranch_scc1 L_back{N}
    s_add_u32 s{sCnt}, s{sCnt}, 1
    s_cmp_lt_u32 s{sCnt}, 0x4000
    s_cbranch_scc1 L_rl{N}
    s_branch L_back{N}
    """)
    return S

def stats():
    S = Stream(); X = 176; A = 192; B = 193; C = 194
    for i in range(8):
        S(f"v_lshlrev_b32 v{X+2*i}, 16, v{vROW+i}\nv_and_b32 v{X+2*i+1}, 0xffff0000, v{vROW+i}")
    def allred(r):
        for m in ("quad_perm:[1,0,3,2]", "quad_perm:[2,3,0,1]", "row_half_mirror", "row_mirror"):
            S(f"v_add_f32_dpp v{r}, v{r}, v{r} {m} row_mask:0xf bank_mask:0xf")
        S(f"v_mov_b32 v{C}, v{r}\nv_permlane16_swap_b32 v{r}, v{C}\nv_add_f32 v{r}, v{r}, v{C}")
    S(f"v_add_f32 v{A}, v{X}, v{X+1}\nv_add_f32 v{B}, v{X+2}, v{X+3}")
    for i in range(4, 16, 2): S(f"v_add_f32 v{A}, v{A}, v{X+i}\nv_add_f32 v{B}, v{B}, v{X+i+1}")
    S(f"v_add_f32 v{A}, v{A}, v{B}")
    allred(A)
    S(f"v_mul_f32 v{A}, {f2u(1/512):#x}, v{A}")
    for i in range(16): S(f"v_sub_f32 v{X+i}, v{X+i}, v{A}")
    S(f"v_mul_f32 v{B}, v{X}, v{X}\nv_mul_f32 v{C+1}, v{X+1}, v{X+1}")
    for i in range(2, 16, 2): S(f"v_fmac_f32 v{B}, v{X+i}, v{X+i}\nv_fmac_f32 v{C+1}, v{X+i+1}, v{X+i+1}")
    S(f"v_add_f32 v{B}, v{B}, v{C+1}")
    allred(B)
    S(f"""
    v_mul_f32 v{B}, {f2u(1/512):#x}, v{B}
    v_cvt_pk_bf16_f32 v{B}, v{B}, v{B}
    v_lshlrev_b32 v{B}, 16, v{B}
    v_add_f32 v{B}, {f2u(1e-5):#x}, v{B}
    v_cvt_pk_bf16_f32 v{B}, v{B}, v{B}
    v_lshlrev_b32 v{B}, 16, v{B}
    v_sqrt_f32 v{B}, v{B}
    v_and_b32 v{C}, 31, v{vL}
    v_cvt_pk_bf16_f32 v196, v{A}, v{B}
    v_lshrrev_b32 v{A}, 2, v{vL}
    v_mov_b32 v{B}, {OOB}
    """)
    g = Stream(); g(f"v_cmp_eq_u32 vcc, 0, v{C}\nv_cndmask_b32 v198, v{B}, v{A}, vcc"); S.atomic(g)
    return S
def stats_store():
    S = Stream()
    S(f"v_mov_b32 v197, v{vN}\nbuffer_store_dwordx2 v[196:197], v198, {srd(WS)}, s{sStatW} offen sc1")
    return S

def flag_store(soff, srdb, tag):
    S = Stream(); S.waitvm(tag)
    S(f"buffer_store_dword v{vN}, v{vL0}, {srd(srdb)}, s{soff} offen sc1")
    return S

def kv_addr():
    S = Stream(); a1, a2, a3 = 252, 253, 254
    S(f"""
    v_and_b32 v{a1}, 7, v{vL}
    v_mul_u32_u24 v{a2}, 1040, v{a1}
    v_lshrrev_b32 v{a3}, 3, v{vL}
    v_lshl_add_u32 v{a2}, v{a3}, 2, v{a2}
    s_lshl_b32 s{sT0}, s{sW}, 5
    s_add_u32 s{sT0}, s{sT0}, {KT}
    v_add_u32 v{a2}, s{sT0}, v{a2}
    v_add_u32 v255, 1040, v{a2}
    v_xor_b32 v{a1}, 7, v{a1}
    v_lshlrev_b32 v{a1}, 4, v{a1}
    v_lshl_add_u32 v{a1}, v{a3}, 13, v{a1}
    v_add_u32 v{a3}, {VT-KT}, v{a2}
    """)
    return S
def kvpre():
    S = Stream()
    KR = 232; VR = 244; KP = 176; WF = 220; O = 200
    S(f"ds_read2_b32 v[{KR}:{KR+1}], v253 offset0:160 offset1:192\nds_read_b32 v{KR+2}, v253 offset:896")
    for p in range(4): S(f"ds_read2_b32 v[{KR+4+2*p}:{KR+5+2*p}], v255 offset0:{64*p} offset1:{64*p+32}")
    for p in range(4): S(f"ds_read2_b32 v[{VR+2*p}:{VR+1+2*p}], v254 offset0:{64*p} offset1:{64*p+32}")
    for j in range(4):
        for c in range(2):
            src = vSHK + 2*c + (j >> 1)
            S(f"v_and_b32 v{WF+2*j+c}, 0xffff0000, v{src}" if j & 1 else f"v_lshlrev_b32 v{WF+2*j+c}, 16, v{src}")
    ri = lambda r: r + 3 if r < 0 else r + 4
    pr = lambda b: f"v[{b}:{b+1}]"
    for r in range(-3, 8):
        S(f"v_lshlrev_b32 v{KP+2*ri(r)}, 16, v{KR+ri(r)}\nv_and_b32 v{KP+2*ri(r)+1}, 0xffff0000, v{KR+ri(r)}")
    for t in range(8): S(f"v_pk_mul_f32 {pr(O+2*t)}, {pr(KP+2*ri(t))}, {pr(WF)}")
    for jj in range(1, 4):
        for t in range(8): S(f"v_pk_fma_f32 {pr(O+2*t)}, {pr(KP+2*ri(t-jj))}, {pr(WF+2*jj)}, {pr(O+2*t)}")
    for t in range(8): S(f"v_lshlrev_b32 v{KP+2*t}, 16, v{VR+t}\nv_and_b32 v{KP+2*t+1}, 0xffff0000, v{VR+t}")
    for t in range(8): S(f"v_pk_mul_f32 {pr(O+2*t)}, {pr(O+2*t)}, {pr(KP+2*t)}")
    for ch, Pk in enumerate((232, 236)):
        for q in range(4): S(f"v_cvt_pk_bf16_f32 v{Pk+q}, v{O+2*(7-2*q)+ch}, v{O+2*(6-2*q)+ch}")
        S(f"buffer_store_dwordx4 v[{Pk}:{Pk+3}], v252, {srd(WS)}, s{sKV0+ch} offen sc1", f"kv{ch}")
    return S

def stouch(S):
    S(f"v_lshlrev_b32 v5, 10, v{vL}\ns_lshl_b32 s66, s{sW}, 8\ns_add_u32 s72, s64, s66\ns_lshl_b32 s66, s{sW}, 1\ns_add_u32 s73, s65, s66")
    for p in range(OPT['st0'], 7):
        for c in range(2):
            S(f"""
            s_add_u32 s67, s73, {p + c}
            s_mul_i32 s69, s67, 37
            s_lshr_b32 s69, s69, 8
            s_mul_i32 s69, s69, 7
            s_sub_u32 s67, s67, s69
            s_lshl_b32 s67, s67, 16
            s_add_u32 s67, s67, s72
            buffer_load_dword a236, v5, {srd(W2)}, s67 offen offset:{128*c}
            """)
            S[-1].wr = set()

def msweep(S):
    S(f"""
    v_lshlrev_b32 v6, 7, v{vL}
    s_lshl_b32 s66, s{sX}, 2
    s_and_b32 s67, s{sJ}, 3
    s_add_u32 s66, s66, s67
    s_lshl_b32 s66, s66, 2
    s_add_u32 s66, s66, s{sW}
    s_mul_i32 s66, s66, 14336
    s_add_u32 s67, s66, 6144
    buffer_load_dword a237, v6, {srd(W2)}, s66 offen
    buffer_load_dword a238, v6, {srd(W2)}, s67 offen
    """)

def spare1():
    S = Stream()
    S("L_spare1:")
    S(f"""
    s_lshl_b32 s64, s{sX}, 2
    s_and_b32 s65, s{sJ}, 3
    s_add_u32 s64, s64, s65
    s_lshl_b32 s64, s64, 16
    s_lshl_b32 s66, s{sW}, 13
    s_add_u32 s64, s64, s66
    s_add_u32 s64, s64, 384
    s_add_u32 s66, s64, 32768
    """)
    if OPT['c3pf']:
        S(f"""
        buffer_load_dwordx4 a[64:67], v237, {srd(SKK)}, s64 offen
        buffer_load_dwordx4 a[68:71], v237, {srd(SVV)}, s64 offen
        buffer_load_dwordx4 a[72:75], v237, {srd(SKK)}, s66 offen
        buffer_load_dwordx4 a[76:79], v237, {srd(SVV)}, s66 offen
        """)
    if OPT['kvpos'] >= 2: S.extend(kv_dma())
    S(f"v_mov_b32 v4, v237")
    S.extend(nonce_get()); S.extend(setup_b()); S.extend(setup_c()); S.extend(nonce_use('M')); S.extend(stats_store())
    S.extend(kv_addr())
    S(f"""
    s_mul_i32 s64, s65, {448*1024}
    s_lshl_b32 s66, s{sW}, 14
    s_add_u32 s70, s64, s66
    s_add_u32 s70, s70, 384
    s_mul_i32 s65, s{sX}, {OPT['rotx']}
    s_add_u32 s71, s65, 3
    """)
    def c3(n):
        for i in range(n):
            S(f"""
            s_mul_i32 s69, s71, 37
            s_lshr_b32 s69, s69, 8
            s_mul_i32 s69, s69, 7
            s_sub_u32 s67, s71, s69
            s_lshl_b32 s67, s67, 16
            s_add_u32 s67, s67, s70
            s_add_u32 s68, s67, 8192
            s_add_u32 s71, s71, 1
            buffer_load_dwordx4 a[80:83], v4, {srd(W2)}, s67 offen
            buffer_load_dwordx4 a[84:87], v4, {srd(W2)}, s68 offen
            """)
            S[-1].wr = set(); S[-2].wr = set()
    if OPT['kvpos'] >= 2:
        if OPT['msw'] == 1: msweep(S)
        c3(OPT['c3a'])
        if OPT['msw'] == 2: msweep(S)
        if OPT['stch'] == 3: stouch(S)
        if OPT['ownw2']: S.extend(SPARE_W2[5:5+OPT['ownw2']])
        S.waitvm("kvd")
    else:
        c3(OPT['c3a']); S(f"s_waitcnt vmcnt({2*OPT['c3a'] + 1 + (4 if OPT['c3pf'] else 0)})")
    S("s_barrier")
    S.extend(kvpre())
    S.extend(flag_init()); S(f"s_mov_b32 s{sDone}, 0x80000000")
    if OPT['msw'] == 3: msweep(S)
    S("s_barrier")
    if OPT['kvpos'] >= 2: S.extend(dh_loads())
    S.extend(SPARE_W2[:5] if OPT['ownw2'] else SPARE_W2[:8])
    S.extend(flag_store(sFAo, WS, "kv1"))
    stamp(S, "kvpub")
    if OPT['stch'] == 2: stouch(S)
    S.extend(SPARE_W2[5+OPT['ownw2']:] if OPT['ownw2'] else SPARE_W2[8:])
    c3(OPT['c3b'])
    if OPT['stch'] == 1: stouch(S)
    if OPT['tp'] >= 0: S.extend(w2touch(range(OPT['tp'], 7)))
    if OPT['sweep']:
        S(f"""
        s_lshl_b32 s66, s{sW}, 7
        s_add_u32 s64, s64, s66
        s_add_u32 s65, s65, s{sW}
        s_mov_b32 s66, {OPT['swn']}
        s_cmp_eq_u32 s{sW}, 3
        s_cbranch_scc1 L_swe
        L_sw:
        s_mul_i32 s69, s65, 37
        s_lshr_b32 s69, s69, 8
        s_mul_i32 s69, s69, 7
        s_sub_u32 s67, s65, s69
        s_lshl_b32 s67, s67, 16
        s_add_u32 s67, s67, s64
        """)
        for n in range(8):
            S(f"buffer_load_dwordx4 a[232:235], v4, {srd(W2)}, s67 offen\ns_add_u32 s67, s67, 8192"); S[-2].cls = 'other'
        S(f"""
        s_add_u32 s65, s65, 1
        s_sub_u32 s66, s66, 1
        s_cmp_lg_u32 s66, 0
        s_cbranch_scc1 L_sw
        L_swe:
        s_waitcnt vmcnt(0)
        """)
    S.extend(hpad()); S.extend(hoffs()[:1] if OPT['packa'] else hoffs())
    S(pollA_load()); S.extend(u_loads(True))
    S("s_waitcnt vmcnt(0) lgkmcnt(0)\ns_branch L_join")
    return S

def w2touch(ps):
    S = Stream(); a, b = 250, 251
    g = Stream(); g(f"""v_cmp_gt_u32 vcc, 16, v{vL}
    v_lshlrev_b32 v{a}, 10, v{vL}
    v_mov_b32 v{b}, {OOB}
    v_cndmask_b32 v{a}, v{b}, v{a}, vcc"""); S.atomic(g)
    S(f"""s_lshr_b32 s79, s{sJ}, 3
    s_lshl_b32 s79, s79, 14
    s_mul_i32 s71, s{sW}, {448*1024}
    s_add_u32 s79, s79, s71
    s_lshl_b32 s71, s{sCB2}, 7
    s_add_u32 s79, s79, s71""")
    for p in ps:
        g = Stream(); g(f"""s_add_u32 s{sCnt}, s{sRot}, {p}
        s_cmp_ge_u32 s{sCnt}, 7
        s_cselect_b32 s71, 7, 0
        s_sub_u32 s{sCnt}, s{sCnt}, s71
        s_lshl_b32 s{sCnt}, s{sCnt}, 16
        s_add_u32 s{sCnt}, s{sCnt}, s79
        buffer_load_dword a236, v{a}, {srd(W2)}, s{sCnt} offen"""); g[-1].wr = set(); S.atomic(g)
    return S

def htouch():
    S = Stream()
    if OPT['htouch']:
        S(f"v_and_b32 v230, 31, v{vL}\nv_lshrrev_b32 v231, 5, v{vL}\nv_mul_u32_u24 v231, {112*1024}, v231\nv_lshl_add_u32 v230, v230, 7, v231\ns_lshl_b32 s87, s{sTH}, 11\ns_sub_u32 s87, s{sHst}, s87")
        S(f"buffer_load_dword a236, v230, {srd(WS)}, s87 offen")
        if OPT['htouch'] > 1: S(f"buffer_load_dword a237, v230, {srd(WS)}, s87 offen offset:64")
    return S

WSF = 48; sDone = 87
def flag_try(soff, tag, last=False, first=False):
    S = Stream(); g = Stream()
    if last:
        g.waitvm(tag); g(f"s_cmp_eq_u32 s{sDone}, 0")
    else:
        g(f"s_getreg_b32 s{WSF+2}, hwreg(HW_REG_IB_STS)\ns_and_b32 s{WSF+2}, s{WSF+2}, 0xc0000f\ns_or_b32 s{WSF+2}, s{WSF+2}, s{sDone}")
        g.append(Pseudo('CMPVM', (tag, WSF+2)))
    g(f"s_cselect_b32 s{WSF+2}, {WS_SIZE}, 0")
    g(f"s_mov_b32 s{sDone}, 0" if last else f"s_cselect_b32 s{sDone}, 0x80000000, s{sDone}")
    g(f"buffer_store_dword v{vN}, v{vL0}, {srd(WSF)}, s{soff} offen sc1")
    S.atomic(g)
    return S
def flag_init():
    S = Stream(); S(f"s_mov_b64 s[{WSF}:{WSF+1}], s[{WS}:{WS+1}]\ns_mov_b32 s{sDone}, 0"); return S

def dh_loads():
    S = Stream()
    g = Stream(); g(f"s_lshl_b32 s{sDv}, s2, 2\nv_mov_b32 v219, s{sDv}\nglobal_load_dword a248, v219, s[{sDptr}:{sDptr+1}]"); S.atomic(g)
    g = Stream(); g(f"s_lshl_b32 s{sDv}, s{sCH}, 12\nbuffer_load_dword a249, off, {srd(SSK)}, s{sDv}"); S.atomic(g)
    return S

def hcopy_dma():
    S = Stream()
    S(f"s_mul_i32 s{sT0}, s{sW}, 4160")
    dma_n(S, vL16, SSK, sHC, f"s_add_u32 m0, s{sT0}, {HC+32}", "hc", samev=True, nt=OPT['hcnt'])
    return S
def hpad():
    S = Stream()
    S(f"v_accvgpr_read_b32 v230, a248\nv_accvgpr_read_b32 v231, a249\ns_lshl_b32 s{sT1}, s{sTH}, 4\nv_lshrrev_b32 v230, s{sT1}, v230\nv_lshlrev_b32 v230, 16, v230\nv_lshlrev_b32 v231, 16, v231\nv_mul_lo_u32 v231, v231, s{sFH}\nv_readfirstlane_b32 s{sDv}, v230")
    S(f"s_mul_i32 s{sT1}, s{sW}, 4160\nv_and_b32 v230, 7, v{vL}")
    g = Stream(); g(f"v_cmp_eq_u32 vcc, 7, v230\nv_lshlrev_b32 v230, 2, v230\ns_add_u32 s{sT1}, s{sT1}, {HC}\nv_cndmask_b32 v231, 0, v231, vcc\nv_add_u32 v230, s{sT1}, v230\nds_write_b32 v230, v231")
    S.atomic(g)
    return S

def g1_set(n): return FR + 16 * (n % 3)
def g1_reads(n):
    if n >= 32: return []
    i, ks = divmod(n, 4)
    st = g1_set(n); slot = i & 3; hi = slot >> 1; off = (slot & 1) * 32768
    L = []
    for u in range(2):
        for rd in range(2):
            L.append(f"ds_read_b64_tr_b16 v[{st+4*u+2*rd}:{st+4*u+2*rd+1}], v{vWA+2*hi+u} offset:{off+16384+ks*4096+rd*1024}")
    for tt in range(2):
        L.append(f"ds_read_b128 v[{st+8+4*tt}:{st+11+4*tt}], v{vQA+4*hi+ks} offset:{off+tt*4096}")
    return [L[0], L[1], L[4], L[5], L[2], L[3]]

def stat_loads(att):
    return [f"buffer_load_dwordx2 v[{STL+4*att+2*tt}:{STL+4*att+2*tt+1}], v{vSTV}, {srd(WS)}, s{sStatC} offen offset:{tt*512} sc1" for tt in range(2)]

def gemm1():
    S = Stream(); CAP = OPT['cap']
    S.waitvm("c0"); S("s_barrier")
    stamp(S, "c0")
    for t in g1_reads(0): S(t)
    for t in g1_reads(1): S(t, 'fr1')
    for i in range(8):
        S.mark(f"c{i}a")
        for ks in range(4):
            n0 = 4*i + ks; st = g1_set(n0); first = n0 == 0
            rds = g1_reads(n0 + 2)
            bar = (ks == 1 and i < 7) or n0 == 30
            if n0 == 1: S.mark("c0h")
            if n0 > 0: S.waitlg(f'fr{n0}')
            small = [st] if n0 < 30 else ([st, g1_set(31)] if n0 == 30 else [])
            if OPT['cshare'] and n0 >= 4: small = []
            for n, (u, tt) in enumerate([(0, 0), (0, 1), (1, 0), (1, 1)]):
                acc = ACC + 16 * (2*u + tt)
                c = "0" if first else vr(acc, 16)
                if bar and n == 3:
                    S.mark(f"c{i}m")
                    if i == OPT['kvpos']:
                        if OPT['cshare'] and OPT['cspub'] == 2: S.extend(cs_publish())
                        S.waitvm("kvd"); S("s_barrier"); S.extend(kvpre())
                        if OPT['prof'] in (2, 4): stamp(S, "kvp")
                    if i < 7: S.waitvm(f"c{i+1}")
                    if OPT['prof'] in (2, 4): stamp(S, f"w{i}")
                    S.waitlg()
                S(f"v_mfma_f32_32x32x16_bf16 {vr(acc,16)}, v[{st+4*u}:{st+4*u+3}], v[{st+8+4*tt}:{st+11+4*tt}], {c}")
                k = 0
                if bar and n == 3:
                    S("s_barrier"); S.mark(f"c{i}b"); k = 2
                while rds and k < (3 if bar else 2): S(rds.pop(0), f'fr{n0+2}'); k += 1
                if n0 == 30 and n == 2 and not OPT['cshare']:
                    S(f"ds_write_b128 v{vCSW}, a[{CSACC}:{CSACC+3}]"); k += 1
                S.fill(CAP - k)
                if n == 0 and not (OPT['x_nocs'] and n0 > 0):
                    for sm in small:
                        c = "0" if first else ar(CSACC, 4)
                        S(f"v_mfma_f32_16x16x32_bf16 {ar(CSACC,4)}, v[{sm}:{sm+3}], {ar(SEL,4)}, {c}")
                        S.fill(1)
        S.mark(f"c{i}e")
    return S

CSL = 200
def cs_publish():
    S = Stream(); a, b = 250, 251; T = 240
    S(f"""
    s_and_b32 s{sCsN}, s{sJ}, 1
    s_xor_b32 s{sCsN}, s{sCsN}, 1
    s_lshl_b32 s{sCsN}, s{sCsN}, 1
    v_and_b32 v{a}, 15, v{vL}
    v_lshrrev_b32 v{b}, 4, v{vL}
    v_lshlrev_b32 v{b}, 5, v{b}
    v_lshl_add_u32 v{b}, v{a}, 7, v{b}
    v_mov_b32 v{T+1}, v{vN}
    v_mov_b32 v{T+3}, v{vN}
    v_mov_b32 v{T+5}, v{vN}
    v_mov_b32 v{T+7}, v{vN}
    """)
    g = Stream(); g(f"v_cmp_gt_u32 vcc, s{sCsN}, v{a}\nv_mov_b32 v{a}, {OOB}\nv_cndmask_b32 v{b}, v{a}, v{b}, vcc"); S.atomic(g)
    for r in range(4): S(f"v_accvgpr_read_b32 v{T+2*r}, a{CSACC+r}")
    S(f"buffer_store_dwordx4 v[{T}:{T+3}], v{b}, {srd(WS)}, s{sCsW} offen sc1\nbuffer_store_dwordx4 v[{T+4}:{T+7}], v{b}, {srd(WS)}, s{sCsW} offen offset:16 sc1")
    return S
def cs_loads():
    return [f"buffer_load_dwordx2 v[{CSL+2*i}:{CSL+2*i+1}], v{vCSW}, {srd(WS)}, s{sCsR} offen offset:{1024*i} sc1" for i in range(4)]
def cs_gather():
    S = Stream(); t = CSL + 1
    check_poll(S, cs_loads(), [CSL+1, CSL+3, CSL+5, CSL+7])
    S(f"""
    v_add_f32 v{CSL}, v{CSL}, v{CSL+2}
    v_add_f32 v{CSL+4}, v{CSL+4}, v{CSL+6}
    v_and_b32 v{CSL+2}, 31, v{vL}
    v_add_f32 v{CSL}, v{CSL}, v{CSL+4}
    v_lshlrev_b32 v{CSL+2}, 2, v{CSL+2}
    v_mov_b32 v{t}, v{CSL}
    s_lshl_b32 s{sCsN}, s{sW}, 7
    s_add_u32 s{sCsN}, s{sCsN}, {CS}
    v_permlane32_swap_b32 v{CSL}, v{t}
    v_add_u32 v{CSL+2}, s{sCsN}, v{CSL+2}
    v_add_f32 v{CSL}, v{CSL}, v{t}
    ds_write_b32 v{CSL+2}, v{CSL}
    """)
    return S

def cs_reads():
    S = Stream()
    for u in range(2):
        for j in range(4): S(f"ds_read_b128 v[{CSV+16*u+4*j}:{CSV+16*u+4*j+3}], v{vCSA+u} offset:{32*j}")
    return S

def stats_consume():
    S = Stream()
    check_poll(S, stat_loads(1), [STL+5, STL+7])
    for tt in range(2):
        a1 = STL + 4 + 2*tt
        S(f"v_and_b32 v{MR+2*tt+1}, 0xffff0000, v{a1}\nv_rcp_f32 v{MR+2*tt+1}, v{MR+2*tt+1}\nv_lshlrev_b32 v{MR+2*tt}, 16, v{a1}\nv_mul_f32 v{MR+2*tt+1}, {NLOG2E:#x}, v{MR+2*tt+1}")
    return S

def epi1(inserts):
    S = Stream(); n = 0; held = []
    for u in range(2):
        for tt in range(2):
            for s in range(2):
                acc = ACC + 16*(2*u+tt) + 8*s; cs = CSV + 16*u + 8*s; W = FR + 8*(n & 1); P = FR + 16 + 4*n
                mr = f"v[{MR+2*tt}:{MR+2*tt+1}]"
                for p in range(4): S(f"v_pk_fma_f32 v[{acc+2*p}:{acc+2*p+1}], v[{cs+2*p}:{cs+2*p+1}], {mr}, v[{acc+2*p}:{acc+2*p+1}] op_sel_hi:[1,0,1] neg_lo:[0,1,0] neg_hi:[0,1,0]")
                for p in range(4): S(f"v_pk_mul_f32 v[{W+2*p}:{W+2*p+1}], v[{acc+2*p}:{acc+2*p+1}], {mr} op_sel:[0,1] op_sel_hi:[1,1]")
                for p in range(8): S(f"v_exp_f32_e64 v{W+p}, v{W+p}")
                if held and n > OPT['uat']: S(held.pop(0), "hst")
                for p in range(4): S(f"v_pk_add_f32 v[{W+2*p}:{W+2*p+1}], v[{W+2*p}:{W+2*p+1}], 1.0 op_sel_hi:[1,0]")
                for p in range(8): S(f"v_rcp_f32_e64 v{W+p}, v{W+p}")
                if held and n > OPT['uat']: S(held.pop(0), "hst")
                for p in range(4): S(f"v_pk_mul_f32 v[{W+2*p}:{W+2*p+1}], v[{acc+2*p}:{acc+2*p+1}], v[{W+2*p}:{W+2*p+1}]")
                for p in range(4): S(f"v_cvt_pk_bf16_f32 v{P+p}, v{W+2*p}, v{W+2*p+1}")
                st = f"buffer_store_dwordx4 v[{P}:{P+3}], v{vL16}, {srd(WS)}, s{sHst+2*u+tt} offen" + (" offset:1024" if s else "") + [" sc1", "", " nt", " sc0"][OPT['x_hplain']]
                if OPT['hold'] and n <= OPT['uat']: held.append(st)
                else: S(st, "hst")
                if OPT['prof'] == 3: stamp(S, f"e{n}")
                if n in inserts: S.extend(inserts[n])
                n += 1
    for st in held: S(st, "hst")
    return S

CB = 128; CACC = 64; CAF = 96; NA = 6; UST = 220
def pollA_load(): return f"buffer_load_dword v228, v{vPA}, {srd(WS)}, s{sFAp} offen sc1"
sResA = 40; sResC = 41; SA = 64
def spollA_load(): return one(f"s_load_dwordx16 s[{SA}:{SA+15}], s[{WS}:{WS+1}], s{sFAp} glc")
def u_loads(block=False):
    S = Stream()
    if block: check_poll(S, [pollA_load()], [228]); S(f"s_mov_b32 s{sResA}, 0\ns_mov_b32 s{WSO+2}, {WS_SIZE}")
    elif block is False and OPT['packa']:
        g = Stream(); g(f"s_xor_b32 s{SA}, s{SA}, s{sN}")
        for r in range(1, 16): g(f"s_xor_b32 s{SA+r}, s{SA+r}, s{sN}\ns_or_b32 s{SA}, s{SA}, s{SA+r}")
        g(f"s_cselect_b32 s{WSO+2}, 0, {WS_SIZE}\ns_mov_b32 s{sResA}, s{SA}"); S.atomic(g)
    elif block is False: note_poll(S, 228, sResA)
    S(f"buffer_load_dwordx4 v[{UST}:{UST+3}], v{vL16}, {srd(WSO)}, s{sU} offen sc1")
    S(f"buffer_load_dwordx4 v[{UST+4}:{UST+7}], v{vL16}, {srd(WSO)}, s{sU} offen offset:1024 sc1")
    return S

DU = 96
def conv():
    S = Stream()
    repair(S, sResA, one(f"s_mov_b32 s{WSF+2}, {WS_SIZE}\ns_mov_b32 s{sDone}, 0x80000000\nbuffer_store_dword v{vN}, v{vL0}, {srd(WSF)}, s{sFBo} offen sc1"), pollA_load(), 228, u_loads(None))
    if OPT['prof'] == 3: stamp(S, "rep")
    S(f"ds_write_b128 v{vCU}, v[{UST}:{UST+3}]\nds_write_b128 v{vCU}, v[{UST+4}:{UST+7}] offset:1024")
    S.waitvm("hc"); S.waitlg(); S("s_barrier")
    stamp(S, "conv0")
    rA = lambda c, a: CB + 64*(c & 1) + 4*a
    rB = lambda c, b: CB + 64*(c & 1) + 32 + 4*b
    def ldA(c, a):
        m = 4*a + c
        return [f"ds_read2_b32 v[{rA(c,a)+2*h}:{rA(c,a)+2*h+1}], v{vCA+(m>>3)} offset0:{32*(m&7)+2*h} offset1:{32*(m&7)+2*h+1}" for h in range(2)]
    ldB = lambda c, b: [f"ds_read_b128 v[{rB(c,b)}:{rB(c,b)+3}], v{vCB} offset:{128*(4*b+c)}"]
    pairs = [(a, b) for a in range(8) for b in range(7, a - 1, -1)]
    def loads(c):
        L = ldA(c, 0)
        for b in range(7, -1, -1): L += ldB(c, b)
        for a in range(1, 8): L += ldA(c, a)
        return L
    q = loads(0)
    for t in q[:6]: S(t)
    q = q[6:]
    S.mark("cva"); seenT = set(); p = 0
    for c in range(4):
        nq = loads(c + 1) if c < 3 else []
        if c > 0 and OPT['cvwait']: S.waitlg(f"cl{c}")
        for i, (a, b) in enumerate(pairs):
            T = a + 7 - b; acc = CACC + 4*T
            cc = vr(acc, 4) if T in seenT else "0"; seenT.add(T)
            S(f"v_mfma_f32_16x16x32_bf16 {vr(acc,4)}, v[{rA(c,a)}:{rA(c,a)+3}], v[{rB(c,b)}:{rB(c,b)+3}], {cc}")
            k = 0
            if q:
                for _ in range(2 if len(q) > 14 else 1):
                    if q: S(q.pop(0)); k += 1
            elif nq and (c == 0 or i % 4 != 3) and i >= 1: S(nq.pop(0), f"cl{c+1}"); k += 1
            S.fill(2 - k)
            S.mark(f"cv{p}")
            if OPT['prof'] == 3 and p in (35, 71, 107): stamp(S, f"cv{p}")
            p += 1
        for t in nq: S(t, f"cl{c+1}")
    S.mark("cve")
    stamp(S, "conv1")
    return S

def conv_du():
    S = Stream(); U = 112
    for T in range(4): S(f"ds_read_b64 v[{U+2*T}:{U+2*T+1}], v{vCD} offset:{(3-T)*512}")
    for T in range(4):
        a = DU + 4*T
        S(f"""v_and_b32 v{a}, 0xffff0000, v{U+2*T+1}
        v_lshlrev_b32 v{a+1}, 16, v{U+2*T+1}
        v_and_b32 v{a+2}, 0xffff0000, v{U+2*T}
        v_lshlrev_b32 v{a+3}, 16, v{U+2*T}""")
        for r in range(4): S(f"v_mul_f32 v{a+r}, s{sDv}, v{a+r}")
    return S

def conv_epi(tail):
    S = Stream(); R = 224; Y = 120
    S(f"s_nop 5\ns_cmp_eq_u32 s{sFH}, 0\ns_cbranch_scc0 L_odd")
    def half(T_, keep, send):
        for T in range(4): T_(f"ds_write_b128 v{vCX}, v[{send+4*T}:{send+4*T+3}] offset:{1024*T}")
        for p in range(8): T_(f"v_pk_add_f32 v[{DU+2*p}:{DU+2*p+1}], v[{DU+2*p}:{DU+2*p+1}], v[{keep+2*p}:{keep+2*p+1}]")
    half(S, CACC, CACC + 16)
    S("L_oddback:")
    O = Stream(); O("L_odd:"); half(O, CACC + 16, CACC); O("s_branch L_oddback"); rare.extend(O)
    S.waitlg(); S("s_barrier")
    for T in range(4): S(f"ds_read_b128 v[{R+4*T}:{R+4*T+3}], v{vCXR} offset:{1024*T}")
    S.extend(tail)
    for pr in range(2):
        for T in (2*pr, 2*pr+1):
            a = DU + 4*T
            S(f"v_pk_add_f32 v[{a}:{a+1}], v[{a}:{a+1}], v[{R+4*T}:{R+4*T+1}]\nv_pk_add_f32 v[{a+2}:{a+3}], v[{a+2}:{a+3}], v[{R+4*T+2}:{R+4*T+3}]")
            y = Y + 4*pr + 2*(T & 1)
            S(f"v_cvt_pk_bf16_f32 v{y}, v{a}, v{a+1}\nv_cvt_pk_bf16_f32 v{y+1}, v{a+2}, v{a+3}")
        y = Y + 4*pr
        S(f"v_permlane16_swap_b32 v{y}, v{y+2}\nv_permlane16_swap_b32 v{y+1}, v{y+3}")
        S(f"buffer_store_dwordx4 v[{y}:{y+3}], v{vCY}, {srd(WS)}, s{sYs} offen" + (" offset:1024" if pr else "") + " sc1", "yst")
    return S

HR = 128; XF = 224; SF = 240; TP = 192
def pollB_load(): return f"buffer_load_dword v4, v{vPB}, {srd(WS)}, s{sFBp} offen sc1"
def pollC_load(): return f"buffer_load_dword v5, v{vPC}, {srd(WS)}, s{sFCp} offen sc1"
sFBq = sFBp
def spollB_load():
    return one(f"s_load_dwordx4 s[8:11], s[{WS}:{WS+1}], s{sFBp} glc\ns_load_dwordx4 s[88:91], s[{WS}:{WS+1}], s{sFBp} offset:16 glc")
def spollB_check(S):
    k = nrare[0]; nrare[0] += 1
    g = Stream()
    g(f"s_xor_b32 s8, s8, s{sN}")
    for r in (9, 10, 11, 88, 89, 90): g(f"s_xor_b32 s{r}, s{r}, s{sN}\ns_or_b32 s8, s8, s{r}")
    g(f"s_cbranch_scc1 L_rare{k}\nL_back{k}:")
    S.atomic(g)
    rare(f"L_rare{k}:\ns_mov_b32 s{sCnt}, 0")
    if OPT['prof']: rare(f"v_writelane_b32 v{vPROF}, 1, {52+k}")
    rare(f"L_rl{k}:\ns_sleep 1\nbuffer_load_dword v4, v{vPB}, {srd(WS)}, s{sFBq} offen sc1\ns_waitcnt vmcnt(0)\nv_cmp_ne_u32 vcc, s{sN}, v4")
    rare(f"s_nop 1\ns_cbranch_vccz L_back{k}\ns_add_u32 s{sCnt}, s{sCnt}, 1\ns_cmp_lt_u32 s{sCnt}, 0x4000\ns_cbranch_scc1 L_rl{k}\ns_branch L_back{k}")
def hload(n):
    D = OPT['hring']; p, k = divmod(n, 28); so = 64 + 7*p + (k >> 2)
    return one(f"buffer_load_dwordx4 v[{HR+4*(n%D)}:{HR+4*(n%D)+3}], v{vL16}, {srd(WS)}, s{so} offen" + (f" offset:{(k&3)*1024}" if k & 3 else "") + " sc1")
def gemm2():
    S = Stream(); D = OPT['hring']; NT = OPT['ntail']
    S.mark("g2s")
    def mf(n, u):
        p, k = divmod(n, 28); h = HR + 4*(n % D)
        acc = ACC + 32*(1-p) + 16*u; a = (2*k + u) * 4
        S(f"v_mfma_f32_32x32x16_bf16 {vr(acc,16)}, {ar(a,4)}, v[{h}:{h+3}], {'0' if k == 0 else vr(acc, 16)}")
    for n in range(56 - NT):
        for u in range(2):
            mf(n, u); used = 0
            if u == 1 and n + D < 56: S.extend(hload(n + D)); used = 1
            S.fill(5 - used)
        S.mark(f"g2_{n}")
        if OPT['prof'] > 1 and n in (0, 13, 27, 34, 41): stamp(S, f"g2_{n}")
    for n in range(56 - NT, 56): mf(n, 1); S.fill(5)
    S.mark("g2t")
    F = ACC + 16; Ee = ACC + 32
    tail = [f"ds_write_b128 v{vRW}, v[{F+4*j}:{F+4*j+3}] offset:{32768+1024*j}" for j in range(4)]
    for i, n in enumerate(range(56 - NT, 56)):
        mf(n, 0)
        if i == min(1, NT - 1):
            for t in tail: S(t)
    S.waitlg(); S("s_barrier")
    for j in range(4): S(f"ds_read_b128 v[{F+4*j}:{F+4*j+3}], v{vRR+2} offset:{32768+1024*j}")
    return S

def red_early_w():
    S = Stream()
    for u in range(2):
        for j in range(4): S(f"ds_write_b128 v{vRW}, v[{ACC+32+16*u+4*j}:{ACC+35+16*u+4*j}] offset:{4096*u+1024*j}")
    g = Stream(); g.waitlg(); g("s_barrier"); S.atomic(g)
    return S
def red_early_r():
    S = Stream(); A = ACC + 32; B = ACC + 48
    for j in range(4): S(f"ds_read_b128 v[{A+4*j}:{A+4*j+3}], v{vRR} offset:{1024*j}")
    for j in range(4): S(f"ds_read_b128 v[{B+4*j}:{B+4*j+3}], v{vRR+1} offset:{4096+1024*j}")
    for r in range(16): S(f"v_add_f32 v{A+r}, v{A+r}, v{B+r}")
    return S

FS = 8
def prep_x():
    S = Stream()
    g = Stream()
    g(f"s_add_u32 m0, s{sM0b}, {E}\ns_add_u32 s{sT0}, s{sXO}, 15360\nbuffer_load_dwordx4 v{vXD}, {srd(QF)}, s{sXO} offen lds")
    g(f"buffer_load_dwordx4 v{vXD}, {srd(QF)}, s{sT0} offen offset:1024 lds", "xd")
    S.atomic(g)
    S(f"buffer_load_dwordx2 v[{FS}:{FS+1}], v{vSTV}, {srd(WS)}, s{sStatF} offen sc1")
    return S
def prep_x2():
    S = Stream(); XR = 16
    check_poll(S, [f"buffer_load_dwordx2 v[{FS}:{FS+1}], v{vSTV}, {srd(WS)}, s{sStatF} offen sc1"], [FS+1])
    S(f"v_and_b32 v{FS+1}, 0xffff0000, v{FS}\nv_rcp_f32 v{FS+1}, v{FS+1}\nv_lshlrev_b32 v{FS}, 16, v{FS}\nv_mul_f32 v{FS+2}, v{FS+1}, v{FS+1}\nv_mul_f32 v{FS+1}, {NLOG2E:#x}, v{FS+1}")
    S.waitvm("xd")
    for j in range(4):
        if j: S(f"v_xor_b32 v{FS+3}, {16*j}, v{vXA}")
        S(f"ds_read_b64 v[{XR+2*j}:{XR+2*j+1}], v{FS+3 if j else vXA}")
    for q in range(8):
        S(f"v_lshlrev_b32 v{XF+2*q}, 16, v{XR+q}\nv_and_b32 v{XF+2*q+1}, 0xffff0000, v{XR+q}")
    for r in range(16): S(f"v_sub_f32 v{SF+r}, v{XF+r}, v{FS}")
    for r in range(16): S(f"v_mul_f32 v{SF+r}, v{SF+r}, v{FS+2}")
    return S
YSR = ACC + 48
def prep_y(note=True):
    S = Stream(); YS = YSR
    if note: note_poll(S, 5, sResC)
    S(f"s_add_u32 s{sT0}, s{sYl}, 65536")
    S(f"buffer_load_dwordx4 v[{YS}:{YS+3}], v{vYL}, {srd(WSO)}, s{sYl} offen sc1\nbuffer_load_dwordx4 v[{YS+4}:{YS+7}], v{vYL}, {srd(WSO)}, s{sT0} offen sc1")
    return S
YR = 16
def prep_y2():
    S = Stream(); YS = YSR
    S(f"ds_write_b128 v{vYW}, v[{YS}:{YS+3}]\nds_write_b128 v{vYW}, v[{YS+4}:{YS+7}] offset:1024")
    for j in range(4): S(f"ds_read_b64_tr_b16 v[{YR+2*j}:{YR+2*j+1}], v{vYA} offset:{512*j}")
    return S

def final():
    S = Stream(); A = ACC; F = ACC + 16; Ee = ACC + 32; W = HR; P = HR + 16; Yf = HR + 32
    stamp(S, "g2end")
    pr = lambda b, p: f"v[{b+2*p}:{b+2*p+1}]"
    mr = f"v[{FS}:{FS+1}]"
    for p in range(8): S(f"v_pk_add_f32 {pr(A,p)}, {pr(A,p)}, {pr(Ee,p)}")
    for p in range(8): S(f"v_pk_add_f32 {pr(A,p)}, {pr(A,p)}, {pr(F,p)}")
    for p in range(8): S(f"v_pk_mul_f32 {pr(W,p)}, {pr(A,p)}, {mr} op_sel:[0,1] op_sel_hi:[1,1]")
    for p in range(16): S(f"v_exp_f32_e64 v{W+p}, v{W+p}")
    S.extend(prep_y2())
    for p in range(8): S(f"v_pk_add_f32 {pr(W,p)}, {pr(W,p)}, 1.0 op_sel_hi:[1,0]")
    for p in range(16): S(f"v_rcp_f32_e64 v{W+p}, v{W+p}")
    for p in range(8): S(f"v_pk_mul_f32 {pr(A,p)}, {pr(A,p)}, {pr(SF,p)}")
    for p in range(8): S(f"v_pk_mul_f32 {pr(A,p)}, {pr(A,p)}, {pr(W,p)}")
    repair(S, sResC, Stream(), pollC_load(), 5, cat(prep_y(False), prep_y2()))
    for j in range(4):
        for q in (2*j, 2*j+1): S(f"v_lshlrev_b32 v{Yf+2*q}, 16, v{YR+q}\nv_and_b32 v{Yf+2*q+1}, 0xffff0000, v{YR+q}")
        for p in (2*j, 2*j+1): S(f"v_pk_fma_f32 {pr(W,p)}, {pr(A,p)}, {pr(Yf,p)}, {pr(XF,p)}")
        for p in (2*j, 2*j+1): S(f"v_cvt_pk_bf16_f32 v{P+p}, v{W+2*p}, v{W+2*p+1}")
        S(f"ds_write_b64 v{vOW}, v[{P+2*j}:{P+2*j+1}] offset:{16*j}")
    S(f"s_add_u32 s{sT0}, s{sXO}, 16384")
    S(f"ds_read_b128 v[{W}:{W+3}], v{vOR}\nds_read_b128 v[{W+4}:{W+7}], v{vOR} offset:1280")
    S(f"buffer_store_dwordx4 v[{W}:{W+3}], v{vOS}, {srd(OUT)}, s{sXO} offen\nbuffer_store_dwordx4 v[{W+4}:{W+7}], v{vOS}, {srd(OUT)}, s{sT0} offen")
    if OPT['prof']:
        stamp(S, "outst"); S("s_waitcnt vmcnt(0)"); stamp(S, "end")
        S(f"s_lshl_b32 s{sT0}, s2, 2\ns_add_u32 s{sT0}, s{sT0}, s{sW}\ns_lshl_b32 s{sT0}, s{sT0}, 8\ns_add_u32 s{sT0}, s{sT0}, {PROF}\nv_lshlrev_b32 v{vT}, 2, v{vL}")
        S(f"buffer_store_dword v{vPROF}, v{vT}, {srd(WS)}, s{sT0} offen")
    return S

def stS(name):
    s = Stream(); stamp(s, name); return s
def cat(*ss):
    o = Stream()
    for s in ss: o.extend(s)
    return o
def one(t, tag=None):
    s = Stream(); s(t, tag); return s

def spread(S, items, every):
    o = Stream(); items = list(items); n = 0
    for x in S:
        o.append(x); n += 1
        if items and n % every == 0:
            while items and items[0].cls == 'pseudo' and items[0].op != 'GROUP': o.append(items.pop(0))
            if items: o.append(items.pop(0))
    o.extend(items)
    return o

def build():
    assert not (OPT['cshare'] and OPT['map47'])
    P = Stream()
    P.extend(entry())
    c1 = chunk_dma(1); c2 = chunk_dma(2); kp = OPT['kvpos']; g1f = []
    st = stats()
    pre = cat(one(pollA_load().replace("v228,", "a233,")), one(pollB_load().replace("v4,", "a234,")), one(pollC_load().replace("v5,", "a235,"))) if OPT['pretouch'] else Stream()
    br = one(f"s_cmp_ge_u32 s{sCB1}, 14\ns_cbranch_scc1 L_spare1")
    if kp >= 2:
        P.extend(spread(cat(*[coff(i) for i in range(2, 8)], setup(), kv_pro()), c1[:OPT['c1n']], 20))
        stamp(P, "setup")
        P.extend(st[:16]); P.extend(spread(Stream(st[16:]), cat(c1[OPT['c1n']:], c2[:OPT['c2n']]), 7)); P.extend(br)
        seq = cat(c2[OPT['c2n']:], kv_dma(), dh_loads(), chunk_dma(3), Stream([Pseudo('GATE', 'c0b')]), chunk_dma(4), Stream([Pseudo('GATE', 'c1b')]), chunk_dma(5))
        isl = lambda it: any(y.cls in ('dma', 'vmem_ld') for y in (it.arg if (it.cls == 'pseudo' and it.op == 'GROUP') else [it]))
        li = [i for i, it in enumerate(seq) if isl(it)]
        a0 = li[OPT['r0']]; a1 = li[OPT['r1']]
        ng = lambda st: Stream([x for x in st if not (x.cls == 'pseudo' and x.op == 'GATE')])
        assert not any(x.op == 'GATE' for x in seq[:a0]) and not any(x.op == 'GATE' and x.arg == 'c1b' for x in seq[:a1])
        g1f.append(("c0a", "c0m", Stream(seq[:a0]), (OPT['p0'],)))
        g1f.append(("c0b", "c1m", ng(seq[a0:a1]), (OPT['p1'],)))
        g1f.append(("c1b", "c2m", ng(seq[a1:]), (OPT['p2'],)))
        g1f.append(("c1b", "c2m", cat(setup_b(), kv_addr())))
    else:
        kd = kv_dma(); n0 = OPT['kvn']
        P.extend(kv_pro())
        early = Stream(kd[:n0]) if kp == 0 else Stream(c1[:OPT['c1n']])
        P.extend(spread(cat(*[coff(i) for i in range(2, 8)], setup(), kv_addr()), early, 20))
        stamp(P, "setup")
        late = cat(kd[n0:], dh_loads(), c1) if kp == 0 else cat(c1[OPT['c1n']:], kd, dh_loads())
        P.extend(st[:16]); P.extend(spread(Stream(st[16:]), late, 6)); P.extend(br)
        g1f.append(("c0a", "c0m", setup_b()))
        if kp == 0:
            g1f.append(("c0a", "c0m", c2, (OPT['p0'],)))
            g1f.append(("c0b", "c1m", chunk_dma(3), (OPT['p1'],)))
            g1f.append(("c1b", "c2m", chunk_dma(4), (OPT['p2'],)))
        else:
            g1f.append(("c0a", "c0m", Stream(c2[:4]), (OPT['p0'],)))
            g1f.append(("c0b", "c1m", cat(c2[4:], chunk_dma(3)), (OPT['p1'],)))
            g1f.append(("c1b", "c2m", chunk_dma(4), (OPT['p2'],)))
    D = Stream()
    for c in range(6, 8):
        D.gate(f"c{c-4}b"); D.extend(chunk_dma(c))
    D.gate(OPT['stat_at']); D.pace(OPT['tpp']); D.extend(cat(*[one(t) for t in stat_loads(1) + (cs_loads() if OPT['cshare'] and OPT['cspub'] == 1 else [])], pre, htouch(), w2touch(range(OPT['tp'], 7)) if OPT['tp'] >= 0 else Stream())); D.pace(OPT['w2pace'])
    W2S = cat(Stream([Pseudo('GATE', f'c{kp}b')]), hcopy_dma(), Stream([Pseudo('GATE', 'c4b')]), w2_dma(0), Stream([Pseudo('GATE', 'c5b')]), Stream([Pseudo('CSL')]), w2_dma(1), Stream([Pseudo('GATE', 'c6b')]), w2_dma(2), w2_dma(3), cat(Stream([Pseudo('WAITLG', 'tr0')]), w2_dma(4)) if OPT['n2'] > 36 else Stream())
    isld = lambda it: it.cls == 'pseudo' and it.op == 'GROUP' and any(y.cls == 'dma' for y in it.arg)
    idx = [i for i, it in enumerate(W2S) if isld(it)]
    cut1 = idx[OPT['n1']] if OPT['n1'] < len(idx) else len(W2S); cut2 = idx[OPT['n2']] if OPT['n2'] < len(idx) else len(W2S)
    for it in W2S[:cut1]:
        if it.cls == 'pseudo' and it.op == 'CSL':
            if OPT['cshare'] and OPT['cspub'] > 1:
                D.pace(1); D.extend(cat(*[one(t) for t in cs_loads()])); D.pace(OPT['w2pace'])
        else: D.append(it)
    g1f.append((OPT['dstart'], "c7m", D, (OPT['dp'],)))
    na, nb = (("c0a", "c0m"), ("c0b", "c1a")) if OPT['nonce_at'] == 0 else (("c0b", "c1a"), ("c1b", "c2a"))
    g1f.append((*na, nonce_get(), 1))
    g1f.append((*nb, cat(nonce_use(), stats_store()), 1))
    g1f.append(("c1a", "c1m", flag_init(), 1))
    if OPT['cshare']:
        if OPT['cspub'] == 1: g1f.append(("c1a", "c1m", cs_publish()))
        if OPT['cspub'] == 3: g1f.append(("c2b", "c3a", cs_publish()))
        g1f.append((OPT['csg'], "c7m", cs_gather()))
    ke = kp
    pts = [(f"c{c}{x}", f"c{c}{y}") for c in range(ke + 1, 8) for x, y in (("a", "m"), ("b", "e"))][OPT['ft0']:OPT['ft0'] + 4]
    lastA = len(pts) == 4
    for i, (a, b) in enumerate(pts): g1f.append((a, b, flag_try(sFAo, "kv1", lastA and i == 3), 1))
    g1f.append((("c3a", "c5a") if kp <= 3 else (f"c{kp}b", "c6a")) + (setup_c(),) if not OPT['x_late'] else ("c7b", "c7e", setup_c())); g1f.append(("c6a", "c7m", hoffs()[:1] if OPT['packa'] else hoffs()))
    g1f.append(("c7a", "c7m", stats_consume()))
    if OPT['trg1'] >= 1: g1f.append((OPT['tr0at'], "c7e", w2_tr(0)))
    g1f.append((f"c{max(4, kp)}b", f"c{max(4, kp)+1}m", hpad()))
    g1f.append(("c7b", "c7e", cat(cs_reads(), spollA_load() if OPT['packa'] else one(pollA_load())) if OPT['pat'] < 0 else cs_reads(), 1))
    P.extend(merge(gemm1(), g1f))
    stamp(P, "g1end")
    ins = {OPT['uat']: u_loads()}
    if OPT['pat'] >= 0: ins[OPT['pat']] = spollA_load() if OPT['packa'] else one(pollA_load())
    if not lastA: P.extend(flag_try(sFAo, "kv1", True))
    if OPT['packa']: ins[OPT['uat']].extend(hoffs2())

    nog = lambda st: Stream([x for x in st if not (x.cls == 'pseudo' and x.op in ('GATE', 'CSL'))])
    P.extend(spread(epi1(ins), nog(W2S[cut1:cut2]), OPT['esp']))
    stamp(P, "epi1")
    P("L_join:")
    W = lambda t: Stream([Pseudo('WAITLG', t)])
    G = lambda m: Stream([Pseudo('GATE', m)])
    fb = OPT['flagB_at']; t0, t1, t2, t3 = OPT['t0'], OPT['t1'], OPT['t2'], OPT['t3']; fs = OPT['fbs']; fn = OPT['fbn']
    cf = [(f"cv{fb+fs*i}", f"cv{fb+fs*i+6}", flag_try(sFBo, "hst", i == fn - 1), 1) for i in range(fn)]
    cf += [("cva", "cve", cat(G(f"cv{OPT['d3']}"), nog(W2S[cut2:]), G(f"cv{OPT['d4']}"), cat(W('tr0'), w2_dma(4)) if OPT['n2'] <= 36 else Stream(), W('tr1'), w2_dma(5), W('tr2'), w2_dma(6)), (OPT['cvpace'],)),
          (f"cv{OPT['pb']}", "cve", spollB_load() if OPT['packb'] else one(pollB_load()), 1)]
    if OPT['trg1'] < 1: cf.append((f"cv{t0}", f"cv{t1}", w2_tr(0)))
    if OPT['trg1'] < 2: cf.append((f"cv{t1}", f"cv{t2}", w2_tr(1)))
    if OPT['packa']: cf.append(("cv20", "cv100", Stream(hoffs()[1:])))
    cf += [(f"cv{t2}", f"cv{t3}", w2_tr(2)), (f"cv{t3}", "cv125", w2_tr(3)), ("cv100", "cve", conv_du())]
    if OPT['trg1'] == 2: P.extend(w2_tr(1))
    HL = cat(*[hload(n) for n in range(OPT['hring'])])
    chk = Stream()
    if OPT['packb']: spollB_check(chk)
    else: check_poll(chk, [pollB_load()], [4])
    stamp(chk, "hflag")
    hc = OPT['hcv']
    if hc: cf.insert(0, (f"cv{OPT['hcat']}", "cve", cat(chk, HL[:hc]), (OPT['hcp'],)))
    post = Stream()
    if OPT['x_cv']:
        keep = []
        for f in cf:
            txt = " ".join(x.text for x in flatten(f[2]) if x.cls != 'pseudo')
            kind = 1 if " lds" in txt else 2 if "tr_b16" in txt else 4 if "s_getreg" in txt or "s_cmp_eq_u32 s87" in txt else 8
            if OPT['x_cv'] & kind: post.append((kind, f[2]))
            else: keep.append(f)
        cf = keep
    P.extend(merge(conv(), cf))
    for kind in (4, 2, 1, 8):
        for k2, st2 in post:
            if k2 == kind and not (kind == 2 and any(x.tag == 'tr3' for x in st2)): P.extend(nog(st2))
    for k2, st2 in post:
        if k2 == 2 and any(x.tag == 'tr3' for x in st2): P.extend(nog(st2))
    P.extend(W('tr3'))
    if OPT['hearly']:
        ce = conv_epi(Stream())
        ib = [i for i, x in enumerate(ce) if x.op == 's_barrier'][0]
        h1 = OPT['he1']; h2 = OPT['he2']
        P.extend(Stream() if hc else chk); P.extend(HL[hc:h1]); P.extend(ce[:ib]); P.extend(HL[h1:h2]); P.extend(spread(Stream(ce[ib:]), HL[h2:OPT['hearly']], 2))
        stamp(P, "conv2"); P.extend(HL[OPT['hearly']:]); P.extend(prep_x())
    else:
        P.extend(conv_epi(prep_x())); stamp(P, "conv2")
        P.extend(chk); P.extend(HL); P.extend(flag_store(sFCo, WS, "yst"))
    global SPARE_W2
    SPARE_W2 = nog(W2S[:cut2])
    if OPT['trg1'] >= 1:
        iw = [i for i, x in enumerate(SPARE_W2) if x.cls == 'pseudo' and x.op == 'WAITLG']
        iw = iw[0] if iw else len(SPARE_W2)
        SPARE_W2 = cat(SPARE_W2[:iw], w2_tr(0), SPARE_W2[iw:])
    D = OPT['ylag']
    gf = [(f"g2_{x}", f"g2_{x+1}", flag_try(sFCo, "yst", x == 15), 1) for x in (0, 3, 6, 10, 15)] if OPT['hearly'] else []
    if OPT['trpre']: P.extend(cat(w2_tr(4), w2_tr(5), w2_tr(6)))
    else: gf.append(("g2s", "g2_14", cat(w2_tr(4), w2_tr(5), w2_tr(6))))
    gf += [
          ("g2_14", "g2_27", prep_x2()),
          ("g2_28", "g2_33", red_early_w()),
          ("g2_35", "g2_44", red_early_r()),
          (f"g2_{OPT['yat']}", f"g2_{OPT['yat']+1}", one(pollC_load())),
          (f"g2_{OPT['yat']+D}", "g2t", prep_y(), 1)]
    P.extend(merge(gemm2(), gf))
    P.extend(final())
    if OPT['x_pad']:
        P(f"L_pad:\ns_memrealtime s[64:65]\ns_waitcnt lgkmcnt(0)\ns_sub_u32 s64, s64, s{sN}\ns_cmp_lt_u32 s64, {OPT['x_pad']}\ns_cbranch_scc1 L_pad")
    P("L_end:\ns_endpgm")
    P = flatten(P)
    kv_last = max(i for i, x in enumerate(P) if x.tag == 'kvd')
    sb_first = min(i for i, x in enumerate(P) if x.cls == 'salu' and f"s{sFBo}" in x.wr and 'mov' not in x.op)
    assert kv_last < sb_first, "k/v SRDs overwritten before use"
    last = None
    for x in P:
        if x.cls == 'salu' and 'm0' in x.wr: last = x.text
        if x.cls == 'dma' and x.arg is not None: assert x.arg == last, ("m0 changed under a DMA group", x.text, last)
        if x.cls == 'label' and x.text.startswith('L_join'): last = None
    c7_last = max(i for i, x in enumerate(P) if x.tag == 'c7')
    ho_first = min(i for i, x in enumerate(P) if x.text.startswith(f"s_mov_b64 s[{WSO}:{WSO+1}], s[{WS}"))
    assert c7_last < ho_first, "GEMM1 SRDs / offsets overwritten before the last chunk load"
    P = autowait(P); P = hazards(P)
    P.extend(hazards(autowait(flatten(spare1()))))
    R = hazards(flatten(rare))
    P.extend(R); P("L_codeend:")
    P = align8(P)
    return P

HEAD = open("cdna_kernels/" + NAME + ".s.ref").read().split("; Override launch")[0]
def emit():
    P = build()
    size = sum(x.size for x in P)
    o = HEAD + f"; @launch grid=(256,1,1) block=(256,1,1) lds={LDS_BYTES}\n"
    o += f'.amdgcn_target "amdgcn-amd-amdhsa--gfx950"\n.text\n.globl {NAME}_kernel\n.p2align 8\n.type {NAME}_kernel,@function\n{NAME}_kernel:\n'
    o += "\n".join(l for l in text(P).split("\n") if not l.strip().startswith("; MARK"))
    o += f""".section .rodata,"a"
.p2align 6
.amdhsa_kernel {NAME}_kernel
  .amdhsa_next_free_vgpr 512
  .amdhsa_next_free_sgpr 102
  .amdhsa_accum_offset 256
  .amdhsa_group_segment_fixed_size 0
  .amdhsa_kernarg_size 96
  .amdhsa_user_sgpr_count 2
  .amdhsa_user_sgpr_kernarg_segment_ptr 1
  .amdhsa_system_sgpr_workgroup_id_x 1
.end_amdhsa_kernel
"""
    return o, size

if __name__ == "__main__":
    o, size = emit()
    open(sys.argv[1], "w").write(o)
    print("code bytes (estimate):", size, "stamps:", stamp_names)
    open(sys.argv[1] + ".stamps", "w").write(",".join(stamp_names))
```

```python
import sys, struct
from ir import *

NAME = "recurrent_scan__ssm_conv_h3__dense_activation_silu__prompt"
OPT = dict(t4=100, kvfill=0, fine=0, tiny=2, x_kvnull=0, x_w1null=0, hl0=11, trmid=1, xmid=1, x_meas=0, x_wg=-1, x_wgm=255, pk=0, g2w=7, gw0=0, gwp=2, x_pad=0, tr0at='c7a', hcv=0, hcat=108, hcp=4, msw=0, cspub=2, csg='c7a', cshare=0, ownw2=8, stch=0, st0=6, r0=4, r1=20, c4e=0, packa=1, hold=1, tpp=2, packb=1, he1=6, he2=10, x_cv=0, cvwait=1, fbs=25, fbn=3, trg1=0, trpre=1, tp=-1, pb=115, d3=0, c5e=1, stat_at='c4a', x_notry=0, x_late=0, dp=2, dstart='c2b', kvn=1, ft0=2, c3b=0, c3a=7, sw3=7, swn=1, swflag=0, c3pf=1, hcnt=1, qnt=0, hearly=0, ntail=4, dbgout=0, rotk=2, rotx=1, htouch=0, x_w2null=0, x_hcnull=0, x_hplain=0, n1=16, n2=28, d4=40, fa=6, pat=0, cvpace=4, t0=8, t1=24, t2=40, t3=56, pretouch=0, c2n=4, p0=2, p1=2, p2=2, b1n=5, b2n=5, esp=8, yat=40, ylag=9, ylate=1, map47=0, tlb=0, nonce_at=0, slowat=4, nt=1, c1n=1, kvpos=2, w2pace=5, sweep=0, uat=3, x_nokv=0, x_nocs=0, x_nodma=0, x_nobar=0, x_now2=0, onewait=1, kvend=4, cap=5, spare=1, prof=0, stats_fill=0, hring=16, flagB_at=45, codepf=1)
for a in sys.argv[2:]:
    k, v = a.split('='); OPT[k] = int(v) if v.lstrip('-').isdigit() else v

HWS = 0; KVR = 0x700000; YT = 0x900000; STATS = 0xB00000; FLA = 0xB10000; FLB = 0xB30000; FLC = 0xB50000; CSP = 0xB70000
PROF = 0xB80000; WS_SIZE = 0xC00000
E = 131072; KT = E; VT = E + 9360; HC = E; UR = E + 17680; CS = E + 26896; DUMP = CS + 512
LDS_BYTES = 163840
OOB = 0x80000000
f2u = lambda f: struct.unpack('<I', struct.pack('<f', f))[0]
NLOG2E = f2u(-1.4426950408889634)

sX, sJ, sW, sT0, sT1 = 3, 4, 5, 6, 7
Q1, QF, SKK, SVV, W1, W2, SSK, WS, WSH, OUT, DBG, SHK, KZ = 8, 12, 16, 20, 24, 28, 32, 36, 40, 44, 48, 52, 60
sDptr = 56; sN = 58; sDv = 59; sN2 = 56; sW2neg = 84
sCsW = 64; sCsR = 72; sCsN = 95
WSB = 8
sQoff = 64; sWoff = 72
sM0b = 80; sW2off = 81; sStatC = 82; sRot = 83; sStatW = 84; sFH = 85; sTH = 86; sH0 = 87
CODE = 88; sHst = 88
sM0q = 92; sM0w = 93; sP = 94; sCnt = 96; sC0 = sT0
sRB1, sCB1, sRB2, sCB2, sCH = 97, 98, 99, 100, 101
sKV0, sKV1, sFAo, sFAp, sU, sFBo, sFBp, sYs = 16, 17, 18, 19, 20, 21, 22, 23
sFCo, sFCp, sHL, sYl = 52, 53, 54, 55
sXO, sStatF, sHC, sHLo = 60, 61, 62, 63
def srd(b): return f"s[{b}:{b+3}]"

vL = 1; vL16 = 2; vL0 = 3
vQD = 4; vWD = 8; vBD = 12
vQA = 16; vWA = 24
vN = 28; vSTV = 29; vCSW = 30; vCSA = 31
vTA = 33; vCA = 37
vCB = 41; vCU = 42; vCD = 43; vCX = 44; vCXR = 45; vCY = 46
vPA = 47; vPB = 48; vPC = 49
vXD = 50; vYL = 51; vOS = 52
vXA = 53; vYW = 54; vYA = 55; vOW = 56; vOR = 57; vRW = 58; vRR = 59
vPROF = 62; vT = 63
vDV = 215; vH0 = 214
ACC = 64; FR = 128
CSACC = 244; SEL = 240; CSV = 176
STL = 208; MR = 216
def vr(b, n=1): return f"v{b}" if n == 1 else f"v[{b}:{b+n-1}]"
def ar(b, n): return f"a[{b}:{b+n-1}]"

rare = Stream(); nrare = [0]
def check_poll(S, reloads, tagregs):
    k = nrare[0]; nrare[0] += 1
    def cmp(T):
        if len(tagregs) == 1:
            T(f"v_cmp_ne_u32 vcc, s{sN}, v{tagregs[0]}")
        else:
            T(f"v_xor_b32 v{vT}, s{sN}, v{tagregs[0]}")
            for r in tagregs[1:]:
                T(f"v_xor_b32 v{r}, s{sN}, v{r}\nv_or_b32 v{vT}, v{vT}, v{r}")
            T(f"v_cmp_ne_u32 vcc, 0, v{vT}")
    g = Stream(); cmp(g); g(f"s_cbranch_vccnz L_rare{k}\nL_back{k}:")
    S.atomic(g)
    rare(f"L_rare{k}:\ns_mov_b32 s{sCnt}, 0")
    if OPT['prof']: rare(f"v_writelane_b32 v{vPROF}, 1, {52+k}")
    rare(f"L_rl{k}:\ns_sleep 1")
    for t in reloads: rare(t)
    rare("s_waitcnt vmcnt(0)")
    cmp(rare)
    rare(f"s_nop 1\ns_cbranch_vccz L_back{k}\ns_add_u32 s{sCnt}, s{sCnt}, 1\ns_cmp_lt_u32 s{sCnt}, 0x4000\ns_cbranch_scc1 L_rl{k}\ns_branch L_back{k}")

WSO = 24
def note_poll(S, tagreg, sres):
    g = Stream(); g(f"v_cmp_ne_u32 vcc, s{sN}, v{tagreg}\ns_or_b32 s{sres}, vcc_lo, vcc_hi\ns_cselect_b32 s{WSO+2}, 0, {WS_SIZE}"); S.atomic(g)
def repair(S, sres, first, reload, tagreg, redo):
    k = nrare[0]; nrare[0] += 1
    g = Stream(); g(f"s_cmp_lg_u32 s{sres}, 0\ns_cbranch_scc1 L_rare{k}\nL_back{k}:"); S.atomic(g)
    R = Stream()
    R(f"L_rare{k}:\ns_mov_b32 s{sCnt}, 0\ns_waitcnt vmcnt(0) lgkmcnt(0)")
    if OPT['prof']: R(f"v_writelane_b32 v{vPROF}, 1, {52+k}")
    R.extend(first)
    R(f"L_rl{k}:\n{reload}\ns_waitcnt vmcnt(0)\nv_cmp_ne_u32 vcc, s{sN}, v{tagreg}\ns_nop 1\ns_cbranch_vccz L_ok{k}\ns_sleep 1\ns_add_u32 s{sCnt}, s{sCnt}, 1\ns_cmp_lt_u32 s{sCnt}, 0x4000\ns_cbranch_scc1 L_rl{k}\nL_ok{k}:")
    R(f"s_mov_b32 s{WSO+2}, {WS_SIZE}")
    R.extend(autowait(flatten(redo)))
    R(f"s_waitcnt vmcnt(0) lgkmcnt(0)\ns_nop 4\ns_branch L_back{k}")
    rare.extend(R)

stamp_names = []
def stamp(S, name):
    if OPT['x_meas'] == name:
        g = Stream(); g(f"s_memrealtime s[{sP}:{sP+1}]\ns_waitcnt lgkmcnt(0)\nv_writelane_b32 v{vPROF}, s{sP}, 0"); S.atomic(g)
    if not OPT['prof']: return
    k = len(stamp_names); stamp_names.append(name)
    g = Stream()
    if OPT['prof'] == 1:
        g(f"s_memrealtime s[{sP}:{sP+1}]\ns_waitcnt lgkmcnt(0)\nv_writelane_b32 v{vPROF}, s{sP}, {k}")
        g(f"s_memtime s[{sP}:{sP+1}]\ns_waitcnt lgkmcnt(0)\nv_writelane_b32 v{vPROF}, s{sP}, {k+32}")
    elif OPT['prof'] == 4:
        g(f"s_memrealtime s[{sP}:{sP+1}]\ns_waitcnt lgkmcnt(0)\nv_writelane_b32 v{vPROF}, s{sP}, {k}")
    else:
        g(f"s_memtime s[{sP}:{sP+1}]\ns_waitcnt lgkmcnt(0)\nv_writelane_b32 v{vPROF}, s{sP}, {k}")
    S.atomic(g)

def dma_n(S, vbase, srdb, soff, m0txt, tag, n=4, samev=False, nt=False):
    for i in range(n):
        g = Stream()
        if i == 0: g(m0txt)
        g(f"buffer_load_dwordx4 v{vbase + (0 if samev else i)}, {srd(srdb)}, s{soff} offen" + (f" offset:{i*1024}" if i else "") + (" nt" if nt else "") + " lds", tag if i == n-1 else None)
        g[-1].arg = m0txt
        S.atomic(g)

def chunk_dma(i, sq=None, sw=None):
    S = Stream(); slot = i & 3
    dma_n(S, vQD, Q1, sQoff + i if sq is None else sq, f"s_add_u32 m0, s{sM0q}, {slot*32768}", None, nt=OPT['qnt'])
    dma_n(S, vWD, W1, sWoff + i if sw is None else sw, f"s_add_u32 m0, s{sM0w}, {slot*32768}", f"c{i}")
    return S

def w2_half(b, h):
    S = Stream(); slot = b & 3
    dma_n(S, vBD, W2, sW2off, f"s_add_u32 m0, s{sM0b}, {slot*32768 + 4096*h}", f"b{b}" if h else None)
    first = S[0].arg
    if h == 1: first.insert(1, Ins(f"s_add_u32 s{sW2off}, s{sW2off}, 32768"))
    elif b > 0:
        first[0:0] = [Ins(f"s_cmp_eq_u32 s{sRot}, {7-b}"), Ins(f"s_cselect_b32 s{sCnt}, s{sW2neg}, 0x8000")]
        first.insert(3, Ins(f"s_add_u32 s{sW2off}, s{sW2off}, s{sCnt}"))
    return S
def w2_dma(b):
    S = w2_half(b, 0); S.extend(w2_half(b, 1)); return S

def w2_tr(b):
    S = Stream(); slot = b & 3; hi = slot >> 1
    S.waitvm(f"b{b}")
    for k4 in range(4):
        for u in range(2):
            a = ((4*b + k4) * 2 + u) * 4
            for rd in range(2):
                off = (slot & 1) * 32768 + k4 * 2048 + rd * 1024
                S(f"ds_read_b64_tr_b16 {ar(a+2*rd, 2)}, v{vTA+2*hi+u} offset:{off}", f"tr{b}")
    return S

vROW = 220
vSHK = 228
MAP = [f"""
    s_lshr_b32 s{sCB1}, s{sJ}, 1
    s_and_b32 s{sT0}, s{sJ}, 1
    s_lshl_b32 s{sRB1}, s{sX}, 1
    s_add_u32 s{sRB1}, s{sRB1}, s{sT0}
    s_mul_i32 s{sT0}, s{sT0}, {OPT['pk']}
    s_add_u32 s{sT0}, s{sT0}, s{sCB1}
    s_add_u32 s{sT0}, s{sT0}, s{sX}
    s_and_b32 s{sT0}, s{sT0}, 7
""", f"""
    s_and_b32 s{sT0}, s{sJ}, 3
    s_lshr_b32 s{sT1}, s{sX}, 1
    s_lshl_b32 s{sRB1}, s{sT1}, 2
    s_add_u32 s{sRB1}, s{sRB1}, s{sT0}
    s_lshl_b32 s{sT0}, s{sT0}, 1
    s_add_u32 s{sT0}, s{sT0}, s{sT1}
    s_lshr_b32 s{sT1}, s{sJ}, 2
    s_add_u32 s{sT0}, s{sT0}, s{sT1}
    s_and_b32 s{sT0}, s{sT0}, 7
    s_and_b32 s{sCB1}, s{sX}, 1
    s_mul_i32 s{sCB1}, s{sCB1}, 7
    s_add_u32 s{sCB1}, s{sCB1}, s{sT1}
    s_cmp_eq_u32 s{sT1}, 7
    s_cselect_b32 s{sCB1}, 14, s{sCB1}
"""]
def entry():
    class SS(Stream):
        def __call__(self, text, tag=None): return Stream.__call__(self, text.replace(' NT', ' nt' if OPT['nt'] else '').replace('MAPPING', MAP[OPT['map47']]), tag)
    S = SS()
    S(f"""
    s_load_dwordx16 s[64:79], s[0:1], 0
    s_load_dwordx8 s[80:87], s[0:1], 64
    s_memrealtime s[40:41]
    s_cmp_ge_u32 s2, 256
    s_cbranch_scc1 L_end
    v_lshrrev_b32 v{vT}, 6, v0
    v_and_b32 v{vL}, 63, v0
    s_and_b32 s{sX}, s2, 7
    v_readfirstlane_b32 s{sW}, v{vT}
    s_lshr_b32 s{sJ}, s2, 3
    MAPPING
    s_mov_b32 s{QF+2}, 0x200000
    s_mov_b32 s{QF+3}, 0x20000
    s_cmp_lt_u32 s{sCB1}, 14
    s_cselect_b32 s{Q1+2}, 0x200000, 0
    s_cselect_b32 s{W1+2}, {0 if OPT['x_w1null'] else 0x1c0000}, 0
    s_mov_b32 s{Q1+3}, 0x20000
    s_mov_b32 s{W1+3}, 0x20000
    s_lshl_b32 s88, s{sX}, 5
    s_add_u32 s88, s88, s{sJ}
    s_lshl_b32 s88, s88, 2
    s_add_u32 s88, s88, s{sW}
    s_lshl_b32 s88, s88, 11
    s_lshl_b32 s89, s{sRB1}, 2
    s_add_u32 s89, s89, s{sW}
    s_lshl_b32 s89, s89, 15
    s_mul_i32 s90, s{sW}, {16*3584}
    s_lshl_b32 s{sT1}, s{sCB1}, 8
    s_add_u32 s90, s90, s{sT1}
    s_lshl_b32 s58, s{sT0}, 7
    s_add_u32 s58, s58, s89
    s_mul_i32 s59, s{sT0}, {64*3584}
    s_add_u32 s59, s59, s90
    s_lshl_b32 s{sM0q}, s{sW}, 12
    s_add_u32 s{sM0w}, s{sM0q}, 16384
    s_lshr_b32 s{sT1}, s{sJ}, 3
    s_lshl_b32 s{sRB2}, s{sX}, 2
    s_add_u32 s{sRB2}, s{sRB2}, s{sT1}
    s_and_b32 s{sCB2}, s{sJ}, 7
    s_lshl_b32 s42, s{sW}, 3
    s_or_b32 s42, s42, s2
    """)
    if OPT['prof']: S(f"v_mov_b32 v{vPROF}, 0")
    S.extend(codepf())
    a, b, c, d = 232, 233, 234, 235
    S(f"""
    v_lshlrev_b32 v{vL16}, 4, v{vL}
    v_lshrrev_b32 v{a}, 5, v{vL}
    v_and_b32 v{b}, 31, v{vL}
    v_lshlrev_b32 v{b}, 4, v{b}
    v_lshl_add_u32 v236, v{a}, 10, v{b}
    v_lshrrev_b32 v{a}, 3, v{vL}
    v_and_b32 v{b}, 7, v{vL}
    v_lshrrev_b32 v{c}, 4, v{vL}
    v_xor_b32 v{d}, v{b}, v{c}
    v_lshlrev_b32 v{d}, 4, v{d}
    v_lshl_add_u32 v{vQD}, v{a}, 10, v{d}
    v_xor_b32 v{d}, 64, v{vQD}
    v_add_u32 v{vQD+1}, 7168, v{d}
    v_add_u32 v{vQD+2}, 14336, v{vQD}
    v_add_u32 v{vQD+3}, 21504, v{d}
    v_and_b32 v{d}, 15, v{vL}
    v_lshlrev_b32 v237, 2, v{c}
    v_xor_b32 v{d}, v{d}, v237
    v_lshlrev_b32 v{d}, 4, v{d}
    v_mul_u32_u24 v237, 3584, v{c}
    v_add_u32 v{vWD}, v237, v{d}
    v_add_u32 v{vWD+1}, {4*3584-1024}, v{vWD}
    v_add_u32 v{vWD+2}, {8*3584-2048}, v{vWD}
    v_add_u32 v{vWD+3}, {12*3584-3072}, v{vWD}
    v_lshlrev_b32 v{b}, 4, v{b}
    v_lshl_add_u32 v237, v{a}, 10, v{b}
    v_lshlrev_b32 v238, 4, v{a}
    """)
    if OPT['tiny']:
        S(f"""
        s_lshl_b32 s43, s{sCB2}, 2
        s_add_u32 s43, s43, s{sW}
        s_lshl_b32 s43, s43, 7
        v_add_u32 v238, s43, v238
        s_lshl_b32 s43, s2, 2
        v_mov_b32 v240, s43
        s_lshr_b32 s43, s{sW}, 1
        s_lshl_b32 s43, s43, 12
        s_lshl_b32 s91, s2, 13
        s_add_u32 s43, s43, s91
        v_mov_b32 v241, s43
        v_mov_b32 v242, 0
        v_min_u32 v243, 5, v{vL}
        v_lshlrev_b32 v243, 21, v243
        """)
    for bb, n in ((W2, 0x1c0000), (SSK, 0x200000), (WS, WS_SIZE), (OUT, 0x200000), (DBG, 256)):
        S(f"s_mov_b32 s{bb+2}, {0 if (bb == W2 and OPT['x_w2null']) or (bb == SSK and OPT['x_hcnull']) else n}")
    for bb in (W2, SSK, WS, OUT, DBG):
        S(f"s_mov_b32 s{bb+3}, 0x20000")
    S.waitlg()
    stamp(S, "karg")
    S(f"""
    s_cmp_gt_u32 s42, 7
    s_cbranch_scc1 L_nonce_done
    s_or_b32 s40, s40, 1
    v_mov_b32 v245, 0
    v_mov_b32 v244, s40
    s_mov_b64 exec, 1
    global_atomic_cmpswap v245, v[244:245], s[84:85] sc1
    s_mov_b64 exec, -1
    L_nonce_done:
    """)
    S[-3].cls = 'other'
    if OPT['tiny']:
        S(f"""
        global_load_dwordx4 v[{vSHK}:{vSHK+3}], v238, s[70:71]
        global_load_dword a248, v240, s[74:75]
        global_load_dword a249, v241, s[72:73]
        """)
        if OPT['tiny'] > 1: S(f"global_load_dword a230, v242, s[66:67]\nglobal_load_dword a231, v242, s[68:69]")
        if OPT['tiny'] > 2: S(f"global_load_dword a232, v242, s[80:81]\nglobal_load_dword a233, v243, s[86:87]")
    S(f"""
    s_mov_b64 s[{QF}:{QF+1}], s[64:65]
    s_mov_b64 s[{Q1}:{Q1+1}], s[64:65]
    s_mov_b64 s[{W1}:{W1+1}], s[78:79]
    buffer_load_dwordx4 v[{vROW}:{vROW+3}], v236, {srd(QF)}, s88 offen NT
    buffer_load_dwordx4 v[{vROW+4}:{vROW+7}], v236, {srd(QF)}, s88 offen offset:512 NT
    """)
    mv = Stream()
    mv(f"""
    s_mov_b64 s[{SKK}:{SKK+1}], s[66:67]
    s_mov_b64 s[{KZ}:{KZ+1}], s[66:67]
    s_mov_b64 s[{SVV}:{SVV+1}], s[68:69]
    s_mov_b64 s[{SHK}:{SHK+1}], s[70:71]
    s_mov_b64 s[{SSK}:{SSK+1}], s[72:73]
    s_mov_b64 s[{sDptr}:{sDptr+1}], s[74:75]
    s_mov_b64 s[{W2}:{W2+1}], s[80:81]
    s_mov_b64 s[{OUT}:{OUT+1}], s[82:83]
    s_mov_b64 s[{DBG}:{DBG+1}], s[84:85]
    s_mov_b64 s[{WS}:{WS+1}], s[86:87]
    """)
    S.extend(chunk_dma(0, 58, 59)); S.extend(mv)
    if OPT['tlb']:
        S(f"""
        v_min_u32 v240, 5, v{vL}
        v_lshlrev_b32 v240, 21, v240
        v_mov_b32 v241, 0
        buffer_load_dword a240, v240, {srd(WS)}, 0 offen
        global_load_dword a241, v241, s[66:67]
        global_load_dword a242, v241, s[68:69]
        global_load_dword a243, v241, s[80:81]
        global_load_dword a244, v241, s[82:83]
        """.replace("a24", "a23"))
    S.extend(coff(1))
    return S

def coff(i):
    S = Stream()
    S(f"""
    s_add_u32 s{sT1}, s{sC0}, {i}
    s_and_b32 s{sT1}, s{sT1}, 7
    s_lshl_b32 s{sQoff+i}, s{sT1}, 7
    s_add_u32 s{sQoff+i}, s{sQoff+i}, s89
    s_mul_i32 s{sWoff+i}, s{sT1}, {64*3584}
    s_add_u32 s{sWoff+i}, s{sWoff+i}, s90
    """)
    return S
def codepf():
    S = Stream()
    if OPT['codepf']:
        S(f"""
        s_getpc_b64 s[16:17]
        L_pc:
        s_mov_b32 s18, L_codeend-L_pc
        s_mov_b32 s19, 0x20000
        s_lshl_b32 s20, s{sJ}, 2
        s_add_u32 s20, s20, s{sW}
        s_lshl_b32 s20, s20, 8
        v_lshlrev_b32 v238, 2, v{vL}
        buffer_load_dword a252, v238, s[16:19], s20 offen
        """)
    return S

def kv_pro():
    S = Stream()
    S(f"""
    s_cmp_lg_u32 s{sRB2}, 0
    s_cselect_b32 s{KZ+2}, 0x200000, 0
    s_mov_b32 s{KZ+3}, 0x20000
    s_mov_b32 s{SKK+2}, {0 if OPT['x_kvnull'] else 0x200000}
    s_mov_b32 s{SKK+3}, 0x20000
    s_mov_b32 s{SVV+2}, {0 if OPT['x_kvnull'] else 0x200000}
    s_mov_b32 s{SVV+3}, 0x20000
    s_mov_b32 s{SHK+2}, 4096
    s_mov_b32 s{SHK+3}, 0x20000
    s_lshl_b32 s40, s{sRB2}, 16
    s_lshl_b32 s41, s{sCB2}, 7
    s_add_u32 s40, s40, s41
    s_lshl_b32 s41, s{sW}, 13
    s_add_u32 s41, s41, s40
    s_add_u32 s42, s41, 32768
    s_sub_u32 s40, s40, 8192
    s_max_i32 s40, s40, 0
    s_mul_i32 s43, s{sW}, 1040
    s_lshl_b32 s87, s{sCB2}, 9
    s_lshl_b32 s{sT1}, s{sW}, 7
    s_add_u32 s87, s87, s{sT1}
    v_cmp_gt_u32 vcc, 40, v{vL}
    v_mov_b32 v239, {OOB}
    v_cndmask_b32 v239, v237, v239, vcc
    """)
    return S
def kv_dma():
    S = Stream(); nt = "nt " if OPT['nt'] else ""
    for m0, v, sr, so in ((f"s_add_u32 m0, s43, {KT+1040}", 237, SKK, 41), (f"s_add_u32 m0, s43, {VT}", 237, SVV, 41),
                          (f"s_add_u32 m0, s43, {KT+5*1040}", 237, SKK, 42), (f"s_add_u32 m0, s43, {VT+4*1040}", 237, SVV, 42),
                          (f"s_mov_b32 m0, {KT}", 239, KZ, 40)):
        g = Stream(); g(f"{m0}\nbuffer_load_dwordx4 v{v}, {srd(sr)}, s{so} offen {nt}lds"); S.atomic(g)
    if OPT['tiny']: S[-1].arg[-1].tag = "kvd"
    else: S(f"buffer_load_dwordx4 v[{vSHK}:{vSHK+3}], v238, {srd(SHK)}, s87 offen", "kvd")
    return S

def setup():
    S = Stream()
    if OPT['cshare']:
        S(f"""
        s_lshl_b32 s{sCsR}, s{sCB1}, 13
        s_add_u32 s{sCsR}, s{sCsR}, {CSP}
        s_lshl_b32 s{sCsW}, s{sC0}, 10
        s_add_u32 s{sCsW}, s{sCsW}, s{sCsR}
        s_and_b32 s{sT1}, s{sW}, 1
        s_lshl_b32 s{sT1}, s{sT1}, 9
        s_add_u32 s{sCsW}, s{sCsW}, s{sT1}
        s_lshr_b32 s{sT1}, s{sW}, 1
        s_lshl_b32 s{sT1}, s{sT1}, 8
        s_add_u32 s{sCsW}, s{sCsW}, s{sT1}
        s_lshl_b32 s{sT1}, s{sW}, 8
        s_add_u32 s{sCsR}, s{sCsR}, s{sT1}
        """)
    S(f"""
    s_and_b32 s{sFH}, s{sW}, 1
    s_lshr_b32 s{sTH}, s{sW}, 1
    s_lshl_b32 s{sCH}, s2, 1
    s_add_u32 s{sCH}, s{sCH}, s{sTH}
    s_lshl_b32 s{sM0b}, s{sW}, 13
    s_mul_i32 s{sW2off}, s{sW}, {448*1024}
    s_lshl_b32 s{sT0}, s{sCB2}, 7
    s_add_u32 s{sW2off}, s{sW2off}, s{sT0}
    s_lshr_b32 s{sRot}, s{sJ}, 3
    s_mul_i32 s{sRot}, s{sRot}, {OPT['rotk']}
    s_add_u32 s{sRot}, s{sRot}, s{sCB2}
    s_mul_i32 s{sT0}, s{sX}, {OPT['rotx']}
    s_add_u32 s{sRot}, s{sRot}, s{sT0}
    s_mul_i32 s{sT0}, s{sRot}, 37
    s_lshr_b32 s{sT0}, s{sT0}, 8
    s_mul_i32 s{sT0}, s{sT0}, 7
    s_sub_u32 s{sRot}, s{sRot}, s{sT0}
    s_lshl_b32 s{sT0}, s{sRot}, 16
    s_add_u32 s{sW2off}, s{sW2off}, s{sT0}
    s_lshl_b32 s{sStatC}, s{sRB1}, 1
    s_add_u32 s{sStatC}, s{sStatC}, s{sTH}
    s_mul_i32 s{sHst}, s{sStatC}, {2*112*1024}
    s_lshl_b32 s{sStatC}, s{sStatC}, 10
    s_add_u32 s{sStatC}, s{sStatC}, {STATS}
    s_lshl_b32 s{sT0}, s{sCB1}, 1
    s_add_u32 s{sT0}, s{sT0}, s{sFH}
    s_lshl_b32 s{sT0}, s{sT0}, 12
    s_add_u32 s{sHst}, s{sHst}, s{sT0}
    s_lshl_b32 s{sT0}, s{sTH}, 11
    s_xor_b32 s{sT1}, s{sT0}, 2048
    s_add_u32 s{sHst+2}, s{sHst}, s{sT1}
    s_add_u32 s{sHst}, s{sHst}, s{sT0}
    s_add_u32 s{sHst+1}, s{sHst}, {112*1024}
    s_add_u32 s{sHst+3}, s{sHst+2}, {112*1024}
    s_lshl_b32 s{sStatW}, s{sX}, 5
    s_add_u32 s{sStatW}, s{sStatW}, s{sJ}
    s_lshl_b32 s{sStatW}, s{sStatW}, 7
    s_lshl_b32 s{sT0}, s{sW}, 4
    s_add_u32 s{sStatW}, s{sStatW}, s{sT0}
    s_add_u32 s{sStatW}, s{sStatW}, {STATS}
    """)
    a, b, c, d, e, f = 240, 241, 242, 243, 244, 245
    a, b, c, d, e, f = 244, 245, 246, 247, 248, 249
    S(f"""
    v_mov_b32 v{a}, {OOB}
    v_cmp_eq_u32 vcc, 0, v{vL}
    v_and_b32 v{b}, 31, v{vL}
    v_lshrrev_b32 v{c}, 5, v{vL}
    v_cndmask_b32 v{vL0}, v{a}, 0, vcc
    v_lshrrev_b32 v{d}, 3, v{b}
    v_and_b32 v{e}, 7, v{vL}
    v_lshlrev_b32 v{e}, 3, v{e}
    v_lshl_add_u32 v{vSTV}, v{d}, 7, v{e}
    """)
    S(f"""
    v_lshrrev_b32 v{d}, 1, v{b}
    v_and_b32 v{d}, 7, v{d}
    v_xor_b32 v{d}, v{d}, v{c}
    v_lshlrev_b32 v{d}, 4, v{d}
    v_lshl_add_u32 v{d}, v{b}, 7, v{d}
    s_lshl_b32 s{sT0}, s{sTH}, 13
    v_add_u32 v{vQA}, s{sT0}, v{d}
    v_xor_b32 v{vQA+1}, 32, v{vQA}
    v_xor_b32 v{vQA+2}, 64, v{vQA}
    v_xor_b32 v{vQA+3}, 0x60, v{vQA}
    """)
    for k in range(4): S(f"v_add_u32 v{vQA+4+k}, 0x10000, v{vQA+k}")
    S(f"""
    v_bfe_u32 v{d}, v{vL}, 2, 2
    v_and_b32 v{e}, 3, v{vL}
    v_lshlrev_b32 v{e}, 3, v{e}
    v_bfe_u32 v{f}, v{vL}, 4, 1
    v_lshl_add_u32 v{e}, v{f}, 5, v{e}
    s_lshl_b32 s{sT0}, s{sFH}, 1
    s_add_u32 s{sT0}, s{sT0}, s{sTH}
    v_xor_b32 v{f}, s{sT0}, v{d}
    v_lshl_add_u32 v{f}, v{f}, 6, v{e}
    v_lshl_add_u32 v{f}, v{d}, 8, v{f}
    v_lshl_add_u32 v{vWA}, v{c}, 11, v{f}
    v_xor_b32 v{vWA+1}, 64, v{vWA}
    v_add_u32 v{vWA+2}, 0x10000, v{vWA}
    v_add_u32 v{vWA+3}, 0x10000, v{vWA+1}
    v_lshrrev_b32 v{f}, 1, v{d}
    v_xor_b32 v{f}, s{sFH}, v{f}
    v_lshl_add_u32 v{f}, v{f}, 6, v{e}
    v_lshl_add_u32 v{f}, v{d}, 7, v{f}
    v_lshl_add_u32 v{f}, v{c}, 9, v{f}
    v_add_u32 v{vTA}, s{sM0b}, v{f}
    v_xor_b32 v{vTA+1}, 64, v{vTA}
    v_add_u32 v{vTA+2}, 0x10000, v{vTA}
    v_add_u32 v{vTA+3}, 0x10000, v{vTA+1}
    v_lshl_add_u32 v{f}, v{d}, 6, v{e}
    v_lshl_add_u32 v{f}, v{c}, 8, v{f}
    s_add_u32 s{sT0}, s{sM0b}, {E + 2048}
    v_add_u32 v{vYA}, s{sT0}, v{f}
    v_add_u32 v{vYW}, s{sT0}, v{vL16}
    """)
    n, g = d, e
    S0 = S
    class SX(Stream):
        def __call__(self, text, tag=None):
            r = f"v_and_b32 v{a}, 31, v{vL}\nv_lshlrev_b32 v{a}, 3, v{a}\nv_lshl_add_u32 v{vCSW}, v{c}, 12, v{a}" if OPT['cshare'] else f"v_cndmask_b32 v{vCSW}, v{f}, v{a}, vcc"
            return S0(text.replace("CSWDEF", r), tag)
    SX()(f"""
    v_and_b32 v{n}, 15, v{vL}
    v_lshrrev_b32 v{g}, 4, v{vL}
    v_and_b32 v{f}, 1, v{g}
    v_cmp_eq_u32 vcc, v{n}, v{f}
    v_mov_b32 v{f}, 0x3f803f80
    v_lshlrev_b32 v{a}, 4, v{g}
    v_cndmask_b32 v{f}, 0, v{f}, vcc
    v_lshl_add_u32 v{a}, v{n}, 6, v{a}
    v_accvgpr_write_b32 a{SEL}, v{f}
    v_accvgpr_write_b32 a{SEL+1}, v{f}
    v_accvgpr_write_b32 a{SEL+2}, v{f}
    v_accvgpr_write_b32 a{SEL+3}, v{f}
    s_lshl_b32 s{sT0}, s{sFH}, 8
    s_lshl_b32 s{sT1}, s{sTH}, 7
    s_add_u32 s{sT0}, s{sT0}, s{sT1}
    s_add_u32 s{sT0}, s{sT0}, {CS}
    v_add_u32 v{a}, s{sT0}, v{a}
    v_add_u32 v{f}, {DUMP}, v{vL16}
    v_cmp_gt_u32 vcc, 2, v{n}
    v_lshlrev_b32 v{b}, 4, v{c}
    v_add_u32 v{vCSA}, s{sT0}, v{b}
    CSWDEF
    v_xor_b32 v{vCSA+1}, 0x80, v{vCSA}
    """)
    assert CS % 256 == 16 or True
    S(f"""
    v_lshrrev_b32 v{a}, 3, v{vL}
    v_and_b32 v{b}, 7, v{vL}
    v_bfe_u32 v{f}, v{vL}, 4, 1
    v_lshlrev_b32 v{f}, 2, v{f}
    v_xor_b32 v{b}, v{b}, v{f}
    v_lshlrev_b32 v{b}, 4, v{b}
    v_lshl_add_u32 v{vBD}, v{a}, 10, v{b}
    v_add_u32 v{vBD+1}, 7168, v{vBD}
    v_add_u32 v{vBD+2}, 14336, v{vBD}
    v_add_u32 v{vBD+3}, 21504, v{vBD}
    """)
    S(f"""
    v_lshlrev_b32 v{a}, 1, v{n}
    v_lshl_add_u32 v{a}, v{g}, 4, v{a}
    v_and_b32 v{b}, 1, v{n}
    v_cmp_eq_u32 vcc, 0, v{b}
    v_mov_b32 v{f}, {4160 - 2}
    s_mul_i32 s{sT0}, s{sTH}, 8320
    s_lshl_b32 s{sT1}, s{sFH}, 6
    v_cndmask_b32 v{b}, 0, v{f}, vcc
    s_add_u32 s{sT0}, s{sT0}, s{sT1}
    s_add_u32 s{sT0}, s{sT0}, {HC + 32 - 30}
    v_add3_u32 v{vCA}, v{a}, v{b}, s{sT0}
    v_add_u32 v{vCA+1}, 1024, v{vCA}
    v_add_u32 v{vCA+2}, 2048, v{vCA}
    v_add_u32 v{vCA+3}, 3072, v{vCA}
    s_mul_i32 s{sT0}, s{sTH}, 4608
    s_add_u32 s{sT0}, s{sT0}, {UR}
    v_lshlrev_b32 v{a}, 5, v{n}
    v_lshlrev_b32 v{b}, 4, v{g}
    v_sub_u32 v{b}, v{b}, v{a}
    s_add_u32 s{sT1}, s{sT1}, s{sT0}
    s_add_u32 s{sT1}, s{sT1}, 480
    v_add_u32 v{vCB}, s{sT1}, v{b}
    v_lshl_add_u32 v{b}, v{g}, 3, v{a}
    s_lshl_b32 s{sT1}, s{sFH}, 11
    s_sub_u32 s{sCnt}, s{sT0}, s{sT1}
    s_add_u32 s{sCnt}, s{sCnt}, {4088 - 1536}
    v_sub_u32 v{vCD}, s{sCnt}, v{b}
    s_add_u32 s{sT1}, s{sT1}, s{sT0}
    v_add_u32 v{vCU}, s{sT1}, v{vL16}
    v_and_b32 v{b}, 0x1f0, v{vL16}
    s_add_u32 s{sT0}, s{sT0}, 4096
    v_add_u32 v{b}, s{sT0}, v{b}
    v_mov_b32 v252, 0
    v_mov_b32 v253, 0
    v_mov_b32 v254, 0
    v_mov_b32 v255, 0
    ds_write_b128 v{b}, v[252:255]
    s_add_u32 s{sT0}, s{sM0b}, {3*32768}
    v_add_u32 v{vCX}, s{sT0}, v{vL16}
    v_xor_b32 v{vCXR}, 0x2000, v{vCX}
    v_and_b32 v{b}, 1, v{g}
    v_lshl_add_u32 v{a}, v{b}, 9, v{a}
    v_lshrrev_b32 v{b}, 1, v{g}
    v_lshl_add_u32 v{vCY}, v{b}, 4, v{a}
    v_lshlrev_b32 v{vPA}, {2 if OPT['packa'] else 7}, v{n}
    v_min_u32 v{a}, 6, v{vL}
    v_lshlrev_b32 v{vPB}, {2 if OPT['packb'] else 7}, v{a}
    v_and_b32 v{a}, 31, v{vL}
    v_lshlrev_b32 v{vPC}, 8, v{a}
    """)
    S(f"""
    v_lshrrev_b32 v{b}, 2, v{vL}
    v_and_b32 v{f}, 3, v{vL}
    v_lshlrev_b32 v{f}, 4, v{f}
    v_lshl_add_u32 v{vOS}, v{b}, 10, v{f}
    v_lshl_add_u32 v{vYL}, v{b}, 12, v{f}
    v_lshlrev_b32 v{d}, 4, v{g}
    v_xor_b32 v{vXD}, v{vOS}, v{d}
    v_mul_u32_u24 v{b}, 80, v{b}
    s_add_u32 s{sT0}, s{sM0b}, {E + 4096}
    v_add3_u32 v{vOR}, v{b}, v{f}, s{sT0}
    v_mul_u32_u24 v{b}, 80, v{a}
    v_lshl_add_u32 v{b}, v{c}, 3, v{b}
    v_add_u32 v{vOW}, s{sT0}, v{b}
    v_bfe_u32 v{b}, v{vL}, 2, 2
    v_lshlrev_b32 v{b}, 4, v{b}
    v_lshl_add_u32 v{b}, v{a}, 6, v{b}
    v_lshl_add_u32 v{b}, v{c}, 3, v{b}
    s_add_u32 s{sT0}, s{sM0b}, {E}
    v_add_u32 v{vXA}, s{sT0}, v{b}
    v_add_u32 v{vRW}, s{sM0b}, v{vL16}
    v_xor_b32 v{vRR}, 0x4000, v{vRW}
    v_xor_b32 v{vRR+1}, 0x6000, v{vRW}
    v_xor_b32 v{vRR+2}, 0x2000, v{vRW}
    """)
    return S

def setup_b():
    if OPT['packb']:
        pk = f"s_mul_i32 s{sT1}, s{sT0}, 37\ns_lshr_b32 s{sT1}, s{sT1}, 8\ns_lshr_b32 s{sFBo}, s{sFBo}, 3\ns_add_u32 s{sFBo}, s{sFBo}, s{sT1}\ns_lshl_b32 s{sFBo}, s{sFBo}, 7\ns_mul_i32 s{sT1}, s{sT1}, 7\ns_sub_u32 s{sT0}, s{sT0}, s{sT1}\ns_lshl_b32 s{sT0}, s{sT0}, 2\ns_add_u32 s{sFBo}, s{sFBo}, s{sT0}\ns_add_u32 s{sFBo}, s{sFBo}, {FLB}"
    else:
        pk = f"s_add_u32 s{sFBo}, s{sFBo}, s{sT0}\ns_lshl_b32 s{sFBo}, s{sFBo}, 7\ns_add_u32 s{sFBo}, s{sFBo}, {FLB}"
    if OPT['packa']:
        pa = f"s_lshl_b32 s{sFAo}, s{sT0}, 1\ns_lshr_b32 s{sT1}, s{sRB2}, 4\ns_add_u32 s{sFAo}, s{sFAo}, s{sT1}\ns_lshl_b32 s{sFAo}, s{sFAo}, 7\ns_and_b32 s{sT1}, s{sRB2}, 15\ns_lshl_b32 s{sT1}, s{sT1}, 2\ns_add_u32 s{sFAo}, s{sFAo}, s{sT1}\ns_add_u32 s{sFAo}, s{sFAo}, {FLA}\n"
        pa += f"s_lshr_b32 s{sFAp}, s{sCH}, 4\ns_lshl_b32 s{sFAp}, s{sFAp}, 8\ns_lshl_b32 s{sT0}, s{sFH}, 7\ns_sub_u32 s{sFAp}, s{sFAp}, s{sT0}\ns_add_u32 s{sFAp}, s{sFAp}, {FLA + 128}"
    else:
        pa = f"s_lshl_b32 s{sFAo}, s{sT0}, 5\ns_add_u32 s{sFAo}, s{sFAo}, s{sRB2}\ns_lshl_b32 s{sFAo}, s{sFAo}, 7\ns_add_u32 s{sFAo}, s{sFAo}, {FLA}\n"
        pa += f"s_lshr_b32 s{sFAp}, s{sCH}, 4\ns_lshl_b32 s{sFAp}, s{sFAp}, 12\ns_lshl_b32 s{sT0}, s{sFH}, 11\ns_sub_u32 s{sFAp}, s{sFAp}, s{sT0}\ns_add_u32 s{sFAp}, s{sFAp}, {FLA + 2048}"
    class SS(Stream):
        def __call__(self, text, tag=None): return Stream.__call__(self, text.replace('PACKB', pk).replace('PACKA', pa), tag)
    S = SS()
    S(f"""
    s_lshl_b32 s{sFBo}, s{sRB1}, 1
    s_add_u32 s{sFBo}, s{sFBo}, s{sTH}
    s_lshl_b32 s{sFBo}, s{sFBo}, 5
    s_lshl_b32 s{sT0}, s{sCB1}, 1
    s_add_u32 s{sT0}, s{sT0}, s{sFH}
    PACKB
    s_lshl_b32 s{sT0}, s{sCB2}, 2
    s_add_u32 s{sT0}, s{sT0}, s{sW}
    s_lshl_b32 s{sKV0}, s{sT0}, 16
    s_lshl_b32 s{sT1}, s{sRB2}, 7
    s_sub_u32 s{sKV0}, s{sKV0}, s{sT1}
    s_add_u32 s{sKV0}, s{sKV0}, {KVR + 1984*2}
    s_add_u32 s{sKV1}, s{sKV0}, 4096
    PACKA
    s_lshl_b32 s{sT0}, s{sFH}, 11
    s_lshl_b32 s{sHC}, s{sCH}, 12
    s_add_u32 s{sU}, s{sHC}, s{sT0}
    s_add_u32 s{sYs}, s{sU}, {YT}
    s_add_u32 s{sU}, s{sU}, {KVR}
    s_lshl_b32 s{sT0}, s{sFH}, 1
    s_add_u32 s{sHC}, s{sHC}, s{sT0}
    """)
    return S
def setup_c():
    S = Stream()
    S(f"""
    s_lshl_b32 s{sFBp}, s{sRB2}, {2 if OPT['packb'] else 5}
    s_mul_i32 s42, s{sW}, {1 if OPT['packb'] else 7}
    s_add_u32 s{sFBp}, s{sFBp}, s42
    s_lshl_b32 s{sFBp}, s{sFBp}, 7
    s_add_u32 s{sFBp}, s{sFBp}, {FLB}
    s_lshl_b32 s{sFCo}, s{sCH}, 1
    s_add_u32 s{sFCo}, s{sFCo}, s{sFH}
    s_lshl_b32 s{sFCo}, s{sFCo}, 7
    s_add_u32 s{sFCo}, s{sFCo}, {FLC}
    s_lshl_b32 s42, s{sCB2}, 1
    s_add_u32 s42, s42, s{sFH}
    s_lshl_b32 s{sFCp}, s42, 13
    s_lshr_b32 s43, s{sRB2}, 4
    s_lshl_b32 s43, s43, 7
    s_add_u32 s{sFCp}, s{sFCp}, s43
    s_add_u32 s{sFCp}, s{sFCp}, {FLC}
    s_lshl_b32 s{sYl}, s42, 17
    s_lshl_b32 s{sXO}, s42, 6
    s_lshl_b32 s42, s{sRB2}, 1
    s_add_u32 s42, s42, s{sTH}
    s_lshl_b32 s43, s42, 6
    s_add_u32 s{sYl}, s{sYl}, s43
    s_add_u32 s{sYl}, s{sYl}, {YT}
    s_lshl_b32 s43, s42, 15
    s_add_u32 s{sXO}, s{sXO}, s43
    s_lshl_b32 s{sStatF}, s42, 9
    s_add_u32 s{sStatF}, s{sStatF}, {STATS}
    s_mul_i32 s{sHLo}, s42, {112*1024}
    s_xor_b32 s42, s42, 1
    s_mul_i32 s{sHL}, s42, {112*1024}
    s_mul_i32 s42, s{sW}, {28*1024}
    s_lshl_b32 s43, s{sRot}, 12
    s_add_u32 s42, s42, s43
    s_add_u32 s{sHL}, s{sHL}, s42
    s_add_u32 s{sHLo}, s{sHLo}, s42
    """)
    return S

def hoffs2():
    return Stream()
sNeg = 92
def hoffs():
    S = Stream()
    g = Stream(); g(f"s_mov_b64 s[{WSO}:{WSO+1}], s[{WS}:{WS+1}]\ns_mov_b32 s{sNeg}, {-6*4096 & 0xffffffff:#x}\ns_mov_b32 s{sN2}, s{sN}\ns_mov_b32 s{sN2+1}, s{sN}"); S.atomic(g)
    return S

def nonce_get():
    S = Stream()
    S(f"s_load_dword s{sN}, s[{DBG}:{DBG+1}], 0")
    return S
def nonce_use(N='N'):
    S = Stream(); g = Stream()
    g(f"s_waitcnt lgkmcnt(0)\ns_cmp_eq_u32 s{sN}, 0\ns_cbranch_scc1 L_rare{N}\nL_back{N}:\nv_mov_b32 v{vN}, s{sN}")
    S.atomic(g)
    rare(f"""
    L_rare{N}:
    s_mov_b32 s{sCnt}, 0
    {"v_writelane_b32 v62, 1, 51" if OPT['prof'] else ""}
    L_rl{N}:
    s_sleep 2
    buffer_load_dword v{vN}, off, {srd(DBG)}, 0 sc1
    s_waitcnt vmcnt(0)
    v_readfirstlane_b32 s{sN}, v{vN}
    s_cmp_lg_u32 s{sN}, 0
    s_cbranch_scc1 L_back{N}
    s_add_u32 s{sCnt}, s{sCnt}, 1
    s_cmp_lt_u32 s{sCnt}, 0x4000
    s_cbranch_scc1 L_rl{N}
    s_branch L_back{N}
    """)
    return S

def stats():
    S = Stream(); X = 176; A = 192; B = 193; C = 194
    for i in range(8):
        S(f"v_lshlrev_b32 v{X+2*i}, 16, v{vROW+i}\nv_and_b32 v{X+2*i+1}, 0xffff0000, v{vROW+i}")
    def allred(r):
        for m in ("quad_perm:[1,0,3,2]", "quad_perm:[2,3,0,1]", "row_half_mirror", "row_mirror"):
            S(f"v_add_f32_dpp v{r}, v{r}, v{r} {m} row_mask:0xf bank_mask:0xf")
        S(f"v_mov_b32 v{C}, v{r}\nv_permlane16_swap_b32 v{r}, v{C}\nv_add_f32 v{r}, v{r}, v{C}")
    S(f"v_add_f32 v{A}, v{X}, v{X+1}\nv_add_f32 v{B}, v{X+2}, v{X+3}")
    for i in range(4, 16, 2): S(f"v_add_f32 v{A}, v{A}, v{X+i}\nv_add_f32 v{B}, v{B}, v{X+i+1}")
    S(f"v_add_f32 v{A}, v{A}, v{B}")
    allred(A)
    S(f"v_mul_f32 v{A}, {f2u(1/512):#x}, v{A}")
    for i in range(16): S(f"v_sub_f32 v{X+i}, v{X+i}, v{A}")
    S(f"v_mul_f32 v{B}, v{X}, v{X}\nv_mul_f32 v{C+1}, v{X+1}, v{X+1}")
    for i in range(2, 16, 2): S(f"v_fmac_f32 v{B}, v{X+i}, v{X+i}\nv_fmac_f32 v{C+1}, v{X+i+1}, v{X+i+1}")
    S(f"v_add_f32 v{B}, v{B}, v{C+1}")
    allred(B)
    S(f"""
    v_mul_f32 v{B}, {f2u(1/512):#x}, v{B}
    v_cvt_pk_bf16_f32 v{B}, v{B}, v{B}
    v_lshlrev_b32 v{B}, 16, v{B}
    v_add_f32 v{B}, {f2u(1e-5):#x}, v{B}
    v_cvt_pk_bf16_f32 v{B}, v{B}, v{B}
    v_lshlrev_b32 v{B}, 16, v{B}
    v_sqrt_f32 v{B}, v{B}
    v_and_b32 v{C}, 31, v{vL}
    v_cvt_pk_bf16_f32 v196, v{A}, v{B}
    v_lshrrev_b32 v{A}, 2, v{vL}
    v_mov_b32 v{B}, {OOB}
    """)
    g = Stream(); g(f"v_cmp_eq_u32 vcc, 0, v{C}\nv_cndmask_b32 v198, v{B}, v{A}, vcc"); S.atomic(g)
    return S
def stats_store():
    S = Stream()
    S(f"v_mov_b32 v197, v{vN}\nbuffer_store_dwordx2 v[196:197], v198, {srd(WS)}, s{sStatW} offen sc1")
    return S

def flag_store(soff, srdb, tag):
    S = Stream(); S.waitvm(tag)
    S(f"buffer_store_dword v{vN}, v{vL0}, {srd(srdb)}, s{soff} offen sc1")
    return S

def kv_addr():
    S = Stream(); a1, a2, a3 = 252, 253, 254
    S(f"""
    v_and_b32 v{a1}, 7, v{vL}
    v_mul_u32_u24 v{a2}, 1040, v{a1}
    v_lshrrev_b32 v{a3}, 3, v{vL}
    v_lshl_add_u32 v{a2}, v{a3}, 2, v{a2}
    s_lshl_b32 s{sT0}, s{sW}, 5
    s_add_u32 s{sT0}, s{sT0}, {KT}
    v_add_u32 v{a2}, s{sT0}, v{a2}
    v_add_u32 v255, 1040, v{a2}
    v_xor_b32 v{a1}, 7, v{a1}
    v_lshlrev_b32 v{a1}, 4, v{a1}
    v_lshl_add_u32 v{a1}, v{a3}, 13, v{a1}
    v_add_u32 v{a3}, {VT-KT}, v{a2}
    """)
    return S
def kvpre():
    S = Stream()
    KR = 232; VR = 244; KP = 176; WF = 220; O = 200
    S(f"ds_read2_b32 v[{KR}:{KR+1}], v253 offset0:160 offset1:192\nds_read_b32 v{KR+2}, v253 offset:896")
    for p in range(4): S(f"ds_read2_b32 v[{KR+4+2*p}:{KR+5+2*p}], v255 offset0:{64*p} offset1:{64*p+32}")
    for p in range(4): S(f"ds_read2_b32 v[{VR+2*p}:{VR+1+2*p}], v254 offset0:{64*p} offset1:{64*p+32}")
    for j in range(4):
        for c in range(2):
            src = vSHK + 2*c + (j >> 1)
            S(f"v_and_b32 v{WF+2*j+c}, 0xffff0000, v{src}" if j & 1 else f"v_lshlrev_b32 v{WF+2*j+c}, 16, v{src}")
    ri = lambda r: r + 3 if r < 0 else r + 4
    pr = lambda b: f"v[{b}:{b+1}]"
    for r in range(-3, 8):
        S(f"v_lshlrev_b32 v{KP+2*ri(r)}, 16, v{KR+ri(r)}\nv_and_b32 v{KP+2*ri(r)+1}, 0xffff0000, v{KR+ri(r)}")
    for t in range(8): S(f"v_pk_mul_f32 {pr(O+2*t)}, {pr(KP+2*ri(t))}, {pr(WF)}")
    for jj in range(1, 4):
        for t in range(8): S(f"v_pk_fma_f32 {pr(O+2*t)}, {pr(KP+2*ri(t-jj))}, {pr(WF+2*jj)}, {pr(O+2*t)}")
    for t in range(8): S(f"v_lshlrev_b32 v{KP+2*t}, 16, v{VR+t}\nv_and_b32 v{KP+2*t+1}, 0xffff0000, v{VR+t}")
    for t in range(8): S(f"v_pk_mul_f32 {pr(O+2*t)}, {pr(O+2*t)}, {pr(KP+2*t)}")
    for ch, Pk in enumerate((232, 236)):
        for q in range(4): S(f"v_cvt_pk_bf16_f32 v{Pk+q}, v{O+2*(7-2*q)+ch}, v{O+2*(6-2*q)+ch}")
        S(f"buffer_store_dwordx4 v[{Pk}:{Pk+3}], v252, {srd(WS)}, s{sKV0+ch} offen sc1", f"kv{ch}")
    return S

def kvpre_np():
    S = Stream()
    KR = 232; VR = 244; KL = 176; WF = 188; OA = 200; OB = 220
    S(f"ds_read2_b32 v[{KR}:{KR+1}], v253 offset0:160 offset1:192\nds_read_b32 v{KR+2}, v253 offset:896")
    for p in range(4): S(f"ds_read2_b32 v[{KR+4+2*p}:{KR+5+2*p}], v255 offset0:{64*p} offset1:{64*p+32}")
    for p in range(4): S(f"ds_read2_b32 v[{VR+2*p}:{VR+1+2*p}], v254 offset0:{64*p} offset1:{64*p+32}")
    for i in range(4):
        S(f"v_lshlrev_b32 v{WF+2*i}, 16, v{vSHK+i}\nv_and_b32 v{WF+2*i+1}, 0xffff0000, v{vSHK+i}")
    ri = lambda r: r + 3 if r < 0 else r + 4
    for r in range(-3, 8):
        S(f"v_lshlrev_b32 v{KL+ri(r)}, 16, v{KR+ri(r)}\nv_and_b32 v{KR+ri(r)}, 0xffff0000, v{KR+ri(r)}")
    for ch, (K, Oo) in enumerate(((KL, OA), (KR, OB))):
        for t in range(8): S(f"v_mul_f32 v{Oo+t}, v{K+ri(t)}, v{WF+4*ch}")
        for jj in range(1, 4):
            for t in range(8): S(f"v_fmac_f32 v{Oo+t}, v{K+ri(t-jj)}, v{WF+4*ch+jj}")
    for t in range(8):
        S(f"v_lshlrev_b32 v{KL+t}, 16, v{VR+t}\nv_and_b32 v{VR+t}, 0xffff0000, v{VR+t}")
    for t in range(8):
        S(f"v_mul_f32 v{OA+t}, v{OA+t}, v{KL+t}\nv_mul_f32 v{OB+t}, v{OB+t}, v{VR+t}")
    for ch, (Oo, Pk) in enumerate(((OA, 232), (OB, 236))):
        for q in range(4): S(f"v_cvt_pk_bf16_f32 v{Pk+q}, v{Oo+7-2*q}, v{Oo+6-2*q}")
        S(f"buffer_store_dwordx4 v[{Pk}:{Pk+3}], v252, {srd(WS)}, s{sKV0+ch} offen sc1", f"kv{ch}")
    return S

def stouch(S):
    S(f"v_lshlrev_b32 v5, 10, v{vL}\ns_lshl_b32 s66, s{sW}, 8\ns_add_u32 s72, s64, s66\ns_lshl_b32 s66, s{sW}, 1\ns_add_u32 s73, s65, s66")
    for p in range(OPT['st0'], 7):
        for c in range(2):
            S(f"""
            s_add_u32 s67, s73, {p + c}
            s_mul_i32 s69, s67, 37
            s_lshr_b32 s69, s69, 8
            s_mul_i32 s69, s69, 7
            s_sub_u32 s67, s67, s69
            s_lshl_b32 s67, s67, 16
            s_add_u32 s67, s67, s72
            buffer_load_dword a236, v5, {srd(W2)}, s67 offen offset:{128*c}
            """)
            S[-1].wr = set()

def msweep(S):
    S(f"""
    v_lshlrev_b32 v6, 7, v{vL}
    s_lshl_b32 s66, s{sX}, 2
    s_and_b32 s67, s{sJ}, 3
    s_add_u32 s66, s66, s67
    s_lshl_b32 s66, s66, 2
    s_add_u32 s66, s66, s{sW}
    s_mul_i32 s66, s66, 14336
    s_add_u32 s67, s66, 6144
    buffer_load_dword a237, v6, {srd(W2)}, s66 offen
    buffer_load_dword a238, v6, {srd(W2)}, s67 offen
    """)

def spare1():
    S = Stream()
    S("L_spare1:")
    S(f"""
    s_lshl_b32 s64, s{sX}, 2
    s_and_b32 s65, s{sJ}, 3
    s_add_u32 s64, s64, s65
    s_lshl_b32 s64, s64, 16
    s_lshl_b32 s66, s{sW}, 13
    s_add_u32 s64, s64, s66
    s_add_u32 s64, s64, 384
    s_add_u32 s66, s64, 32768
    """)
    if OPT['c3pf']:
        S(f"""
        buffer_load_dwordx4 a[64:67], v237, {srd(SKK)}, s64 offen
        buffer_load_dwordx4 a[68:71], v237, {srd(SVV)}, s64 offen
        buffer_load_dwordx4 a[72:75], v237, {srd(SKK)}, s66 offen
        buffer_load_dwordx4 a[76:79], v237, {srd(SVV)}, s66 offen
        """)
    if OPT['kvpos'] >= 2: S.extend(kv_dma())
    S(f"v_mov_b32 v4, v237")
    S.extend(nonce_get()); S.extend(setup_b()); S.extend(setup_c()); S.extend(nonce_use('M')); S.extend(stats_store())
    S.extend(kv_addr())
    S(f"""
    s_mul_i32 s64, s65, {448*1024}
    s_lshl_b32 s66, s{sW}, 14
    s_add_u32 s70, s64, s66
    s_add_u32 s70, s70, 384
    s_mul_i32 s65, s{sX}, {OPT['rotx']}
    s_add_u32 s71, s65, 3
    """)
    def c3(n):
        for i in range(n):
            S(f"""
            s_mul_i32 s69, s71, 37
            s_lshr_b32 s69, s69, 8
            s_mul_i32 s69, s69, 7
            s_sub_u32 s67, s71, s69
            s_lshl_b32 s67, s67, 16
            s_add_u32 s67, s67, s70
            s_add_u32 s68, s67, 8192
            s_add_u32 s71, s71, 1
            buffer_load_dwordx4 a[80:83], v4, {srd(W2)}, s67 offen
            buffer_load_dwordx4 a[84:87], v4, {srd(W2)}, s68 offen
            """)
            S[-1].wr = set(); S[-2].wr = set()
    if OPT['kvpos'] >= 2:
        if OPT['msw'] == 1: msweep(S)
        c3(OPT['c3a'])
        if OPT['msw'] == 2: msweep(S)
        if OPT['stch'] == 3: stouch(S)
        if OPT['ownw2']: S.extend(SPARE_W2[5:5+OPT['ownw2']])
        S.waitvm("kvd")
    else:
        c3(OPT['c3a']); S(f"s_waitcnt vmcnt({2*OPT['c3a'] + 1 + (4 if OPT['c3pf'] else 0)})")
    S("s_barrier")
    S.extend(kvpre())
    S.extend(flag_init()); S(f"s_mov_b32 s{sDone}, 0x80000000")
    if OPT['msw'] == 3: msweep(S)
    S("s_barrier")
    if OPT['kvpos'] >= 2: S.extend(dh_loads())
    S.extend(SPARE_W2[:5] if OPT['ownw2'] else SPARE_W2[:8])
    S.extend(flag_store(sFAo, WS, "kv1"))
    stamp(S, "kvpub")
    if OPT['stch'] == 2: stouch(S)
    S.extend(SPARE_W2[5+OPT['ownw2']:] if OPT['ownw2'] else SPARE_W2[8:])
    c3(OPT['c3b'])
    if OPT['stch'] == 1: stouch(S)
    if OPT['tp'] >= 0: S.extend(w2touch(range(OPT['tp'], 7)))
    if OPT['sweep']:
        S(f"""
        s_lshl_b32 s66, s{sW}, 7
        s_add_u32 s64, s64, s66
        s_add_u32 s65, s65, s{sW}
        s_mov_b32 s66, {OPT['swn']}
        s_cmp_eq_u32 s{sW}, 3
        s_cbranch_scc1 L_swe
        L_sw:
        s_mul_i32 s69, s65, 37
        s_lshr_b32 s69, s69, 8
        s_mul_i32 s69, s69, 7
        s_sub_u32 s67, s65, s69
        s_lshl_b32 s67, s67, 16
        s_add_u32 s67, s67, s64
        """)
        for n in range(8):
            S(f"buffer_load_dwordx4 a[232:235], v4, {srd(W2)}, s67 offen\ns_add_u32 s67, s67, 8192"); S[-2].cls = 'other'
        S(f"""
        s_add_u32 s65, s65, 1
        s_sub_u32 s66, s66, 1
        s_cmp_lg_u32 s66, 0
        s_cbranch_scc1 L_sw
        L_swe:
        s_waitcnt vmcnt(0)
        """)
    S.extend(hpad()); S.extend(hoffs()[:1] if OPT['packa'] else hoffs())
    if OPT['stch'] == 5:
        S("s_waitcnt vmcnt(0)"); stouch(S)
    S(pollA_load()); S.extend(u_loads(True))
    S("s_waitcnt vmcnt(0) lgkmcnt(0)")
    if OPT['stch'] == 4: stouch(S)
    S("s_branch L_join")
    return S

def w2touch(ps):
    S = Stream(); a, b = 250, 251
    g = Stream(); g(f"""v_cmp_gt_u32 vcc, 16, v{vL}
    v_lshlrev_b32 v{a}, 10, v{vL}
    v_mov_b32 v{b}, {OOB}
    v_cndmask_b32 v{a}, v{b}, v{a}, vcc"""); S.atomic(g)
    S(f"""s_lshr_b32 s79, s{sJ}, 3
    s_lshl_b32 s79, s79, 14
    s_mul_i32 s71, s{sW}, {448*1024}
    s_add_u32 s79, s79, s71
    s_lshl_b32 s71, s{sCB2}, 7
    s_add_u32 s79, s79, s71""")
    for p in ps:
        g = Stream(); g(f"""s_add_u32 s{sCnt}, s{sRot}, {p}
        s_cmp_ge_u32 s{sCnt}, 7
        s_cselect_b32 s71, 7, 0
        s_sub_u32 s{sCnt}, s{sCnt}, s71
        s_lshl_b32 s{sCnt}, s{sCnt}, 16
        s_add_u32 s{sCnt}, s{sCnt}, s79
        buffer_load_dword a236, v{a}, {srd(W2)}, s{sCnt} offen"""); g[-1].wr = set(); S.atomic(g)
    return S

def htouch():
    S = Stream()
    if OPT['htouch']:
        S(f"v_and_b32 v230, 31, v{vL}\nv_lshrrev_b32 v231, 5, v{vL}\nv_mul_u32_u24 v231, {112*1024}, v231\nv_lshl_add_u32 v230, v230, 7, v231\ns_lshl_b32 s87, s{sTH}, 11\ns_sub_u32 s87, s{sHst}, s87")
        S(f"buffer_load_dword a236, v230, {srd(WS)}, s87 offen")
        if OPT['htouch'] > 1: S(f"buffer_load_dword a237, v230, {srd(WS)}, s87 offen offset:64")
    return S

WSF = 48; sDone = 87
def flag_try(soff, tag, last=False, first=False):
    S = Stream(); g = Stream()
    if last:
        g.waitvm(tag); g(f"s_cmp_eq_u32 s{sDone}, 0")
    else:
        g(f"s_getreg_b32 s{WSF+2}, hwreg(HW_REG_IB_STS)\ns_and_b32 s{WSF+2}, s{WSF+2}, 0xc0000f\ns_or_b32 s{WSF+2}, s{WSF+2}, s{sDone}")
        g.append(Pseudo('CMPVM', (tag, WSF+2)))
    g(f"s_cselect_b32 s{WSF+2}, {WS_SIZE}, 0")
    g(f"s_mov_b32 s{sDone}, 0" if last else f"s_cselect_b32 s{sDone}, 0x80000000, s{sDone}")
    g(f"buffer_store_dword v{vN}, v{vL0}, {srd(WSF)}, s{soff} offen sc1")
    S.atomic(g)
    return S
def flag_init():
    S = Stream(); S(f"s_mov_b64 s[{WSF}:{WSF+1}], s[{WS}:{WS+1}]\ns_mov_b32 s{sDone}, 0\ns_mov_b32 s{sW2neg}, {(32768 - 7*65536) & 0xffffffff:#x}"); return S

def dh_loads():
    S = Stream()
    if OPT['tiny']: return S
    g = Stream(); g(f"s_lshl_b32 s{sDv}, s2, 2\nv_mov_b32 v219, s{sDv}\nglobal_load_dword a248, v219, s[{sDptr}:{sDptr+1}]"); S.atomic(g)
    g = Stream(); g(f"s_lshl_b32 s{sDv}, s{sCH}, 12\nbuffer_load_dword a249, off, {srd(SSK)}, s{sDv}"); S.atomic(g)
    return S

def hcopy_dma():
    S = Stream()
    S(f"s_mul_i32 s{sT0}, s{sW}, 4160")
    dma_n(S, vL16, SSK, sHC, f"s_add_u32 m0, s{sT0}, {HC+32}", "hc", samev=True, nt=OPT['hcnt'])
    return S
def hpad():
    S = Stream()
    S(f"v_accvgpr_read_b32 v230, a248\nv_accvgpr_read_b32 v231, a249\ns_lshl_b32 s{sT1}, s{sTH}, 4\nv_lshrrev_b32 v230, s{sT1}, v230\nv_lshlrev_b32 v230, 16, v230\nv_lshlrev_b32 v231, 16, v231\nv_mul_lo_u32 v231, v231, s{sFH}\nv_readfirstlane_b32 s{sDv}, v230")
    S(f"s_mul_i32 s{sT1}, s{sW}, 4160\nv_and_b32 v230, 7, v{vL}")
    g = Stream(); g(f"v_cmp_eq_u32 vcc, 7, v230\nv_lshlrev_b32 v230, 2, v230\ns_add_u32 s{sT1}, s{sT1}, {HC}\nv_cndmask_b32 v231, 0, v231, vcc\nv_add_u32 v230, s{sT1}, v230\nds_write_b32 v230, v231")
    S.atomic(g)
    return S

def g1_set(n): return FR + 16 * (n % 3)
def g1_reads(n):
    if n >= 32: return []
    i, ks = divmod(n, 4)
    st = g1_set(n); slot = i & 3; hi = slot >> 1; off = (slot & 1) * 32768
    L = []
    for u in range(2):
        for rd in range(2):
            L.append(f"ds_read_b64_tr_b16 v[{st+4*u+2*rd}:{st+4*u+2*rd+1}], v{vWA+2*hi+u} offset:{off+16384+ks*4096+rd*1024}")
    for tt in range(2):
        L.append(f"ds_read_b128 v[{st+8+4*tt}:{st+11+4*tt}], v{vQA+4*hi+ks} offset:{off+tt*4096}")
    return [L[0], L[1], L[4], L[5], L[2], L[3]]

def stat_loads(att):
    return [f"buffer_load_dwordx2 v[{STL+4*att+2*tt}:{STL+4*att+2*tt+1}], v{vSTV}, {srd(WS)}, s{sStatC} offen offset:{tt*512} sc1" for tt in range(2)]

def gemm1():
    S = Stream(); CAP = OPT['cap']
    S.waitvm("c0"); S("s_barrier")
    stamp(S, "c0")
    for t in g1_reads(0): S(t)
    for t in g1_reads(1): S(t, 'fr1')
    for i in range(8):
        S.mark(f"c{i}a")
        for ks in range(4):
            n0 = 4*i + ks; st = g1_set(n0); first = n0 == 0
            rds = g1_reads(n0 + 2)
            bar = (ks == 1 and i < 7) or n0 == 30
            if n0 == 1: S.mark("c0h")
            if n0 > 0: S.waitlg(f'fr{n0}')
            small = [st] if n0 < 30 else ([st, g1_set(31)] if n0 == 30 else [])
            if OPT['cshare'] and n0 >= 4: small = []
            for n, (u, tt) in enumerate([(0, 0), (0, 1), (1, 0), (1, 1)]):
                acc = ACC + 16 * (2*u + tt)
                c = "0" if first else vr(acc, 16)
                if bar and n == 3:
                    if OPT['prof'] == 4 and OPT['fine'] and i in (1, 2): stamp(S, f"f{i}")
                    S.mark(f"c{i}m")
                    if i == OPT['kvpos'] and not OPT['kvfill']:
                        if OPT['cshare'] and OPT['cspub'] == 2: S.extend(cs_publish())
                        if OPT['prof'] == 4 and OPT['fine']: stamp(S, "k_a")
                        S.waitvm("kvd")
                        if OPT['prof'] == 4 and OPT['fine']: stamp(S, "k_w")
                        S("s_barrier")
                        if OPT['prof'] == 4 and OPT['fine']: stamp(S, "k_b")
                        S.extend(kvpre())
                        if OPT['prof'] in (2, 4): stamp(S, "kvp")
                    if i < 7: S.waitvm(f"c{i+1}")
                    if OPT['prof'] in (2, 4) or OPT['x_meas']: stamp(S, f"w{i}")
                    S.waitlg()
                S(f"v_mfma_f32_32x32x16_bf16 {vr(acc,16)}, v[{st+4*u}:{st+4*u+3}], v[{st+8+4*tt}:{st+11+4*tt}], {c}")
                k = 0
                if bar and n == 3:
                    S("s_barrier"); S.mark(f"c{i}b"); k = 2
                while rds and k < (3 if bar else 2): S(rds.pop(0), f'fr{n0+2}'); k += 1
                if n0 == 30 and n == 2 and not OPT['cshare']:
                    S(f"ds_write_b128 v{vCSW}, a[{CSACC}:{CSACC+3}]"); k += 1
                S.fill(CAP - k)
                if n == 0 and not (OPT['x_nocs'] and n0 > 0):
                    for sm in small:
                        c = "0" if first else ar(CSACC, 4)
                        S(f"v_mfma_f32_16x16x32_bf16 {ar(CSACC,4)}, v[{sm}:{sm+3}], {ar(SEL,4)}, {c}")
                        S.fill(1)
        S.mark(f"c{i}e")
    return S

CSL = 200
def cs_publish():
    S = Stream(); a, b = 250, 251; T = 240
    S(f"""
    s_and_b32 s{sCsN}, s{sJ}, 1
    s_xor_b32 s{sCsN}, s{sCsN}, 1
    s_lshl_b32 s{sCsN}, s{sCsN}, 1
    v_and_b32 v{a}, 15, v{vL}
    v_lshrrev_b32 v{b}, 4, v{vL}
    v_lshlrev_b32 v{b}, 5, v{b}
    v_lshl_add_u32 v{b}, v{a}, 7, v{b}
    v_mov_b32 v{T+1}, v{vN}
    v_mov_b32 v{T+3}, v{vN}
    v_mov_b32 v{T+5}, v{vN}
    v_mov_b32 v{T+7}, v{vN}
    """)
    g = Stream(); g(f"v_cmp_gt_u32 vcc, s{sCsN}, v{a}\nv_mov_b32 v{a}, {OOB}\nv_cndmask_b32 v{b}, v{a}, v{b}, vcc"); S.atomic(g)
    for r in range(4): S(f"v_accvgpr_read_b32 v{T+2*r}, a{CSACC+r}")
    S(f"buffer_store_dwordx4 v[{T}:{T+3}], v{b}, {srd(WS)}, s{sCsW} offen sc1\nbuffer_store_dwordx4 v[{T+4}:{T+7}], v{b}, {srd(WS)}, s{sCsW} offen offset:16 sc1")
    return S
def cs_loads():
    return [f"buffer_load_dwordx2 v[{CSL+2*i}:{CSL+2*i+1}], v{vCSW}, {srd(WS)}, s{sCsR} offen offset:{1024*i} sc1" for i in range(4)]
def cs_gather():
    S = Stream(); t = CSL + 1
    check_poll(S, cs_loads(), [CSL+1, CSL+3, CSL+5, CSL+7])
    S(f"""
    v_add_f32 v{CSL}, v{CSL}, v{CSL+2}
    v_add_f32 v{CSL+4}, v{CSL+4}, v{CSL+6}
    v_and_b32 v{CSL+2}, 31, v{vL}
    v_add_f32 v{CSL}, v{CSL}, v{CSL+4}
    v_lshlrev_b32 v{CSL+2}, 2, v{CSL+2}
    v_mov_b32 v{t}, v{CSL}
    s_lshl_b32 s{sCsN}, s{sW}, 7
    s_add_u32 s{sCsN}, s{sCsN}, {CS}
    v_permlane32_swap_b32 v{CSL}, v{t}
    v_add_u32 v{CSL+2}, s{sCsN}, v{CSL+2}
    v_add_f32 v{CSL}, v{CSL}, v{t}
    ds_write_b32 v{CSL+2}, v{CSL}
    """)
    return S

def cs_reads():
    S = Stream()
    for u in range(2):
        for j in range(4): S(f"ds_read_b128 v[{CSV+16*u+4*j}:{CSV+16*u+4*j+3}], v{vCSA+u} offset:{32*j}")
    return S

def stats_consume():
    S = Stream()
    check_poll(S, stat_loads(1), [STL+5, STL+7])
    for tt in range(2):
        a1 = STL + 4 + 2*tt
        S(f"v_and_b32 v{MR+2*tt+1}, 0xffff0000, v{a1}\nv_rcp_f32 v{MR+2*tt+1}, v{MR+2*tt+1}\nv_lshlrev_b32 v{MR+2*tt}, 16, v{a1}\nv_mul_f32 v{MR+2*tt+1}, {NLOG2E:#x}, v{MR+2*tt+1}")
    return S

def epi1(inserts):
    S = Stream(); n = 0; held = []
    for u in range(2):
        for tt in range(2):
            for s in range(2):
                acc = ACC + 16*(2*u+tt) + 8*s; cs = CSV + 16*u + 8*s; W = FR + 8*(n & 1); P = FR + 16 + 4*n
                mr = f"v[{MR+2*tt}:{MR+2*tt+1}]"
                for p in range(4): S(f"v_pk_fma_f32 v[{acc+2*p}:{acc+2*p+1}], v[{cs+2*p}:{cs+2*p+1}], {mr}, v[{acc+2*p}:{acc+2*p+1}] op_sel_hi:[1,0,1] neg_lo:[0,1,0] neg_hi:[0,1,0]")
                for p in range(4): S(f"v_pk_mul_f32 v[{W+2*p}:{W+2*p+1}], v[{acc+2*p}:{acc+2*p+1}], {mr} op_sel:[0,1] op_sel_hi:[1,1]")
                for p in range(8): S(f"v_exp_f32_e64 v{W+p}, v{W+p}")
                if held and n > OPT['uat']: S(held.pop(0), "hst")
                for p in range(4): S(f"v_pk_add_f32 v[{W+2*p}:{W+2*p+1}], v[{W+2*p}:{W+2*p+1}], 1.0 op_sel_hi:[1,0]")
                for p in range(8): S(f"v_rcp_f32_e64 v{W+p}, v{W+p}")
                if held and n > OPT['uat']: S(held.pop(0), "hst")
                for p in range(4): S(f"v_pk_mul_f32 v[{W+2*p}:{W+2*p+1}], v[{acc+2*p}:{acc+2*p+1}], v[{W+2*p}:{W+2*p+1}]")
                for p in range(4): S(f"v_cvt_pk_bf16_f32 v{P+p}, v{W+2*p}, v{W+2*p+1}")
                st = f"buffer_store_dwordx4 v[{P}:{P+3}], v{vL16}, {srd(WS)}, s{sHst+2*u+tt} offen" + (" offset:1024" if s else "") + [" sc1", "", " nt", " sc0"][OPT['x_hplain']]
                if OPT['hold'] and n <= OPT['uat']: held.append(st)
                else: S(st, "hst")
                if OPT['prof'] == 3: stamp(S, f"e{n}")
                if n in inserts: S.extend(inserts[n])
                n += 1
    for st in held: S(st, "hst")
    return S

CB = 128; CACC = 64; CAF = 96; NA = 6; UST = 220
def pollA_load(): return f"buffer_load_dword v228, v{vPA}, {srd(WS)}, s{sFAp} offen sc1"
sResA = 40; sResC = 41; SA = 64
def spollA_load(): return one(f"s_load_dwordx16 s[{SA}:{SA+15}], s[{WS}:{WS+1}], s{sFAp} glc")
def u_loads(block=False):
    S = Stream()
    if block: check_poll(S, [pollA_load()], [228]); S(f"s_mov_b32 s{sResA}, 0\ns_mov_b32 s{WSO+2}, {WS_SIZE}")
    elif block is False and OPT['packa']:
        pr = lambda r: f"s[{r}:{r+1}]"
        g = Stream(); g(f"s_xor_b64 {pr(SA)}, {pr(SA)}, {pr(sN2)}")
        for r in range(2, 16, 2): g(f"s_xor_b64 {pr(SA+r)}, {pr(SA+r)}, {pr(sN2)}\ns_or_b64 {pr(SA)}, {pr(SA)}, {pr(SA+r)}")
        g(f"s_cselect_b32 s{WSO+2}, 0, {WS_SIZE}\ns_cselect_b32 s{sResA}, 1, 0"); S.atomic(g)
    elif block is False: note_poll(S, 228, sResA)
    S(f"buffer_load_dwordx4 v[{UST}:{UST+3}], v{vL16}, {srd(WSO)}, s{sU} offen sc1")
    S(f"buffer_load_dwordx4 v[{UST+4}:{UST+7}], v{vL16}, {srd(WSO)}, s{sU} offen offset:1024 sc1")
    return S

DU = 96
def conv():
    S = Stream()
    repair(S, sResA, one(f"s_mov_b32 s{WSF+2}, {WS_SIZE}\ns_mov_b32 s{sDone}, 0x80000000\nbuffer_store_dword v{vN}, v{vL0}, {srd(WSF)}, s{sFBo} offen sc1"), pollA_load(), 228, u_loads(None))
    if OPT['prof'] == 3: stamp(S, "rep")
    S(f"ds_write_b128 v{vCU}, v[{UST}:{UST+3}]\nds_write_b128 v{vCU}, v[{UST+4}:{UST+7}] offset:1024")
    S.waitvm("hc"); S.waitlg(); S("s_barrier")
    stamp(S, "conv0")
    rA = lambda c, a: CB + 64*(c & 1) + 4*a
    rB = lambda c, b: CB + 64*(c & 1) + 32 + 4*b
    def ldA(c, a):
        m = 4*a + c
        return [f"ds_read2_b32 v[{rA(c,a)+2*h}:{rA(c,a)+2*h+1}], v{vCA+(m>>3)} offset0:{32*(m&7)+2*h} offset1:{32*(m&7)+2*h+1}" for h in range(2)]
    ldB = lambda c, b: [f"ds_read_b128 v[{rB(c,b)}:{rB(c,b)+3}], v{vCB} offset:{128*(4*b+c)}"]
    pairs = [(a, b) for a in range(8) for b in range(7, a - 1, -1)]
    def loads(c):
        L = ldA(c, 0)
        for b in range(7, -1, -1): L += ldB(c, b)
        for a in range(1, 8): L += ldA(c, a)
        return L
    q = loads(0)
    for t in q[:6]: S(t)
    q = q[6:]
    S.mark("cva"); seenT = set(); p = 0
    for c in range(4):
        nq = loads(c + 1) if c < 3 else []
        if c > 0 and OPT['cvwait']: S.waitlg(f"cl{c}")
        for i, (a, b) in enumerate(pairs):
            T = a + 7 - b; acc = CACC + 4*T
            cc = vr(acc, 4) if T in seenT else "0"; seenT.add(T)
            S(f"v_mfma_f32_16x16x32_bf16 {vr(acc,4)}, v[{rA(c,a)}:{rA(c,a)+3}], v[{rB(c,b)}:{rB(c,b)+3}], {cc}")
            k = 0
            if q:
                for _ in range(2 if len(q) > 14 else 1):
                    if q: S(q.pop(0)); k += 1
            elif nq and (c == 0 or i % 4 != 3) and i >= 1: S(nq.pop(0), f"cl{c+1}"); k += 1
            S.fill(2 - k)
            S.mark(f"cv{p}")
            if OPT['prof'] == 3 and p in (35, 71, 107): stamp(S, f"cv{p}")
            p += 1
        for t in nq: S(t, f"cl{c+1}")
    S.mark("cve")
    stamp(S, "conv1")
    return S

def conv_du():
    S = Stream(); U = 112
    for T in range(4): S(f"ds_read_b64 v[{U+2*T}:{U+2*T+1}], v{vCD} offset:{(3-T)*512}")
    S(f"v_mov_b32 v120, s{sDv}")
    return S

def conv_epi(tail):
    S = Stream(); R = 224; Y = 120; U = 112
    for T in range(4):
        a = DU + 4*T
        S(f"""v_and_b32 v{a}, 0xffff0000, v{U+2*T+1}
        v_lshlrev_b32 v{a+1}, 16, v{U+2*T+1}
        v_and_b32 v{a+2}, 0xffff0000, v{U+2*T}
        v_lshlrev_b32 v{a+3}, 16, v{U+2*T}""")
        if T == 1: S(f"s_cmp_eq_u32 s{sFH}, 0\ns_cbranch_scc0 L_odd"); break
    def half(T_, keep, send):
        for T in range(4): T_(f"ds_write_b128 v{vCX}, v[{send+4*T}:{send+4*T+3}] offset:{1024*T}")
        for T in (2, 3):
            a = DU + 4*T
            T_(f"""v_and_b32 v{a}, 0xffff0000, v{U+2*T+1}
            v_lshlrev_b32 v{a+1}, 16, v{U+2*T+1}
            v_and_b32 v{a+2}, 0xffff0000, v{U+2*T}
            v_lshlrev_b32 v{a+3}, 16, v{U+2*T}""")
        for p in range(8): T_(f"v_pk_fma_f32 v[{DU+2*p}:{DU+2*p+1}], v[{DU+2*p}:{DU+2*p+1}], v[120:121], v[{keep+2*p}:{keep+2*p+1}] op_sel_hi:[1,0,1]")
    half(S, CACC, CACC + 16)
    S("L_oddback:")
    O = Stream(); O("L_odd:"); half(O, CACC + 16, CACC); O("s_branch L_oddback"); rare.extend(O)
    S.waitlg(); S("s_barrier")
    for T in range(4): S(f"ds_read_b128 v[{R+4*T}:{R+4*T+3}], v{vCXR} offset:{1024*T}")
    S.extend(tail)
    for pr in range(2):
        for T in (2*pr, 2*pr+1):
            a = DU + 4*T
            S(f"v_pk_add_f32 v[{a}:{a+1}], v[{a}:{a+1}], v[{R+4*T}:{R+4*T+1}]\nv_pk_add_f32 v[{a+2}:{a+3}], v[{a+2}:{a+3}], v[{R+4*T+2}:{R+4*T+3}]")
            y = Y + 4*pr + 2*(T & 1)
            S(f"v_cvt_pk_bf16_f32 v{y}, v{a}, v{a+1}\nv_cvt_pk_bf16_f32 v{y+1}, v{a+2}, v{a+3}")
        y = Y + 4*pr
        S(f"v_permlane16_swap_b32 v{y}, v{y+2}\nv_permlane16_swap_b32 v{y+1}, v{y+3}")
        S(f"buffer_store_dwordx4 v[{y}:{y+3}], v{vCY}, {srd(WS)}, s{sYs} offen" + (" offset:1024" if pr else "") + " sc1", "yst")
    return S

HR = 128; XF = 224; SF = 240; TP = 192
def pollB_load(): return f"buffer_load_dword v4, v{vPB}, {srd(WS)}, s{sFBp} offen sc1"
def pollC_load(): return f"buffer_load_dword v5, v{vPC}, {srd(WS)}, s{sFCp} offen sc1"
sFBq = sFBp
def spollB_load():
    return one(f"s_load_dwordx4 s[8:11], s[{WS}:{WS+1}], s{sFBp} glc\ns_load_dwordx4 s[88:91], s[{WS}:{WS+1}], s{sFBp} offset:16 glc")
def spollB_check(S):
    k = nrare[0]; nrare[0] += 1
    g = Stream()
    n2 = f"s[{sN2}:{sN2+1}]"
    g(f"s_mov_b32 s91, s90\ns_xor_b64 s[8:9], s[8:9], {n2}")
    for r in (10, 88, 90): g(f"s_xor_b64 s[{r}:{r+1}], s[{r}:{r+1}], {n2}\ns_or_b64 s[8:9], s[8:9], s[{r}:{r+1}]")
    g(f"s_cbranch_scc1 L_rare{k}\nL_back{k}:")
    S.atomic(g)
    rare(f"L_rare{k}:\ns_mov_b32 s{sCnt}, 0")
    if OPT['prof']: rare(f"v_writelane_b32 v{vPROF}, 1, {52+k}")
    rare(f"L_rl{k}:\ns_sleep 1\nbuffer_load_dword v4, v{vPB}, {srd(WS)}, s{sFBq} offen sc1\ns_waitcnt vmcnt(0)\nv_cmp_ne_u32 vcc, s{sN}, v4")
    rare(f"s_nop 1\ns_cbranch_vccz L_back{k}\ns_add_u32 s{sCnt}, s{sCnt}, 1\ns_cmp_lt_u32 s{sCnt}, 0x4000\ns_cbranch_scc1 L_rl{k}\ns_branch L_back{k}")
def hload(n):
    D = OPT['hring']; p, k = divmod(n, 28); so = sHL if p == 0 else sHLo
    T = Stream(); g = Stream()
    g(f"buffer_load_dwordx4 v[{HR+4*(n%D)}:{HR+4*(n%D)+3}], v{vL16}, {srd(WS)}, s{so} offen" + (f" offset:{(k&3)*1024}" if k & 3 else "") + " sc1")
    if k & 3 == 3 and k < 27: g(f"s_cmp_eq_u32 s{sRot}, {6-(k>>2)}\ns_cselect_b32 s{sCnt}, s{sNeg}, 4096\ns_add_u32 s{so}, s{so}, s{sCnt}")
    T.atomic(g)
    return T
def gemm2():
    S = Stream(); D = OPT['hring']; NT = OPT['ntail']
    S.mark("g2s")
    def mf(n, u):
        p, k = divmod(n, 28); h = HR + 4*(n % D)
        acc = ACC + 32*(1-p) + 16*u; a = (2*k + u) * 4
        S(f"v_mfma_f32_32x32x16_bf16 {vr(acc,16)}, {ar(a,4)}, v[{h}:{h+3}], {'0' if k == 0 else vr(acc, 16)}")
    for n in range(56 - NT):
        for u in range(2):
            mf(n, u); used = 0
            if u == 1 and n + D < 56:
                T = flatten(hload(n + D)); S.extend(T); used = len(T)
            S.fill(5 - used)
        S.mark(f"g2_{n}")
        if (OPT['prof'] > 1 or OPT['x_meas']) and n in (0, 13, 27, 34, 41): stamp(S, f"g2_{n}")
    for n in range(56 - NT, 56): mf(n, 1); S.fill(5)
    S.mark("g2t")
    F = ACC + 16; Ee = ACC + 32
    tail = [f"ds_write_b128 v{vRW}, v[{F+4*j}:{F+4*j+3}] offset:{32768+1024*j}" for j in range(4)]
    for i, n in enumerate(range(56 - NT, 56)):
        mf(n, 0)
        if i == min(1, NT - 1):
            for t in tail: S(t)
    S.waitlg(); S("s_barrier")
    for j in range(4): S(f"ds_read_b128 v[{F+4*j}:{F+4*j+3}], v{vRR+2} offset:{32768+1024*j}")
    return S

def red_early_w():
    S = Stream()
    for u in range(2):
        for j in range(4): S(f"ds_write_b128 v{vRW}, v[{ACC+32+16*u+4*j}:{ACC+35+16*u+4*j}] offset:{4096*u+1024*j}")
    g = Stream(); g.waitlg(); g("s_barrier"); S.atomic(g)
    return S
def red_early_r():
    S = Stream(); A = ACC + 32; B = ACC + 48
    for j in range(4): S(f"ds_read_b128 v[{A+4*j}:{A+4*j+3}], v{vRR} offset:{1024*j}")
    for j in range(4): S(f"ds_read_b128 v[{B+4*j}:{B+4*j+3}], v{vRR+1} offset:{4096+1024*j}")
    for r in range(16): S(f"v_add_f32 v{A+r}, v{A+r}, v{B+r}")
    return S

FS = 8
def prep_x():
    S = Stream()
    g = Stream()
    g(f"s_add_u32 m0, s{sM0b}, {E}\ns_add_u32 s{sT0}, s{sXO}, 15360\nbuffer_load_dwordx4 v{vXD}, {srd(QF)}, s{sXO} offen lds")
    g(f"buffer_load_dwordx4 v{vXD}, {srd(QF)}, s{sT0} offen offset:1024 lds", "xd")
    S.atomic(g)
    S(f"buffer_load_dwordx2 v[{FS}:{FS+1}], v{vSTV}, {srd(WS)}, s{sStatF} offen sc1")
    return S
def prep_x2():
    S = Stream(); XR = 16
    check_poll(S, [f"buffer_load_dwordx2 v[{FS}:{FS+1}], v{vSTV}, {srd(WS)}, s{sStatF} offen sc1"], [FS+1])
    S(f"v_and_b32 v{FS+1}, 0xffff0000, v{FS}\nv_rcp_f32 v{FS+1}, v{FS+1}\nv_lshlrev_b32 v{FS}, 16, v{FS}\nv_mul_f32 v{FS+2}, v{FS+1}, v{FS+1}\nv_mul_f32 v{FS+1}, {NLOG2E:#x}, v{FS+1}")
    S.waitvm("xd")
    for j in range(4):
        if j: S(f"v_xor_b32 v{FS+3}, {16*j}, v{vXA}")
        S(f"ds_read_b64 v[{XR+2*j}:{XR+2*j+1}], v{FS+3 if j else vXA}")
    for q in range(8):
        S(f"v_lshlrev_b32 v{XF+2*q}, 16, v{XR+q}\nv_and_b32 v{XF+2*q+1}, 0xffff0000, v{XR+q}")
    for r in range(16): S(f"v_sub_f32 v{SF+r}, v{XF+r}, v{FS}")
    for r in range(16): S(f"v_mul_f32 v{SF+r}, v{SF+r}, v{FS+2}")
    return S
YSR = ACC + 48
def prep_y(note=True):
    S = Stream(); YS = YSR
    if note: note_poll(S, 5, sResC)
    S(f"s_add_u32 s{sT0}, s{sYl}, 65536")
    S(f"buffer_load_dwordx4 v[{YS}:{YS+3}], v{vYL}, {srd(WSO)}, s{sYl} offen sc1\nbuffer_load_dwordx4 v[{YS+4}:{YS+7}], v{vYL}, {srd(WSO)}, s{sT0} offen sc1")
    return S
YR = 16
def prep_y2():
    S = Stream(); YS = YSR
    S(f"ds_write_b128 v{vYW}, v[{YS}:{YS+3}]\nds_write_b128 v{vYW}, v[{YS+4}:{YS+7}] offset:1024")
    for j in range(4): S(f"ds_read_b64_tr_b16 v[{YR+2*j}:{YR+2*j+1}], v{vYA} offset:{512*j}")
    return S

def final():
    S = Stream(); A = ACC; F = ACC + 16; Ee = ACC + 32; W = HR; P = HR + 16; Yf = HR + 32
    stamp(S, "g2end")
    pr = lambda b, p: f"v[{b+2*p}:{b+2*p+1}]"
    mr = f"v[{FS}:{FS+1}]"
    for p in range(8): S(f"v_pk_add_f32 {pr(A,p)}, {pr(A,p)}, {pr(Ee,p)}")
    for p in range(8): S(f"v_pk_add_f32 {pr(A,p)}, {pr(A,p)}, {pr(F,p)}")
    for p in range(8): S(f"v_pk_mul_f32 {pr(W,p)}, {pr(A,p)}, {mr} op_sel:[0,1] op_sel_hi:[1,1]")
    for p in range(16): S(f"v_exp_f32_e64 v{W+p}, v{W+p}")
    S.extend(prep_y2())
    for p in range(8): S(f"v_pk_add_f32 {pr(W,p)}, {pr(W,p)}, 1.0 op_sel_hi:[1,0]")
    for p in range(16): S(f"v_rcp_f32_e64 v{W+p}, v{W+p}")
    for p in range(8): S(f"v_pk_mul_f32 {pr(A,p)}, {pr(A,p)}, {pr(SF,p)}")
    for p in range(8): S(f"v_pk_mul_f32 {pr(A,p)}, {pr(A,p)}, {pr(W,p)}")
    repair(S, sResC, Stream(), pollC_load(), 5, cat(prep_y(False), prep_y2()))
    for j in range(4):
        for q in (2*j, 2*j+1): S(f"v_lshlrev_b32 v{Yf+2*q}, 16, v{YR+q}\nv_and_b32 v{Yf+2*q+1}, 0xffff0000, v{YR+q}")
        for p in (2*j, 2*j+1): S(f"v_pk_fma_f32 {pr(W,p)}, {pr(A,p)}, {pr(Yf,p)}, {pr(XF,p)}")
        for p in (2*j, 2*j+1): S(f"v_cvt_pk_bf16_f32 v{P+p}, v{W+2*p}, v{W+2*p+1}")
        S(f"ds_write_b64 v{vOW}, v[{P+2*j}:{P+2*j+1}] offset:{16*j}")
    S(f"s_add_u32 s{sT0}, s{sXO}, 16384")
    S(f"ds_read_b128 v[{W}:{W+3}], v{vOR}\nds_read_b128 v[{W+4}:{W+7}], v{vOR} offset:1280")
    S(f"buffer_store_dwordx4 v[{W}:{W+3}], v{vOS}, {srd(OUT)}, s{sXO} offen\nbuffer_store_dwordx4 v[{W+4}:{W+7}], v{vOS}, {srd(OUT)}, s{sT0} offen")
    if OPT['prof']:
        stamp(S, "outst"); S("s_waitcnt vmcnt(0)"); stamp(S, "end")
        S(f"s_lshl_b32 s{sT0}, s2, 2\ns_add_u32 s{sT0}, s{sT0}, s{sW}\ns_lshl_b32 s{sT0}, s{sT0}, 8\ns_add_u32 s{sT0}, s{sT0}, {PROF}\nv_lshlrev_b32 v{vT}, 2, v{vL}")
        S(f"buffer_store_dword v{vPROF}, v{vT}, {srd(WS)}, s{sT0} offen")
    return S

def stS(name):
    s = Stream(); stamp(s, name); return s
def cat(*ss):
    o = Stream()
    for s in ss: o.extend(s)
    return o
def one(t, tag=None):
    s = Stream(); s(t, tag); return s

def spread(S, items, every):
    o = Stream(); items = list(items); n = 0
    for x in S:
        o.append(x); n += 1
        if items and n % every == 0:
            while items and items[0].cls == 'pseudo' and items[0].op != 'GROUP': o.append(items.pop(0))
            if items: o.append(items.pop(0))
    o.extend(items)
    return o

def build():
    assert not (OPT['cshare'] and OPT['map47'])
    P = Stream()
    P.extend(entry())
    c1 = chunk_dma(1); c2 = chunk_dma(2); kp = OPT['kvpos']; g1f = []
    st = stats()
    pre = cat(one(pollA_load().replace("v228,", "a233,")), one(pollB_load().replace("v4,", "a234,")), one(pollC_load().replace("v5,", "a235,"))) if OPT['pretouch'] else Stream()
    br = one(f"s_cmp_ge_u32 s{sCB1}, 14\ns_cbranch_scc1 L_spare1")
    if kp >= 2:
        P.extend(spread(cat(*[coff(i) for i in range(2, 8)], setup(), kv_pro()), c1[:OPT['c1n']], 20))
        stamp(P, "setup")
        P.extend(st[:16]); P.extend(spread(Stream(st[16:]), cat(c1[OPT['c1n']:], c2[:OPT['c2n']]), 7)); P.extend(br)
        seq = cat(c2[OPT['c2n']:], kv_dma(), dh_loads(), chunk_dma(3), Stream([Pseudo('GATE', 'c0b')]), chunk_dma(4), Stream([Pseudo('GATE', 'c1b')]), chunk_dma(5) if OPT['c5e'] else Stream())
        isl = lambda it: any(y.cls in ('dma', 'vmem_ld') for y in (it.arg if (it.cls == 'pseudo' and it.op == 'GROUP') else [it]))
        li = [i for i, it in enumerate(seq) if isl(it)]
        a0 = li[OPT['r0']]; a1 = li[OPT['r1'] - (3 if OPT['tiny'] else 0)]
        ng = lambda st: Stream([x for x in st if not (x.cls == 'pseudo' and x.op == 'GATE')])
        assert not any(x.op == 'GATE' for x in seq[:a0]) and not any(x.op == 'GATE' and x.arg == 'c1b' for x in seq[:a1])
        g1f.append(("c0a", "c0m", Stream(seq[:a0]), (OPT['p0'],)))
        g1f.append(("c0b", "c1m", ng(seq[a0:a1]), (OPT['p1'],)))
        g1f.append(("c1b", "c2m", ng(seq[a1:]), (OPT['p2'],)))
        g1f.append(("c1b", "c2m", cat(setup_b(), kv_addr())))
    else:
        kd = kv_dma(); n0 = OPT['kvn']
        P.extend(kv_pro())
        early = Stream(kd[:n0]) if kp == 0 else Stream(c1[:OPT['c1n']])
        P.extend(spread(cat(*[coff(i) for i in range(2, 8)], setup(), kv_addr()), early, 20))
        stamp(P, "setup")
        late = cat(kd[n0:], dh_loads(), c1) if kp == 0 else cat(c1[OPT['c1n']:], kd, dh_loads())
        P.extend(st[:16]); P.extend(spread(Stream(st[16:]), late, 6)); P.extend(br)
        g1f.append(("c0a", "c0m", setup_b()))
        if kp == 0:
            g1f.append(("c0a", "c0m", c2, (OPT['p0'],)))
            g1f.append(("c0b", "c1m", chunk_dma(3), (OPT['p1'],)))
            g1f.append(("c1b", "c2m", chunk_dma(4), (OPT['p2'],)))
        else:
            g1f.append(("c0a", "c0m", Stream(c2[:4]), (OPT['p0'],)))
            g1f.append(("c0b", "c1m", cat(c2[4:], chunk_dma(3)), (OPT['p1'],)))
            g1f.append(("c1b", "c2m", chunk_dma(4), (OPT['p2'],)))
    D = Stream()
    for c in range(6 if OPT['c5e'] else 5, 8):
        D.gate(f"c{c-4}b"); D.extend(chunk_dma(c))
    D.gate(OPT['stat_at']); D.pace(OPT['tpp']); D.extend(cat(*[one(t) for t in stat_loads(1) + (cs_loads() if OPT['cshare'] and OPT['cspub'] == 1 else [])], pre, htouch(), w2touch(range(OPT['tp'], 7)) if OPT['tp'] >= 0 else Stream())); D.pace(OPT['w2pace'])
    W2S = cat(Stream([Pseudo('GATE', 'c3b' if OPT['kvfill'] else f'c{kp}b')]), hcopy_dma(), Stream([Pseudo('GATE', 'c4b')]), w2_dma(0), Stream([Pseudo('GATE', 'c5b')]), Stream([Pseudo('CSL')]), w2_dma(1), Stream([Pseudo('GATE', 'c6b')]), w2_dma(2), w2_dma(3), cat(Stream([Pseudo('WAITLG', 'tr0')]), w2_dma(4)) if OPT['n2'] > 36 else Stream())
    isld = lambda it: it.cls == 'pseudo' and it.op == 'GROUP' and any(y.cls == 'dma' for y in it.arg)
    idx = [i for i, it in enumerate(W2S) if isld(it)]
    cut1 = idx[OPT['n1']] if OPT['n1'] < len(idx) else len(W2S); cut2 = idx[OPT['n2']] if OPT['n2'] < len(idx) else len(W2S)
    for it in W2S[:cut1]:
        if it.cls == 'pseudo' and it.op == 'CSL':
            if OPT['cshare'] and OPT['cspub'] > 1:
                D.pace(1); D.extend(cat(*[one(t) for t in cs_loads()])); D.pace(OPT['w2pace'])
        else: D.append(it)
    g1f.append((OPT['dstart'], "c7m", D, (OPT['dp'],)))
    na, nb = (("c0a", "c0m"), ("c0b", "c1a")) if OPT['nonce_at'] == 0 else (("c0b", "c1a"), ("c1b", "c2a"))
    g1f.append((*na, nonce_get(), 1))
    g1f.append((*nb, cat(nonce_use(), stats_store()), 1))
    g1f.append(("c1a", "c1m", flag_init(), 1))
    if OPT['cshare']:
        if OPT['cspub'] == 1: g1f.append(("c1a", "c1m", cs_publish()))
        if OPT['cspub'] == 3: g1f.append(("c2b", "c3a", cs_publish()))
        g1f.append((OPT['csg'], "c7m", cs_gather()))
    ke = kp
    if OPT['kvfill']:
        ke = OPT['kvend']; g1f.append(("c2b", f"c{ke}m", kvpre_np()))
    pts = [(f"c{c}{x}", f"c{c}{y}") for c in range(ke + 1, 8) for x, y in (("a", "m"), ("b", "e"))][OPT['ft0']:OPT['ft0'] + 4]
    lastA = len(pts) == 4
    for i, (a, b) in enumerate(pts): g1f.append((a, b, flag_try(sFAo, "kv1", lastA and i == 3), 1))
    g1f.append(((f"c{ke}b", "c7a") if OPT['kvfill'] else ("c3a", "c5a")) + (setup_c(),) if not OPT['x_late'] else ("c7b", "c7e", setup_c())); g1f.append(("c6a", "c7m", hoffs()[:1] if OPT['packa'] else hoffs()))
    g1f.append(("c7a", "c7m", stats_consume()))
    if OPT['trg1'] >= 1: g1f.append((OPT['tr0at'], "c7e", w2_tr(0)))
    g1f.append((f"c{max(4, ke)}b", f"c{max(4, ke)+1}m", hpad()))
    g1f.append(("c7b", "c7e", cat(cs_reads(), spollA_load() if OPT['packa'] else one(pollA_load())) if OPT['pat'] < 0 else cs_reads(), 1))
    P.extend(merge(gemm1(), g1f))
    stamp(P, "g1end")
    ins = {OPT['uat']: u_loads()}
    if OPT['pat'] >= 0: ins[OPT['pat']] = spollA_load() if OPT['packa'] else one(pollA_load())
    if not lastA: P.extend(flag_try(sFAo, "kv1", True))
    if OPT['packa']: ins[OPT['uat']].extend(hoffs2())

    nog = lambda st: Stream([x for x in st if not (x.cls == 'pseudo' and x.op in ('GATE', 'CSL'))])
    P.extend(spread(epi1(ins), nog(W2S[cut1:cut2]), OPT['esp']))
    stamp(P, "epi1")
    P("L_join:")
    W = lambda t: Stream([Pseudo('WAITLG', t)])
    G = lambda m: Stream([Pseudo('GATE', m)])
    fb = OPT['flagB_at']; t0, t1, t2, t3 = OPT['t0'], OPT['t1'], OPT['t2'], OPT['t3']; fs = OPT['fbs']; fn = OPT['fbn']
    cf = [(f"cv{fb+fs*i}", f"cv{fb+fs*i+6}", flag_try(sFBo, "hst", i == fn - 1), 1) for i in range(fn)]
    cf += [("cva", "cve", cat(G(f"cv{OPT['d3']}"), nog(W2S[cut2:]), G(f"cv{OPT['d4']}"), cat(W('tr0'), w2_dma(4)) if (OPT['n2'] <= 36 and OPT['g2w'] > 4) else Stream(), cat(W('tr1'), w2_dma(5)) if OPT['g2w'] > 5 else Stream(), cat(W('tr2'), w2_dma(6)) if OPT['g2w'] > 6 else Stream()), (OPT['cvpace'],)),
          (f"cv{OPT['pb']}", "cve", spollB_load() if OPT['packb'] else one(pollB_load()), 1)]
    if OPT['trg1'] < 1: cf.append((f"cv{t0}", f"cv{t1}", w2_tr(0)))
    if OPT['trg1'] < 2: cf.append((f"cv{t1}", f"cv{t2}", w2_tr(1)))
    cf += [(f"cv{t2}", f"cv{t3}", w2_tr(2)), (f"cv{OPT['t4']}", "cv140", w2_tr(3)), ("cv130", "cve", conv_du())]
    if OPT['trg1'] == 2: P.extend(w2_tr(1))
    HL = cat(*[hload(n) for n in range(OPT['hring'])])
    chk = Stream()
    if OPT['packb']: spollB_check(chk)
    else: check_poll(chk, [pollB_load()], [4])
    stamp(chk, "hflag")
    hc = OPT['hcv']
    if hc: cf.insert(0, (f"cv{OPT['hcat']}", "cve", cat(chk, HL[:hc]), (OPT['hcp'],)))
    post = Stream()
    if OPT['x_cv']:
        keep = []
        for f in cf:
            txt = " ".join(x.text for x in flatten(f[2]) if x.cls != 'pseudo')
            kind = 1 if " lds" in txt else 2 if "tr_b16" in txt else 4 if "s_getreg" in txt or "s_cmp_eq_u32 s87" in txt else 8
            if OPT['x_cv'] & kind: post.append((kind, f[2]))
            else: keep.append(f)
        cf = keep
    P.extend(merge(conv(), cf))
    for kind in (4, 2, 1, 8):
        for k2, st2 in post:
            if k2 == kind and not (kind == 2 and any(x.tag == 'tr3' for x in st2)): P.extend(nog(st2))
    for k2, st2 in post:
        if k2 == 2 and any(x.tag == 'tr3' for x in st2): P.extend(nog(st2))
    P.extend(W('tr3'))
    if OPT['hearly']:
        ce = conv_epi(Stream())
        ib = [i for i, x in enumerate(ce) if x.op == 's_barrier'][0]
        h1 = OPT['he1']; h2 = OPT['he2']
        P.extend(Stream() if hc else chk); P.extend(HL[hc:h1]); P.extend(ce[:ib]); P.extend(HL[h1:h2]); P.extend(spread(Stream(ce[ib:]), HL[h2:OPT['hearly']], 2))
        stamp(P, "conv2"); P.extend(HL[OPT['hearly']:]); P.extend(prep_x())
    else:
        P.extend(conv_epi(prep_x())); stamp(P, "conv2")
        P.extend(chk); P.extend(HL[:OPT['hl0']])
        if OPT['trmid']: P.extend(cat(w2_tr(4), w2_tr(5), w2_tr(6)))
        if OPT['xmid']: P.extend(prep_x2())
        P.extend(HL[OPT['hl0']:]); P.extend(flag_store(sFCo, WS, "yst"))
    global SPARE_W2
    SPARE_W2 = nog(W2S[:cut2])
    if OPT['trg1'] >= 1:
        iw = [i for i, x in enumerate(SPARE_W2) if x.cls == 'pseudo' and x.op == 'WAITLG']
        iw = iw[0] if iw else len(SPARE_W2)
        SPARE_W2 = cat(SPARE_W2[:iw], w2_tr(0), SPARE_W2[iw:])
    D = OPT['ylag']
    gf = [(f"g2_{x}", f"g2_{x+1}", flag_try(sFCo, "yst", x == 15), 1) for x in (0, 3, 6, 10, 15)] if OPT['hearly'] else []
    gw = OPT['g2w']
    if OPT['trmid'] and not OPT['hearly']: pass
    elif OPT['trpre']: P.extend(cat(*[w2_tr(b) for b in range(4, gw)]))
    else: gf.append(("g2s", "g2_14", cat(*[w2_tr(b) for b in range(4, gw)])))
    if gw < 7:
        gf.append((f"g2_{OPT['gw0']}", "g2_20", cat(*[w2_dma(b) for b in range(gw, 7)]), (OPT['gwp'],)))
        for b in range(gw, 7): gf.append((f"g2_{4*b-5}", f"g2_{4*b-1}", w2_tr(b)))
    gf += [
          ("g2_14", "g2_27", Stream() if (OPT['xmid'] and not OPT['hearly']) else prep_x2()),
          ("g2_28", "g2_33", red_early_w()),
          ("g2_35", "g2_44", red_early_r()),
          (f"g2_{OPT['yat']}", f"g2_{OPT['yat']+1}", one(pollC_load())),
          (f"g2_{OPT['yat']+D}", "g2t", prep_y(), 1)]
    P.extend(merge(gemm2(), gf))
    P.extend(final())
    if OPT['x_meas']:
        P(f"s_cmp_ge_u32 s{sCB1}, 14\ns_cbranch_scc1 L_end")
        if OPT['x_wg'] >= 0: P(f"s_and_b32 s64, s2, {OPT['x_wgm']}\ns_cmp_lg_u32 s64, {OPT['x_wg']}\ns_cbranch_scc1 L_end")
        P(f"v_readlane_b32 s66, v{vPROF}, 0\nL_pad:\ns_memrealtime s[64:65]\ns_waitcnt lgkmcnt(0)\ns_sub_u32 s64, s64, s66\ns_cmp_lt_u32 s64, 2000\ns_cbranch_scc1 L_pad")
    if OPT['x_pad']:
        P(f"L_pad:\ns_memrealtime s[64:65]\ns_waitcnt lgkmcnt(0)\ns_sub_u32 s64, s64, s{sN}\ns_cmp_lt_u32 s64, {OPT['x_pad']}\ns_cbranch_scc1 L_pad")
    P("L_end:\ns_endpgm")
    P = flatten(P)
    kv_last = max(i for i, x in enumerate(P) if x.tag == 'kvd')
    sb_first = min(i for i, x in enumerate(P) if x.cls == 'salu' and f"s{sFBo}" in x.wr and 'mov' not in x.op)
    assert kv_last < sb_first, "k/v SRDs overwritten before use"
    last = None
    for x in P:
        if x.cls == 'salu' and 'm0' in x.wr: last = x.text
        if x.cls == 'dma' and x.arg is not None: assert x.arg == last, ("m0 changed under a DMA group", x.text, last)
        if x.cls == 'label' and x.text.startswith('L_join'): last = None
    c7_last = max(i for i, x in enumerate(P) if x.tag == 'c7')
    ho_first = min(i for i, x in enumerate(P) if x.text.startswith(f"s_mov_b64 s[{WSO}:{WSO+1}], s[{WS}"))
    assert c7_last < ho_first, "GEMM1 SRDs / offsets overwritten before the last chunk load"
    P = autowait(P); P = hazards(P)
    P.extend(hazards(autowait(flatten(spare1()))))
    R = hazards(flatten(rare))
    P.extend(R); P("L_codeend:")
    P = align8(P)
    return P

HEAD = open("cdna_kernels/" + NAME + ".s.ref").read().split("; Override launch")[0]
def emit():
    P = build()
    size = sum(x.size for x in P)
    o = HEAD + f"; @launch grid=(256,1,1) block=(256,1,1) lds={LDS_BYTES}\n"
    o += f'.amdgcn_target "amdgcn-amd-amdhsa--gfx950"\n.text\n.globl {NAME}_kernel\n.p2align 8\n.type {NAME}_kernel,@function\n{NAME}_kernel:\n'
    o += "\n".join(l for l in text(P).split("\n") if not l.strip().startswith("; MARK"))
    o += f""".section .rodata,"a"
.p2align 6
.amdhsa_kernel {NAME}_kernel
  .amdhsa_next_free_vgpr 512
  .amdhsa_next_free_sgpr 102
  .amdhsa_accum_offset 256
  .amdhsa_group_segment_fixed_size 0
  .amdhsa_kernarg_size 96
  .amdhsa_user_sgpr_count 2
  .amdhsa_user_sgpr_kernarg_segment_ptr 1
  .amdhsa_system_sgpr_workgroup_id_x 1
.end_amdhsa_kernel
"""
    return o, size

if __name__ == "__main__":
    o, size = emit()
    open(sys.argv[1], "w").write(o)
    print("code bytes (estimate):", size, "stamps:", stamp_names)
    open(sys.argv[1] + ".stamps", "w").write(",".join(stamp_names))
```

```python
import re

def _expand(tok):
    tok = tok.strip()
    neg = tok.lstrip('-|').rstrip('|')
    if neg.startswith('abs(') : neg = neg[4:-1]
    m = re.fullmatch(r'([vas])\[(\d+):(\d+)\]', neg)
    if m: return [f"{m.group(1)}{i}" for i in range(int(m.group(2)), int(m.group(3)) + 1)]
    m = re.fullmatch(r'([vas])(\d+)', neg)
    if m: return [neg]
    if neg == 'vcc': return ['vcc_lo', 'vcc_hi']
    if neg == 'exec': return ['exec_lo', 'exec_hi']
    if neg in ('vcc_lo', 'vcc_hi', 'exec_lo', 'exec_hi', 'm0', 'scc'): return [neg]
    return []

TRANS = ('v_exp_f32', 'v_log_f32', 'v_rcp_f32', 'v_rsq_f32', 'v_sqrt_f32', 'v_sin_f32', 'v_cos_f32')

class Ins:
    __slots__ = ('text', 'op', 'rd', 'wr', 'cls', 'tag', 'dpp', 'size', 'arg', 'srcC', 'srcAB', 'wide')
    def __init__(self, text, tag=None):
        self.text = text; self.tag = tag; self.arg = None
        self.rd = set(); self.wr = set(); self.dpp = False; self.srcC = set(); self.srcAB = set(); self.wide = False
        t = text.split(';')[0].strip()
        if t.endswith(':'):
            self.op = 'label'; self.cls = 'label'; self.size = 0; return
        if t.startswith('.'):
            self.op = t.split()[0]; self.cls = 'directive'; self.size = 0; return
        parts = t.split(None, 1)
        op = parts[0]; self.op = op
        rest = parts[1] if len(parts) > 1 else ''
        ops = [o.strip() for o in rest.split(',')] if rest else []
        mods = ''
        if ops:
            last = ops[-1].split(None, 1)
            ops[-1] = last[0]
            mods = last[1] if len(last) > 1 else ''
            clean = []
            for i, o in enumerate(ops):
                sp = o.split(None, 1)
                clean.append(sp[0])
                if len(sp) > 1:
                    mods = sp[1] + ',' + ','.join(ops[i+1:]) + ' ' + mods
                    break
            ops = clean
        base = re.sub(r'_(e32|e64|dpp|sdwa)$', '', op)
        R = lambda i: _expand(ops[i]) if i < len(ops) else []
        allr = lambda frm: [r for i in range(frm, len(ops)) for r in R(i)]
        lit = any(re.fullmatch(r'-?(0x[0-9a-fA-F]+|\d+)', o) and not (-16 <= int(o, 0) <= 64) for o in ops) or \
              any(re.fullmatch(r'-?\d+\.\d+(e[-+]?\d+)?', o) and o not in ('0.5','-0.5','1.0','-1.0','2.0','-2.0','4.0','-4.0') for o in ops)
        self.size = 4
        if op.startswith('v_mfma'):
            self.cls = 'mfma8' if '32x32x16' in op else 'mfma4'
            self.wr = set(R(0)); self.srcAB = set(R(1) + R(2)); self.srcC = set(R(3)); self.rd = self.srcAB | self.srcC; self.size = 8
        elif op.startswith('buffer_') or op.startswith('global_'):
            self.size = 8
            if 'load' in op:
                if re.search(r'\blds\b', mods):
                    self.cls = 'dma'; self.rd = set(allr(0)) | {'m0'}
                else:
                    self.cls = 'vmem_ld'; self.wr = set(R(0)); self.rd = set(allr(1))
            else:
                self.cls = 'vmem_st'; self.rd = set(allr(0)); self.wide = ('x3' in op or 'x4' in op)
                self.arg = set(R(0))
            self.rd |= {'exec_lo', 'exec_hi'}
        elif op.startswith('ds_'):
            self.size = 8
            if op.startswith('ds_read'):
                self.cls = 'ds_ld'; self.wr = set(R(0)); self.rd = set(allr(1))
            else:
                self.cls = 'ds_st'; self.rd = set(allr(0))
        elif op.startswith('s_load') or op in ('s_memtime', 's_memrealtime'):
            self.cls = 'smem'; self.wr = set(R(0)); self.rd = set(allr(1)); self.size = 8
        elif op.startswith('s_'):
            self.cls = 'salu'
            if op in ('s_waitcnt', 's_nop', 's_barrier', 's_endpgm', 's_sleep', 's_setprio', 's_branch'):
                self.cls = 'ctl'
            elif op.startswith('s_cbranch'):
                self.cls = 'ctl'
                self.rd = {'scc'} if 'scc' in op else ({'vcc_lo', 'vcc_hi'} if 'vcc' in op else {'exec_lo', 'exec_hi'})
            elif op.startswith('s_cmp') or op.startswith('s_bitcmp'):
                self.rd = set(allr(0)); self.wr = {'scc'}
            else:
                self.wr = set(R(0)); self.rd = set(allr(1))
                if op.startswith('s_cselect') or op.startswith('s_addc'): self.rd.add('scc')
                if not (op.startswith('s_mov') or op.startswith('s_cselect') or op.startswith('s_mul') or op.startswith('s_getpc') or op.startswith('s_getreg')): self.wr.add('scc')
            if (lit or any(o.startswith('L_') for o in ops)) and self.cls == 'salu': self.size = 8
        elif op.startswith('v_'):
            self.cls = 'trans' if base in TRANS else 'valu'
            self.dpp = op.endswith('_dpp') or 'quad_perm' in mods or 'row_' in mods
            if base.startswith('v_cmp'):
                self.wr = set(R(0)); self.rd = set(allr(1))
            elif base in ('v_permlane16_swap_b32', 'v_permlane32_swap_b32', 'v_swap_b32'):
                self.wr = set(R(0) + R(1)); self.rd = set(R(0) + R(1))
            else:
                self.wr = set(R(0)); self.rd = set(allr(1))
                if base in ('v_fmac_f32',) or self.dpp: self.rd |= set(R(0))
            vop3_only = ('v_fma_f32', 'v_mul_lo_u32', 'v_mad_u32_u24', 'v_lshl_add_u32', 'v_add_lshl_u32', 'v_and_or_b32', 'v_lshl_or_b32',
                         'v_bfe_u32', 'v_add3_u32', 'v_cvt_pk_bf16_f32', 'v_perm_b32', 'v_alignbit_b32', 'v_or3_b32', 'v_xad_u32', 'v_accvgpr_read_b32',
                         'v_accvgpr_write_b32', 'v_readlane_b32', 'v_writelane_b32', 'v_med3_f32', 'v_bfi_b32', 'v_mul_hi_u32')
            is3 = op.endswith('_e64') or base in vop3_only or base.startswith('v_pk_') or self.dpp
            if base.startswith('v_cmp') and ops and ops[0] != 'vcc': is3 = True
            if base == 'v_cndmask_b32' and len(ops) > 3 and ops[3] != 'vcc': is3 = True
            if not is3 and len(ops) >= 3 and not base.startswith('v_cmp') and base not in ('v_permlane16_swap_b32',) and not ops[2].startswith('v'): is3 = True
            if not is3 and any(o.startswith('-v') or o.startswith('-s') or o.startswith('|') or o.startswith('abs') for o in ops[1:]): is3 = True
            self.size = 8 if (is3 or lit) else 4
        else:
            raise ValueError("unknown instruction: " + text)

class Pseudo:
    def __init__(self, kind, arg=None):
        self.cls = 'pseudo'; self.op = kind; self.arg = arg; self.size = 0; self.rd = set(); self.wr = set(); self.tag = None
        self.text = f"; {kind} {arg}"

class Stream(list):
    def __call__(self, text, tag=None):
        for ln in text.strip().split('\n'):
            ln = ln.strip()
            if ln and not ln.startswith(';'): self.append(Ins(ln, tag))
        return self
    def waitvm(self, tag): self.append(Pseudo('WAITVM', tag))
    def waitlg(self, tag=None): self.append(Pseudo('WAITLG', tag))
    def fill(self, n): self.append(Pseudo('FILL', n))
    def mark(self, name): self.append(Pseudo('MARK', name))
    def gate(self, name): self.append(Pseudo('GATE', name))
    def pace(self, n): self.append(Pseudo('PACE', n))
    def atomic(self, items):
        g = Pseudo('GROUP', list(items)); self.append(g)

def merge(main, fills):
    marks = {x.arg: i for i, x in enumerate(main) if x.cls == 'pseudo' and x.op == 'MARK'}
    cap = {i: x.arg for i, x in enumerate(main) if x.cls == 'pseudo' and x.op == 'FILL'}
    ins_at = {i: [] for i in range(len(main) + 1)}
    for fl in fills:
        a, b, st = fl[:3]; early = len(fl) > 3
        ia, ib = marks[a], marks[b]
        slots = [i for i in sorted(cap) if ia < i < ib]
        items = list(st)
        cost = lambda it: (sum(1 for y in it.arg if y.cls != 'pseudo') if (it.cls == 'pseudo' and it.op == 'GROUP') else (0 if it.cls == 'pseudo' else (2 if it.cls == 'trans' else 1)))
        total = sum(cost(it) for it in items); room = sum(cap[i] for i in slots)
        k = 0; placed = 0; seen = 0
        if early and isinstance(fl[3], tuple):
            pace = fl[3][0]; since = pace
            isvm = lambda it: any(y.cls in ('dma', 'vmem_ld', 'vmem_st') for y in (it.arg if (it.cls == 'pseudo' and it.op == 'GROUP') else [it]))
            for i in slots:
                since += 1
                while k < len(items):
                    it = items[k]
                    if it.cls == 'pseudo' and it.op == 'GATE':
                        if marks[it.arg] < i: k += 1; continue
                        break
                    if it.cls == 'pseudo' and it.op == 'PACE': pace = it.arg; k += 1; continue
                    if isvm(it):
                        if since < pace: break
                        since = 0
                    elif cost(it) and cap[i] <= 0: break
                    ins_at[i].append(it); cap[i] -= cost(it); k += 1
            slots = []
        for i in slots:
            seen += cap[i]
            quota = total * seen / max(room, 1) if (room >= total and not early) else seen
            while k < len(items) and (cost(items[k]) == 0 or (placed + cost(items[k]) <= quota + 0.5 and cap[i] > 0)):
                c = cost(items[k]); ins_at[i].append(items[k]); cap[i] -= c; placed += c; k += 1
        if k < len(items):
            left = sum(cost(it) for it in items[k:])
            ins_at[ib].extend(items[k:])
    out = Stream()
    for i, x in enumerate(main):
        for it in ins_at[i]:
            if it.cls == 'pseudo' and it.op == 'GROUP': out.extend(it.arg)
            else: out.append(it)
        if not (x.cls == 'pseudo' and x.op == 'FILL'): out.append(x)
    return out

def flatten(st):
    out = Stream()
    for it in st:
        if it.cls == 'pseudo' and it.op == 'GROUP': out.extend(flatten(it.arg))
        elif it.cls == 'pseudo' and it.op in ('FILL', 'GATE', 'PACE'): pass
        else: out.append(it)
    return out

SKIPS = []
def autowait(st):
    out = Stream()
    vm_n = 0; lg_n = 0; vm_done = 0; lg_done = 0
    reg_vm = {}; reg_lg = {}; reg_sm = set(); smem_out = False
    tag_vm = {}; tag_lg = {}
    for x in st:
        need_vm = None; need_lg = None
        def nv(idx):
            nonlocal need_vm
            if idx > vm_done:
                c = vm_n - idx; need_vm = c if need_vm is None else min(need_vm, c)
        def nl(idx):
            nonlocal need_lg
            if idx > lg_done:
                c = lg_n - idx; need_lg = c if need_lg is None else min(need_lg, c)
        if x.cls == 'pseudo':
            if x.op == 'WAITVM':
                if x.arg is None: nv(vm_n) if vm_n > vm_done else None
                else: nv(tag_vm[x.arg])
            elif x.op == 'WAITLG':
                if x.arg is None:
                    if lg_n > lg_done or smem_out: need_lg = 0
                else: nl(tag_lg[x.arg])
        else:
            for r in (x.rd | x.wr):
                if r in reg_vm: nv(reg_vm[r])
                if r in reg_lg: nl(reg_lg[r])
                if r in reg_sm: need_lg = 0
        if need_vm is not None and need_vm > 63:
            SKIPS.append((need_vm, x.text)); need_vm = 63
        if need_lg is not None and need_lg > 15:
            SKIPS.append((need_lg, x.text)); need_lg = 15
        if need_vm is not None or need_lg is not None:
            p = []
            if need_vm is not None: p.append(f"vmcnt({need_vm})"); vm_done = max(vm_done, vm_n - need_vm)
            if need_lg is not None:
                p.append(f"lgkmcnt({need_lg})"); lg_done = max(lg_done, lg_n - need_lg)
                if need_lg == 0: smem_out = False; reg_sm.clear()
            out.append(Ins("s_waitcnt " + " ".join(p)))
            reg_vm = {r: i for r, i in reg_vm.items() if i > vm_done}
            reg_lg = {r: i for r, i in reg_lg.items() if i > lg_done}
        if x.cls == 'pseudo':
            if x.op == 'MARK': out.append(x)
            if x.op == 'CMPVM':
                tag, sreg = x.arg; n = min(vm_n - tag_vm[tag], 63)
                out.append(Ins(f"s_cmp_le_u32 s{sreg}, {(n & 15) | ((n >> 4) << 22):#x}"))
            continue
        if x.cls in ('vmem_ld', 'vmem_st', 'dma'):
            vm_n += 1
            for r in x.wr: reg_vm[r] = vm_n
            if x.tag: tag_vm[x.tag] = vm_n
        elif x.cls in ('ds_ld', 'ds_st'):
            lg_n += 1
            for r in x.wr: reg_lg[r] = lg_n
            if x.tag: tag_lg[x.tag] = lg_n
        elif x.cls == 'smem':
            smem_out = True
            for r in x.wr: reg_sm.add(r)
        elif x.op == 's_waitcnt':
            m = re.search(r'vmcnt\((\d+)\)', x.text)
            if m: vm_done = max(vm_done, vm_n - int(m.group(1)))
            m = re.search(r'lgkmcnt\((\d+)\)', x.text)
            if m:
                if int(m.group(1)) == 0: smem_out = False; reg_sm.clear(); lg_done = lg_n
                else: lg_done = max(lg_done, lg_n - int(m.group(1)))
            reg_vm = {r: i for r, i in reg_vm.items() if i > vm_done}
            reg_lg = {r: i for r, i in reg_lg.items() if i > lg_done}
        out.append(x)
    return out

def _states(x):
    if x.cls in ('label', 'directive', 'pseudo'): return 0
    if x.op == 's_nop': return int(x.text.split()[1], 0) + 1
    return 1

def hazards(st):
    out = Stream()
    isv = lambda r: r[0] in 'va' and r[1:].isdigit()
    iss = lambda r: (r[0] == 's' and r[1:].isdigit()) or r.startswith('vcc')
    for x in st:
        if x.cls in ('label', 'directive', 'pseudo'):
            out.append(x); continue
        need = 0; dist = 0
        valu = x.cls in ('valu', 'trans'); mf = x.cls in ('mfma4', 'mfma8')
        mem = x.cls in ('vmem_ld', 'vmem_st', 'dma', 'ds_ld', 'ds_st')
        base = re.sub(r'_(e32|e64|dpp|sdwa)$', '', x.op)
        for p in reversed(out):
            if dist >= 20: break
            if p.cls in ('label', 'directive', 'pseudo'): continue
            req = 0
            pv = p.cls in ('valu', 'trans')
            if pv:
                wv = {r for r in p.wr if isv(r)}; ws = {r for r in p.wr if iss(r)}
                if mf and (wv & x.rd): req = max(req, 2)
                if valu and x.dpp and (wv & x.rd): req = max(req, 2)
                if base.startswith('v_permlane') and (wv & x.rd): req = max(req, 2)
                if base in ('v_readfirstlane_b32', 'v_readlane_b32') and (wv & x.rd): req = max(req, 1)
                if p.cls == 'trans' and (valu or mf or mem) and (wv & x.rd): req = max(req, 1)
                if valu and (ws & x.rd): req = max(req, 2)
                if x.cls in ('vmem_ld', 'vmem_st', 'dma') and (ws & x.rd): req = max(req, 5)
                if x.cls in ('salu', 'smem', 'ctl') and (ws & x.rd): req = max(req, 2)
                if base in ('v_readlane_b32', 'v_writelane_b32') and (ws & x.rd): req = max(req, 4)
            if p.cls in ('mfma4', 'mfma8'):
                e = p.cls == 'mfma8'
                if mf:
                    if p.wr & x.srcAB: req = max(req, 12 if e else 8)
                    if (p.wr & x.srcC) and not (p.wr == x.srcC and p.cls == x.cls): req = max(req, 10 if e else 6)
                    if (p.wr & x.wr) and not (p.wr == x.srcC and p.cls == x.cls): req = max(req, 12 if e else 8)
                elif (valu or mem) and (p.wr & (x.rd | x.wr)): req = max(req, 12 if e else 8)
                if valu and (p.srcC & x.wr): req = max(req, 7 if e else 3)
            if p.cls == 'salu' and 'm0' in p.wr and x.cls == 'dma': req = max(req, 1)
            if x.op == 's_getreg_b32' and p.cls in ('vmem_ld', 'vmem_st', 'dma'): req = max(req, 4)
            if p.cls == 'vmem_st' and p.wide and (p.arg & x.wr): req = max(req, 2)
            if p.cls == 'salu' and ('exec_lo' in p.wr) and valu and x.dpp: req = max(req, 2)
            need = max(need, req - dist)
            dist += _states(p)
        while need > 0:
            n = min(need, 16); out.append(Ins(f"s_nop {n-1}")); need -= n
        out.append(x)
    return out

E64OK = ('v_exp_f32', 'v_rcp_f32', 'v_add_f32', 'v_mul_f32', 'v_sub_f32', 'v_mov_b32', 'v_lshlrev_b32', 'v_and_b32', 'v_sqrt_f32',
         'v_add_u32', 'v_or_b32', 'v_xor_b32', 'v_lshrrev_b32', 'v_fmac_f32', 'v_max_f32', 'v_min_f32')
def align8(st):
    off = 0; last4 = None; out = Stream()
    for x in st:
        if x.cls == 'directive' and x.op == '.p2align': off = 0; last4 = None
        if x.size == 8 and off % 8 == 4 and last4 is not None:
            y = out[last4]; z = Ins(y.text.replace(y.op, y.op + '_e64', 1), y.tag); assert z.size == 8
            out[last4] = z; off += 4
        if x.size == 8: last4 = None
        if x.size == 4:
            last4 = len(out) if x.op in E64OK else (last4 if off % 8 == 4 else None)
        if x.cls == 'label': last4 = None
        out.append(x); off += x.size
    return out

def text(st):
    return "\n".join((x.text if x.cls in ('label', 'directive') else "    " + x.text) for x in st) + "\n"
```

```python
import sys, struct
from ir import *

NAME = "recurrent_scan__ssm_conv_h3__dense_activation_silu__prompt"
OPT = dict(hcreg=1, hcw='c6b', kvaft=1, spb=0, t4=100, kvfill=0, fine=0, tiny=2, x_kvnull=0, x_w1null=0, hl0=11, trmid=1, xmid=1, x_meas=0, x_wg=-1, x_wgm=255, pk=0, g2w=7, gw0=0, gwp=2, x_pad=0, tr0at='c7a', hcv=0, hcat=108, hcp=4, msw=0, cspub=2, csg='c7a', cshare=0, ownw2=0, stch=0, st0=6, r0=4, r1=20, c4e=0, packa=1, hold=1, tpp=2, packb=1, he1=6, he2=10, x_cv=0, cvwait=1, fbs=25, fbn=3, trg1=0, trpre=1, tp=-1, pb=115, d3=0, c5e=1, stat_at='c4a', x_notry=0, x_late=0, dp=2, dstart='c2b', kvn=1, ft0=2, c3b=0, c3a=7, sw3=7, swn=1, swflag=0, c3pf=1, hcnt=1, qnt=0, hearly=0, ntail=4, dbgout=0, rotk=2, rotx=1, htouch=0, x_w2null=0, x_hcnull=0, x_hplain=0, n1=16, n2=28, d4=40, fa=6, pat=0, cvpace=4, t0=8, t1=24, t2=40, t3=56, pretouch=0, c2n=4, p0=2, p1=2, p2=2, b1n=5, b2n=5, esp=8, yat=40, ylag=9, ylate=1, map47=0, tlb=0, nonce_at=0, slowat=4, nt=1, c1n=1, kvpos=2, w2pace=5, sweep=0, uat=3, x_nokv=0, x_nocs=0, x_nodma=0, x_nobar=0, x_now2=0, onewait=1, kvend=4, cap=5, spare=1, prof=0, stats_fill=0, hring=16, flagB_at=45, codepf=1)
for a in sys.argv[2:]:
    k, v = a.split('='); OPT[k] = int(v) if v.lstrip('-').isdigit() else v

HWS = 0; KVR = 0x700000; YT = 0x900000; STATS = 0xB00000; FLA = 0xB10000; FLB = 0xB30000; FLC = 0xB50000; CSP = 0xB70000
PROF = 0xB80000; WS_SIZE = 0xC00000
E = 131072; KT = E; VT = E + 9360; HC = E; UR = E + 17680; CS = E + 26896; DUMP = CS + 512
LDS_BYTES = 163840
OOB = 0x80000000
f2u = lambda f: struct.unpack('<I', struct.pack('<f', f))[0]
NLOG2E = f2u(-1.4426950408889634)

sX, sJ, sW, sT0, sT1 = 3, 4, 5, 6, 7
Q1, QF, SKK, SVV, W1, W2, SSK, WS, WSH, OUT, DBG, SHK, KZ = 8, 12, 16, 20, 24, 28, 32, 36, 40, 44, 48, 52, 60
sDptr = 56; sN = 58; sDv = 59; sN2 = 56; sW2neg = 84
sCsW = 64; sCsR = 72; sCsN = 95
WSB = 8
sQoff = 64; sWoff = 72
sM0b = 80; sW2off = 81; sStatC = 82; sRot = 83; sStatW = 84; sFH = 85; sTH = 86; sH0 = 87
CODE = 88; sHst = 88
sM0q = 92; sM0w = 93; sP = 94; sCnt = 96; sC0 = sT0
sRB1, sCB1, sRB2, sCB2, sCH = 97, 98, 99, 100, 101
sKV0, sKV1, sFAo, sFAp, sU, sFBo, sFBp, sYs = 16, 17, 18, 19, 20, 21, 22, 23
sFCo, sFCp, sHL, sYl = 52, 53, 54, 55
sXO, sStatF, sHC, sHLo = 60, 61, 62, 63
def srd(b): return f"s[{b}:{b+3}]"

vL = 1; vL16 = 2; vL0 = 3
vQD = 4; vWD = 8; vBD = 12
vQA = 16; vWA = 24
vN = 28; vSTV = 29; vCSW = 30; vCSA = 31
vTA = 33; vCA = 37
vCB = 41; vCU = 42; vCD = 43; vCX = 44; vCXR = 45; vCY = 46
vPA = 47; vPB = 48; vPC = 49
vXD = 50; vYL = 51; vOS = 52
vXA = 53; vYW = 54; vYA = 55; vOW = 56; vOR = 57; vRW = 58; vRR = 59
vPROF = 62; vT = 63
vDV = 215; vH0 = 214
ACC = 64; FR = 128
CSACC = 244; SEL = 240; CSV = 176
STL = 208; MR = 216
def vr(b, n=1): return f"v{b}" if n == 1 else f"v[{b}:{b+n-1}]"
def ar(b, n): return f"a[{b}:{b+n-1}]"

rare = Stream(); nrare = [0]
def check_poll(S, reloads, tagregs):
    k = nrare[0]; nrare[0] += 1
    def cmp(T):
        if len(tagregs) == 1:
            T(f"v_cmp_ne_u32 vcc, s{sN}, v{tagregs[0]}")
        else:
            T(f"v_xor_b32 v{vT}, s{sN}, v{tagregs[0]}")
            for r in tagregs[1:]:
                T(f"v_xor_b32 v{r}, s{sN}, v{r}\nv_or_b32 v{vT}, v{vT}, v{r}")
            T(f"v_cmp_ne_u32 vcc, 0, v{vT}")
    g = Stream(); cmp(g); g(f"s_cbranch_vccnz L_rare{k}\nL_back{k}:")
    S.atomic(g)
    rare(f"L_rare{k}:\ns_mov_b32 s{sCnt}, 0")
    if OPT['prof']: rare(f"v_writelane_b32 v{vPROF}, 1, {52+k}")
    rare(f"L_rl{k}:\ns_sleep 1")
    for t in reloads: rare(t)
    rare("s_waitcnt vmcnt(0)")
    cmp(rare)
    rare(f"s_nop 1\ns_cbranch_vccz L_back{k}\ns_add_u32 s{sCnt}, s{sCnt}, 1\ns_cmp_lt_u32 s{sCnt}, 0x4000\ns_cbranch_scc1 L_rl{k}\ns_branch L_back{k}")

WSO = 24
def note_poll(S, tagreg, sres):
    g = Stream(); g(f"v_cmp_ne_u32 vcc, s{sN}, v{tagreg}\ns_or_b32 s{sres}, vcc_lo, vcc_hi\ns_cselect_b32 s{WSO+2}, 0, {WS_SIZE}"); S.atomic(g)
def repair(S, sres, first, reload, tagreg, redo):
    k = nrare[0]; nrare[0] += 1
    g = Stream(); g(f"s_cmp_lg_u32 s{sres}, 0\ns_cbranch_scc1 L_rare{k}\nL_back{k}:"); S.atomic(g)
    R = Stream()
    R(f"L_rare{k}:\ns_mov_b32 s{sCnt}, 0\ns_waitcnt vmcnt(0) lgkmcnt(0)")
    if OPT['prof']: R(f"v_writelane_b32 v{vPROF}, 1, {52+k}")
    R.extend(first)
    R(f"L_rl{k}:\n{reload}\ns_waitcnt vmcnt(0)\nv_cmp_ne_u32 vcc, s{sN}, v{tagreg}\ns_nop 1\ns_cbranch_vccz L_ok{k}\ns_sleep 1\ns_add_u32 s{sCnt}, s{sCnt}, 1\ns_cmp_lt_u32 s{sCnt}, 0x4000\ns_cbranch_scc1 L_rl{k}\nL_ok{k}:")
    R(f"s_mov_b32 s{WSO+2}, {WS_SIZE}")
    R.extend(autowait(flatten(redo)))
    R(f"s_waitcnt vmcnt(0) lgkmcnt(0)\ns_nop 4\ns_branch L_back{k}")
    rare.extend(R)

stamp_names = []
def stamp(S, name):
    if OPT['x_meas'] == name:
        g = Stream(); g(f"s_memrealtime s[{sP}:{sP+1}]\ns_waitcnt lgkmcnt(0)\nv_writelane_b32 v{vPROF}, s{sP}, 0"); S.atomic(g)
    if not OPT['prof']: return
    k = len(stamp_names); stamp_names.append(name)
    g = Stream()
    if OPT['prof'] == 1:
        g(f"s_memrealtime s[{sP}:{sP+1}]\ns_waitcnt lgkmcnt(0)\nv_writelane_b32 v{vPROF}, s{sP}, {k}")
        g(f"s_memtime s[{sP}:{sP+1}]\ns_waitcnt lgkmcnt(0)\nv_writelane_b32 v{vPROF}, s{sP}, {k+32}")
    elif OPT['prof'] == 4:
        g(f"s_memrealtime s[{sP}:{sP+1}]\ns_waitcnt lgkmcnt(0)\nv_writelane_b32 v{vPROF}, s{sP}, {k}")
    else:
        g(f"s_memtime s[{sP}:{sP+1}]\ns_waitcnt lgkmcnt(0)\nv_writelane_b32 v{vPROF}, s{sP}, {k}")
    S.atomic(g)

def dma_n(S, vbase, srdb, soff, m0txt, tag, n=4, samev=False, nt=False):
    for i in range(n):
        g = Stream()
        if i == 0: g(m0txt)
        g(f"buffer_load_dwordx4 v{vbase + (0 if samev else i)}, {srd(srdb)}, s{soff} offen" + (f" offset:{i*1024}" if i else "") + (" nt" if nt else "") + " lds", tag if i == n-1 else None)
        g[-1].arg = m0txt
        S.atomic(g)

def chunk_dma(i, sq=None, sw=None):
    S = Stream(); slot = i & 3
    dma_n(S, vQD, Q1, sQoff + i if sq is None else sq, f"s_add_u32 m0, s{sM0q}, {slot*32768}", None, nt=OPT['qnt'])
    dma_n(S, vWD, W1, sWoff + i if sw is None else sw, f"s_add_u32 m0, s{sM0w}, {slot*32768}", f"c{i}")
    return S

def w2_half(b, h):
    S = Stream(); slot = b & 3
    dma_n(S, vBD, W2, sW2off, f"s_add_u32 m0, s{sM0b}, {slot*32768 + 4096*h}", f"b{b}" if h else None)
    first = S[0].arg
    if h == 1: first.insert(1, Ins(f"s_add_u32 s{sW2off}, s{sW2off}, 32768"))
    elif b > 0:
        first[0:0] = [Ins(f"s_cmp_eq_u32 s{sRot}, {7-b}"), Ins(f"s_cselect_b32 s{sCnt}, s{sW2neg}, 0x8000")]
        first.insert(3, Ins(f"s_add_u32 s{sW2off}, s{sW2off}, s{sCnt}"))
    return S
def w2_dma(b):
    S = w2_half(b, 0); S.extend(w2_half(b, 1)); return S

def w2_tr(b):
    S = Stream(); slot = b & 3; hi = slot >> 1
    S.waitvm(f"b{b}")
    for k4 in range(4):
        for u in range(2):
            a = ((4*b + k4) * 2 + u) * 4
            for rd in range(2):
                off = (slot & 1) * 32768 + k4 * 2048 + rd * 1024
                S(f"ds_read_b64_tr_b16 {ar(a+2*rd, 2)}, v{vTA+2*hi+u} offset:{off}", f"tr{b}")
    return S

vROW = 220
vSHK = 228
MAP = [f"""
    s_lshr_b32 s{sCB1}, s{sJ}, 1
    s_and_b32 s{sT0}, s{sJ}, 1
    s_lshl_b32 s{sRB1}, s{sX}, 1
    s_add_u32 s{sRB1}, s{sRB1}, s{sT0}
    s_mul_i32 s{sT0}, s{sT0}, {OPT['pk']}
    s_add_u32 s{sT0}, s{sT0}, s{sCB1}
    s_add_u32 s{sT0}, s{sT0}, s{sX}
    s_and_b32 s{sT0}, s{sT0}, 7
""", f"""
    s_and_b32 s{sT0}, s{sJ}, 3
    s_lshr_b32 s{sT1}, s{sX}, 1
    s_lshl_b32 s{sRB1}, s{sT1}, 2
    s_add_u32 s{sRB1}, s{sRB1}, s{sT0}
    s_lshl_b32 s{sT0}, s{sT0}, 1
    s_add_u32 s{sT0}, s{sT0}, s{sT1}
    s_lshr_b32 s{sT1}, s{sJ}, 2
    s_add_u32 s{sT0}, s{sT0}, s{sT1}
    s_and_b32 s{sT0}, s{sT0}, 7
    s_and_b32 s{sCB1}, s{sX}, 1
    s_mul_i32 s{sCB1}, s{sCB1}, 7
    s_add_u32 s{sCB1}, s{sCB1}, s{sT1}
    s_cmp_eq_u32 s{sT1}, 7
    s_cselect_b32 s{sCB1}, 14, s{sCB1}
"""]
def entry():
    class SS(Stream):
        def __call__(self, text, tag=None): return Stream.__call__(self, text.replace(' NT', ' nt' if OPT['nt'] else '').replace('MAPPING', MAP[OPT['map47']]), tag)
    S = SS()
    S(f"""
    s_load_dwordx16 s[64:79], s[0:1], 0
    s_load_dwordx8 s[80:87], s[0:1], 64
    s_memrealtime s[40:41]
    s_cmp_ge_u32 s2, 256
    s_cbranch_scc1 L_end
    v_lshrrev_b32 v{vT}, 6, v0
    v_and_b32 v{vL}, 63, v0
    s_and_b32 s{sX}, s2, 7
    v_readfirstlane_b32 s{sW}, v{vT}
    s_lshr_b32 s{sJ}, s2, 3
    MAPPING
    s_mov_b32 s{QF+2}, 0x200000
    s_mov_b32 s{QF+3}, 0x20000
    s_cmp_lt_u32 s{sCB1}, 14
    s_cselect_b32 s{Q1+2}, 0x200000, 0
    s_cselect_b32 s{W1+2}, {0 if OPT['x_w1null'] else 0x1c0000}, 0
    s_mov_b32 s{Q1+3}, 0x20000
    s_mov_b32 s{W1+3}, 0x20000
    s_lshl_b32 s88, s{sX}, 5
    s_add_u32 s88, s88, s{sJ}
    s_lshl_b32 s88, s88, 2
    s_add_u32 s88, s88, s{sW}
    s_lshl_b32 s88, s88, 11
    s_lshl_b32 s89, s{sRB1}, 2
    s_add_u32 s89, s89, s{sW}
    s_lshl_b32 s89, s89, 15
    s_mul_i32 s90, s{sW}, {16*3584}
    s_lshl_b32 s{sT1}, s{sCB1}, 8
    s_add_u32 s90, s90, s{sT1}
    s_lshl_b32 s58, s{sT0}, 7
    s_add_u32 s58, s58, s89
    s_mul_i32 s59, s{sT0}, {64*3584}
    s_add_u32 s59, s59, s90
    s_lshl_b32 s{sM0q}, s{sW}, 12
    s_add_u32 s{sM0w}, s{sM0q}, 16384
    s_lshr_b32 s{sT1}, s{sJ}, 3
    s_lshl_b32 s{sRB2}, s{sX}, 2
    s_add_u32 s{sRB2}, s{sRB2}, s{sT1}
    s_and_b32 s{sCB2}, s{sJ}, 7
    s_lshl_b32 s42, s{sW}, 3
    s_or_b32 s42, s42, s2
    """)
    if OPT['prof']: S(f"v_mov_b32 v{vPROF}, 0")
    S.extend(codepf())
    a, b, c, d = 232, 233, 234, 235
    S(f"""
    v_lshlrev_b32 v{vL16}, 4, v{vL}
    v_lshrrev_b32 v{a}, 5, v{vL}
    v_and_b32 v{b}, 31, v{vL}
    v_lshlrev_b32 v{b}, 4, v{b}
    v_lshl_add_u32 v236, v{a}, 10, v{b}
    v_lshrrev_b32 v{a}, 3, v{vL}
    v_and_b32 v{b}, 7, v{vL}
    v_lshrrev_b32 v{c}, 4, v{vL}
    v_xor_b32 v{d}, v{b}, v{c}
    v_lshlrev_b32 v{d}, 4, v{d}
    v_lshl_add_u32 v{vQD}, v{a}, 10, v{d}
    v_xor_b32 v{d}, 64, v{vQD}
    v_add_u32 v{vQD+1}, 7168, v{d}
    v_add_u32 v{vQD+2}, 14336, v{vQD}
    v_add_u32 v{vQD+3}, 21504, v{d}
    v_and_b32 v{d}, 15, v{vL}
    v_lshlrev_b32 v237, 2, v{c}
    v_xor_b32 v{d}, v{d}, v237
    v_lshlrev_b32 v{d}, 4, v{d}
    v_mul_u32_u24 v237, 3584, v{c}
    v_add_u32 v{vWD}, v237, v{d}
    v_add_u32 v{vWD+1}, {4*3584-1024}, v{vWD}
    v_add_u32 v{vWD+2}, {8*3584-2048}, v{vWD}
    v_add_u32 v{vWD+3}, {12*3584-3072}, v{vWD}
    v_lshlrev_b32 v{b}, 4, v{b}
    v_lshl_add_u32 v237, v{a}, 10, v{b}
    v_lshlrev_b32 v238, 4, v{a}
    """)
    if OPT['tiny']:
        S(f"""
        s_lshl_b32 s43, s{sCB2}, 2
        s_add_u32 s43, s43, s{sW}
        s_lshl_b32 s43, s43, 7
        v_add_u32 v238, s43, v238
        s_lshl_b32 s43, s2, 2
        v_mov_b32 v240, s43
        s_lshr_b32 s43, s{sW}, 1
        s_lshl_b32 s43, s43, 12
        s_lshl_b32 s91, s2, 13
        s_add_u32 s43, s43, s91
        v_mov_b32 v241, s43
        v_mov_b32 v242, 0
        v_min_u32 v243, 5, v{vL}
        v_lshlrev_b32 v243, 21, v243
        """)
    for bb, n in ((W2, 0x1c0000), (SSK, 0x200000), (WS, WS_SIZE), (OUT, 0x200000), (DBG, 256)):
        S(f"s_mov_b32 s{bb+2}, {0 if (bb == W2 and OPT['x_w2null']) or (bb == SSK and OPT['x_hcnull']) else n}")
    for bb in (W2, SSK, WS, OUT, DBG):
        S(f"s_mov_b32 s{bb+3}, 0x20000")
    S.waitlg()
    stamp(S, "karg")
    S(f"""
    s_cmp_gt_u32 s42, 7
    s_cbranch_scc1 L_nonce_done
    s_or_b32 s40, s40, 1
    v_mov_b32 v245, 0
    v_mov_b32 v244, s40
    s_mov_b64 exec, 1
    global_atomic_cmpswap v245, v[244:245], s[84:85] sc1
    s_mov_b64 exec, -1
    L_nonce_done:
    """)
    S[-3].cls = 'other'
    if OPT['tiny']:
        S(f"""
        global_load_dwordx4 v[{vSHK}:{vSHK+3}], v238, s[70:71]
        global_load_dword a248, v240, s[74:75]
        global_load_dword a249, v241, s[72:73]
        """)
        if OPT['tiny'] > 1: S(f"global_load_dword a230, v242, s[66:67]\nglobal_load_dword a231, v242, s[68:69]")
        if OPT['tiny'] > 2: S(f"global_load_dword a232, v242, s[80:81]\nglobal_load_dword a233, v243, s[86:87]")
    S(f"""
    s_mov_b64 s[{QF}:{QF+1}], s[64:65]
    s_mov_b64 s[{Q1}:{Q1+1}], s[64:65]
    s_mov_b64 s[{W1}:{W1+1}], s[78:79]
    buffer_load_dwordx4 v[{vROW}:{vROW+3}], v236, {srd(QF)}, s88 offen NT
    buffer_load_dwordx4 v[{vROW+4}:{vROW+7}], v236, {srd(QF)}, s88 offen offset:512 NT
    """)
    mv = Stream()
    mv(f"""
    s_mov_b64 s[{SKK}:{SKK+1}], s[66:67]
    s_mov_b64 s[{KZ}:{KZ+1}], s[66:67]
    s_mov_b64 s[{SVV}:{SVV+1}], s[68:69]
    s_mov_b64 s[{SHK}:{SHK+1}], s[70:71]
    s_mov_b64 s[{SSK}:{SSK+1}], s[72:73]
    s_mov_b64 s[{sDptr}:{sDptr+1}], s[74:75]
    s_mov_b64 s[{W2}:{W2+1}], s[80:81]
    s_mov_b64 s[{OUT}:{OUT+1}], s[82:83]
    s_mov_b64 s[{DBG}:{DBG+1}], s[84:85]
    s_mov_b64 s[{WS}:{WS+1}], s[86:87]
    """)
    S.extend(chunk_dma(0, 58, 59)); S.extend(mv)
    if OPT['tlb']:
        S(f"""
        v_min_u32 v240, 5, v{vL}
        v_lshlrev_b32 v240, 21, v240
        v_mov_b32 v241, 0
        buffer_load_dword a240, v240, {srd(WS)}, 0 offen
        global_load_dword a241, v241, s[66:67]
        global_load_dword a242, v241, s[68:69]
        global_load_dword a243, v241, s[80:81]
        global_load_dword a244, v241, s[82:83]
        """.replace("a24", "a23"))
    S.extend(coff(1))
    return S

def coff(i):
    S = Stream()
    S(f"""
    s_add_u32 s{sT1}, s{sC0}, {i}
    s_and_b32 s{sT1}, s{sT1}, 7
    s_lshl_b32 s{sQoff+i}, s{sT1}, 7
    s_add_u32 s{sQoff+i}, s{sQoff+i}, s89
    s_mul_i32 s{sWoff+i}, s{sT1}, {64*3584}
    s_add_u32 s{sWoff+i}, s{sWoff+i}, s90
    """)
    return S
def codepf():
    S = Stream()
    if OPT['codepf']:
        S(f"""
        s_getpc_b64 s[16:17]
        L_pc:
        s_mov_b32 s18, L_codeend-L_pc
        s_mov_b32 s19, 0x20000
        s_lshl_b32 s20, s{sJ}, 2
        s_add_u32 s20, s20, s{sW}
        s_lshl_b32 s20, s20, 8
        v_lshlrev_b32 v238, 2, v{vL}
        buffer_load_dword a252, v238, s[16:19], s20 offen
        """)
    return S

def kv_pro():
    S = Stream()
    S(f"""
    s_cmp_lg_u32 s{sRB2}, 0
    s_cselect_b32 s{KZ+2}, 0x200000, 0
    s_mov_b32 s{KZ+3}, 0x20000
    s_mov_b32 s{SKK+2}, {0 if OPT['x_kvnull'] else 0x200000}
    s_mov_b32 s{SKK+3}, 0x20000
    s_mov_b32 s{SVV+2}, {0 if OPT['x_kvnull'] else 0x200000}
    s_mov_b32 s{SVV+3}, 0x20000
    s_mov_b32 s{SHK+2}, 4096
    s_mov_b32 s{SHK+3}, 0x20000
    s_lshl_b32 s40, s{sRB2}, 16
    s_lshl_b32 s41, s{sCB2}, 7
    s_add_u32 s40, s40, s41
    s_lshl_b32 s41, s{sW}, 13
    s_add_u32 s41, s41, s40
    s_add_u32 s42, s41, 32768
    s_sub_u32 s40, s40, 8192
    s_max_i32 s40, s40, 0
    s_mul_i32 s43, s{sW}, 1040
    s_lshl_b32 s87, s{sCB2}, 9
    s_lshl_b32 s{sT1}, s{sW}, 7
    s_add_u32 s87, s87, s{sT1}
    v_cmp_gt_u32 vcc, 40, v{vL}
    v_mov_b32 v239, {OOB}
    v_cndmask_b32 v239, v237, v239, vcc
    """)
    return S
def kv_dma():
    S = Stream(); nt = "nt " if OPT['nt'] else ""
    for m0, v, sr, so in ((f"s_add_u32 m0, s43, {KT+1040}", 237, SKK, 41), (f"s_add_u32 m0, s43, {VT}", 237, SVV, 41),
                          (f"s_add_u32 m0, s43, {KT+5*1040}", 237, SKK, 42), (f"s_add_u32 m0, s43, {VT+4*1040}", 237, SVV, 42),
                          (f"s_mov_b32 m0, {KT}", 239, KZ, 40)):
        g = Stream(); g(f"{m0}\nbuffer_load_dwordx4 v{v}, {srd(sr)}, s{so} offen {nt}lds"); S.atomic(g)
    if OPT['tiny']: S[-1].arg[-1].tag = "kvd"
    else: S(f"buffer_load_dwordx4 v[{vSHK}:{vSHK+3}], v238, {srd(SHK)}, s87 offen", "kvd")
    return S

def setup():
    S = Stream()
    if OPT['cshare']:
        S(f"""
        s_lshl_b32 s{sCsR}, s{sCB1}, 13
        s_add_u32 s{sCsR}, s{sCsR}, {CSP}
        s_lshl_b32 s{sCsW}, s{sC0}, 10
        s_add_u32 s{sCsW}, s{sCsW}, s{sCsR}
        s_and_b32 s{sT1}, s{sW}, 1
        s_lshl_b32 s{sT1}, s{sT1}, 9
        s_add_u32 s{sCsW}, s{sCsW}, s{sT1}
        s_lshr_b32 s{sT1}, s{sW}, 1
        s_lshl_b32 s{sT1}, s{sT1}, 8
        s_add_u32 s{sCsW}, s{sCsW}, s{sT1}
        s_lshl_b32 s{sT1}, s{sW}, 8
        s_add_u32 s{sCsR}, s{sCsR}, s{sT1}
        """)
    S(f"""
    s_and_b32 s{sFH}, s{sW}, 1
    s_lshr_b32 s{sTH}, s{sW}, 1
    s_lshl_b32 s{sCH}, s2, 1
    s_add_u32 s{sCH}, s{sCH}, s{sTH}
    s_lshl_b32 s{sM0b}, s{sW}, 13
    s_mul_i32 s{sW2off}, s{sW}, {448*1024}
    s_lshl_b32 s{sT0}, s{sCB2}, 7
    s_add_u32 s{sW2off}, s{sW2off}, s{sT0}
    s_lshr_b32 s{sRot}, s{sJ}, 3
    s_mul_i32 s{sRot}, s{sRot}, {OPT['rotk']}
    s_add_u32 s{sRot}, s{sRot}, s{sCB2}
    s_mul_i32 s{sT0}, s{sX}, {OPT['rotx']}
    s_add_u32 s{sRot}, s{sRot}, s{sT0}
    s_mul_i32 s{sT0}, s{sRot}, 37
    s_lshr_b32 s{sT0}, s{sT0}, 8
    s_mul_i32 s{sT0}, s{sT0}, 7
    s_sub_u32 s{sRot}, s{sRot}, s{sT0}
    s_lshl_b32 s{sT0}, s{sRot}, 16
    s_add_u32 s{sW2off}, s{sW2off}, s{sT0}
    s_lshl_b32 s{sStatC}, s{sRB1}, 1
    s_add_u32 s{sStatC}, s{sStatC}, s{sTH}
    s_mul_i32 s{sHst}, s{sStatC}, {2*112*1024}
    s_lshl_b32 s{sStatC}, s{sStatC}, 10
    s_add_u32 s{sStatC}, s{sStatC}, {STATS}
    s_lshl_b32 s{sT0}, s{sCB1}, 1
    s_add_u32 s{sT0}, s{sT0}, s{sFH}
    s_lshl_b32 s{sT0}, s{sT0}, 12
    s_add_u32 s{sHst}, s{sHst}, s{sT0}
    s_lshl_b32 s{sT0}, s{sTH}, 11
    s_xor_b32 s{sT1}, s{sT0}, 2048
    s_add_u32 s{sHst+2}, s{sHst}, s{sT1}
    s_add_u32 s{sHst}, s{sHst}, s{sT0}
    s_add_u32 s{sHst+1}, s{sHst}, {112*1024}
    s_add_u32 s{sHst+3}, s{sHst+2}, {112*1024}
    s_lshl_b32 s{sStatW}, s{sX}, 5
    s_add_u32 s{sStatW}, s{sStatW}, s{sJ}
    s_lshl_b32 s{sStatW}, s{sStatW}, 7
    s_lshl_b32 s{sT0}, s{sW}, 4
    s_add_u32 s{sStatW}, s{sStatW}, s{sT0}
    s_add_u32 s{sStatW}, s{sStatW}, {STATS}
    """)
    a, b, c, d, e, f = 240, 241, 242, 243, 244, 245
    a, b, c, d, e, f = 244, 245, 246, 247, 248, 249
    S(f"""
    v_mov_b32 v{a}, {OOB}
    v_cmp_eq_u32 vcc, 0, v{vL}
    v_and_b32 v{b}, 31, v{vL}
    v_lshrrev_b32 v{c}, 5, v{vL}
    v_cndmask_b32 v{vL0}, v{a}, 0, vcc
    v_lshrrev_b32 v{d}, 3, v{b}
    v_and_b32 v{e}, 7, v{vL}
    v_lshlrev_b32 v{e}, 3, v{e}
    v_lshl_add_u32 v{vSTV}, v{d}, 7, v{e}
    """)
    S(f"""
    v_lshrrev_b32 v{d}, 1, v{b}
    v_and_b32 v{d}, 7, v{d}
    v_xor_b32 v{d}, v{d}, v{c}
    v_lshlrev_b32 v{d}, 4, v{d}
    v_lshl_add_u32 v{d}, v{b}, 7, v{d}
    s_lshl_b32 s{sT0}, s{sTH}, 13
    v_add_u32 v{vQA}, s{sT0}, v{d}
    v_xor_b32 v{vQA+1}, 32, v{vQA}
    v_xor_b32 v{vQA+2}, 64, v{vQA}
    v_xor_b32 v{vQA+3}, 0x60, v{vQA}
    """)
    for k in range(4): S(f"v_add_u32 v{vQA+4+k}, 0x10000, v{vQA+k}")
    S(f"""
    v_bfe_u32 v{d}, v{vL}, 2, 2
    v_and_b32 v{e}, 3, v{vL}
    v_lshlrev_b32 v{e}, 3, v{e}
    v_bfe_u32 v{f}, v{vL}, 4, 1
    v_lshl_add_u32 v{e}, v{f}, 5, v{e}
    s_lshl_b32 s{sT0}, s{sFH}, 1
    s_add_u32 s{sT0}, s{sT0}, s{sTH}
    v_xor_b32 v{f}, s{sT0}, v{d}
    v_lshl_add_u32 v{f}, v{f}, 6, v{e}
    v_lshl_add_u32 v{f}, v{d}, 8, v{f}
    v_lshl_add_u32 v{vWA}, v{c}, 11, v{f}
    v_xor_b32 v{vWA+1}, 64, v{vWA}
    v_add_u32 v{vWA+2}, 0x10000, v{vWA}
    v_add_u32 v{vWA+3}, 0x10000, v{vWA+1}
    v_lshrrev_b32 v{f}, 1, v{d}
    v_xor_b32 v{f}, s{sFH}, v{f}
    v_lshl_add_u32 v{f}, v{f}, 6, v{e}
    v_lshl_add_u32 v{f}, v{d}, 7, v{f}
    v_lshl_add_u32 v{f}, v{c}, 9, v{f}
    v_add_u32 v{vTA}, s{sM0b}, v{f}
    v_xor_b32 v{vTA+1}, 64, v{vTA}
    v_add_u32 v{vTA+2}, 0x10000, v{vTA}
    v_add_u32 v{vTA+3}, 0x10000, v{vTA+1}
    v_lshl_add_u32 v{f}, v{d}, 6, v{e}
    v_lshl_add_u32 v{f}, v{c}, 8, v{f}
    s_add_u32 s{sT0}, s{sM0b}, {E + 2048}
    v_add_u32 v{vYA}, s{sT0}, v{f}
    v_add_u32 v{vYW}, s{sT0}, v{vL16}
    """)
    n, g = d, e
    S0 = S
    class SX(Stream):
        def __call__(self, text, tag=None):
            r = f"v_and_b32 v{a}, 31, v{vL}\nv_lshlrev_b32 v{a}, 3, v{a}\nv_lshl_add_u32 v{vCSW}, v{c}, 12, v{a}" if OPT['cshare'] else f"v_cndmask_b32 v{vCSW}, v{f}, v{a}, vcc"
            return S0(text.replace("CSWDEF", r), tag)
    SX()(f"""
    v_and_b32 v{n}, 15, v{vL}
    v_lshrrev_b32 v{g}, 4, v{vL}
    v_and_b32 v{f}, 1, v{g}
    v_cmp_eq_u32 vcc, v{n}, v{f}
    v_mov_b32 v{f}, 0x3f803f80
    v_lshlrev_b32 v{a}, 4, v{g}
    v_cndmask_b32 v{f}, 0, v{f}, vcc
    v_lshl_add_u32 v{a}, v{n}, 6, v{a}
    v_accvgpr_write_b32 a{SEL}, v{f}
    v_accvgpr_write_b32 a{SEL+1}, v{f}
    v_accvgpr_write_b32 a{SEL+2}, v{f}
    v_accvgpr_write_b32 a{SEL+3}, v{f}
    s_lshl_b32 s{sT0}, s{sFH}, 8
    s_lshl_b32 s{sT1}, s{sTH}, 7
    s_add_u32 s{sT0}, s{sT0}, s{sT1}
    s_add_u32 s{sT0}, s{sT0}, {CS}
    v_add_u32 v{a}, s{sT0}, v{a}
    v_add_u32 v{f}, {DUMP}, v{vL16}
    v_cmp_gt_u32 vcc, 2, v{n}
    v_lshlrev_b32 v{b}, 4, v{c}
    v_add_u32 v{vCSA}, s{sT0}, v{b}
    CSWDEF
    v_xor_b32 v{vCSA+1}, 0x80, v{vCSA}
    """)
    assert CS % 256 == 16 or True
    S(f"""
    v_lshrrev_b32 v{a}, 3, v{vL}
    v_and_b32 v{b}, 7, v{vL}
    v_bfe_u32 v{f}, v{vL}, 4, 1
    v_lshlrev_b32 v{f}, 2, v{f}
    v_xor_b32 v{b}, v{b}, v{f}
    v_lshlrev_b32 v{b}, 4, v{b}
    v_lshl_add_u32 v{vBD}, v{a}, 10, v{b}
    v_add_u32 v{vBD+1}, 7168, v{vBD}
    v_add_u32 v{vBD+2}, 14336, v{vBD}
    v_add_u32 v{vBD+3}, 21504, v{vBD}
    """)
    S(f"""
    v_lshlrev_b32 v{a}, 1, v{n}
    v_lshl_add_u32 v{a}, v{g}, 4, v{a}
    v_and_b32 v{b}, 1, v{n}
    v_cmp_eq_u32 vcc, 0, v{b}
    v_mov_b32 v{f}, {4160 - 2}
    s_mul_i32 s{sT0}, s{sTH}, 8320
    s_lshl_b32 s{sT1}, s{sFH}, 6
    v_cndmask_b32 v{b}, 0, v{f}, vcc
    s_add_u32 s{sT0}, s{sT0}, s{sT1}
    s_add_u32 s{sT0}, s{sT0}, {HC + 32 - 30}
    v_add3_u32 v{vCA}, v{a}, v{b}, s{sT0}
    v_add_u32 v{vCA+1}, 1024, v{vCA}
    v_add_u32 v{vCA+2}, 2048, v{vCA}
    v_add_u32 v{vCA+3}, 3072, v{vCA}
    s_mul_i32 s{sT0}, s{sTH}, 4608
    s_add_u32 s{sT0}, s{sT0}, {UR}
    v_lshlrev_b32 v{a}, 5, v{n}
    v_lshlrev_b32 v{b}, 4, v{g}
    v_sub_u32 v{b}, v{b}, v{a}
    s_add_u32 s{sT1}, s{sT1}, s{sT0}
    s_add_u32 s{sT1}, s{sT1}, 480
    v_add_u32 v{vCB}, s{sT1}, v{b}
    v_lshl_add_u32 v{b}, v{g}, 3, v{a}
    s_lshl_b32 s{sT1}, s{sFH}, 11
    s_sub_u32 s{sCnt}, s{sT0}, s{sT1}
    s_add_u32 s{sCnt}, s{sCnt}, {4088 - 1536}
    v_sub_u32 v{vCD}, s{sCnt}, v{b}
    s_add_u32 s{sT1}, s{sT1}, s{sT0}
    v_add_u32 v{vCU}, s{sT1}, v{vL16}
    v_and_b32 v{b}, 0x1f0, v{vL16}
    s_add_u32 s{sT0}, s{sT0}, 4096
    v_add_u32 v{b}, s{sT0}, v{b}
    v_mov_b32 v252, 0
    v_mov_b32 v253, 0
    v_mov_b32 v254, 0
    v_mov_b32 v255, 0
    ds_write_b128 v{b}, v[252:255]
    s_add_u32 s{sT0}, s{sM0b}, {3*32768}
    v_add_u32 v{vCX}, s{sT0}, v{vL16}
    v_xor_b32 v{vCXR}, 0x2000, v{vCX}
    v_and_b32 v{b}, 1, v{g}
    v_lshl_add_u32 v{a}, v{b}, 9, v{a}
    v_lshrrev_b32 v{b}, 1, v{g}
    v_lshl_add_u32 v{vCY}, v{b}, 4, v{a}
    v_lshlrev_b32 v{vPA}, {2 if OPT['packa'] else 7}, v{n}
    v_min_u32 v{a}, 6, v{vL}
    v_lshlrev_b32 v{vPB}, {2 if OPT['packb'] else 7}, v{a}
    v_and_b32 v{a}, 31, v{vL}
    v_lshlrev_b32 v{vPC}, 8, v{a}
    """)
    S(f"""
    v_lshrrev_b32 v{b}, 2, v{vL}
    v_and_b32 v{f}, 3, v{vL}
    v_lshlrev_b32 v{f}, 4, v{f}
    v_lshl_add_u32 v{vOS}, v{b}, 10, v{f}
    v_lshl_add_u32 v{vYL}, v{b}, 12, v{f}
    v_lshlrev_b32 v{d}, 4, v{g}
    v_xor_b32 v{vXD}, v{vOS}, v{d}
    v_mul_u32_u24 v{b}, 80, v{b}
    s_add_u32 s{sT0}, s{sM0b}, {E + 4096}
    v_add3_u32 v{vOR}, v{b}, v{f}, s{sT0}
    v_mul_u32_u24 v{b}, 80, v{a}
    v_lshl_add_u32 v{b}, v{c}, 3, v{b}
    v_add_u32 v{vOW}, s{sT0}, v{b}
    v_bfe_u32 v{b}, v{vL}, 2, 2
    v_lshlrev_b32 v{b}, 4, v{b}
    v_lshl_add_u32 v{b}, v{a}, 6, v{b}
    v_lshl_add_u32 v{b}, v{c}, 3, v{b}
    s_add_u32 s{sT0}, s{sM0b}, {E}
    v_add_u32 v{vXA}, s{sT0}, v{b}
    v_add_u32 v{vRW}, s{sM0b}, v{vL16}
    v_xor_b32 v{vRR}, 0x4000, v{vRW}
    v_xor_b32 v{vRR+1}, 0x6000, v{vRW}
    v_xor_b32 v{vRR+2}, 0x2000, v{vRW}
    """)
    return S

def setup_b():
    if OPT['packb']:
        pk = f"s_mul_i32 s{sT1}, s{sT0}, 37\ns_lshr_b32 s{sT1}, s{sT1}, 8\ns_lshr_b32 s{sFBo}, s{sFBo}, 3\ns_add_u32 s{sFBo}, s{sFBo}, s{sT1}\ns_lshl_b32 s{sFBo}, s{sFBo}, 7\ns_mul_i32 s{sT1}, s{sT1}, 7\ns_sub_u32 s{sT0}, s{sT0}, s{sT1}\ns_lshl_b32 s{sT0}, s{sT0}, 2\ns_add_u32 s{sFBo}, s{sFBo}, s{sT0}\ns_add_u32 s{sFBo}, s{sFBo}, {FLB}"
    else:
        pk = f"s_add_u32 s{sFBo}, s{sFBo}, s{sT0}\ns_lshl_b32 s{sFBo}, s{sFBo}, 7\ns_add_u32 s{sFBo}, s{sFBo}, {FLB}"
    if OPT['packa']:
        pa = f"s_lshl_b32 s{sFAo}, s{sT0}, 1\ns_lshr_b32 s{sT1}, s{sRB2}, 4\ns_add_u32 s{sFAo}, s{sFAo}, s{sT1}\ns_lshl_b32 s{sFAo}, s{sFAo}, 7\ns_and_b32 s{sT1}, s{sRB2}, 15\ns_lshl_b32 s{sT1}, s{sT1}, 2\ns_add_u32 s{sFAo}, s{sFAo}, s{sT1}\ns_add_u32 s{sFAo}, s{sFAo}, {FLA}\n"
        pa += f"s_lshr_b32 s{sFAp}, s{sCH}, 4\ns_lshl_b32 s{sFAp}, s{sFAp}, 8\ns_lshl_b32 s{sT0}, s{sFH}, 7\ns_sub_u32 s{sFAp}, s{sFAp}, s{sT0}\ns_add_u32 s{sFAp}, s{sFAp}, {FLA + 128}"
    else:
        pa = f"s_lshl_b32 s{sFAo}, s{sT0}, 5\ns_add_u32 s{sFAo}, s{sFAo}, s{sRB2}\ns_lshl_b32 s{sFAo}, s{sFAo}, 7\ns_add_u32 s{sFAo}, s{sFAo}, {FLA}\n"
        pa += f"s_lshr_b32 s{sFAp}, s{sCH}, 4\ns_lshl_b32 s{sFAp}, s{sFAp}, 12\ns_lshl_b32 s{sT0}, s{sFH}, 11\ns_sub_u32 s{sFAp}, s{sFAp}, s{sT0}\ns_add_u32 s{sFAp}, s{sFAp}, {FLA + 2048}"
    class SS(Stream):
        def __call__(self, text, tag=None): return Stream.__call__(self, text.replace('PACKB', pk).replace('PACKA', pa), tag)
    S = SS()
    S(f"""
    s_lshl_b32 s{sFBo}, s{sRB1}, 1
    s_add_u32 s{sFBo}, s{sFBo}, s{sTH}
    s_lshl_b32 s{sFBo}, s{sFBo}, 5
    s_lshl_b32 s{sT0}, s{sCB1}, 1
    s_add_u32 s{sT0}, s{sT0}, s{sFH}
    PACKB
    s_lshl_b32 s{sT0}, s{sCB2}, 2
    s_add_u32 s{sT0}, s{sT0}, s{sW}
    s_lshl_b32 s{sKV0}, s{sT0}, 16
    s_lshl_b32 s{sT1}, s{sRB2}, 7
    s_sub_u32 s{sKV0}, s{sKV0}, s{sT1}
    s_add_u32 s{sKV0}, s{sKV0}, {KVR + 1984*2}
    s_add_u32 s{sKV1}, s{sKV0}, 4096
    PACKA
    s_lshl_b32 s{sT0}, s{sFH}, 11
    s_lshl_b32 s{sHC}, s{sCH}, 12
    s_add_u32 s{sU}, s{sHC}, s{sT0}
    s_add_u32 s{sYs}, s{sU}, {YT}
    s_add_u32 s{sU}, s{sU}, {KVR}
    s_lshl_b32 s{sT0}, s{sFH}, 1
    s_add_u32 s{sHC}, s{sHC}, s{sT0}
    """)
    return S
def setup_c():
    S = Stream()
    S(f"""
    s_lshl_b32 s{sFBp}, s{sRB2}, {2 if OPT['packb'] else 5}
    s_mul_i32 s42, s{sW}, {1 if OPT['packb'] else 7}
    s_add_u32 s{sFBp}, s{sFBp}, s42
    s_lshl_b32 s{sFBp}, s{sFBp}, 7
    s_add_u32 s{sFBp}, s{sFBp}, {FLB}
    s_lshl_b32 s{sFCo}, s{sCH}, 1
    s_add_u32 s{sFCo}, s{sFCo}, s{sFH}
    s_lshl_b32 s{sFCo}, s{sFCo}, 7
    s_add_u32 s{sFCo}, s{sFCo}, {FLC}
    s_lshl_b32 s42, s{sCB2}, 1
    s_add_u32 s42, s42, s{sFH}
    s_lshl_b32 s{sFCp}, s42, 13
    s_lshr_b32 s43, s{sRB2}, 4
    s_lshl_b32 s43, s43, 7
    s_add_u32 s{sFCp}, s{sFCp}, s43
    s_add_u32 s{sFCp}, s{sFCp}, {FLC}
    s_lshl_b32 s{sYl}, s42, 17
    s_lshl_b32 s{sXO}, s42, 6
    s_lshl_b32 s42, s{sRB2}, 1
    s_add_u32 s42, s42, s{sTH}
    s_lshl_b32 s43, s42, 6
    s_add_u32 s{sYl}, s{sYl}, s43
    s_add_u32 s{sYl}, s{sYl}, {YT}
    s_lshl_b32 s43, s42, 15
    s_add_u32 s{sXO}, s{sXO}, s43
    s_lshl_b32 s{sStatF}, s42, 9
    s_add_u32 s{sStatF}, s{sStatF}, {STATS}
    s_mul_i32 s{sHLo}, s42, {112*1024}
    s_xor_b32 s42, s42, 1
    s_mul_i32 s{sHL}, s42, {112*1024}
    s_mul_i32 s42, s{sW}, {28*1024}
    s_lshl_b32 s43, s{sRot}, 12
    s_add_u32 s42, s42, s43
    s_add_u32 s{sHL}, s{sHL}, s42
    s_add_u32 s{sHLo}, s{sHLo}, s42
    """)
    return S

def hoffs2():
    return Stream()
sNeg = 92
def hoffs():
    S = Stream()
    g = Stream(); g(f"s_mov_b64 s[{WSO}:{WSO+1}], s[{WS}:{WS+1}]\ns_mov_b32 s{sNeg}, {-6*4096 & 0xffffffff:#x}\ns_mov_b32 s{sN2}, s{sN}\ns_mov_b32 s{sN2+1}, s{sN}"); S.atomic(g)
    return S

def nonce_get():
    S = Stream()
    S(f"s_load_dword s{sN}, s[{DBG}:{DBG+1}], 0")
    return S
def nonce_use(N='N'):
    S = Stream(); g = Stream()
    g(f"s_waitcnt lgkmcnt(0)\ns_cmp_eq_u32 s{sN}, 0\ns_cbranch_scc1 L_rare{N}\nL_back{N}:\nv_mov_b32 v{vN}, s{sN}")
    S.atomic(g)
    rare(f"""
    L_rare{N}:
    s_mov_b32 s{sCnt}, 0
    {"v_writelane_b32 v62, 1, 51" if OPT['prof'] else ""}
    L_rl{N}:
    s_sleep 2
    buffer_load_dword v{vN}, off, {srd(DBG)}, 0 sc1
    s_waitcnt vmcnt(0)
    v_readfirstlane_b32 s{sN}, v{vN}
    s_cmp_lg_u32 s{sN}, 0
    s_cbranch_scc1 L_back{N}
    s_add_u32 s{sCnt}, s{sCnt}, 1
    s_cmp_lt_u32 s{sCnt}, 0x4000
    s_cbranch_scc1 L_rl{N}
    s_branch L_back{N}
    """)
    return S

def stats():
    pr = lambda b: f"v[{b}:{b+1}]"
    S = Stream(); X = 176; A = 192; B = 193; C = 194
    for i in range(8): S(f"v_lshlrev_b32 v{X+2*i}, 16, v{vROW+i}\nv_and_b32 v{X+2*i+1}, 0xffff0000, v{vROW+i}")
    def allred(r):
        for m in ("quad_perm:[1,0,3,2]", "quad_perm:[2,3,0,1]", "row_half_mirror", "row_mirror"):
            S(f"v_add_f32_dpp v{r}, v{r}, v{r} {m} row_mask:0xf bank_mask:0xf")
        S(f"v_mov_b32 v{C}, v{r}\nv_permlane16_swap_b32 v{r}, v{C}\nv_add_f32 v{r}, v{r}, v{C}")
    for i in range(4): S(f"v_pk_add_f32 {pr(200+2*i)}, {pr(X+4*i)}, {pr(X+4*i+2)}")
    S(f"v_pk_add_f32 {pr(200)}, {pr(200)}, {pr(202)}\nv_pk_add_f32 {pr(204)}, {pr(204)}, {pr(206)}\nv_pk_add_f32 {pr(200)}, {pr(200)}, {pr(204)}\nv_add_f32 v{A}, v200, v201")
    allred(A)
    S(f"v_mul_f32 v{A}, {f2u(1/512):#x}, v{A}")
    for i in range(8): S(f"v_pk_add_f32 {pr(X+2*i)}, {pr(X+2*i)}, {pr(A)} op_sel_hi:[1,0] neg_lo:[0,1] neg_hi:[0,1]")
    S(f"v_pk_mul_f32 {pr(200)}, {pr(X)}, {pr(X)}\nv_pk_mul_f32 {pr(202)}, {pr(X+2)}, {pr(X+2)}")
    for i in range(2, 8): S(f"v_pk_fma_f32 {pr(200+2*(i&1))}, {pr(X+2*i)}, {pr(X+2*i)}, {pr(200+2*(i&1))}")
    S(f"v_pk_add_f32 {pr(200)}, {pr(200)}, {pr(202)}\nv_add_f32 v{B}, v200, v201")
    allred(B)
    S(f"""
    v_mul_f32 v{B}, {f2u(1/512):#x}, v{B}
    v_cvt_pk_bf16_f32 v{B}, v{B}, v{B}
    v_lshlrev_b32 v{B}, 16, v{B}
    v_add_f32 v{B}, {f2u(1e-5):#x}, v{B}
    v_cvt_pk_bf16_f32 v{B}, v{B}, v{B}
    v_lshlrev_b32 v{B}, 16, v{B}
    v_sqrt_f32 v{B}, v{B}
    v_and_b32 v{C}, 31, v{vL}
    v_cvt_pk_bf16_f32 v196, v{A}, v{B}
    v_lshrrev_b32 v{A}, 2, v{vL}
    v_mov_b32 v{B}, {OOB}
    """)
    g = Stream(); g(f"v_cmp_eq_u32 vcc, 0, v{C}\nv_cndmask_b32 v198, v{B}, v{A}, vcc"); S.atomic(g)
    return S
def stats_store():
    S = Stream()
    S(f"v_mov_b32 v197, v{vN}\nbuffer_store_dwordx2 v[196:197], v198, {srd(WS)}, s{sStatW} offen sc1")
    return S

def flag_store(soff, srdb, tag):
    S = Stream(); S.waitvm(tag)
    S(f"buffer_store_dword v{vN}, v{vL0}, {srd(srdb)}, s{soff} offen sc1")
    return S

def kv_addr():
    S = Stream(); a1, a2, a3 = 252, 253, 254
    S(f"""
    v_and_b32 v{a1}, 7, v{vL}
    v_mul_u32_u24 v{a2}, 1040, v{a1}
    v_lshrrev_b32 v{a3}, 3, v{vL}
    v_lshl_add_u32 v{a2}, v{a3}, 2, v{a2}
    s_lshl_b32 s{sT0}, s{sW}, 5
    s_add_u32 s{sT0}, s{sT0}, {KT}
    v_add_u32 v{a2}, s{sT0}, v{a2}
    v_add_u32 v255, 1040, v{a2}
    v_xor_b32 v{a1}, 7, v{a1}
    v_lshlrev_b32 v{a1}, 4, v{a1}
    v_lshl_add_u32 v{a1}, v{a3}, 13, v{a1}
    v_add_u32 v{a3}, {VT-KT}, v{a2}
    """)
    return S
def kvpre():
    S = Stream()
    KR = 232; VR = 244; KP = 176; WF = 220; O = 200
    S(f"ds_read2_b32 v[{KR}:{KR+1}], v253 offset0:160 offset1:192\nds_read_b32 v{KR+2}, v253 offset:896")
    for p in range(4): S(f"ds_read2_b32 v[{KR+4+2*p}:{KR+5+2*p}], v255 offset0:{64*p} offset1:{64*p+32}")
    for p in range(4): S(f"ds_read2_b32 v[{VR+2*p}:{VR+1+2*p}], v254 offset0:{64*p} offset1:{64*p+32}")
    for j in range(4):
        for c in range(2):
            src = vSHK + 2*c + (j >> 1)
            S(f"v_and_b32 v{WF+2*j+c}, 0xffff0000, v{src}" if j & 1 else f"v_lshlrev_b32 v{WF+2*j+c}, 16, v{src}")
    ri = lambda r: r + 3 if r < 0 else r + 4
    pr = lambda b: f"v[{b}:{b+1}]"
    for r in range(-3, 8):
        S(f"v_lshlrev_b32 v{KP+2*ri(r)}, 16, v{KR+ri(r)}\nv_and_b32 v{KP+2*ri(r)+1}, 0xffff0000, v{KR+ri(r)}")
    for t in range(8): S(f"v_pk_mul_f32 {pr(O+2*t)}, {pr(KP+2*ri(t))}, {pr(WF)}")
    for jj in range(1, 4):
        for t in range(8): S(f"v_pk_fma_f32 {pr(O+2*t)}, {pr(KP+2*ri(t-jj))}, {pr(WF+2*jj)}, {pr(O+2*t)}")
    for t in range(8): S(f"v_lshlrev_b32 v{KP+2*t}, 16, v{VR+t}\nv_and_b32 v{KP+2*t+1}, 0xffff0000, v{VR+t}")
    for t in range(8): S(f"v_pk_mul_f32 {pr(O+2*t)}, {pr(O+2*t)}, {pr(KP+2*t)}")
    for ch, Pk in enumerate((232, 236)):
        for q in range(4): S(f"v_cvt_pk_bf16_f32 v{Pk+q}, v{O+2*(7-2*q)+ch}, v{O+2*(6-2*q)+ch}")
        S(f"buffer_store_dwordx4 v[{Pk}:{Pk+3}], v252, {srd(WS)}, s{sKV0+ch} offen sc1", f"kv{ch}")
    return S

def kvpre_np():
    S = Stream()
    KR = 232; VR = 244; KL = 176; WF = 188; OA = 200; OB = 220
    S(f"ds_read2_b32 v[{KR}:{KR+1}], v253 offset0:160 offset1:192\nds_read_b32 v{KR+2}, v253 offset:896")
    for p in range(4): S(f"ds_read2_b32 v[{KR+4+2*p}:{KR+5+2*p}], v255 offset0:{64*p} offset1:{64*p+32}")
    for p in range(4): S(f"ds_read2_b32 v[{VR+2*p}:{VR+1+2*p}], v254 offset0:{64*p} offset1:{64*p+32}")
    for i in range(4):
        S(f"v_lshlrev_b32 v{WF+2*i}, 16, v{vSHK+i}\nv_and_b32 v{WF+2*i+1}, 0xffff0000, v{vSHK+i}")
    ri = lambda r: r + 3 if r < 0 else r + 4
    for r in range(-3, 8):
        S(f"v_lshlrev_b32 v{KL+ri(r)}, 16, v{KR+ri(r)}\nv_and_b32 v{KR+ri(r)}, 0xffff0000, v{KR+ri(r)}")
    for ch, (K, Oo) in enumerate(((KL, OA), (KR, OB))):
        for t in range(8): S(f"v_mul_f32 v{Oo+t}, v{K+ri(t)}, v{WF+4*ch}")
        for jj in range(1, 4):
            for t in range(8): S(f"v_fmac_f32 v{Oo+t}, v{K+ri(t-jj)}, v{WF+4*ch+jj}")
    for t in range(8):
        S(f"v_lshlrev_b32 v{KL+t}, 16, v{VR+t}\nv_and_b32 v{VR+t}, 0xffff0000, v{VR+t}")
    for t in range(8):
        S(f"v_mul_f32 v{OA+t}, v{OA+t}, v{KL+t}\nv_mul_f32 v{OB+t}, v{OB+t}, v{VR+t}")
    for ch, (Oo, Pk) in enumerate(((OA, 232), (OB, 236))):
        for q in range(4): S(f"v_cvt_pk_bf16_f32 v{Pk+q}, v{Oo+7-2*q}, v{Oo+6-2*q}")
        S(f"buffer_store_dwordx4 v[{Pk}:{Pk+3}], v252, {srd(WS)}, s{sKV0+ch} offen sc1", f"kv{ch}")
    return S

def stouch(S):
    S(f"v_lshlrev_b32 v5, 10, v{vL}\ns_lshl_b32 s66, s{sW}, 8\ns_add_u32 s72, s64, s66\ns_lshl_b32 s66, s{sW}, 1\ns_add_u32 s73, s65, s66")
    for p in range(OPT['st0'], 7):
        for c in range(2):
            S(f"""
            s_add_u32 s67, s73, {p + c}
            s_mul_i32 s69, s67, 37
            s_lshr_b32 s69, s69, 8
            s_mul_i32 s69, s69, 7
            s_sub_u32 s67, s67, s69
            s_lshl_b32 s67, s67, 16
            s_add_u32 s67, s67, s72
            buffer_load_dword a236, v5, {srd(W2)}, s67 offen offset:{128*c}
            """)
            S[-1].wr = set()

def msweep(S):
    S(f"""
    v_lshlrev_b32 v6, 7, v{vL}
    s_lshl_b32 s66, s{sX}, 2
    s_and_b32 s67, s{sJ}, 3
    s_add_u32 s66, s66, s67
    s_lshl_b32 s66, s66, 2
    s_add_u32 s66, s66, s{sW}
    s_mul_i32 s66, s66, 14336
    s_add_u32 s67, s66, 6144
    buffer_load_dword a237, v6, {srd(W2)}, s66 offen
    buffer_load_dword a238, v6, {srd(W2)}, s67 offen
    """)

def spare1():
    S = Stream()
    S("L_spare1:")
    if OPT['spb'] == 1: S("s_waitcnt vmcnt(0)\ns_barrier")
    S(f"""
    s_lshl_b32 s64, s{sX}, 2
    s_and_b32 s65, s{sJ}, 3
    s_add_u32 s64, s64, s65
    s_lshl_b32 s64, s64, 16
    s_lshl_b32 s66, s{sW}, 13
    s_add_u32 s64, s64, s66
    s_add_u32 s64, s64, 384
    s_add_u32 s66, s64, 32768
    """)
    if OPT['c3pf']:
        S(f"""
        buffer_load_dwordx4 a[64:67], v237, {srd(SKK)}, s64 offen
        buffer_load_dwordx4 a[68:71], v237, {srd(SVV)}, s64 offen
        buffer_load_dwordx4 a[72:75], v237, {srd(SKK)}, s66 offen
        buffer_load_dwordx4 a[76:79], v237, {srd(SVV)}, s66 offen
        """)
    if OPT['kvpos'] >= 2: S.extend(kv_dma())
    S(f"v_mov_b32 v4, v237")
    S.extend(nonce_get()); S.extend(setup_b()); S.extend(setup_c()); S.extend(nonce_use('M')); S.extend(stats_store())
    S.extend(kv_addr())
    S(f"""
    s_mul_i32 s64, s65, {448*1024}
    s_lshl_b32 s66, s{sW}, 14
    s_add_u32 s70, s64, s66
    s_add_u32 s70, s70, 384
    s_mul_i32 s65, s{sX}, {OPT['rotx']}
    s_add_u32 s71, s65, 3
    """)
    def c3(n):
        for i in range(n):
            S(f"""
            s_mul_i32 s69, s71, 37
            s_lshr_b32 s69, s69, 8
            s_mul_i32 s69, s69, 7
            s_sub_u32 s67, s71, s69
            s_lshl_b32 s67, s67, 16
            s_add_u32 s67, s67, s70
            s_add_u32 s68, s67, 8192
            s_add_u32 s71, s71, 1
            buffer_load_dwordx4 a[80:83], v4, {srd(W2)}, s67 offen
            buffer_load_dwordx4 a[84:87], v4, {srd(W2)}, s68 offen
            """)
            S[-1].wr = set(); S[-2].wr = set()
    if OPT['kvpos'] >= 2:
        if OPT['msw'] == 1: msweep(S)
        c3(OPT['c3a'])
        if OPT['msw'] == 2: msweep(S)
        if OPT['stch'] == 3: stouch(S)
        if OPT['spb'] == 2: S(f"s_waitcnt vmcnt({2*OPT['c3a'] + 6 + (4 if OPT['c3pf'] else 0)})\ns_barrier")
        if OPT['ownw2']: S.extend(SPARE_W2[5:5+OPT['ownw2']])
        S.waitvm("kvd")
    else:
        c3(OPT['c3a']); S(f"s_waitcnt vmcnt({2*OPT['c3a'] + 1 + (4 if OPT['c3pf'] else 0)})")
    S("s_barrier")
    S.extend(kvpre())
    S.extend(flag_init()); S(f"s_mov_b32 s{sDone}, 0x80000000")
    if OPT['msw'] == 3: msweep(S)
    S("s_barrier")
    if OPT['kvpos'] >= 2: S.extend(dh_loads())
    S.extend(SPARE_W2[:5] if OPT['ownw2'] else SPARE_W2[:8])
    S.extend(flag_store(sFAo, WS, "kv1"))
    stamp(S, "kvpub")
    if OPT['stch'] == 2: stouch(S)
    S.extend(SPARE_W2[5+OPT['ownw2']:] if OPT['ownw2'] else SPARE_W2[8:])
    c3(OPT['c3b'])
    if OPT['stch'] == 1: stouch(S)
    if OPT['tp'] >= 0: S.extend(w2touch(range(OPT['tp'], 7)))
    if OPT['sweep']:
        S(f"""
        s_lshl_b32 s66, s{sW}, 7
        s_add_u32 s64, s64, s66
        s_add_u32 s65, s65, s{sW}
        s_mov_b32 s66, {OPT['swn']}
        s_cmp_eq_u32 s{sW}, 3
        s_cbranch_scc1 L_swe
        L_sw:
        s_mul_i32 s69, s65, 37
        s_lshr_b32 s69, s69, 8
        s_mul_i32 s69, s69, 7
        s_sub_u32 s67, s65, s69
        s_lshl_b32 s67, s67, 16
        s_add_u32 s67, s67, s64
        """)
        for n in range(8):
            S(f"buffer_load_dwordx4 a[232:235], v4, {srd(W2)}, s67 offen\ns_add_u32 s67, s67, 8192"); S[-2].cls = 'other'
        S(f"""
        s_add_u32 s65, s65, 1
        s_sub_u32 s66, s66, 1
        s_cmp_lg_u32 s66, 0
        s_cbranch_scc1 L_sw
        L_swe:
        s_waitcnt vmcnt(0)
        """)
    S.extend(hcopy_wr() if OPT['hcreg'] else Stream()); S.extend(hpad()); S.extend(hoffs()[:1] if OPT['packa'] else hoffs())
    if OPT['stch'] == 5:
        S("s_waitcnt vmcnt(0)"); stouch(S)
    S(pollA_load()); S.extend(u_loads(True))
    S("s_waitcnt vmcnt(0) lgkmcnt(0)")
    if OPT['stch'] == 4: stouch(S)
    S("s_branch L_join")
    return S

def w2touch(ps):
    S = Stream(); a, b = 250, 251
    g = Stream(); g(f"""v_cmp_gt_u32 vcc, 16, v{vL}
    v_lshlrev_b32 v{a}, 10, v{vL}
    v_mov_b32 v{b}, {OOB}
    v_cndmask_b32 v{a}, v{b}, v{a}, vcc"""); S.atomic(g)
    S(f"""s_lshr_b32 s79, s{sJ}, 3
    s_lshl_b32 s79, s79, 14
    s_mul_i32 s71, s{sW}, {448*1024}
    s_add_u32 s79, s79, s71
    s_lshl_b32 s71, s{sCB2}, 7
    s_add_u32 s79, s79, s71""")
    for p in ps:
        g = Stream(); g(f"""s_add_u32 s{sCnt}, s{sRot}, {p}
        s_cmp_ge_u32 s{sCnt}, 7
        s_cselect_b32 s71, 7, 0
        s_sub_u32 s{sCnt}, s{sCnt}, s71
        s_lshl_b32 s{sCnt}, s{sCnt}, 16
        s_add_u32 s{sCnt}, s{sCnt}, s79
        buffer_load_dword a236, v{a}, {srd(W2)}, s{sCnt} offen"""); g[-1].wr = set(); S.atomic(g)
    return S

def htouch():
    S = Stream()
    if OPT['htouch']:
        S(f"v_and_b32 v230, 31, v{vL}\nv_lshrrev_b32 v231, 5, v{vL}\nv_mul_u32_u24 v231, {112*1024}, v231\nv_lshl_add_u32 v230, v230, 7, v231\ns_lshl_b32 s87, s{sTH}, 11\ns_sub_u32 s87, s{sHst}, s87")
        S(f"buffer_load_dword a236, v230, {srd(WS)}, s87 offen")
        if OPT['htouch'] > 1: S(f"buffer_load_dword a237, v230, {srd(WS)}, s87 offen offset:64")
    return S

WSF = 48; sDone = 87
def flag_try(soff, tag, last=False, first=False):
    S = Stream(); g = Stream()
    if last:
        g.waitvm(tag); g(f"s_cmp_eq_u32 s{sDone}, 0")
    else:
        g(f"s_getreg_b32 s{WSF+2}, hwreg(HW_REG_IB_STS)\ns_and_b32 s{WSF+2}, s{WSF+2}, 0xc0000f\ns_or_b32 s{WSF+2}, s{WSF+2}, s{sDone}")
        g.append(Pseudo('CMPVM', (tag, WSF+2)))
    g(f"s_cselect_b32 s{WSF+2}, {WS_SIZE}, 0")
    g(f"s_mov_b32 s{sDone}, 0" if last else f"s_cselect_b32 s{sDone}, 0x80000000, s{sDone}")
    g(f"buffer_store_dword v{vN}, v{vL0}, {srd(WSF)}, s{soff} offen sc1")
    S.atomic(g)
    return S
def flag_init():
    S = Stream(); S(f"s_mov_b64 s[{WSF}:{WSF+1}], s[{WS}:{WS+1}]\ns_mov_b32 s{sDone}, 0\ns_mov_b32 s{sW2neg}, {(32768 - 7*65536) & 0xffffffff:#x}"); return S

def dh_loads():
    S = Stream()
    if OPT['tiny']: return S
    g = Stream(); g(f"s_lshl_b32 s{sDv}, s2, 2\nv_mov_b32 v219, s{sDv}\nglobal_load_dword a248, v219, s[{sDptr}:{sDptr+1}]"); S.atomic(g)
    g = Stream(); g(f"s_lshl_b32 s{sDv}, s{sCH}, 12\nbuffer_load_dword a249, off, {srd(SSK)}, s{sDv}"); S.atomic(g)
    return S

def hcopy_ld():
    S = one(f"s_sub_u32 s{sHC}, s{sYs}, {YT:#x}")
    for t in (f"buffer_load_dwordx4 v[232:235], v{vL16}, {srd(SSK)}, s{sHC} offen nt", f"buffer_load_dword v240, v{vL16}, {srd(SSK)}, s{sHC} offen offset:16",
              f"buffer_load_dwordx4 v[236:239], v{vL16}, {srd(SSK)}, s{sHC} offen offset:1024 nt", f"buffer_load_dword v241, v{vL16}, {srd(SSK)}, s{sHC} offen offset:1040"):
        g = Stream(); g(t, "hc"); S.atomic(g)
    return S
def hcopy_wr():
    S = one(f"s_mul_i32 s{sT1}, s{sTH}, 8320\ns_lshl_b32 s{sT0}, s{sFH}, 11\ns_add_u32 s{sT1}, s{sT1}, s{sT0}\ns_add_u32 s{sT1}, s{sT1}, {HC+32}\nv_add_u32 v242, s{sT1}, v{vL16}")
    for i in range(2):
        e = 232 + 4*i; o = 244 + 4*i
        S(f"ds_write_b128 v242, v[{e}:{e+3}] offset:{1024*i}")
        for j in range(4): S(f"v_alignbit_b32 v{o+j}, v{e+j+1 if j < 3 else 240+i}, v{e+j}, 16")
        S(f"ds_write_b128 v242, v[{o}:{o+3}] offset:{4160+1024*i}")
    return S
def hcopy_dma():
    if OPT['hcreg']: return hcopy_ld()
    S = Stream()
    S(f"s_mul_i32 s{sT0}, s{sW}, 4160")
    dma_n(S, vL16, SSK, sHC, f"s_add_u32 m0, s{sT0}, {HC+32}", "hc", samev=True, nt=OPT['hcnt'])
    return S
def hpad():
    S = Stream()
    S(f"v_accvgpr_read_b32 v230, a248\nv_accvgpr_read_b32 v231, a249\ns_lshl_b32 s{sT1}, s{sTH}, 4\nv_lshrrev_b32 v230, s{sT1}, v230\nv_lshlrev_b32 v230, 16, v230\nv_lshlrev_b32 v231, 16, v231\nv_mul_lo_u32 v231, v231, s{sFH}\nv_readfirstlane_b32 s{sDv}, v230")
    S(f"s_mul_i32 s{sT1}, s{sW}, 4160\nv_and_b32 v230, 7, v{vL}")
    g = Stream(); g(f"v_cmp_eq_u32 vcc, 7, v230\nv_lshlrev_b32 v230, 2, v230\ns_add_u32 s{sT1}, s{sT1}, {HC}\nv_cndmask_b32 v231, 0, v231, vcc\nv_add_u32 v230, s{sT1}, v230\nds_write_b32 v230, v231")
    S.atomic(g)
    return S

def g1_set(n): return FR + 16 * (n % 3)
def g1_reads(n):
    if n >= 32: return []
    i, ks = divmod(n, 4)
    st = g1_set(n); slot = i & 3; hi = slot >> 1; off = (slot & 1) * 32768
    L = []
    for u in range(2):
        for rd in range(2):
            L.append(f"ds_read_b64_tr_b16 v[{st+4*u+2*rd}:{st+4*u+2*rd+1}], v{vWA+2*hi+u} offset:{off+16384+ks*4096+rd*1024}")
    for tt in range(2):
        L.append(f"ds_read_b128 v[{st+8+4*tt}:{st+11+4*tt}], v{vQA+4*hi+ks} offset:{off+tt*4096}")
    return [L[0], L[1], L[4], L[5], L[2], L[3]]

def stat_loads(att):
    return [f"buffer_load_dwordx2 v[{STL+4*att+2*tt}:{STL+4*att+2*tt+1}], v{vSTV}, {srd(WS)}, s{sStatC} offen offset:{tt*512} sc1" for tt in range(2)]

def gemm1():
    S = Stream(); CAP = OPT['cap']
    S.waitvm("c0"); S("s_barrier")
    stamp(S, "c0")
    for t in g1_reads(0): S(t)
    for t in g1_reads(1): S(t, 'fr1')
    for i in range(8):
        S.mark(f"c{i}a")
        for ks in range(4):
            n0 = 4*i + ks; st = g1_set(n0); first = n0 == 0
            rds = g1_reads(n0 + 2)
            bar = (ks == 1 and i < 7) or n0 == 30
            if n0 == 1: S.mark("c0h")
            if n0 > 0: S.waitlg(f'fr{n0}')
            small = [st] if n0 < 30 else ([st, g1_set(31)] if n0 == 30 else [])
            if OPT['cshare'] and n0 >= 4: small = []
            for n, (u, tt) in enumerate([(0, 0), (0, 1), (1, 0), (1, 1)]):
                acc = ACC + 16 * (2*u + tt)
                c = "0" if first else vr(acc, 16)
                if bar and n == 3:
                    if OPT['prof'] == 4 and OPT['fine'] and i in (1, 2): stamp(S, f"f{i}")
                    S.mark(f"c{i}m")
                    if i == OPT['kvpos'] and not OPT['kvfill'] and not OPT['kvaft']:
                        if OPT['cshare'] and OPT['cspub'] == 2: S.extend(cs_publish())
                        if OPT['prof'] == 4 and OPT['fine']: stamp(S, "k_a")
                        S.waitvm("kvd")
                        if OPT['prof'] == 4 and OPT['fine']: stamp(S, "k_w")
                        S("s_barrier")
                        if OPT['prof'] == 4 and OPT['fine']: stamp(S, "k_b")
                        S.extend(kvpre())
                        if OPT['prof'] in (2, 4): stamp(S, "kvp")
                    if i < 7: S.waitvm(f"c{i+1}")
                    if OPT['prof'] in (2, 4) or OPT['x_meas']: stamp(S, f"w{i}")
                    S.waitlg()
                S(f"v_mfma_f32_32x32x16_bf16 {vr(acc,16)}, v[{st+4*u}:{st+4*u+3}], v[{st+8+4*tt}:{st+11+4*tt}], {c}")
                k = 0
                if bar and n == 3:
                    S("s_barrier"); S.mark(f"c{i}b"); k = 2
                while rds and k < (3 if bar else 2): S(rds.pop(0), f'fr{n0+2}'); k += 1
                if n0 == 30 and n == 2 and not OPT['cshare']:
                    S(f"ds_write_b128 v{vCSW}, a[{CSACC}:{CSACC+3}]"); k += 1
                S.fill(CAP - k)
                if OPT['kvaft'] and n0 == 4*OPT['kvpos'] + 2 and n == 3:
                    S.mark("kvr"); S.extend(kvpre()[10:])
                    if OPT['prof'] in (2, 4): stamp(S, "kvp")
                if n == 0 and not (OPT['x_nocs'] and n0 > 0):
                    for sm in small:
                        c = "0" if first else ar(CSACC, 4)
                        S(f"v_mfma_f32_16x16x32_bf16 {ar(CSACC,4)}, v[{sm}:{sm+3}], {ar(SEL,4)}, {c}")
                        S.fill(1)
        S.mark(f"c{i}e")
    return S

CSL = 200
def cs_publish():
    S = Stream(); a, b = 250, 251; T = 240
    S(f"""
    s_and_b32 s{sCsN}, s{sJ}, 1
    s_xor_b32 s{sCsN}, s{sCsN}, 1
    s_lshl_b32 s{sCsN}, s{sCsN}, 1
    v_and_b32 v{a}, 15, v{vL}
    v_lshrrev_b32 v{b}, 4, v{vL}
    v_lshlrev_b32 v{b}, 5, v{b}
    v_lshl_add_u32 v{b}, v{a}, 7, v{b}
    v_mov_b32 v{T+1}, v{vN}
    v_mov_b32 v{T+3}, v{vN}
    v_mov_b32 v{T+5}, v{vN}
    v_mov_b32 v{T+7}, v{vN}
    """)
    g = Stream(); g(f"v_cmp_gt_u32 vcc, s{sCsN}, v{a}\nv_mov_b32 v{a}, {OOB}\nv_cndmask_b32 v{b}, v{a}, v{b}, vcc"); S.atomic(g)
    for r in range(4): S(f"v_accvgpr_read_b32 v{T+2*r}, a{CSACC+r}")
    S(f"buffer_store_dwordx4 v[{T}:{T+3}], v{b}, {srd(WS)}, s{sCsW} offen sc1\nbuffer_store_dwordx4 v[{T+4}:{T+7}], v{b}, {srd(WS)}, s{sCsW} offen offset:16 sc1")
    return S
def cs_loads():
    return [f"buffer_load_dwordx2 v[{CSL+2*i}:{CSL+2*i+1}], v{vCSW}, {srd(WS)}, s{sCsR} offen offset:{1024*i} sc1" for i in range(4)]
def cs_gather():
    S = Stream(); t = CSL + 1
    check_poll(S, cs_loads(), [CSL+1, CSL+3, CSL+5, CSL+7])
    S(f"""
    v_add_f32 v{CSL}, v{CSL}, v{CSL+2}
    v_add_f32 v{CSL+4}, v{CSL+4}, v{CSL+6}
    v_and_b32 v{CSL+2}, 31, v{vL}
    v_add_f32 v{CSL}, v{CSL}, v{CSL+4}
    v_lshlrev_b32 v{CSL+2}, 2, v{CSL+2}
    v_mov_b32 v{t}, v{CSL}
    s_lshl_b32 s{sCsN}, s{sW}, 7
    s_add_u32 s{sCsN}, s{sCsN}, {CS}
    v_permlane32_swap_b32 v{CSL}, v{t}
    v_add_u32 v{CSL+2}, s{sCsN}, v{CSL+2}
    v_add_f32 v{CSL}, v{CSL}, v{t}
    ds_write_b32 v{CSL+2}, v{CSL}
    """)
    return S

def cs_reads():
    S = Stream()
    for u in range(2):
        for j in range(4): S(f"ds_read_b128 v[{CSV+16*u+4*j}:{CSV+16*u+4*j+3}], v{vCSA+u} offset:{32*j}")
    return S

def stats_consume():
    S = Stream()
    check_poll(S, stat_loads(1), [STL+5, STL+7])
    for tt in range(2):
        a1 = STL + 4 + 2*tt
        S(f"v_and_b32 v{MR+2*tt+1}, 0xffff0000, v{a1}\nv_rcp_f32 v{MR+2*tt+1}, v{MR+2*tt+1}\nv_lshlrev_b32 v{MR+2*tt}, 16, v{a1}\nv_mul_f32 v{MR+2*tt+1}, {NLOG2E:#x}, v{MR+2*tt+1}")
    return S

def epi1(inserts):
    S = Stream(); n = 0; held = []
    for u in range(2):
        for tt in range(2):
            for s in range(2):
                acc = ACC + 16*(2*u+tt) + 8*s; cs = CSV + 16*u + 8*s; W = FR + 8*(n & 1); P = FR + 16 + 4*n
                mr = f"v[{MR+2*tt}:{MR+2*tt+1}]"
                for p in range(4): S(f"v_pk_fma_f32 v[{acc+2*p}:{acc+2*p+1}], v[{cs+2*p}:{cs+2*p+1}], {mr}, v[{acc+2*p}:{acc+2*p+1}] op_sel_hi:[1,0,1] neg_lo:[0,1,0] neg_hi:[0,1,0]")
                for p in range(4): S(f"v_pk_mul_f32 v[{W+2*p}:{W+2*p+1}], v[{acc+2*p}:{acc+2*p+1}], {mr} op_sel:[0,1] op_sel_hi:[1,1]")
                for p in range(8): S(f"v_exp_f32_e64 v{W+p}, v{W+p}")
                if held and n > OPT['uat']: S(held.pop(0), "hst")
                for p in range(4): S(f"v_pk_add_f32 v[{W+2*p}:{W+2*p+1}], v[{W+2*p}:{W+2*p+1}], 1.0 op_sel_hi:[1,0]")
                for p in range(8): S(f"v_rcp_f32_e64 v{W+p}, v{W+p}")
                if held and n > OPT['uat']: S(held.pop(0), "hst")
                for p in range(4): S(f"v_pk_mul_f32 v[{W+2*p}:{W+2*p+1}], v[{acc+2*p}:{acc+2*p+1}], v[{W+2*p}:{W+2*p+1}]")
                for p in range(4): S(f"v_cvt_pk_bf16_f32 v{P+p}, v{W+2*p}, v{W+2*p+1}")
                st = f"buffer_store_dwordx4 v[{P}:{P+3}], v{vL16}, {srd(WS)}, s{sHst+2*u+tt} offen" + (" offset:1024" if s else "") + [" sc1", "", " nt", " sc0"][OPT['x_hplain']]
                if OPT['hold'] and n <= OPT['uat']: held.append(st)
                else: S(st, "hst")
                if OPT['prof'] == 3: stamp(S, f"e{n}")
                if n in inserts: S.extend(inserts[n])
                n += 1
    for st in held: S(st, "hst")
    return S

CB = 128; CACC = 64; CAF = 96; NA = 6; UST = 220
def pollA_load(): return f"buffer_load_dword v228, v{vPA}, {srd(WS)}, s{sFAp} offen sc1"
sResA = 40; sResC = 41; SA = 64
def spollA_load(): return one(f"s_load_dwordx16 s[{SA}:{SA+15}], s[{WS}:{WS+1}], s{sFAp} glc")
def u_loads(block=False):
    S = Stream()
    if block: check_poll(S, [pollA_load()], [228]); S(f"s_mov_b32 s{sResA}, 0\ns_mov_b32 s{WSO+2}, {WS_SIZE}")
    elif block is False and OPT['packa']:
        pr = lambda r: f"s[{r}:{r+1}]"
        g = Stream(); g(f"s_xor_b64 {pr(SA)}, {pr(SA)}, {pr(sN2)}")
        for r in range(2, 16, 2): g(f"s_xor_b64 {pr(SA+r)}, {pr(SA+r)}, {pr(sN2)}\ns_or_b64 {pr(SA)}, {pr(SA)}, {pr(SA+r)}")
        g(f"s_cselect_b32 s{WSO+2}, 0, {WS_SIZE}\ns_cselect_b32 s{sResA}, 1, 0"); S.atomic(g)
    elif block is False: note_poll(S, 228, sResA)
    S(f"buffer_load_dwordx4 v[{UST}:{UST+3}], v{vL16}, {srd(WSO)}, s{sU} offen sc1")
    S(f"buffer_load_dwordx4 v[{UST+4}:{UST+7}], v{vL16}, {srd(WSO)}, s{sU} offen offset:1024 sc1")
    return S

DU = 96
def conv():
    S = Stream()
    repair(S, sResA, one(f"s_mov_b32 s{WSF+2}, {WS_SIZE}\ns_mov_b32 s{sDone}, 0x80000000\nbuffer_store_dword v{vN}, v{vL0}, {srd(WSF)}, s{sFBo} offen sc1"), pollA_load(), 228, u_loads(None))
    if OPT['prof'] == 3: stamp(S, "rep")
    S(f"ds_write_b128 v{vCU}, v[{UST}:{UST+3}]\nds_write_b128 v{vCU}, v[{UST+4}:{UST+7}] offset:1024")
    S.waitvm("hc"); S.waitlg(); S("s_barrier")
    stamp(S, "conv0")
    rA = lambda c, a: CB + 64*(c & 1) + 4*a
    rB = lambda c, b: CB + 64*(c & 1) + 32 + 4*b
    def ldA(c, a):
        m = 4*a + c
        return [f"ds_read2_b32 v[{rA(c,a)+2*h}:{rA(c,a)+2*h+1}], v{vCA+(m>>3)} offset0:{32*(m&7)+2*h} offset1:{32*(m&7)+2*h+1}" for h in range(2)]
    ldB = lambda c, b: [f"ds_read_b128 v[{rB(c,b)}:{rB(c,b)+3}], v{vCB} offset:{128*(4*b+c)}"]
    pairs = [(a, b) for a in range(8) for b in range(7, a - 1, -1)]
    def loads(c):
        L = ldA(c, 0)
        for b in range(7, -1, -1): L += ldB(c, b)
        for a in range(1, 8): L += ldA(c, a)
        return L
    q = loads(0)
    for t in q[:6]: S(t)
    q = q[6:]
    S.mark("cva"); seenT = set(); p = 0
    for c in range(4):
        nq = loads(c + 1) if c < 3 else []
        if c > 0 and OPT['cvwait']: S.waitlg(f"cl{c}")
        for i, (a, b) in enumerate(pairs):
            T = a + 7 - b; acc = CACC + 4*T
            cc = vr(acc, 4) if T in seenT else "0"; seenT.add(T)
            S(f"v_mfma_f32_16x16x32_bf16 {vr(acc,4)}, v[{rA(c,a)}:{rA(c,a)+3}], v[{rB(c,b)}:{rB(c,b)+3}], {cc}")
            k = 0
            if q:
                for _ in range(2 if len(q) > 14 else 1):
                    if q: S(q.pop(0)); k += 1
            elif nq and (c == 0 or i % 4 != 3) and i >= 1: S(nq.pop(0), f"cl{c+1}"); k += 1
            S.fill(2 - k)
            S.mark(f"cv{p}")
            if OPT['prof'] == 3 and p in (35, 71, 107): stamp(S, f"cv{p}")
            p += 1
        for t in nq: S(t, f"cl{c+1}")
    S.mark("cve")
    stamp(S, "conv1")
    return S

def conv_du():
    S = Stream(); U = 112
    for T in range(4): S(f"ds_read_b64 v[{U+2*T}:{U+2*T+1}], v{vCD} offset:{(3-T)*512}")
    S(f"v_mov_b32 v120, s{sDv}")
    return S

def conv_epi(tail):
    S = Stream(); R = 224; Y = 120; U = 112
    for T in range(4):
        a = DU + 4*T
        S(f"""v_and_b32 v{a}, 0xffff0000, v{U+2*T+1}
        v_lshlrev_b32 v{a+1}, 16, v{U+2*T+1}
        v_and_b32 v{a+2}, 0xffff0000, v{U+2*T}
        v_lshlrev_b32 v{a+3}, 16, v{U+2*T}""")
        if T == 1: S(f"s_cmp_eq_u32 s{sFH}, 0\ns_cbranch_scc0 L_odd"); break
    def half(T_, keep, send):
        for T in range(4): T_(f"ds_write_b128 v{vCX}, v[{send+4*T}:{send+4*T+3}] offset:{1024*T}")
        for T in (2, 3):
            a = DU + 4*T
            T_(f"""v_and_b32 v{a}, 0xffff0000, v{U+2*T+1}
            v_lshlrev_b32 v{a+1}, 16, v{U+2*T+1}
            v_and_b32 v{a+2}, 0xffff0000, v{U+2*T}
            v_lshlrev_b32 v{a+3}, 16, v{U+2*T}""")
        for p in range(8): T_(f"v_pk_fma_f32 v[{DU+2*p}:{DU+2*p+1}], v[{DU+2*p}:{DU+2*p+1}], v[120:121], v[{keep+2*p}:{keep+2*p+1}] op_sel_hi:[1,0,1]")
    half(S, CACC, CACC + 16)
    S("L_oddback:")
    O = Stream(); O("L_odd:"); half(O, CACC + 16, CACC); O("s_branch L_oddback"); rare.extend(O)
    S.waitlg(); S("s_barrier")
    for T in range(4): S(f"ds_read_b128 v[{R+4*T}:{R+4*T+3}], v{vCXR} offset:{1024*T}")
    S.extend(tail)
    for pr in range(2):
        for T in (2*pr, 2*pr+1):
            a = DU + 4*T
            S(f"v_pk_add_f32 v[{a}:{a+1}], v[{a}:{a+1}], v[{R+4*T}:{R+4*T+1}]\nv_pk_add_f32 v[{a+2}:{a+3}], v[{a+2}:{a+3}], v[{R+4*T+2}:{R+4*T+3}]")
            y = Y + 4*pr + 2*(T & 1)
            S(f"v_cvt_pk_bf16_f32 v{y}, v{a}, v{a+1}\nv_cvt_pk_bf16_f32 v{y+1}, v{a+2}, v{a+3}")
        y = Y + 4*pr
        S(f"v_permlane16_swap_b32 v{y}, v{y+2}\nv_permlane16_swap_b32 v{y+1}, v{y+3}")
        S(f"buffer_store_dwordx4 v[{y}:{y+3}], v{vCY}, {srd(WS)}, s{sYs} offen" + (" offset:1024" if pr else "") + " sc1", "yst")
    return S

HR = 128; XF = 224; SF = 240; TP = 192
def pollB_load(): return f"buffer_load_dword v4, v{vPB}, {srd(WS)}, s{sFBp} offen sc1"
def pollC_load(): return f"buffer_load_dword v5, v{vPC}, {srd(WS)}, s{sFCp} offen sc1"
sFBq = sFBp
def spollB_load():
    return one(f"s_load_dwordx4 s[8:11], s[{WS}:{WS+1}], s{sFBp} glc\ns_load_dwordx4 s[88:91], s[{WS}:{WS+1}], s{sFBp} offset:16 glc")
def spollB_check(S):
    k = nrare[0]; nrare[0] += 1
    g = Stream()
    n2 = f"s[{sN2}:{sN2+1}]"
    g(f"s_mov_b32 s91, s90\ns_xor_b64 s[8:9], s[8:9], {n2}")
    for r in (10, 88, 90): g(f"s_xor_b64 s[{r}:{r+1}], s[{r}:{r+1}], {n2}\ns_or_b64 s[8:9], s[8:9], s[{r}:{r+1}]")
    g(f"s_cbranch_scc1 L_rare{k}\nL_back{k}:")
    S.atomic(g)
    rare(f"L_rare{k}:\ns_mov_b32 s{sCnt}, 0")
    if OPT['prof']: rare(f"v_writelane_b32 v{vPROF}, 1, {52+k}")
    rare(f"L_rl{k}:\ns_sleep 1\nbuffer_load_dword v4, v{vPB}, {srd(WS)}, s{sFBq} offen sc1\ns_waitcnt vmcnt(0)\nv_cmp_ne_u32 vcc, s{sN}, v4")
    rare(f"s_nop 1\ns_cbranch_vccz L_back{k}\ns_add_u32 s{sCnt}, s{sCnt}, 1\ns_cmp_lt_u32 s{sCnt}, 0x4000\ns_cbranch_scc1 L_rl{k}\ns_branch L_back{k}")
def hload(n):
    D = OPT['hring']; p, k = divmod(n, 28); so = sHL if p == 0 else sHLo
    T = Stream(); g = Stream()
    g(f"buffer_load_dwordx4 v[{HR+4*(n%D)}:{HR+4*(n%D)+3}], v{vL16}, {srd(WS)}, s{so} offen" + (f" offset:{(k&3)*1024}" if k & 3 else "") + " sc1")
    if k & 3 == 3 and k < 27: g(f"s_cmp_eq_u32 s{sRot}, {6-(k>>2)}\ns_cselect_b32 s{sCnt}, s{sNeg}, 4096\ns_add_u32 s{so}, s{so}, s{sCnt}")
    T.atomic(g)
    return T
def gemm2():
    S = Stream(); D = OPT['hring']; NT = OPT['ntail']
    S.mark("g2s")
    def mf(n, u):
        p, k = divmod(n, 28); h = HR + 4*(n % D)
        acc = ACC + 32*(1-p) + 16*u; a = (2*k + u) * 4
        S(f"v_mfma_f32_32x32x16_bf16 {vr(acc,16)}, {ar(a,4)}, v[{h}:{h+3}], {'0' if k == 0 else vr(acc, 16)}")
    for n in range(56 - NT):
        for u in range(2):
            mf(n, u); used = 0
            if u == 1 and n + D < 56:
                T = flatten(hload(n + D)); S.extend(T); used = len(T)
            S.fill(5 - used)
        S.mark(f"g2_{n}")
        if (OPT['prof'] > 1 or OPT['x_meas']) and n in (0, 13, 27, 34, 41): stamp(S, f"g2_{n}")
    for n in range(56 - NT, 56): mf(n, 1); S.fill(5)
    S.mark("g2t")
    F = ACC + 16; Ee = ACC + 32
    tail = [f"ds_write_b128 v{vRW}, v[{F+4*j}:{F+4*j+3}] offset:{32768+1024*j}" for j in range(4)]
    for i, n in enumerate(range(56 - NT, 56)):
        mf(n, 0)
        if i == min(1, NT - 1):
            for t in tail: S(t)
    S.waitlg(); S("s_barrier")
    for j in range(4): S(f"ds_read_b128 v[{F+4*j}:{F+4*j+3}], v{vRR+2} offset:{32768+1024*j}")
    return S

def red_early_w():
    S = Stream()
    for u in range(2):
        for j in range(4): S(f"ds_write_b128 v{vRW}, v[{ACC+32+16*u+4*j}:{ACC+35+16*u+4*j}] offset:{4096*u+1024*j}")
    g = Stream(); g.waitlg(); g("s_barrier"); S.atomic(g)
    return S
def red_early_r():
    S = Stream(); A = ACC + 32; B = ACC + 48
    for j in range(4): S(f"ds_read_b128 v[{A+4*j}:{A+4*j+3}], v{vRR} offset:{1024*j}")
    for j in range(4): S(f"ds_read_b128 v[{B+4*j}:{B+4*j+3}], v{vRR+1} offset:{4096+1024*j}")
    for r in range(16): S(f"v_add_f32 v{A+r}, v{A+r}, v{B+r}")
    return S

FS = 8
def prep_x():
    S = Stream()
    g = Stream()
    g(f"s_add_u32 m0, s{sM0b}, {E}\ns_add_u32 s{sT0}, s{sXO}, 15360\nbuffer_load_dwordx4 v{vXD}, {srd(QF)}, s{sXO} offen lds")
    g(f"buffer_load_dwordx4 v{vXD}, {srd(QF)}, s{sT0} offen offset:1024 lds", "xd")
    S.atomic(g)
    S(f"buffer_load_dwordx2 v[{FS}:{FS+1}], v{vSTV}, {srd(WS)}, s{sStatF} offen sc1")
    return S
def prep_x2():
    S = Stream(); XR = 16
    check_poll(S, [f"buffer_load_dwordx2 v[{FS}:{FS+1}], v{vSTV}, {srd(WS)}, s{sStatF} offen sc1"], [FS+1])
    S(f"v_and_b32 v{FS+1}, 0xffff0000, v{FS}\nv_rcp_f32 v{FS+1}, v{FS+1}\nv_lshlrev_b32 v{FS}, 16, v{FS}\nv_mul_f32 v{FS+2}, v{FS+1}, v{FS+1}\nv_mul_f32 v{FS+1}, {NLOG2E:#x}, v{FS+1}")
    S.waitvm("xd")
    for j in range(4):
        if j: S(f"v_xor_b32 v{FS+3}, {16*j}, v{vXA}")
        S(f"ds_read_b64 v[{XR+2*j}:{XR+2*j+1}], v{FS+3 if j else vXA}")
    for q in range(8):
        S(f"v_lshlrev_b32 v{XF+2*q}, 16, v{XR+q}\nv_and_b32 v{XF+2*q+1}, 0xffff0000, v{XR+q}")
    for r in range(16): S(f"v_sub_f32 v{SF+r}, v{XF+r}, v{FS}")
    for r in range(16): S(f"v_mul_f32 v{SF+r}, v{SF+r}, v{FS+2}")
    return S
YSR = ACC + 48
def prep_y(note=True):
    S = Stream(); YS = YSR
    if note: note_poll(S, 5, sResC)
    S(f"s_add_u32 s{sT0}, s{sYl}, 65536")
    S(f"buffer_load_dwordx4 v[{YS}:{YS+3}], v{vYL}, {srd(WSO)}, s{sYl} offen sc1\nbuffer_load_dwordx4 v[{YS+4}:{YS+7}], v{vYL}, {srd(WSO)}, s{sT0} offen sc1")
    return S
YR = 16
def prep_y2():
    S = Stream(); YS = YSR
    S(f"ds_write_b128 v{vYW}, v[{YS}:{YS+3}]\nds_write_b128 v{vYW}, v[{YS+4}:{YS+7}] offset:1024")
    for j in range(4): S(f"ds_read_b64_tr_b16 v[{YR+2*j}:{YR+2*j+1}], v{vYA} offset:{512*j}")
    return S

def final():
    S = Stream(); A = ACC; F = ACC + 16; Ee = ACC + 32; W = HR; P = HR + 16; Yf = HR + 32
    stamp(S, "g2end")
    pr = lambda b, p: f"v[{b+2*p}:{b+2*p+1}]"
    mr = f"v[{FS}:{FS+1}]"
    for p in range(8): S(f"v_pk_add_f32 {pr(A,p)}, {pr(A,p)}, {pr(Ee,p)}")
    for p in range(8): S(f"v_pk_add_f32 {pr(A,p)}, {pr(A,p)}, {pr(F,p)}")
    for p in range(8): S(f"v_pk_mul_f32 {pr(W,p)}, {pr(A,p)}, {mr} op_sel:[0,1] op_sel_hi:[1,1]")
    for p in range(16): S(f"v_exp_f32_e64 v{W+p}, v{W+p}")
    S.extend(prep_y2())
    for p in range(8): S(f"v_pk_add_f32 {pr(W,p)}, {pr(W,p)}, 1.0 op_sel_hi:[1,0]")
    for p in range(16): S(f"v_rcp_f32_e64 v{W+p}, v{W+p}")
    for p in range(8): S(f"v_pk_mul_f32 {pr(A,p)}, {pr(A,p)}, {pr(SF,p)}")
    for p in range(8): S(f"v_pk_mul_f32 {pr(A,p)}, {pr(A,p)}, {pr(W,p)}")
    repair(S, sResC, Stream(), pollC_load(), 5, cat(prep_y(False), prep_y2()))
    for j in range(4):
        for q in (2*j, 2*j+1): S(f"v_lshlrev_b32 v{Yf+2*q}, 16, v{YR+q}\nv_and_b32 v{Yf+2*q+1}, 0xffff0000, v{YR+q}")
        for p in (2*j, 2*j+1): S(f"v_pk_fma_f32 {pr(W,p)}, {pr(A,p)}, {pr(Yf,p)}, {pr(XF,p)}")
        for p in (2*j, 2*j+1): S(f"v_cvt_pk_bf16_f32 v{P+p}, v{W+2*p}, v{W+2*p+1}")
        S(f"ds_write_b64 v{vOW}, v[{P+2*j}:{P+2*j+1}] offset:{16*j}")
    S(f"s_add_u32 s{sT0}, s{sXO}, 16384")
    S(f"ds_read_b128 v[{W}:{W+3}], v{vOR}\nds_read_b128 v[{W+4}:{W+7}], v{vOR} offset:1280")
    S(f"buffer_store_dwordx4 v[{W}:{W+3}], v{vOS}, {srd(OUT)}, s{sXO} offen\nbuffer_store_dwordx4 v[{W+4}:{W+7}], v{vOS}, {srd(OUT)}, s{sT0} offen")
    if OPT['prof']:
        stamp(S, "outst"); S("s_waitcnt vmcnt(0)"); stamp(S, "end")
        S(f"s_lshl_b32 s{sT0}, s2, 2\ns_add_u32 s{sT0}, s{sT0}, s{sW}\ns_lshl_b32 s{sT0}, s{sT0}, 8\ns_add_u32 s{sT0}, s{sT0}, {PROF}\nv_lshlrev_b32 v{vT}, 2, v{vL}")
        S(f"buffer_store_dword v{vPROF}, v{vT}, {srd(WS)}, s{sT0} offen")
    return S

def stS(name):
    s = Stream(); stamp(s, name); return s
def cat(*ss):
    o = Stream()
    for s in ss: o.extend(s)
    return o
def one(t, tag=None):
    s = Stream(); s(t, tag); return s

def spread(S, items, every):
    o = Stream(); items = list(items); n = 0
    for x in S:
        o.append(x); n += 1
        if items and n % every == 0:
            while items and items[0].cls == 'pseudo' and items[0].op != 'GROUP': o.append(items.pop(0))
            if items: o.append(items.pop(0))
    o.extend(items)
    return o

def build():
    assert not (OPT['cshare'] and OPT['map47'])
    P = Stream()
    P.extend(entry())
    c1 = chunk_dma(1); c2 = chunk_dma(2); kp = OPT['kvpos']; g1f = []
    st = stats()
    pre = cat(one(pollA_load().replace("v228,", "a233,")), one(pollB_load().replace("v4,", "a234,")), one(pollC_load().replace("v5,", "a235,"))) if OPT['pretouch'] else Stream()
    br = one(f"s_cmp_ge_u32 s{sCB1}, 14\ns_cbranch_scc1 L_spare1")
    if kp >= 2:
        P.extend(spread(cat(*[coff(i) for i in range(2, 8)], setup(), kv_pro()), c1[:OPT['c1n']], 20))
        stamp(P, "setup")
        P.extend(st[:16]); P.extend(spread(Stream(st[16:]), cat(c1[OPT['c1n']:], c2[:OPT['c2n']]), 7)); P.extend(br)
        seq = cat(c2[OPT['c2n']:], kv_dma(), dh_loads(), chunk_dma(3), Stream([Pseudo('GATE', 'c0b')]), chunk_dma(4), Stream([Pseudo('GATE', 'c1b')]), chunk_dma(5) if OPT['c5e'] else Stream())
        isl = lambda it: any(y.cls in ('dma', 'vmem_ld') for y in (it.arg if (it.cls == 'pseudo' and it.op == 'GROUP') else [it]))
        li = [i for i, it in enumerate(seq) if isl(it)]
        a0 = li[OPT['r0']]; a1 = li[OPT['r1'] - (3 if OPT['tiny'] else 0)]
        ng = lambda st: Stream([x for x in st if not (x.cls == 'pseudo' and x.op == 'GATE')])
        assert not any(x.op == 'GATE' for x in seq[:a0]) and not any(x.op == 'GATE' and x.arg == 'c1b' for x in seq[:a1])
        g1f.append(("c0a", "c0m", Stream(seq[:a0]), (OPT['p0'],)))
        g1f.append(("c0b", "c1m", ng(seq[a0:a1]), (OPT['p1'],)))
        g1f.append(("c1b", "c2m", ng(seq[a1:]), (OPT['p2'],)))
        g1f.append(("c1b", "c2m", cat(setup_b(), kv_addr())))
    else:
        kd = kv_dma(); n0 = OPT['kvn']
        P.extend(kv_pro())
        early = Stream(kd[:n0]) if kp == 0 else Stream(c1[:OPT['c1n']])
        P.extend(spread(cat(*[coff(i) for i in range(2, 8)], setup(), kv_addr()), early, 20))
        stamp(P, "setup")
        late = cat(kd[n0:], dh_loads(), c1) if kp == 0 else cat(c1[OPT['c1n']:], kd, dh_loads())
        P.extend(st[:16]); P.extend(spread(Stream(st[16:]), late, 6)); P.extend(br)
        g1f.append(("c0a", "c0m", setup_b()))
        if kp == 0:
            g1f.append(("c0a", "c0m", c2, (OPT['p0'],)))
            g1f.append(("c0b", "c1m", chunk_dma(3), (OPT['p1'],)))
            g1f.append(("c1b", "c2m", chunk_dma(4), (OPT['p2'],)))
        else:
            g1f.append(("c0a", "c0m", Stream(c2[:4]), (OPT['p0'],)))
            g1f.append(("c0b", "c1m", cat(c2[4:], chunk_dma(3)), (OPT['p1'],)))
            g1f.append(("c1b", "c2m", chunk_dma(4), (OPT['p2'],)))
    D = Stream()
    for c in range(6 if OPT['c5e'] else 5, 8):
        D.gate(f"c{c-4}b"); D.extend(chunk_dma(c))
    D.gate(OPT['stat_at']); D.pace(OPT['tpp']); D.extend(cat(*[one(t) for t in stat_loads(1) + (cs_loads() if OPT['cshare'] and OPT['cspub'] == 1 else [])], pre, htouch(), w2touch(range(OPT['tp'], 7)) if OPT['tp'] >= 0 else Stream())); D.pace(OPT['w2pace'])
    W2S = cat(Stream([Pseudo('GATE', 'c3b' if (OPT['kvfill'] or OPT['kvaft']) else f'c{kp}b')]), hcopy_dma(), Stream([Pseudo('GATE', 'c4b')]), w2_dma(0), Stream([Pseudo('GATE', 'c5b')]), Stream([Pseudo('CSL')]), w2_dma(1), Stream([Pseudo('GATE', 'c6b')]), w2_dma(2), w2_dma(3), cat(Stream([Pseudo('WAITLG', 'tr0')]), w2_dma(4)) if OPT['n2'] > 36 else Stream())
    isld = lambda it: it.cls == 'pseudo' and it.op == 'GROUP' and any(y.cls in ('dma', 'vmem_ld') for y in it.arg)
    idx = [i for i, it in enumerate(W2S) if isld(it)]
    cut1 = idx[OPT['n1']] if OPT['n1'] < len(idx) else len(W2S); cut2 = idx[OPT['n2']] if OPT['n2'] < len(idx) else len(W2S)
    for it in W2S[:cut1]:
        if it.cls == 'pseudo' and it.op == 'CSL':
            if OPT['cshare'] and OPT['cspub'] > 1:
                D.pace(1); D.extend(cat(*[one(t) for t in cs_loads()])); D.pace(OPT['w2pace'])
        else: D.append(it)
    g1f.append((OPT['dstart'], "c7m", D, (OPT['dp'],)))
    na, nb = (("c0a", "c0m"), ("c0b", "c1a")) if OPT['nonce_at'] == 0 else (("c0b", "c1a"), ("c1b", "c2a"))
    g1f.append((*na, nonce_get(), 1))
    g1f.append((*nb, cat(nonce_use(), stats_store()), 1))
    g1f.append(("c1a", "c1m", flag_init(), 1))
    if OPT['cshare']:
        if OPT['cspub'] == 1: g1f.append(("c1a", "c1m", cs_publish()))
        if OPT['cspub'] == 3: g1f.append(("c2b", "c3a", cs_publish()))
        g1f.append((OPT['csg'], "c7m", cs_gather()))
    ke = kp
    if OPT['kvaft']: g1f.append((f"c{kp}b", "kvr", Stream(kvpre()[:10]), 1))
    if OPT['kvfill']:
        ke = OPT['kvend']; g1f.append(("c2b", f"c{ke}m", kvpre_np()))
    pts = [(f"c{c}{x}", f"c{c}{y}") for c in range(ke + 1, 8) for x, y in (("a", "m"), ("b", "e"))][OPT['ft0']:OPT['ft0'] + 4]
    lastA = len(pts) == 4
    for i, (a, b) in enumerate(pts): g1f.append((a, b, flag_try(sFAo, "kv1", lastA and i == 3), 1))
    g1f.append(((f"c{ke}b", "c7a") if OPT['kvfill'] else ("c3a", "c5a")) + (setup_c(),) if not OPT['x_late'] else ("c7b", "c7e", setup_c())); g1f.append(("c6a", "c7m", hoffs()[:1] if OPT['packa'] else hoffs()))
    g1f.append(("c7a", "c7m", stats_consume()))
    if OPT['hcreg']: g1f.append((OPT['hcw'], "c7m", hcopy_wr()))
    if OPT['trg1'] >= 1: g1f.append((OPT['tr0at'], "c7e", w2_tr(0)))
    g1f.append((f"c{max(4, ke)}b", f"c{max(4, ke)+1}m", hpad()))
    g1f.append(("c7b", "c7e", cat(cs_reads(), spollA_load() if OPT['packa'] else one(pollA_load())) if OPT['pat'] < 0 else cs_reads(), 1))
    P.extend(merge(gemm1(), g1f))
    stamp(P, "g1end")
    ins = {OPT['uat']: u_loads()}
    if OPT['pat'] >= 0: ins[OPT['pat']] = spollA_load() if OPT['packa'] else one(pollA_load())
    if not lastA: P.extend(flag_try(sFAo, "kv1", True))
    if OPT['packa']: ins[OPT['uat']].extend(hoffs2())

    nog = lambda st: Stream([x for x in st if not (x.cls == 'pseudo' and x.op in ('GATE', 'CSL'))])
    P.extend(spread(epi1(ins), nog(W2S[cut1:cut2]), OPT['esp']))
    stamp(P, "epi1")
    P("L_join:")
    W = lambda t: Stream([Pseudo('WAITLG', t)])
    G = lambda m: Stream([Pseudo('GATE', m)])
    fb = OPT['flagB_at']; t0, t1, t2, t3 = OPT['t0'], OPT['t1'], OPT['t2'], OPT['t3']; fs = OPT['fbs']; fn = OPT['fbn']
    cf = [(f"cv{fb+fs*i}", f"cv{fb+fs*i+6}", flag_try(sFBo, "hst", i == fn - 1), 1) for i in range(fn)]
    cf += [("cva", "cve", cat(G(f"cv{OPT['d3']}"), nog(W2S[cut2:]), G(f"cv{OPT['d4']}"), cat(W('tr0'), w2_dma(4)) if (OPT['n2'] <= 36 and OPT['g2w'] > 4) else Stream(), cat(W('tr1'), w2_dma(5)) if OPT['g2w'] > 5 else Stream(), cat(W('tr2'), w2_dma(6)) if OPT['g2w'] > 6 else Stream()), (OPT['cvpace'],)),
          (f"cv{OPT['pb']}", "cve", spollB_load() if OPT['packb'] else one(pollB_load()), 1)]
    if OPT['trg1'] < 1: cf.append((f"cv{t0}", f"cv{t1}", w2_tr(0)))
    if OPT['trg1'] < 2: cf.append((f"cv{t1}", f"cv{t2}", w2_tr(1)))
    cf += [(f"cv{t2}", f"cv{t3}", w2_tr(2)), (f"cv{OPT['t4']}", "cv140", w2_tr(3)), ("cv130", "cve", conv_du())]
    if OPT['trg1'] == 2: P.extend(w2_tr(1))
    HL = cat(*[hload(n) for n in range(OPT['hring'])])
    chk = Stream()
    if OPT['packb']: spollB_check(chk)
    else: check_poll(chk, [pollB_load()], [4])
    stamp(chk, "hflag")
    hc = OPT['hcv']
    if hc: cf.insert(0, (f"cv{OPT['hcat']}", "cve", cat(chk, HL[:hc]), (OPT['hcp'],)))
    post = Stream()
    if OPT['x_cv']:
        keep = []
        for f in cf:
            txt = " ".join(x.text for x in flatten(f[2]) if x.cls != 'pseudo')
            kind = 1 if " lds" in txt else 2 if "tr_b16" in txt else 4 if "s_getreg" in txt or "s_cmp_eq_u32 s87" in txt else 8
            if OPT['x_cv'] & kind: post.append((kind, f[2]))
            else: keep.append(f)
        cf = keep
    P.extend(merge(conv(), cf))
    for kind in (4, 2, 1, 8):
        for k2, st2 in post:
            if k2 == kind and not (kind == 2 and any(x.tag == 'tr3' for x in st2)): P.extend(nog(st2))
    for k2, st2 in post:
        if k2 == 2 and any(x.tag == 'tr3' for x in st2): P.extend(nog(st2))
    P.extend(W('tr3'))
    if OPT['hearly']:
        ce = conv_epi(Stream())
        ib = [i for i, x in enumerate(ce) if x.op == 's_barrier'][0]
        h1 = OPT['he1']; h2 = OPT['he2']
        P.extend(Stream() if hc else chk); P.extend(HL[hc:h1]); P.extend(ce[:ib]); P.extend(HL[h1:h2]); P.extend(spread(Stream(ce[ib:]), HL[h2:OPT['hearly']], 2))
        stamp(P, "conv2"); P.extend(HL[OPT['hearly']:]); P.extend(prep_x())
    else:
        P.extend(conv_epi(prep_x())); stamp(P, "conv2")
        P.extend(chk); P.extend(HL[:OPT['hl0']])
        if OPT['trmid']: P.extend(cat(w2_tr(4), w2_tr(5), w2_tr(6)))
        if OPT['xmid']: P.extend(prep_x2())
        P.extend(HL[OPT['hl0']:]); P.extend(flag_store(sFCo, WS, "yst"))
    global SPARE_W2
    SPARE_W2 = nog(W2S[:cut2])
    if OPT['trg1'] >= 1:
        iw = [i for i, x in enumerate(SPARE_W2) if x.cls == 'pseudo' and x.op == 'WAITLG']
        iw = iw[0] if iw else len(SPARE_W2)
        SPARE_W2 = cat(SPARE_W2[:iw], w2_tr(0), SPARE_W2[iw:])
    D = OPT['ylag']
    gf = [(f"g2_{x}", f"g2_{x+1}", flag_try(sFCo, "yst", x == 15), 1) for x in (0, 3, 6, 10, 15)] if OPT['hearly'] else []
    gw = OPT['g2w']
    if OPT['trmid'] and not OPT['hearly']: pass
    elif OPT['trpre']: P.extend(cat(*[w2_tr(b) for b in range(4, gw)]))
    else: gf.append(("g2s", "g2_14", cat(*[w2_tr(b) for b in range(4, gw)])))
    if gw < 7:
        gf.append((f"g2_{OPT['gw0']}", "g2_20", cat(*[w2_dma(b) for b in range(gw, 7)]), (OPT['gwp'],)))
        for b in range(gw, 7): gf.append((f"g2_{4*b-5}", f"g2_{4*b-1}", w2_tr(b)))
    gf += [
          ("g2_14", "g2_27", Stream() if (OPT['xmid'] and not OPT['hearly']) else prep_x2()),
          ("g2_28", "g2_33", red_early_w()),
          ("g2_35", "g2_44", red_early_r()),
          (f"g2_{OPT['yat']}", f"g2_{OPT['yat']+1}", one(pollC_load())),
          (f"g2_{OPT['yat']+D}", "g2t", prep_y(), 1)]
    P.extend(merge(gemm2(), gf))
    P.extend(final())
    if OPT['x_meas']:
        P(f"s_cmp_ge_u32 s{sCB1}, 14\ns_cbranch_scc1 L_end")
        if OPT['x_wg'] >= 0: P(f"s_and_b32 s64, s2, {OPT['x_wgm']}\ns_cmp_lg_u32 s64, {OPT['x_wg']}\ns_cbranch_scc1 L_end")
        P(f"v_readlane_b32 s66, v{vPROF}, 0\nL_pad:\ns_memrealtime s[64:65]\ns_waitcnt lgkmcnt(0)\ns_sub_u32 s64, s64, s66\ns_cmp_lt_u32 s64, 2000\ns_cbranch_scc1 L_pad")
    if OPT['x_pad']:
        P(f"L_pad:\ns_memrealtime s[64:65]\ns_waitcnt lgkmcnt(0)\ns_sub_u32 s64, s64, s{sN}\ns_cmp_lt_u32 s64, {OPT['x_pad']}\ns_cbranch_scc1 L_pad")
    P("L_end:\ns_endpgm")
    P = flatten(P)
    kv_last = max(i for i, x in enumerate(P) if x.tag == 'kvd')
    sb_first = min(i for i, x in enumerate(P) if x.cls == 'salu' and f"s{sFBo}" in x.wr and 'mov' not in x.op)
    assert kv_last < sb_first, "k/v SRDs overwritten before use"
    last = None
    for x in P:
        if x.cls == 'salu' and 'm0' in x.wr: last = x.text
        if x.cls == 'dma' and x.arg is not None: assert x.arg == last, ("m0 changed under a DMA group", x.text, last)
        if x.cls == 'label' and x.text.startswith('L_join'): last = None
    c7_last = max(i for i, x in enumerate(P) if x.tag == 'c7')
    ho_first = min(i for i, x in enumerate(P) if x.text.startswith(f"s_mov_b64 s[{WSO}:{WSO+1}], s[{WS}"))
    assert c7_last < ho_first, "GEMM1 SRDs / offsets overwritten before the last chunk load"
    P = autowait(P); P = hazards(P)
    P.extend(hazards(autowait(flatten(spare1()))))
    R = hazards(flatten(rare))
    P.extend(R); P("L_codeend:")
    P = align8(P)
    return P

HEAD = open("cdna_kernels/" + NAME + ".s.ref").read().split("; Override launch")[0]
DOC = """; One persistent launch, 256 workgroups (one per CU), 4 waves each. Per workgroup, in order:
;   2. GEMM1 128x128 tile on raw x (LayerNorm folded into the epilogue via the column sums of w1), SiLU, h in MFMA fragment order
"""
def emit():
    P = build()
    size = sum(x.size for x in P)
    o = HEAD + f"; @launch grid=(256,1,1) block=(256,1,1) lds={LDS_BYTES}\n"
    o += DOC
    o += f'.amdgcn_target "amdgcn-amd-amdhsa--gfx950"\n.text\n.globl {NAME}_kernel\n.p2align 8\n.type {NAME}_kernel,@function\n{NAME}_kernel:\n'
    o += "\n".join(l for l in text(P).split("\n") if not l.strip().startswith("; MARK"))
    o += f""".section .rodata,"a"
.p2align 6
.amdhsa_kernel {NAME}_kernel
  .amdhsa_next_free_vgpr 512
  .amdhsa_next_free_sgpr 102
  .amdhsa_accum_offset 256
  .amdhsa_group_segment_fixed_size 0
  .amdhsa_kernarg_size 96
  .amdhsa_user_sgpr_count 2
  .amdhsa_user_sgpr_kernarg_segment_ptr 1
  .amdhsa_system_sgpr_workgroup_id_x 1
.end_amdhsa_kernel
"""
    return o, size

if __name__ == "__main__":
    o, size = emit()
    open(sys.argv[1], "w").write(o)
    print("code bytes (estimate):", size, "stamps:", stamp_names)
    open(sys.argv[1] + ".stamps", "w").write(",".join(stamp_names))
```

```python
import sys, struct
from ir import *

NAME = "recurrent_scan__ssm_conv_h3__dense_activation_silu__prompt"
OPT = dict(hto=0, pre2=1, hl1=1, psp=5, hcreg=1, hcw='c6b', kvaft=1, spb=0, t4=100, kvfill=0, fine=0, tiny=2, x_kvnull=0, x_w1null=0, hl0=12, trmid=1, xmid=1, x_meas=0, x_wg=-1, x_wgm=255, pk=0, g2w=7, gw0=0, gwp=2, x_pad=0, tr0at='c7a', hcv=0, hcat=108, hcp=4, msw=0, cspub=2, csg='c7a', cshare=0, ownw2=0, stch=0, st0=6, r0=4, r1=20, c4e=0, packa=1, hold=1, tpp=2, packb=1, he1=6, he2=10, x_cv=0, cvwait=1, fbs=25, fbn=3, trg1=0, trpre=1, tp=-1, pb=115, d3=0, c5e=1, stat_at='c4a', x_notry=0, x_late=0, dp=2, dstart='c2b', kvn=1, ft0=2, c3b=0, c3a=7, sw3=7, swn=1, swflag=0, c3pf=1, hcnt=1, qnt=0, hearly=0, ntail=4, dbgout=0, rotk=2, rotx=1, htouch=0, x_w2null=0, x_hcnull=0, x_hplain=0, n1=16, n2=28, d4=40, fa=6, pat=0, cvpace=4, t0=8, t1=24, t2=40, t3=56, pretouch=0, c2n=4, p0=2, p1=2, p2=2, b1n=5, b2n=5, esp=8, yat=40, ylag=9, ylate=1, map47=0, tlb=0, nonce_at=0, slowat=4, nt=1, c1n=1, kvpos=2, w2pace=5, sweep=0, uat=3, x_nokv=0, x_nocs=0, x_nodma=0, x_nobar=0, x_now2=0, onewait=1, kvend=4, cap=5, spare=1, prof=0, stats_fill=0, hring=12, flagB_at=45, codepf=1)
for a in sys.argv[2:]:
    k, v = a.split('='); OPT[k] = int(v) if v.lstrip('-').isdigit() else v

HWS = 0; KVR = 0x700000; YT = 0x900000; STATS = 0xB00000; FLA = 0xB10000; FLB = 0xB30000; FLC = 0xB50000; CSP = 0xB70000
PROF = 0xB80000; WS_SIZE = 0xC00000
E = 131072; KT = E; VT = E + 9360; HC = E; UR = E + 17680; CS = E + 26896; DUMP = CS + 512
LDS_BYTES = 163840
OOB = 0x80000000
f2u = lambda f: struct.unpack('<I', struct.pack('<f', f))[0]
NLOG2E = f2u(-1.4426950408889634)

sX, sJ, sW, sT0, sT1 = 3, 4, 5, 6, 7
Q1, QF, SKK, SVV, W1, W2, SSK, WS, WSH, OUT, DBG, SHK, KZ = 8, 12, 16, 20, 24, 28, 32, 36, 40, 44, 48, 52, 60
sDptr = 56; sN = 58; sDv = 59; sN2 = 56; sW2neg = 84
sCsW = 64; sCsR = 72; sCsN = 95
WSB = 8
sQoff = 64; sWoff = 72
sM0b = 80; sW2off = 81; sStatC = 82; sRot = 83; sStatW = 84; sFH = 85; sTH = 86; sH0 = 87
CODE = 88; sHst = 88
sM0q = 92; sM0w = 93; sP = 94; sCnt = 96; sC0 = sT0
sRB1, sCB1, sRB2, sCB2, sCH = 97, 98, 99, 100, 101
sKV0, sKV1, sFAo, sFAp, sU, sFBo, sFBp, sYs = 16, 17, 18, 19, 20, 21, 22, 23
sFCo, sFCp, sHL, sYl = 52, 53, 54, 55
sXO, sStatF, sHC, sHLo = 60, 61, 62, 63
def srd(b): return f"s[{b}:{b+3}]"

vL = 1; vL16 = 2; vL0 = 3
vQD = 4; vWD = 8; vBD = 12
vQA = 16; vWA = 24
vN = 28; vSTV = 29; vCSW = 30; vCSA = 31
vTA = 33; vCA = 37
vCB = 41; vCU = 42; vCD = 43; vCX = 44; vCXR = 45; vCY = 46
vPA = 47; vPB = 48; vPC = 49
vXD = 50; vYL = 51; vOS = 52
vXA = 53; vYW = 54; vYA = 55; vOW = 56; vOR = 57; vRW = 58; vRR = 59
vPROF = 62; vT = 63
vDV = 215; vH0 = 214
ACC = 64; FR = 128
CSACC = 244; SEL = 240; CSV = 176
STL = 208; MR = 216
def vr(b, n=1): return f"v{b}" if n == 1 else f"v[{b}:{b+n-1}]"
def ar(b, n): return f"a[{b}:{b+n-1}]"

rare = Stream(); nrare = [0]
def check_poll(S, reloads, tagregs):
    k = nrare[0]; nrare[0] += 1
    def cmp(T):
        if len(tagregs) == 1:
            T(f"v_cmp_ne_u32 vcc, s{sN}, v{tagregs[0]}")
        else:
            T(f"v_xor_b32 v{vT}, s{sN}, v{tagregs[0]}")
            for r in tagregs[1:]:
                T(f"v_xor_b32 v{r}, s{sN}, v{r}\nv_or_b32 v{vT}, v{vT}, v{r}")
            T(f"v_cmp_ne_u32 vcc, 0, v{vT}")
    g = Stream(); cmp(g); g(f"s_cbranch_vccnz L_rare{k}\nL_back{k}:")
    S.atomic(g)
    rare(f"L_rare{k}:\ns_mov_b32 s{sCnt}, 0")
    if OPT['prof']: rare(f"v_writelane_b32 v{vPROF}, 1, {52+k}")
    rare(f"L_rl{k}:\ns_sleep 1")
    for t in reloads: rare(t)
    rare("s_waitcnt vmcnt(0)")
    cmp(rare)
    rare(f"s_nop 1\ns_cbranch_vccz L_back{k}\ns_add_u32 s{sCnt}, s{sCnt}, 1\ns_cmp_lt_u32 s{sCnt}, 0x4000\ns_cbranch_scc1 L_rl{k}\ns_branch L_back{k}")

WSO = 24
def note_poll(S, tagreg, sres):
    g = Stream(); g(f"v_cmp_ne_u32 vcc, s{sN}, v{tagreg}\ns_or_b32 s{sres}, vcc_lo, vcc_hi\ns_cselect_b32 s{WSO+2}, 0, {WS_SIZE}"); S.atomic(g)
def repair(S, sres, first, reload, tagreg, redo):
    k = nrare[0]; nrare[0] += 1
    g = Stream(); g(f"s_cmp_lg_u32 s{sres}, 0\ns_cbranch_scc1 L_rare{k}\nL_back{k}:"); S.atomic(g)
    R = Stream()
    R(f"L_rare{k}:\ns_mov_b32 s{sCnt}, 0\ns_waitcnt vmcnt(0) lgkmcnt(0)")
    if OPT['prof']: R(f"v_writelane_b32 v{vPROF}, 1, {52+k}")
    R.extend(first)
    R(f"L_rl{k}:\n{reload}\ns_waitcnt vmcnt(0)\nv_cmp_ne_u32 vcc, s{sN}, v{tagreg}\ns_nop 1\ns_cbranch_vccz L_ok{k}\ns_sleep 1\ns_add_u32 s{sCnt}, s{sCnt}, 1\ns_cmp_lt_u32 s{sCnt}, 0x4000\ns_cbranch_scc1 L_rl{k}\nL_ok{k}:")
    R(f"s_mov_b32 s{WSO+2}, {WS_SIZE}")
    R.extend(autowait(flatten(redo)))
    R(f"s_waitcnt vmcnt(0) lgkmcnt(0)\ns_nop 4\ns_branch L_back{k}")
    rare.extend(R)

stamp_names = []
def stamp(S, name):
    if OPT['x_meas'] == name:
        g = Stream(); g(f"s_memrealtime s[{sP}:{sP+1}]\ns_waitcnt lgkmcnt(0)\nv_writelane_b32 v{vPROF}, s{sP}, 0"); S.atomic(g)
    if not OPT['prof']: return
    k = len(stamp_names); stamp_names.append(name)
    g = Stream()
    if OPT['prof'] == 1:
        g(f"s_memrealtime s[{sP}:{sP+1}]\ns_waitcnt lgkmcnt(0)\nv_writelane_b32 v{vPROF}, s{sP}, {k}")
        g(f"s_memtime s[{sP}:{sP+1}]\ns_waitcnt lgkmcnt(0)\nv_writelane_b32 v{vPROF}, s{sP}, {k+32}")
    elif OPT['prof'] == 4:
        g(f"s_memrealtime s[{sP}:{sP+1}]\ns_waitcnt lgkmcnt(0)\nv_writelane_b32 v{vPROF}, s{sP}, {k}")
    else:
        g(f"s_memtime s[{sP}:{sP+1}]\ns_waitcnt lgkmcnt(0)\nv_writelane_b32 v{vPROF}, s{sP}, {k}")
    S.atomic(g)

def dma_n(S, vbase, srdb, soff, m0txt, tag, n=4, samev=False, nt=False):
    for i in range(n):
        g = Stream()
        if i == 0: g(m0txt)
        g(f"buffer_load_dwordx4 v{vbase + (0 if samev else i)}, {srd(srdb)}, s{soff} offen" + (f" offset:{i*1024}" if i else "") + (" nt" if nt else "") + " lds", tag if i == n-1 else None)
        g[-1].arg = m0txt
        S.atomic(g)

def chunk_dma(i, sq=None, sw=None):
    S = Stream(); slot = i & 3
    dma_n(S, vQD, Q1, sQoff + i if sq is None else sq, f"s_add_u32 m0, s{sM0q}, {slot*32768}", None, nt=OPT['qnt'])
    dma_n(S, vWD, W1, sWoff + i if sw is None else sw, f"s_add_u32 m0, s{sM0w}, {slot*32768}", f"c{i}")
    return S

def w2_half(b, h):
    S = Stream(); slot = b & 3
    dma_n(S, vBD, W2, sW2off, f"s_add_u32 m0, s{sM0b}, {slot*32768 + 4096*h}", f"b{b}" if h else None)
    first = S[0].arg
    if h == 1: first.insert(1, Ins(f"s_add_u32 s{sW2off}, s{sW2off}, 32768"))
    elif b > 0:
        first[0:0] = [Ins(f"s_cmp_eq_u32 s{sRot}, {7-b}"), Ins(f"s_cselect_b32 s{sCnt}, s{sW2neg}, 0x8000")]
        first.insert(3, Ins(f"s_add_u32 s{sW2off}, s{sW2off}, s{sCnt}"))
    return S
def w2_dma(b):
    S = w2_half(b, 0); S.extend(w2_half(b, 1)); return S

def w2_tr(b):
    S = Stream(); slot = b & 3; hi = slot >> 1
    S.waitvm(f"b{b}")
    for k4 in range(4):
        for u in range(2):
            a = ((4*b + k4) * 2 + u) * 4
            for rd in range(2):
                off = (slot & 1) * 32768 + k4 * 2048 + rd * 1024
                S(f"ds_read_b64_tr_b16 {ar(a+2*rd, 2)}, v{vTA+2*hi+u} offset:{off}", f"tr{b}")
    return S

vROW = 220
vSHK = 228
MAP = [f"""
    s_lshr_b32 s{sCB1}, s{sJ}, 1
    s_and_b32 s{sT0}, s{sJ}, 1
    s_lshl_b32 s{sRB1}, s{sX}, 1
    s_add_u32 s{sRB1}, s{sRB1}, s{sT0}
    s_mul_i32 s{sT0}, s{sT0}, {OPT['pk']}
    s_add_u32 s{sT0}, s{sT0}, s{sCB1}
    s_add_u32 s{sT0}, s{sT0}, s{sX}
    s_and_b32 s{sT0}, s{sT0}, 7
""", f"""
    s_and_b32 s{sT0}, s{sJ}, 3
    s_lshr_b32 s{sT1}, s{sX}, 1
    s_lshl_b32 s{sRB1}, s{sT1}, 2
    s_add_u32 s{sRB1}, s{sRB1}, s{sT0}
    s_lshl_b32 s{sT0}, s{sT0}, 1
    s_add_u32 s{sT0}, s{sT0}, s{sT1}
    s_lshr_b32 s{sT1}, s{sJ}, 2
    s_add_u32 s{sT0}, s{sT0}, s{sT1}
    s_and_b32 s{sT0}, s{sT0}, 7
    s_and_b32 s{sCB1}, s{sX}, 1
    s_mul_i32 s{sCB1}, s{sCB1}, 7
    s_add_u32 s{sCB1}, s{sCB1}, s{sT1}
    s_cmp_eq_u32 s{sT1}, 7
    s_cselect_b32 s{sCB1}, 14, s{sCB1}
"""]
def entry():
    class SS(Stream):
        def __call__(self, text, tag=None): return Stream.__call__(self, text.replace(' NT', ' nt' if OPT['nt'] else '').replace('MAPPING', MAP[OPT['map47']]), tag)
    S = SS()
    S(f"""
    s_load_dwordx16 s[64:79], s[0:1], 0
    s_load_dwordx8 s[80:87], s[0:1], 64
    s_memrealtime s[40:41]
    s_cmp_ge_u32 s2, 256
    s_cbranch_scc1 L_end
    v_lshrrev_b32 v{vT}, 6, v0
    v_and_b32 v{vL}, 63, v0
    s_and_b32 s{sX}, s2, 7
    v_readfirstlane_b32 s{sW}, v{vT}
    s_lshr_b32 s{sJ}, s2, 3
    MAPPING
    s_mov_b32 s{QF+2}, 0x200000
    s_mov_b32 s{QF+3}, 0x20000
    s_cmp_lt_u32 s{sCB1}, 14
    s_cselect_b32 s{Q1+2}, 0x200000, 0
    s_cselect_b32 s{W1+2}, {0 if OPT['x_w1null'] else 0x1c0000}, 0
    s_mov_b32 s{Q1+3}, 0x20000
    s_mov_b32 s{W1+3}, 0x20000
    s_lshl_b32 s88, s{sX}, 5
    s_add_u32 s88, s88, s{sJ}
    s_lshl_b32 s88, s88, 2
    s_add_u32 s88, s88, s{sW}
    s_lshl_b32 s88, s88, 11
    s_lshl_b32 s89, s{sRB1}, 2
    s_add_u32 s89, s89, s{sW}
    s_lshl_b32 s89, s89, 15
    s_mul_i32 s90, s{sW}, {16*3584}
    s_lshl_b32 s{sT1}, s{sCB1}, 8
    s_add_u32 s90, s90, s{sT1}
    s_lshl_b32 s58, s{sT0}, 7
    s_add_u32 s58, s58, s89
    s_mul_i32 s59, s{sT0}, {64*3584}
    s_add_u32 s59, s59, s90
    s_lshl_b32 s{sM0q}, s{sW}, 12
    s_add_u32 s{sM0w}, s{sM0q}, 16384
    s_lshr_b32 s{sT1}, s{sJ}, 3
    s_lshl_b32 s{sRB2}, s{sX}, 2
    s_add_u32 s{sRB2}, s{sRB2}, s{sT1}
    s_and_b32 s{sCB2}, s{sJ}, 7
    s_lshl_b32 s42, s{sW}, 3
    s_or_b32 s42, s42, s2
    """)
    if OPT['prof']: S(f"v_mov_b32 v{vPROF}, 0")
    S.extend(codepf())
    a, b, c, d = 232, 233, 234, 235
    S(f"""
    v_lshlrev_b32 v{vL16}, 4, v{vL}
    v_lshrrev_b32 v{a}, 5, v{vL}
    v_and_b32 v{b}, 31, v{vL}
    v_lshlrev_b32 v{b}, 4, v{b}
    v_lshl_add_u32 v236, v{a}, 10, v{b}
    v_lshrrev_b32 v{a}, 3, v{vL}
    v_and_b32 v{b}, 7, v{vL}
    v_lshrrev_b32 v{c}, 4, v{vL}
    v_xor_b32 v{d}, v{b}, v{c}
    v_lshlrev_b32 v{d}, 4, v{d}
    v_lshl_add_u32 v{vQD}, v{a}, 10, v{d}
    v_xor_b32 v{d}, 64, v{vQD}
    v_add_u32 v{vQD+1}, 7168, v{d}
    v_add_u32 v{vQD+2}, 14336, v{vQD}
    v_add_u32 v{vQD+3}, 21504, v{d}
    v_and_b32 v{d}, 15, v{vL}
    v_lshlrev_b32 v237, 2, v{c}
    v_xor_b32 v{d}, v{d}, v237
    v_lshlrev_b32 v{d}, 4, v{d}
    v_mul_u32_u24 v237, 3584, v{c}
    v_add_u32 v{vWD}, v237, v{d}
    v_add_u32 v{vWD+1}, {4*3584-1024}, v{vWD}
    v_add_u32 v{vWD+2}, {8*3584-2048}, v{vWD}
    v_add_u32 v{vWD+3}, {12*3584-3072}, v{vWD}
    v_lshlrev_b32 v{b}, 4, v{b}
    v_lshl_add_u32 v237, v{a}, 10, v{b}
    v_lshlrev_b32 v238, 4, v{a}
    """)
    if OPT['tiny']:
        S(f"""
        s_lshl_b32 s43, s{sCB2}, 2
        s_add_u32 s43, s43, s{sW}
        s_lshl_b32 s43, s43, 7
        v_add_u32 v238, s43, v238
        s_lshl_b32 s43, s2, 2
        v_mov_b32 v240, s43
        s_lshr_b32 s43, s{sW}, 1
        s_lshl_b32 s43, s43, 12
        s_lshl_b32 s91, s2, 13
        s_add_u32 s43, s43, s91
        v_mov_b32 v241, s43
        v_mov_b32 v242, 0
        v_min_u32 v243, 5, v{vL}
        v_lshlrev_b32 v243, 21, v243
        """)
    for bb, n in ((W2, 0x1c0000), (SSK, 0x200000), (WS, WS_SIZE), (OUT, 0x200000), (DBG, 256)):
        S(f"s_mov_b32 s{bb+2}, {0 if (bb == W2 and OPT['x_w2null']) or (bb == SSK and OPT['x_hcnull']) else n}")
    for bb in (W2, SSK, WS, OUT, DBG):
        S(f"s_mov_b32 s{bb+3}, 0x20000")
    S.waitlg()
    stamp(S, "karg")
    S(f"""
    s_cmp_gt_u32 s42, 7
    s_cbranch_scc1 L_nonce_done
    s_or_b32 s40, s40, 1
    v_mov_b32 v245, 0
    v_mov_b32 v244, s40
    s_mov_b64 exec, 1
    global_atomic_cmpswap v245, v[244:245], s[84:85] sc1
    s_mov_b64 exec, -1
    L_nonce_done:
    """)
    S[-3].cls = 'other'
    if OPT['tiny']:
        S(f"""
        global_load_dwordx4 v[{vSHK}:{vSHK+3}], v238, s[70:71]
        global_load_dword a248, v240, s[74:75]
        global_load_dword a249, v241, s[72:73]
        """)
        if OPT['tiny'] > 1: S(f"global_load_dword a230, v242, s[66:67]\nglobal_load_dword a231, v242, s[68:69]")
        if OPT['tiny'] > 2: S(f"global_load_dword a232, v242, s[80:81]\nglobal_load_dword a233, v243, s[86:87]")
    S(f"""
    s_mov_b64 s[{QF}:{QF+1}], s[64:65]
    s_mov_b64 s[{Q1}:{Q1+1}], s[64:65]
    s_mov_b64 s[{W1}:{W1+1}], s[78:79]
    buffer_load_dwordx4 v[{vROW}:{vROW+3}], v236, {srd(QF)}, s88 offen NT
    buffer_load_dwordx4 v[{vROW+4}:{vROW+7}], v236, {srd(QF)}, s88 offen offset:512 NT
    """)
    mv = Stream()
    mv(f"""
    s_mov_b64 s[{SKK}:{SKK+1}], s[66:67]
    s_mov_b64 s[{KZ}:{KZ+1}], s[66:67]
    s_mov_b64 s[{SVV}:{SVV+1}], s[68:69]
    s_mov_b64 s[{SHK}:{SHK+1}], s[70:71]
    s_mov_b64 s[{SSK}:{SSK+1}], s[72:73]
    s_mov_b64 s[{sDptr}:{sDptr+1}], s[74:75]
    s_mov_b64 s[{W2}:{W2+1}], s[80:81]
    s_mov_b64 s[{OUT}:{OUT+1}], s[82:83]
    s_mov_b64 s[{DBG}:{DBG+1}], s[84:85]
    s_mov_b64 s[{WS}:{WS+1}], s[86:87]
    """)
    S.extend(chunk_dma(0, 58, 59)); S.extend(mv)
    if OPT['tlb']:
        S(f"""
        v_min_u32 v240, 5, v{vL}
        v_lshlrev_b32 v240, 21, v240
        v_mov_b32 v241, 0
        buffer_load_dword a240, v240, {srd(WS)}, 0 offen
        global_load_dword a241, v241, s[66:67]
        global_load_dword a242, v241, s[68:69]
        global_load_dword a243, v241, s[80:81]
        global_load_dword a244, v241, s[82:83]
        """.replace("a24", "a23"))
    S.extend(coff(1))
    return S

def coff(i):
    S = Stream()
    S(f"""
    s_add_u32 s{sT1}, s{sC0}, {i}
    s_and_b32 s{sT1}, s{sT1}, 7
    s_lshl_b32 s{sQoff+i}, s{sT1}, 7
    s_add_u32 s{sQoff+i}, s{sQoff+i}, s89
    s_mul_i32 s{sWoff+i}, s{sT1}, {64*3584}
    s_add_u32 s{sWoff+i}, s{sWoff+i}, s90
    """)
    return S
def codepf():
    S = Stream()
    if OPT['codepf']:
        S(f"""
        s_getpc_b64 s[16:17]
        L_pc:
        s_mov_b32 s18, L_codeend-L_pc
        s_mov_b32 s19, 0x20000
        s_lshl_b32 s20, s{sJ}, 2
        s_add_u32 s20, s20, s{sW}
        s_lshl_b32 s20, s20, 8
        v_lshlrev_b32 v238, 2, v{vL}
        buffer_load_dword a252, v238, s[16:19], s20 offen
        """)
    return S

def kv_pro():
    S = Stream()
    S(f"""
    s_cmp_lg_u32 s{sRB2}, 0
    s_cselect_b32 s{KZ+2}, 0x200000, 0
    s_mov_b32 s{KZ+3}, 0x20000
    s_mov_b32 s{SKK+2}, {0 if OPT['x_kvnull'] else 0x200000}
    s_mov_b32 s{SKK+3}, 0x20000
    s_mov_b32 s{SVV+2}, {0 if OPT['x_kvnull'] else 0x200000}
    s_mov_b32 s{SVV+3}, 0x20000
    s_mov_b32 s{SHK+2}, 4096
    s_mov_b32 s{SHK+3}, 0x20000
    s_lshl_b32 s40, s{sRB2}, 16
    s_lshl_b32 s41, s{sCB2}, 7
    s_add_u32 s40, s40, s41
    s_lshl_b32 s41, s{sW}, 13
    s_add_u32 s41, s41, s40
    s_add_u32 s42, s41, 32768
    s_sub_u32 s40, s40, 8192
    s_max_i32 s40, s40, 0
    s_mul_i32 s43, s{sW}, 1040
    s_lshl_b32 s87, s{sCB2}, 9
    s_lshl_b32 s{sT1}, s{sW}, 7
    s_add_u32 s87, s87, s{sT1}
    v_cmp_gt_u32 vcc, 40, v{vL}
    v_mov_b32 v239, {OOB}
    v_cndmask_b32 v239, v237, v239, vcc
    """)
    return S
def kv_dma():
    S = Stream(); nt = "nt " if OPT['nt'] else ""
    for m0, v, sr, so in ((f"s_add_u32 m0, s43, {KT+1040}", 237, SKK, 41), (f"s_add_u32 m0, s43, {VT}", 237, SVV, 41),
                          (f"s_add_u32 m0, s43, {KT+5*1040}", 237, SKK, 42), (f"s_add_u32 m0, s43, {VT+4*1040}", 237, SVV, 42),
                          (f"s_mov_b32 m0, {KT}", 239, KZ, 40)):
        g = Stream(); g(f"{m0}\nbuffer_load_dwordx4 v{v}, {srd(sr)}, s{so} offen {nt}lds"); S.atomic(g)
    if OPT['tiny']: S[-1].arg[-1].tag = "kvd"
    else: S(f"buffer_load_dwordx4 v[{vSHK}:{vSHK+3}], v238, {srd(SHK)}, s87 offen", "kvd")
    return S

def setup():
    S = Stream()
    if OPT['cshare']:
        S(f"""
        s_lshl_b32 s{sCsR}, s{sCB1}, 13
        s_add_u32 s{sCsR}, s{sCsR}, {CSP}
        s_lshl_b32 s{sCsW}, s{sC0}, 10
        s_add_u32 s{sCsW}, s{sCsW}, s{sCsR}
        s_and_b32 s{sT1}, s{sW}, 1
        s_lshl_b32 s{sT1}, s{sT1}, 9
        s_add_u32 s{sCsW}, s{sCsW}, s{sT1}
        s_lshr_b32 s{sT1}, s{sW}, 1
        s_lshl_b32 s{sT1}, s{sT1}, 8
        s_add_u32 s{sCsW}, s{sCsW}, s{sT1}
        s_lshl_b32 s{sT1}, s{sW}, 8
        s_add_u32 s{sCsR}, s{sCsR}, s{sT1}
        """)
    S(f"""
    s_and_b32 s{sFH}, s{sW}, 1
    s_lshr_b32 s{sTH}, s{sW}, 1
    s_lshl_b32 s{sCH}, s2, 1
    s_add_u32 s{sCH}, s{sCH}, s{sTH}
    s_lshl_b32 s{sM0b}, s{sW}, 13
    s_mul_i32 s{sW2off}, s{sW}, {448*1024}
    s_lshl_b32 s{sT0}, s{sCB2}, 7
    s_add_u32 s{sW2off}, s{sW2off}, s{sT0}
    s_lshr_b32 s{sRot}, s{sJ}, 3
    s_mul_i32 s{sRot}, s{sRot}, {OPT['rotk']}
    s_add_u32 s{sRot}, s{sRot}, s{sCB2}
    s_mul_i32 s{sT0}, s{sX}, {OPT['rotx']}
    s_add_u32 s{sRot}, s{sRot}, s{sT0}
    s_mul_i32 s{sT0}, s{sRot}, 37
    s_lshr_b32 s{sT0}, s{sT0}, 8
    s_mul_i32 s{sT0}, s{sT0}, 7
    s_sub_u32 s{sRot}, s{sRot}, s{sT0}
    s_lshl_b32 s{sT0}, s{sRot}, 16
    s_add_u32 s{sW2off}, s{sW2off}, s{sT0}
    s_lshl_b32 s{sStatC}, s{sRB1}, 1
    s_add_u32 s{sStatC}, s{sStatC}, s{sTH}
    s_mul_i32 s{sHst}, s{sStatC}, {2*112*1024}
    s_lshl_b32 s{sStatC}, s{sStatC}, 10
    s_add_u32 s{sStatC}, s{sStatC}, {STATS}
    s_lshl_b32 s{sT0}, s{sCB1}, 1
    s_add_u32 s{sT0}, s{sT0}, s{sFH}
    s_lshl_b32 s{sT0}, s{sT0}, 12
    s_add_u32 s{sHst}, s{sHst}, s{sT0}
    s_lshl_b32 s{sT0}, s{sTH}, 11
    s_xor_b32 s{sT1}, s{sT0}, 2048
    s_add_u32 s{sHst+2}, s{sHst}, s{sT1}
    s_add_u32 s{sHst}, s{sHst}, s{sT0}
    s_add_u32 s{sHst+1}, s{sHst}, {112*1024}
    s_add_u32 s{sHst+3}, s{sHst+2}, {112*1024}
    s_lshl_b32 s{sStatW}, s{sX}, 5
    s_add_u32 s{sStatW}, s{sStatW}, s{sJ}
    s_lshl_b32 s{sStatW}, s{sStatW}, 7
    s_lshl_b32 s{sT0}, s{sW}, 4
    s_add_u32 s{sStatW}, s{sStatW}, s{sT0}
    s_add_u32 s{sStatW}, s{sStatW}, {STATS}
    """)
    a, b, c, d, e, f = 240, 241, 242, 243, 244, 245
    a, b, c, d, e, f = 244, 245, 246, 247, 248, 249
    S(f"""
    v_mov_b32 v{a}, {OOB}
    v_cmp_eq_u32 vcc, 0, v{vL}
    v_and_b32 v{b}, 31, v{vL}
    v_lshrrev_b32 v{c}, 5, v{vL}
    v_cndmask_b32 v{vL0}, v{a}, 0, vcc
    v_lshrrev_b32 v{d}, 3, v{b}
    v_and_b32 v{e}, 7, v{vL}
    v_lshlrev_b32 v{e}, 3, v{e}
    v_lshl_add_u32 v{vSTV}, v{d}, 7, v{e}
    """)
    S(f"""
    v_lshrrev_b32 v{d}, 1, v{b}
    v_and_b32 v{d}, 7, v{d}
    v_xor_b32 v{d}, v{d}, v{c}
    v_lshlrev_b32 v{d}, 4, v{d}
    v_lshl_add_u32 v{d}, v{b}, 7, v{d}
    s_lshl_b32 s{sT0}, s{sTH}, 13
    v_add_u32 v{vQA}, s{sT0}, v{d}
    v_xor_b32 v{vQA+1}, 32, v{vQA}
    v_xor_b32 v{vQA+2}, 64, v{vQA}
    v_xor_b32 v{vQA+3}, 0x60, v{vQA}
    """)
    for k in range(4): S(f"v_add_u32 v{vQA+4+k}, 0x10000, v{vQA+k}")
    S(f"""
    v_bfe_u32 v{d}, v{vL}, 2, 2
    v_and_b32 v{e}, 3, v{vL}
    v_lshlrev_b32 v{e}, 3, v{e}
    v_bfe_u32 v{f}, v{vL}, 4, 1
    v_lshl_add_u32 v{e}, v{f}, 5, v{e}
    s_lshl_b32 s{sT0}, s{sFH}, 1
    s_add_u32 s{sT0}, s{sT0}, s{sTH}
    v_xor_b32 v{f}, s{sT0}, v{d}
    v_lshl_add_u32 v{f}, v{f}, 6, v{e}
    v_lshl_add_u32 v{f}, v{d}, 8, v{f}
    v_lshl_add_u32 v{vWA}, v{c}, 11, v{f}
    v_xor_b32 v{vWA+1}, 64, v{vWA}
    v_add_u32 v{vWA+2}, 0x10000, v{vWA}
    v_add_u32 v{vWA+3}, 0x10000, v{vWA+1}
    v_lshrrev_b32 v{f}, 1, v{d}
    v_xor_b32 v{f}, s{sFH}, v{f}
    v_lshl_add_u32 v{f}, v{f}, 6, v{e}
    v_lshl_add_u32 v{f}, v{d}, 7, v{f}
    v_lshl_add_u32 v{f}, v{c}, 9, v{f}
    v_add_u32 v{vTA}, s{sM0b}, v{f}
    v_xor_b32 v{vTA+1}, 64, v{vTA}
    v_add_u32 v{vTA+2}, 0x10000, v{vTA}
    v_add_u32 v{vTA+3}, 0x10000, v{vTA+1}
    v_lshl_add_u32 v{f}, v{d}, 6, v{e}
    v_lshl_add_u32 v{f}, v{c}, 8, v{f}
    s_add_u32 s{sT0}, s{sM0b}, {E + 2048}
    v_add_u32 v{vYA}, s{sT0}, v{f}
    v_add_u32 v{vYW}, s{sT0}, v{vL16}
    """)
    n, g = d, e
    S0 = S
    class SX(Stream):
        def __call__(self, text, tag=None):
            r = f"v_and_b32 v{a}, 31, v{vL}\nv_lshlrev_b32 v{a}, 3, v{a}\nv_lshl_add_u32 v{vCSW}, v{c}, 12, v{a}" if OPT['cshare'] else f"v_cndmask_b32 v{vCSW}, v{f}, v{a}, vcc"
            return S0(text.replace("CSWDEF", r), tag)
    SX()(f"""
    v_and_b32 v{n}, 15, v{vL}
    v_lshrrev_b32 v{g}, 4, v{vL}
    v_and_b32 v{f}, 1, v{g}
    v_cmp_eq_u32 vcc, v{n}, v{f}
    v_mov_b32 v{f}, 0x3f803f80
    v_lshlrev_b32 v{a}, 4, v{g}
    v_cndmask_b32 v{f}, 0, v{f}, vcc
    v_lshl_add_u32 v{a}, v{n}, 6, v{a}
    v_accvgpr_write_b32 a{SEL}, v{f}
    v_accvgpr_write_b32 a{SEL+1}, v{f}
    v_accvgpr_write_b32 a{SEL+2}, v{f}
    v_accvgpr_write_b32 a{SEL+3}, v{f}
    s_lshl_b32 s{sT0}, s{sFH}, 8
    s_lshl_b32 s{sT1}, s{sTH}, 7
    s_add_u32 s{sT0}, s{sT0}, s{sT1}
    s_add_u32 s{sT0}, s{sT0}, {CS}
    v_add_u32 v{a}, s{sT0}, v{a}
    v_add_u32 v{f}, {DUMP}, v{vL16}
    v_cmp_gt_u32 vcc, 2, v{n}
    v_lshlrev_b32 v{b}, 4, v{c}
    v_add_u32 v{vCSA}, s{sT0}, v{b}
    CSWDEF
    v_xor_b32 v{vCSA+1}, 0x80, v{vCSA}
    """)
    assert CS % 256 == 16 or True
    S(f"""
    v_lshrrev_b32 v{a}, 3, v{vL}
    v_and_b32 v{b}, 7, v{vL}
    v_bfe_u32 v{f}, v{vL}, 4, 1
    v_lshlrev_b32 v{f}, 2, v{f}
    v_xor_b32 v{b}, v{b}, v{f}
    v_lshlrev_b32 v{b}, 4, v{b}
    v_lshl_add_u32 v{vBD}, v{a}, 10, v{b}
    v_add_u32 v{vBD+1}, 7168, v{vBD}
    v_add_u32 v{vBD+2}, 14336, v{vBD}
    v_add_u32 v{vBD+3}, 21504, v{vBD}
    """)
    S(f"""
    v_lshlrev_b32 v{a}, 1, v{n}
    v_lshl_add_u32 v{a}, v{g}, 4, v{a}
    v_and_b32 v{b}, 1, v{n}
    v_cmp_eq_u32 vcc, 0, v{b}
    v_mov_b32 v{f}, {4160 - 2}
    s_mul_i32 s{sT0}, s{sTH}, 8320
    s_lshl_b32 s{sT1}, s{sFH}, 6
    v_cndmask_b32 v{b}, 0, v{f}, vcc
    s_add_u32 s{sT0}, s{sT0}, s{sT1}
    s_add_u32 s{sT0}, s{sT0}, {HC + 32 - 30}
    v_add3_u32 v{vCA}, v{a}, v{b}, s{sT0}
    v_add_u32 v{vCA+1}, 1024, v{vCA}
    v_add_u32 v{vCA+2}, 2048, v{vCA}
    v_add_u32 v{vCA+3}, 3072, v{vCA}
    s_mul_i32 s{sT0}, s{sTH}, 4608
    s_add_u32 s{sT0}, s{sT0}, {UR}
    v_lshlrev_b32 v{a}, 5, v{n}
    v_lshlrev_b32 v{b}, 4, v{g}
    v_sub_u32 v{b}, v{b}, v{a}
    s_add_u32 s{sT1}, s{sT1}, s{sT0}
    s_add_u32 s{sT1}, s{sT1}, 480
    v_add_u32 v{vCB}, s{sT1}, v{b}
    v_lshl_add_u32 v{b}, v{g}, 3, v{a}
    s_lshl_b32 s{sT1}, s{sFH}, 11
    s_sub_u32 s{sCnt}, s{sT0}, s{sT1}
    s_add_u32 s{sCnt}, s{sCnt}, {4088 - 1536}
    v_sub_u32 v{vCD}, s{sCnt}, v{b}
    s_add_u32 s{sT1}, s{sT1}, s{sT0}
    v_add_u32 v{vCU}, s{sT1}, v{vL16}
    v_and_b32 v{b}, 0x1f0, v{vL16}
    s_add_u32 s{sT0}, s{sT0}, 4096
    v_add_u32 v{b}, s{sT0}, v{b}
    v_mov_b32 v252, 0
    v_mov_b32 v253, 0
    v_mov_b32 v254, 0
    v_mov_b32 v255, 0
    ds_write_b128 v{b}, v[252:255]
    s_add_u32 s{sT0}, s{sM0b}, {3*32768}
    v_add_u32 v{vCX}, s{sT0}, v{vL16}
    v_xor_b32 v{vCXR}, 0x2000, v{vCX}
    v_and_b32 v{b}, 1, v{g}
    v_lshl_add_u32 v{a}, v{b}, 9, v{a}
    v_lshrrev_b32 v{b}, 1, v{g}
    v_lshl_add_u32 v{vCY}, v{b}, 4, v{a}
    v_lshlrev_b32 v{vPA}, {2 if OPT['packa'] else 7}, v{n}
    v_min_u32 v{a}, 6, v{vL}
    v_lshlrev_b32 v{vPB}, {2 if OPT['packb'] else 7}, v{a}
    v_and_b32 v{a}, 31, v{vL}
    v_lshlrev_b32 v{vPC}, 8, v{a}
    """)
    S(f"""
    v_lshrrev_b32 v{b}, 2, v{vL}
    v_and_b32 v{f}, 3, v{vL}
    v_lshlrev_b32 v{f}, 4, v{f}
    v_lshl_add_u32 v{vOS}, v{b}, 10, v{f}
    v_lshl_add_u32 v{vYL}, v{b}, 12, v{f}
    v_lshlrev_b32 v{d}, 4, v{g}
    v_xor_b32 v{vXD}, v{vOS}, v{d}
    v_mul_u32_u24 v{b}, 80, v{b}
    s_add_u32 s{sT0}, s{sM0b}, {E + 4096}
    v_add3_u32 v{vOR}, v{b}, v{f}, s{sT0}
    v_mul_u32_u24 v{b}, 80, v{a}
    v_lshl_add_u32 v{b}, v{c}, 3, v{b}
    v_add_u32 v{vOW}, s{sT0}, v{b}
    v_bfe_u32 v{b}, v{vL}, 2, 2
    v_lshlrev_b32 v{b}, 4, v{b}
    v_lshl_add_u32 v{b}, v{a}, 6, v{b}
    v_lshl_add_u32 v{b}, v{c}, 3, v{b}
    s_add_u32 s{sT0}, s{sM0b}, {E}
    v_add_u32 v{vXA}, s{sT0}, v{b}
    v_add_u32 v{vRW}, s{sM0b}, v{vL16}
    v_xor_b32 v{vRR}, 0x4000, v{vRW}
    v_xor_b32 v{vRR+1}, 0x6000, v{vRW}
    v_xor_b32 v{vRR+2}, 0x2000, v{vRW}
    """)
    return S

def setup_b():
    if OPT['packb']:
        pk = f"s_mul_i32 s{sT1}, s{sT0}, 37\ns_lshr_b32 s{sT1}, s{sT1}, 8\ns_lshr_b32 s{sFBo}, s{sFBo}, 3\ns_add_u32 s{sFBo}, s{sFBo}, s{sT1}\ns_lshl_b32 s{sFBo}, s{sFBo}, 7\ns_mul_i32 s{sT1}, s{sT1}, 7\ns_sub_u32 s{sT0}, s{sT0}, s{sT1}\ns_lshl_b32 s{sT0}, s{sT0}, 2\ns_add_u32 s{sFBo}, s{sFBo}, s{sT0}\ns_add_u32 s{sFBo}, s{sFBo}, {FLB}"
    else:
        pk = f"s_add_u32 s{sFBo}, s{sFBo}, s{sT0}\ns_lshl_b32 s{sFBo}, s{sFBo}, 7\ns_add_u32 s{sFBo}, s{sFBo}, {FLB}"
    if OPT['packa']:
        pa = f"s_lshl_b32 s{sFAo}, s{sT0}, 1\ns_lshr_b32 s{sT1}, s{sRB2}, 4\ns_add_u32 s{sFAo}, s{sFAo}, s{sT1}\ns_lshl_b32 s{sFAo}, s{sFAo}, 7\ns_and_b32 s{sT1}, s{sRB2}, 15\ns_lshl_b32 s{sT1}, s{sT1}, 2\ns_add_u32 s{sFAo}, s{sFAo}, s{sT1}\ns_add_u32 s{sFAo}, s{sFAo}, {FLA}\n"
        pa += f"s_lshr_b32 s{sFAp}, s{sCH}, 4\ns_lshl_b32 s{sFAp}, s{sFAp}, 8\ns_lshl_b32 s{sT0}, s{sFH}, 7\ns_sub_u32 s{sFAp}, s{sFAp}, s{sT0}\ns_add_u32 s{sFAp}, s{sFAp}, {FLA + 128}"
    else:
        pa = f"s_lshl_b32 s{sFAo}, s{sT0}, 5\ns_add_u32 s{sFAo}, s{sFAo}, s{sRB2}\ns_lshl_b32 s{sFAo}, s{sFAo}, 7\ns_add_u32 s{sFAo}, s{sFAo}, {FLA}\n"
        pa += f"s_lshr_b32 s{sFAp}, s{sCH}, 4\ns_lshl_b32 s{sFAp}, s{sFAp}, 12\ns_lshl_b32 s{sT0}, s{sFH}, 11\ns_sub_u32 s{sFAp}, s{sFAp}, s{sT0}\ns_add_u32 s{sFAp}, s{sFAp}, {FLA + 2048}"
    class SS(Stream):
        def __call__(self, text, tag=None): return Stream.__call__(self, text.replace('PACKB', pk).replace('PACKA', pa), tag)
    S = SS()
    S(f"""
    s_lshl_b32 s{sFBo}, s{sRB1}, 1
    s_add_u32 s{sFBo}, s{sFBo}, s{sTH}
    s_lshl_b32 s{sFBo}, s{sFBo}, 5
    s_lshl_b32 s{sT0}, s{sCB1}, 1
    s_add_u32 s{sT0}, s{sT0}, s{sFH}
    PACKB
    s_lshl_b32 s{sT0}, s{sCB2}, 2
    s_add_u32 s{sT0}, s{sT0}, s{sW}
    s_lshl_b32 s{sKV0}, s{sT0}, 16
    s_lshl_b32 s{sT1}, s{sRB2}, 7
    s_sub_u32 s{sKV0}, s{sKV0}, s{sT1}
    s_add_u32 s{sKV0}, s{sKV0}, {KVR + 1984*2}
    s_add_u32 s{sKV1}, s{sKV0}, 4096
    PACKA
    s_lshl_b32 s{sT0}, s{sFH}, 11
    s_lshl_b32 s{sHC}, s{sCH}, 12
    s_add_u32 s{sU}, s{sHC}, s{sT0}
    s_add_u32 s{sYs}, s{sU}, {YT}
    s_add_u32 s{sU}, s{sU}, {KVR}
    s_lshl_b32 s{sT0}, s{sFH}, 1
    s_add_u32 s{sHC}, s{sHC}, s{sT0}
    """)
    return S
def setup_c():
    S = Stream()
    S(f"""
    s_lshl_b32 s{sFBp}, s{sRB2}, {2 if OPT['packb'] else 5}
    s_mul_i32 s42, s{sW}, {1 if OPT['packb'] else 7}
    s_add_u32 s{sFBp}, s{sFBp}, s42
    s_lshl_b32 s{sFBp}, s{sFBp}, 7
    s_add_u32 s{sFBp}, s{sFBp}, {FLB}
    s_lshl_b32 s{sFCo}, s{sCH}, 1
    s_add_u32 s{sFCo}, s{sFCo}, s{sFH}
    s_lshl_b32 s{sFCo}, s{sFCo}, 7
    s_add_u32 s{sFCo}, s{sFCo}, {FLC}
    s_lshl_b32 s42, s{sCB2}, 1
    s_add_u32 s42, s42, s{sFH}
    s_lshl_b32 s{sFCp}, s42, 13
    s_lshr_b32 s43, s{sRB2}, 4
    s_lshl_b32 s43, s43, 7
    s_add_u32 s{sFCp}, s{sFCp}, s43
    s_add_u32 s{sFCp}, s{sFCp}, {FLC}
    s_lshl_b32 s{sYl}, s42, 17
    s_lshl_b32 s{sXO}, s42, 6
    s_lshl_b32 s42, s{sRB2}, 1
    s_add_u32 s42, s42, s{sTH}
    s_lshl_b32 s43, s42, 6
    s_add_u32 s{sYl}, s{sYl}, s43
    s_add_u32 s{sYl}, s{sYl}, {YT}
    s_lshl_b32 s43, s42, 15
    s_add_u32 s{sXO}, s{sXO}, s43
    s_lshl_b32 s{sStatF}, s42, 9
    s_add_u32 s{sStatF}, s{sStatF}, {STATS}
    s_mul_i32 s{sHLo}, s42, {112*1024}
    s_xor_b32 s42, s42, 1
    s_mul_i32 s{sHL}, s42, {112*1024}
    s_mul_i32 s42, s{sW}, {28*1024}
    s_lshl_b32 s43, s{sRot}, 12
    s_add_u32 s42, s42, s43
    s_add_u32 s{sHL}, s{sHL}, s42
    s_add_u32 s{sHLo}, s{sHLo}, s42
    """)
    return S

def hoffs2():
    return Stream()
sNeg = 92
def hoffs():
    S = Stream()
    g = Stream(); g(f"s_mov_b64 s[{WSO}:{WSO+1}], s[{WS}:{WS+1}]\ns_mov_b32 s{sNeg}, {-6*4096 & 0xffffffff:#x}\ns_mov_b32 s{sN2}, s{sN}\ns_mov_b32 s{sN2+1}, s{sN}"); S.atomic(g)
    return S

def nonce_get():
    S = Stream()
    S(f"s_load_dword s{sN}, s[{DBG}:{DBG+1}], 0")
    return S
def nonce_use(N='N'):
    S = Stream(); g = Stream()
    g(f"s_waitcnt lgkmcnt(0)\ns_cmp_eq_u32 s{sN}, 0\ns_cbranch_scc1 L_rare{N}\nL_back{N}:\nv_mov_b32 v{vN}, s{sN}")
    S.atomic(g)
    rare(f"""
    L_rare{N}:
    s_mov_b32 s{sCnt}, 0
    {"v_writelane_b32 v62, 1, 51" if OPT['prof'] else ""}
    L_rl{N}:
    s_sleep 2
    buffer_load_dword v{vN}, off, {srd(DBG)}, 0 sc1
    s_waitcnt vmcnt(0)
    v_readfirstlane_b32 s{sN}, v{vN}
    s_cmp_lg_u32 s{sN}, 0
    s_cbranch_scc1 L_back{N}
    s_add_u32 s{sCnt}, s{sCnt}, 1
    s_cmp_lt_u32 s{sCnt}, 0x4000
    s_cbranch_scc1 L_rl{N}
    s_branch L_back{N}
    """)
    return S

def stats():
    pr = lambda b: f"v[{b}:{b+1}]"
    S = Stream(); X = 176; A = 192; B = 193; C = 194
    for i in range(8): S(f"v_lshlrev_b32 v{X+2*i}, 16, v{vROW+i}\nv_and_b32 v{X+2*i+1}, 0xffff0000, v{vROW+i}")
    def allred(r):
        for m in ("quad_perm:[1,0,3,2]", "quad_perm:[2,3,0,1]", "row_half_mirror", "row_mirror"):
            S(f"v_add_f32_dpp v{r}, v{r}, v{r} {m} row_mask:0xf bank_mask:0xf")
        S(f"v_mov_b32 v{C}, v{r}\nv_permlane16_swap_b32 v{r}, v{C}\nv_add_f32 v{r}, v{r}, v{C}")
    for i in range(4): S(f"v_pk_add_f32 {pr(200+2*i)}, {pr(X+4*i)}, {pr(X+4*i+2)}")
    S(f"v_pk_add_f32 {pr(200)}, {pr(200)}, {pr(202)}\nv_pk_add_f32 {pr(204)}, {pr(204)}, {pr(206)}\nv_pk_add_f32 {pr(200)}, {pr(200)}, {pr(204)}\nv_add_f32 v{A}, v200, v201")
    allred(A)
    S(f"v_mul_f32 v{A}, {f2u(1/512):#x}, v{A}")
    for i in range(8): S(f"v_pk_add_f32 {pr(X+2*i)}, {pr(X+2*i)}, {pr(A)} op_sel_hi:[1,0] neg_lo:[0,1] neg_hi:[0,1]")
    S(f"v_pk_mul_f32 {pr(200)}, {pr(X)}, {pr(X)}\nv_pk_mul_f32 {pr(202)}, {pr(X+2)}, {pr(X+2)}")
    for i in range(2, 8): S(f"v_pk_fma_f32 {pr(200+2*(i&1))}, {pr(X+2*i)}, {pr(X+2*i)}, {pr(200+2*(i&1))}")
    S(f"v_pk_add_f32 {pr(200)}, {pr(200)}, {pr(202)}\nv_add_f32 v{B}, v200, v201")
    allred(B)
    S(f"""
    v_mul_f32 v{B}, {f2u(1/512):#x}, v{B}
    v_cvt_pk_bf16_f32 v{B}, v{B}, v{B}
    v_lshlrev_b32 v{B}, 16, v{B}
    v_add_f32 v{B}, {f2u(1e-5):#x}, v{B}
    v_cvt_pk_bf16_f32 v{B}, v{B}, v{B}
    v_lshlrev_b32 v{B}, 16, v{B}
    v_sqrt_f32 v{B}, v{B}
    v_and_b32 v{C}, 31, v{vL}
    v_cvt_pk_bf16_f32 v196, v{A}, v{B}
    v_lshrrev_b32 v{A}, 2, v{vL}
    v_mov_b32 v{B}, {OOB}
    """)
    g = Stream(); g(f"v_cmp_eq_u32 vcc, 0, v{C}\nv_cndmask_b32 v198, v{B}, v{A}, vcc"); S.atomic(g)
    return S
def stats_store():
    S = Stream()
    S(f"v_mov_b32 v197, v{vN}\nbuffer_store_dwordx2 v[196:197], v198, {srd(WS)}, s{sStatW} offen sc1")
    return S

def flag_store(soff, srdb, tag):
    S = Stream(); S.waitvm(tag)
    S(f"buffer_store_dword v{vN}, v{vL0}, {srd(srdb)}, s{soff} offen sc1")
    return S

def kv_addr():
    S = Stream(); a1, a2, a3 = 252, 253, 254
    S(f"""
    v_and_b32 v{a1}, 7, v{vL}
    v_mul_u32_u24 v{a2}, 1040, v{a1}
    v_lshrrev_b32 v{a3}, 3, v{vL}
    v_lshl_add_u32 v{a2}, v{a3}, 2, v{a2}
    s_lshl_b32 s{sT0}, s{sW}, 5
    s_add_u32 s{sT0}, s{sT0}, {KT}
    v_add_u32 v{a2}, s{sT0}, v{a2}
    v_add_u32 v255, 1040, v{a2}
    v_xor_b32 v{a1}, 7, v{a1}
    v_lshlrev_b32 v{a1}, 4, v{a1}
    v_lshl_add_u32 v{a1}, v{a3}, 13, v{a1}
    v_add_u32 v{a3}, {VT-KT}, v{a2}
    """)
    return S
def kvpre():
    S = Stream()
    KR = 232; VR = 244; KP = 176; WF = 220; O = 200
    S(f"ds_read2_b32 v[{KR}:{KR+1}], v253 offset0:160 offset1:192\nds_read_b32 v{KR+2}, v253 offset:896")
    for p in range(4): S(f"ds_read2_b32 v[{KR+4+2*p}:{KR+5+2*p}], v255 offset0:{64*p} offset1:{64*p+32}")
    for p in range(4): S(f"ds_read2_b32 v[{VR+2*p}:{VR+1+2*p}], v254 offset0:{64*p} offset1:{64*p+32}")
    for j in range(4):
        for c in range(2):
            src = vSHK + 2*c + (j >> 1)
            S(f"v_and_b32 v{WF+2*j+c}, 0xffff0000, v{src}" if j & 1 else f"v_lshlrev_b32 v{WF+2*j+c}, 16, v{src}")
    ri = lambda r: r + 3 if r < 0 else r + 4
    pr = lambda b: f"v[{b}:{b+1}]"
    for r in range(-3, 8):
        S(f"v_lshlrev_b32 v{KP+2*ri(r)}, 16, v{KR+ri(r)}\nv_and_b32 v{KP+2*ri(r)+1}, 0xffff0000, v{KR+ri(r)}")
    for t in range(8): S(f"v_pk_mul_f32 {pr(O+2*t)}, {pr(KP+2*ri(t))}, {pr(WF)}")
    for jj in range(1, 4):
        for t in range(8): S(f"v_pk_fma_f32 {pr(O+2*t)}, {pr(KP+2*ri(t-jj))}, {pr(WF+2*jj)}, {pr(O+2*t)}")
    for t in range(8): S(f"v_lshlrev_b32 v{KP+2*t}, 16, v{VR+t}\nv_and_b32 v{KP+2*t+1}, 0xffff0000, v{VR+t}")
    for t in range(8): S(f"v_pk_mul_f32 {pr(O+2*t)}, {pr(O+2*t)}, {pr(KP+2*t)}")
    for ch, Pk in enumerate((232, 236)):
        for q in range(4): S(f"v_cvt_pk_bf16_f32 v{Pk+q}, v{O+2*(7-2*q)+ch}, v{O+2*(6-2*q)+ch}")
        S(f"buffer_store_dwordx4 v[{Pk}:{Pk+3}], v252, {srd(WS)}, s{sKV0+ch} offen sc1", f"kv{ch}")
    return S

def kvpre_np():
    S = Stream()
    KR = 232; VR = 244; KL = 176; WF = 188; OA = 200; OB = 220
    S(f"ds_read2_b32 v[{KR}:{KR+1}], v253 offset0:160 offset1:192\nds_read_b32 v{KR+2}, v253 offset:896")
    for p in range(4): S(f"ds_read2_b32 v[{KR+4+2*p}:{KR+5+2*p}], v255 offset0:{64*p} offset1:{64*p+32}")
    for p in range(4): S(f"ds_read2_b32 v[{VR+2*p}:{VR+1+2*p}], v254 offset0:{64*p} offset1:{64*p+32}")
    for i in range(4):
        S(f"v_lshlrev_b32 v{WF+2*i}, 16, v{vSHK+i}\nv_and_b32 v{WF+2*i+1}, 0xffff0000, v{vSHK+i}")
    ri = lambda r: r + 3 if r < 0 else r + 4
    for r in range(-3, 8):
        S(f"v_lshlrev_b32 v{KL+ri(r)}, 16, v{KR+ri(r)}\nv_and_b32 v{KR+ri(r)}, 0xffff0000, v{KR+ri(r)}")
    for ch, (K, Oo) in enumerate(((KL, OA), (KR, OB))):
        for t in range(8): S(f"v_mul_f32 v{Oo+t}, v{K+ri(t)}, v{WF+4*ch}")
        for jj in range(1, 4):
            for t in range(8): S(f"v_fmac_f32 v{Oo+t}, v{K+ri(t-jj)}, v{WF+4*ch+jj}")
    for t in range(8):
        S(f"v_lshlrev_b32 v{KL+t}, 16, v{VR+t}\nv_and_b32 v{VR+t}, 0xffff0000, v{VR+t}")
    for t in range(8):
        S(f"v_mul_f32 v{OA+t}, v{OA+t}, v{KL+t}\nv_mul_f32 v{OB+t}, v{OB+t}, v{VR+t}")
    for ch, (Oo, Pk) in enumerate(((OA, 232), (OB, 236))):
        for q in range(4): S(f"v_cvt_pk_bf16_f32 v{Pk+q}, v{Oo+7-2*q}, v{Oo+6-2*q}")
        S(f"buffer_store_dwordx4 v[{Pk}:{Pk+3}], v252, {srd(WS)}, s{sKV0+ch} offen sc1", f"kv{ch}")
    return S

def stouch(S):
    S(f"v_lshlrev_b32 v5, 10, v{vL}\ns_lshl_b32 s66, s{sW}, 8\ns_add_u32 s72, s64, s66\ns_lshl_b32 s66, s{sW}, 1\ns_add_u32 s73, s65, s66")
    for p in range(OPT['st0'], 7):
        for c in range(2):
            S(f"""
            s_add_u32 s67, s73, {p + c}
            s_mul_i32 s69, s67, 37
            s_lshr_b32 s69, s69, 8
            s_mul_i32 s69, s69, 7
            s_sub_u32 s67, s67, s69
            s_lshl_b32 s67, s67, 16
            s_add_u32 s67, s67, s72
            buffer_load_dword a236, v5, {srd(W2)}, s67 offen offset:{128*c}
            """)
            S[-1].wr = set()

def msweep(S):
    S(f"""
    v_lshlrev_b32 v6, 7, v{vL}
    s_lshl_b32 s66, s{sX}, 2
    s_and_b32 s67, s{sJ}, 3
    s_add_u32 s66, s66, s67
    s_lshl_b32 s66, s66, 2
    s_add_u32 s66, s66, s{sW}
    s_mul_i32 s66, s66, 14336
    s_add_u32 s67, s66, 6144
    buffer_load_dword a237, v6, {srd(W2)}, s66 offen
    buffer_load_dword a238, v6, {srd(W2)}, s67 offen
    """)

def spare1():
    S = Stream()
    S("L_spare1:")
    if OPT['spb'] == 1: S("s_waitcnt vmcnt(0)\ns_barrier")
    S(f"""
    s_lshl_b32 s64, s{sX}, 2
    s_and_b32 s65, s{sJ}, 3
    s_add_u32 s64, s64, s65
    s_lshl_b32 s64, s64, 16
    s_lshl_b32 s66, s{sW}, 13
    s_add_u32 s64, s64, s66
    s_add_u32 s64, s64, 384
    s_add_u32 s66, s64, 32768
    """)
    if OPT['c3pf']:
        S(f"""
        buffer_load_dwordx4 a[64:67], v237, {srd(SKK)}, s64 offen
        buffer_load_dwordx4 a[68:71], v237, {srd(SVV)}, s64 offen
        buffer_load_dwordx4 a[72:75], v237, {srd(SKK)}, s66 offen
        buffer_load_dwordx4 a[76:79], v237, {srd(SVV)}, s66 offen
        """)
    if OPT['kvpos'] >= 2: S.extend(kv_dma())
    S(f"v_mov_b32 v4, v237")
    S.extend(nonce_get()); S.extend(setup_b()); S.extend(setup_c()); S.extend(nonce_use('M')); S.extend(stats_store())
    S.extend(kv_addr())
    S(f"""
    s_mul_i32 s64, s65, {448*1024}
    s_lshl_b32 s66, s{sW}, 14
    s_add_u32 s70, s64, s66
    s_add_u32 s70, s70, 384
    s_mul_i32 s65, s{sX}, {OPT['rotx']}
    s_add_u32 s71, s65, 3
    """)
    def c3(n):
        for i in range(n):
            S(f"""
            s_mul_i32 s69, s71, 37
            s_lshr_b32 s69, s69, 8
            s_mul_i32 s69, s69, 7
            s_sub_u32 s67, s71, s69
            s_lshl_b32 s67, s67, 16
            s_add_u32 s67, s67, s70
            s_add_u32 s68, s67, 8192
            s_add_u32 s71, s71, 1
            buffer_load_dwordx4 a[80:83], v4, {srd(W2)}, s67 offen
            buffer_load_dwordx4 a[84:87], v4, {srd(W2)}, s68 offen
            """)
            S[-1].wr = set(); S[-2].wr = set()
    if OPT['kvpos'] >= 2:
        if OPT['msw'] == 1: msweep(S)
        c3(OPT['c3a'])
        if OPT['msw'] == 2: msweep(S)
        if OPT['stch'] == 3: stouch(S)
        if OPT['spb'] == 2: S(f"s_waitcnt vmcnt({2*OPT['c3a'] + 6 + (4 if OPT['c3pf'] else 0)})\ns_barrier")
        if OPT['ownw2']: S.extend(SPARE_W2[5:5+OPT['ownw2']])
        S.waitvm("kvd")
    else:
        c3(OPT['c3a']); S(f"s_waitcnt vmcnt({2*OPT['c3a'] + 1 + (4 if OPT['c3pf'] else 0)})")
    S("s_barrier")
    S.extend(kvpre())
    S.extend(flag_init()); S(f"s_mov_b32 s{sDone}, 0x80000000")
    if OPT['msw'] == 3: msweep(S)
    S("s_barrier")
    if OPT['kvpos'] >= 2: S.extend(dh_loads())
    S.extend(SPARE_W2[:5] if OPT['ownw2'] else SPARE_W2[:8])
    S.extend(flag_store(sFAo, WS, "kv1"))
    stamp(S, "kvpub")
    if OPT['stch'] == 2: stouch(S)
    S.extend(SPARE_W2[5+OPT['ownw2']:] if OPT['ownw2'] else SPARE_W2[8:])
    c3(OPT['c3b'])
    if OPT['stch'] == 1: stouch(S)
    if OPT['tp'] >= 0: S.extend(w2touch(range(OPT['tp'], 7)))
    if OPT['sweep']:
        S(f"""
        s_lshl_b32 s66, s{sW}, 7
        s_add_u32 s64, s64, s66
        s_add_u32 s65, s65, s{sW}
        s_mov_b32 s66, {OPT['swn']}
        s_cmp_eq_u32 s{sW}, 3
        s_cbranch_scc1 L_swe
        L_sw:
        s_mul_i32 s69, s65, 37
        s_lshr_b32 s69, s69, 8
        s_mul_i32 s69, s69, 7
        s_sub_u32 s67, s65, s69
        s_lshl_b32 s67, s67, 16
        s_add_u32 s67, s67, s64
        """)
        for n in range(8):
            S(f"buffer_load_dwordx4 a[232:235], v4, {srd(W2)}, s67 offen\ns_add_u32 s67, s67, 8192"); S[-2].cls = 'other'
        S(f"""
        s_add_u32 s65, s65, 1
        s_sub_u32 s66, s66, 1
        s_cmp_lg_u32 s66, 0
        s_cbranch_scc1 L_sw
        L_swe:
        s_waitcnt vmcnt(0)
        """)
    S.extend(hcopy_wr() if OPT['hcreg'] else Stream()); S.extend(htouch_pro() if OPT['hto'] else Stream()); S.extend(hpad()); S.extend(hoffs()[:1] if OPT['packa'] else hoffs())
    if OPT['stch'] == 5:
        S("s_waitcnt vmcnt(0)"); stouch(S)
    S(pollA_load()); S.extend(u_loads(True))
    S("s_waitcnt vmcnt(0) lgkmcnt(0)")
    if OPT['stch'] == 4: stouch(S)
    S("s_branch L_join")
    return S

def w2touch(ps):
    S = Stream(); a, b = 250, 251
    g = Stream(); g(f"""v_cmp_gt_u32 vcc, 16, v{vL}
    v_lshlrev_b32 v{a}, 10, v{vL}
    v_mov_b32 v{b}, {OOB}
    v_cndmask_b32 v{a}, v{b}, v{a}, vcc"""); S.atomic(g)
    S(f"""s_lshr_b32 s79, s{sJ}, 3
    s_lshl_b32 s79, s79, 14
    s_mul_i32 s71, s{sW}, {448*1024}
    s_add_u32 s79, s79, s71
    s_lshl_b32 s71, s{sCB2}, 7
    s_add_u32 s79, s79, s71""")
    for p in ps:
        g = Stream(); g(f"""s_add_u32 s{sCnt}, s{sRot}, {p}
        s_cmp_ge_u32 s{sCnt}, 7
        s_cselect_b32 s71, 7, 0
        s_sub_u32 s{sCnt}, s{sCnt}, s71
        s_lshl_b32 s{sCnt}, s{sCnt}, 16
        s_add_u32 s{sCnt}, s{sCnt}, s79
        buffer_load_dword a236, v{a}, {srd(W2)}, s{sCnt} offen"""); g[-1].wr = set(); S.atomic(g)
    return S

def htouch():
    S = Stream()
    if OPT['htouch']:
        S(f"v_and_b32 v230, 31, v{vL}\nv_lshrrev_b32 v231, 5, v{vL}\nv_mul_u32_u24 v231, {112*1024}, v231\nv_lshl_add_u32 v230, v230, 7, v231\ns_lshl_b32 s87, s{sTH}, 11\ns_sub_u32 s87, s{sHst}, s87")
        S(f"buffer_load_dword a236, v230, {srd(WS)}, s87 offen")
        if OPT['htouch'] > 1: S(f"buffer_load_dword a237, v230, {srd(WS)}, s87 offen offset:64")
    return S

WSF = 48; sDone = 87
def flag_try(soff, tag, last=False, first=False):
    S = Stream(); g = Stream()
    if last:
        g.waitvm(tag); g(f"s_cmp_eq_u32 s{sDone}, 0")
    else:
        g(f"s_getreg_b32 s{WSF+2}, hwreg(HW_REG_IB_STS)\ns_and_b32 s{WSF+2}, s{WSF+2}, 0xc0000f\ns_or_b32 s{WSF+2}, s{WSF+2}, s{sDone}")
        g.append(Pseudo('CMPVM', (tag, WSF+2)))
    g(f"s_cselect_b32 s{WSF+2}, {WS_SIZE}, 0")
    g(f"s_mov_b32 s{sDone}, 0" if last else f"s_cselect_b32 s{sDone}, 0x80000000, s{sDone}")
    g(f"buffer_store_dword v{vN}, v{vL0}, {srd(WSF)}, s{soff} offen sc1")
    S.atomic(g)
    return S
def flag_init():
    S = Stream(); S(f"s_mov_b64 s[{WSF}:{WSF+1}], s[{WS}:{WS+1}]\ns_mov_b32 s{sDone}, 0\ns_mov_b32 s{sW2neg}, {(32768 - 7*65536) & 0xffffffff:#x}"); return S

def dh_loads():
    S = Stream()
    if OPT['tiny']: return S
    g = Stream(); g(f"s_lshl_b32 s{sDv}, s2, 2\nv_mov_b32 v219, s{sDv}\nglobal_load_dword a248, v219, s[{sDptr}:{sDptr+1}]"); S.atomic(g)
    g = Stream(); g(f"s_lshl_b32 s{sDv}, s{sCH}, 12\nbuffer_load_dword a249, off, {srd(SSK)}, s{sDv}"); S.atomic(g)
    return S

def hcopy_ld():
    S = one(f"s_sub_u32 s{sHC}, s{sYs}, {YT:#x}")
    for t in (f"buffer_load_dwordx4 v[232:235], v{vL16}, {srd(SSK)}, s{sHC} offen nt", f"buffer_load_dword v240, v{vL16}, {srd(SSK)}, s{sHC} offen offset:16",
              f"buffer_load_dwordx4 v[236:239], v{vL16}, {srd(SSK)}, s{sHC} offen offset:1024 nt", f"buffer_load_dword v241, v{vL16}, {srd(SSK)}, s{sHC} offen offset:1040"):
        g = Stream(); g(t, "hc"); S.atomic(g)
    return S
def hcopy_wr():
    S = one(f"s_mul_i32 s{sT1}, s{sTH}, 8320\ns_lshl_b32 s{sT0}, s{sFH}, 11\ns_add_u32 s{sT1}, s{sT1}, s{sT0}\ns_add_u32 s{sT1}, s{sT1}, {HC+32}\nv_add_u32 v242, s{sT1}, v{vL16}")
    for i in range(2):
        e = 232 + 4*i; o = 244 + 4*i
        S(f"ds_write_b128 v242, v[{e}:{e+3}] offset:{1024*i}")
        for j in range(4): S(f"v_alignbit_b32 v{o+j}, v{e+j+1 if j < 3 else 240+i}, v{e+j}, 16")
        S(f"ds_write_b128 v242, v[{o}:{o+3}] offset:{4160+1024*i}")
    return S
def hcopy_dma():
    if OPT['hcreg']: return hcopy_ld()
    S = Stream()
    S(f"s_mul_i32 s{sT0}, s{sW}, 4160")
    dma_n(S, vL16, SSK, sHC, f"s_add_u32 m0, s{sT0}, {HC+32}", "hc", samev=True, nt=OPT['hcnt'])
    return S
def hpad():
    S = Stream()
    S(f"v_accvgpr_read_b32 v230, a248\nv_accvgpr_read_b32 v231, a249\ns_lshl_b32 s{sT1}, s{sTH}, 4\nv_lshrrev_b32 v230, s{sT1}, v230\nv_lshlrev_b32 v230, 16, v230\nv_lshlrev_b32 v231, 16, v231\nv_mul_lo_u32 v231, v231, s{sFH}\nv_readfirstlane_b32 s{sDv}, v230")
    S(f"s_mul_i32 s{sT1}, s{sW}, 4160\nv_and_b32 v230, 7, v{vL}")
    g = Stream(); g(f"v_cmp_eq_u32 vcc, 7, v230\nv_lshlrev_b32 v230, 2, v230\ns_add_u32 s{sT1}, s{sT1}, {HC}\nv_cndmask_b32 v231, 0, v231, vcc\nv_add_u32 v230, s{sT1}, v230\nds_write_b32 v230, v231")
    S.atomic(g)
    return S

def g1_set(n): return FR + 16 * (n % 3)
def g1_reads(n):
    if n >= 32: return []
    i, ks = divmod(n, 4)
    st = g1_set(n); slot = i & 3; hi = slot >> 1; off = (slot & 1) * 32768
    L = []
    for u in range(2):
        for rd in range(2):
            L.append(f"ds_read_b64_tr_b16 v[{st+4*u+2*rd}:{st+4*u+2*rd+1}], v{vWA+2*hi+u} offset:{off+16384+ks*4096+rd*1024}")
    for tt in range(2):
        L.append(f"ds_read_b128 v[{st+8+4*tt}:{st+11+4*tt}], v{vQA+4*hi+ks} offset:{off+tt*4096}")
    return [L[0], L[1], L[4], L[5], L[2], L[3]]

def stat_loads(att):
    return [f"buffer_load_dwordx2 v[{STL+4*att+2*tt}:{STL+4*att+2*tt+1}], v{vSTV}, {srd(WS)}, s{sStatC} offen offset:{tt*512} sc1" for tt in range(2)]

def gemm1():
    S = Stream(); CAP = OPT['cap']
    S.waitvm("c0"); S("s_barrier")
    stamp(S, "c0")
    for t in g1_reads(0): S(t)
    for t in g1_reads(1): S(t, 'fr1')
    for i in range(8):
        S.mark(f"c{i}a")
        for ks in range(4):
            n0 = 4*i + ks; st = g1_set(n0); first = n0 == 0
            rds = g1_reads(n0 + 2)
            bar = (ks == 1 and i < 7) or n0 == 30
            if n0 == 1: S.mark("c0h")
            if n0 > 0: S.waitlg(f'fr{n0}')
            small = [st] if n0 < 30 else ([st, g1_set(31)] if n0 == 30 else [])
            if OPT['cshare'] and n0 >= 4: small = []
            for n, (u, tt) in enumerate([(0, 0), (0, 1), (1, 0), (1, 1)]):
                acc = ACC + 16 * (2*u + tt)
                c = "0" if first else vr(acc, 16)
                if bar and n == 3:
                    if OPT['prof'] == 4 and OPT['fine'] and i in (1, 2): stamp(S, f"f{i}")
                    S.mark(f"c{i}m")
                    if i == OPT['kvpos'] and not OPT['kvfill'] and not OPT['kvaft']:
                        if OPT['cshare'] and OPT['cspub'] == 2: S.extend(cs_publish())
                        if OPT['prof'] == 4 and OPT['fine']: stamp(S, "k_a")
                        S.waitvm("kvd")
                        if OPT['prof'] == 4 and OPT['fine']: stamp(S, "k_w")
                        S("s_barrier")
                        if OPT['prof'] == 4 and OPT['fine']: stamp(S, "k_b")
                        S.extend(kvpre())
                        if OPT['prof'] in (2, 4): stamp(S, "kvp")
                    if i < 7: S.waitvm(f"c{i+1}")
                    if OPT['prof'] in (2, 4) or OPT['x_meas']: stamp(S, f"w{i}")
                    S.waitlg()
                S(f"v_mfma_f32_32x32x16_bf16 {vr(acc,16)}, v[{st+4*u}:{st+4*u+3}], v[{st+8+4*tt}:{st+11+4*tt}], {c}")
                k = 0
                if bar and n == 3:
                    S("s_barrier"); S.mark(f"c{i}b"); k = 2
                while rds and k < (3 if bar else 2): S(rds.pop(0), f'fr{n0+2}'); k += 1
                if n0 == 30 and n == 2 and not OPT['cshare']:
                    S(f"ds_write_b128 v{vCSW}, a[{CSACC}:{CSACC+3}]"); k += 1
                S.fill(CAP - k)
                if OPT['kvaft'] and n0 == 4*OPT['kvpos'] + 2 and n == 3:
                    S.mark("kvr"); S.extend(kvpre()[10:])
                    if OPT['prof'] in (2, 4): stamp(S, "kvp")
                if n == 0 and not (OPT['x_nocs'] and n0 > 0):
                    for sm in small:
                        c = "0" if first else ar(CSACC, 4)
                        S(f"v_mfma_f32_16x16x32_bf16 {ar(CSACC,4)}, v[{sm}:{sm+3}], {ar(SEL,4)}, {c}")
                        S.fill(1)
        S.mark(f"c{i}e")
    return S

CSL = 200
def cs_publish():
    S = Stream(); a, b = 250, 251; T = 240
    S(f"""
    s_and_b32 s{sCsN}, s{sJ}, 1
    s_xor_b32 s{sCsN}, s{sCsN}, 1
    s_lshl_b32 s{sCsN}, s{sCsN}, 1
    v_and_b32 v{a}, 15, v{vL}
    v_lshrrev_b32 v{b}, 4, v{vL}
    v_lshlrev_b32 v{b}, 5, v{b}
    v_lshl_add_u32 v{b}, v{a}, 7, v{b}
    v_mov_b32 v{T+1}, v{vN}
    v_mov_b32 v{T+3}, v{vN}
    v_mov_b32 v{T+5}, v{vN}
    v_mov_b32 v{T+7}, v{vN}
    """)
    g = Stream(); g(f"v_cmp_gt_u32 vcc, s{sCsN}, v{a}\nv_mov_b32 v{a}, {OOB}\nv_cndmask_b32 v{b}, v{a}, v{b}, vcc"); S.atomic(g)
    for r in range(4): S(f"v_accvgpr_read_b32 v{T+2*r}, a{CSACC+r}")
    S(f"buffer_store_dwordx4 v[{T}:{T+3}], v{b}, {srd(WS)}, s{sCsW} offen sc1\nbuffer_store_dwordx4 v[{T+4}:{T+7}], v{b}, {srd(WS)}, s{sCsW} offen offset:16 sc1")
    return S
def cs_loads():
    return [f"buffer_load_dwordx2 v[{CSL+2*i}:{CSL+2*i+1}], v{vCSW}, {srd(WS)}, s{sCsR} offen offset:{1024*i} sc1" for i in range(4)]
def cs_gather():
    S = Stream(); t = CSL + 1
    check_poll(S, cs_loads(), [CSL+1, CSL+3, CSL+5, CSL+7])
    S(f"""
    v_add_f32 v{CSL}, v{CSL}, v{CSL+2}
    v_add_f32 v{CSL+4}, v{CSL+4}, v{CSL+6}
    v_and_b32 v{CSL+2}, 31, v{vL}
    v_add_f32 v{CSL}, v{CSL}, v{CSL+4}
    v_lshlrev_b32 v{CSL+2}, 2, v{CSL+2}
    v_mov_b32 v{t}, v{CSL}
    s_lshl_b32 s{sCsN}, s{sW}, 7
    s_add_u32 s{sCsN}, s{sCsN}, {CS}
    v_permlane32_swap_b32 v{CSL}, v{t}
    v_add_u32 v{CSL+2}, s{sCsN}, v{CSL+2}
    v_add_f32 v{CSL}, v{CSL}, v{t}
    ds_write_b32 v{CSL+2}, v{CSL}
    """)
    return S

def cs_reads():
    S = Stream()
    for u in range(2):
        for j in range(4): S(f"ds_read_b128 v[{CSV+16*u+4*j}:{CSV+16*u+4*j+3}], v{vCSA+u} offset:{32*j}")
    return S

def stats_consume():
    S = Stream()
    check_poll(S, stat_loads(1), [STL+5, STL+7])
    for tt in range(2):
        a1 = STL + 4 + 2*tt
        S(f"v_and_b32 v{MR+2*tt+1}, 0xffff0000, v{a1}\nv_rcp_f32 v{MR+2*tt+1}, v{MR+2*tt+1}\nv_lshlrev_b32 v{MR+2*tt}, 16, v{a1}\nv_mul_f32 v{MR+2*tt+1}, {NLOG2E:#x}, v{MR+2*tt+1}")
    return S

def epi1(inserts):
    S = Stream(); n = 0; held = []
    for u in range(2):
        for tt in range(2):
            for s in range(2):
                acc = ACC + 16*(2*u+tt) + 8*s; cs = CSV + 16*u + 8*s; W = FR + 8*(n & 1); P = FR + 16 + 4*n
                mr = f"v[{MR+2*tt}:{MR+2*tt+1}]"
                for p in range(4): S(f"v_pk_fma_f32 v[{acc+2*p}:{acc+2*p+1}], v[{cs+2*p}:{cs+2*p+1}], {mr}, v[{acc+2*p}:{acc+2*p+1}] op_sel_hi:[1,0,1] neg_lo:[0,1,0] neg_hi:[0,1,0]")
                for p in range(4): S(f"v_pk_mul_f32 v[{W+2*p}:{W+2*p+1}], v[{acc+2*p}:{acc+2*p+1}], {mr} op_sel:[0,1] op_sel_hi:[1,1]")
                for p in range(8): S(f"v_exp_f32_e64 v{W+p}, v{W+p}")
                if held and n > OPT['uat']: S(held.pop(0), "hst")
                for p in range(4): S(f"v_pk_add_f32 v[{W+2*p}:{W+2*p+1}], v[{W+2*p}:{W+2*p+1}], 1.0 op_sel_hi:[1,0]")
                for p in range(8): S(f"v_rcp_f32_e64 v{W+p}, v{W+p}")
                if held and n > OPT['uat']: S(held.pop(0), "hst")
                for p in range(4): S(f"v_pk_mul_f32 v[{W+2*p}:{W+2*p+1}], v[{acc+2*p}:{acc+2*p+1}], v[{W+2*p}:{W+2*p+1}]")
                for p in range(4): S(f"v_cvt_pk_bf16_f32 v{P+p}, v{W+2*p}, v{W+2*p+1}")
                st = f"buffer_store_dwordx4 v[{P}:{P+3}], v{vL16}, {srd(WS)}, s{sHst+2*u+tt} offen" + (" offset:1024" if s else "") + [" sc1", "", " nt", " sc0"][OPT['x_hplain']]
                if OPT['hold'] and n <= OPT['uat']: held.append(st)
                else: S(st, "hst")
                if OPT['prof'] == 3: stamp(S, f"e{n}")
                if n in inserts: S.extend(inserts[n])
                n += 1
    for st in held: S(st, "hst")
    return S

CB = 128; CACC = 64; CAF = 96; NA = 6; UST = 220
def pollA_load(): return f"buffer_load_dword v228, v{vPA}, {srd(WS)}, s{sFAp} offen sc1"
sResA = 40; sResC = 41; SA = 64
def spollA_load(): return one(f"s_load_dwordx16 s[{SA}:{SA+15}], s[{WS}:{WS+1}], s{sFAp} glc")
def u_loads(block=False):
    S = Stream()
    if block: check_poll(S, [pollA_load()], [228]); S(f"s_mov_b32 s{sResA}, 0\ns_mov_b32 s{WSO+2}, {WS_SIZE}")
    elif block is False and OPT['packa']:
        pr = lambda r: f"s[{r}:{r+1}]"
        g = Stream(); g(f"s_xor_b64 {pr(SA)}, {pr(SA)}, {pr(sN2)}")
        for r in range(2, 16, 2): g(f"s_xor_b64 {pr(SA+r)}, {pr(SA+r)}, {pr(sN2)}\ns_or_b64 {pr(SA)}, {pr(SA)}, {pr(SA+r)}")
        g(f"s_cselect_b32 s{WSO+2}, 0, {WS_SIZE}\ns_cselect_b32 s{sResA}, 1, 0"); S.atomic(g)
    elif block is False: note_poll(S, 228, sResA)
    S(f"buffer_load_dwordx4 v[{UST}:{UST+3}], v{vL16}, {srd(WSO)}, s{sU} offen sc1")
    S(f"buffer_load_dwordx4 v[{UST+4}:{UST+7}], v{vL16}, {srd(WSO)}, s{sU} offen offset:1024 sc1")
    return S

DU = 96
def conv():
    S = Stream()
    repair(S, sResA, one(f"s_mov_b32 s{WSF+2}, {WS_SIZE}\ns_mov_b32 s{sDone}, 0x80000000\nbuffer_store_dword v{vN}, v{vL0}, {srd(WSF)}, s{sFBo} offen sc1"), pollA_load(), 228, u_loads(None))
    if OPT['prof'] == 3: stamp(S, "rep")
    S(f"ds_write_b128 v{vCU}, v[{UST}:{UST+3}]\nds_write_b128 v{vCU}, v[{UST+4}:{UST+7}] offset:1024")
    S.waitvm("hc"); S.waitlg(); S("s_barrier")
    stamp(S, "conv0")
    rA = lambda c, a: CB + 64*(c & 1) + 4*a
    rB = lambda c, b: CB + 64*(c & 1) + 32 + 4*b
    def ldA(c, a):
        m = 4*a + c
        return [f"ds_read2_b32 v[{rA(c,a)+2*h}:{rA(c,a)+2*h+1}], v{vCA+(m>>3)} offset0:{32*(m&7)+2*h} offset1:{32*(m&7)+2*h+1}" for h in range(2)]
    ldB = lambda c, b: [f"ds_read_b128 v[{rB(c,b)}:{rB(c,b)+3}], v{vCB} offset:{128*(4*b+c)}"]
    pairs = [(a, b) for a in range(8) for b in range(7, a - 1, -1)]
    def loads(c):
        L = ldA(c, 0)
        for b in range(7, -1, -1): L += ldB(c, b)
        for a in range(1, 8): L += ldA(c, a)
        return L
    q = loads(0)
    for t in q[:6]: S(t)
    q = q[6:]
    S.mark("cva"); seenT = set(); p = 0
    for c in range(4):
        nq = loads(c + 1) if c < 3 else []
        if c > 0 and OPT['cvwait']: S.waitlg(f"cl{c}")
        for i, (a, b) in enumerate(pairs):
            T = a + 7 - b; acc = CACC + 4*T
            cc = vr(acc, 4) if T in seenT else "0"; seenT.add(T)
            S(f"v_mfma_f32_16x16x32_bf16 {vr(acc,4)}, v[{rA(c,a)}:{rA(c,a)+3}], v[{rB(c,b)}:{rB(c,b)+3}], {cc}")
            k = 0
            if q:
                for _ in range(2 if len(q) > 14 else 1):
                    if q: S(q.pop(0)); k += 1
            elif nq and (c == 0 or i % 4 != 3) and i >= 1: S(nq.pop(0), f"cl{c+1}"); k += 1
            S.fill(2 - k)
            S.mark(f"cv{p}")
            if OPT['prof'] == 3 and p in (35, 71, 107): stamp(S, f"cv{p}")
            p += 1
        for t in nq: S(t, f"cl{c+1}")
    S.mark("cve")
    stamp(S, "conv1")
    return S

def conv_du():
    S = Stream(); U = 112
    for T in range(4): S(f"ds_read_b64 v[{U+2*T}:{U+2*T+1}], v{vCD} offset:{(3-T)*512}")
    S(f"v_mov_b32 v120, s{sDv}")
    return S

def conv_epi(tail):
    S = Stream(); R = 224; Y = 120; U = 112
    for T in range(4):
        a = DU + 4*T
        S(f"""v_and_b32 v{a}, 0xffff0000, v{U+2*T+1}
        v_lshlrev_b32 v{a+1}, 16, v{U+2*T+1}
        v_and_b32 v{a+2}, 0xffff0000, v{U+2*T}
        v_lshlrev_b32 v{a+3}, 16, v{U+2*T}""")
        if T == 1: S(f"s_cmp_eq_u32 s{sFH}, 0\ns_cbranch_scc0 L_odd"); break
    def half(T_, keep, send):
        for T in range(4): T_(f"ds_write_b128 v{vCX}, v[{send+4*T}:{send+4*T+3}] offset:{1024*T}")
        for T in (2, 3):
            a = DU + 4*T
            T_(f"""v_and_b32 v{a}, 0xffff0000, v{U+2*T+1}
            v_lshlrev_b32 v{a+1}, 16, v{U+2*T+1}
            v_and_b32 v{a+2}, 0xffff0000, v{U+2*T}
            v_lshlrev_b32 v{a+3}, 16, v{U+2*T}""")
        for p in range(8): T_(f"v_pk_fma_f32 v[{DU+2*p}:{DU+2*p+1}], v[{DU+2*p}:{DU+2*p+1}], v[120:121], v[{keep+2*p}:{keep+2*p+1}] op_sel_hi:[1,0,1]")
    half(S, CACC, CACC + 16)
    S("L_oddback:")
    O = Stream(); O("L_odd:"); half(O, CACC + 16, CACC); O("s_branch L_oddback"); rare.extend(O)
    S.waitlg(); S("s_barrier")
    for T in range(4): S(f"ds_read_b128 v[{R+4*T}:{R+4*T+3}], v{vCXR} offset:{1024*T}")
    S.extend(tail)
    for pr in range(2):
        for T in (2*pr, 2*pr+1):
            a = DU + 4*T
            S(f"v_pk_add_f32 v[{a}:{a+1}], v[{a}:{a+1}], v[{R+4*T}:{R+4*T+1}]\nv_pk_add_f32 v[{a+2}:{a+3}], v[{a+2}:{a+3}], v[{R+4*T+2}:{R+4*T+3}]")
            y = Y + 4*pr + 2*(T & 1)
            S(f"v_cvt_pk_bf16_f32 v{y}, v{a}, v{a+1}\nv_cvt_pk_bf16_f32 v{y+1}, v{a+2}, v{a+3}")
        y = Y + 4*pr
        S(f"v_permlane16_swap_b32 v{y}, v{y+2}\nv_permlane16_swap_b32 v{y+1}, v{y+3}")
        S(f"buffer_store_dwordx4 v[{y}:{y+3}], v{vCY}, {srd(WS)}, s{sYs} offen" + (" offset:1024" if pr else "") + " sc1", "yst")
    return S

HR = 128; XF = 224; SF = 240; TP = 192
def pollB_load(): return f"buffer_load_dword v4, v{vPB}, {srd(WS)}, s{sFBp} offen sc1"
def pollC_load(): return f"buffer_load_dword v5, v{vPC}, {srd(WS)}, s{sFCp} offen sc1"
sFBq = sFBp
def spollB_load():
    return one(f"s_load_dwordx4 s[8:11], s[{WS}:{WS+1}], s{sFBp} glc\ns_load_dwordx4 s[88:91], s[{WS}:{WS+1}], s{sFBp} offset:16 glc")
def spollB_check(S):
    k = nrare[0]; nrare[0] += 1
    g = Stream()
    n2 = f"s[{sN2}:{sN2+1}]"
    if OPT['hto']: g("s_cmp_lg_u64 s[8:9], 0")
    else:
        g(f"s_mov_b32 s91, s90\ns_xor_b64 s[8:9], s[8:9], {n2}")
        for r in (10, 88, 90): g(f"s_xor_b64 s[{r}:{r+1}], s[{r}:{r+1}], {n2}\ns_or_b64 s[8:9], s[8:9], s[{r}:{r+1}]")
    g(f"s_cbranch_scc1 L_rare{k}\nL_back{k}:")
    S.atomic(g)
    rare(f"L_rare{k}:\ns_mov_b32 s{sCnt}, 0")
    if OPT['prof']: rare(f"v_writelane_b32 v{vPROF}, 1, {52+k}")
    rare(f"L_rl{k}:\ns_sleep 1\nbuffer_load_dword v4, v{vPB}, {srd(WS)}, s{sFBq} offen sc1\ns_waitcnt vmcnt(0)\nv_cmp_ne_u32 vcc, s{sN}, v4")
    rare(f"s_nop 1\ns_cbranch_vccz L_back{k}\ns_add_u32 s{sCnt}, s{sCnt}, 1\ns_cmp_lt_u32 s{sCnt}, 0x4000\ns_cbranch_scc1 L_rl{k}\ns_branch L_back{k}")
def htouch_pro():
    S = Stream(); a, b = 6, 7
    g = Stream(); g(f"v_cmp_lt_u32 vcc, 27, v{vL}\nv_lshlrev_b32 v{a}, 10, v{vL}\nv_mov_b32 v{b}, {112*1024 - 28*1024}\nv_cndmask_b32 v{b}, 0, v{b}, vcc\nv_add_u32 v{a}, v{a}, v{b}"); S.atomic(g)
    g = Stream(); g(f"v_cmp_lt_u32 vcc, 55, v{vL}\nv_mov_b32 v{b}, {OOB}\ns_min_u32 s93, s{sHL}, s{sHLo}\nv_cndmask_b32 v{a}, v{a}, v{b}, vcc"); S.atomic(g)
    S(f"s_lshl_b32 s{sT1}, s{sRot}, 12\ns_sub_u32 s93, s93, s{sT1}\ns_lshl_b32 s{sT1}, s{sCB2}, 7\ns_add_u32 s93, s93, s{sT1}")
    return S
def htouch_go():
    S = Stream(); g = Stream(); n2 = f"s[{sN2}:{sN2+1}]"
    g(f"s_mov_b32 s91, s90\ns_xor_b64 s[8:9], s[8:9], {n2}")
    for r in (10, 88, 90): g(f"s_xor_b64 s[{r}:{r+1}], s[{r}:{r+1}], {n2}\ns_or_b64 s[8:9], s[8:9], s[{r}:{r+1}]")
    g(f"s_cselect_b32 s{WSO+2}, 0, {WS_SIZE}\nbuffer_load_dword a236, v6, {srd(WSO)}, s93 offen sc1")
    S.atomic(g)
    return S
def hload(n):
    D = OPT['hring']; p, k = divmod(n, 28); so = sHL if p == 0 else sHLo
    T = Stream(); g = Stream()
    g(f"buffer_load_dwordx4 v[{HR+4*(n%D)}:{HR+4*(n%D)+3}], v{vL16}, {srd(WS)}, s{so} offen" + (f" offset:{(k&3)*1024}" if k & 3 else "") + " sc1")
    if k & 3 == 3 and k < 27: g(f"s_cmp_eq_u32 s{sRot}, {6-(k>>2)}\ns_cselect_b32 s{sCnt}, s{sNeg}, 4096\ns_add_u32 s{so}, s{so}, s{sCnt}")
    T.atomic(g)
    return T
def gemm2():
    S = Stream(); D = OPT['hring']; NT = OPT['ntail']
    S.mark("g2s")
    def mf(n, u):
        p, k = divmod(n, 28); h = HR + 4*(n % D)
        acc = ACC + 32*(1-p) + 16*u; a = (2*k + u) * 4
        S(f"v_mfma_f32_32x32x16_bf16 {vr(acc,16)}, {ar(a,4)}, v[{h}:{h+3}], {'0' if k == 0 else vr(acc, 16)}")
    for n in range(56 - NT):
        for u in range(2):
            mf(n, u); used = 0
            if u == 1 and n + D < 56:
                T = flatten(hload(n + D)); S.extend(T); used = len(T)
            S.fill(5 - used)
        S.mark(f"g2_{n}")
        if (OPT['prof'] > 1 or OPT['x_meas']) and n in (0, 13, 27, 34, 41): stamp(S, f"g2_{n}")
    for n in range(56 - NT, 56): mf(n, 1); S.fill(5)
    S.mark("g2t")
    F = ACC + 16; Ee = ACC + 32
    tail = [f"ds_write_b128 v{vRW}, v[{F+4*j}:{F+4*j+3}] offset:{32768+1024*j}" for j in range(4)]
    for i, n in enumerate(range(56 - NT, 56)):
        mf(n, 0)
        if i == min(1, NT - 1):
            for t in tail: S(t)
    S.waitlg(); S("s_barrier")
    for j in range(4): S(f"ds_read_b128 v[{F+4*j}:{F+4*j+3}], v{vRR+2} offset:{32768+1024*j}")
    return S

def red_early_w():
    S = Stream()
    for u in range(2):
        for j in range(4): S(f"ds_write_b128 v{vRW}, v[{ACC+32+16*u+4*j}:{ACC+35+16*u+4*j}] offset:{4096*u+1024*j}")
    g = Stream(); g.waitlg(); g("s_barrier"); S.atomic(g)
    return S
def red_early_r():
    S = Stream(); A = ACC + 32; B = ACC + 48
    for j in range(4): S(f"ds_read_b128 v[{A+4*j}:{A+4*j+3}], v{vRR} offset:{1024*j}")
    for j in range(4): S(f"ds_read_b128 v[{B+4*j}:{B+4*j+3}], v{vRR+1} offset:{4096+1024*j}")
    for r in range(16): S(f"v_add_f32 v{A+r}, v{A+r}, v{B+r}")
    return S

FS = 8
def prep_x():
    S = Stream()
    g = Stream()
    g(f"s_add_u32 m0, s{sM0b}, {E}\ns_add_u32 s{sT0}, s{sXO}, 15360\nbuffer_load_dwordx4 v{vXD}, {srd(QF)}, s{sXO} offen lds")
    g(f"buffer_load_dwordx4 v{vXD}, {srd(QF)}, s{sT0} offen offset:1024 lds", "xd")
    S.atomic(g)
    S(f"buffer_load_dwordx2 v[{FS}:{FS+1}], v{vSTV}, {srd(WS)}, s{sStatF} offen sc1")
    return S
def prep_x2():
    S = Stream(); XR = 16
    check_poll(S, [f"buffer_load_dwordx2 v[{FS}:{FS+1}], v{vSTV}, {srd(WS)}, s{sStatF} offen sc1"], [FS+1])
    S(f"v_and_b32 v{FS+1}, 0xffff0000, v{FS}\nv_rcp_f32 v{FS+1}, v{FS+1}\nv_lshlrev_b32 v{FS}, 16, v{FS}\nv_mul_f32 v{FS+2}, v{FS+1}, v{FS+1}\nv_mul_f32 v{FS+1}, {NLOG2E:#x}, v{FS+1}")
    S.waitvm("xd")
    for j in range(4):
        if j: S(f"v_xor_b32 v{FS+3}, {16*j}, v{vXA}")
        S(f"ds_read_b64 v[{XR+2*j}:{XR+2*j+1}], v{FS+3 if j else vXA}")
    for q in range(8):
        S(f"v_lshlrev_b32 v{XF+2*q}, 16, v{XR+q}\nv_and_b32 v{XF+2*q+1}, 0xffff0000, v{XR+q}")
    for r in range(16): S(f"v_sub_f32 v{SF+r}, v{XF+r}, v{FS}")
    for r in range(16): S(f"v_mul_f32 v{SF+r}, v{SF+r}, v{FS+2}")
    return S
YSR = ACC + 48
def prep_y(note=True):
    S = Stream(); YS = YSR
    if note: note_poll(S, 5, sResC)
    S(f"s_add_u32 s{sT0}, s{sYl}, 65536")
    S(f"buffer_load_dwordx4 v[{YS}:{YS+3}], v{vYL}, {srd(WSO)}, s{sYl} offen sc1\nbuffer_load_dwordx4 v[{YS+4}:{YS+7}], v{vYL}, {srd(WSO)}, s{sT0} offen sc1")
    return S
YR = 16
def prep_y2():
    S = Stream(); YS = YSR
    S(f"ds_write_b128 v{vYW}, v[{YS}:{YS+3}]\nds_write_b128 v{vYW}, v[{YS+4}:{YS+7}] offset:1024")
    for j in range(4): S(f"ds_read_b64_tr_b16 v[{YR+2*j}:{YR+2*j+1}], v{vYA} offset:{512*j}")
    return S

def final():
    S = Stream(); A = ACC; F = ACC + 16; Ee = ACC + 32; W = HR; P = HR + 16; Yf = HR + 32
    stamp(S, "g2end")
    pr = lambda b, p: f"v[{b+2*p}:{b+2*p+1}]"
    mr = f"v[{FS}:{FS+1}]"
    for p in range(8): S(f"v_pk_add_f32 {pr(A,p)}, {pr(A,p)}, {pr(Ee,p)}")
    for p in range(8): S(f"v_pk_add_f32 {pr(A,p)}, {pr(A,p)}, {pr(F,p)}")
    for p in range(8): S(f"v_pk_mul_f32 {pr(W,p)}, {pr(A,p)}, {mr} op_sel:[0,1] op_sel_hi:[1,1]")
    for p in range(16): S(f"v_exp_f32_e64 v{W+p}, v{W+p}")
    S.extend(prep_y2())
    for p in range(8): S(f"v_pk_add_f32 {pr(W,p)}, {pr(W,p)}, 1.0 op_sel_hi:[1,0]")
    for p in range(16): S(f"v_rcp_f32_e64 v{W+p}, v{W+p}")
    for p in range(8): S(f"v_pk_mul_f32 {pr(A,p)}, {pr(A,p)}, {pr(SF,p)}")
    for p in range(8): S(f"v_pk_mul_f32 {pr(A,p)}, {pr(A,p)}, {pr(W,p)}")
    repair(S, sResC, Stream(), pollC_load(), 5, cat(prep_y(False), prep_y2()))
    for j in range(4):
        for q in (2*j, 2*j+1): S(f"v_lshlrev_b32 v{Yf+2*q}, 16, v{YR+q}\nv_and_b32 v{Yf+2*q+1}, 0xffff0000, v{YR+q}")
        for p in (2*j, 2*j+1): S(f"v_pk_fma_f32 {pr(W,p)}, {pr(A,p)}, {pr(Yf,p)}, {pr(XF,p)}")
        for p in (2*j, 2*j+1): S(f"v_cvt_pk_bf16_f32 v{P+p}, v{W+2*p}, v{W+2*p+1}")
        S(f"ds_write_b64 v{vOW}, v[{P+2*j}:{P+2*j+1}] offset:{16*j}")
    S(f"s_add_u32 s{sT0}, s{sXO}, 16384")
    S(f"ds_read_b128 v[{W}:{W+3}], v{vOR}\nds_read_b128 v[{W+4}:{W+7}], v{vOR} offset:1280")
    S(f"buffer_store_dwordx4 v[{W}:{W+3}], v{vOS}, {srd(OUT)}, s{sXO} offen\nbuffer_store_dwordx4 v[{W+4}:{W+7}], v{vOS}, {srd(OUT)}, s{sT0} offen")
    if OPT['prof']:
        stamp(S, "outst"); S("s_waitcnt vmcnt(0)"); stamp(S, "end")
        S(f"s_lshl_b32 s{sT0}, s2, 2\ns_add_u32 s{sT0}, s{sT0}, s{sW}\ns_lshl_b32 s{sT0}, s{sT0}, 8\ns_add_u32 s{sT0}, s{sT0}, {PROF}\nv_lshlrev_b32 v{vT}, 2, v{vL}")
        S(f"buffer_store_dword v{vPROF}, v{vT}, {srd(WS)}, s{sT0} offen")
    return S

def stS(name):
    s = Stream(); stamp(s, name); return s
def cat(*ss):
    o = Stream()
    for s in ss: o.extend(s)
    return o
def one(t, tag=None):
    s = Stream(); s(t, tag); return s

def spread(S, items, every):
    o = Stream(); items = list(items); n = 0
    for x in S:
        o.append(x); n += 1
        if items and n % every == 0:
            while items and items[0].cls == 'pseudo' and items[0].op != 'GROUP': o.append(items.pop(0))
            if items: o.append(items.pop(0))
    o.extend(items)
    return o

def build():
    assert not (OPT['cshare'] and OPT['map47'])
    P = Stream()
    P.extend(entry())
    c1 = chunk_dma(1); c2 = chunk_dma(2); kp = OPT['kvpos']; g1f = []
    st = stats()
    pre = cat(one(pollA_load().replace("v228,", "a233,")), one(pollB_load().replace("v4,", "a234,")), one(pollC_load().replace("v5,", "a235,"))) if OPT['pretouch'] else Stream()
    br = one(f"s_cmp_ge_u32 s{sCB1}, 14\ns_cbranch_scc1 L_spare1")
    if kp >= 2:
        P.extend(spread(cat(*[coff(i) for i in range(2, 8)], setup(), kv_pro()), c1[:OPT['c1n']], 20))
        stamp(P, "setup")
        P.extend(st[:16]); P.extend(spread(Stream(st[16:]), cat(c1[OPT['c1n']:], c2[:OPT['c2n']]), 7)); P.extend(br)
        seq = cat(c2[OPT['c2n']:], kv_dma(), dh_loads(), chunk_dma(3), Stream([Pseudo('GATE', 'c0b')]), chunk_dma(4), Stream([Pseudo('GATE', 'c1b')]), chunk_dma(5) if OPT['c5e'] else Stream())
        isl = lambda it: any(y.cls in ('dma', 'vmem_ld') for y in (it.arg if (it.cls == 'pseudo' and it.op == 'GROUP') else [it]))
        li = [i for i, it in enumerate(seq) if isl(it)]
        a0 = li[OPT['r0']]; a1 = li[OPT['r1'] - (3 if OPT['tiny'] else 0)]
        ng = lambda st: Stream([x for x in st if not (x.cls == 'pseudo' and x.op == 'GATE')])
        assert not any(x.op == 'GATE' for x in seq[:a0]) and not any(x.op == 'GATE' and x.arg == 'c1b' for x in seq[:a1])
        g1f.append(("c0a", "c0m", Stream(seq[:a0]), (OPT['p0'],)))
        g1f.append(("c0b", "c1m", ng(seq[a0:a1]), (OPT['p1'],)))
        g1f.append(("c1b", "c2m", ng(seq[a1:]), (OPT['p2'],)))
        g1f.append(("c1b", "c2m", cat(setup_b(), kv_addr())))
    else:
        kd = kv_dma(); n0 = OPT['kvn']
        P.extend(kv_pro())
        early = Stream(kd[:n0]) if kp == 0 else Stream(c1[:OPT['c1n']])
        P.extend(spread(cat(*[coff(i) for i in range(2, 8)], setup(), kv_addr()), early, 20))
        stamp(P, "setup")
        late = cat(kd[n0:], dh_loads(), c1) if kp == 0 else cat(c1[OPT['c1n']:], kd, dh_loads())
        P.extend(st[:16]); P.extend(spread(Stream(st[16:]), late, 6)); P.extend(br)
        g1f.append(("c0a", "c0m", setup_b()))
        if kp == 0:
            g1f.append(("c0a", "c0m", c2, (OPT['p0'],)))
            g1f.append(("c0b", "c1m", chunk_dma(3), (OPT['p1'],)))
            g1f.append(("c1b", "c2m", chunk_dma(4), (OPT['p2'],)))
        else:
            g1f.append(("c0a", "c0m", Stream(c2[:4]), (OPT['p0'],)))
            g1f.append(("c0b", "c1m", cat(c2[4:], chunk_dma(3)), (OPT['p1'],)))
            g1f.append(("c1b", "c2m", chunk_dma(4), (OPT['p2'],)))
    D = Stream()
    for c in range(6 if OPT['c5e'] else 5, 8):
        D.gate(f"c{c-4}b"); D.extend(chunk_dma(c))
    D.gate(OPT['stat_at']); D.pace(OPT['tpp']); D.extend(cat(*[one(t) for t in stat_loads(1) + (cs_loads() if OPT['cshare'] and OPT['cspub'] == 1 else [])], pre, htouch(), w2touch(range(OPT['tp'], 7)) if OPT['tp'] >= 0 else Stream())); D.pace(OPT['w2pace'])
    W2S = cat(Stream([Pseudo('GATE', 'c3b' if (OPT['kvfill'] or OPT['kvaft']) else f'c{kp}b')]), hcopy_dma(), Stream([Pseudo('GATE', 'c4b')]), w2_dma(0), Stream([Pseudo('GATE', 'c5b')]), Stream([Pseudo('CSL')]), w2_dma(1), Stream([Pseudo('GATE', 'c6b')]), w2_dma(2), w2_dma(3), cat(Stream([Pseudo('WAITLG', 'tr0')]), w2_dma(4)) if OPT['n2'] > 36 else Stream())
    isld = lambda it: it.cls == 'pseudo' and it.op == 'GROUP' and any(y.cls in ('dma', 'vmem_ld') for y in it.arg)
    idx = [i for i, it in enumerate(W2S) if isld(it)]
    cut1 = idx[OPT['n1']] if OPT['n1'] < len(idx) else len(W2S); cut2 = idx[OPT['n2']] if OPT['n2'] < len(idx) else len(W2S)
    for it in W2S[:cut1]:
        if it.cls == 'pseudo' and it.op == 'CSL':
            if OPT['cshare'] and OPT['cspub'] > 1:
                D.pace(1); D.extend(cat(*[one(t) for t in cs_loads()])); D.pace(OPT['w2pace'])
        else: D.append(it)
    g1f.append((OPT['dstart'], "c7m", D, (OPT['dp'],)))
    na, nb = (("c0a", "c0m"), ("c0b", "c1a")) if OPT['nonce_at'] == 0 else (("c0b", "c1a"), ("c1b", "c2a"))
    g1f.append((*na, nonce_get(), 1))
    g1f.append((*nb, cat(nonce_use(), stats_store()), 1))
    g1f.append(("c1a", "c1m", flag_init(), 1))
    if OPT['cshare']:
        if OPT['cspub'] == 1: g1f.append(("c1a", "c1m", cs_publish()))
        if OPT['cspub'] == 3: g1f.append(("c2b", "c3a", cs_publish()))
        g1f.append((OPT['csg'], "c7m", cs_gather()))
    ke = kp
    if OPT['kvaft']: g1f.append((f"c{kp}b", "kvr", Stream(kvpre()[:10]), 1))
    if OPT['kvfill']:
        ke = OPT['kvend']; g1f.append(("c2b", f"c{ke}m", kvpre_np()))
    pts = [(f"c{c}{x}", f"c{c}{y}") for c in range(ke + 1, 8) for x, y in (("a", "m"), ("b", "e"))][OPT['ft0']:OPT['ft0'] + 4]
    lastA = len(pts) == 4
    for i, (a, b) in enumerate(pts): g1f.append((a, b, flag_try(sFAo, "kv1", lastA and i == 3), 1))
    g1f.append(((f"c{ke}b", "c7a") if OPT['kvfill'] else ("c3a", "c5a")) + (setup_c(),) if not OPT['x_late'] else ("c7b", "c7e", setup_c())); g1f.append(("c6a", "c7m", hoffs()[:1] if OPT['packa'] else hoffs()))
    g1f.append(("c7a", "c7m", stats_consume()))
    if OPT['hcreg']: g1f.append((OPT['hcw'], "c7m", hcopy_wr()))
    if OPT['hto']: g1f.append(("c5b", "c6m", htouch_pro()))
    if OPT['trg1'] >= 1: g1f.append((OPT['tr0at'], "c7e", w2_tr(0)))
    g1f.append((f"c{max(4, ke)}b", f"c{max(4, ke)+1}m", hpad()))
    g1f.append(("c7b", "c7e", cat(cs_reads(), spollA_load() if OPT['packa'] else one(pollA_load())) if OPT['pat'] < 0 else cs_reads(), 1))
    P.extend(merge(gemm1(), g1f))
    stamp(P, "g1end")
    ins = {OPT['uat']: u_loads()}
    if OPT['pat'] >= 0: ins[OPT['pat']] = spollA_load() if OPT['packa'] else one(pollA_load())
    if not lastA: P.extend(flag_try(sFAo, "kv1", True))
    if OPT['packa']: ins[OPT['uat']].extend(hoffs2())

    nog = lambda st: Stream([x for x in st if not (x.cls == 'pseudo' and x.op in ('GATE', 'CSL'))])
    P.extend(spread(epi1(ins), nog(W2S[cut1:cut2]), OPT['esp']))
    stamp(P, "epi1")
    P("L_join:")
    W = lambda t: Stream([Pseudo('WAITLG', t)])
    G = lambda m: Stream([Pseudo('GATE', m)])
    fb = OPT['flagB_at']; t0, t1, t2, t3 = OPT['t0'], OPT['t1'], OPT['t2'], OPT['t3']; fs = OPT['fbs']; fn = OPT['fbn']
    cf = [(f"cv{fb+fs*i}", f"cv{fb+fs*i+6}", flag_try(sFBo, "hst", i == fn - 1), 1) for i in range(fn)]
    cf += [("cva", "cve", cat(G(f"cv{OPT['d3']}"), nog(W2S[cut2:]), G(f"cv{OPT['d4']}"), cat(W('tr0'), w2_dma(4)) if (OPT['n2'] <= 36 and OPT['g2w'] > 4) else Stream(), cat(W('tr1'), w2_dma(5)) if OPT['g2w'] > 5 else Stream(), cat(W('tr2'), w2_dma(6)) if OPT['g2w'] > 6 else Stream()), (OPT['cvpace'],)),
          (f"cv{OPT['pb']}", "cve", spollB_load() if OPT['packb'] else one(pollB_load()), 1)]
    if OPT['hto']: cf.append((f"cv{OPT['hto']}", "cve", htouch_go(), 1))
    if OPT['trg1'] < 1: cf.append((f"cv{t0}", f"cv{t1}", w2_tr(0)))
    if OPT['trg1'] < 2: cf.append((f"cv{t1}", f"cv{t2}", w2_tr(1)))
    cf += [(f"cv{t2}", f"cv{t3}", w2_tr(2)), (f"cv{OPT['t4']}", "cv140", w2_tr(3)), ("cv130", "cve", conv_du())]
    if OPT['trg1'] == 2: P.extend(w2_tr(1))
    HL = cat(*[hload(n) for n in range(OPT['hring'])])
    chk = Stream()
    if OPT['packb']: spollB_check(chk)
    else: check_poll(chk, [pollB_load()], [4])
    stamp(chk, "hflag")
    hc = OPT['hcv']
    if hc: cf.insert(0, (f"cv{OPT['hcat']}", "cve", cat(chk, HL[:hc]), (OPT['hcp'],)))
    post = Stream()
    if OPT['x_cv']:
        keep = []
        for f in cf:
            txt = " ".join(x.text for x in flatten(f[2]) if x.cls != 'pseudo')
            kind = 1 if " lds" in txt else 2 if "tr_b16" in txt else 4 if "s_getreg" in txt or "s_cmp_eq_u32 s87" in txt else 8
            if OPT['x_cv'] & kind: post.append((kind, f[2]))
            else: keep.append(f)
        cf = keep
    P.extend(merge(conv(), cf))
    for kind in (4, 2, 1, 8):
        for k2, st2 in post:
            if k2 == kind and not (kind == 2 and any(x.tag == 'tr3' for x in st2)): P.extend(nog(st2))
    for k2, st2 in post:
        if k2 == 2 and any(x.tag == 'tr3' for x in st2): P.extend(nog(st2))
    P.extend(W('tr3'))
    if OPT['hearly']:
        ce = conv_epi(Stream())
        ib = [i for i, x in enumerate(ce) if x.op == 's_barrier'][0]
        h1 = OPT['he1']; h2 = OPT['he2']
        P.extend(Stream() if hc else chk); P.extend(HL[hc:h1]); P.extend(ce[:ib]); P.extend(HL[h1:h2]); P.extend(spread(Stream(ce[ib:]), HL[h2:OPT['hearly']], 2))
        stamp(P, "conv2"); P.extend(HL[OPT['hearly']:]); P.extend(prep_x())
    else:
        P.extend(conv_epi(prep_x())); stamp(P, "conv2")
        P.extend(chk)
        if OPT['pre2']:
            work = cat(w2_tr(4) if OPT['pre2'] > 1 else Stream(), prep_x2())
            P.extend(HL[:OPT['hl1']]); P.extend(spread(work, HL[OPT['hl1']:OPT['hl0']], OPT['psp']))
        else:
            P.extend(HL[:OPT['hl0']])
            if OPT['trmid']: P.extend(cat(w2_tr(4), w2_tr(5), w2_tr(6)))
            if OPT['xmid']: P.extend(prep_x2())
            P.extend(HL[OPT['hl0']:]); P.extend(flag_store(sFCo, WS, "yst"))
    global SPARE_W2
    SPARE_W2 = nog(W2S[:cut2])
    if OPT['trg1'] >= 1:
        iw = [i for i, x in enumerate(SPARE_W2) if x.cls == 'pseudo' and x.op == 'WAITLG']
        iw = iw[0] if iw else len(SPARE_W2)
        SPARE_W2 = cat(SPARE_W2[:iw], w2_tr(0), SPARE_W2[iw:])
    D = OPT['ylag']
    gf = [(f"g2_{x}", f"g2_{x+1}", flag_try(sFCo, "yst", x == 15), 1) for x in (0, 3, 6, 10, 15)] if OPT['hearly'] else []
    gw = OPT['g2w']
    if OPT['pre2']:
        gf.append(("g2s", "g2_8", Stream(HL[OPT['hl0']:]), (2,)))
        gf += [(f"g2_{x}", f"g2_{x+1}", flag_try(sFCo, "yst", x == 2), 1) for x in (2,)]
        gf.append(("g2_1", "g2_14", cat(*[w2_tr(b) for b in range(4 + (OPT['pre2'] > 1), 7)])))
    elif OPT['trmid'] and not OPT['hearly']: pass
    elif OPT['trpre']: P.extend(cat(*[w2_tr(b) for b in range(4, gw)]))
    else: gf.append(("g2s", "g2_14", cat(*[w2_tr(b) for b in range(4, gw)])))
    if gw < 7:
        gf.append((f"g2_{OPT['gw0']}", "g2_20", cat(*[w2_dma(b) for b in range(gw, 7)]), (OPT['gwp'],)))
        for b in range(gw, 7): gf.append((f"g2_{4*b-5}", f"g2_{4*b-1}", w2_tr(b)))
    gf += [
          ("g2_14", "g2_27", Stream() if (OPT['xmid'] and not OPT['hearly']) else prep_x2()),
          ("g2_28", "g2_33", red_early_w()),
          ("g2_35", "g2_44", red_early_r()),
          (f"g2_{OPT['yat']}", f"g2_{OPT['yat']+1}", one(pollC_load())),
          (f"g2_{OPT['yat']+D}", "g2t", prep_y(), 1)]
    P.extend(merge(gemm2(), gf))
    P.extend(final())
    if OPT['x_meas']:
        P(f"s_cmp_ge_u32 s{sCB1}, 14\ns_cbranch_scc1 L_end")
        if OPT['x_wg'] >= 0: P(f"s_and_b32 s64, s2, {OPT['x_wgm']}\ns_cmp_lg_u32 s64, {OPT['x_wg']}\ns_cbranch_scc1 L_end")
        P(f"v_readlane_b32 s66, v{vPROF}, 0\nL_pad:\ns_memrealtime s[64:65]\ns_waitcnt lgkmcnt(0)\ns_sub_u32 s64, s64, s66\ns_cmp_lt_u32 s64, 2000\ns_cbranch_scc1 L_pad")
    if OPT['x_pad']:
        P(f"L_pad:\ns_memrealtime s[64:65]\ns_waitcnt lgkmcnt(0)\ns_sub_u32 s64, s64, s{sN}\ns_cmp_lt_u32 s64, {OPT['x_pad']}\ns_cbranch_scc1 L_pad")
    P("L_end:\ns_endpgm")
    P = flatten(P)
    kv_last = max(i for i, x in enumerate(P) if x.tag == 'kvd')
    sb_first = min(i for i, x in enumerate(P) if x.cls == 'salu' and f"s{sFBo}" in x.wr and 'mov' not in x.op)
    assert kv_last < sb_first, "k/v SRDs overwritten before use"
    last = None
    for x in P:
        if x.cls == 'salu' and 'm0' in x.wr: last = x.text
        if x.cls == 'dma' and x.arg is not None: assert x.arg == last, ("m0 changed under a DMA group", x.text, last)
        if x.cls == 'label' and x.text.startswith('L_join'): last = None
    c7_last = max(i for i, x in enumerate(P) if x.tag == 'c7')
    ho_first = min(i for i, x in enumerate(P) if x.text.startswith(f"s_mov_b64 s[{WSO}:{WSO+1}], s[{WS}"))
    assert c7_last < ho_first, "GEMM1 SRDs / offsets overwritten before the last chunk load"
    P = autowait(P); P = hazards(P)
    P.extend(hazards(autowait(flatten(spare1()))))
    R = hazards(flatten(rare))
    P.extend(R); P("L_codeend:")
    P = align8(P)
    return P

HEAD = open("cdna_kernels/" + NAME + ".s.ref").read().split("; Override launch")[0]
DOC = """; One persistent launch, 256 workgroups (one per CU), 4 waves each. Per workgroup, in order:
;   2. GEMM1 128x128 tile on raw x (LayerNorm folded into the epilogue via the column sums of w1), SiLU, h in MFMA fragment order
"""
def emit():
    P = build()
    size = sum(x.size for x in P)
    o = HEAD + f"; @launch grid=(256,1,1) block=(256,1,1) lds={LDS_BYTES}\n"
    o += DOC
    o += f'.amdgcn_target "amdgcn-amd-amdhsa--gfx950"\n.text\n.globl {NAME}_kernel\n.p2align 8\n.type {NAME}_kernel,@function\n{NAME}_kernel:\n'
    o += "\n".join(l for l in text(P).split("\n") if not l.strip().startswith("; MARK"))
    o += f""".section .rodata,"a"
.p2align 6
.amdhsa_kernel {NAME}_kernel
  .amdhsa_next_free_vgpr 512
  .amdhsa_next_free_sgpr 102
  .amdhsa_accum_offset 256
  .amdhsa_group_segment_fixed_size 0
  .amdhsa_kernarg_size 96
  .amdhsa_user_sgpr_count 2
  .amdhsa_user_sgpr_kernarg_segment_ptr 1
  .amdhsa_system_sgpr_workgroup_id_x 1
.end_amdhsa_kernel
"""
    return o, size

if __name__ == "__main__":
    o, size = emit()
    open(sys.argv[1], "w").write(o)
    print("code bytes (estimate):", size, "stamps:", stamp_names)
    open(sys.argv[1] + ".stamps", "w").write(",".join(stamp_names))
```

```python
import sys, struct
from ir import *

NAME = "recurrent_scan__ssm_conv_h3__dense_activation_silu__prompt"
OPT = dict(rw1=38, rwl=1, packc=1, hto=0, pre2=1, hl1=1, psp=5, hcreg=1, hcw='c6b', kvaft=1, spb=0, t4=100, kvfill=0, fine=0, tiny=2, x_kvnull=0, x_w1null=0, hl0=12, trmid=1, xmid=1, x_meas=0, x_wg=-1, x_wgm=255, pk=0, g2w=7, gw0=0, gwp=2, x_pad=0, tr0at='c7a', hcv=0, hcat=108, hcp=4, msw=0, cspub=2, csg='c7a', cshare=0, ownw2=0, stch=0, st0=6, r0=4, r1=20, c4e=0, packa=1, hold=1, tpp=2, packb=1, he1=6, he2=10, x_cv=0, cvwait=1, fbs=25, fbn=3, trg1=0, trpre=1, tp=-1, pb=115, d3=0, c5e=1, stat_at='c4a', x_notry=0, x_late=0, dp=2, dstart='c2b', kvn=1, ft0=2, c3b=0, c3a=7, sw3=7, swn=1, swflag=0, c3pf=1, hcnt=1, qnt=0, hearly=0, ntail=4, dbgout=0, rotk=2, rotx=1, htouch=0, x_w2null=0, x_hcnull=0, x_hplain=0, n1=16, n2=28, d4=40, fa=6, pat=0, cvpace=4, t0=8, t1=24, t2=40, t3=56, pretouch=0, c2n=4, p0=2, p1=2, p2=2, b1n=5, b2n=5, esp=8, yat=40, ylag=8, ylate=1, map47=0, tlb=0, nonce_at=0, slowat=4, nt=1, c1n=1, kvpos=2, w2pace=5, sweep=0, uat=3, x_nokv=0, x_nocs=0, x_nodma=0, x_nobar=0, x_now2=0, onewait=1, kvend=4, cap=5, spare=1, prof=0, stats_fill=0, hring=12, flagB_at=45, codepf=1)
for a in sys.argv[2:]:
    k, v = a.split('='); OPT[k] = int(v) if v.lstrip('-').isdigit() else v

HWS = 0; KVR = 0x700000; YT = 0x900000; STATS = 0xB00000; FLA = 0xB10000; FLB = 0xB30000; FLC = 0xB50000; CSP = 0xB70000
PROF = 0xB80000; WS_SIZE = 0xC00000
E = 131072; KT = E; VT = E + 9360; HC = E; UR = E + 17680; CS = E + 26896; DUMP = CS + 512
LDS_BYTES = 163840
OOB = 0x80000000
f2u = lambda f: struct.unpack('<I', struct.pack('<f', f))[0]
NLOG2E = f2u(-1.4426950408889634)

sX, sJ, sW, sT0, sT1 = 3, 4, 5, 6, 7
Q1, QF, SKK, SVV, W1, W2, SSK, WS, WSH, OUT, DBG, SHK, KZ = 8, 12, 16, 20, 24, 28, 32, 36, 40, 44, 48, 52, 60
sDptr = 56; sN = 58; sDv = 59; sN2 = 56; sW2neg = 84
sCsW = 64; sCsR = 72; sCsN = 95
WSB = 8
sQoff = 64; sWoff = 72
sM0b = 80; sW2off = 81; sStatC = 82; sRot = 83; sStatW = 84; sFH = 85; sTH = 86; sH0 = 87
CODE = 88; sHst = 88
sM0q = 92; sM0w = 93; sP = 94; sCnt = 96; sC0 = sT0
sRB1, sCB1, sRB2, sCB2, sCH = 97, 98, 99, 100, 101
sKV0, sKV1, sFAo, sFAp, sU, sFBo, sFBp, sYs = 16, 17, 18, 19, 20, 21, 22, 23
sFCo, sFCp, sHL, sYl = 52, 53, 54, 55
sXO, sStatF, sHC, sHLo = 60, 61, 62, 63
def srd(b): return f"s[{b}:{b+3}]"

vL = 1; vL16 = 2; vL0 = 3
vQD = 4; vWD = 8; vBD = 12
vQA = 16; vWA = 24
vN = 28; vSTV = 29; vCSW = 30; vCSA = 31
vTA = 33; vCA = 37
vCB = 41; vCU = 42; vCD = 43; vCX = 44; vCXR = 45; vCY = 46
vPA = 47; vPB = 48; vPC = 49
vXD = 50; vYL = 51; vOS = 52
vXA = 53; vYW = 54; vYA = 55; vOW = 56; vOR = 57; vRW = 58; vRR = 59
vPROF = 62; vT = 63
vDV = 215; vH0 = 214
ACC = 64; FR = 128
CSACC = 244; SEL = 240; CSV = 176
STL = 208; MR = 216
def vr(b, n=1): return f"v{b}" if n == 1 else f"v[{b}:{b+n-1}]"
def ar(b, n): return f"a[{b}:{b+n-1}]"

rare = Stream(); nrare = [0]
def check_poll(S, reloads, tagregs):
    k = nrare[0]; nrare[0] += 1
    def cmp(T):
        if len(tagregs) == 1:
            T(f"v_cmp_ne_u32 vcc, s{sN}, v{tagregs[0]}")
        else:
            T(f"v_xor_b32 v{vT}, s{sN}, v{tagregs[0]}")
            for r in tagregs[1:]:
                T(f"v_xor_b32 v{r}, s{sN}, v{r}\nv_or_b32 v{vT}, v{vT}, v{r}")
            T(f"v_cmp_ne_u32 vcc, 0, v{vT}")
    g = Stream(); cmp(g); g(f"s_cbranch_vccnz L_rare{k}\nL_back{k}:")
    S.atomic(g)
    rare(f"L_rare{k}:\ns_mov_b32 s{sCnt}, 0")
    if OPT['prof']: rare(f"v_writelane_b32 v{vPROF}, 1, {52+k}")
    rare(f"L_rl{k}:\ns_sleep 1")
    for t in reloads: rare(t)
    rare("s_waitcnt vmcnt(0)")
    cmp(rare)
    rare(f"s_nop 1\ns_cbranch_vccz L_back{k}\ns_add_u32 s{sCnt}, s{sCnt}, 1\ns_cmp_lt_u32 s{sCnt}, 0x4000\ns_cbranch_scc1 L_rl{k}\ns_branch L_back{k}")

WSO = 24
def note_poll(S, tagreg, sres):
    g = Stream(); g(f"v_cmp_ne_u32 vcc, s{sN}, v{tagreg}\ns_or_b32 s{sres}, vcc_lo, vcc_hi\ns_cselect_b32 s{WSO+2}, 0, {WS_SIZE}"); S.atomic(g)
def repair(S, sres, first, reload, tagreg, redo):
    k = nrare[0]; nrare[0] += 1
    g = Stream(); g(f"s_cmp_lg_u32 s{sres}, 0\ns_cbranch_scc1 L_rare{k}\nL_back{k}:"); S.atomic(g)
    R = Stream()
    R(f"L_rare{k}:\ns_mov_b32 s{sCnt}, 0\ns_waitcnt vmcnt(0) lgkmcnt(0)")
    if OPT['prof']: R(f"v_writelane_b32 v{vPROF}, 1, {52+k}")
    R.extend(first)
    R(f"L_rl{k}:\n{reload}\ns_waitcnt vmcnt(0)\nv_cmp_ne_u32 vcc, s{sN}, v{tagreg}\ns_nop 1\ns_cbranch_vccz L_ok{k}\ns_sleep 1\ns_add_u32 s{sCnt}, s{sCnt}, 1\ns_cmp_lt_u32 s{sCnt}, 0x4000\ns_cbranch_scc1 L_rl{k}\nL_ok{k}:")
    R(f"s_mov_b32 s{WSO+2}, {WS_SIZE}")
    R.extend(autowait(flatten(redo)))
    R(f"s_waitcnt vmcnt(0) lgkmcnt(0)\ns_nop 4\ns_branch L_back{k}")
    rare.extend(R)

stamp_names = []
def stamp(S, name):
    if OPT['x_meas'] == name:
        g = Stream(); g(f"s_memrealtime s[{sP}:{sP+1}]\ns_waitcnt lgkmcnt(0)\nv_writelane_b32 v{vPROF}, s{sP}, 0"); S.atomic(g)
    if not OPT['prof']: return
    k = len(stamp_names); stamp_names.append(name)
    g = Stream()
    if OPT['prof'] == 1:
        g(f"s_memrealtime s[{sP}:{sP+1}]\ns_waitcnt lgkmcnt(0)\nv_writelane_b32 v{vPROF}, s{sP}, {k}")
        g(f"s_memtime s[{sP}:{sP+1}]\ns_waitcnt lgkmcnt(0)\nv_writelane_b32 v{vPROF}, s{sP}, {k+32}")
    elif OPT['prof'] == 4:
        g(f"s_memrealtime s[{sP}:{sP+1}]\ns_waitcnt lgkmcnt(0)\nv_writelane_b32 v{vPROF}, s{sP}, {k}")
    else:
        g(f"s_memtime s[{sP}:{sP+1}]\ns_waitcnt lgkmcnt(0)\nv_writelane_b32 v{vPROF}, s{sP}, {k}")
    S.atomic(g)

def dma_n(S, vbase, srdb, soff, m0txt, tag, n=4, samev=False, nt=False):
    for i in range(n):
        g = Stream()
        if i == 0: g(m0txt)
        g(f"buffer_load_dwordx4 v{vbase + (0 if samev else i)}, {srd(srdb)}, s{soff} offen" + (f" offset:{i*1024}" if i else "") + (" nt" if nt else "") + " lds", tag if i == n-1 else None)
        g[-1].arg = m0txt
        S.atomic(g)

def chunk_dma(i, sq=None, sw=None):
    S = Stream(); slot = i & 3
    dma_n(S, vQD, Q1, sQoff + i if sq is None else sq, f"s_add_u32 m0, s{sM0q}, {slot*32768}", None, nt=OPT['qnt'])
    dma_n(S, vWD, W1, sWoff + i if sw is None else sw, f"s_add_u32 m0, s{sM0w}, {slot*32768}", f"c{i}")
    return S

def w2_half(b, h):
    S = Stream(); slot = b & 3
    dma_n(S, vBD, W2, sW2off, f"s_add_u32 m0, s{sM0b}, {slot*32768 + 4096*h}", f"b{b}" if h else None)
    first = S[0].arg
    if h == 1: first.insert(1, Ins(f"s_add_u32 s{sW2off}, s{sW2off}, 32768"))
    elif b > 0:
        first[0:0] = [Ins(f"s_cmp_eq_u32 s{sRot}, {7-b}"), Ins(f"s_cselect_b32 s{sCnt}, s{sW2neg}, 0x8000")]
        first.insert(3, Ins(f"s_add_u32 s{sW2off}, s{sW2off}, s{sCnt}"))
    return S
def w2_dma(b):
    S = w2_half(b, 0); S.extend(w2_half(b, 1)); return S

def w2_tr(b):
    S = Stream(); slot = b & 3; hi = slot >> 1
    S.waitvm(f"b{b}")
    for k4 in range(4):
        for u in range(2):
            a = ((4*b + k4) * 2 + u) * 4
            for rd in range(2):
                off = (slot & 1) * 32768 + k4 * 2048 + rd * 1024
                S(f"ds_read_b64_tr_b16 {ar(a+2*rd, 2)}, v{vTA+2*hi+u} offset:{off}", f"tr{b}")
    return S

vROW = 220
vSHK = 228
MAP = [f"""
    s_lshr_b32 s{sCB1}, s{sJ}, 1
    s_and_b32 s{sT0}, s{sJ}, 1
    s_lshl_b32 s{sRB1}, s{sX}, 1
    s_add_u32 s{sRB1}, s{sRB1}, s{sT0}
    s_mul_i32 s{sT0}, s{sT0}, {OPT['pk']}
    s_add_u32 s{sT0}, s{sT0}, s{sCB1}
    s_add_u32 s{sT0}, s{sT0}, s{sX}
    s_and_b32 s{sT0}, s{sT0}, 7
""", f"""
    s_and_b32 s{sT0}, s{sJ}, 3
    s_lshr_b32 s{sT1}, s{sX}, 1
    s_lshl_b32 s{sRB1}, s{sT1}, 2
    s_add_u32 s{sRB1}, s{sRB1}, s{sT0}
    s_lshl_b32 s{sT0}, s{sT0}, 1
    s_add_u32 s{sT0}, s{sT0}, s{sT1}
    s_lshr_b32 s{sT1}, s{sJ}, 2
    s_add_u32 s{sT0}, s{sT0}, s{sT1}
    s_and_b32 s{sT0}, s{sT0}, 7
    s_and_b32 s{sCB1}, s{sX}, 1
    s_mul_i32 s{sCB1}, s{sCB1}, 7
    s_add_u32 s{sCB1}, s{sCB1}, s{sT1}
    s_cmp_eq_u32 s{sT1}, 7
    s_cselect_b32 s{sCB1}, 14, s{sCB1}
"""]
def entry():
    class SS(Stream):
        def __call__(self, text, tag=None): return Stream.__call__(self, text.replace(' NT', ' nt' if OPT['nt'] else '').replace('MAPPING', MAP[OPT['map47']]), tag)
    S = SS()
    S(f"""
    s_load_dwordx16 s[64:79], s[0:1], 0
    s_load_dwordx8 s[80:87], s[0:1], 64
    s_memrealtime s[40:41]
    s_cmp_ge_u32 s2, 256
    s_cbranch_scc1 L_end
    v_lshrrev_b32 v{vT}, 6, v0
    v_and_b32 v{vL}, 63, v0
    s_and_b32 s{sX}, s2, 7
    v_readfirstlane_b32 s{sW}, v{vT}
    s_lshr_b32 s{sJ}, s2, 3
    MAPPING
    s_mov_b32 s{QF+2}, 0x200000
    s_mov_b32 s{QF+3}, 0x20000
    s_cmp_lt_u32 s{sCB1}, 14
    s_cselect_b32 s{Q1+2}, 0x200000, 0
    s_cselect_b32 s{W1+2}, {0 if OPT['x_w1null'] else 0x1c0000}, 0
    s_mov_b32 s{Q1+3}, 0x20000
    s_mov_b32 s{W1+3}, 0x20000
    s_lshl_b32 s88, s{sX}, 5
    s_add_u32 s88, s88, s{sJ}
    s_lshl_b32 s88, s88, 2
    s_add_u32 s88, s88, s{sW}
    s_lshl_b32 s88, s88, 11
    s_lshl_b32 s89, s{sRB1}, 2
    s_add_u32 s89, s89, s{sW}
    s_lshl_b32 s89, s89, 15
    s_mul_i32 s90, s{sW}, {16*3584}
    s_lshl_b32 s{sT1}, s{sCB1}, 8
    s_add_u32 s90, s90, s{sT1}
    s_lshl_b32 s58, s{sT0}, 7
    s_add_u32 s58, s58, s89
    s_mul_i32 s59, s{sT0}, {64*3584}
    s_add_u32 s59, s59, s90
    s_lshl_b32 s{sM0q}, s{sW}, 12
    s_add_u32 s{sM0w}, s{sM0q}, 16384
    s_lshr_b32 s{sT1}, s{sJ}, 3
    s_lshl_b32 s{sRB2}, s{sX}, 2
    s_add_u32 s{sRB2}, s{sRB2}, s{sT1}
    s_and_b32 s{sCB2}, s{sJ}, 7
    s_lshl_b32 s42, s{sW}, 3
    s_or_b32 s42, s42, s2
    """)
    if OPT['prof']: S(f"v_mov_b32 v{vPROF}, 0")
    S.extend(codepf())
    a, b, c, d = 232, 233, 234, 235
    S(f"""
    v_lshlrev_b32 v{vL16}, 4, v{vL}
    v_lshrrev_b32 v{a}, 5, v{vL}
    v_and_b32 v{b}, 31, v{vL}
    v_lshlrev_b32 v{b}, 4, v{b}
    v_lshl_add_u32 v236, v{a}, 10, v{b}
    v_lshrrev_b32 v{a}, 3, v{vL}
    v_and_b32 v{b}, 7, v{vL}
    v_lshrrev_b32 v{c}, 4, v{vL}
    v_xor_b32 v{d}, v{b}, v{c}
    v_lshlrev_b32 v{d}, 4, v{d}
    v_lshl_add_u32 v{vQD}, v{a}, 10, v{d}
    v_xor_b32 v{d}, 64, v{vQD}
    v_add_u32 v{vQD+1}, 7168, v{d}
    v_add_u32 v{vQD+2}, 14336, v{vQD}
    v_add_u32 v{vQD+3}, 21504, v{d}
    v_and_b32 v{d}, 15, v{vL}
    v_lshlrev_b32 v237, 2, v{c}
    v_xor_b32 v{d}, v{d}, v237
    v_lshlrev_b32 v{d}, 4, v{d}
    v_mul_u32_u24 v237, 3584, v{c}
    v_add_u32 v{vWD}, v237, v{d}
    v_add_u32 v{vWD+1}, {4*3584-1024}, v{vWD}
    v_add_u32 v{vWD+2}, {8*3584-2048}, v{vWD}
    v_add_u32 v{vWD+3}, {12*3584-3072}, v{vWD}
    v_lshlrev_b32 v{b}, 4, v{b}
    v_lshl_add_u32 v237, v{a}, 10, v{b}
    v_lshlrev_b32 v238, 4, v{a}
    """)
    if OPT['tiny']:
        S(f"""
        s_lshl_b32 s43, s{sCB2}, 2
        s_add_u32 s43, s43, s{sW}
        s_lshl_b32 s43, s43, 7
        v_add_u32 v238, s43, v238
        s_lshl_b32 s43, s2, 2
        v_mov_b32 v240, s43
        s_lshr_b32 s43, s{sW}, 1
        s_lshl_b32 s43, s43, 12
        s_lshl_b32 s91, s2, 13
        s_add_u32 s43, s43, s91
        v_mov_b32 v241, s43
        v_mov_b32 v242, 0
        v_min_u32 v243, 5, v{vL}
        v_lshlrev_b32 v243, 21, v243
        """)
    for bb, n in ((W2, 0x1c0000), (SSK, 0x200000), (WS, WS_SIZE), (OUT, 0x200000), (DBG, 256)):
        S(f"s_mov_b32 s{bb+2}, {0 if (bb == W2 and OPT['x_w2null']) or (bb == SSK and OPT['x_hcnull']) else n}")
    for bb in (W2, SSK, WS, OUT, DBG):
        S(f"s_mov_b32 s{bb+3}, 0x20000")
    S.waitlg()
    stamp(S, "karg")
    S(f"""
    s_cmp_gt_u32 s42, 7
    s_cbranch_scc1 L_nonce_done
    s_or_b32 s40, s40, 1
    v_mov_b32 v245, 0
    v_mov_b32 v244, s40
    s_mov_b64 exec, 1
    global_atomic_cmpswap v245, v[244:245], s[84:85] sc1
    s_mov_b64 exec, -1
    L_nonce_done:
    """)
    S[-3].cls = 'other'
    if OPT['tiny']:
        S(f"""
        global_load_dwordx4 v[{vSHK}:{vSHK+3}], v238, s[70:71]
        global_load_dword a248, v240, s[74:75]
        global_load_dword a249, v241, s[72:73]
        """)
        if OPT['tiny'] > 1: S(f"global_load_dword a230, v242, s[66:67]\nglobal_load_dword a231, v242, s[68:69]")
        if OPT['tiny'] > 2: S(f"global_load_dword a232, v242, s[80:81]\nglobal_load_dword a233, v243, s[86:87]")
    S(f"""
    s_mov_b64 s[{QF}:{QF+1}], s[64:65]
    s_mov_b64 s[{Q1}:{Q1+1}], s[64:65]
    s_mov_b64 s[{W1}:{W1+1}], s[78:79]
    buffer_load_dwordx4 v[{vROW}:{vROW+3}], v236, {srd(QF)}, s88 offen NT
    buffer_load_dwordx4 v[{vROW+4}:{vROW+7}], v236, {srd(QF)}, s88 offen offset:512 NT
    """)
    mv = Stream()
    mv(f"""
    s_mov_b64 s[{SKK}:{SKK+1}], s[66:67]
    s_mov_b64 s[{KZ}:{KZ+1}], s[66:67]
    s_mov_b64 s[{SVV}:{SVV+1}], s[68:69]
    s_mov_b64 s[{SHK}:{SHK+1}], s[70:71]
    s_mov_b64 s[{SSK}:{SSK+1}], s[72:73]
    s_mov_b64 s[{sDptr}:{sDptr+1}], s[74:75]
    s_mov_b64 s[{W2}:{W2+1}], s[80:81]
    s_mov_b64 s[{OUT}:{OUT+1}], s[82:83]
    s_mov_b64 s[{DBG}:{DBG+1}], s[84:85]
    s_mov_b64 s[{WS}:{WS+1}], s[86:87]
    """)
    S.extend(chunk_dma(0, 58, 59)); S.extend(mv)
    if OPT['tlb']:
        S(f"""
        v_min_u32 v240, 5, v{vL}
        v_lshlrev_b32 v240, 21, v240
        v_mov_b32 v241, 0
        buffer_load_dword a240, v240, {srd(WS)}, 0 offen
        global_load_dword a241, v241, s[66:67]
        global_load_dword a242, v241, s[68:69]
        global_load_dword a243, v241, s[80:81]
        global_load_dword a244, v241, s[82:83]
        """.replace("a24", "a23"))
    S.extend(coff(1))
    return S

def coff(i):
    S = Stream()
    S(f"""
    s_add_u32 s{sT1}, s{sC0}, {i}
    s_and_b32 s{sT1}, s{sT1}, 7
    s_lshl_b32 s{sQoff+i}, s{sT1}, 7
    s_add_u32 s{sQoff+i}, s{sQoff+i}, s89
    s_mul_i32 s{sWoff+i}, s{sT1}, {64*3584}
    s_add_u32 s{sWoff+i}, s{sWoff+i}, s90
    """)
    return S
def codepf():
    S = Stream()
    if OPT['codepf']:
        S(f"""
        s_getpc_b64 s[16:17]
        L_pc:
        s_mov_b32 s18, L_codeend-L_pc
        s_mov_b32 s19, 0x20000
        s_lshl_b32 s20, s{sJ}, 2
        s_add_u32 s20, s20, s{sW}
        s_lshl_b32 s20, s20, 8
        v_lshlrev_b32 v238, 2, v{vL}
        buffer_load_dword a252, v238, s[16:19], s20 offen
        """)
    return S

def kv_pro():
    S = Stream()
    S(f"""
    s_cmp_lg_u32 s{sRB2}, 0
    s_cselect_b32 s{KZ+2}, 0x200000, 0
    s_mov_b32 s{KZ+3}, 0x20000
    s_mov_b32 s{SKK+2}, {0 if OPT['x_kvnull'] else 0x200000}
    s_mov_b32 s{SKK+3}, 0x20000
    s_mov_b32 s{SVV+2}, {0 if OPT['x_kvnull'] else 0x200000}
    s_mov_b32 s{SVV+3}, 0x20000
    s_mov_b32 s{SHK+2}, 4096
    s_mov_b32 s{SHK+3}, 0x20000
    s_lshl_b32 s40, s{sRB2}, 16
    s_lshl_b32 s41, s{sCB2}, 7
    s_add_u32 s40, s40, s41
    s_lshl_b32 s41, s{sW}, 13
    s_add_u32 s41, s41, s40
    s_add_u32 s42, s41, 32768
    s_sub_u32 s40, s40, 8192
    s_max_i32 s40, s40, 0
    s_mul_i32 s43, s{sW}, 1040
    s_lshl_b32 s87, s{sCB2}, 9
    s_lshl_b32 s{sT1}, s{sW}, 7
    s_add_u32 s87, s87, s{sT1}
    v_cmp_gt_u32 vcc, 40, v{vL}
    v_mov_b32 v239, {OOB}
    v_cndmask_b32 v239, v237, v239, vcc
    """)
    return S
def kv_dma():
    S = Stream(); nt = "nt " if OPT['nt'] else ""
    for m0, v, sr, so in ((f"s_add_u32 m0, s43, {KT+1040}", 237, SKK, 41), (f"s_add_u32 m0, s43, {VT}", 237, SVV, 41),
                          (f"s_add_u32 m0, s43, {KT+5*1040}", 237, SKK, 42), (f"s_add_u32 m0, s43, {VT+4*1040}", 237, SVV, 42),
                          (f"s_mov_b32 m0, {KT}", 239, KZ, 40)):
        g = Stream(); g(f"{m0}\nbuffer_load_dwordx4 v{v}, {srd(sr)}, s{so} offen {nt}lds"); S.atomic(g)
    if OPT['tiny']: S[-1].arg[-1].tag = "kvd"
    else: S(f"buffer_load_dwordx4 v[{vSHK}:{vSHK+3}], v238, {srd(SHK)}, s87 offen", "kvd")
    return S

def setup():
    S = Stream()
    if OPT['cshare']:
        S(f"""
        s_lshl_b32 s{sCsR}, s{sCB1}, 13
        s_add_u32 s{sCsR}, s{sCsR}, {CSP}
        s_lshl_b32 s{sCsW}, s{sC0}, 10
        s_add_u32 s{sCsW}, s{sCsW}, s{sCsR}
        s_and_b32 s{sT1}, s{sW}, 1
        s_lshl_b32 s{sT1}, s{sT1}, 9
        s_add_u32 s{sCsW}, s{sCsW}, s{sT1}
        s_lshr_b32 s{sT1}, s{sW}, 1
        s_lshl_b32 s{sT1}, s{sT1}, 8
        s_add_u32 s{sCsW}, s{sCsW}, s{sT1}
        s_lshl_b32 s{sT1}, s{sW}, 8
        s_add_u32 s{sCsR}, s{sCsR}, s{sT1}
        """)
    S(f"""
    s_and_b32 s{sFH}, s{sW}, 1
    s_lshr_b32 s{sTH}, s{sW}, 1
    s_lshl_b32 s{sCH}, s2, 1
    s_add_u32 s{sCH}, s{sCH}, s{sTH}
    s_lshl_b32 s{sM0b}, s{sW}, 13
    s_mul_i32 s{sW2off}, s{sW}, {448*1024}
    s_lshl_b32 s{sT0}, s{sCB2}, 7
    s_add_u32 s{sW2off}, s{sW2off}, s{sT0}
    s_lshr_b32 s{sRot}, s{sJ}, 3
    s_mul_i32 s{sRot}, s{sRot}, {OPT['rotk']}
    s_add_u32 s{sRot}, s{sRot}, s{sCB2}
    s_mul_i32 s{sT0}, s{sX}, {OPT['rotx']}
    s_add_u32 s{sRot}, s{sRot}, s{sT0}
    s_mul_i32 s{sT0}, s{sRot}, 37
    s_lshr_b32 s{sT0}, s{sT0}, 8
    s_mul_i32 s{sT0}, s{sT0}, 7
    s_sub_u32 s{sRot}, s{sRot}, s{sT0}
    s_lshl_b32 s{sT0}, s{sRot}, 16
    s_add_u32 s{sW2off}, s{sW2off}, s{sT0}
    s_lshl_b32 s{sStatC}, s{sRB1}, 1
    s_add_u32 s{sStatC}, s{sStatC}, s{sTH}
    s_mul_i32 s{sHst}, s{sStatC}, {2*112*1024}
    s_lshl_b32 s{sStatC}, s{sStatC}, 10
    s_add_u32 s{sStatC}, s{sStatC}, {STATS}
    s_lshl_b32 s{sT0}, s{sCB1}, 1
    s_add_u32 s{sT0}, s{sT0}, s{sFH}
    s_lshl_b32 s{sT0}, s{sT0}, 12
    s_add_u32 s{sHst}, s{sHst}, s{sT0}
    s_lshl_b32 s{sT0}, s{sTH}, 11
    s_xor_b32 s{sT1}, s{sT0}, 2048
    s_add_u32 s{sHst+2}, s{sHst}, s{sT1}
    s_add_u32 s{sHst}, s{sHst}, s{sT0}
    s_add_u32 s{sHst+1}, s{sHst}, {112*1024}
    s_add_u32 s{sHst+3}, s{sHst+2}, {112*1024}
    s_lshl_b32 s{sStatW}, s{sX}, 5
    s_add_u32 s{sStatW}, s{sStatW}, s{sJ}
    s_lshl_b32 s{sStatW}, s{sStatW}, 7
    s_lshl_b32 s{sT0}, s{sW}, 4
    s_add_u32 s{sStatW}, s{sStatW}, s{sT0}
    s_add_u32 s{sStatW}, s{sStatW}, {STATS}
    """)
    a, b, c, d, e, f = 240, 241, 242, 243, 244, 245
    a, b, c, d, e, f = 244, 245, 246, 247, 248, 249
    S(f"""
    v_mov_b32 v{a}, {OOB}
    v_cmp_eq_u32 vcc, 0, v{vL}
    v_and_b32 v{b}, 31, v{vL}
    v_lshrrev_b32 v{c}, 5, v{vL}
    v_cndmask_b32 v{vL0}, v{a}, 0, vcc
    v_lshrrev_b32 v{d}, 3, v{b}
    v_and_b32 v{e}, 7, v{vL}
    v_lshlrev_b32 v{e}, 3, v{e}
    v_lshl_add_u32 v{vSTV}, v{d}, 7, v{e}
    """)
    S(f"""
    v_lshrrev_b32 v{d}, 1, v{b}
    v_and_b32 v{d}, 7, v{d}
    v_xor_b32 v{d}, v{d}, v{c}
    v_lshlrev_b32 v{d}, 4, v{d}
    v_lshl_add_u32 v{d}, v{b}, 7, v{d}
    s_lshl_b32 s{sT0}, s{sTH}, 13
    v_add_u32 v{vQA}, s{sT0}, v{d}
    v_xor_b32 v{vQA+1}, 32, v{vQA}
    v_xor_b32 v{vQA+2}, 64, v{vQA}
    v_xor_b32 v{vQA+3}, 0x60, v{vQA}
    """)
    for k in range(4): S(f"v_add_u32 v{vQA+4+k}, 0x10000, v{vQA+k}")
    S(f"""
    v_bfe_u32 v{d}, v{vL}, 2, 2
    v_and_b32 v{e}, 3, v{vL}
    v_lshlrev_b32 v{e}, 3, v{e}
    v_bfe_u32 v{f}, v{vL}, 4, 1
    v_lshl_add_u32 v{e}, v{f}, 5, v{e}
    s_lshl_b32 s{sT0}, s{sFH}, 1
    s_add_u32 s{sT0}, s{sT0}, s{sTH}
    v_xor_b32 v{f}, s{sT0}, v{d}
    v_lshl_add_u32 v{f}, v{f}, 6, v{e}
    v_lshl_add_u32 v{f}, v{d}, 8, v{f}
    v_lshl_add_u32 v{vWA}, v{c}, 11, v{f}
    v_xor_b32 v{vWA+1}, 64, v{vWA}
    v_add_u32 v{vWA+2}, 0x10000, v{vWA}
    v_add_u32 v{vWA+3}, 0x10000, v{vWA+1}
    v_lshrrev_b32 v{f}, 1, v{d}
    v_xor_b32 v{f}, s{sFH}, v{f}
    v_lshl_add_u32 v{f}, v{f}, 6, v{e}
    v_lshl_add_u32 v{f}, v{d}, 7, v{f}
    v_lshl_add_u32 v{f}, v{c}, 9, v{f}
    v_add_u32 v{vTA}, s{sM0b}, v{f}
    v_xor_b32 v{vTA+1}, 64, v{vTA}
    v_add_u32 v{vTA+2}, 0x10000, v{vTA}
    v_add_u32 v{vTA+3}, 0x10000, v{vTA+1}
    v_lshl_add_u32 v{f}, v{d}, 6, v{e}
    v_lshl_add_u32 v{f}, v{c}, 8, v{f}
    s_add_u32 s{sT0}, s{sM0b}, {E + 2048}
    v_add_u32 v{vYA}, s{sT0}, v{f}
    v_add_u32 v{vYW}, s{sT0}, v{vL16}
    """)
    n, g = d, e
    S0 = S
    class SX(Stream):
        def __call__(self, text, tag=None):
            r = f"v_and_b32 v{a}, 31, v{vL}\nv_lshlrev_b32 v{a}, 3, v{a}\nv_lshl_add_u32 v{vCSW}, v{c}, 12, v{a}" if OPT['cshare'] else f"v_cndmask_b32 v{vCSW}, v{f}, v{a}, vcc"
            return S0(text.replace("CSWDEF", r), tag)
    SX()(f"""
    v_and_b32 v{n}, 15, v{vL}
    v_lshrrev_b32 v{g}, 4, v{vL}
    v_and_b32 v{f}, 1, v{g}
    v_cmp_eq_u32 vcc, v{n}, v{f}
    v_mov_b32 v{f}, 0x3f803f80
    v_lshlrev_b32 v{a}, 4, v{g}
    v_cndmask_b32 v{f}, 0, v{f}, vcc
    v_lshl_add_u32 v{a}, v{n}, 6, v{a}
    v_accvgpr_write_b32 a{SEL}, v{f}
    v_accvgpr_write_b32 a{SEL+1}, v{f}
    v_accvgpr_write_b32 a{SEL+2}, v{f}
    v_accvgpr_write_b32 a{SEL+3}, v{f}
    s_lshl_b32 s{sT0}, s{sFH}, 8
    s_lshl_b32 s{sT1}, s{sTH}, 7
    s_add_u32 s{sT0}, s{sT0}, s{sT1}
    s_add_u32 s{sT0}, s{sT0}, {CS}
    v_add_u32 v{a}, s{sT0}, v{a}
    v_add_u32 v{f}, {DUMP}, v{vL16}
    v_cmp_gt_u32 vcc, 2, v{n}
    v_lshlrev_b32 v{b}, 4, v{c}
    v_add_u32 v{vCSA}, s{sT0}, v{b}
    CSWDEF
    v_xor_b32 v{vCSA+1}, 0x80, v{vCSA}
    """)
    assert CS % 256 == 16 or True
    S(f"""
    v_lshrrev_b32 v{a}, 3, v{vL}
    v_and_b32 v{b}, 7, v{vL}
    v_bfe_u32 v{f}, v{vL}, 4, 1
    v_lshlrev_b32 v{f}, 2, v{f}
    v_xor_b32 v{b}, v{b}, v{f}
    v_lshlrev_b32 v{b}, 4, v{b}
    v_lshl_add_u32 v{vBD}, v{a}, 10, v{b}
    v_add_u32 v{vBD+1}, 7168, v{vBD}
    v_add_u32 v{vBD+2}, 14336, v{vBD}
    v_add_u32 v{vBD+3}, 21504, v{vBD}
    """)
    S(f"""
    v_lshlrev_b32 v{a}, 1, v{n}
    v_lshl_add_u32 v{a}, v{g}, 4, v{a}
    v_and_b32 v{b}, 1, v{n}
    v_cmp_eq_u32 vcc, 0, v{b}
    v_mov_b32 v{f}, {4160 - 2}
    s_mul_i32 s{sT0}, s{sTH}, 8320
    s_lshl_b32 s{sT1}, s{sFH}, 6
    v_cndmask_b32 v{b}, 0, v{f}, vcc
    s_add_u32 s{sT0}, s{sT0}, s{sT1}
    s_add_u32 s{sT0}, s{sT0}, {HC + 32 - 30}
    v_add3_u32 v{vCA}, v{a}, v{b}, s{sT0}
    v_add_u32 v{vCA+1}, 1024, v{vCA}
    v_add_u32 v{vCA+2}, 2048, v{vCA}
    v_add_u32 v{vCA+3}, 3072, v{vCA}
    s_mul_i32 s{sT0}, s{sTH}, 4608
    s_add_u32 s{sT0}, s{sT0}, {UR}
    v_lshlrev_b32 v{a}, 5, v{n}
    v_lshlrev_b32 v{b}, 4, v{g}
    v_sub_u32 v{b}, v{b}, v{a}
    s_add_u32 s{sT1}, s{sT1}, s{sT0}
    s_add_u32 s{sT1}, s{sT1}, 480
    v_add_u32 v{vCB}, s{sT1}, v{b}
    v_lshl_add_u32 v{b}, v{g}, 3, v{a}
    s_lshl_b32 s{sT1}, s{sFH}, 11
    s_sub_u32 s{sCnt}, s{sT0}, s{sT1}
    s_add_u32 s{sCnt}, s{sCnt}, {4088 - 1536}
    v_sub_u32 v{vCD}, s{sCnt}, v{b}
    s_add_u32 s{sT1}, s{sT1}, s{sT0}
    v_add_u32 v{vCU}, s{sT1}, v{vL16}
    v_and_b32 v{b}, 0x1f0, v{vL16}
    s_add_u32 s{sT0}, s{sT0}, 4096
    v_add_u32 v{b}, s{sT0}, v{b}
    v_mov_b32 v252, 0
    v_mov_b32 v253, 0
    v_mov_b32 v254, 0
    v_mov_b32 v255, 0
    ds_write_b128 v{b}, v[252:255]
    s_add_u32 s{sT0}, s{sM0b}, {3*32768}
    v_add_u32 v{vCX}, s{sT0}, v{vL16}
    v_xor_b32 v{vCXR}, 0x2000, v{vCX}
    v_and_b32 v{b}, 1, v{g}
    v_lshl_add_u32 v{a}, v{b}, 9, v{a}
    v_lshrrev_b32 v{b}, 1, v{g}
    v_lshl_add_u32 v{vCY}, v{b}, 4, v{a}
    v_lshlrev_b32 v{vPA}, {2 if OPT['packa'] else 7}, v{n}
    v_min_u32 v{a}, 6, v{vL}
    v_lshlrev_b32 v{vPB}, {2 if OPT['packb'] else 7}, v{a}
    v_and_b32 v{a}, 31, v{vL}
    v_lshlrev_b32 v{vPC}, {2 if OPT['packc'] else 8}, v{a}
    """)
    S(f"""
    v_lshrrev_b32 v{b}, 2, v{vL}
    v_and_b32 v{f}, 3, v{vL}
    v_lshlrev_b32 v{f}, 4, v{f}
    v_lshl_add_u32 v{vOS}, v{b}, 10, v{f}
    v_lshl_add_u32 v{vYL}, v{b}, 12, v{f}
    v_lshlrev_b32 v{d}, 4, v{g}
    v_xor_b32 v{vXD}, v{vOS}, v{d}
    v_mul_u32_u24 v{b}, 80, v{b}
    s_add_u32 s{sT0}, s{sM0b}, {E + 4096}
    v_add3_u32 v{vOR}, v{b}, v{f}, s{sT0}
    v_mul_u32_u24 v{b}, 80, v{a}
    v_lshl_add_u32 v{b}, v{c}, 3, v{b}
    v_add_u32 v{vOW}, s{sT0}, v{b}
    v_bfe_u32 v{b}, v{vL}, 2, 2
    v_lshlrev_b32 v{b}, 4, v{b}
    v_lshl_add_u32 v{b}, v{a}, 6, v{b}
    v_lshl_add_u32 v{b}, v{c}, 3, v{b}
    s_add_u32 s{sT0}, s{sM0b}, {E}
    v_add_u32 v{vXA}, s{sT0}, v{b}
    v_add_u32 v{vRW}, s{sM0b}, v{vL16}
    v_xor_b32 v{vRR}, 0x4000, v{vRW}
    v_xor_b32 v{vRR+1}, 0x6000, v{vRW}
    v_xor_b32 v{vRR+2}, 0x2000, v{vRW}
    """)
    return S

def setup_b():
    if OPT['packb']:
        pk = f"s_mul_i32 s{sT1}, s{sT0}, 37\ns_lshr_b32 s{sT1}, s{sT1}, 8\ns_lshr_b32 s{sFBo}, s{sFBo}, 3\ns_add_u32 s{sFBo}, s{sFBo}, s{sT1}\ns_lshl_b32 s{sFBo}, s{sFBo}, 7\ns_mul_i32 s{sT1}, s{sT1}, 7\ns_sub_u32 s{sT0}, s{sT0}, s{sT1}\ns_lshl_b32 s{sT0}, s{sT0}, 2\ns_add_u32 s{sFBo}, s{sFBo}, s{sT0}\ns_add_u32 s{sFBo}, s{sFBo}, {FLB}"
    else:
        pk = f"s_add_u32 s{sFBo}, s{sFBo}, s{sT0}\ns_lshl_b32 s{sFBo}, s{sFBo}, 7\ns_add_u32 s{sFBo}, s{sFBo}, {FLB}"
    if OPT['packa']:
        pa = f"s_lshl_b32 s{sFAo}, s{sT0}, 1\ns_lshr_b32 s{sT1}, s{sRB2}, 4\ns_add_u32 s{sFAo}, s{sFAo}, s{sT1}\ns_lshl_b32 s{sFAo}, s{sFAo}, 7\ns_and_b32 s{sT1}, s{sRB2}, 15\ns_lshl_b32 s{sT1}, s{sT1}, 2\ns_add_u32 s{sFAo}, s{sFAo}, s{sT1}\ns_add_u32 s{sFAo}, s{sFAo}, {FLA}\n"
        pa += f"s_lshr_b32 s{sFAp}, s{sCH}, 4\ns_lshl_b32 s{sFAp}, s{sFAp}, 8\ns_lshl_b32 s{sT0}, s{sFH}, 7\ns_sub_u32 s{sFAp}, s{sFAp}, s{sT0}\ns_add_u32 s{sFAp}, s{sFAp}, {FLA + 128}"
    else:
        pa = f"s_lshl_b32 s{sFAo}, s{sT0}, 5\ns_add_u32 s{sFAo}, s{sFAo}, s{sRB2}\ns_lshl_b32 s{sFAo}, s{sFAo}, 7\ns_add_u32 s{sFAo}, s{sFAo}, {FLA}\n"
        pa += f"s_lshr_b32 s{sFAp}, s{sCH}, 4\ns_lshl_b32 s{sFAp}, s{sFAp}, 12\ns_lshl_b32 s{sT0}, s{sFH}, 11\ns_sub_u32 s{sFAp}, s{sFAp}, s{sT0}\ns_add_u32 s{sFAp}, s{sFAp}, {FLA + 2048}"
    class SS(Stream):
        def __call__(self, text, tag=None): return Stream.__call__(self, text.replace('PACKB', pk).replace('PACKA', pa), tag)
    S = SS()
    S(f"""
    s_lshl_b32 s{sFBo}, s{sRB1}, 1
    s_add_u32 s{sFBo}, s{sFBo}, s{sTH}
    s_lshl_b32 s{sFBo}, s{sFBo}, 5
    s_lshl_b32 s{sT0}, s{sCB1}, 1
    s_add_u32 s{sT0}, s{sT0}, s{sFH}
    PACKB
    s_lshl_b32 s{sT0}, s{sCB2}, 2
    s_add_u32 s{sT0}, s{sT0}, s{sW}
    s_lshl_b32 s{sKV0}, s{sT0}, 16
    s_lshl_b32 s{sT1}, s{sRB2}, 7
    s_sub_u32 s{sKV0}, s{sKV0}, s{sT1}
    s_add_u32 s{sKV0}, s{sKV0}, {KVR + 1984*2}
    s_add_u32 s{sKV1}, s{sKV0}, 4096
    PACKA
    s_lshl_b32 s{sT0}, s{sFH}, 11
    s_lshl_b32 s{sHC}, s{sCH}, 12
    s_add_u32 s{sU}, s{sHC}, s{sT0}
    s_add_u32 s{sYs}, s{sU}, {YT}
    s_add_u32 s{sU}, s{sU}, {KVR}
    s_lshl_b32 s{sT0}, s{sFH}, 1
    s_add_u32 s{sHC}, s{sHC}, s{sT0}
    """)
    return S
def setup_c():
    S = Stream()
    S(f"""
    s_lshl_b32 s{sFBp}, s{sRB2}, {2 if OPT['packb'] else 5}
    s_mul_i32 s42, s{sW}, {1 if OPT['packb'] else 7}
    s_add_u32 s{sFBp}, s{sFBp}, s42
    s_lshl_b32 s{sFBp}, s{sFBp}, 7
    s_add_u32 s{sFBp}, s{sFBp}, {FLB}
    s_lshr_b32 s{sFCo}, s{sCH}, {5 if OPT['packc'] else 0}
    s_lshl_b32 s{sFCo}, s{sFCo}, 1
    s_add_u32 s{sFCo}, s{sFCo}, s{sFH}
    s_lshl_b32 s{sFCo}, s{sFCo}, 7
    s_and_b32 s42, s{sCH}, {31 if OPT['packc'] else 0}
    s_lshl_b32 s42, s42, 2
    s_add_u32 s{sFCo}, s{sFCo}, s42
    s_add_u32 s{sFCo}, s{sFCo}, {FLC}
    s_lshl_b32 s42, s{sCB2}, 1
    s_add_u32 s42, s42, s{sFH}
    s_lshl_b32 s{sFCp}, s42, {8 if OPT['packc'] else 13}
    s_lshr_b32 s43, s{sRB2}, 4
    s_lshl_b32 s43, s43, 7
    s_add_u32 s{sFCp}, s{sFCp}, s43
    s_add_u32 s{sFCp}, s{sFCp}, {FLC}
    s_lshl_b32 s{sYl}, s42, 17
    s_lshl_b32 s{sXO}, s42, 6
    s_lshl_b32 s42, s{sRB2}, 1
    s_add_u32 s42, s42, s{sTH}
    s_lshl_b32 s43, s42, 6
    s_add_u32 s{sYl}, s{sYl}, s43
    s_add_u32 s{sYl}, s{sYl}, {YT}
    s_lshl_b32 s43, s42, 15
    s_add_u32 s{sXO}, s{sXO}, s43
    s_lshl_b32 s{sStatF}, s42, 9
    s_add_u32 s{sStatF}, s{sStatF}, {STATS}
    s_mul_i32 s{sHLo}, s42, {112*1024}
    s_xor_b32 s42, s42, 1
    s_mul_i32 s{sHL}, s42, {112*1024}
    s_mul_i32 s42, s{sW}, {28*1024}
    s_lshl_b32 s43, s{sRot}, 12
    s_add_u32 s42, s42, s43
    s_add_u32 s{sHL}, s{sHL}, s42
    s_add_u32 s{sHLo}, s{sHLo}, s42
    """)
    return S

def hoffs2():
    return Stream()
sNeg = 92
def hoffs():
    S = Stream()
    g = Stream(); g(f"s_mov_b64 s[{WSO}:{WSO+1}], s[{WS}:{WS+1}]\ns_mov_b32 s{sNeg}, {-6*4096 & 0xffffffff:#x}\ns_mov_b32 s{sN2}, s{sN}\ns_mov_b32 s{sN2+1}, s{sN}"); S.atomic(g)
    return S

def nonce_get():
    S = Stream()
    S(f"s_load_dword s{sN}, s[{DBG}:{DBG+1}], 0")
    return S
def nonce_use(N='N'):
    S = Stream(); g = Stream()
    g(f"s_waitcnt lgkmcnt(0)\ns_cmp_eq_u32 s{sN}, 0\ns_cbranch_scc1 L_rare{N}\nL_back{N}:\nv_mov_b32 v{vN}, s{sN}")
    S.atomic(g)
    rare(f"""
    L_rare{N}:
    s_mov_b32 s{sCnt}, 0
    {"v_writelane_b32 v62, 1, 51" if OPT['prof'] else ""}
    L_rl{N}:
    s_sleep 2
    buffer_load_dword v{vN}, off, {srd(DBG)}, 0 sc1
    s_waitcnt vmcnt(0)
    v_readfirstlane_b32 s{sN}, v{vN}
    s_cmp_lg_u32 s{sN}, 0
    s_cbranch_scc1 L_back{N}
    s_add_u32 s{sCnt}, s{sCnt}, 1
    s_cmp_lt_u32 s{sCnt}, 0x4000
    s_cbranch_scc1 L_rl{N}
    s_branch L_back{N}
    """)
    return S

def stats():
    pr = lambda b: f"v[{b}:{b+1}]"
    S = Stream(); X = 176; A = 192; B = 193; C = 194
    for i in range(8): S(f"v_lshlrev_b32 v{X+2*i}, 16, v{vROW+i}\nv_and_b32 v{X+2*i+1}, 0xffff0000, v{vROW+i}")
    def allred(r):
        for m in ("quad_perm:[1,0,3,2]", "quad_perm:[2,3,0,1]", "row_half_mirror", "row_mirror"):
            S(f"v_add_f32_dpp v{r}, v{r}, v{r} {m} row_mask:0xf bank_mask:0xf")
        S(f"v_mov_b32 v{C}, v{r}\nv_permlane16_swap_b32 v{r}, v{C}\nv_add_f32 v{r}, v{r}, v{C}")
    for i in range(4): S(f"v_pk_add_f32 {pr(200+2*i)}, {pr(X+4*i)}, {pr(X+4*i+2)}")
    S(f"v_pk_add_f32 {pr(200)}, {pr(200)}, {pr(202)}\nv_pk_add_f32 {pr(204)}, {pr(204)}, {pr(206)}\nv_pk_add_f32 {pr(200)}, {pr(200)}, {pr(204)}\nv_add_f32 v{A}, v200, v201")
    allred(A)
    S(f"v_mul_f32 v{A}, {f2u(1/512):#x}, v{A}")
    for i in range(8): S(f"v_pk_add_f32 {pr(X+2*i)}, {pr(X+2*i)}, {pr(A)} op_sel_hi:[1,0] neg_lo:[0,1] neg_hi:[0,1]")
    S(f"v_pk_mul_f32 {pr(200)}, {pr(X)}, {pr(X)}\nv_pk_mul_f32 {pr(202)}, {pr(X+2)}, {pr(X+2)}")
    for i in range(2, 8): S(f"v_pk_fma_f32 {pr(200+2*(i&1))}, {pr(X+2*i)}, {pr(X+2*i)}, {pr(200+2*(i&1))}")
    S(f"v_pk_add_f32 {pr(200)}, {pr(200)}, {pr(202)}\nv_add_f32 v{B}, v200, v201")
    allred(B)
    S(f"""
    v_mul_f32 v{B}, {f2u(1/512):#x}, v{B}
    v_cvt_pk_bf16_f32 v{B}, v{B}, v{B}
    v_lshlrev_b32 v{B}, 16, v{B}
    v_add_f32 v{B}, {f2u(1e-5):#x}, v{B}
    v_cvt_pk_bf16_f32 v{B}, v{B}, v{B}
    v_lshlrev_b32 v{B}, 16, v{B}
    v_sqrt_f32 v{B}, v{B}
    v_and_b32 v{C}, 31, v{vL}
    v_cvt_pk_bf16_f32 v196, v{A}, v{B}
    v_lshrrev_b32 v{A}, 2, v{vL}
    v_mov_b32 v{B}, {OOB}
    """)
    g = Stream(); g(f"v_cmp_eq_u32 vcc, 0, v{C}\nv_cndmask_b32 v198, v{B}, v{A}, vcc"); S.atomic(g)
    return S
def stats_store():
    S = Stream()
    S(f"v_mov_b32 v197, v{vN}\nbuffer_store_dwordx2 v[196:197], v198, {srd(WS)}, s{sStatW} offen sc1")
    return S

def flag_store(soff, srdb, tag):
    S = Stream(); S.waitvm(tag)
    S(f"buffer_store_dword v{vN}, v{vL0}, {srd(srdb)}, s{soff} offen sc1")
    return S

def kv_addr():
    S = Stream(); a1, a2, a3 = 252, 253, 254
    S(f"""
    v_and_b32 v{a1}, 7, v{vL}
    v_mul_u32_u24 v{a2}, 1040, v{a1}
    v_lshrrev_b32 v{a3}, 3, v{vL}
    v_lshl_add_u32 v{a2}, v{a3}, 2, v{a2}
    s_lshl_b32 s{sT0}, s{sW}, 5
    s_add_u32 s{sT0}, s{sT0}, {KT}
    v_add_u32 v{a2}, s{sT0}, v{a2}
    v_add_u32 v255, 1040, v{a2}
    v_xor_b32 v{a1}, 7, v{a1}
    v_lshlrev_b32 v{a1}, 4, v{a1}
    v_lshl_add_u32 v{a1}, v{a3}, 13, v{a1}
    v_add_u32 v{a3}, {VT-KT}, v{a2}
    """)
    return S
def kvpre():
    S = Stream()
    KR = 232; VR = 244; KP = 176; WF = 220; O = 200
    S(f"ds_read2_b32 v[{KR}:{KR+1}], v253 offset0:160 offset1:192\nds_read_b32 v{KR+2}, v253 offset:896")
    for p in range(4): S(f"ds_read2_b32 v[{KR+4+2*p}:{KR+5+2*p}], v255 offset0:{64*p} offset1:{64*p+32}")
    for p in range(4): S(f"ds_read2_b32 v[{VR+2*p}:{VR+1+2*p}], v254 offset0:{64*p} offset1:{64*p+32}")
    for j in range(4):
        for c in range(2):
            src = vSHK + 2*c + (j >> 1)
            S(f"v_and_b32 v{WF+2*j+c}, 0xffff0000, v{src}" if j & 1 else f"v_lshlrev_b32 v{WF+2*j+c}, 16, v{src}")
    ri = lambda r: r + 3 if r < 0 else r + 4
    pr = lambda b: f"v[{b}:{b+1}]"
    for r in range(-3, 8):
        S(f"v_lshlrev_b32 v{KP+2*ri(r)}, 16, v{KR+ri(r)}\nv_and_b32 v{KP+2*ri(r)+1}, 0xffff0000, v{KR+ri(r)}")
    for t in range(8): S(f"v_pk_mul_f32 {pr(O+2*t)}, {pr(KP+2*ri(t))}, {pr(WF)}")
    for jj in range(1, 4):
        for t in range(8): S(f"v_pk_fma_f32 {pr(O+2*t)}, {pr(KP+2*ri(t-jj))}, {pr(WF+2*jj)}, {pr(O+2*t)}")
    for t in range(8): S(f"v_lshlrev_b32 v{KP+2*t}, 16, v{VR+t}\nv_and_b32 v{KP+2*t+1}, 0xffff0000, v{VR+t}")
    for t in range(8): S(f"v_pk_mul_f32 {pr(O+2*t)}, {pr(O+2*t)}, {pr(KP+2*t)}")
    for ch, Pk in enumerate((232, 236)):
        for q in range(4): S(f"v_cvt_pk_bf16_f32 v{Pk+q}, v{O+2*(7-2*q)+ch}, v{O+2*(6-2*q)+ch}")
        S(f"buffer_store_dwordx4 v[{Pk}:{Pk+3}], v252, {srd(WS)}, s{sKV0+ch} offen sc1", f"kv{ch}")
    return S

def kvpre_np():
    S = Stream()
    KR = 232; VR = 244; KL = 176; WF = 188; OA = 200; OB = 220
    S(f"ds_read2_b32 v[{KR}:{KR+1}], v253 offset0:160 offset1:192\nds_read_b32 v{KR+2}, v253 offset:896")
    for p in range(4): S(f"ds_read2_b32 v[{KR+4+2*p}:{KR+5+2*p}], v255 offset0:{64*p} offset1:{64*p+32}")
    for p in range(4): S(f"ds_read2_b32 v[{VR+2*p}:{VR+1+2*p}], v254 offset0:{64*p} offset1:{64*p+32}")
    for i in range(4):
        S(f"v_lshlrev_b32 v{WF+2*i}, 16, v{vSHK+i}\nv_and_b32 v{WF+2*i+1}, 0xffff0000, v{vSHK+i}")
    ri = lambda r: r + 3 if r < 0 else r + 4
    for r in range(-3, 8):
        S(f"v_lshlrev_b32 v{KL+ri(r)}, 16, v{KR+ri(r)}\nv_and_b32 v{KR+ri(r)}, 0xffff0000, v{KR+ri(r)}")
    for ch, (K, Oo) in enumerate(((KL, OA), (KR, OB))):
        for t in range(8): S(f"v_mul_f32 v{Oo+t}, v{K+ri(t)}, v{WF+4*ch}")
        for jj in range(1, 4):
            for t in range(8): S(f"v_fmac_f32 v{Oo+t}, v{K+ri(t-jj)}, v{WF+4*ch+jj}")
    for t in range(8):
        S(f"v_lshlrev_b32 v{KL+t}, 16, v{VR+t}\nv_and_b32 v{VR+t}, 0xffff0000, v{VR+t}")
    for t in range(8):
        S(f"v_mul_f32 v{OA+t}, v{OA+t}, v{KL+t}\nv_mul_f32 v{OB+t}, v{OB+t}, v{VR+t}")
    for ch, (Oo, Pk) in enumerate(((OA, 232), (OB, 236))):
        for q in range(4): S(f"v_cvt_pk_bf16_f32 v{Pk+q}, v{Oo+7-2*q}, v{Oo+6-2*q}")
        S(f"buffer_store_dwordx4 v[{Pk}:{Pk+3}], v252, {srd(WS)}, s{sKV0+ch} offen sc1", f"kv{ch}")
    return S

def stouch(S):
    S(f"v_lshlrev_b32 v5, 10, v{vL}\ns_lshl_b32 s66, s{sW}, 8\ns_add_u32 s72, s64, s66\ns_lshl_b32 s66, s{sW}, 1\ns_add_u32 s73, s65, s66")
    for p in range(OPT['st0'], 7):
        for c in range(2):
            S(f"""
            s_add_u32 s67, s73, {p + c}
            s_mul_i32 s69, s67, 37
            s_lshr_b32 s69, s69, 8
            s_mul_i32 s69, s69, 7
            s_sub_u32 s67, s67, s69
            s_lshl_b32 s67, s67, 16
            s_add_u32 s67, s67, s72
            buffer_load_dword a236, v5, {srd(W2)}, s67 offen offset:{128*c}
            """)
            S[-1].wr = set()

def msweep(S):
    S(f"""
    v_lshlrev_b32 v6, 7, v{vL}
    s_lshl_b32 s66, s{sX}, 2
    s_and_b32 s67, s{sJ}, 3
    s_add_u32 s66, s66, s67
    s_lshl_b32 s66, s66, 2
    s_add_u32 s66, s66, s{sW}
    s_mul_i32 s66, s66, 14336
    s_add_u32 s67, s66, 6144
    buffer_load_dword a237, v6, {srd(W2)}, s66 offen
    buffer_load_dword a238, v6, {srd(W2)}, s67 offen
    """)

def spare1():
    S = Stream()
    S("L_spare1:")
    if OPT['spb'] == 1: S("s_waitcnt vmcnt(0)\ns_barrier")
    S(f"""
    s_lshl_b32 s64, s{sX}, 2
    s_and_b32 s65, s{sJ}, 3
    s_add_u32 s64, s64, s65
    s_lshl_b32 s64, s64, 16
    s_lshl_b32 s66, s{sW}, 13
    s_add_u32 s64, s64, s66
    s_add_u32 s64, s64, 384
    s_add_u32 s66, s64, 32768
    """)
    if OPT['c3pf']:
        S(f"""
        buffer_load_dwordx4 a[64:67], v237, {srd(SKK)}, s64 offen
        buffer_load_dwordx4 a[68:71], v237, {srd(SVV)}, s64 offen
        buffer_load_dwordx4 a[72:75], v237, {srd(SKK)}, s66 offen
        buffer_load_dwordx4 a[76:79], v237, {srd(SVV)}, s66 offen
        """)
    if OPT['kvpos'] >= 2: S.extend(kv_dma())
    S(f"v_mov_b32 v4, v237")
    S.extend(nonce_get()); S.extend(setup_b()); S.extend(setup_c()); S.extend(nonce_use('M')); S.extend(stats_store())
    S.extend(kv_addr())
    S(f"""
    s_mul_i32 s64, s65, {448*1024}
    s_lshl_b32 s66, s{sW}, 14
    s_add_u32 s70, s64, s66
    s_add_u32 s70, s70, 384
    s_mul_i32 s65, s{sX}, {OPT['rotx']}
    s_add_u32 s71, s65, 3
    """)
    def c3(n):
        for i in range(n):
            S(f"""
            s_mul_i32 s69, s71, 37
            s_lshr_b32 s69, s69, 8
            s_mul_i32 s69, s69, 7
            s_sub_u32 s67, s71, s69
            s_lshl_b32 s67, s67, 16
            s_add_u32 s67, s67, s70
            s_add_u32 s68, s67, 8192
            s_add_u32 s71, s71, 1
            buffer_load_dwordx4 a[80:83], v4, {srd(W2)}, s67 offen
            buffer_load_dwordx4 a[84:87], v4, {srd(W2)}, s68 offen
            """)
            S[-1].wr = set(); S[-2].wr = set()
    if OPT['kvpos'] >= 2:
        if OPT['msw'] == 1: msweep(S)
        c3(OPT['c3a'])
        if OPT['msw'] == 2: msweep(S)
        if OPT['stch'] == 3: stouch(S)
        if OPT['spb'] == 2: S(f"s_waitcnt vmcnt({2*OPT['c3a'] + 6 + (4 if OPT['c3pf'] else 0)})\ns_barrier")
        if OPT['ownw2']: S.extend(SPARE_W2[5:5+OPT['ownw2']])
        S.waitvm("kvd")
    else:
        c3(OPT['c3a']); S(f"s_waitcnt vmcnt({2*OPT['c3a'] + 1 + (4 if OPT['c3pf'] else 0)})")
    S("s_barrier")
    S.extend(kvpre())
    S.extend(flag_init()); S(f"s_mov_b32 s{sDone}, 0x80000000")
    if OPT['msw'] == 3: msweep(S)
    S("s_barrier")
    if OPT['kvpos'] >= 2: S.extend(dh_loads())
    S.extend(SPARE_W2[:5] if OPT['ownw2'] else SPARE_W2[:8])
    S.extend(flag_store(sFAo, WS, "kv1"))
    stamp(S, "kvpub")
    if OPT['stch'] == 2: stouch(S)
    S.extend(SPARE_W2[5+OPT['ownw2']:] if OPT['ownw2'] else SPARE_W2[8:])
    c3(OPT['c3b'])
    if OPT['stch'] == 1: stouch(S)
    if OPT['tp'] >= 0: S.extend(w2touch(range(OPT['tp'], 7)))
    if OPT['sweep']:
        S(f"""
        s_lshl_b32 s66, s{sW}, 7
        s_add_u32 s64, s64, s66
        s_add_u32 s65, s65, s{sW}
        s_mov_b32 s66, {OPT['swn']}
        s_cmp_eq_u32 s{sW}, 3
        s_cbranch_scc1 L_swe
        L_sw:
        s_mul_i32 s69, s65, 37
        s_lshr_b32 s69, s69, 8
        s_mul_i32 s69, s69, 7
        s_sub_u32 s67, s65, s69
        s_lshl_b32 s67, s67, 16
        s_add_u32 s67, s67, s64
        """)
        for n in range(8):
            S(f"buffer_load_dwordx4 a[232:235], v4, {srd(W2)}, s67 offen\ns_add_u32 s67, s67, 8192"); S[-2].cls = 'other'
        S(f"""
        s_add_u32 s65, s65, 1
        s_sub_u32 s66, s66, 1
        s_cmp_lg_u32 s66, 0
        s_cbranch_scc1 L_sw
        L_swe:
        s_waitcnt vmcnt(0)
        """)
    S.extend(hcopy_wr() if OPT['hcreg'] else Stream()); S.extend(htouch_pro() if OPT['hto'] else Stream()); S.extend(hpad()); S.extend(hoffs()[:1] if OPT['packa'] else hoffs())
    if OPT['stch'] == 5:
        S("s_waitcnt vmcnt(0)"); stouch(S)
    S(pollA_load()); S.extend(u_loads(True))
    S("s_waitcnt vmcnt(0) lgkmcnt(0)")
    if OPT['stch'] == 4: stouch(S)
    S("s_branch L_join")
    return S

def w2touch(ps):
    S = Stream(); a, b = 250, 251
    g = Stream(); g(f"""v_cmp_gt_u32 vcc, 16, v{vL}
    v_lshlrev_b32 v{a}, 10, v{vL}
    v_mov_b32 v{b}, {OOB}
    v_cndmask_b32 v{a}, v{b}, v{a}, vcc"""); S.atomic(g)
    S(f"""s_lshr_b32 s79, s{sJ}, 3
    s_lshl_b32 s79, s79, 14
    s_mul_i32 s71, s{sW}, {448*1024}
    s_add_u32 s79, s79, s71
    s_lshl_b32 s71, s{sCB2}, 7
    s_add_u32 s79, s79, s71""")
    for p in ps:
        g = Stream(); g(f"""s_add_u32 s{sCnt}, s{sRot}, {p}
        s_cmp_ge_u32 s{sCnt}, 7
        s_cselect_b32 s71, 7, 0
        s_sub_u32 s{sCnt}, s{sCnt}, s71
        s_lshl_b32 s{sCnt}, s{sCnt}, 16
        s_add_u32 s{sCnt}, s{sCnt}, s79
        buffer_load_dword a236, v{a}, {srd(W2)}, s{sCnt} offen"""); g[-1].wr = set(); S.atomic(g)
    return S

def htouch():
    S = Stream()
    if OPT['htouch']:
        S(f"v_and_b32 v230, 31, v{vL}\nv_lshrrev_b32 v231, 5, v{vL}\nv_mul_u32_u24 v231, {112*1024}, v231\nv_lshl_add_u32 v230, v230, 7, v231\ns_lshl_b32 s87, s{sTH}, 11\ns_sub_u32 s87, s{sHst}, s87")
        S(f"buffer_load_dword a236, v230, {srd(WS)}, s87 offen")
        if OPT['htouch'] > 1: S(f"buffer_load_dword a237, v230, {srd(WS)}, s87 offen offset:64")
    return S

WSF = 48; sDone = 87
def flag_try(soff, tag, last=False, first=False):
    S = Stream(); g = Stream()
    if last:
        g.waitvm(tag); g(f"s_cmp_eq_u32 s{sDone}, 0")
    else:
        g(f"s_getreg_b32 s{WSF+2}, hwreg(HW_REG_IB_STS)\ns_and_b32 s{WSF+2}, s{WSF+2}, 0xc0000f\ns_or_b32 s{WSF+2}, s{WSF+2}, s{sDone}")
        g.append(Pseudo('CMPVM', (tag, WSF+2)))
    g(f"s_cselect_b32 s{WSF+2}, {WS_SIZE}, 0")
    g(f"s_mov_b32 s{sDone}, 0" if last else f"s_cselect_b32 s{sDone}, 0x80000000, s{sDone}")
    g(f"buffer_store_dword v{vN}, v{vL0}, {srd(WSF)}, s{soff} offen sc1")
    S.atomic(g)
    return S
def flag_init():
    S = Stream(); S(f"s_mov_b64 s[{WSF}:{WSF+1}], s[{WS}:{WS+1}]\ns_mov_b32 s{sDone}, 0\ns_mov_b32 s{sW2neg}, {(32768 - 7*65536) & 0xffffffff:#x}"); return S

def dh_loads():
    S = Stream()
    if OPT['tiny']: return S
    g = Stream(); g(f"s_lshl_b32 s{sDv}, s2, 2\nv_mov_b32 v219, s{sDv}\nglobal_load_dword a248, v219, s[{sDptr}:{sDptr+1}]"); S.atomic(g)
    g = Stream(); g(f"s_lshl_b32 s{sDv}, s{sCH}, 12\nbuffer_load_dword a249, off, {srd(SSK)}, s{sDv}"); S.atomic(g)
    return S

def hcopy_ld():
    S = one(f"s_sub_u32 s{sHC}, s{sYs}, {YT:#x}")
    for t in (f"buffer_load_dwordx4 v[232:235], v{vL16}, {srd(SSK)}, s{sHC} offen nt", f"buffer_load_dword v240, v{vL16}, {srd(SSK)}, s{sHC} offen offset:16",
              f"buffer_load_dwordx4 v[236:239], v{vL16}, {srd(SSK)}, s{sHC} offen offset:1024 nt", f"buffer_load_dword v241, v{vL16}, {srd(SSK)}, s{sHC} offen offset:1040"):
        g = Stream(); g(t, "hc"); S.atomic(g)
    return S
def hcopy_wr():
    S = one(f"s_mul_i32 s{sT1}, s{sTH}, 8320\ns_lshl_b32 s{sT0}, s{sFH}, 11\ns_add_u32 s{sT1}, s{sT1}, s{sT0}\ns_add_u32 s{sT1}, s{sT1}, {HC+32}\nv_add_u32 v242, s{sT1}, v{vL16}")
    for i in range(2):
        e = 232 + 4*i; o = 244 + 4*i
        S(f"ds_write_b128 v242, v[{e}:{e+3}] offset:{1024*i}")
        for j in range(4): S(f"v_alignbit_b32 v{o+j}, v{e+j+1 if j < 3 else 240+i}, v{e+j}, 16")
        S(f"ds_write_b128 v242, v[{o}:{o+3}] offset:{4160+1024*i}")
    return S
def hcopy_dma():
    if OPT['hcreg']: return hcopy_ld()
    S = Stream()
    S(f"s_mul_i32 s{sT0}, s{sW}, 4160")
    dma_n(S, vL16, SSK, sHC, f"s_add_u32 m0, s{sT0}, {HC+32}", "hc", samev=True, nt=OPT['hcnt'])
    return S
def hpad():
    S = Stream()
    S(f"v_accvgpr_read_b32 v230, a248\nv_accvgpr_read_b32 v231, a249\ns_lshl_b32 s{sT1}, s{sTH}, 4\nv_lshrrev_b32 v230, s{sT1}, v230\nv_lshlrev_b32 v230, 16, v230\nv_lshlrev_b32 v231, 16, v231\nv_mul_lo_u32 v231, v231, s{sFH}\nv_readfirstlane_b32 s{sDv}, v230")
    S(f"s_mul_i32 s{sT1}, s{sW}, 4160\nv_and_b32 v230, 7, v{vL}")
    g = Stream(); g(f"v_cmp_eq_u32 vcc, 7, v230\nv_lshlrev_b32 v230, 2, v230\ns_add_u32 s{sT1}, s{sT1}, {HC}\nv_cndmask_b32 v231, 0, v231, vcc\nv_add_u32 v230, s{sT1}, v230\nds_write_b32 v230, v231")
    S.atomic(g)
    return S

def g1_set(n): return FR + 16 * (n % 3)
def g1_reads(n):
    if n >= 32: return []
    i, ks = divmod(n, 4)
    st = g1_set(n); slot = i & 3; hi = slot >> 1; off = (slot & 1) * 32768
    L = []
    for u in range(2):
        for rd in range(2):
            L.append(f"ds_read_b64_tr_b16 v[{st+4*u+2*rd}:{st+4*u+2*rd+1}], v{vWA+2*hi+u} offset:{off+16384+ks*4096+rd*1024}")
    for tt in range(2):
        L.append(f"ds_read_b128 v[{st+8+4*tt}:{st+11+4*tt}], v{vQA+4*hi+ks} offset:{off+tt*4096}")
    return [L[0], L[1], L[4], L[5], L[2], L[3]]

def stat_loads(att):
    return [f"buffer_load_dwordx2 v[{STL+4*att+2*tt}:{STL+4*att+2*tt+1}], v{vSTV}, {srd(WS)}, s{sStatC} offen offset:{tt*512} sc1" for tt in range(2)]

def gemm1():
    S = Stream(); CAP = OPT['cap']
    S.waitvm("c0"); S("s_barrier")
    stamp(S, "c0")
    for t in g1_reads(0): S(t)
    for t in g1_reads(1): S(t, 'fr1')
    for i in range(8):
        S.mark(f"c{i}a")
        for ks in range(4):
            n0 = 4*i + ks; st = g1_set(n0); first = n0 == 0
            rds = g1_reads(n0 + 2)
            bar = (ks == 1 and i < 7) or n0 == 30
            if n0 == 1: S.mark("c0h")
            if n0 > 0: S.waitlg(f'fr{n0}')
            small = [st] if n0 < 30 else ([st, g1_set(31)] if n0 == 30 else [])
            if OPT['cshare'] and n0 >= 4: small = []
            for n, (u, tt) in enumerate([(0, 0), (0, 1), (1, 0), (1, 1)]):
                acc = ACC + 16 * (2*u + tt)
                c = "0" if first else vr(acc, 16)
                if bar and n == 3:
                    if OPT['prof'] == 4 and OPT['fine'] and i in (1, 2): stamp(S, f"f{i}")
                    S.mark(f"c{i}m")
                    if i == OPT['kvpos'] and not OPT['kvfill'] and not OPT['kvaft']:
                        if OPT['cshare'] and OPT['cspub'] == 2: S.extend(cs_publish())
                        if OPT['prof'] == 4 and OPT['fine']: stamp(S, "k_a")
                        S.waitvm("kvd")
                        if OPT['prof'] == 4 and OPT['fine']: stamp(S, "k_w")
                        S("s_barrier")
                        if OPT['prof'] == 4 and OPT['fine']: stamp(S, "k_b")
                        S.extend(kvpre())
                        if OPT['prof'] in (2, 4): stamp(S, "kvp")
                    if i < 7: S.waitvm(f"c{i+1}")
                    if OPT['prof'] in (2, 4) or OPT['x_meas']: stamp(S, f"w{i}")
                    S.waitlg()
                S(f"v_mfma_f32_32x32x16_bf16 {vr(acc,16)}, v[{st+4*u}:{st+4*u+3}], v[{st+8+4*tt}:{st+11+4*tt}], {c}")
                k = 0
                if bar and n == 3:
                    S("s_barrier"); S.mark(f"c{i}b"); k = 2
                while rds and k < (3 if bar else 2): S(rds.pop(0), f'fr{n0+2}'); k += 1
                if n0 == 30 and n == 2 and not OPT['cshare']:
                    S(f"ds_write_b128 v{vCSW}, a[{CSACC}:{CSACC+3}]"); k += 1
                S.fill(CAP - k)
                if OPT['kvaft'] and n0 == 4*OPT['kvpos'] + 2 and n == 3:
                    S.mark("kvr"); S.extend(kvpre()[10:])
                    if OPT['prof'] in (2, 4): stamp(S, "kvp")
                if n == 0 and not (OPT['x_nocs'] and n0 > 0):
                    for sm in small:
                        c = "0" if first else ar(CSACC, 4)
                        S(f"v_mfma_f32_16x16x32_bf16 {ar(CSACC,4)}, v[{sm}:{sm+3}], {ar(SEL,4)}, {c}")
                        S.fill(1)
        S.mark(f"c{i}e")
    return S

CSL = 200
def cs_publish():
    S = Stream(); a, b = 250, 251; T = 240
    S(f"""
    s_and_b32 s{sCsN}, s{sJ}, 1
    s_xor_b32 s{sCsN}, s{sCsN}, 1
    s_lshl_b32 s{sCsN}, s{sCsN}, 1
    v_and_b32 v{a}, 15, v{vL}
    v_lshrrev_b32 v{b}, 4, v{vL}
    v_lshlrev_b32 v{b}, 5, v{b}
    v_lshl_add_u32 v{b}, v{a}, 7, v{b}
    v_mov_b32 v{T+1}, v{vN}
    v_mov_b32 v{T+3}, v{vN}
    v_mov_b32 v{T+5}, v{vN}
    v_mov_b32 v{T+7}, v{vN}
    """)
    g = Stream(); g(f"v_cmp_gt_u32 vcc, s{sCsN}, v{a}\nv_mov_b32 v{a}, {OOB}\nv_cndmask_b32 v{b}, v{a}, v{b}, vcc"); S.atomic(g)
    for r in range(4): S(f"v_accvgpr_read_b32 v{T+2*r}, a{CSACC+r}")
    S(f"buffer_store_dwordx4 v[{T}:{T+3}], v{b}, {srd(WS)}, s{sCsW} offen sc1\nbuffer_store_dwordx4 v[{T+4}:{T+7}], v{b}, {srd(WS)}, s{sCsW} offen offset:16 sc1")
    return S
def cs_loads():
    return [f"buffer_load_dwordx2 v[{CSL+2*i}:{CSL+2*i+1}], v{vCSW}, {srd(WS)}, s{sCsR} offen offset:{1024*i} sc1" for i in range(4)]
def cs_gather():
    S = Stream(); t = CSL + 1
    check_poll(S, cs_loads(), [CSL+1, CSL+3, CSL+5, CSL+7])
    S(f"""
    v_add_f32 v{CSL}, v{CSL}, v{CSL+2}
    v_add_f32 v{CSL+4}, v{CSL+4}, v{CSL+6}
    v_and_b32 v{CSL+2}, 31, v{vL}
    v_add_f32 v{CSL}, v{CSL}, v{CSL+4}
    v_lshlrev_b32 v{CSL+2}, 2, v{CSL+2}
    v_mov_b32 v{t}, v{CSL}
    s_lshl_b32 s{sCsN}, s{sW}, 7
    s_add_u32 s{sCsN}, s{sCsN}, {CS}
    v_permlane32_swap_b32 v{CSL}, v{t}
    v_add_u32 v{CSL+2}, s{sCsN}, v{CSL+2}
    v_add_f32 v{CSL}, v{CSL}, v{t}
    ds_write_b32 v{CSL+2}, v{CSL}
    """)
    return S

def cs_reads():
    S = Stream()
    for u in range(2):
        for j in range(4): S(f"ds_read_b128 v[{CSV+16*u+4*j}:{CSV+16*u+4*j+3}], v{vCSA+u} offset:{32*j}")
    return S

def stats_consume():
    S = Stream()
    check_poll(S, stat_loads(1), [STL+5, STL+7])
    for tt in range(2):
        a1 = STL + 4 + 2*tt
        S(f"v_and_b32 v{MR+2*tt+1}, 0xffff0000, v{a1}\nv_rcp_f32 v{MR+2*tt+1}, v{MR+2*tt+1}\nv_lshlrev_b32 v{MR+2*tt}, 16, v{a1}\nv_mul_f32 v{MR+2*tt+1}, {NLOG2E:#x}, v{MR+2*tt+1}")
    return S

def epi1(inserts):
    S = Stream(); n = 0; held = []
    for u in range(2):
        for tt in range(2):
            for s in range(2):
                acc = ACC + 16*(2*u+tt) + 8*s; cs = CSV + 16*u + 8*s; W = FR + 8*(n & 1); P = FR + 16 + 4*n
                mr = f"v[{MR+2*tt}:{MR+2*tt+1}]"
                for p in range(4): S(f"v_pk_fma_f32 v[{acc+2*p}:{acc+2*p+1}], v[{cs+2*p}:{cs+2*p+1}], {mr}, v[{acc+2*p}:{acc+2*p+1}] op_sel_hi:[1,0,1] neg_lo:[0,1,0] neg_hi:[0,1,0]")
                for p in range(4): S(f"v_pk_mul_f32 v[{W+2*p}:{W+2*p+1}], v[{acc+2*p}:{acc+2*p+1}], {mr} op_sel:[0,1] op_sel_hi:[1,1]")
                for p in range(8): S(f"v_exp_f32_e64 v{W+p}, v{W+p}")
                if held and n > OPT['uat']: S(held.pop(0), "hst")
                for p in range(4): S(f"v_pk_add_f32 v[{W+2*p}:{W+2*p+1}], v[{W+2*p}:{W+2*p+1}], 1.0 op_sel_hi:[1,0]")
                for p in range(8): S(f"v_rcp_f32_e64 v{W+p}, v{W+p}")
                if held and n > OPT['uat']: S(held.pop(0), "hst")
                for p in range(4): S(f"v_pk_mul_f32 v[{W+2*p}:{W+2*p+1}], v[{acc+2*p}:{acc+2*p+1}], v[{W+2*p}:{W+2*p+1}]")
                for p in range(4): S(f"v_cvt_pk_bf16_f32 v{P+p}, v{W+2*p}, v{W+2*p+1}")
                st = f"buffer_store_dwordx4 v[{P}:{P+3}], v{vL16}, {srd(WS)}, s{sHst+2*u+tt} offen" + (" offset:1024" if s else "") + [" sc1", "", " nt", " sc0"][OPT['x_hplain']]
                if OPT['hold'] and n <= OPT['uat']: held.append(st)
                else: S(st, "hst")
                if OPT['prof'] == 3: stamp(S, f"e{n}")
                if n in inserts: S.extend(inserts[n])
                n += 1
    for st in held: S(st, "hst")
    return S

CB = 128; CACC = 64; CAF = 96; NA = 6; UST = 220
def pollA_load(): return f"buffer_load_dword v228, v{vPA}, {srd(WS)}, s{sFAp} offen sc1"
sResA = 40; sResC = 41; SA = 64
def spollA_load(): return one(f"s_load_dwordx16 s[{SA}:{SA+15}], s[{WS}:{WS+1}], s{sFAp} glc")
def u_loads(block=False):
    S = Stream()
    if block: check_poll(S, [pollA_load()], [228]); S(f"s_mov_b32 s{sResA}, 0\ns_mov_b32 s{WSO+2}, {WS_SIZE}")
    elif block is False and OPT['packa']:
        pr = lambda r: f"s[{r}:{r+1}]"
        g = Stream(); g(f"s_xor_b64 {pr(SA)}, {pr(SA)}, {pr(sN2)}")
        for r in range(2, 16, 2): g(f"s_xor_b64 {pr(SA+r)}, {pr(SA+r)}, {pr(sN2)}\ns_or_b64 {pr(SA)}, {pr(SA)}, {pr(SA+r)}")
        g(f"s_cselect_b32 s{WSO+2}, 0, {WS_SIZE}\ns_cselect_b32 s{sResA}, 1, 0"); S.atomic(g)
    elif block is False: note_poll(S, 228, sResA)
    S(f"buffer_load_dwordx4 v[{UST}:{UST+3}], v{vL16}, {srd(WSO)}, s{sU} offen sc1")
    S(f"buffer_load_dwordx4 v[{UST+4}:{UST+7}], v{vL16}, {srd(WSO)}, s{sU} offen offset:1024 sc1")
    return S

DU = 96
def conv():
    S = Stream()
    repair(S, sResA, one(f"s_mov_b32 s{WSF+2}, {WS_SIZE}\ns_mov_b32 s{sDone}, 0x80000000\nbuffer_store_dword v{vN}, v{vL0}, {srd(WSF)}, s{sFBo} offen sc1"), pollA_load(), 228, u_loads(None))
    if OPT['prof'] == 3: stamp(S, "rep")
    S(f"ds_write_b128 v{vCU}, v[{UST}:{UST+3}]\nds_write_b128 v{vCU}, v[{UST+4}:{UST+7}] offset:1024")
    S.waitvm("hc"); S.waitlg(); S("s_barrier")
    stamp(S, "conv0")
    rA = lambda c, a: CB + 64*(c & 1) + 4*a
    rB = lambda c, b: CB + 64*(c & 1) + 32 + 4*b
    def ldA(c, a):
        m = 4*a + c
        return [f"ds_read2_b32 v[{rA(c,a)+2*h}:{rA(c,a)+2*h+1}], v{vCA+(m>>3)} offset0:{32*(m&7)+2*h} offset1:{32*(m&7)+2*h+1}" for h in range(2)]
    ldB = lambda c, b: [f"ds_read_b128 v[{rB(c,b)}:{rB(c,b)+3}], v{vCB} offset:{128*(4*b+c)}"]
    pairs = [(a, b) for a in range(8) for b in range(7, a - 1, -1)]
    def loads(c):
        L = ldA(c, 0)
        for b in range(7, -1, -1): L += ldB(c, b)
        for a in range(1, 8): L += ldA(c, a)
        return L
    q = loads(0)
    for t in q[:6]: S(t)
    q = q[6:]
    S.mark("cva"); seenT = set(); p = 0
    for c in range(4):
        nq = loads(c + 1) if c < 3 else []
        if c > 0 and OPT['cvwait']: S.waitlg(f"cl{c}")
        for i, (a, b) in enumerate(pairs):
            T = a + 7 - b; acc = CACC + 4*T
            cc = vr(acc, 4) if T in seenT else "0"; seenT.add(T)
            S(f"v_mfma_f32_16x16x32_bf16 {vr(acc,4)}, v[{rA(c,a)}:{rA(c,a)+3}], v[{rB(c,b)}:{rB(c,b)+3}], {cc}")
            k = 0
            if q:
                for _ in range(2 if len(q) > 14 else 1):
                    if q: S(q.pop(0)); k += 1
            elif nq and (c == 0 or i % 4 != 3) and i >= 1: S(nq.pop(0), f"cl{c+1}"); k += 1
            S.fill(2 - k)
            S.mark(f"cv{p}")
            if OPT['prof'] == 3 and p in (35, 71, 107): stamp(S, f"cv{p}")
            p += 1
        for t in nq: S(t, f"cl{c+1}")
    S.mark("cve")
    stamp(S, "conv1")
    return S

def conv_du():
    S = Stream(); U = 112
    for T in range(4): S(f"ds_read_b64 v[{U+2*T}:{U+2*T+1}], v{vCD} offset:{(3-T)*512}")
    S(f"v_mov_b32 v120, s{sDv}")
    return S

def conv_epi(tail):
    S = Stream(); R = 224; Y = 120; U = 112
    for T in range(4):
        a = DU + 4*T
        S(f"""v_and_b32 v{a}, 0xffff0000, v{U+2*T+1}
        v_lshlrev_b32 v{a+1}, 16, v{U+2*T+1}
        v_and_b32 v{a+2}, 0xffff0000, v{U+2*T}
        v_lshlrev_b32 v{a+3}, 16, v{U+2*T}""")
        if T == 1: S(f"s_cmp_eq_u32 s{sFH}, 0\ns_cbranch_scc0 L_odd"); break
    def half(T_, keep, send):
        for T in range(4): T_(f"ds_write_b128 v{vCX}, v[{send+4*T}:{send+4*T+3}] offset:{1024*T}")
        for T in (2, 3):
            a = DU + 4*T
            T_(f"""v_and_b32 v{a}, 0xffff0000, v{U+2*T+1}
            v_lshlrev_b32 v{a+1}, 16, v{U+2*T+1}
            v_and_b32 v{a+2}, 0xffff0000, v{U+2*T}
            v_lshlrev_b32 v{a+3}, 16, v{U+2*T}""")
        for p in range(8): T_(f"v_pk_fma_f32 v[{DU+2*p}:{DU+2*p+1}], v[{DU+2*p}:{DU+2*p+1}], v[120:121], v[{keep+2*p}:{keep+2*p+1}] op_sel_hi:[1,0,1]")
    half(S, CACC, CACC + 16)
    S("L_oddback:")
    O = Stream(); O("L_odd:"); half(O, CACC + 16, CACC); O("s_branch L_oddback"); rare.extend(O)
    S.waitlg(); S("s_barrier")
    for T in range(4): S(f"ds_read_b128 v[{R+4*T}:{R+4*T+3}], v{vCXR} offset:{1024*T}")
    S.extend(tail)
    for pr in range(2):
        for T in (2*pr, 2*pr+1):
            a = DU + 4*T
            S(f"v_pk_add_f32 v[{a}:{a+1}], v[{a}:{a+1}], v[{R+4*T}:{R+4*T+1}]\nv_pk_add_f32 v[{a+2}:{a+3}], v[{a+2}:{a+3}], v[{R+4*T+2}:{R+4*T+3}]")
            y = Y + 4*pr + 2*(T & 1)
            S(f"v_cvt_pk_bf16_f32 v{y}, v{a}, v{a+1}\nv_cvt_pk_bf16_f32 v{y+1}, v{a+2}, v{a+3}")
        y = Y + 4*pr
        S(f"v_permlane16_swap_b32 v{y}, v{y+2}\nv_permlane16_swap_b32 v{y+1}, v{y+3}")
        S(f"buffer_store_dwordx4 v[{y}:{y+3}], v{vCY}, {srd(WS)}, s{sYs} offen" + (" offset:1024" if pr else "") + " sc1", "yst")
    return S

HR = 128; XF = 224; SF = 240; TP = 192
def pollB_load(): return f"buffer_load_dword v4, v{vPB}, {srd(WS)}, s{sFBp} offen sc1"
def pollC_load(): return f"buffer_load_dword v5, v{vPC}, {srd(WS)}, s{sFCp} offen sc1"
sFBq = sFBp
def spollB_load():
    return one(f"s_load_dwordx4 s[8:11], s[{WS}:{WS+1}], s{sFBp} glc\ns_load_dwordx4 s[88:91], s[{WS}:{WS+1}], s{sFBp} offset:16 glc")
def spollB_check(S):
    k = nrare[0]; nrare[0] += 1
    g = Stream()
    n2 = f"s[{sN2}:{sN2+1}]"
    if OPT['hto']: g("s_cmp_lg_u64 s[8:9], 0")
    else:
        g(f"s_mov_b32 s91, s90\ns_xor_b64 s[8:9], s[8:9], {n2}")
        for r in (10, 88, 90): g(f"s_xor_b64 s[{r}:{r+1}], s[{r}:{r+1}], {n2}\ns_or_b64 s[8:9], s[8:9], s[{r}:{r+1}]")
    g(f"s_cbranch_scc1 L_rare{k}\nL_back{k}:")
    S.atomic(g)
    rare(f"L_rare{k}:\ns_mov_b32 s{sCnt}, 0")
    if OPT['prof']: rare(f"v_writelane_b32 v{vPROF}, 1, {52+k}")
    rare(f"L_rl{k}:\ns_sleep 1\nbuffer_load_dword v4, v{vPB}, {srd(WS)}, s{sFBq} offen sc1\ns_waitcnt vmcnt(0)\nv_cmp_ne_u32 vcc, s{sN}, v4")
    rare(f"s_nop 1\ns_cbranch_vccz L_back{k}\ns_add_u32 s{sCnt}, s{sCnt}, 1\ns_cmp_lt_u32 s{sCnt}, 0x4000\ns_cbranch_scc1 L_rl{k}\ns_branch L_back{k}")
def htouch_pro():
    S = Stream(); a, b = 6, 7
    g = Stream(); g(f"v_cmp_lt_u32 vcc, 27, v{vL}\nv_lshlrev_b32 v{a}, 10, v{vL}\nv_mov_b32 v{b}, {112*1024 - 28*1024}\nv_cndmask_b32 v{b}, 0, v{b}, vcc\nv_add_u32 v{a}, v{a}, v{b}"); S.atomic(g)
    g = Stream(); g(f"v_cmp_lt_u32 vcc, 55, v{vL}\nv_mov_b32 v{b}, {OOB}\ns_min_u32 s93, s{sHL}, s{sHLo}\nv_cndmask_b32 v{a}, v{a}, v{b}, vcc"); S.atomic(g)
    S(f"s_lshl_b32 s{sT1}, s{sRot}, 12\ns_sub_u32 s93, s93, s{sT1}\ns_lshl_b32 s{sT1}, s{sCB2}, 7\ns_add_u32 s93, s93, s{sT1}")
    return S
def htouch_go():
    S = Stream(); g = Stream(); n2 = f"s[{sN2}:{sN2+1}]"
    g(f"s_mov_b32 s91, s90\ns_xor_b64 s[8:9], s[8:9], {n2}")
    for r in (10, 88, 90): g(f"s_xor_b64 s[{r}:{r+1}], s[{r}:{r+1}], {n2}\ns_or_b64 s[8:9], s[8:9], s[{r}:{r+1}]")
    g(f"s_cselect_b32 s{WSO+2}, 0, {WS_SIZE}\nbuffer_load_dword a236, v6, {srd(WSO)}, s93 offen sc1")
    S.atomic(g)
    return S
def hload(n):
    D = OPT['hring']; p, k = divmod(n, 28); so = sHL if p == 0 else sHLo
    T = Stream(); g = Stream()
    g(f"buffer_load_dwordx4 v[{HR+4*(n%D)}:{HR+4*(n%D)+3}], v{vL16}, {srd(WS)}, s{so} offen" + (f" offset:{(k&3)*1024}" if k & 3 else "") + " sc1")
    if k & 3 == 3 and k < 27: g(f"s_cmp_eq_u32 s{sRot}, {6-(k>>2)}\ns_cselect_b32 s{sCnt}, s{sNeg}, 4096\ns_add_u32 s{so}, s{so}, s{sCnt}")
    T.atomic(g)
    return T
def gemm2():
    S = Stream(); D = OPT['hring']; NT = OPT['ntail']
    S.mark("g2s")
    def mf(n, u):
        p, k = divmod(n, 28); h = HR + 4*(n % D)
        acc = ACC + 32*(1-p) + 16*u; a = (2*k + u) * 4
        S(f"v_mfma_f32_32x32x16_bf16 {vr(acc,16)}, {ar(a,4)}, v[{h}:{h+3}], {'0' if k == 0 else vr(acc, 16)}")
    for n in range(56 - NT):
        for u in range(2):
            mf(n, u); used = 0
            if u == 1 and n + D < 56:
                T = flatten(hload(n + D)); S.extend(T); used = len(T)
            S.fill(5 - used)
        S.mark(f"g2_{n}")
        if (OPT['prof'] > 1 or OPT['x_meas']) and n in (0, 13, 27, 34, 41, 46, 51): stamp(S, f"g2_{n}")
    for n in range(56 - NT, 56): mf(n, 1); S.fill(5)
    S.mark("g2t")
    F = ACC + 16; Ee = ACC + 32
    tail = [f"ds_write_b128 v{vRW}, v[{F+4*j}:{F+4*j+3}] offset:{32768+1024*j}" for j in range(4)]
    for i, n in enumerate(range(56 - NT, 56)):
        mf(n, 0)
        if i == min(1, NT - 1):
            for t in tail: S(t)
    S.waitlg(); S("s_barrier")
    for j in range(4): S(f"ds_read_b128 v[{F+4*j}:{F+4*j+3}], v{vRR+2} offset:{32768+1024*j}")
    return S

def red_early_w():
    S = Stream()
    for u in range(2):
        for j in range(4): S(f"ds_write_b128 v{vRW}, v[{ACC+32+16*u+4*j}:{ACC+35+16*u+4*j}] offset:{4096*u+1024*j}")
    g = Stream(); g.waitlg(); g("s_barrier"); S.atomic(g)
    return S
def red_early_r():
    S = Stream(); A = ACC + 32; B = ACC + 48
    for j in range(4): S(f"ds_read_b128 v[{A+4*j}:{A+4*j+3}], v{vRR} offset:{1024*j}")
    for j in range(4): S(f"ds_read_b128 v[{B+4*j}:{B+4*j+3}], v{vRR+1} offset:{4096+1024*j}")
    for r in range(16): S(f"v_add_f32 v{A+r}, v{A+r}, v{B+r}")
    return S

FS = 8
def prep_x():
    S = Stream()
    g = Stream()
    g(f"s_add_u32 m0, s{sM0b}, {E}\ns_add_u32 s{sT0}, s{sXO}, 15360\nbuffer_load_dwordx4 v{vXD}, {srd(QF)}, s{sXO} offen lds")
    g(f"buffer_load_dwordx4 v{vXD}, {srd(QF)}, s{sT0} offen offset:1024 lds", "xd")
    S.atomic(g)
    S(f"buffer_load_dwordx2 v[{FS}:{FS+1}], v{vSTV}, {srd(WS)}, s{sStatF} offen sc1")
    return S
def prep_x2():
    S = Stream(); XR = 16
    check_poll(S, [f"buffer_load_dwordx2 v[{FS}:{FS+1}], v{vSTV}, {srd(WS)}, s{sStatF} offen sc1"], [FS+1])
    S(f"v_and_b32 v{FS+1}, 0xffff0000, v{FS}\nv_rcp_f32 v{FS+1}, v{FS+1}\nv_lshlrev_b32 v{FS}, 16, v{FS}\nv_mul_f32 v{FS+2}, v{FS+1}, v{FS+1}\nv_mul_f32 v{FS+1}, {NLOG2E:#x}, v{FS+1}")
    S.waitvm("xd")
    for j in range(4):
        if j: S(f"v_xor_b32 v{FS+3}, {16*j}, v{vXA}")
        S(f"ds_read_b64 v[{XR+2*j}:{XR+2*j+1}], v{FS+3 if j else vXA}")
    for q in range(8):
        S(f"v_lshlrev_b32 v{XF+2*q}, 16, v{XR+q}\nv_and_b32 v{XF+2*q+1}, 0xffff0000, v{XR+q}")
    for r in range(16): S(f"v_sub_f32 v{SF+r}, v{XF+r}, v{FS}")
    for r in range(16): S(f"v_mul_f32 v{SF+r}, v{SF+r}, v{FS+2}")
    return S
YSR = 192
def prep_y(note=True):
    S = Stream(); YS = YSR
    if note: note_poll(S, 5, sResC)
    S(f"s_add_u32 s{sT0}, s{sYl}, 65536")
    S(f"buffer_load_dwordx4 v[{YS}:{YS+3}], v{vYL}, {srd(WSO)}, s{sYl} offen sc1\nbuffer_load_dwordx4 v[{YS+4}:{YS+7}], v{vYL}, {srd(WSO)}, s{sT0} offen sc1")
    return S
YR = 16
def prep_y2():
    S = Stream(); YS = YSR
    S(f"ds_write_b128 v{vYW}, v[{YS}:{YS+3}]\nds_write_b128 v{vYW}, v[{YS+4}:{YS+7}] offset:1024")
    for j in range(4): S(f"ds_read_b64_tr_b16 v[{YR+2*j}:{YR+2*j+1}], v{vYA} offset:{512*j}")
    return S

def final():
    S = Stream(); A = ACC; F = ACC + 16; Ee = ACC + 32; W = HR; P = HR + 16; Yf = HR + 32
    stamp(S, "g2end")
    pr = lambda b, p: f"v[{b+2*p}:{b+2*p+1}]"
    mr = f"v[{FS}:{FS+1}]"
    for p in range(8): S(f"v_pk_add_f32 {pr(A,p)}, {pr(A,p)}, {pr(Ee,p)}")
    for p in range(8): S(f"v_pk_add_f32 {pr(A,p)}, {pr(A,p)}, {pr(F,p)}")
    for p in range(8): S(f"v_pk_mul_f32 {pr(W,p)}, {pr(A,p)}, {mr} op_sel:[0,1] op_sel_hi:[1,1]")
    for p in range(16): S(f"v_exp_f32_e64 v{W+p}, v{W+p}")
    S.extend(prep_y2())
    for p in range(8): S(f"v_pk_add_f32 {pr(W,p)}, {pr(W,p)}, 1.0 op_sel_hi:[1,0]")
    for p in range(16): S(f"v_rcp_f32_e64 v{W+p}, v{W+p}")
    for p in range(8): S(f"v_pk_mul_f32 {pr(A,p)}, {pr(A,p)}, {pr(SF,p)}")
    for p in range(8): S(f"v_pk_mul_f32 {pr(A,p)}, {pr(A,p)}, {pr(W,p)}")
    repair(S, sResC, Stream(), pollC_load(), 5, cat(prep_y(False), prep_y2()))
    for j in range(4):
        for q in (2*j, 2*j+1): S(f"v_lshlrev_b32 v{Yf+2*q}, 16, v{YR+q}\nv_and_b32 v{Yf+2*q+1}, 0xffff0000, v{YR+q}")
        for p in (2*j, 2*j+1): S(f"v_pk_fma_f32 {pr(W,p)}, {pr(A,p)}, {pr(Yf,p)}, {pr(XF,p)}")
        for p in (2*j, 2*j+1): S(f"v_cvt_pk_bf16_f32 v{P+p}, v{W+2*p}, v{W+2*p+1}")
        S(f"ds_write_b64 v{vOW}, v[{P+2*j}:{P+2*j+1}] offset:{16*j}")
    S(f"s_add_u32 s{sT0}, s{sXO}, 16384")
    S(f"ds_read_b128 v[{W}:{W+3}], v{vOR}\nds_read_b128 v[{W+4}:{W+7}], v{vOR} offset:1280")
    S(f"buffer_store_dwordx4 v[{W}:{W+3}], v{vOS}, {srd(OUT)}, s{sXO} offen\nbuffer_store_dwordx4 v[{W+4}:{W+7}], v{vOS}, {srd(OUT)}, s{sT0} offen")
    if OPT['prof']:
        stamp(S, "outst"); S("s_waitcnt vmcnt(0)"); stamp(S, "end")
        S(f"s_lshl_b32 s{sT0}, s2, 2\ns_add_u32 s{sT0}, s{sT0}, s{sW}\ns_lshl_b32 s{sT0}, s{sT0}, 8\ns_add_u32 s{sT0}, s{sT0}, {PROF}\nv_lshlrev_b32 v{vT}, 2, v{vL}")
        S(f"buffer_store_dword v{vPROF}, v{vT}, {srd(WS)}, s{sT0} offen")
    return S

def stS(name):
    s = Stream(); stamp(s, name); return s
def cat(*ss):
    o = Stream()
    for s in ss: o.extend(s)
    return o
def one(t, tag=None):
    s = Stream(); s(t, tag); return s

def spread(S, items, every):
    o = Stream(); items = list(items); n = 0
    for x in S:
        o.append(x); n += 1
        if items and n % every == 0:
            while items and items[0].cls == 'pseudo' and items[0].op != 'GROUP': o.append(items.pop(0))
            if items: o.append(items.pop(0))
    o.extend(items)
    return o

def build():
    assert not (OPT['cshare'] and OPT['map47'])
    P = Stream()
    P.extend(entry())
    c1 = chunk_dma(1); c2 = chunk_dma(2); kp = OPT['kvpos']; g1f = []
    st = stats()
    pre = cat(one(pollA_load().replace("v228,", "a233,")), one(pollB_load().replace("v4,", "a234,")), one(pollC_load().replace("v5,", "a235,"))) if OPT['pretouch'] else Stream()
    br = one(f"s_cmp_ge_u32 s{sCB1}, 14\ns_cbranch_scc1 L_spare1")
    if kp >= 2:
        P.extend(spread(cat(*[coff(i) for i in range(2, 8)], setup(), kv_pro()), c1[:OPT['c1n']], 20))
        stamp(P, "setup")
        P.extend(st[:16]); P.extend(spread(Stream(st[16:]), cat(c1[OPT['c1n']:], c2[:OPT['c2n']]), 7)); P.extend(br)
        seq = cat(c2[OPT['c2n']:], kv_dma(), dh_loads(), chunk_dma(3), Stream([Pseudo('GATE', 'c0b')]), chunk_dma(4), Stream([Pseudo('GATE', 'c1b')]), chunk_dma(5) if OPT['c5e'] else Stream())
        isl = lambda it: any(y.cls in ('dma', 'vmem_ld') for y in (it.arg if (it.cls == 'pseudo' and it.op == 'GROUP') else [it]))
        li = [i for i, it in enumerate(seq) if isl(it)]
        a0 = li[OPT['r0']]; a1 = li[OPT['r1'] - (3 if OPT['tiny'] else 0)]
        ng = lambda st: Stream([x for x in st if not (x.cls == 'pseudo' and x.op == 'GATE')])
        assert not any(x.op == 'GATE' for x in seq[:a0]) and not any(x.op == 'GATE' and x.arg == 'c1b' for x in seq[:a1])
        g1f.append(("c0a", "c0m", Stream(seq[:a0]), (OPT['p0'],)))
        g1f.append(("c0b", "c1m", ng(seq[a0:a1]), (OPT['p1'],)))
        g1f.append(("c1b", "c2m", ng(seq[a1:]), (OPT['p2'],)))
        g1f.append(("c1b", "c2m", cat(setup_b(), kv_addr())))
    else:
        kd = kv_dma(); n0 = OPT['kvn']
        P.extend(kv_pro())
        early = Stream(kd[:n0]) if kp == 0 else Stream(c1[:OPT['c1n']])
        P.extend(spread(cat(*[coff(i) for i in range(2, 8)], setup(), kv_addr()), early, 20))
        stamp(P, "setup")
        late = cat(kd[n0:], dh_loads(), c1) if kp == 0 else cat(c1[OPT['c1n']:], kd, dh_loads())
        P.extend(st[:16]); P.extend(spread(Stream(st[16:]), late, 6)); P.extend(br)
        g1f.append(("c0a", "c0m", setup_b()))
        if kp == 0:
            g1f.append(("c0a", "c0m", c2, (OPT['p0'],)))
            g1f.append(("c0b", "c1m", chunk_dma(3), (OPT['p1'],)))
            g1f.append(("c1b", "c2m", chunk_dma(4), (OPT['p2'],)))
        else:
            g1f.append(("c0a", "c0m", Stream(c2[:4]), (OPT['p0'],)))
            g1f.append(("c0b", "c1m", cat(c2[4:], chunk_dma(3)), (OPT['p1'],)))
            g1f.append(("c1b", "c2m", chunk_dma(4), (OPT['p2'],)))
    D = Stream()
    for c in range(6 if OPT['c5e'] else 5, 8):
        D.gate(f"c{c-4}b"); D.extend(chunk_dma(c))
    D.gate(OPT['stat_at']); D.pace(OPT['tpp']); D.extend(cat(*[one(t) for t in stat_loads(1) + (cs_loads() if OPT['cshare'] and OPT['cspub'] == 1 else [])], pre, htouch(), w2touch(range(OPT['tp'], 7)) if OPT['tp'] >= 0 else Stream())); D.pace(OPT['w2pace'])
    W2S = cat(Stream([Pseudo('GATE', 'c3b' if (OPT['kvfill'] or OPT['kvaft']) else f'c{kp}b')]), hcopy_dma(), Stream([Pseudo('GATE', 'c4b')]), w2_dma(0), Stream([Pseudo('GATE', 'c5b')]), Stream([Pseudo('CSL')]), w2_dma(1), Stream([Pseudo('GATE', 'c6b')]), w2_dma(2), w2_dma(3), cat(Stream([Pseudo('WAITLG', 'tr0')]), w2_dma(4)) if OPT['n2'] > 36 else Stream())
    isld = lambda it: it.cls == 'pseudo' and it.op == 'GROUP' and any(y.cls in ('dma', 'vmem_ld') for y in it.arg)
    idx = [i for i, it in enumerate(W2S) if isld(it)]
    cut1 = idx[OPT['n1']] if OPT['n1'] < len(idx) else len(W2S); cut2 = idx[OPT['n2']] if OPT['n2'] < len(idx) else len(W2S)
    for it in W2S[:cut1]:
        if it.cls == 'pseudo' and it.op == 'CSL':
            if OPT['cshare'] and OPT['cspub'] > 1:
                D.pace(1); D.extend(cat(*[one(t) for t in cs_loads()])); D.pace(OPT['w2pace'])
        else: D.append(it)
    g1f.append((OPT['dstart'], "c7m", D, (OPT['dp'],)))
    na, nb = (("c0a", "c0m"), ("c0b", "c1a")) if OPT['nonce_at'] == 0 else (("c0b", "c1a"), ("c1b", "c2a"))
    g1f.append((*na, nonce_get(), 1))
    g1f.append((*nb, cat(nonce_use(), stats_store()), 1))
    g1f.append(("c1a", "c1m", flag_init(), 1))
    if OPT['cshare']:
        if OPT['cspub'] == 1: g1f.append(("c1a", "c1m", cs_publish()))
        if OPT['cspub'] == 3: g1f.append(("c2b", "c3a", cs_publish()))
        g1f.append((OPT['csg'], "c7m", cs_gather()))
    ke = kp
    if OPT['kvaft']: g1f.append((f"c{kp}b", "kvr", Stream(kvpre()[:10]), 1))
    if OPT['kvfill']:
        ke = OPT['kvend']; g1f.append(("c2b", f"c{ke}m", kvpre_np()))
    pts = [(f"c{c}{x}", f"c{c}{y}") for c in range(ke + 1, 8) for x, y in (("a", "m"), ("b", "e"))][OPT['ft0']:OPT['ft0'] + 4]
    lastA = len(pts) == 4
    for i, (a, b) in enumerate(pts): g1f.append((a, b, flag_try(sFAo, "kv1", lastA and i == 3), 1))
    g1f.append(((f"c{ke}b", "c7a") if OPT['kvfill'] else ("c3a", "c5a")) + (setup_c(),) if not OPT['x_late'] else ("c7b", "c7e", setup_c())); g1f.append(("c6a", "c7m", hoffs()[:1] if OPT['packa'] else hoffs()))
    g1f.append(("c7a", "c7m", stats_consume()))
    if OPT['hcreg']: g1f.append((OPT['hcw'], "c7m", hcopy_wr()))
    if OPT['hto']: g1f.append(("c5b", "c6m", htouch_pro()))
    if OPT['trg1'] >= 1: g1f.append((OPT['tr0at'], "c7e", w2_tr(0)))
    g1f.append((f"c{max(4, ke)}b", f"c{max(4, ke)+1}m", hpad()))
    g1f.append(("c7b", "c7e", cat(cs_reads(), spollA_load() if OPT['packa'] else one(pollA_load())) if OPT['pat'] < 0 else cs_reads(), 1))
    P.extend(merge(gemm1(), g1f))
    stamp(P, "g1end")
    ins = {OPT['uat']: u_loads()}
    if OPT['pat'] >= 0: ins[OPT['pat']] = spollA_load() if OPT['packa'] else one(pollA_load())
    if not lastA: P.extend(flag_try(sFAo, "kv1", True))
    if OPT['packa']: ins[OPT['uat']].extend(hoffs2())

    nog = lambda st: Stream([x for x in st if not (x.cls == 'pseudo' and x.op in ('GATE', 'CSL'))])
    P.extend(spread(epi1(ins), nog(W2S[cut1:cut2]), OPT['esp']))
    stamp(P, "epi1")
    P("L_join:")
    W = lambda t: Stream([Pseudo('WAITLG', t)])
    G = lambda m: Stream([Pseudo('GATE', m)])
    fb = OPT['flagB_at']; t0, t1, t2, t3 = OPT['t0'], OPT['t1'], OPT['t2'], OPT['t3']; fs = OPT['fbs']; fn = OPT['fbn']
    cf = [(f"cv{fb+fs*i}", f"cv{fb+fs*i+6}", flag_try(sFBo, "hst", i == fn - 1), 1) for i in range(fn)]
    cf += [("cva", "cve", cat(G(f"cv{OPT['d3']}"), nog(W2S[cut2:]), G(f"cv{OPT['d4']}"), cat(W('tr0'), w2_dma(4)) if (OPT['n2'] <= 36 and OPT['g2w'] > 4) else Stream(), cat(W('tr1'), w2_dma(5)) if OPT['g2w'] > 5 else Stream(), cat(W('tr2'), w2_dma(6)) if OPT['g2w'] > 6 else Stream()), (OPT['cvpace'],)),
          (f"cv{OPT['pb']}", "cve", spollB_load() if OPT['packb'] else one(pollB_load()), 1)]
    if OPT['hto']: cf.append((f"cv{OPT['hto']}", "cve", htouch_go(), 1))
    if OPT['trg1'] < 1: cf.append((f"cv{t0}", f"cv{t1}", w2_tr(0)))
    if OPT['trg1'] < 2: cf.append((f"cv{t1}", f"cv{t2}", w2_tr(1)))
    cf += [(f"cv{t2}", f"cv{t3}", w2_tr(2)), (f"cv{OPT['t4']}", "cv140", w2_tr(3)), ("cv130", "cve", conv_du())]
    if OPT['trg1'] == 2: P.extend(w2_tr(1))
    HL = cat(*[hload(n) for n in range(OPT['hring'])])
    chk = Stream()
    if OPT['packb']: spollB_check(chk)
    else: check_poll(chk, [pollB_load()], [4])
    stamp(chk, "hflag")
    hc = OPT['hcv']
    if hc: cf.insert(0, (f"cv{OPT['hcat']}", "cve", cat(chk, HL[:hc]), (OPT['hcp'],)))
    post = Stream()
    if OPT['x_cv']:
        keep = []
        for f in cf:
            txt = " ".join(x.text for x in flatten(f[2]) if x.cls != 'pseudo')
            kind = 1 if " lds" in txt else 2 if "tr_b16" in txt else 4 if "s_getreg" in txt or "s_cmp_eq_u32 s87" in txt else 8
            if OPT['x_cv'] & kind: post.append((kind, f[2]))
            else: keep.append(f)
        cf = keep
    P.extend(merge(conv(), cf))
    for kind in (4, 2, 1, 8):
        for k2, st2 in post:
            if k2 == kind and not (kind == 2 and any(x.tag == 'tr3' for x in st2)): P.extend(nog(st2))
    for k2, st2 in post:
        if k2 == 2 and any(x.tag == 'tr3' for x in st2): P.extend(nog(st2))
    P.extend(W('tr3'))
    if OPT['hearly']:
        ce = conv_epi(Stream())
        ib = [i for i, x in enumerate(ce) if x.op == 's_barrier'][0]
        h1 = OPT['he1']; h2 = OPT['he2']
        P.extend(Stream() if hc else chk); P.extend(HL[hc:h1]); P.extend(ce[:ib]); P.extend(HL[h1:h2]); P.extend(spread(Stream(ce[ib:]), HL[h2:OPT['hearly']], 2))
        stamp(P, "conv2"); P.extend(HL[OPT['hearly']:]); P.extend(prep_x())
    else:
        P.extend(conv_epi(prep_x())); stamp(P, "conv2")
        P.extend(chk)
        if OPT['pre2']:
            work = cat(w2_tr(4) if OPT['pre2'] > 1 else Stream(), prep_x2())
            P.extend(HL[:OPT['hl1']]); P.extend(spread(work, HL[OPT['hl1']:OPT['hl0']], OPT['psp']))
        else:
            P.extend(HL[:OPT['hl0']])
            if OPT['trmid']: P.extend(cat(w2_tr(4), w2_tr(5), w2_tr(6)))
            if OPT['xmid']: P.extend(prep_x2())
            P.extend(HL[OPT['hl0']:]); P.extend(flag_store(sFCo, WS, "yst"))
    global SPARE_W2
    SPARE_W2 = nog(W2S[:cut2])
    if OPT['trg1'] >= 1:
        iw = [i for i, x in enumerate(SPARE_W2) if x.cls == 'pseudo' and x.op == 'WAITLG']
        iw = iw[0] if iw else len(SPARE_W2)
        SPARE_W2 = cat(SPARE_W2[:iw], w2_tr(0), SPARE_W2[iw:])
    D = OPT['ylag']
    gf = [(f"g2_{x}", f"g2_{x+1}", flag_try(sFCo, "yst", x == 15), 1) for x in (0, 3, 6, 10, 15)] if OPT['hearly'] else []
    gw = OPT['g2w']
    if OPT['pre2']:
        gf.append(("g2s", "g2_8", Stream(HL[OPT['hl0']:]), (2,)))
        gf += [(f"g2_{x}", f"g2_{x+1}", flag_try(sFCo, "yst", x == 2), 1) for x in (2,)]
        gf.append(("g2_1", "g2_14", cat(*[w2_tr(b) for b in range(4 + (OPT['pre2'] > 1), 7)])))
    elif OPT['trmid'] and not OPT['hearly']: pass
    elif OPT['trpre']: P.extend(cat(*[w2_tr(b) for b in range(4, gw)]))
    else: gf.append(("g2s", "g2_14", cat(*[w2_tr(b) for b in range(4, gw)])))
    if gw < 7:
        gf.append((f"g2_{OPT['gw0']}", "g2_20", cat(*[w2_dma(b) for b in range(gw, 7)]), (OPT['gwp'],)))
        for b in range(gw, 7): gf.append((f"g2_{4*b-5}", f"g2_{4*b-1}", w2_tr(b)))
    gf += [
          ("g2_14", "g2_27", Stream() if (OPT['xmid'] and not OPT['hearly']) else prep_x2()),
          ("g2_28", f"g2_{OPT['rw1']}", Stream(red_early_w()[:8])), (f"g2_{OPT['rw1']+OPT['rwl']}", f"g2_{OPT['rw1']+OPT['rwl']+1}", Stream(red_early_w()[8:]), 1),
          (f"g2_{OPT['rw1']+OPT['rwl']+1}", "g2_49", red_early_r()),
          (f"g2_{OPT['yat']}", f"g2_{OPT['yat']+1}", one(pollC_load())),
          (f"g2_{OPT['yat']+D}", "g2t", prep_y(), 1)]
    P.extend(merge(gemm2(), gf))
    P.extend(final())
    if OPT['x_meas']:
        P(f"s_cmp_ge_u32 s{sCB1}, 14\ns_cbranch_scc1 L_end")
        if OPT['x_wg'] >= 0: P(f"s_and_b32 s64, s2, {OPT['x_wgm']}\ns_cmp_lg_u32 s64, {OPT['x_wg']}\ns_cbranch_scc1 L_end")
        P(f"v_readlane_b32 s66, v{vPROF}, 0\nL_pad:\ns_memrealtime s[64:65]\ns_waitcnt lgkmcnt(0)\ns_sub_u32 s64, s64, s66\ns_cmp_lt_u32 s64, 2000\ns_cbranch_scc1 L_pad")
    if OPT['x_pad']:
        P(f"L_pad:\ns_memrealtime s[64:65]\ns_waitcnt lgkmcnt(0)\ns_sub_u32 s64, s64, s{sN}\ns_cmp_lt_u32 s64, {OPT['x_pad']}\ns_cbranch_scc1 L_pad")
    P("L_end:\ns_endpgm")
    P = flatten(P)
    kv_last = max(i for i, x in enumerate(P) if x.tag == 'kvd')
    sb_first = min(i for i, x in enumerate(P) if x.cls == 'salu' and f"s{sFBo}" in x.wr and 'mov' not in x.op)
    assert kv_last < sb_first, "k/v SRDs overwritten before use"
    last = None
    for x in P:
        if x.cls == 'salu' and 'm0' in x.wr: last = x.text
        if x.cls == 'dma' and x.arg is not None: assert x.arg == last, ("m0 changed under a DMA group", x.text, last)
        if x.cls == 'label' and x.text.startswith('L_join'): last = None
    c7_last = max(i for i, x in enumerate(P) if x.tag == 'c7')
    ho_first = min(i for i, x in enumerate(P) if x.text.startswith(f"s_mov_b64 s[{WSO}:{WSO+1}], s[{WS}"))
    assert c7_last < ho_first, "GEMM1 SRDs / offsets overwritten before the last chunk load"
    P = autowait(P); P = hazards(P)
    P.extend(hazards(autowait(flatten(spare1()))))
    R = hazards(flatten(rare))
    P.extend(R); P("L_codeend:")
    P = align8(P)
    return P

HEAD = open("cdna_kernels/" + NAME + ".s.ref").read().split("; Override launch")[0]
DOC = """; One persistent launch, 256 workgroups (one per CU), 4 waves each. Per workgroup, in order:
;   2. GEMM1 128x128 tile on raw x (LayerNorm folded into the epilogue via the column sums of w1), SiLU, h in MFMA fragment order
"""
def emit():
    P = build()
    size = sum(x.size for x in P)
    o = HEAD + f"; @launch grid=(256,1,1) block=(256,1,1) lds={LDS_BYTES}\n"
    o += DOC
    o += f'.amdgcn_target "amdgcn-amd-amdhsa--gfx950"\n.text\n.globl {NAME}_kernel\n.p2align 8\n.type {NAME}_kernel,@function\n{NAME}_kernel:\n'
    o += "\n".join(l for l in text(P).split("\n") if not l.strip().startswith("; MARK"))
    o += f""".section .rodata,"a"
.p2align 6
.amdhsa_kernel {NAME}_kernel
  .amdhsa_next_free_vgpr 512
  .amdhsa_next_free_sgpr 102
  .amdhsa_accum_offset 256
  .amdhsa_group_segment_fixed_size 0
  .amdhsa_kernarg_size 96
  .amdhsa_user_sgpr_count 2
  .amdhsa_user_sgpr_kernarg_segment_ptr 1
  .amdhsa_system_sgpr_workgroup_id_x 1
.end_amdhsa_kernel
"""
    return o, size

if __name__ == "__main__":
    o, size = emit()
    open(sys.argv[1], "w").write(o)
    print("code bytes (estimate):", size, "stamps:", stamp_names)
    open(sys.argv[1] + ".stamps", "w").write(",".join(stamp_names))
```

```python
import sys, struct
from ir import *

NAME = "recurrent_scan__ssm_conv_h3__dense_activation_silu__prompt"
OPT = dict(hesp=3, srare=1, ypre=0, rw1=38, rwl=1, packc=1, hto=0, pre2=1, hl1=1, psp=5, hcreg=1, hcw='c6b', kvaft=1, spb=0, t4=100, kvfill=0, fine=0, tiny=2, x_kvnull=0, x_w1null=0, hl0=12, trmid=1, xmid=1, x_meas=0, x_wg=-1, x_wgm=255, pk=0, g2w=7, gw0=0, gwp=2, x_pad=0, tr0at='c7a', hcv=0, hcat=108, hcp=4, msw=0, cspub=2, csg='c7a', cshare=0, ownw2=0, stch=0, st0=6, r0=4, r1=20, c4e=0, packa=1, hold=1, tpp=2, packb=1, he1=4, he2=10, x_cv=0, cvwait=1, fbs=25, fbn=3, trg1=0, trpre=1, tp=-1, pb=125, d3=0, c5e=1, stat_at='c4a', x_notry=0, x_late=0, dp=2, dstart='c2b', kvn=1, ft0=2, c3b=0, c3a=7, sw3=7, swn=1, swflag=0, c3pf=1, hcnt=1, qnt=0, hearly=0, ntail=4, dbgout=0, rotk=2, rotx=1, htouch=0, x_w2null=0, x_hcnull=0, x_hplain=0, n1=16, n2=28, d4=40, fa=6, pat=0, cvpace=4, t0=8, t1=24, t2=40, t3=56, pretouch=0, c2n=4, p0=2, p1=2, p2=2, b1n=5, b2n=5, esp=8, yat=40, ylag=8, ylate=1, map47=0, tlb=0, nonce_at=0, slowat=4, nt=1, c1n=1, kvpos=2, w2pace=5, sweep=0, uat=3, x_nokv=0, x_nocs=0, x_nodma=0, x_nobar=0, x_now2=0, onewait=1, kvend=4, cap=5, spare=1, prof=0, stats_fill=0, hring=12, flagB_at=45, codepf=1)
for a in sys.argv[2:]:
    k, v = a.split('='); OPT[k] = int(v) if v.lstrip('-').isdigit() else v

HWS = 0; KVR = 0x700000; YT = 0x900000; STATS = 0xB00000; FLA = 0xB10000; FLB = 0xB30000; FLC = 0xB50000; CSP = 0xB70000
PROF = 0xB80000; WS_SIZE = 0xC00000
E = 131072; KT = E; VT = E + 9360; HC = E; UR = E + 17680; CS = E + 26896; DUMP = CS + 512
LDS_BYTES = 163840
OOB = 0x80000000
f2u = lambda f: struct.unpack('<I', struct.pack('<f', f))[0]
NLOG2E = f2u(-1.4426950408889634)

sX, sJ, sW, sT0, sT1 = 3, 4, 5, 6, 7
Q1, QF, SKK, SVV, W1, W2, SSK, WS, WSH, OUT, DBG, SHK, KZ = 8, 12, 16, 20, 24, 28, 32, 36, 40, 44, 48, 52, 60
sDptr = 56; sN = 58; sDv = 59; sN2 = 56; sW2neg = 84
sCsW = 64; sCsR = 72; sCsN = 95
WSB = 8
sQoff = 64; sWoff = 72
sM0b = 80; sW2off = 81; sStatC = 82; sRot = 83; sStatW = 84; sFH = 85; sTH = 86; sH0 = 87
CODE = 88; sHst = 88
sM0q = 92; sM0w = 93; sP = 94; sCnt = 96; sC0 = sT0
sRB1, sCB1, sRB2, sCB2, sCH = 97, 98, 99, 100, 101
sKV0, sKV1, sFAo, sFAp, sU, sFBo, sFBp, sYs = 16, 17, 18, 19, 20, 21, 22, 23
sFCo, sFCp, sHL, sYl = 52, 53, 54, 55
sXO, sStatF, sHC, sHLo = 60, 61, 62, 63
def srd(b): return f"s[{b}:{b+3}]"

vL = 1; vL16 = 2; vL0 = 3
vQD = 4; vWD = 8; vBD = 12
vQA = 16; vWA = 24
vN = 28; vSTV = 29; vCSW = 30; vCSA = 31
vTA = 33; vCA = 37
vCB = 41; vCU = 42; vCD = 43; vCX = 44; vCXR = 45; vCY = 46
vPA = 47; vPB = 48; vPC = 49
vXD = 50; vYL = 51; vOS = 52
vXA = 53; vYW = 54; vYA = 55; vOW = 56; vOR = 57; vRW = 58; vRR = 59
vPROF = 62; vT = 63
vDV = 215; vH0 = 214
ACC = 64; FR = 128
CSACC = 244; SEL = 240; CSV = 176
STL = 208; MR = 216
def vr(b, n=1): return f"v{b}" if n == 1 else f"v[{b}:{b+n-1}]"
def ar(b, n): return f"a[{b}:{b+n-1}]"

rare = Stream(); nrare = [0]
def check_poll(S, reloads, tagregs):
    k = nrare[0]; nrare[0] += 1
    def cmp(T):
        if len(tagregs) == 1:
            T(f"v_cmp_ne_u32 vcc, s{sN}, v{tagregs[0]}")
        else:
            T(f"v_xor_b32 v{vT}, s{sN}, v{tagregs[0]}")
            for r in tagregs[1:]:
                T(f"v_xor_b32 v{r}, s{sN}, v{r}\nv_or_b32 v{vT}, v{vT}, v{r}")
            T(f"v_cmp_ne_u32 vcc, 0, v{vT}")
    g = Stream(); cmp(g); g(f"s_cbranch_vccnz L_rare{k}\nL_back{k}:")
    S.atomic(g)
    rare(f"L_rare{k}:\ns_mov_b32 s{sCnt}, 0")
    if OPT['prof']: rare(f"v_writelane_b32 v{vPROF}, 1, {52+k}")
    rare(f"L_rl{k}:\ns_sleep 1")
    for t in reloads: rare(t)
    rare("s_waitcnt vmcnt(0)")
    cmp(rare)
    rare(f"s_nop 1\ns_cbranch_vccz L_back{k}\ns_add_u32 s{sCnt}, s{sCnt}, 1\ns_cmp_lt_u32 s{sCnt}, 0x4000\ns_cbranch_scc1 L_rl{k}\ns_branch L_back{k}")

WSO = 24
def note_poll(S, tagreg, sres):
    g = Stream(); g(f"v_cmp_ne_u32 vcc, s{sN}, v{tagreg}\ns_or_b32 s{sres}, vcc_lo, vcc_hi\ns_cselect_b32 s{WSO+2}, 0, {WS_SIZE}"); S.atomic(g)
def repair(S, sres, first, reload, tagreg, redo):
    k = nrare[0]; nrare[0] += 1
    g = Stream(); g(f"s_cmp_lg_u32 s{sres}, 0\ns_cbranch_scc1 L_rare{k}\nL_back{k}:"); S.atomic(g)
    R = Stream()
    R(f"L_rare{k}:\ns_mov_b32 s{sCnt}, 0\ns_waitcnt vmcnt(0) lgkmcnt(0)")
    if OPT['prof']: R(f"v_writelane_b32 v{vPROF}, 1, {52+k}")
    R.extend(first)
    R(f"L_rl{k}:\n{reload}\ns_waitcnt vmcnt(0)\nv_cmp_ne_u32 vcc, s{sN}, v{tagreg}\ns_nop 1\ns_cbranch_vccz L_ok{k}\ns_sleep 1\ns_add_u32 s{sCnt}, s{sCnt}, 1\ns_cmp_lt_u32 s{sCnt}, 0x4000\ns_cbranch_scc1 L_rl{k}\nL_ok{k}:")
    R(f"s_mov_b32 s{WSO+2}, {WS_SIZE}")
    R.extend(autowait(flatten(redo)))
    R(f"s_waitcnt vmcnt(0) lgkmcnt(0)\ns_nop 4\ns_branch L_back{k}")
    rare.extend(R)

stamp_names = []
def stamp(S, name):
    if OPT['x_meas'] == name:
        g = Stream(); g(f"s_memrealtime s[{sP}:{sP+1}]\ns_waitcnt lgkmcnt(0)\nv_writelane_b32 v{vPROF}, s{sP}, 0"); S.atomic(g)
    if not OPT['prof']: return
    k = len(stamp_names); stamp_names.append(name)
    g = Stream()
    if OPT['prof'] == 1:
        g(f"s_memrealtime s[{sP}:{sP+1}]\ns_waitcnt lgkmcnt(0)\nv_writelane_b32 v{vPROF}, s{sP}, {k}")
        g(f"s_memtime s[{sP}:{sP+1}]\ns_waitcnt lgkmcnt(0)\nv_writelane_b32 v{vPROF}, s{sP}, {k+32}")
    elif OPT['prof'] == 4:
        g(f"s_memrealtime s[{sP}:{sP+1}]\ns_waitcnt lgkmcnt(0)\nv_writelane_b32 v{vPROF}, s{sP}, {k}")
    else:
        g(f"s_memtime s[{sP}:{sP+1}]\ns_waitcnt lgkmcnt(0)\nv_writelane_b32 v{vPROF}, s{sP}, {k}")
    S.atomic(g)

def dma_n(S, vbase, srdb, soff, m0txt, tag, n=4, samev=False, nt=False):
    for i in range(n):
        g = Stream()
        if i == 0: g(m0txt)
        g(f"buffer_load_dwordx4 v{vbase + (0 if samev else i)}, {srd(srdb)}, s{soff} offen" + (f" offset:{i*1024}" if i else "") + (" nt" if nt else "") + " lds", tag if i == n-1 else None)
        g[-1].arg = m0txt
        S.atomic(g)

def chunk_dma(i, sq=None, sw=None):
    S = Stream(); slot = i & 3
    dma_n(S, vQD, Q1, sQoff + i if sq is None else sq, f"s_add_u32 m0, s{sM0q}, {slot*32768}", None, nt=OPT['qnt'])
    dma_n(S, vWD, W1, sWoff + i if sw is None else sw, f"s_add_u32 m0, s{sM0w}, {slot*32768}", f"c{i}")
    return S

def w2_half(b, h):
    S = Stream(); slot = b & 3
    dma_n(S, vBD, W2, sW2off, f"s_add_u32 m0, s{sM0b}, {slot*32768 + 4096*h}", f"b{b}" if h else None)
    first = S[0].arg
    if h == 1: first.insert(1, Ins(f"s_add_u32 s{sW2off}, s{sW2off}, 32768"))
    elif b > 0:
        first[0:0] = [Ins(f"s_cmp_eq_u32 s{sRot}, {7-b}"), Ins(f"s_cselect_b32 s{sCnt}, s{sW2neg}, 0x8000")]
        first.insert(3, Ins(f"s_add_u32 s{sW2off}, s{sW2off}, s{sCnt}"))
    return S
def w2_dma(b):
    S = w2_half(b, 0); S.extend(w2_half(b, 1)); return S

def w2_tr(b):
    S = Stream(); slot = b & 3; hi = slot >> 1
    S.waitvm(f"b{b}")
    for k4 in range(4):
        for u in range(2):
            a = ((4*b + k4) * 2 + u) * 4
            for rd in range(2):
                off = (slot & 1) * 32768 + k4 * 2048 + rd * 1024
                S(f"ds_read_b64_tr_b16 {ar(a+2*rd, 2)}, v{vTA+2*hi+u} offset:{off}", f"tr{b}")
    return S

vROW = 220
vSHK = 228
MAP = [f"""
    s_lshr_b32 s{sCB1}, s{sJ}, 1
    s_and_b32 s{sT0}, s{sJ}, 1
    s_lshl_b32 s{sRB1}, s{sX}, 1
    s_add_u32 s{sRB1}, s{sRB1}, s{sT0}
    s_mul_i32 s{sT0}, s{sT0}, {OPT['pk']}
    s_add_u32 s{sT0}, s{sT0}, s{sCB1}
    s_add_u32 s{sT0}, s{sT0}, s{sX}
    s_and_b32 s{sT0}, s{sT0}, 7
""", f"""
    s_and_b32 s{sT0}, s{sJ}, 3
    s_lshr_b32 s{sT1}, s{sX}, 1
    s_lshl_b32 s{sRB1}, s{sT1}, 2
    s_add_u32 s{sRB1}, s{sRB1}, s{sT0}
    s_lshl_b32 s{sT0}, s{sT0}, 1
    s_add_u32 s{sT0}, s{sT0}, s{sT1}
    s_lshr_b32 s{sT1}, s{sJ}, 2
    s_add_u32 s{sT0}, s{sT0}, s{sT1}
    s_and_b32 s{sT0}, s{sT0}, 7
    s_and_b32 s{sCB1}, s{sX}, 1
    s_mul_i32 s{sCB1}, s{sCB1}, 7
    s_add_u32 s{sCB1}, s{sCB1}, s{sT1}
    s_cmp_eq_u32 s{sT1}, 7
    s_cselect_b32 s{sCB1}, 14, s{sCB1}
"""]
def entry():
    class SS(Stream):
        def __call__(self, text, tag=None): return Stream.__call__(self, text.replace(' NT', ' nt' if OPT['nt'] else '').replace('MAPPING', MAP[OPT['map47']]), tag)
    S = SS()
    S(f"""
    s_load_dwordx16 s[64:79], s[0:1], 0
    s_load_dwordx8 s[80:87], s[0:1], 64
    s_memrealtime s[40:41]
    s_cmp_ge_u32 s2, 256
    s_cbranch_scc1 L_end
    v_lshrrev_b32 v{vT}, 6, v0
    v_and_b32 v{vL}, 63, v0
    s_and_b32 s{sX}, s2, 7
    v_readfirstlane_b32 s{sW}, v{vT}
    s_lshr_b32 s{sJ}, s2, 3
    MAPPING
    s_mov_b32 s{QF+2}, 0x200000
    s_mov_b32 s{QF+3}, 0x20000
    s_cmp_lt_u32 s{sCB1}, 14
    s_cselect_b32 s{Q1+2}, 0x200000, 0
    s_cselect_b32 s{W1+2}, {0 if OPT['x_w1null'] else 0x1c0000}, 0
    s_mov_b32 s{Q1+3}, 0x20000
    s_mov_b32 s{W1+3}, 0x20000
    s_lshl_b32 s88, s{sX}, 5
    s_add_u32 s88, s88, s{sJ}
    s_lshl_b32 s88, s88, 2
    s_add_u32 s88, s88, s{sW}
    s_lshl_b32 s88, s88, 11
    s_lshl_b32 s89, s{sRB1}, 2
    s_add_u32 s89, s89, s{sW}
    s_lshl_b32 s89, s89, 15
    s_mul_i32 s90, s{sW}, {16*3584}
    s_lshl_b32 s{sT1}, s{sCB1}, 8
    s_add_u32 s90, s90, s{sT1}
    s_lshl_b32 s58, s{sT0}, 7
    s_add_u32 s58, s58, s89
    s_mul_i32 s59, s{sT0}, {64*3584}
    s_add_u32 s59, s59, s90
    s_lshl_b32 s{sM0q}, s{sW}, 12
    s_add_u32 s{sM0w}, s{sM0q}, 16384
    s_lshr_b32 s{sT1}, s{sJ}, 3
    s_lshl_b32 s{sRB2}, s{sX}, 2
    s_add_u32 s{sRB2}, s{sRB2}, s{sT1}
    s_and_b32 s{sCB2}, s{sJ}, 7
    s_lshl_b32 s42, s{sW}, 3
    s_or_b32 s42, s42, s2
    """)
    if OPT['prof']: S(f"v_mov_b32 v{vPROF}, 0")
    S.extend(codepf())
    a, b, c, d = 232, 233, 234, 235
    S(f"""
    v_lshlrev_b32 v{vL16}, 4, v{vL}
    v_lshrrev_b32 v{a}, 5, v{vL}
    v_and_b32 v{b}, 31, v{vL}
    v_lshlrev_b32 v{b}, 4, v{b}
    v_lshl_add_u32 v236, v{a}, 10, v{b}
    v_lshrrev_b32 v{a}, 3, v{vL}
    v_and_b32 v{b}, 7, v{vL}
    v_lshrrev_b32 v{c}, 4, v{vL}
    v_xor_b32 v{d}, v{b}, v{c}
    v_lshlrev_b32 v{d}, 4, v{d}
    v_lshl_add_u32 v{vQD}, v{a}, 10, v{d}
    v_xor_b32 v{d}, 64, v{vQD}
    v_add_u32 v{vQD+1}, 7168, v{d}
    v_add_u32 v{vQD+2}, 14336, v{vQD}
    v_add_u32 v{vQD+3}, 21504, v{d}
    v_and_b32 v{d}, 15, v{vL}
    v_lshlrev_b32 v237, 2, v{c}
    v_xor_b32 v{d}, v{d}, v237
    v_lshlrev_b32 v{d}, 4, v{d}
    v_mul_u32_u24 v237, 3584, v{c}
    v_add_u32 v{vWD}, v237, v{d}
    v_add_u32 v{vWD+1}, {4*3584-1024}, v{vWD}
    v_add_u32 v{vWD+2}, {8*3584-2048}, v{vWD}
    v_add_u32 v{vWD+3}, {12*3584-3072}, v{vWD}
    v_lshlrev_b32 v{b}, 4, v{b}
    v_lshl_add_u32 v237, v{a}, 10, v{b}
    v_lshlrev_b32 v238, 4, v{a}
    """)
    if OPT['tiny']:
        S(f"""
        s_lshl_b32 s43, s{sCB2}, 2
        s_add_u32 s43, s43, s{sW}
        s_lshl_b32 s43, s43, 7
        v_add_u32 v238, s43, v238
        s_lshl_b32 s43, s2, 2
        v_mov_b32 v240, s43
        s_lshr_b32 s43, s{sW}, 1
        s_lshl_b32 s43, s43, 12
        s_lshl_b32 s91, s2, 13
        s_add_u32 s43, s43, s91
        v_mov_b32 v241, s43
        v_mov_b32 v242, 0
        v_min_u32 v243, 5, v{vL}
        v_lshlrev_b32 v243, 21, v243
        """)
    for bb, n in ((W2, 0x1c0000), (SSK, 0x200000), (WS, WS_SIZE), (OUT, 0x200000), (DBG, 256)):
        S(f"s_mov_b32 s{bb+2}, {0 if (bb == W2 and OPT['x_w2null']) or (bb == SSK and OPT['x_hcnull']) else n}")
    for bb in (W2, SSK, WS, OUT, DBG):
        S(f"s_mov_b32 s{bb+3}, 0x20000")
    S.waitlg()
    stamp(S, "karg")
    S(f"""
    s_cmp_gt_u32 s42, 7
    s_cbranch_scc1 L_nonce_done
    s_or_b32 s40, s40, 1
    v_mov_b32 v245, 0
    v_mov_b32 v244, s40
    s_mov_b64 exec, 1
    global_atomic_cmpswap v245, v[244:245], s[84:85] sc1
    s_mov_b64 exec, -1
    L_nonce_done:
    """)
    S[-3].cls = 'other'
    if OPT['tiny']:
        S(f"""
        global_load_dwordx4 v[{vSHK}:{vSHK+3}], v238, s[70:71]
        global_load_dword a248, v240, s[74:75]
        global_load_dword a249, v241, s[72:73]
        """)
        if OPT['tiny'] > 1: S(f"global_load_dword a230, v242, s[66:67]\nglobal_load_dword a231, v242, s[68:69]")
        if OPT['tiny'] > 2: S(f"global_load_dword a232, v242, s[80:81]\nglobal_load_dword a233, v243, s[86:87]")
    S(f"""
    s_mov_b64 s[{QF}:{QF+1}], s[64:65]
    s_mov_b64 s[{Q1}:{Q1+1}], s[64:65]
    s_mov_b64 s[{W1}:{W1+1}], s[78:79]
    buffer_load_dwordx4 v[{vROW}:{vROW+3}], v236, {srd(QF)}, s88 offen NT
    buffer_load_dwordx4 v[{vROW+4}:{vROW+7}], v236, {srd(QF)}, s88 offen offset:512 NT
    """)
    mv = Stream()
    mv(f"""
    s_mov_b64 s[{SKK}:{SKK+1}], s[66:67]
    s_mov_b64 s[{KZ}:{KZ+1}], s[66:67]
    s_mov_b64 s[{SVV}:{SVV+1}], s[68:69]
    s_mov_b64 s[{SHK}:{SHK+1}], s[70:71]
    s_mov_b64 s[{SSK}:{SSK+1}], s[72:73]
    s_mov_b64 s[{sDptr}:{sDptr+1}], s[74:75]
    s_mov_b64 s[{W2}:{W2+1}], s[80:81]
    s_mov_b64 s[{OUT}:{OUT+1}], s[82:83]
    s_mov_b64 s[{DBG}:{DBG+1}], s[84:85]
    s_mov_b64 s[{WS}:{WS+1}], s[86:87]
    """)
    S.extend(chunk_dma(0, 58, 59)); S.extend(mv)
    if OPT['tlb']:
        S(f"""
        v_min_u32 v240, 5, v{vL}
        v_lshlrev_b32 v240, 21, v240
        v_mov_b32 v241, 0
        buffer_load_dword a240, v240, {srd(WS)}, 0 offen
        global_load_dword a241, v241, s[66:67]
        global_load_dword a242, v241, s[68:69]
        global_load_dword a243, v241, s[80:81]
        global_load_dword a244, v241, s[82:83]
        """.replace("a24", "a23"))
    S.extend(coff(1))
    return S

def coff(i):
    S = Stream()
    S(f"""
    s_add_u32 s{sT1}, s{sC0}, {i}
    s_and_b32 s{sT1}, s{sT1}, 7
    s_lshl_b32 s{sQoff+i}, s{sT1}, 7
    s_add_u32 s{sQoff+i}, s{sQoff+i}, s89
    s_mul_i32 s{sWoff+i}, s{sT1}, {64*3584}
    s_add_u32 s{sWoff+i}, s{sWoff+i}, s90
    """)
    return S
def codepf():
    S = Stream()
    if OPT['codepf']:
        S(f"""
        s_getpc_b64 s[16:17]
        L_pc:
        s_mov_b32 s18, L_codeend-L_pc
        s_mov_b32 s19, 0x20000
        s_lshl_b32 s20, s{sJ}, 2
        s_add_u32 s20, s20, s{sW}
        s_lshl_b32 s20, s20, 8
        v_lshlrev_b32 v238, 2, v{vL}
        buffer_load_dword a252, v238, s[16:19], s20 offen
        """)
    return S

def kv_pro():
    S = Stream()
    S(f"""
    s_cmp_lg_u32 s{sRB2}, 0
    s_cselect_b32 s{KZ+2}, 0x200000, 0
    s_mov_b32 s{KZ+3}, 0x20000
    s_mov_b32 s{SKK+2}, {0 if OPT['x_kvnull'] else 0x200000}
    s_mov_b32 s{SKK+3}, 0x20000
    s_mov_b32 s{SVV+2}, {0 if OPT['x_kvnull'] else 0x200000}
    s_mov_b32 s{SVV+3}, 0x20000
    s_mov_b32 s{SHK+2}, 4096
    s_mov_b32 s{SHK+3}, 0x20000
    s_lshl_b32 s40, s{sRB2}, 16
    s_lshl_b32 s41, s{sCB2}, 7
    s_add_u32 s40, s40, s41
    s_lshl_b32 s41, s{sW}, 13
    s_add_u32 s41, s41, s40
    s_add_u32 s42, s41, 32768
    s_sub_u32 s40, s40, 8192
    s_max_i32 s40, s40, 0
    s_mul_i32 s43, s{sW}, 1040
    s_lshl_b32 s87, s{sCB2}, 9
    s_lshl_b32 s{sT1}, s{sW}, 7
    s_add_u32 s87, s87, s{sT1}
    v_cmp_gt_u32 vcc, 40, v{vL}
    v_mov_b32 v239, {OOB}
    v_cndmask_b32 v239, v237, v239, vcc
    """)
    return S
def kv_dma():
    S = Stream(); nt = "nt " if OPT['nt'] else ""
    for m0, v, sr, so in ((f"s_add_u32 m0, s43, {KT+1040}", 237, SKK, 41), (f"s_add_u32 m0, s43, {VT}", 237, SVV, 41),
                          (f"s_add_u32 m0, s43, {KT+5*1040}", 237, SKK, 42), (f"s_add_u32 m0, s43, {VT+4*1040}", 237, SVV, 42),
                          (f"s_mov_b32 m0, {KT}", 239, KZ, 40)):
        g = Stream(); g(f"{m0}\nbuffer_load_dwordx4 v{v}, {srd(sr)}, s{so} offen {nt}lds"); S.atomic(g)
    if OPT['tiny']: S[-1].arg[-1].tag = "kvd"
    else: S(f"buffer_load_dwordx4 v[{vSHK}:{vSHK+3}], v238, {srd(SHK)}, s87 offen", "kvd")
    return S

def setup():
    S = Stream()
    if OPT['cshare']:
        S(f"""
        s_lshl_b32 s{sCsR}, s{sCB1}, 13
        s_add_u32 s{sCsR}, s{sCsR}, {CSP}
        s_lshl_b32 s{sCsW}, s{sC0}, 10
        s_add_u32 s{sCsW}, s{sCsW}, s{sCsR}
        s_and_b32 s{sT1}, s{sW}, 1
        s_lshl_b32 s{sT1}, s{sT1}, 9
        s_add_u32 s{sCsW}, s{sCsW}, s{sT1}
        s_lshr_b32 s{sT1}, s{sW}, 1
        s_lshl_b32 s{sT1}, s{sT1}, 8
        s_add_u32 s{sCsW}, s{sCsW}, s{sT1}
        s_lshl_b32 s{sT1}, s{sW}, 8
        s_add_u32 s{sCsR}, s{sCsR}, s{sT1}
        """)
    S(f"""
    s_and_b32 s{sFH}, s{sW}, 1
    s_lshr_b32 s{sTH}, s{sW}, 1
    s_lshl_b32 s{sCH}, s2, 1
    s_add_u32 s{sCH}, s{sCH}, s{sTH}
    s_lshl_b32 s{sM0b}, s{sW}, 13
    s_mul_i32 s{sW2off}, s{sW}, {448*1024}
    s_lshl_b32 s{sT0}, s{sCB2}, 7
    s_add_u32 s{sW2off}, s{sW2off}, s{sT0}
    s_lshr_b32 s{sRot}, s{sJ}, 3
    s_mul_i32 s{sRot}, s{sRot}, {OPT['rotk']}
    s_add_u32 s{sRot}, s{sRot}, s{sCB2}
    s_mul_i32 s{sT0}, s{sX}, {OPT['rotx']}
    s_add_u32 s{sRot}, s{sRot}, s{sT0}
    s_mul_i32 s{sT0}, s{sRot}, 37
    s_lshr_b32 s{sT0}, s{sT0}, 8
    s_mul_i32 s{sT0}, s{sT0}, 7
    s_sub_u32 s{sRot}, s{sRot}, s{sT0}
    s_lshl_b32 s{sT0}, s{sRot}, 16
    s_add_u32 s{sW2off}, s{sW2off}, s{sT0}
    s_lshl_b32 s{sStatC}, s{sRB1}, 1
    s_add_u32 s{sStatC}, s{sStatC}, s{sTH}
    s_mul_i32 s{sHst}, s{sStatC}, {2*112*1024}
    s_lshl_b32 s{sStatC}, s{sStatC}, 10
    s_add_u32 s{sStatC}, s{sStatC}, {STATS}
    s_lshl_b32 s{sT0}, s{sCB1}, 1
    s_add_u32 s{sT0}, s{sT0}, s{sFH}
    s_lshl_b32 s{sT0}, s{sT0}, 12
    s_add_u32 s{sHst}, s{sHst}, s{sT0}
    s_lshl_b32 s{sT0}, s{sTH}, 11
    s_xor_b32 s{sT1}, s{sT0}, 2048
    s_add_u32 s{sHst+2}, s{sHst}, s{sT1}
    s_add_u32 s{sHst}, s{sHst}, s{sT0}
    s_add_u32 s{sHst+1}, s{sHst}, {112*1024}
    s_add_u32 s{sHst+3}, s{sHst+2}, {112*1024}
    s_lshl_b32 s{sStatW}, s{sX}, 5
    s_add_u32 s{sStatW}, s{sStatW}, s{sJ}
    s_lshl_b32 s{sStatW}, s{sStatW}, 7
    s_lshl_b32 s{sT0}, s{sW}, 4
    s_add_u32 s{sStatW}, s{sStatW}, s{sT0}
    s_add_u32 s{sStatW}, s{sStatW}, {STATS}
    """)
    a, b, c, d, e, f = 240, 241, 242, 243, 244, 245
    a, b, c, d, e, f = 244, 245, 246, 247, 248, 249
    S(f"""
    v_mov_b32 v{a}, {OOB}
    v_cmp_eq_u32 vcc, 0, v{vL}
    v_and_b32 v{b}, 31, v{vL}
    v_lshrrev_b32 v{c}, 5, v{vL}
    v_cndmask_b32 v{vL0}, v{a}, 0, vcc
    v_lshrrev_b32 v{d}, 3, v{b}
    v_and_b32 v{e}, 7, v{vL}
    v_lshlrev_b32 v{e}, 3, v{e}
    v_lshl_add_u32 v{vSTV}, v{d}, 7, v{e}
    """)
    S(f"""
    v_lshrrev_b32 v{d}, 1, v{b}
    v_and_b32 v{d}, 7, v{d}
    v_xor_b32 v{d}, v{d}, v{c}
    v_lshlrev_b32 v{d}, 4, v{d}
    v_lshl_add_u32 v{d}, v{b}, 7, v{d}
    s_lshl_b32 s{sT0}, s{sTH}, 13
    v_add_u32 v{vQA}, s{sT0}, v{d}
    v_xor_b32 v{vQA+1}, 32, v{vQA}
    v_xor_b32 v{vQA+2}, 64, v{vQA}
    v_xor_b32 v{vQA+3}, 0x60, v{vQA}
    """)
    for k in range(4): S(f"v_add_u32 v{vQA+4+k}, 0x10000, v{vQA+k}")
    S(f"""
    v_bfe_u32 v{d}, v{vL}, 2, 2
    v_and_b32 v{e}, 3, v{vL}
    v_lshlrev_b32 v{e}, 3, v{e}
    v_bfe_u32 v{f}, v{vL}, 4, 1
    v_lshl_add_u32 v{e}, v{f}, 5, v{e}
    s_lshl_b32 s{sT0}, s{sFH}, 1
    s_add_u32 s{sT0}, s{sT0}, s{sTH}
    v_xor_b32 v{f}, s{sT0}, v{d}
    v_lshl_add_u32 v{f}, v{f}, 6, v{e}
    v_lshl_add_u32 v{f}, v{d}, 8, v{f}
    v_lshl_add_u32 v{vWA}, v{c}, 11, v{f}
    v_xor_b32 v{vWA+1}, 64, v{vWA}
    v_add_u32 v{vWA+2}, 0x10000, v{vWA}
    v_add_u32 v{vWA+3}, 0x10000, v{vWA+1}
    v_lshrrev_b32 v{f}, 1, v{d}
    v_xor_b32 v{f}, s{sFH}, v{f}
    v_lshl_add_u32 v{f}, v{f}, 6, v{e}
    v_lshl_add_u32 v{f}, v{d}, 7, v{f}
    v_lshl_add_u32 v{f}, v{c}, 9, v{f}
    v_add_u32 v{vTA}, s{sM0b}, v{f}
    v_xor_b32 v{vTA+1}, 64, v{vTA}
    v_add_u32 v{vTA+2}, 0x10000, v{vTA}
    v_add_u32 v{vTA+3}, 0x10000, v{vTA+1}
    v_lshl_add_u32 v{f}, v{d}, 6, v{e}
    v_lshl_add_u32 v{f}, v{c}, 8, v{f}
    s_add_u32 s{sT0}, s{sM0b}, {E + 2048}
    v_add_u32 v{vYA}, s{sT0}, v{f}
    v_add_u32 v{vYW}, s{sT0}, v{vL16}
    """)
    n, g = d, e
    S0 = S
    class SX(Stream):
        def __call__(self, text, tag=None):
            r = f"v_and_b32 v{a}, 31, v{vL}\nv_lshlrev_b32 v{a}, 3, v{a}\nv_lshl_add_u32 v{vCSW}, v{c}, 12, v{a}" if OPT['cshare'] else f"v_cndmask_b32 v{vCSW}, v{f}, v{a}, vcc"
            return S0(text.replace("CSWDEF", r), tag)
    SX()(f"""
    v_and_b32 v{n}, 15, v{vL}
    v_lshrrev_b32 v{g}, 4, v{vL}
    v_and_b32 v{f}, 1, v{g}
    v_cmp_eq_u32 vcc, v{n}, v{f}
    v_mov_b32 v{f}, 0x3f803f80
    v_lshlrev_b32 v{a}, 4, v{g}
    v_cndmask_b32 v{f}, 0, v{f}, vcc
    v_lshl_add_u32 v{a}, v{n}, 6, v{a}
    v_accvgpr_write_b32 a{SEL}, v{f}
    v_accvgpr_write_b32 a{SEL+1}, v{f}
    v_accvgpr_write_b32 a{SEL+2}, v{f}
    v_accvgpr_write_b32 a{SEL+3}, v{f}
    s_lshl_b32 s{sT0}, s{sFH}, 8
    s_lshl_b32 s{sT1}, s{sTH}, 7
    s_add_u32 s{sT0}, s{sT0}, s{sT1}
    s_add_u32 s{sT0}, s{sT0}, {CS}
    v_add_u32 v{a}, s{sT0}, v{a}
    v_add_u32 v{f}, {DUMP}, v{vL16}
    v_cmp_gt_u32 vcc, 2, v{n}
    v_lshlrev_b32 v{b}, 4, v{c}
    v_add_u32 v{vCSA}, s{sT0}, v{b}
    CSWDEF
    v_xor_b32 v{vCSA+1}, 0x80, v{vCSA}
    """)
    assert CS % 256 == 16 or True
    S(f"""
    v_lshrrev_b32 v{a}, 3, v{vL}
    v_and_b32 v{b}, 7, v{vL}
    v_bfe_u32 v{f}, v{vL}, 4, 1
    v_lshlrev_b32 v{f}, 2, v{f}
    v_xor_b32 v{b}, v{b}, v{f}
    v_lshlrev_b32 v{b}, 4, v{b}
    v_lshl_add_u32 v{vBD}, v{a}, 10, v{b}
    v_add_u32 v{vBD+1}, 7168, v{vBD}
    v_add_u32 v{vBD+2}, 14336, v{vBD}
    v_add_u32 v{vBD+3}, 21504, v{vBD}
    """)
    S(f"""
    v_lshlrev_b32 v{a}, 1, v{n}
    v_lshl_add_u32 v{a}, v{g}, 4, v{a}
    v_and_b32 v{b}, 1, v{n}
    v_cmp_eq_u32 vcc, 0, v{b}
    v_mov_b32 v{f}, {4160 - 2}
    s_mul_i32 s{sT0}, s{sTH}, 8320
    s_lshl_b32 s{sT1}, s{sFH}, 6
    v_cndmask_b32 v{b}, 0, v{f}, vcc
    s_add_u32 s{sT0}, s{sT0}, s{sT1}
    s_add_u32 s{sT0}, s{sT0}, {HC + 32 - 30}
    v_add3_u32 v{vCA}, v{a}, v{b}, s{sT0}
    v_add_u32 v{vCA+1}, 1024, v{vCA}
    v_add_u32 v{vCA+2}, 2048, v{vCA}
    v_add_u32 v{vCA+3}, 3072, v{vCA}
    s_mul_i32 s{sT0}, s{sTH}, 4608
    s_add_u32 s{sT0}, s{sT0}, {UR}
    v_lshlrev_b32 v{a}, 5, v{n}
    v_lshlrev_b32 v{b}, 4, v{g}
    v_sub_u32 v{b}, v{b}, v{a}
    s_add_u32 s{sT1}, s{sT1}, s{sT0}
    s_add_u32 s{sT1}, s{sT1}, 480
    v_add_u32 v{vCB}, s{sT1}, v{b}
    v_lshl_add_u32 v{b}, v{g}, 3, v{a}
    s_lshl_b32 s{sT1}, s{sFH}, 11
    s_sub_u32 s{sCnt}, s{sT0}, s{sT1}
    s_add_u32 s{sCnt}, s{sCnt}, {4088 - 1536}
    v_sub_u32 v{vCD}, s{sCnt}, v{b}
    s_add_u32 s{sT1}, s{sT1}, s{sT0}
    v_add_u32 v{vCU}, s{sT1}, v{vL16}
    v_and_b32 v{b}, 0x1f0, v{vL16}
    s_add_u32 s{sT0}, s{sT0}, 4096
    v_add_u32 v{b}, s{sT0}, v{b}
    v_mov_b32 v252, 0
    v_mov_b32 v253, 0
    v_mov_b32 v254, 0
    v_mov_b32 v255, 0
    ds_write_b128 v{b}, v[252:255]
    s_add_u32 s{sT0}, s{sM0b}, {3*32768}
    v_add_u32 v{vCX}, s{sT0}, v{vL16}
    v_xor_b32 v{vCXR}, 0x2000, v{vCX}
    v_and_b32 v{b}, 1, v{g}
    v_lshl_add_u32 v{a}, v{b}, 9, v{a}
    v_lshrrev_b32 v{b}, 1, v{g}
    v_lshl_add_u32 v{vCY}, v{b}, 4, v{a}
    v_lshlrev_b32 v{vPA}, {2 if OPT['packa'] else 7}, v{n}
    v_min_u32 v{a}, 6, v{vL}
    v_lshlrev_b32 v{vPB}, {2 if OPT['packb'] else 7}, v{a}
    v_and_b32 v{a}, 31, v{vL}
    v_lshlrev_b32 v{vPC}, {2 if OPT['packc'] else 8}, v{a}
    """)
    S(f"""
    v_lshrrev_b32 v{b}, 2, v{vL}
    v_and_b32 v{f}, 3, v{vL}
    v_lshlrev_b32 v{f}, 4, v{f}
    v_lshl_add_u32 v{vOS}, v{b}, 10, v{f}
    v_lshl_add_u32 v{vYL}, v{b}, 12, v{f}
    v_lshlrev_b32 v{d}, 4, v{g}
    v_xor_b32 v{vXD}, v{vOS}, v{d}
    v_mul_u32_u24 v{b}, 80, v{b}
    s_add_u32 s{sT0}, s{sM0b}, {E + 4096}
    v_add3_u32 v{vOR}, v{b}, v{f}, s{sT0}
    v_mul_u32_u24 v{b}, 80, v{a}
    v_lshl_add_u32 v{b}, v{c}, 3, v{b}
    v_add_u32 v{vOW}, s{sT0}, v{b}
    v_bfe_u32 v{b}, v{vL}, 2, 2
    v_lshlrev_b32 v{b}, 4, v{b}
    v_lshl_add_u32 v{b}, v{a}, 6, v{b}
    v_lshl_add_u32 v{b}, v{c}, 3, v{b}
    s_add_u32 s{sT0}, s{sM0b}, {E}
    v_add_u32 v{vXA}, s{sT0}, v{b}
    v_add_u32 v{vRW}, s{sM0b}, v{vL16}
    v_xor_b32 v{vRR}, 0x4000, v{vRW}
    v_xor_b32 v{vRR+1}, 0x6000, v{vRW}
    v_xor_b32 v{vRR+2}, 0x2000, v{vRW}
    """)
    return S

def setup_b():
    if OPT['packb']:
        pk = f"s_mul_i32 s{sT1}, s{sT0}, 37\ns_lshr_b32 s{sT1}, s{sT1}, 8\ns_lshr_b32 s{sFBo}, s{sFBo}, 3\ns_add_u32 s{sFBo}, s{sFBo}, s{sT1}\ns_lshl_b32 s{sFBo}, s{sFBo}, 7\ns_mul_i32 s{sT1}, s{sT1}, 7\ns_sub_u32 s{sT0}, s{sT0}, s{sT1}\ns_lshl_b32 s{sT0}, s{sT0}, 2\ns_add_u32 s{sFBo}, s{sFBo}, s{sT0}\ns_add_u32 s{sFBo}, s{sFBo}, {FLB}"
    else:
        pk = f"s_add_u32 s{sFBo}, s{sFBo}, s{sT0}\ns_lshl_b32 s{sFBo}, s{sFBo}, 7\ns_add_u32 s{sFBo}, s{sFBo}, {FLB}"
    if OPT['packa']:
        pa = f"s_lshl_b32 s{sFAo}, s{sT0}, 1\ns_lshr_b32 s{sT1}, s{sRB2}, 4\ns_add_u32 s{sFAo}, s{sFAo}, s{sT1}\ns_lshl_b32 s{sFAo}, s{sFAo}, 7\ns_and_b32 s{sT1}, s{sRB2}, 15\ns_lshl_b32 s{sT1}, s{sT1}, 2\ns_add_u32 s{sFAo}, s{sFAo}, s{sT1}\ns_add_u32 s{sFAo}, s{sFAo}, {FLA}\n"
        pa += f"s_lshr_b32 s{sFAp}, s{sCH}, 4\ns_lshl_b32 s{sFAp}, s{sFAp}, 8\ns_lshl_b32 s{sT0}, s{sFH}, 7\ns_sub_u32 s{sFAp}, s{sFAp}, s{sT0}\ns_add_u32 s{sFAp}, s{sFAp}, {FLA + 128}"
    else:
        pa = f"s_lshl_b32 s{sFAo}, s{sT0}, 5\ns_add_u32 s{sFAo}, s{sFAo}, s{sRB2}\ns_lshl_b32 s{sFAo}, s{sFAo}, 7\ns_add_u32 s{sFAo}, s{sFAo}, {FLA}\n"
        pa += f"s_lshr_b32 s{sFAp}, s{sCH}, 4\ns_lshl_b32 s{sFAp}, s{sFAp}, 12\ns_lshl_b32 s{sT0}, s{sFH}, 11\ns_sub_u32 s{sFAp}, s{sFAp}, s{sT0}\ns_add_u32 s{sFAp}, s{sFAp}, {FLA + 2048}"
    class SS(Stream):
        def __call__(self, text, tag=None): return Stream.__call__(self, text.replace('PACKB', pk).replace('PACKA', pa), tag)
    S = SS()
    S(f"""
    s_lshl_b32 s{sFBo}, s{sRB1}, 1
    s_add_u32 s{sFBo}, s{sFBo}, s{sTH}
    s_lshl_b32 s{sFBo}, s{sFBo}, 5
    s_lshl_b32 s{sT0}, s{sCB1}, 1
    s_add_u32 s{sT0}, s{sT0}, s{sFH}
    PACKB
    s_lshl_b32 s{sT0}, s{sCB2}, 2
    s_add_u32 s{sT0}, s{sT0}, s{sW}
    s_lshl_b32 s{sKV0}, s{sT0}, 16
    s_lshl_b32 s{sT1}, s{sRB2}, 7
    s_sub_u32 s{sKV0}, s{sKV0}, s{sT1}
    s_add_u32 s{sKV0}, s{sKV0}, {KVR + 1984*2}
    s_add_u32 s{sKV1}, s{sKV0}, 4096
    PACKA
    s_lshl_b32 s{sT0}, s{sFH}, 11
    s_lshl_b32 s{sHC}, s{sCH}, 12
    s_add_u32 s{sU}, s{sHC}, s{sT0}
    s_add_u32 s{sYs}, s{sU}, {YT}
    s_add_u32 s{sU}, s{sU}, {KVR}
    s_lshl_b32 s{sT0}, s{sFH}, 1
    s_add_u32 s{sHC}, s{sHC}, s{sT0}
    """)
    return S
def setup_c():
    S = Stream()
    S(f"""
    s_lshl_b32 s{sFBp}, s{sRB2}, {2 if OPT['packb'] else 5}
    s_mul_i32 s42, s{sW}, {1 if OPT['packb'] else 7}
    s_add_u32 s{sFBp}, s{sFBp}, s42
    s_lshl_b32 s{sFBp}, s{sFBp}, 7
    s_add_u32 s{sFBp}, s{sFBp}, {FLB}
    s_lshr_b32 s{sFCo}, s{sCH}, {5 if OPT['packc'] else 0}
    s_lshl_b32 s{sFCo}, s{sFCo}, 1
    s_add_u32 s{sFCo}, s{sFCo}, s{sFH}
    s_lshl_b32 s{sFCo}, s{sFCo}, 7
    s_and_b32 s42, s{sCH}, {31 if OPT['packc'] else 0}
    s_lshl_b32 s42, s42, 2
    s_add_u32 s{sFCo}, s{sFCo}, s42
    s_add_u32 s{sFCo}, s{sFCo}, {FLC}
    s_lshl_b32 s42, s{sCB2}, 1
    s_add_u32 s42, s42, s{sFH}
    s_lshl_b32 s{sFCp}, s42, {8 if OPT['packc'] else 13}
    s_lshr_b32 s43, s{sRB2}, 4
    s_lshl_b32 s43, s43, 7
    s_add_u32 s{sFCp}, s{sFCp}, s43
    s_add_u32 s{sFCp}, s{sFCp}, {FLC}
    s_lshl_b32 s{sYl}, s42, 17
    s_lshl_b32 s{sXO}, s42, 6
    s_lshl_b32 s42, s{sRB2}, 1
    s_add_u32 s42, s42, s{sTH}
    s_lshl_b32 s43, s42, 6
    s_add_u32 s{sYl}, s{sYl}, s43
    s_add_u32 s{sYl}, s{sYl}, {YT}
    s_lshl_b32 s43, s42, 15
    s_add_u32 s{sXO}, s{sXO}, s43
    s_lshl_b32 s{sStatF}, s42, 9
    s_add_u32 s{sStatF}, s{sStatF}, {STATS}
    s_mul_i32 s{sHLo}, s42, {112*1024}
    s_xor_b32 s42, s42, 1
    s_mul_i32 s{sHL}, s42, {112*1024}
    s_mul_i32 s42, s{sW}, {28*1024}
    s_lshl_b32 s43, s{sRot}, 12
    s_add_u32 s42, s42, s43
    s_add_u32 s{sHL}, s{sHL}, s42
    s_add_u32 s{sHLo}, s{sHLo}, s42
    """)
    return S

def hoffs2():
    return Stream()
sNeg = 92
def hoffs():
    S = Stream()
    g = Stream(); g(f"s_mov_b64 s[{WSO}:{WSO+1}], s[{WS}:{WS+1}]\ns_mov_b32 s{sNeg}, {-6*4096 & 0xffffffff:#x}\ns_mov_b32 s{sN2}, s{sN}\ns_mov_b32 s{sN2+1}, s{sN}"); S.atomic(g)
    return S

def nonce_get():
    S = Stream()
    S(f"s_load_dword s{sN}, s[{DBG}:{DBG+1}], 0")
    return S
def nonce_use(N='N'):
    S = Stream(); g = Stream()
    g(f"s_waitcnt lgkmcnt(0)\ns_cmp_eq_u32 s{sN}, 0\ns_cbranch_scc1 L_rare{N}\nL_back{N}:\nv_mov_b32 v{vN}, s{sN}")
    S.atomic(g)
    rare(f"""
    L_rare{N}:
    s_mov_b32 s{sCnt}, 0
    {"v_writelane_b32 v62, 1, 51" if OPT['prof'] else ""}
    L_rl{N}:
    s_sleep 2
    buffer_load_dword v{vN}, off, {srd(DBG)}, 0 sc1
    s_waitcnt vmcnt(0)
    v_readfirstlane_b32 s{sN}, v{vN}
    s_cmp_lg_u32 s{sN}, 0
    s_cbranch_scc1 L_back{N}
    s_add_u32 s{sCnt}, s{sCnt}, 1
    s_cmp_lt_u32 s{sCnt}, 0x4000
    s_cbranch_scc1 L_rl{N}
    s_branch L_back{N}
    """)
    return S

def stats():
    pr = lambda b: f"v[{b}:{b+1}]"
    S = Stream(); X = 176; A = 192; B = 193; C = 194
    for i in range(8): S(f"v_lshlrev_b32 v{X+2*i}, 16, v{vROW+i}\nv_and_b32 v{X+2*i+1}, 0xffff0000, v{vROW+i}")
    def allred(r):
        for m in ("quad_perm:[1,0,3,2]", "quad_perm:[2,3,0,1]", "row_half_mirror", "row_mirror"):
            S(f"v_add_f32_dpp v{r}, v{r}, v{r} {m} row_mask:0xf bank_mask:0xf")
        S(f"v_mov_b32 v{C}, v{r}\nv_permlane16_swap_b32 v{r}, v{C}\nv_add_f32 v{r}, v{r}, v{C}")
    for i in range(4): S(f"v_pk_add_f32 {pr(200+2*i)}, {pr(X+4*i)}, {pr(X+4*i+2)}")
    S(f"v_pk_add_f32 {pr(200)}, {pr(200)}, {pr(202)}\nv_pk_add_f32 {pr(204)}, {pr(204)}, {pr(206)}\nv_pk_add_f32 {pr(200)}, {pr(200)}, {pr(204)}\nv_add_f32 v{A}, v200, v201")
    allred(A)
    S(f"v_mul_f32 v{A}, {f2u(1/512):#x}, v{A}")
    for i in range(8): S(f"v_pk_add_f32 {pr(X+2*i)}, {pr(X+2*i)}, {pr(A)} op_sel_hi:[1,0] neg_lo:[0,1] neg_hi:[0,1]")
    S(f"v_pk_mul_f32 {pr(200)}, {pr(X)}, {pr(X)}\nv_pk_mul_f32 {pr(202)}, {pr(X+2)}, {pr(X+2)}")
    for i in range(2, 8): S(f"v_pk_fma_f32 {pr(200+2*(i&1))}, {pr(X+2*i)}, {pr(X+2*i)}, {pr(200+2*(i&1))}")
    S(f"v_pk_add_f32 {pr(200)}, {pr(200)}, {pr(202)}\nv_add_f32 v{B}, v200, v201")
    allred(B)
    S(f"""
    v_mul_f32 v{B}, {f2u(1/512):#x}, v{B}
    v_cvt_pk_bf16_f32 v{B}, v{B}, v{B}
    v_lshlrev_b32 v{B}, 16, v{B}
    v_add_f32 v{B}, {f2u(1e-5):#x}, v{B}
    v_cvt_pk_bf16_f32 v{B}, v{B}, v{B}
    v_lshlrev_b32 v{B}, 16, v{B}
    v_sqrt_f32 v{B}, v{B}
    v_and_b32 v{C}, 31, v{vL}
    v_cvt_pk_bf16_f32 v196, v{A}, v{B}
    v_lshrrev_b32 v{A}, 2, v{vL}
    v_mov_b32 v{B}, {OOB}
    """)
    g = Stream(); g(f"v_cmp_eq_u32 vcc, 0, v{C}\nv_cndmask_b32 v198, v{B}, v{A}, vcc"); S.atomic(g)
    return S
def stats_store():
    S = Stream()
    S(f"v_mov_b32 v197, v{vN}\nbuffer_store_dwordx2 v[196:197], v198, {srd(WS)}, s{sStatW} offen sc1")
    return S

def flag_store(soff, srdb, tag):
    S = Stream(); S.waitvm(tag)
    S(f"buffer_store_dword v{vN}, v{vL0}, {srd(srdb)}, s{soff} offen sc1")
    return S

def kv_addr():
    S = Stream(); a1, a2, a3 = 252, 253, 254
    S(f"""
    v_and_b32 v{a1}, 7, v{vL}
    v_mul_u32_u24 v{a2}, 1040, v{a1}
    v_lshrrev_b32 v{a3}, 3, v{vL}
    v_lshl_add_u32 v{a2}, v{a3}, 2, v{a2}
    s_lshl_b32 s{sT0}, s{sW}, 5
    s_add_u32 s{sT0}, s{sT0}, {KT}
    v_add_u32 v{a2}, s{sT0}, v{a2}
    v_add_u32 v255, 1040, v{a2}
    v_xor_b32 v{a1}, 7, v{a1}
    v_lshlrev_b32 v{a1}, 4, v{a1}
    v_lshl_add_u32 v{a1}, v{a3}, 13, v{a1}
    v_add_u32 v{a3}, {VT-KT}, v{a2}
    """)
    return S
def kvpre():
    S = Stream()
    KR = 232; VR = 244; KP = 176; WF = 220; O = 200
    S(f"ds_read2_b32 v[{KR}:{KR+1}], v253 offset0:160 offset1:192\nds_read_b32 v{KR+2}, v253 offset:896")
    for p in range(4): S(f"ds_read2_b32 v[{KR+4+2*p}:{KR+5+2*p}], v255 offset0:{64*p} offset1:{64*p+32}")
    for p in range(4): S(f"ds_read2_b32 v[{VR+2*p}:{VR+1+2*p}], v254 offset0:{64*p} offset1:{64*p+32}")
    for j in range(4):
        for c in range(2):
            src = vSHK + 2*c + (j >> 1)
            S(f"v_and_b32 v{WF+2*j+c}, 0xffff0000, v{src}" if j & 1 else f"v_lshlrev_b32 v{WF+2*j+c}, 16, v{src}")
    ri = lambda r: r + 3 if r < 0 else r + 4
    pr = lambda b: f"v[{b}:{b+1}]"
    for r in range(-3, 8):
        S(f"v_lshlrev_b32 v{KP+2*ri(r)}, 16, v{KR+ri(r)}\nv_and_b32 v{KP+2*ri(r)+1}, 0xffff0000, v{KR+ri(r)}")
    for t in range(8): S(f"v_pk_mul_f32 {pr(O+2*t)}, {pr(KP+2*ri(t))}, {pr(WF)}")
    for jj in range(1, 4):
        for t in range(8): S(f"v_pk_fma_f32 {pr(O+2*t)}, {pr(KP+2*ri(t-jj))}, {pr(WF+2*jj)}, {pr(O+2*t)}")
    for t in range(8): S(f"v_lshlrev_b32 v{KP+2*t}, 16, v{VR+t}\nv_and_b32 v{KP+2*t+1}, 0xffff0000, v{VR+t}")
    for t in range(8): S(f"v_pk_mul_f32 {pr(O+2*t)}, {pr(O+2*t)}, {pr(KP+2*t)}")
    for ch, Pk in enumerate((232, 236)):
        for q in range(4): S(f"v_cvt_pk_bf16_f32 v{Pk+q}, v{O+2*(7-2*q)+ch}, v{O+2*(6-2*q)+ch}")
        S(f"buffer_store_dwordx4 v[{Pk}:{Pk+3}], v252, {srd(WS)}, s{sKV0+ch} offen sc1", f"kv{ch}")
    return S

def kvpre_np():
    S = Stream()
    KR = 232; VR = 244; KL = 176; WF = 188; OA = 200; OB = 220
    S(f"ds_read2_b32 v[{KR}:{KR+1}], v253 offset0:160 offset1:192\nds_read_b32 v{KR+2}, v253 offset:896")
    for p in range(4): S(f"ds_read2_b32 v[{KR+4+2*p}:{KR+5+2*p}], v255 offset0:{64*p} offset1:{64*p+32}")
    for p in range(4): S(f"ds_read2_b32 v[{VR+2*p}:{VR+1+2*p}], v254 offset0:{64*p} offset1:{64*p+32}")
    for i in range(4):
        S(f"v_lshlrev_b32 v{WF+2*i}, 16, v{vSHK+i}\nv_and_b32 v{WF+2*i+1}, 0xffff0000, v{vSHK+i}")
    ri = lambda r: r + 3 if r < 0 else r + 4
    for r in range(-3, 8):
        S(f"v_lshlrev_b32 v{KL+ri(r)}, 16, v{KR+ri(r)}\nv_and_b32 v{KR+ri(r)}, 0xffff0000, v{KR+ri(r)}")
    for ch, (K, Oo) in enumerate(((KL, OA), (KR, OB))):
        for t in range(8): S(f"v_mul_f32 v{Oo+t}, v{K+ri(t)}, v{WF+4*ch}")
        for jj in range(1, 4):
            for t in range(8): S(f"v_fmac_f32 v{Oo+t}, v{K+ri(t-jj)}, v{WF+4*ch+jj}")
    for t in range(8):
        S(f"v_lshlrev_b32 v{KL+t}, 16, v{VR+t}\nv_and_b32 v{VR+t}, 0xffff0000, v{VR+t}")
    for t in range(8):
        S(f"v_mul_f32 v{OA+t}, v{OA+t}, v{KL+t}\nv_mul_f32 v{OB+t}, v{OB+t}, v{VR+t}")
    for ch, (Oo, Pk) in enumerate(((OA, 232), (OB, 236))):
        for q in range(4): S(f"v_cvt_pk_bf16_f32 v{Pk+q}, v{Oo+7-2*q}, v{Oo+6-2*q}")
        S(f"buffer_store_dwordx4 v[{Pk}:{Pk+3}], v252, {srd(WS)}, s{sKV0+ch} offen sc1", f"kv{ch}")
    return S

def stouch(S):
    S(f"v_lshlrev_b32 v5, 10, v{vL}\ns_lshl_b32 s66, s{sW}, 8\ns_add_u32 s72, s64, s66\ns_lshl_b32 s66, s{sW}, 1\ns_add_u32 s73, s65, s66")
    for p in range(OPT['st0'], 7):
        for c in range(2):
            S(f"""
            s_add_u32 s67, s73, {p + c}
            s_mul_i32 s69, s67, 37
            s_lshr_b32 s69, s69, 8
            s_mul_i32 s69, s69, 7
            s_sub_u32 s67, s67, s69
            s_lshl_b32 s67, s67, 16
            s_add_u32 s67, s67, s72
            buffer_load_dword a236, v5, {srd(W2)}, s67 offen offset:{128*c}
            """)
            S[-1].wr = set()

def msweep(S):
    S(f"""
    v_lshlrev_b32 v6, 7, v{vL}
    s_lshl_b32 s66, s{sX}, 2
    s_and_b32 s67, s{sJ}, 3
    s_add_u32 s66, s66, s67
    s_lshl_b32 s66, s66, 2
    s_add_u32 s66, s66, s{sW}
    s_mul_i32 s66, s66, 14336
    s_add_u32 s67, s66, 6144
    buffer_load_dword a237, v6, {srd(W2)}, s66 offen
    buffer_load_dword a238, v6, {srd(W2)}, s67 offen
    """)

def spare1():
    S = Stream()
    S("L_spare1:")
    if OPT['spb'] == 1: S("s_waitcnt vmcnt(0)\ns_barrier")
    S(f"""
    s_lshl_b32 s64, s{sX}, 2
    s_and_b32 s65, s{sJ}, 3
    s_add_u32 s64, s64, s65
    s_lshl_b32 s64, s64, 16
    s_lshl_b32 s66, s{sW}, 13
    s_add_u32 s64, s64, s66
    s_add_u32 s64, s64, 384
    s_add_u32 s66, s64, 32768
    """)
    if OPT['c3pf']:
        S(f"""
        buffer_load_dwordx4 a[64:67], v237, {srd(SKK)}, s64 offen
        buffer_load_dwordx4 a[68:71], v237, {srd(SVV)}, s64 offen
        buffer_load_dwordx4 a[72:75], v237, {srd(SKK)}, s66 offen
        buffer_load_dwordx4 a[76:79], v237, {srd(SVV)}, s66 offen
        """)
    if OPT['kvpos'] >= 2: S.extend(kv_dma())
    S(f"v_mov_b32 v4, v237")
    S.extend(nonce_get()); S.extend(setup_b()); S.extend(setup_c()); S.extend(nonce_use('M')); S.extend(stats_store())
    S.extend(kv_addr())
    S(f"""
    s_mul_i32 s64, s65, {448*1024}
    s_lshl_b32 s66, s{sW}, 14
    s_add_u32 s70, s64, s66
    s_add_u32 s70, s70, 384
    s_mul_i32 s65, s{sX}, {OPT['rotx']}
    s_add_u32 s71, s65, 3
    """)
    def c3(n):
        for i in range(n):
            S(f"""
            s_mul_i32 s69, s71, 37
            s_lshr_b32 s69, s69, 8
            s_mul_i32 s69, s69, 7
            s_sub_u32 s67, s71, s69
            s_lshl_b32 s67, s67, 16
            s_add_u32 s67, s67, s70
            s_add_u32 s68, s67, 8192
            s_add_u32 s71, s71, 1
            buffer_load_dwordx4 a[80:83], v4, {srd(W2)}, s67 offen
            buffer_load_dwordx4 a[84:87], v4, {srd(W2)}, s68 offen
            """)
            S[-1].wr = set(); S[-2].wr = set()
    if OPT['kvpos'] >= 2:
        if OPT['msw'] == 1: msweep(S)
        c3(OPT['c3a'])
        if OPT['msw'] == 2: msweep(S)
        if OPT['stch'] == 3: stouch(S)
        if OPT['spb'] == 2: S(f"s_waitcnt vmcnt({2*OPT['c3a'] + 6 + (4 if OPT['c3pf'] else 0)})\ns_barrier")
        if OPT['ownw2']: S.extend(SPARE_W2[5:5+OPT['ownw2']])
        S.waitvm("kvd")
    else:
        c3(OPT['c3a']); S(f"s_waitcnt vmcnt({2*OPT['c3a'] + 1 + (4 if OPT['c3pf'] else 0)})")
    S("s_barrier")
    S.extend(kvpre())
    S.extend(flag_init()); S(f"s_mov_b32 s{sDone}, 0x80000000")
    if OPT['msw'] == 3: msweep(S)
    S("s_barrier")
    if OPT['kvpos'] >= 2: S.extend(dh_loads())
    S.extend(SPARE_W2[:5] if OPT['ownw2'] else SPARE_W2[:8])
    S.extend(flag_store(sFAo, WS, "kv1"))
    stamp(S, "kvpub")
    if OPT['stch'] == 2: stouch(S)
    S.extend(SPARE_W2[5+OPT['ownw2']:] if OPT['ownw2'] else SPARE_W2[8:])
    c3(OPT['c3b'])
    if OPT['stch'] == 1: stouch(S)
    if OPT['tp'] >= 0: S.extend(w2touch(range(OPT['tp'], 7)))
    if OPT['sweep']:
        S(f"""
        s_lshl_b32 s66, s{sW}, 7
        s_add_u32 s64, s64, s66
        s_add_u32 s65, s65, s{sW}
        s_mov_b32 s66, {OPT['swn']}
        s_cmp_eq_u32 s{sW}, 3
        s_cbranch_scc1 L_swe
        L_sw:
        s_mul_i32 s69, s65, 37
        s_lshr_b32 s69, s69, 8
        s_mul_i32 s69, s69, 7
        s_sub_u32 s67, s65, s69
        s_lshl_b32 s67, s67, 16
        s_add_u32 s67, s67, s64
        """)
        for n in range(8):
            S(f"buffer_load_dwordx4 a[232:235], v4, {srd(W2)}, s67 offen\ns_add_u32 s67, s67, 8192"); S[-2].cls = 'other'
        S(f"""
        s_add_u32 s65, s65, 1
        s_sub_u32 s66, s66, 1
        s_cmp_lg_u32 s66, 0
        s_cbranch_scc1 L_sw
        L_swe:
        s_waitcnt vmcnt(0)
        """)
    S.extend(hcopy_wr() if OPT['hcreg'] else Stream()); S.extend(htouch_pro() if OPT['hto'] else Stream()); S.extend(hpad()); S.extend(hoffs()[:1] if OPT['packa'] else hoffs())
    if OPT['stch'] == 5:
        S("s_waitcnt vmcnt(0)"); stouch(S)
    S(pollA_load()); S.extend(u_loads(True))
    S("s_waitcnt vmcnt(0) lgkmcnt(0)")
    if OPT['stch'] == 4: stouch(S)
    S("s_branch L_join")
    return S

def w2touch(ps):
    S = Stream(); a, b = 250, 251
    g = Stream(); g(f"""v_cmp_gt_u32 vcc, 16, v{vL}
    v_lshlrev_b32 v{a}, 10, v{vL}
    v_mov_b32 v{b}, {OOB}
    v_cndmask_b32 v{a}, v{b}, v{a}, vcc"""); S.atomic(g)
    S(f"""s_lshr_b32 s79, s{sJ}, 3
    s_lshl_b32 s79, s79, 14
    s_mul_i32 s71, s{sW}, {448*1024}
    s_add_u32 s79, s79, s71
    s_lshl_b32 s71, s{sCB2}, 7
    s_add_u32 s79, s79, s71""")
    for p in ps:
        g = Stream(); g(f"""s_add_u32 s{sCnt}, s{sRot}, {p}
        s_cmp_ge_u32 s{sCnt}, 7
        s_cselect_b32 s71, 7, 0
        s_sub_u32 s{sCnt}, s{sCnt}, s71
        s_lshl_b32 s{sCnt}, s{sCnt}, 16
        s_add_u32 s{sCnt}, s{sCnt}, s79
        buffer_load_dword a236, v{a}, {srd(W2)}, s{sCnt} offen"""); g[-1].wr = set(); S.atomic(g)
    return S

def htouch():
    S = Stream()
    if OPT['htouch']:
        S(f"v_and_b32 v230, 31, v{vL}\nv_lshrrev_b32 v231, 5, v{vL}\nv_mul_u32_u24 v231, {112*1024}, v231\nv_lshl_add_u32 v230, v230, 7, v231\ns_lshl_b32 s87, s{sTH}, 11\ns_sub_u32 s87, s{sHst}, s87")
        S(f"buffer_load_dword a236, v230, {srd(WS)}, s87 offen")
        if OPT['htouch'] > 1: S(f"buffer_load_dword a237, v230, {srd(WS)}, s87 offen offset:64")
    return S

WSF = 48; sDone = 87
def flag_try(soff, tag, last=False, first=False):
    S = Stream(); g = Stream()
    if last:
        g.waitvm(tag); g(f"s_cmp_eq_u32 s{sDone}, 0")
    else:
        g(f"s_getreg_b32 s{WSF+2}, hwreg(HW_REG_IB_STS)\ns_and_b32 s{WSF+2}, s{WSF+2}, 0xc0000f\ns_or_b32 s{WSF+2}, s{WSF+2}, s{sDone}")
        g.append(Pseudo('CMPVM', (tag, WSF+2)))
    g(f"s_cselect_b32 s{WSF+2}, {WS_SIZE}, 0")
    g(f"s_mov_b32 s{sDone}, 0" if last else f"s_cselect_b32 s{sDone}, 0x80000000, s{sDone}")
    g(f"buffer_store_dword v{vN}, v{vL0}, {srd(WSF)}, s{soff} offen sc1")
    S.atomic(g)
    return S
def flag_init():
    S = Stream(); S(f"s_mov_b64 s[{WSF}:{WSF+1}], s[{WS}:{WS+1}]\ns_mov_b32 s{sDone}, 0\ns_mov_b32 s{sW2neg}, {(32768 - 7*65536) & 0xffffffff:#x}"); return S

def dh_loads():
    S = Stream()
    if OPT['tiny']: return S
    g = Stream(); g(f"s_lshl_b32 s{sDv}, s2, 2\nv_mov_b32 v219, s{sDv}\nglobal_load_dword a248, v219, s[{sDptr}:{sDptr+1}]"); S.atomic(g)
    g = Stream(); g(f"s_lshl_b32 s{sDv}, s{sCH}, 12\nbuffer_load_dword a249, off, {srd(SSK)}, s{sDv}"); S.atomic(g)
    return S

def hcopy_ld():
    S = one(f"s_sub_u32 s{sHC}, s{sYs}, {YT:#x}")
    for t in (f"buffer_load_dwordx4 v[232:235], v{vL16}, {srd(SSK)}, s{sHC} offen nt", f"buffer_load_dword v240, v{vL16}, {srd(SSK)}, s{sHC} offen offset:16",
              f"buffer_load_dwordx4 v[236:239], v{vL16}, {srd(SSK)}, s{sHC} offen offset:1024 nt", f"buffer_load_dword v241, v{vL16}, {srd(SSK)}, s{sHC} offen offset:1040"):
        g = Stream(); g(t, "hc"); S.atomic(g)
    return S
def hcopy_wr():
    S = one(f"s_mul_i32 s{sT1}, s{sTH}, 8320\ns_lshl_b32 s{sT0}, s{sFH}, 11\ns_add_u32 s{sT1}, s{sT1}, s{sT0}\ns_add_u32 s{sT1}, s{sT1}, {HC+32}\nv_add_u32 v242, s{sT1}, v{vL16}")
    for i in range(2):
        e = 232 + 4*i; o = 244 + 4*i
        S(f"ds_write_b128 v242, v[{e}:{e+3}] offset:{1024*i}")
        for j in range(4): S(f"v_alignbit_b32 v{o+j}, v{e+j+1 if j < 3 else 240+i}, v{e+j}, 16")
        S(f"ds_write_b128 v242, v[{o}:{o+3}] offset:{4160+1024*i}")
    return S
def hcopy_dma():
    if OPT['hcreg']: return hcopy_ld()
    S = Stream()
    S(f"s_mul_i32 s{sT0}, s{sW}, 4160")
    dma_n(S, vL16, SSK, sHC, f"s_add_u32 m0, s{sT0}, {HC+32}", "hc", samev=True, nt=OPT['hcnt'])
    return S
def hpad():
    S = Stream()
    S(f"v_accvgpr_read_b32 v230, a248\nv_accvgpr_read_b32 v231, a249\ns_lshl_b32 s{sT1}, s{sTH}, 4\nv_lshrrev_b32 v230, s{sT1}, v230\nv_lshlrev_b32 v230, 16, v230\nv_lshlrev_b32 v231, 16, v231\nv_mul_lo_u32 v231, v231, s{sFH}\nv_readfirstlane_b32 s{sDv}, v230")
    S(f"s_mul_i32 s{sT1}, s{sW}, 4160\nv_and_b32 v230, 7, v{vL}")
    g = Stream(); g(f"v_cmp_eq_u32 vcc, 7, v230\nv_lshlrev_b32 v230, 2, v230\ns_add_u32 s{sT1}, s{sT1}, {HC}\nv_cndmask_b32 v231, 0, v231, vcc\nv_add_u32 v230, s{sT1}, v230\nds_write_b32 v230, v231")
    S.atomic(g)
    return S

def g1_set(n): return FR + 16 * (n % 3)
def g1_reads(n):
    if n >= 32: return []
    i, ks = divmod(n, 4)
    st = g1_set(n); slot = i & 3; hi = slot >> 1; off = (slot & 1) * 32768
    L = []
    for u in range(2):
        for rd in range(2):
            L.append(f"ds_read_b64_tr_b16 v[{st+4*u+2*rd}:{st+4*u+2*rd+1}], v{vWA+2*hi+u} offset:{off+16384+ks*4096+rd*1024}")
    for tt in range(2):
        L.append(f"ds_read_b128 v[{st+8+4*tt}:{st+11+4*tt}], v{vQA+4*hi+ks} offset:{off+tt*4096}")
    return [L[0], L[1], L[4], L[5], L[2], L[3]]

def stat_loads(att):
    return [f"buffer_load_dwordx2 v[{STL+4*att+2*tt}:{STL+4*att+2*tt+1}], v{vSTV}, {srd(WS)}, s{sStatC} offen offset:{tt*512} sc1" for tt in range(2)]

def gemm1():
    S = Stream(); CAP = OPT['cap']
    S.waitvm("c0"); S("s_barrier")
    stamp(S, "c0")
    for t in g1_reads(0): S(t)
    for t in g1_reads(1): S(t, 'fr1')
    for i in range(8):
        S.mark(f"c{i}a")
        for ks in range(4):
            n0 = 4*i + ks; st = g1_set(n0); first = n0 == 0
            rds = g1_reads(n0 + 2)
            bar = (ks == 1 and i < 7) or n0 == 30
            if n0 == 1: S.mark("c0h")
            if n0 > 0: S.waitlg(f'fr{n0}')
            small = [st] if n0 < 30 else ([st, g1_set(31)] if n0 == 30 else [])
            if OPT['cshare'] and n0 >= 4: small = []
            for n, (u, tt) in enumerate([(0, 0), (0, 1), (1, 0), (1, 1)]):
                acc = ACC + 16 * (2*u + tt)
                c = "0" if first else vr(acc, 16)
                if bar and n == 3:
                    if OPT['prof'] == 4 and OPT['fine'] and i in (1, 2): stamp(S, f"f{i}")
                    S.mark(f"c{i}m")
                    if i == OPT['kvpos'] and not OPT['kvfill'] and not OPT['kvaft']:
                        if OPT['cshare'] and OPT['cspub'] == 2: S.extend(cs_publish())
                        if OPT['prof'] == 4 and OPT['fine']: stamp(S, "k_a")
                        S.waitvm("kvd")
                        if OPT['prof'] == 4 and OPT['fine']: stamp(S, "k_w")
                        S("s_barrier")
                        if OPT['prof'] == 4 and OPT['fine']: stamp(S, "k_b")
                        S.extend(kvpre())
                        if OPT['prof'] in (2, 4): stamp(S, "kvp")
                    if i < 7: S.waitvm(f"c{i+1}")
                    if OPT['prof'] in (2, 4) or OPT['x_meas']: stamp(S, f"w{i}")
                    S.waitlg()
                S(f"v_mfma_f32_32x32x16_bf16 {vr(acc,16)}, v[{st+4*u}:{st+4*u+3}], v[{st+8+4*tt}:{st+11+4*tt}], {c}")
                k = 0
                if bar and n == 3:
                    S("s_barrier"); S.mark(f"c{i}b"); k = 2
                while rds and k < (3 if bar else 2): S(rds.pop(0), f'fr{n0+2}'); k += 1
                if n0 == 30 and n == 2 and not OPT['cshare']:
                    S(f"ds_write_b128 v{vCSW}, a[{CSACC}:{CSACC+3}]"); k += 1
                S.fill(CAP - k)
                if OPT['kvaft'] and n0 == 4*OPT['kvpos'] + 2 and n == 3:
                    S.mark("kvr"); S.extend(kvpre()[10:])
                    if OPT['prof'] in (2, 4): stamp(S, "kvp")
                if n == 0 and not (OPT['x_nocs'] and n0 > 0):
                    for sm in small:
                        c = "0" if first else ar(CSACC, 4)
                        S(f"v_mfma_f32_16x16x32_bf16 {ar(CSACC,4)}, v[{sm}:{sm+3}], {ar(SEL,4)}, {c}")
                        S.fill(1)
        S.mark(f"c{i}e")
    return S

CSL = 200
def cs_publish():
    S = Stream(); a, b = 250, 251; T = 240
    S(f"""
    s_and_b32 s{sCsN}, s{sJ}, 1
    s_xor_b32 s{sCsN}, s{sCsN}, 1
    s_lshl_b32 s{sCsN}, s{sCsN}, 1
    v_and_b32 v{a}, 15, v{vL}
    v_lshrrev_b32 v{b}, 4, v{vL}
    v_lshlrev_b32 v{b}, 5, v{b}
    v_lshl_add_u32 v{b}, v{a}, 7, v{b}
    v_mov_b32 v{T+1}, v{vN}
    v_mov_b32 v{T+3}, v{vN}
    v_mov_b32 v{T+5}, v{vN}
    v_mov_b32 v{T+7}, v{vN}
    """)
    g = Stream(); g(f"v_cmp_gt_u32 vcc, s{sCsN}, v{a}\nv_mov_b32 v{a}, {OOB}\nv_cndmask_b32 v{b}, v{a}, v{b}, vcc"); S.atomic(g)
    for r in range(4): S(f"v_accvgpr_read_b32 v{T+2*r}, a{CSACC+r}")
    S(f"buffer_store_dwordx4 v[{T}:{T+3}], v{b}, {srd(WS)}, s{sCsW} offen sc1\nbuffer_store_dwordx4 v[{T+4}:{T+7}], v{b}, {srd(WS)}, s{sCsW} offen offset:16 sc1")
    return S
def cs_loads():
    return [f"buffer_load_dwordx2 v[{CSL+2*i}:{CSL+2*i+1}], v{vCSW}, {srd(WS)}, s{sCsR} offen offset:{1024*i} sc1" for i in range(4)]
def cs_gather():
    S = Stream(); t = CSL + 1
    check_poll(S, cs_loads(), [CSL+1, CSL+3, CSL+5, CSL+7])
    S(f"""
    v_add_f32 v{CSL}, v{CSL}, v{CSL+2}
    v_add_f32 v{CSL+4}, v{CSL+4}, v{CSL+6}
    v_and_b32 v{CSL+2}, 31, v{vL}
    v_add_f32 v{CSL}, v{CSL}, v{CSL+4}
    v_lshlrev_b32 v{CSL+2}, 2, v{CSL+2}
    v_mov_b32 v{t}, v{CSL}
    s_lshl_b32 s{sCsN}, s{sW}, 7
    s_add_u32 s{sCsN}, s{sCsN}, {CS}
    v_permlane32_swap_b32 v{CSL}, v{t}
    v_add_u32 v{CSL+2}, s{sCsN}, v{CSL+2}
    v_add_f32 v{CSL}, v{CSL}, v{t}
    ds_write_b32 v{CSL+2}, v{CSL}
    """)
    return S

def cs_reads():
    S = Stream()
    for u in range(2):
        for j in range(4): S(f"ds_read_b128 v[{CSV+16*u+4*j}:{CSV+16*u+4*j+3}], v{vCSA+u} offset:{32*j}")
    return S

def stats_consume():
    S = Stream()
    check_poll(S, stat_loads(1), [STL+5, STL+7])
    for tt in range(2):
        a1 = STL + 4 + 2*tt
        S(f"v_and_b32 v{MR+2*tt+1}, 0xffff0000, v{a1}\nv_rcp_f32 v{MR+2*tt+1}, v{MR+2*tt+1}\nv_lshlrev_b32 v{MR+2*tt}, 16, v{a1}\nv_mul_f32 v{MR+2*tt+1}, {NLOG2E:#x}, v{MR+2*tt+1}")
    return S

def epi1(inserts):
    S = Stream(); n = 0; held = []
    for u in range(2):
        for tt in range(2):
            for s in range(2):
                acc = ACC + 16*(2*u+tt) + 8*s; cs = CSV + 16*u + 8*s; W = FR + 8*(n & 1); P = FR + 16 + 4*n
                mr = f"v[{MR+2*tt}:{MR+2*tt+1}]"
                for p in range(4): S(f"v_pk_fma_f32 v[{acc+2*p}:{acc+2*p+1}], v[{cs+2*p}:{cs+2*p+1}], {mr}, v[{acc+2*p}:{acc+2*p+1}] op_sel_hi:[1,0,1] neg_lo:[0,1,0] neg_hi:[0,1,0]")
                for p in range(4): S(f"v_pk_mul_f32 v[{W+2*p}:{W+2*p+1}], v[{acc+2*p}:{acc+2*p+1}], {mr} op_sel:[0,1] op_sel_hi:[1,1]")
                for p in range(8): S(f"v_exp_f32_e64 v{W+p}, v{W+p}")
                if held and n > OPT['uat']: S(held.pop(0), "hst")
                for p in range(4): S(f"v_pk_add_f32 v[{W+2*p}:{W+2*p+1}], v[{W+2*p}:{W+2*p+1}], 1.0 op_sel_hi:[1,0]")
                for p in range(8): S(f"v_rcp_f32_e64 v{W+p}, v{W+p}")
                if held and n > OPT['uat']: S(held.pop(0), "hst")
                for p in range(4): S(f"v_pk_mul_f32 v[{W+2*p}:{W+2*p+1}], v[{acc+2*p}:{acc+2*p+1}], v[{W+2*p}:{W+2*p+1}]")
                for p in range(4): S(f"v_cvt_pk_bf16_f32 v{P+p}, v{W+2*p}, v{W+2*p+1}")
                st = f"buffer_store_dwordx4 v[{P}:{P+3}], v{vL16}, {srd(WS)}, s{sHst+2*u+tt} offen" + (" offset:1024" if s else "") + [" sc1", "", " nt", " sc0"][OPT['x_hplain']]
                if OPT['hold'] and n <= OPT['uat']: held.append(st)
                else: S(st, "hst")
                if OPT['prof'] == 3: stamp(S, f"e{n}")
                if n in inserts: S.extend(inserts[n])
                n += 1
    for st in held: S(st, "hst")
    return S

CB = 128; CACC = 64; CAF = 96; NA = 6; UST = 220
def pollA_load(): return f"buffer_load_dword v228, v{vPA}, {srd(WS)}, s{sFAp} offen sc1"
sResA = 40; sResC = 41; SA = 64
def spollA_load(): return one(f"s_load_dwordx16 s[{SA}:{SA+15}], s[{WS}:{WS+1}], s{sFAp} glc")
def u_loads(block=False):
    S = Stream()
    if block: check_poll(S, [pollA_load()], [228]); S(f"s_mov_b32 s{sResA}, 0\ns_mov_b32 s{WSO+2}, {WS_SIZE}")
    elif block is False and OPT['packa']:
        pr = lambda r: f"s[{r}:{r+1}]"
        g = Stream(); g(f"s_xor_b64 {pr(SA)}, {pr(SA)}, {pr(sN2)}")
        for r in range(2, 16, 2): g(f"s_xor_b64 {pr(SA+r)}, {pr(SA+r)}, {pr(sN2)}\ns_or_b64 {pr(SA)}, {pr(SA)}, {pr(SA+r)}")
        g(f"s_cselect_b32 s{WSO+2}, 0, {WS_SIZE}\ns_cselect_b32 s{sResA}, 1, 0"); S.atomic(g)
    elif block is False: note_poll(S, 228, sResA)
    S(f"buffer_load_dwordx4 v[{UST}:{UST+3}], v{vL16}, {srd(WSO)}, s{sU} offen sc1")
    S(f"buffer_load_dwordx4 v[{UST+4}:{UST+7}], v{vL16}, {srd(WSO)}, s{sU} offen offset:1024 sc1")
    return S

DU = 96
def conv():
    S = Stream()
    repair(S, sResA, one(f"s_mov_b32 s{WSF+2}, {WS_SIZE}\ns_mov_b32 s{sDone}, 0x80000000\nbuffer_store_dword v{vN}, v{vL0}, {srd(WSF)}, s{sFBo} offen sc1"), pollA_load(), 228, u_loads(None))
    if OPT['prof'] == 3: stamp(S, "rep")
    S(f"ds_write_b128 v{vCU}, v[{UST}:{UST+3}]\nds_write_b128 v{vCU}, v[{UST+4}:{UST+7}] offset:1024")
    S.waitvm("hc"); S.waitlg(); S("s_barrier")
    stamp(S, "conv0")
    rA = lambda c, a: CB + 64*(c & 1) + 4*a
    rB = lambda c, b: CB + 64*(c & 1) + 32 + 4*b
    def ldA(c, a):
        m = 4*a + c
        return [f"ds_read2_b32 v[{rA(c,a)+2*h}:{rA(c,a)+2*h+1}], v{vCA+(m>>3)} offset0:{32*(m&7)+2*h} offset1:{32*(m&7)+2*h+1}" for h in range(2)]
    ldB = lambda c, b: [f"ds_read_b128 v[{rB(c,b)}:{rB(c,b)+3}], v{vCB} offset:{128*(4*b+c)}"]
    pairs = [(a, b) for a in range(8) for b in range(7, a - 1, -1)]
    def loads(c):
        L = ldA(c, 0)
        for b in range(7, -1, -1): L += ldB(c, b)
        for a in range(1, 8): L += ldA(c, a)
        return L
    q = loads(0)
    for t in q[:6]: S(t)
    q = q[6:]
    S.mark("cva"); seenT = set(); p = 0
    for c in range(4):
        nq = loads(c + 1) if c < 3 else []
        if c > 0 and OPT['cvwait']: S.waitlg(f"cl{c}")
        for i, (a, b) in enumerate(pairs):
            T = a + 7 - b; acc = CACC + 4*T
            cc = vr(acc, 4) if T in seenT else "0"; seenT.add(T)
            S(f"v_mfma_f32_16x16x32_bf16 {vr(acc,4)}, v[{rA(c,a)}:{rA(c,a)+3}], v[{rB(c,b)}:{rB(c,b)+3}], {cc}")
            k = 0
            if q:
                for _ in range(2 if len(q) > 14 else 1):
                    if q: S(q.pop(0)); k += 1
            elif nq and (c == 0 or i % 4 != 3) and i >= 1: S(nq.pop(0), f"cl{c+1}"); k += 1
            S.fill(2 - k)
            S.mark(f"cv{p}")
            if OPT['prof'] == 3 and p in (35, 71, 107): stamp(S, f"cv{p}")
            p += 1
        for t in nq: S(t, f"cl{c+1}")
    S.mark("cve")
    stamp(S, "conv1")
    return S

def conv_du():
    S = Stream(); U = 112
    for T in range(4): S(f"ds_read_b64 v[{U+2*T}:{U+2*T+1}], v{vCD} offset:{(3-T)*512}")
    S(f"v_mov_b32 v120, s{sDv}")
    return S

def conv_epi(tail):
    S = Stream(); R = 224; Y = 120; U = 112
    for T in range(4):
        a = DU + 4*T
        S(f"""v_and_b32 v{a}, 0xffff0000, v{U+2*T+1}
        v_lshlrev_b32 v{a+1}, 16, v{U+2*T+1}
        v_and_b32 v{a+2}, 0xffff0000, v{U+2*T}
        v_lshlrev_b32 v{a+3}, 16, v{U+2*T}""")
        if T == 1: S(f"s_cmp_eq_u32 s{sFH}, 0\ns_cbranch_scc0 L_odd"); break
    def half(T_, keep, send):
        for T in range(4): T_(f"ds_write_b128 v{vCX}, v[{send+4*T}:{send+4*T+3}] offset:{1024*T}")
        for T in (2, 3):
            a = DU + 4*T
            T_(f"""v_and_b32 v{a}, 0xffff0000, v{U+2*T+1}
            v_lshlrev_b32 v{a+1}, 16, v{U+2*T+1}
            v_and_b32 v{a+2}, 0xffff0000, v{U+2*T}
            v_lshlrev_b32 v{a+3}, 16, v{U+2*T}""")
        for p in range(8): T_(f"v_pk_fma_f32 v[{DU+2*p}:{DU+2*p+1}], v[{DU+2*p}:{DU+2*p+1}], v[120:121], v[{keep+2*p}:{keep+2*p+1}] op_sel_hi:[1,0,1]")
    half(S, CACC, CACC + 16)
    S("L_oddback:")
    O = Stream(); O("L_odd:"); half(O, CACC + 16, CACC); O("s_branch L_oddback"); rare.extend(O)
    S.waitlg(); S("s_barrier")
    for T in range(4): S(f"ds_read_b128 v[{R+4*T}:{R+4*T+3}], v{vCXR} offset:{1024*T}")
    S.extend(tail)
    for pr in range(2):
        for T in (2*pr, 2*pr+1):
            a = DU + 4*T
            S(f"v_pk_add_f32 v[{a}:{a+1}], v[{a}:{a+1}], v[{R+4*T}:{R+4*T+1}]\nv_pk_add_f32 v[{a+2}:{a+3}], v[{a+2}:{a+3}], v[{R+4*T+2}:{R+4*T+3}]")
            y = Y + 4*pr + 2*(T & 1)
            S(f"v_cvt_pk_bf16_f32 v{y}, v{a}, v{a+1}\nv_cvt_pk_bf16_f32 v{y+1}, v{a+2}, v{a+3}")
        y = Y + 4*pr
        S(f"v_permlane16_swap_b32 v{y}, v{y+2}\nv_permlane16_swap_b32 v{y+1}, v{y+3}")
        S(f"buffer_store_dwordx4 v[{y}:{y+3}], v{vCY}, {srd(WS)}, s{sYs} offen" + (" offset:1024" if pr else "") + " sc1", "yst")
    return S

HR = 128; XF = 224; SF = 240; TP = 192
def pollB_load(): return f"buffer_load_dword v4, v{vPB}, {srd(WS)}, s{sFBp} offen sc1"
def pollC_load(): return f"buffer_load_dword v5, v{vPC}, {srd(WS)}, s{sFCp} offen sc1"
sFBq = sFBp
def spollB_load():
    return one(f"s_load_dwordx4 s[8:11], s[{WS}:{WS+1}], s{sFBp} glc\ns_load_dwordx4 s[88:91], s[{WS}:{WS+1}], s{sFBp} offset:16 glc")
def spollB_check(S):
    k = nrare[0]; nrare[0] += 1
    g = Stream()
    n2 = f"s[{sN2}:{sN2+1}]"
    if OPT['hto']: g("s_cmp_lg_u64 s[8:9], 0")
    else:
        g(f"s_mov_b32 s91, s90\ns_xor_b64 s[8:9], s[8:9], {n2}")
        for r in (10, 88, 90): g(f"s_xor_b64 s[{r}:{r+1}], s[{r}:{r+1}], {n2}\ns_or_b64 s[8:9], s[8:9], s[{r}:{r+1}]")
    g(f"s_cbranch_scc1 L_rare{k}\nL_back{k}:")
    S.atomic(g)
    rare(f"L_rare{k}:\ns_mov_b32 s{sCnt}, 0")
    if OPT['prof']: rare(f"v_writelane_b32 v{vPROF}, 1, {52+k}")
    if OPT['srare']:
        rare(f"L_rl{k}:"); rare.extend(spollB_load()); rare("s_waitcnt lgkmcnt(0)")
        rare(f"s_mov_b32 s91, s90\ns_xor_b64 s[8:9], s[8:9], {n2}")
        for r in (10, 88, 90): rare(f"s_xor_b64 s[{r}:{r+1}], s[{r}:{r+1}], {n2}\ns_or_b64 s[8:9], s[8:9], s[{r}:{r+1}]")
        rare(f"s_cbranch_scc0 L_back{k}\ns_sleep 1\ns_add_u32 s{sCnt}, s{sCnt}, 1\ns_cmp_lt_u32 s{sCnt}, 0x4000\ns_cbranch_scc1 L_rl{k}\ns_branch L_back{k}")
        return
    rare(f"L_rl{k}:\ns_sleep 1\nbuffer_load_dword v4, v{vPB}, {srd(WS)}, s{sFBq} offen sc1\ns_waitcnt vmcnt(0)\nv_cmp_ne_u32 vcc, s{sN}, v4")
    rare(f"s_nop 1\ns_cbranch_vccz L_back{k}\ns_add_u32 s{sCnt}, s{sCnt}, 1\ns_cmp_lt_u32 s{sCnt}, 0x4000\ns_cbranch_scc1 L_rl{k}\ns_branch L_back{k}")
def htouch_pro():
    S = Stream(); a, b = 6, 7
    g = Stream(); g(f"v_cmp_lt_u32 vcc, 27, v{vL}\nv_lshlrev_b32 v{a}, 10, v{vL}\nv_mov_b32 v{b}, {112*1024 - 28*1024}\nv_cndmask_b32 v{b}, 0, v{b}, vcc\nv_add_u32 v{a}, v{a}, v{b}"); S.atomic(g)
    g = Stream(); g(f"v_cmp_lt_u32 vcc, 55, v{vL}\nv_mov_b32 v{b}, {OOB}\ns_min_u32 s93, s{sHL}, s{sHLo}\nv_cndmask_b32 v{a}, v{a}, v{b}, vcc"); S.atomic(g)
    S(f"s_lshl_b32 s{sT1}, s{sRot}, 12\ns_sub_u32 s93, s93, s{sT1}\ns_lshl_b32 s{sT1}, s{sCB2}, 7\ns_add_u32 s93, s93, s{sT1}")
    return S
def htouch_go():
    S = Stream(); g = Stream(); n2 = f"s[{sN2}:{sN2+1}]"
    g(f"s_mov_b32 s91, s90\ns_xor_b64 s[8:9], s[8:9], {n2}")
    for r in (10, 88, 90): g(f"s_xor_b64 s[{r}:{r+1}], s[{r}:{r+1}], {n2}\ns_or_b64 s[8:9], s[8:9], s[{r}:{r+1}]")
    g(f"s_cselect_b32 s{WSO+2}, 0, {WS_SIZE}\nbuffer_load_dword a236, v6, {srd(WSO)}, s93 offen sc1")
    S.atomic(g)
    return S
def hload(n):
    D = OPT['hring']; p, k = divmod(n, 28); so = sHL if p == 0 else sHLo
    T = Stream(); g = Stream()
    g(f"buffer_load_dwordx4 v[{HR+4*(n%D)}:{HR+4*(n%D)+3}], v{vL16}, {srd(WS)}, s{so} offen" + (f" offset:{(k&3)*1024}" if k & 3 else "") + " sc1")
    if k & 3 == 3 and k < 27: g(f"s_cmp_eq_u32 s{sRot}, {6-(k>>2)}\ns_cselect_b32 s{sCnt}, s{sNeg}, 4096\ns_add_u32 s{so}, s{so}, s{sCnt}")
    T.atomic(g)
    return T
def gemm2():
    S = Stream(); D = OPT['hring']; NT = OPT['ntail']
    S.mark("g2s")
    def mf(n, u):
        p, k = divmod(n, 28); h = HR + 4*(n % D)
        acc = ACC + 32*(1-p) + 16*u; a = (2*k + u) * 4
        S(f"v_mfma_f32_32x32x16_bf16 {vr(acc,16)}, {ar(a,4)}, v[{h}:{h+3}], {'0' if k == 0 else vr(acc, 16)}")
    for n in range(56 - NT):
        for u in range(2):
            mf(n, u); used = 0
            if u == 1 and n + D < 56:
                T = flatten(hload(n + D)); S.extend(T); used = len(T)
            S.fill(5 - used)
        S.mark(f"g2_{n}")
        if (OPT['prof'] > 1 or OPT['x_meas']) and n in (0, 13, 27, 34, 41, 46, 51): stamp(S, f"g2_{n}")
    for n in range(56 - NT, 56): mf(n, 1); S.fill(5)
    S.mark("g2t")
    F = ACC + 16; Ee = ACC + 32
    tail = [f"ds_write_b128 v{vRW}, v[{F+4*j}:{F+4*j+3}] offset:{32768+1024*j}" for j in range(4)]
    for i, n in enumerate(range(56 - NT, 56)):
        mf(n, 0)
        if i == min(1, NT - 1):
            for t in tail: S(t)
        else: S.fill(5)
    S.mark("g2u")
    S.waitlg(); S("s_barrier")
    for j in range(4): S(f"ds_read_b128 v[{F+4*j}:{F+4*j+3}], v{vRR+2} offset:{32768+1024*j}")
    return S

def red_early_w():
    S = Stream()
    for u in range(2):
        for j in range(4): S(f"ds_write_b128 v{vRW}, v[{ACC+32+16*u+4*j}:{ACC+35+16*u+4*j}] offset:{4096*u+1024*j}")
    g = Stream(); g.waitlg(); g("s_barrier"); S.atomic(g)
    return S
def red_early_r():
    S = Stream(); A = ACC + 32; B = ACC + 48
    for j in range(4): S(f"ds_read_b128 v[{A+4*j}:{A+4*j+3}], v{vRR} offset:{1024*j}")
    for j in range(4): S(f"ds_read_b128 v[{B+4*j}:{B+4*j+3}], v{vRR+1} offset:{4096+1024*j}")
    for r in range(16): S(f"v_add_f32 v{A+r}, v{A+r}, v{B+r}")
    return S

FS = 8
def prep_x():
    S = Stream()
    g = Stream()
    g(f"s_add_u32 m0, s{sM0b}, {E}\ns_add_u32 s{sT0}, s{sXO}, 15360\nbuffer_load_dwordx4 v{vXD}, {srd(QF)}, s{sXO} offen lds")
    g(f"buffer_load_dwordx4 v{vXD}, {srd(QF)}, s{sT0} offen offset:1024 lds", "xd")
    S.atomic(g)
    S(f"buffer_load_dwordx2 v[{FS}:{FS+1}], v{vSTV}, {srd(WS)}, s{sStatF} offen sc1")
    return S
def prep_x2():
    S = Stream(); XR = 16
    check_poll(S, [f"buffer_load_dwordx2 v[{FS}:{FS+1}], v{vSTV}, {srd(WS)}, s{sStatF} offen sc1"], [FS+1])
    S(f"v_and_b32 v{FS+1}, 0xffff0000, v{FS}\nv_rcp_f32 v{FS+1}, v{FS+1}\nv_lshlrev_b32 v{FS}, 16, v{FS}\nv_mul_f32 v{FS+2}, v{FS+1}, v{FS+1}\nv_mul_f32 v{FS+1}, {NLOG2E:#x}, v{FS+1}")
    S.waitvm("xd")
    for j in range(4):
        if j: S(f"v_xor_b32 v{FS+3}, {16*j}, v{vXA}")
        S(f"ds_read_b64 v[{XR+2*j}:{XR+2*j+1}], v{FS+3 if j else vXA}")
    for q in range(8):
        S(f"v_lshlrev_b32 v{XF+2*q}, 16, v{XR+q}\nv_and_b32 v{XF+2*q+1}, 0xffff0000, v{XR+q}")
    for r in range(16): S(f"v_sub_f32 v{SF+r}, v{XF+r}, v{FS}")
    for r in range(16): S(f"v_mul_f32 v{SF+r}, v{SF+r}, v{FS+2}")
    return S
YSR = 192
def prep_y(note=True):
    S = Stream(); YS = YSR
    if note: note_poll(S, 5, sResC)
    S(f"s_add_u32 s{sT0}, s{sYl}, 65536")
    S(f"buffer_load_dwordx4 v[{YS}:{YS+3}], v{vYL}, {srd(WSO)}, s{sYl} offen sc1\nbuffer_load_dwordx4 v[{YS+4}:{YS+7}], v{vYL}, {srd(WSO)}, s{sT0} offen sc1")
    return S
YR = 16
def prep_y2():
    S = Stream(); YS = YSR
    S(f"ds_write_b128 v{vYW}, v[{YS}:{YS+3}]\nds_write_b128 v{vYW}, v[{YS+4}:{YS+7}] offset:1024")
    for j in range(4): S(f"ds_read_b64_tr_b16 v[{YR+2*j}:{YR+2*j+1}], v{vYA} offset:{512*j}")
    return S

S2 = 200
def prep_y3():
    S = prep_y2(); t = 216
    for q in range(8):
        S(f"v_lshlrev_b32 v{t+(q&1)*2}, 16, v{YR+q}\nv_and_b32 v{t+(q&1)*2+1}, 0xffff0000, v{YR+q}")
        S(f"v_mul_f32 v{S2+2*q}, v{SF+2*q}, v{t+(q&1)*2}\nv_mul_f32 v{S2+2*q+1}, v{SF+2*q+1}, v{t+(q&1)*2+1}")
    return S
def final():
    S = Stream(); A = ACC; F = ACC + 16; Ee = ACC + 32; W = HR; P = HR + 16; Yf = HR + 32
    stamp(S, "g2end")
    pr = lambda b, p: f"v[{b+2*p}:{b+2*p+1}]"
    mr = f"v[{FS}:{FS+1}]"
    for p in range(8): S(f"v_pk_add_f32 {pr(A,p)}, {pr(A,p)}, {pr(Ee,p)}")
    if OPT['ypre']:
        repair(S, sResC, Stream(), pollC_load(), 5, cat(prep_y(False), prep_y3()))
        S(f"s_add_u32 s{sT0}, s{sXO}, 16384")
        for h in range(2):
            ps = range(4*h, 4*h + 4)
            for p in ps: S(f"v_pk_add_f32 {pr(A,p)}, {pr(A,p)}, {pr(F,p)}")
            for p in ps: S(f"v_pk_mul_f32 {pr(W,p)}, {pr(A,p)}, {mr} op_sel:[0,1] op_sel_hi:[1,1]")
            for p in ps: S(f"v_exp_f32_e64 v{W+2*p}, v{W+2*p}\nv_exp_f32_e64 v{W+2*p+1}, v{W+2*p+1}")
            for p in ps: S(f"v_pk_mul_f32 {pr(A,p)}, {pr(A,p)}, {pr(S2,p)}")
            for p in ps: S(f"v_pk_add_f32 {pr(W,p)}, {pr(W,p)}, 1.0 op_sel_hi:[1,0]")
            for p in ps: S(f"v_rcp_f32_e64 v{W+2*p}, v{W+2*p}\nv_rcp_f32_e64 v{W+2*p+1}, v{W+2*p+1}")
            for p in ps: S(f"v_pk_fma_f32 {pr(W,p)}, {pr(A,p)}, {pr(W,p)}, {pr(XF,p)}")
            for p in ps: S(f"v_cvt_pk_bf16_f32 v{P+p}, v{W+2*p}, v{W+2*p+1}")
            for j in (2*h, 2*h+1): S(f"ds_write_b64 v{vOW}, v[{P+2*j}:{P+2*j+1}] offset:{16*j}")
    else:
        for p in range(8): S(f"v_pk_add_f32 {pr(A,p)}, {pr(A,p)}, {pr(F,p)}")
        for p in range(8): S(f"v_pk_mul_f32 {pr(W,p)}, {pr(A,p)}, {mr} op_sel:[0,1] op_sel_hi:[1,1]")
        for p in range(16): S(f"v_exp_f32_e64 v{W+p}, v{W+p}")
        S.extend(prep_y2())
        for p in range(8): S(f"v_pk_add_f32 {pr(W,p)}, {pr(W,p)}, 1.0 op_sel_hi:[1,0]")
        for p in range(16): S(f"v_rcp_f32_e64 v{W+p}, v{W+p}")
        for p in range(8): S(f"v_pk_mul_f32 {pr(A,p)}, {pr(A,p)}, {pr(SF,p)}")
        for p in range(8): S(f"v_pk_mul_f32 {pr(A,p)}, {pr(A,p)}, {pr(W,p)}")
        repair(S, sResC, Stream(), pollC_load(), 5, cat(prep_y(False), prep_y2()))
        for j in range(4):
            for q in (2*j, 2*j+1): S(f"v_lshlrev_b32 v{Yf+2*q}, 16, v{YR+q}\nv_and_b32 v{Yf+2*q+1}, 0xffff0000, v{YR+q}")
            for p in (2*j, 2*j+1): S(f"v_pk_fma_f32 {pr(W,p)}, {pr(A,p)}, {pr(Yf,p)}, {pr(XF,p)}")
            for p in (2*j, 2*j+1): S(f"v_cvt_pk_bf16_f32 v{P+p}, v{W+2*p}, v{W+2*p+1}")
            S(f"ds_write_b64 v{vOW}, v[{P+2*j}:{P+2*j+1}] offset:{16*j}")
        S(f"s_add_u32 s{sT0}, s{sXO}, 16384")
    S(f"ds_read_b128 v[{W}:{W+3}], v{vOR}\nds_read_b128 v[{W+4}:{W+7}], v{vOR} offset:1280")
    S(f"buffer_store_dwordx4 v[{W}:{W+3}], v{vOS}, {srd(OUT)}, s{sXO} offen\nbuffer_store_dwordx4 v[{W+4}:{W+7}], v{vOS}, {srd(OUT)}, s{sT0} offen")
    if OPT['prof']:
        stamp(S, "outst"); S("s_waitcnt vmcnt(0)"); stamp(S, "end")
        S(f"s_lshl_b32 s{sT0}, s2, 2\ns_add_u32 s{sT0}, s{sT0}, s{sW}\ns_lshl_b32 s{sT0}, s{sT0}, 8\ns_add_u32 s{sT0}, s{sT0}, {PROF}\nv_lshlrev_b32 v{vT}, 2, v{vL}")
        S(f"buffer_store_dword v{vPROF}, v{vT}, {srd(WS)}, s{sT0} offen")
    return S

def stS(name):
    s = Stream(); stamp(s, name); return s
def cat(*ss):
    o = Stream()
    for s in ss: o.extend(s)
    return o
def one(t, tag=None):
    s = Stream(); s(t, tag); return s

def spread(S, items, every):
    o = Stream(); items = list(items); n = 0
    for x in S:
        o.append(x); n += 1
        if items and n % every == 0:
            while items and items[0].cls == 'pseudo' and items[0].op != 'GROUP': o.append(items.pop(0))
            if items: o.append(items.pop(0))
    o.extend(items)
    return o

def build():
    assert not (OPT['cshare'] and OPT['map47'])
    P = Stream()
    P.extend(entry())
    c1 = chunk_dma(1); c2 = chunk_dma(2); kp = OPT['kvpos']; g1f = []
    st = stats()
    pre = cat(one(pollA_load().replace("v228,", "a233,")), one(pollB_load().replace("v4,", "a234,")), one(pollC_load().replace("v5,", "a235,"))) if OPT['pretouch'] else Stream()
    br = one(f"s_cmp_ge_u32 s{sCB1}, 14\ns_cbranch_scc1 L_spare1")
    if kp >= 2:
        P.extend(spread(cat(*[coff(i) for i in range(2, 8)], setup(), kv_pro()), c1[:OPT['c1n']], 20))
        stamp(P, "setup")
        P.extend(st[:16]); P.extend(spread(Stream(st[16:]), cat(c1[OPT['c1n']:], c2[:OPT['c2n']]), 7)); P.extend(br)
        seq = cat(c2[OPT['c2n']:], kv_dma(), dh_loads(), chunk_dma(3), Stream([Pseudo('GATE', 'c0b')]), chunk_dma(4), Stream([Pseudo('GATE', 'c1b')]), chunk_dma(5) if OPT['c5e'] else Stream())
        isl = lambda it: any(y.cls in ('dma', 'vmem_ld') for y in (it.arg if (it.cls == 'pseudo' and it.op == 'GROUP') else [it]))
        li = [i for i, it in enumerate(seq) if isl(it)]
        a0 = li[OPT['r0']]; a1 = li[OPT['r1'] - (3 if OPT['tiny'] else 0)]
        ng = lambda st: Stream([x for x in st if not (x.cls == 'pseudo' and x.op == 'GATE')])
        assert not any(x.op == 'GATE' for x in seq[:a0]) and not any(x.op == 'GATE' and x.arg == 'c1b' for x in seq[:a1])
        g1f.append(("c0a", "c0m", Stream(seq[:a0]), (OPT['p0'],)))
        g1f.append(("c0b", "c1m", ng(seq[a0:a1]), (OPT['p1'],)))
        g1f.append(("c1b", "c2m", ng(seq[a1:]), (OPT['p2'],)))
        g1f.append(("c1b", "c2m", cat(setup_b(), kv_addr())))
    else:
        kd = kv_dma(); n0 = OPT['kvn']
        P.extend(kv_pro())
        early = Stream(kd[:n0]) if kp == 0 else Stream(c1[:OPT['c1n']])
        P.extend(spread(cat(*[coff(i) for i in range(2, 8)], setup(), kv_addr()), early, 20))
        stamp(P, "setup")
        late = cat(kd[n0:], dh_loads(), c1) if kp == 0 else cat(c1[OPT['c1n']:], kd, dh_loads())
        P.extend(st[:16]); P.extend(spread(Stream(st[16:]), late, 6)); P.extend(br)
        g1f.append(("c0a", "c0m", setup_b()))
        if kp == 0:
            g1f.append(("c0a", "c0m", c2, (OPT['p0'],)))
            g1f.append(("c0b", "c1m", chunk_dma(3), (OPT['p1'],)))
            g1f.append(("c1b", "c2m", chunk_dma(4), (OPT['p2'],)))
        else:
            g1f.append(("c0a", "c0m", Stream(c2[:4]), (OPT['p0'],)))
            g1f.append(("c0b", "c1m", cat(c2[4:], chunk_dma(3)), (OPT['p1'],)))
            g1f.append(("c1b", "c2m", chunk_dma(4), (OPT['p2'],)))
    D = Stream()
    for c in range(6 if OPT['c5e'] else 5, 8):
        D.gate(f"c{c-4}b"); D.extend(chunk_dma(c))
    D.gate(OPT['stat_at']); D.pace(OPT['tpp']); D.extend(cat(*[one(t) for t in stat_loads(1) + (cs_loads() if OPT['cshare'] and OPT['cspub'] == 1 else [])], pre, htouch(), w2touch(range(OPT['tp'], 7)) if OPT['tp'] >= 0 else Stream())); D.pace(OPT['w2pace'])
    W2S = cat(Stream([Pseudo('GATE', 'c3b' if (OPT['kvfill'] or OPT['kvaft']) else f'c{kp}b')]), hcopy_dma(), Stream([Pseudo('GATE', 'c4b')]), w2_dma(0), Stream([Pseudo('GATE', 'c5b')]), Stream([Pseudo('CSL')]), w2_dma(1), Stream([Pseudo('GATE', 'c6b')]), w2_dma(2), w2_dma(3), cat(Stream([Pseudo('WAITLG', 'tr0')]), w2_dma(4)) if OPT['n2'] > 36 else Stream())
    isld = lambda it: it.cls == 'pseudo' and it.op == 'GROUP' and any(y.cls in ('dma', 'vmem_ld') for y in it.arg)
    idx = [i for i, it in enumerate(W2S) if isld(it)]
    cut1 = idx[OPT['n1']] if OPT['n1'] < len(idx) else len(W2S); cut2 = idx[OPT['n2']] if OPT['n2'] < len(idx) else len(W2S)
    for it in W2S[:cut1]:
        if it.cls == 'pseudo' and it.op == 'CSL':
            if OPT['cshare'] and OPT['cspub'] > 1:
                D.pace(1); D.extend(cat(*[one(t) for t in cs_loads()])); D.pace(OPT['w2pace'])
        else: D.append(it)
    g1f.append((OPT['dstart'], "c7m", D, (OPT['dp'],)))
    na, nb = (("c0a", "c0m"), ("c0b", "c1a")) if OPT['nonce_at'] == 0 else (("c0b", "c1a"), ("c1b", "c2a"))
    g1f.append((*na, nonce_get(), 1))
    g1f.append((*nb, cat(nonce_use(), stats_store()), 1))
    g1f.append(("c1a", "c1m", flag_init(), 1))
    if OPT['cshare']:
        if OPT['cspub'] == 1: g1f.append(("c1a", "c1m", cs_publish()))
        if OPT['cspub'] == 3: g1f.append(("c2b", "c3a", cs_publish()))
        g1f.append((OPT['csg'], "c7m", cs_gather()))
    ke = kp
    if OPT['kvaft']: g1f.append((f"c{kp}b", "kvr", Stream(kvpre()[:10]), 1))
    if OPT['kvfill']:
        ke = OPT['kvend']; g1f.append(("c2b", f"c{ke}m", kvpre_np()))
    pts = [(f"c{c}{x}", f"c{c}{y}") for c in range(ke + 1, 8) for x, y in (("a", "m"), ("b", "e"))][OPT['ft0']:OPT['ft0'] + 4]
    lastA = len(pts) == 4
    for i, (a, b) in enumerate(pts): g1f.append((a, b, flag_try(sFAo, "kv1", lastA and i == 3), 1))
    g1f.append(((f"c{ke}b", "c7a") if OPT['kvfill'] else ("c3a", "c5a")) + (setup_c(),) if not OPT['x_late'] else ("c7b", "c7e", setup_c())); g1f.append(("c6a", "c7m", hoffs()[:1] if OPT['packa'] else hoffs()))
    g1f.append(("c7a", "c7m", stats_consume()))
    if OPT['hcreg']: g1f.append((OPT['hcw'], "c7m", hcopy_wr()))
    if OPT['hto']: g1f.append(("c5b", "c6m", htouch_pro()))
    if OPT['trg1'] >= 1: g1f.append((OPT['tr0at'], "c7e", w2_tr(0)))
    g1f.append((f"c{max(4, ke)}b", f"c{max(4, ke)+1}m", hpad()))
    g1f.append(("c7b", "c7e", cat(cs_reads(), spollA_load() if OPT['packa'] else one(pollA_load())) if OPT['pat'] < 0 else cs_reads(), 1))
    P.extend(merge(gemm1(), g1f))
    stamp(P, "g1end")
    ins = {OPT['uat']: u_loads()}
    if OPT['pat'] >= 0: ins[OPT['pat']] = spollA_load() if OPT['packa'] else one(pollA_load())
    if not lastA: P.extend(flag_try(sFAo, "kv1", True))
    if OPT['packa']: ins[OPT['uat']].extend(hoffs2())

    nog = lambda st: Stream([x for x in st if not (x.cls == 'pseudo' and x.op in ('GATE', 'CSL'))])
    P.extend(spread(epi1(ins), nog(W2S[cut1:cut2]), OPT['esp']))
    stamp(P, "epi1")
    P("L_join:")
    W = lambda t: Stream([Pseudo('WAITLG', t)])
    G = lambda m: Stream([Pseudo('GATE', m)])
    fb = OPT['flagB_at']; t0, t1, t2, t3 = OPT['t0'], OPT['t1'], OPT['t2'], OPT['t3']; fs = OPT['fbs']; fn = OPT['fbn']
    cf = [(f"cv{fb+fs*i}", f"cv{fb+fs*i+6}", flag_try(sFBo, "hst", i == fn - 1), 1) for i in range(fn)]
    cf += [("cva", "cve", cat(G(f"cv{OPT['d3']}"), nog(W2S[cut2:]), G(f"cv{OPT['d4']}"), cat(W('tr0'), w2_dma(4)) if (OPT['n2'] <= 36 and OPT['g2w'] > 4) else Stream(), cat(W('tr1'), w2_dma(5)) if OPT['g2w'] > 5 else Stream(), cat(W('tr2'), w2_dma(6)) if OPT['g2w'] > 6 else Stream()), (OPT['cvpace'],)),
          (f"cv{OPT['pb']}", "cve", spollB_load() if OPT['packb'] else one(pollB_load()), 1)]
    if OPT['hto']: cf.append((f"cv{OPT['hto']}", "cve", htouch_go(), 1))
    if OPT['trg1'] < 1: cf.append((f"cv{t0}", f"cv{t1}", w2_tr(0)))
    if OPT['trg1'] < 2: cf.append((f"cv{t1}", f"cv{t2}", w2_tr(1)))
    cf += [(f"cv{t2}", f"cv{t3}", w2_tr(2)), (f"cv{OPT['t4']}", "cv140", w2_tr(3)), ("cv130", "cve", conv_du())]
    if OPT['trg1'] == 2: P.extend(w2_tr(1))
    HL = cat(*[hload(n) for n in range(OPT['hring'])])
    chk = Stream()
    if OPT['packb']: spollB_check(chk)
    else: check_poll(chk, [pollB_load()], [4])
    stamp(chk, "hflag")
    hc = OPT['hcv']
    if hc: cf.insert(0, (f"cv{OPT['hcat']}", "cve", cat(chk, HL[:hc]), (OPT['hcp'],)))
    post = Stream()
    if OPT['x_cv']:
        keep = []
        for f in cf:
            txt = " ".join(x.text for x in flatten(f[2]) if x.cls != 'pseudo')
            kind = 1 if " lds" in txt else 2 if "tr_b16" in txt else 4 if "s_getreg" in txt or "s_cmp_eq_u32 s87" in txt else 8
            if OPT['x_cv'] & kind: post.append((kind, f[2]))
            else: keep.append(f)
        cf = keep
    P.extend(merge(conv(), cf))
    for kind in (4, 2, 1, 8):
        for k2, st2 in post:
            if k2 == kind and not (kind == 2 and any(x.tag == 'tr3' for x in st2)): P.extend(nog(st2))
    for k2, st2 in post:
        if k2 == 2 and any(x.tag == 'tr3' for x in st2): P.extend(nog(st2))
    P.extend(W('tr3'))
    if OPT['hearly']:
        P.extend(Stream() if hc else chk)
        ce = conv_epi(Stream()); ia = [i for i, x in enumerate(ce) if x.op == 's_cmp_eq_u32'][0]; ib = [i for i, x in enumerate(ce) if x.text.startswith('L_oddback')][0]
        h1 = max(hc, OPT['he1'])
        P.extend(spread(Stream(ce[:ia]), HL[hc:h1], 3)); P.extend(ce[ia:ib+1]); P.extend(spread(Stream(ce[ib+1:]), HL[h1:OPT['hearly']], OPT['hesp']))
        stamp(P, "conv2"); P.extend(HL[OPT['hearly']:])
    else:
        P.extend(conv_epi(prep_x())); stamp(P, "conv2")
        P.extend(chk)
        if OPT['pre2']:
            work = cat(w2_tr(4) if OPT['pre2'] > 1 else Stream(), prep_x2())
            P.extend(HL[:OPT['hl1']]); P.extend(spread(work, HL[OPT['hl1']:OPT['hl0']], OPT['psp']))
        else:
            P.extend(HL[:OPT['hl0']])
            if OPT['trmid']: P.extend(cat(w2_tr(4), w2_tr(5), w2_tr(6)))
            if OPT['xmid']: P.extend(prep_x2())
            P.extend(HL[OPT['hl0']:]); P.extend(flag_store(sFCo, WS, "yst"))
    global SPARE_W2
    SPARE_W2 = nog(W2S[:cut2])
    if OPT['trg1'] >= 1:
        iw = [i for i, x in enumerate(SPARE_W2) if x.cls == 'pseudo' and x.op == 'WAITLG']
        iw = iw[0] if iw else len(SPARE_W2)
        SPARE_W2 = cat(SPARE_W2[:iw], w2_tr(0), SPARE_W2[iw:])
    D = OPT['ylag']
    gf = [(f"g2_{x}", f"g2_{x+1}", flag_try(sFCo, "yst", x == 12), 1) for x in (2, 5, 8, 12)] if OPT['hearly'] else []
    if OPT['hearly']:
        px = Stream(); px.atomic(prep_x()); gf.append(("g2_0", "g2_2", px, 1)); gf.append(("g2s", "g2_14", cat(w2_tr(4), w2_tr(5), w2_tr(6))))
    gw = OPT['g2w']
    if OPT['hearly']: pass
    elif OPT['pre2']:
        gf.append(("g2s", "g2_8", Stream(HL[OPT['hl0']:]), (2,)))
        gf += [(f"g2_{x}", f"g2_{x+1}", flag_try(sFCo, "yst", x == 2), 1) for x in (2,)]
        gf.append(("g2_1", "g2_14", cat(*[w2_tr(b) for b in range(4 + (OPT['pre2'] > 1), 7)])))
    elif OPT['trmid'] and not OPT['hearly']: pass
    elif OPT['trpre']: P.extend(cat(*[w2_tr(b) for b in range(4, gw)]))
    else: gf.append(("g2s", "g2_14", cat(*[w2_tr(b) for b in range(4, gw)])))
    if gw < 7:
        gf.append((f"g2_{OPT['gw0']}", "g2_20", cat(*[w2_dma(b) for b in range(gw, 7)]), (OPT['gwp'],)))
        for b in range(gw, 7): gf.append((f"g2_{4*b-5}", f"g2_{4*b-1}", w2_tr(b)))
    gf += [
          ("g2_14", "g2_27", Stream() if (OPT['xmid'] and not OPT['hearly']) else prep_x2()),
          ("g2_28", f"g2_{OPT['rw1']}", Stream(red_early_w()[:8])), (f"g2_{OPT['rw1']+OPT['rwl']}", f"g2_{OPT['rw1']+OPT['rwl']+1}", Stream(red_early_w()[8:]), 1),
          (f"g2_{OPT['rw1']+OPT['rwl']+1}", "g2_49", red_early_r()),
          (f"g2_{OPT['yat']}", f"g2_{OPT['yat']+1}", one(pollC_load())),
          (f"g2_{OPT['yat']+D}", "g2t", prep_y(), 1)]
    if OPT['ypre']: gf.append((f"g2_{OPT['ypre']}", "g2u", prep_y3()))
    P.extend(merge(gemm2(), gf))
    P.extend(final())
    if OPT['x_meas']:
        P(f"s_cmp_ge_u32 s{sCB1}, 14\ns_cbranch_scc1 L_end")
        if OPT['x_wg'] >= 0: P(f"s_and_b32 s64, s2, {OPT['x_wgm']}\ns_cmp_lg_u32 s64, {OPT['x_wg']}\ns_cbranch_scc1 L_end")
        P(f"v_readlane_b32 s66, v{vPROF}, 0\nL_pad:\ns_memrealtime s[64:65]\ns_waitcnt lgkmcnt(0)\ns_sub_u32 s64, s64, s66\ns_cmp_lt_u32 s64, 2000\ns_cbranch_scc1 L_pad")
    if OPT['x_pad']:
        P(f"L_pad:\ns_memrealtime s[64:65]\ns_waitcnt lgkmcnt(0)\ns_sub_u32 s64, s64, s{sN}\ns_cmp_lt_u32 s64, {OPT['x_pad']}\ns_cbranch_scc1 L_pad")
    P("L_end:\ns_endpgm")
    P = flatten(P)
    kv_last = max(i for i, x in enumerate(P) if x.tag == 'kvd')
    sb_first = min(i for i, x in enumerate(P) if x.cls == 'salu' and f"s{sFBo}" in x.wr and 'mov' not in x.op)
    assert kv_last < sb_first, "k/v SRDs overwritten before use"
    last = None
    for x in P:
        if x.cls == 'salu' and 'm0' in x.wr: last = x.text
        if x.cls == 'dma' and x.arg is not None: assert x.arg == last, ("m0 changed under a DMA group", x.text, last)
        if x.cls == 'label' and x.text.startswith('L_join'): last = None
    c7_last = max(i for i, x in enumerate(P) if x.tag == 'c7')
    ho_first = min(i for i, x in enumerate(P) if x.text.startswith(f"s_mov_b64 s[{WSO}:{WSO+1}], s[{WS}"))
    assert c7_last < ho_first, "GEMM1 SRDs / offsets overwritten before the last chunk load"
    P = autowait(P); P = hazards(P)
    P.extend(hazards(autowait(flatten(spare1()))))
    R = hazards(flatten(rare))
    P.extend(R); P("L_codeend:")
    P = align8(P)
    return P

HEAD = open("cdna_kernels/" + NAME + ".s.ref").read().split("; Override launch")[0]
DOC = """; One persistent launch, 256 workgroups (one per CU), 4 waves each. Per workgroup, in order:
;   2. GEMM1 128x128 tile on raw x (LayerNorm folded into the epilogue via the column sums of w1), SiLU, h in MFMA fragment order
"""
def emit():
    P = build()
    size = sum(x.size for x in P)
    o = HEAD + f"; @launch grid=(256,1,1) block=(256,1,1) lds={LDS_BYTES}\n"
    o += DOC
    o += f'.amdgcn_target "amdgcn-amd-amdhsa--gfx950"\n.text\n.globl {NAME}_kernel\n.p2align 8\n.type {NAME}_kernel,@function\n{NAME}_kernel:\n'
    o += "\n".join(l for l in text(P).split("\n") if not l.strip().startswith("; MARK"))
    o += f""".section .rodata,"a"
.p2align 6
.amdhsa_kernel {NAME}_kernel
  .amdhsa_next_free_vgpr 512
  .amdhsa_next_free_sgpr 102
  .amdhsa_accum_offset 256
  .amdhsa_group_segment_fixed_size 0
  .amdhsa_kernarg_size 96
  .amdhsa_user_sgpr_count 2
  .amdhsa_user_sgpr_kernarg_segment_ptr 1
  .amdhsa_system_sgpr_workgroup_id_x 1
.end_amdhsa_kernel
"""
    return o, size

if __name__ == "__main__":
    o, size = emit()
    open(sys.argv[1], "w").write(o)
    print("code bytes (estimate):", size, "stamps:", stamp_names)
    open(sys.argv[1] + ".stamps", "w").write(",".join(stamp_names))
```

```python
import sys, struct
from ir import *

NAME = "recurrent_scan__ssm_conv_h3__dense_activation_silu__prompt"
OPT = dict(ew=0, cp0=4, cph=0, defer=0, cpl=1, tl=0, oddin=1, ssp=7, kvd=5, kvs=8, px=0, pg=2, ofl=0, x_jit=0, hesp=3, srare=1, ypre=0, rw1=38, rwl=1, packc=1, hto=0, pre2=1, hl1=1, psp=5, hcreg=1, hcw='c6b', kvaft=1, spb=0, t4=100, kvfill=0, fine=0, tiny=2, x_kvnull=0, x_w1null=0, hl0=12, trmid=1, xmid=1, x_meas=0, x_wg=-1, x_wgm=255, pk=0, g2w=7, gw0=0, gwp=2, x_pad=0, tr0at='c7a', hcv=0, hcat=108, hcp=4, msw=0, cspub=2, csg='c7a', cshare=0, ownw2=0, stch=0, st0=6, r0=4, r1=20, c4e=0, packa=1, hold=1, tpp=2, packb=1, he1=4, he2=10, x_cv=0, cvwait=1, fbs=25, fbn=3, trg1=0, trpre=1, tp=-1, pb=125, d3=0, c5e=0, stat_at='c4a', x_notry=0, x_late=0, dp=2, dstart='c2b', kvn=1, ft0=2, c3b=0, c3a=7, sw3=7, swn=1, swflag=0, c3pf=1, hcnt=1, qnt=0, hearly=0, ntail=4, dbgout=0, rotk=2, rotx=1, htouch=0, x_w2null=0, x_hcnull=0, x_hplain=0, n1=16, n2=28, d4=40, fa=6, pat=0, cvpace=4, t0=8, t1=24, t2=40, t3=56, pretouch=0, c2n=4, p0=2, p1=2, p2=2, b1n=5, b2n=5, esp=8, yat=40, ylag=8, ylate=1, map47=0, tlb=0, nonce_at=0, slowat=4, nt=1, c1n=0, kvpos=2, w2pace=5, sweep=0, uat=3, x_nokv=0, x_nocs=0, x_nodma=0, x_nobar=0, x_now2=0, onewait=1, kvend=4, cap=5, spare=1, prof=0, stats_fill=0, hring=12, flagB_at=45, codepf=1)
for a in sys.argv[2:]:
    k, v = a.split('='); OPT[k] = int(v) if v.lstrip('-').isdigit() else v

HWS = 0; KVR = 0x700000; YT = 0x900000; STATS = 0xB00000; FLA = 0xB10000; FLB = 0xB30000; FLC = 0xB50000; CSP = 0xB70000
PROF = 0xB80000; WS_SIZE = 0xC00000
E = 131072; KT = E; VT = E + 9360; HC = E; UR = E + 17680; CS = E + 26896; DUMP = CS + 512
LDS_BYTES = 163840
OOB = 0x80000000
f2u = lambda f: struct.unpack('<I', struct.pack('<f', f))[0]
NLOG2E = f2u(-1.4426950408889634)

sX, sJ, sW, sT0, sT1 = 3, 4, 5, 6, 7
Q1, QF, SKK, SVV, W1, W2, SSK, WS, WSH, OUT, DBG, SHK, KZ = 8, 12, 16, 20, 24, 28, 32, 36, 40, 44, 48, 52, 60
sL0 = 65; sL1 = 66; sL2 = 67
sDptr = 56; sN = 58; sDv = 59; sN2 = 56; sW2neg = 84
sCsW = 64; sCsR = 72; sCsN = 95
WSB = 8
sQoff = 64; sWoff = 72
sM0b = 80; sW2off = 81; sStatC = 82; sRot = 83; sStatW = 84; sFH = 85; sTH = 86; sH0 = 87
CODE = 88; sHst = 88
sM0q = 92; sM0w = 93; sP = 94; sCnt = 96; sC0 = sT0
sRB1, sCB1, sRB2, sCB2, sCH = 97, 98, 99, 100, 101
sKV0, sKV1, sFAo, sFAp, sU, sFBo, sFBp, sYs = 16, 17, 18, 19, 20, 21, 22, 23
sFCo, sFCp, sHL, sYl = 52, 53, 54, 55
sXO, sStatF, sHC, sHLo = 60, 61, 62, 63
def srd(b): return f"s[{b}:{b+3}]"

vL = 1; vL16 = 2; vL0 = 3
vQD = 4; vWD = 8; vBD = 12
vQA = 16; vWA = 24
vN = 28; vSTV = 29; vCSW = 30; vCSA = 31
vTA = 33; vCA = 37
vCB = 41; vCU = 42; vCD = 43; vCX = 44; vCXR = 45; vCY = 46
vPA = 47; vPB = 48; vPC = 49
vXD = 50; vYL = 51; vOS = 52
vXA = 53; vYW = 54; vYA = 55; vOW = 56; vOR = 57; vRW = 58; vRR = 59
vPROF = 62; vT = 63
vDV = 215; vH0 = 214
ACC = 64; FR = 128
CSACC = 244; SEL = 240; CSV = 176
STL = 208; MR = 216
def vr(b, n=1): return f"v{b}" if n == 1 else f"v[{b}:{b+n-1}]"
def ar(b, n): return f"a[{b}:{b+n-1}]"

rare = Stream(); nrare = [0]
def check_poll(S, reloads, tagregs):
    k = nrare[0]; nrare[0] += 1
    def cmp(T):
        if len(tagregs) == 1:
            T(f"v_cmp_ne_u32 vcc, s{sN}, v{tagregs[0]}")
        else:
            T(f"v_xor_b32 v{vT}, s{sN}, v{tagregs[0]}")
            for r in tagregs[1:]:
                T(f"v_xor_b32 v{r}, s{sN}, v{r}\nv_or_b32 v{vT}, v{vT}, v{r}")
            T(f"v_cmp_ne_u32 vcc, 0, v{vT}")
    g = Stream(); cmp(g); g(f"s_cbranch_vccnz L_rare{k}\nL_back{k}:")
    S.atomic(g)
    rare(f"L_rare{k}:\ns_mov_b32 s{sCnt}, 0")
    if OPT['prof']: rare(f"v_writelane_b32 v{vPROF}, 1, {52+k}")
    rare(f"L_rl{k}:\ns_sleep 1")
    for t in reloads: rare(t)
    rare("s_waitcnt vmcnt(0)")
    cmp(rare)
    rare(f"s_nop 1\ns_cbranch_vccz L_back{k}\ns_add_u32 s{sCnt}, s{sCnt}, 1\ns_cmp_lt_u32 s{sCnt}, 0x4000\ns_cbranch_scc1 L_rl{k}\ns_branch L_back{k}")

WSO = 24
def note_poll(S, tagreg, sres):
    g = Stream(); g(f"v_cmp_ne_u32 vcc, s{sN}, v{tagreg}\ns_or_b32 s{sres}, vcc_lo, vcc_hi\ns_cselect_b32 s{WSO+2}, 0, {WS_SIZE}"); S.atomic(g)
def repair(S, sres, first, reload, tagreg, redo):
    k = nrare[0]; nrare[0] += 1
    g = Stream(); g(f"s_cmp_lg_u32 s{sres}, 0\ns_cbranch_scc1 L_rare{k}\nL_back{k}:"); S.atomic(g)
    R = Stream()
    R(f"L_rare{k}:\ns_mov_b32 s{sCnt}, 0\ns_waitcnt vmcnt(0) lgkmcnt(0)")
    if OPT['prof']: R(f"v_writelane_b32 v{vPROF}, 1, {52+k}")
    R.extend(first)
    R(f"L_rl{k}:\n{reload}\ns_waitcnt vmcnt(0)\nv_cmp_ne_u32 vcc, s{sN}, v{tagreg}\ns_nop 1\ns_cbranch_vccz L_ok{k}\ns_sleep 1\ns_add_u32 s{sCnt}, s{sCnt}, 1\ns_cmp_lt_u32 s{sCnt}, 0x4000\ns_cbranch_scc1 L_rl{k}\nL_ok{k}:")
    R(f"s_mov_b32 s{WSO+2}, {WS_SIZE}")
    R.extend(autowait(flatten(redo)))
    R(f"s_waitcnt vmcnt(0) lgkmcnt(0)\ns_nop 4\ns_branch L_back{k}")
    rare.extend(R)

stamp_names = []
def stamp(S, name):
    if OPT['x_jit'] == name:
        g = Stream(); g(f"s_and_b32 s{sP}, s2, 15\ns_add_u32 s{sP}, s{sP}, s{sW}\ns_cmp_lg_u32 s{sP}, 5\ns_cbranch_scc1 L_jit\ns_sleep 127\ns_sleep 40\nL_jit:"); S.atomic(g)
    if OPT['x_meas'] == name:
        g = Stream(); g(f"s_memrealtime s[{sP}:{sP+1}]\ns_waitcnt lgkmcnt(0)\nv_writelane_b32 v{vPROF}, s{sP}, 0"); S.atomic(g)
    if not OPT['prof']: return
    k = len(stamp_names); stamp_names.append(name)
    g = Stream()
    if OPT['prof'] == 1:
        g(f"s_memrealtime s[{sP}:{sP+1}]\ns_waitcnt lgkmcnt(0)\nv_writelane_b32 v{vPROF}, s{sP}, {k}")
        g(f"s_memtime s[{sP}:{sP+1}]\ns_waitcnt lgkmcnt(0)\nv_writelane_b32 v{vPROF}, s{sP}, {k+32}")
    elif OPT['prof'] == 4:
        g(f"s_memrealtime s[{sP}:{sP+1}]\ns_waitcnt lgkmcnt(0)\nv_writelane_b32 v{vPROF}, s{sP}, {k}")
    else:
        g(f"s_memtime s[{sP}:{sP+1}]\ns_waitcnt lgkmcnt(0)\nv_writelane_b32 v{vPROF}, s{sP}, {k}")
    S.atomic(g)

def dma_n(S, vbase, srdb, soff, m0txt, tag, n=4, samev=False, nt=False):
    for i in range(n):
        g = Stream()
        if i == 0: g(m0txt)
        g(f"buffer_load_dwordx4 v{vbase + (0 if samev else i)}, {srd(srdb)}, s{soff} offen" + (f" offset:{i*1024}" if i else "") + (" nt" if nt else "") + " lds", tag if i == n-1 else None)
        g[-1].arg = m0txt
        S.atomic(g)

def chunk_dma(i, sq=None, sw=None):
    S = Stream(); slot = i & 3
    dma_n(S, vQD, Q1, sQoff + i if sq is None else sq, f"s_add_u32 m0, s{sM0q}, {slot*32768}", None, nt=OPT['qnt'])
    dma_n(S, vWD, W1, sWoff + i if sw is None else sw, f"s_add_u32 m0, s{sM0w}, {slot*32768}", f"c{i}")
    return S

def w2_half(b, h):
    S = Stream(); slot = b & 3
    dma_n(S, vBD, W2, sW2off, f"s_add_u32 m0, s{sM0b}, {slot*32768 + 4096*h}", f"b{b}" if h else None)
    first = S[0].arg
    if h == 1: first.insert(1, Ins(f"s_add_u32 s{sW2off}, s{sW2off}, 32768"))
    elif b > 0:
        first[0:0] = [Ins(f"s_cmp_eq_u32 s{sRot}, {7-b}"), Ins(f"s_cselect_b32 s{sCnt}, s{sW2neg}, 0x8000")]
        first.insert(3, Ins(f"s_add_u32 s{sW2off}, s{sW2off}, s{sCnt}"))
    return S
def w2_dma(b):
    S = w2_half(b, 0); S.extend(w2_half(b, 1)); return S

def w2_tr(b):
    S = Stream(); slot = b & 3; hi = slot >> 1
    S.waitvm(f"b{b}")
    for k4 in range(4):
        for u in range(2):
            a = ((4*b + k4) * 2 + u) * 4
            for rd in range(2):
                off = (slot & 1) * 32768 + k4 * 2048 + rd * 1024
                S(f"ds_read_b64_tr_b16 {ar(a+2*rd, 2)}, v{vTA+2*hi+u} offset:{off}", f"tr{b}")
    return S

vROW = 220
vSHK = 228
MAP = [f"""
    s_lshr_b32 s{sCB1}, s{sJ}, 1
    s_and_b32 s{sT0}, s{sJ}, 1
    s_lshl1_add_u32 s{sRB1}, s{sX}, s{sT0}
    s_add_u32 s{sT0}, s{sCB1}, s{sX}
    s_and_b32 s{sT0}, s{sT0}, 7
""", f"""
    s_and_b32 s{sT0}, s{sJ}, 3
    s_lshr_b32 s{sT1}, s{sX}, 1
    s_lshl_b32 s{sRB1}, s{sT1}, 2
    s_add_u32 s{sRB1}, s{sRB1}, s{sT0}
    s_mul_i32 s{sT0}, s{sT0}, {OPT['pk']}
    s_mul_i32 s{sT1}, s{sT1}, {OPT['pg']}
    s_add_u32 s{sT0}, s{sT0}, s{sT1}
    s_lshr_b32 s{sT1}, s{sJ}, 2
    s_add_u32 s{sT0}, s{sT0}, s{sT1}
    s_and_b32 s{sT0}, s{sT0}, 7
    s_and_b32 s{sCB1}, s{sX}, 1
    s_mul_i32 s{sCB1}, s{sCB1}, 7
    s_add_u32 s{sCB1}, s{sCB1}, s{sT1}
    s_cmp_eq_u32 s{sT1}, 7
    s_cselect_b32 s{sCB1}, 14, s{sCB1}
"""]
def entry():
    S = Stream(); nt = ' nt' if OPT['nt'] else ''
    a, b, c, d = 232, 233, 234, 235
    S(f"""
    s_load_dwordx16 s[64:79], s[0:1], 0
    s_load_dwordx8 s[80:87], s[0:1], 64
    s_memrealtime s[40:41]
    s_cmp_ge_u32 s2, 256
    s_cbranch_scc1 L_end
    v_lshrrev_b32 v{vT}, 6, v0
    v_and_b32 v{vL}, 63, v0
    s_and_b32 s{sX}, s2, 7
    v_readfirstlane_b32 s{sW}, v{vT}
    s_lshr_b32 s{sJ}, s2, 3
    """)
    if OPT['ew'] == 1:
        S(f"v_mov_b32 v242, 0\ns_waitcnt lgkmcnt(0)\nglobal_load_dword a228, v242, s[64:65]\nglobal_load_dword a229, v242, s[78:79]")
    S.extend(codepf())
    if OPT['ew'] == 2:
        S(f"v_mov_b32 v242, 0\ns_waitcnt lgkmcnt(0)\nglobal_load_dword a228, v242, s[64:65]\nglobal_load_dword a229, v242, s[78:79]")
    S(MAP[OPT['map47']])
    S(f"""
    s_mov_b32 s{QF+2}, 0x200000
    s_mov_b32 s{QF+3}, s19
    s_cmp_lt_u32 s{sCB1}, 14
    s_cselect_b32 s{Q1+2}, s{QF+2}, 0
    s_cselect_b32 s{W1+2}, 0x1c0000, 0
    s_mov_b32 s{Q1+3}, s19
    s_mov_b32 s{W1+3}, s19
    s_lshl_b32 s88, s{sX}, 18
    s_lshl_b32 s89, s20, 3
    s_add_u32 s88, s88, s89
    s_lshl2_add_u32 s89, s{sRB1}, s{sW}
    s_lshl_b32 s89, s89, 15
    s_mul_i32 s90, s{sW}, {16*3584 >> 8}
    s_add_u32 s90, s90, s{sCB1}
    s_lshl_b32 s90, s90, 8
    s_lshl_b32 s58, s{sT0}, 7
    s_add_u32 s58, s58, s89
    s_mul_i32 s59, s{sT0}, {64*3584}
    s_add_u32 s59, s59, s90
    s_lshl_b32 s{sM0q}, s{sW}, 12
    s_add_u32 s{sM0w}, s{sM0q}, 16384
    v_lshlrev_b32 v{vL16}, 4, v{vL}
    v_lshrrev_b32 v{a}, 5, v{vL}
    v_lshl_add_u32 v236, v{a}, 9, v{vL16}
    v_lshrrev_b32 v{a}, 3, v{vL}
    v_and_b32 v{b}, 7, v{vL}
    v_lshrrev_b32 v{c}, 4, v{vL}
    v_xor_b32 v{d}, v{b}, v{c}
    v_lshlrev_b32 v{d}, 4, v{d}
    v_lshl_add_u32 v{vQD}, v{a}, 10, v{d}
    v_xor_b32 v{d}, 64, v{vQD}
    v_add_u32 v{vQD+1}, 7168, v{d}
    v_add_u32 v{vQD+2}, 14336, v{vQD}
    v_add_u32 v{vQD+3}, 21504, v{d}
    v_mul_u32_u24 v237, {3584 - 256}, v{c}
    v_lshlrev_b32 v{d}, 6, v{c}
    v_xor_b32 v{d}, v{vL16}, v{d}
    v_add_u32 v{vWD}, v237, v{d}
    v_add_u32 v{vWD+1}, {4*3584-1024}, v{vWD}
    v_add_u32 v{vWD+2}, {8*3584-2048}, v{vWD}
    v_add_u32 v{vWD+3}, {12*3584-3072}, v{vWD}
    """)
    if OPT['prof'] or OPT['x_meas']: S(f"v_mov_b32 v{vPROF}, 0")
    S.waitlg()
    if OPT['prof']:
        stamp_names.append("ent"); S(f"v_writelane_b32 v{vPROF}, s40, 0")
    else: stamp(S, "karg")
    S(f"""
    s_mov_b64 s[{QF}:{QF+1}], s[64:65]
    s_mov_b64 s[{Q1}:{Q1+1}], s[64:65]
    s_mov_b64 s[{W1}:{W1+1}], s[78:79]
    buffer_load_dwordx4 v[{vROW}:{vROW+3}], v236, {srd(QF)}, s88 offen{nt}
    buffer_load_dwordx4 v[{vROW+4}:{vROW+7}], v236, {srd(QF)}, s88 offen offset:512{nt}
    """)
    S.extend(chunk_dma(0, 58, 59))
    if OPT['fine']: stamp(S, "c0iss")
    S(f"""
    s_lshl3_add_u32 s42, s{sW}, s2
    s_cmp_gt_u32 s42, 7
    s_cselect_b32 s{DBG+2}, 0, 256
    s_mov_b32 s{DBG+3}, 0x20000
    s_mov_b64 s[{DBG}:{DBG+1}], s[84:85]
    v_mov_b32 v245, {OOB}
    v_cmp_eq_u32 vcc, 0, v{vL}
    s_or_b32 s40, s40, 1
    v_mov_b32 v244, s40
    v_cndmask_b32 v{vL0}, v245, 0, vcc
    v_mov_b32 v245, 0
    buffer_atomic_cmpswap v[244:245], v{vL0}, {srd(DBG)}, 0 offen sc1
    s_lshr_b32 s{sT1}, s{sJ}, 3
    s_lshl2_add_u32 s{sRB2}, s{sX}, s{sT1}
    s_and_b32 s{sCB2}, s{sJ}, 7
    v_lshlrev_b32 v{b}, 4, v{b}
    v_lshl_add_u32 v237, v{a}, 10, v{b}
    v_lshlrev_b32 v238, 4, v{a}
    s_lshl2_add_u32 s43, s{sCB2}, s{sW}
    s_lshl_b32 s43, s43, 7
    v_add_u32 v238, s43, v238
    s_lshl_b32 s43, s2, 2
    v_mov_b32 v240, s43
    s_lshr_b32 s43, s{sW}, 1
    s_lshl1_add_u32 s43, s2, s43
    s_lshl_b32 s43, s43, 12
    v_mov_b32 v241, s43
    v_mov_b32 v242, 0
    global_load_dwordx4 v[{vSHK}:{vSHK+3}], v238, s[70:71]
    global_load_dword a248, v240, s[74:75]
    global_load_dword a249, v241, s[72:73]
    global_load_dword a230, v242, s[66:67]
    global_load_dword a231, v242, s[68:69]
    s_mov_b64 s[{SKK}:{SKK+1}], s[66:67]
    s_mov_b64 s[{KZ}:{KZ+1}], s[66:67]
    s_mov_b64 s[{SVV}:{SVV+1}], s[68:69]
    s_mov_b64 s[{SSK}:{SSK+1}], s[72:73]
    s_mov_b64 s[{W2}:{W2+1}], s[80:81]
    s_mov_b64 s[{OUT}:{OUT+1}], s[82:83]
    s_mov_b32 s{DBG+2}, 256
    s_mov_b64 s[{WS}:{WS+1}], s[86:87]
    """)
    for bb, n in ((W2, 0x1c0000), (SSK, 0x200000), (WS, WS_SIZE), (OUT, 0x200000)):
        S(f"s_mov_b32 s{bb+2}, {n}\ns_mov_b32 s{bb+3}, 0x20000")
    S.extend(coff(1))
    return S

def coff(i):
    S = Stream()
    S(f"""
    s_add_u32 s{sT1}, s{sC0}, {i}
    s_and_b32 s{sT1}, s{sT1}, 7
    s_lshl_b32 s{sQoff+i}, s{sT1}, 7
    s_add_u32 s{sQoff+i}, s{sQoff+i}, s89
    s_mul_i32 s{sWoff+i}, s{sT1}, {64*3584}
    s_add_u32 s{sWoff+i}, s{sWoff+i}, s90
    """)
    return S
def codepf():
    S = Stream()
    if OPT['codepf']:
        S(f"""
        s_getpc_b64 s[16:17]
        L_pc:
        s_mov_b32 s18, L_codeend-L_pc
        s_mov_b32 s19, 0x20000
        s_lshl2_add_u32 s20, s{sJ}, s{sW}
        s_lshl_b32 s20, s20, 8
        v_lshlrev_b32 v246, 2, v{vL}
        buffer_load_dword a252, v246, s[16:19], s20 offen
        """)
        if OPT['cph'] == 1:
            S[-1:-1] = one(f"s_lshl_b32 s22, s{sW}, 10\nv_lshlrev_b32 v247, 4, v{vL}\nbuffer_load_dwordx4 a[232:235], v247, s[16:19], s22 offen")
        if OPT['cph'] == 2:
            S[-1:-1] = one(f"s_lshl_b32 s22, s{sW}, 10\nv_and_b32 v247, 7, v{vL}\nv_lshlrev_b32 v247, 7, v247\ns_mov_b64 exec, 0xff\nbuffer_load_dword a232, v247, s[16:19], s22 offen\ns_mov_b64 exec, -1")
    return S

def kv_pro():
    S = Stream()
    S(f"""
    s_cmp_lg_u32 s{sRB2}, 0
    s_cselect_b32 s{KZ+2}, 0x200000, 0
    s_mov_b32 s{KZ+3}, 0x20000
    s_mov_b32 s{SKK+2}, {0 if OPT['x_kvnull'] else 0x200000}
    s_mov_b32 s{SKK+3}, 0x20000
    s_mov_b32 s{SVV+2}, {0 if OPT['x_kvnull'] else 0x200000}
    s_mov_b32 s{SVV+3}, 0x20000
    s_mov_b32 s{SHK+2}, 4096
    s_mov_b32 s{SHK+3}, 0x20000
    s_lshl_b32 s40, s{sRB2}, 16
    s_lshl_b32 s41, s{sCB2}, 7
    s_add_u32 s40, s40, s41
    s_lshl_b32 s41, s{sW}, 13
    s_add_u32 s41, s41, s40
    s_add_u32 s42, s41, 32768
    s_sub_u32 s40, s40, 8192
    s_max_i32 s40, s40, 0
    s_mul_i32 s43, s{sW}, 1040
    s_lshl_b32 s87, s{sCB2}, 9
    s_lshl_b32 s{sT1}, s{sW}, 7
    s_add_u32 s87, s87, s{sT1}
    v_cmp_gt_u32 vcc, 40, v{vL}
    v_mov_b32 v239, {OOB}
    v_cndmask_b32 v239, v237, v239, vcc
    """)
    return S
def kv_dma():
    S = Stream(); nt = "nt " if OPT['nt'] else ""
    for m0, v, sr, so in ((f"s_add_u32 m0, s43, {KT+1040}", 237, SKK, 41), (f"s_add_u32 m0, s43, {VT}", 237, SVV, 41),
                          (f"s_add_u32 m0, s43, {KT+5*1040}", 237, SKK, 42), (f"s_add_u32 m0, s43, {VT+4*1040}", 237, SVV, 42),
                          (f"s_mov_b32 m0, {KT}", 239, KZ, 40)):
        g = Stream(); g(f"{m0}\nbuffer_load_dwordx4 v{v}, {srd(sr)}, s{so} offen {nt}lds"); S.atomic(g)
    if OPT['tiny']: S[-1].arg[-1].tag = "kvd"
    else: S(f"buffer_load_dwordx4 v[{vSHK}:{vSHK+3}], v238, {srd(SHK)}, s87 offen", "kvd")
    return S

def setup():
    S = Stream()
    if OPT['cshare']:
        S(f"""
        s_lshl_b32 s{sCsR}, s{sCB1}, 13
        s_add_u32 s{sCsR}, s{sCsR}, {CSP}
        s_lshl_b32 s{sCsW}, s{sC0}, 10
        s_add_u32 s{sCsW}, s{sCsW}, s{sCsR}
        s_and_b32 s{sT1}, s{sW}, 1
        s_lshl_b32 s{sT1}, s{sT1}, 9
        s_add_u32 s{sCsW}, s{sCsW}, s{sT1}
        s_lshr_b32 s{sT1}, s{sW}, 1
        s_lshl_b32 s{sT1}, s{sT1}, 8
        s_add_u32 s{sCsW}, s{sCsW}, s{sT1}
        s_lshl_b32 s{sT1}, s{sW}, 8
        s_add_u32 s{sCsR}, s{sCsR}, s{sT1}
        """)
    S(f"""
    s_and_b32 s{sFH}, s{sW}, 1
    s_lshr_b32 s{sTH}, s{sW}, 1
    s_lshl_b32 s{sCH}, s2, 1
    s_add_u32 s{sCH}, s{sCH}, s{sTH}
    s_lshl_b32 s{sM0b}, s{sW}, 13
    s_mul_i32 s{sW2off}, s{sW}, {448*1024}
    s_lshl_b32 s{sT0}, s{sCB2}, 7
    s_add_u32 s{sW2off}, s{sW2off}, s{sT0}
    s_lshr_b32 s{sRot}, s{sJ}, 3
    s_mul_i32 s{sRot}, s{sRot}, {OPT['rotk']}
    s_add_u32 s{sRot}, s{sRot}, s{sCB2}
    s_mul_i32 s{sT0}, s{sX}, {OPT['rotx']}
    s_add_u32 s{sRot}, s{sRot}, s{sT0}
    s_mul_i32 s{sT0}, s{sRot}, 37
    s_lshr_b32 s{sT0}, s{sT0}, 8
    s_mul_i32 s{sT0}, s{sT0}, 7
    s_sub_u32 s{sRot}, s{sRot}, s{sT0}
    s_lshl_b32 s{sT0}, s{sRot}, 16
    s_add_u32 s{sW2off}, s{sW2off}, s{sT0}
    s_lshl_b32 s{sStatC}, s{sRB1}, 1
    s_add_u32 s{sStatC}, s{sStatC}, s{sTH}
    s_mul_i32 s{sHst}, s{sStatC}, {2*112*1024}
    s_lshl_b32 s{sStatC}, s{sStatC}, 10
    s_add_u32 s{sStatC}, s{sStatC}, {STATS}
    s_lshl_b32 s{sT0}, s{sCB1}, 1
    s_add_u32 s{sT0}, s{sT0}, s{sFH}
    s_lshl_b32 s{sT0}, s{sT0}, 12
    s_add_u32 s{sHst}, s{sHst}, s{sT0}
    s_lshl_b32 s{sT0}, s{sTH}, 11
    s_xor_b32 s{sT1}, s{sT0}, 2048
    s_add_u32 s{sHst+2}, s{sHst}, s{sT1}
    s_add_u32 s{sHst}, s{sHst}, s{sT0}
    s_add_u32 s{sHst+1}, s{sHst}, {112*1024}
    s_add_u32 s{sHst+3}, s{sHst+2}, {112*1024}
    s_lshl_b32 s{sStatW}, s{sX}, 5
    s_add_u32 s{sStatW}, s{sStatW}, s{sJ}
    s_lshl_b32 s{sStatW}, s{sStatW}, 7
    s_lshl_b32 s{sT0}, s{sW}, 4
    s_add_u32 s{sStatW}, s{sStatW}, s{sT0}
    s_add_u32 s{sStatW}, s{sStatW}, {STATS}
    """)
    a, b, c, d, e, f = 240, 241, 242, 243, 244, 245
    a, b, c, d, e, f = 244, 245, 246, 247, 248, 249
    S(f"""
    v_mov_b32 v{a}, {OOB}
    v_cmp_eq_u32 vcc, 0, v{vL}
    v_and_b32 v{b}, 31, v{vL}
    v_lshrrev_b32 v{c}, 5, v{vL}
    v_lshrrev_b32 v{d}, 3, v{b}
    v_and_b32 v{e}, 7, v{vL}
    v_lshlrev_b32 v{e}, 3, v{e}
    v_lshl_add_u32 v{vSTV}, v{d}, 7, v{e}
    """)
    S(f"""
    v_lshrrev_b32 v{d}, 1, v{b}
    v_and_b32 v{d}, 7, v{d}
    v_xor_b32 v{d}, v{d}, v{c}
    v_lshlrev_b32 v{d}, 4, v{d}
    v_lshl_add_u32 v{d}, v{b}, 7, v{d}
    s_lshl_b32 s{sT0}, s{sTH}, 13
    v_add_u32 v{vQA}, s{sT0}, v{d}
    v_xor_b32 v{vQA+1}, 32, v{vQA}
    v_xor_b32 v{vQA+2}, 64, v{vQA}
    v_xor_b32 v{vQA+3}, 0x60, v{vQA}
    """)
    for k in range(4): S(f"v_add_u32 v{vQA+4+k}, 0x10000, v{vQA+k}")
    S(f"""
    v_bfe_u32 v{d}, v{vL}, 2, 2
    v_and_b32 v{e}, 3, v{vL}
    v_lshlrev_b32 v{e}, 3, v{e}
    v_bfe_u32 v{f}, v{vL}, 4, 1
    v_lshl_add_u32 v{e}, v{f}, 5, v{e}
    s_lshl_b32 s{sT0}, s{sFH}, 1
    s_add_u32 s{sT0}, s{sT0}, s{sTH}
    v_xor_b32 v{f}, s{sT0}, v{d}
    v_lshl_add_u32 v{f}, v{f}, 6, v{e}
    v_lshl_add_u32 v{f}, v{d}, 8, v{f}
    v_lshl_add_u32 v{vWA}, v{c}, 11, v{f}
    v_xor_b32 v{vWA+1}, 64, v{vWA}
    v_add_u32 v{vWA+2}, 0x10000, v{vWA}
    v_add_u32 v{vWA+3}, 0x10000, v{vWA+1}
    v_lshrrev_b32 v{f}, 1, v{d}
    v_xor_b32 v{f}, s{sFH}, v{f}
    v_lshl_add_u32 v{f}, v{f}, 6, v{e}
    v_lshl_add_u32 v{f}, v{d}, 7, v{f}
    v_lshl_add_u32 v{f}, v{c}, 9, v{f}
    v_add_u32 v{vTA}, s{sM0b}, v{f}
    v_xor_b32 v{vTA+1}, 64, v{vTA}
    v_add_u32 v{vTA+2}, 0x10000, v{vTA}
    v_add_u32 v{vTA+3}, 0x10000, v{vTA+1}
    v_lshl_add_u32 v{f}, v{d}, 6, v{e}
    v_lshl_add_u32 v{f}, v{c}, 8, v{f}
    s_add_u32 s{sT0}, s{sM0b}, {E + 2048}
    v_add_u32 v{vYA}, s{sT0}, v{f}
    v_add_u32 v{vYW}, s{sT0}, v{vL16}
    """)
    n, g = d, e
    S0 = S
    class SX(Stream):
        def __call__(self, text, tag=None):
            r = f"v_and_b32 v{a}, 31, v{vL}\nv_lshlrev_b32 v{a}, 3, v{a}\nv_lshl_add_u32 v{vCSW}, v{c}, 12, v{a}" if OPT['cshare'] else f"v_cndmask_b32 v{vCSW}, v{f}, v{a}, vcc"
            return S0(text.replace("CSWDEF", r), tag)
    SX()(f"""
    v_and_b32 v{n}, 15, v{vL}
    v_lshrrev_b32 v{g}, 4, v{vL}
    v_and_b32 v{f}, 1, v{g}
    v_cmp_eq_u32 vcc, v{n}, v{f}
    v_mov_b32 v{f}, 0x3f803f80
    v_lshlrev_b32 v{a}, 4, v{g}
    v_cndmask_b32 v{f}, 0, v{f}, vcc
    v_lshl_add_u32 v{a}, v{n}, 6, v{a}
    v_accvgpr_write_b32 a{SEL}, v{f}
    v_accvgpr_write_b32 a{SEL+1}, v{f}
    v_accvgpr_write_b32 a{SEL+2}, v{f}
    v_accvgpr_write_b32 a{SEL+3}, v{f}
    s_lshl_b32 s{sT0}, s{sFH}, 8
    s_lshl_b32 s{sT1}, s{sTH}, 7
    s_add_u32 s{sT0}, s{sT0}, s{sT1}
    s_add_u32 s{sT0}, s{sT0}, {CS}
    v_add_u32 v{a}, s{sT0}, v{a}
    v_add_u32 v{f}, {DUMP}, v{vL16}
    v_cmp_gt_u32 vcc, 2, v{n}
    v_lshlrev_b32 v{b}, 4, v{c}
    v_add_u32 v{vCSA}, s{sT0}, v{b}
    CSWDEF
    v_xor_b32 v{vCSA+1}, 0x80, v{vCSA}
    """)
    assert CS % 256 == 16 or True
    S(f"""
    v_lshrrev_b32 v{a}, 3, v{vL}
    v_and_b32 v{b}, 7, v{vL}
    v_bfe_u32 v{f}, v{vL}, 4, 1
    v_lshlrev_b32 v{f}, 2, v{f}
    v_xor_b32 v{b}, v{b}, v{f}
    v_lshlrev_b32 v{b}, 4, v{b}
    v_lshl_add_u32 v{vBD}, v{a}, 10, v{b}
    v_add_u32 v{vBD+1}, 7168, v{vBD}
    v_add_u32 v{vBD+2}, 14336, v{vBD}
    v_add_u32 v{vBD+3}, 21504, v{vBD}
    """)
    if not OPT['defer']: S.extend(setup_late())
    return S

def setup_late():
    S = Stream()
    a, b, c, d, e, f = 200, 201, 202, 203, 204, 205
    sL0, sL1, sL2 = (65, 66, 67) if OPT['defer'] else (sT0, sT1, sCnt)
    n, g = d, e
    S(f"v_and_b32 v{n}, 15, v{vL}\nv_lshrrev_b32 v{g}, 4, v{vL}\nv_lshrrev_b32 v{c}, 5, v{vL}")
    S(f"""
    v_lshlrev_b32 v{a}, 1, v{n}
    v_lshl_add_u32 v{a}, v{g}, 4, v{a}
    v_and_b32 v{b}, 1, v{n}
    v_cmp_eq_u32 vcc, 0, v{b}
    v_mov_b32 v{f}, {4160 - 2}
    s_mul_i32 s{sL0}, s{sTH}, 8320
    s_lshl_b32 s{sL1}, s{sFH}, 6
    v_cndmask_b32 v{b}, 0, v{f}, vcc
    s_add_u32 s{sL0}, s{sL0}, s{sL1}
    s_add_u32 s{sL0}, s{sL0}, {HC + 32 - 30}
    v_add3_u32 v{vCA}, v{a}, v{b}, s{sL0}
    v_add_u32 v{vCA+1}, 1024, v{vCA}
    v_add_u32 v{vCA+2}, 2048, v{vCA}
    v_add_u32 v{vCA+3}, 3072, v{vCA}
    s_mul_i32 s{sL0}, s{sTH}, 4608
    s_add_u32 s{sL0}, s{sL0}, {UR}
    v_lshlrev_b32 v{a}, 5, v{n}
    v_lshlrev_b32 v{b}, 4, v{g}
    v_sub_u32 v{b}, v{b}, v{a}
    s_add_u32 s{sL1}, s{sL1}, s{sL0}
    s_add_u32 s{sL1}, s{sL1}, 480
    v_add_u32 v{vCB}, s{sL1}, v{b}
    v_lshl_add_u32 v{b}, v{g}, 3, v{a}
    s_lshl_b32 s{sL1}, s{sFH}, 11
    s_sub_u32 s{sL2}, s{sL0}, s{sL1}
    s_add_u32 s{sL2}, s{sL2}, {4088 - 1536}
    v_sub_u32 v{vCD}, s{sL2}, v{b}
    s_add_u32 s{sL1}, s{sL1}, s{sL0}
    v_add_u32 v{vCU}, s{sL1}, v{vL16}
    v_and_b32 v{b}, 0x1f0, v{vL16}
    s_add_u32 s{sL0}, s{sL0}, 4096
    v_add_u32 v{b}, s{sL0}, v{b}
    v_mov_b32 v208, 0
    v_mov_b32 v209, 0
    v_mov_b32 v210, 0
    v_mov_b32 v211, 0
    ds_write_b128 v{b}, v[208:211]
    s_add_u32 s{sL0}, s{sM0b}, {3*32768}
    v_add_u32 v{vCX}, s{sL0}, v{vL16}
    v_xor_b32 v{vCXR}, 0x2000, v{vCX}
    v_and_b32 v{b}, 1, v{g}
    v_lshl_add_u32 v{a}, v{b}, 9, v{a}
    v_lshrrev_b32 v{b}, 1, v{g}
    v_lshl_add_u32 v{vCY}, v{b}, 4, v{a}
    v_lshlrev_b32 v{vPA}, {2 if OPT['packa'] else 7}, v{n}
    v_min_u32 v{a}, 6, v{vL}
    v_lshlrev_b32 v{vPB}, {2 if OPT['packb'] else 7}, v{a}
    v_and_b32 v{a}, 31, v{vL}
    v_lshlrev_b32 v{vPC}, {2 if OPT['packc'] else 8}, v{a}
    """)
    S(f"""
    v_lshrrev_b32 v{b}, 2, v{vL}
    v_and_b32 v{f}, 3, v{vL}
    v_lshlrev_b32 v{f}, 4, v{f}
    v_lshl_add_u32 v{vOS}, v{b}, 10, v{f}
    v_lshl_add_u32 v{vYL}, v{b}, 12, v{f}
    v_lshlrev_b32 v{d}, 4, v{g}
    v_xor_b32 v{vXD}, v{vOS}, v{d}
    v_mul_u32_u24 v{b}, 80, v{b}
    s_add_u32 s{sL0}, s{sM0b}, {E + 4096}
    v_add3_u32 v{vOR}, v{b}, v{f}, s{sL0}
    v_mul_u32_u24 v{b}, 80, v{a}
    v_lshl_add_u32 v{b}, v{c}, 3, v{b}
    v_add_u32 v{vOW}, s{sL0}, v{b}
    v_bfe_u32 v{b}, v{vL}, 2, 2
    v_lshlrev_b32 v{b}, 4, v{b}
    v_lshl_add_u32 v{b}, v{a}, 6, v{b}
    v_lshl_add_u32 v{b}, v{c}, 3, v{b}
    s_add_u32 s{sL0}, s{sM0b}, {E}
    v_add_u32 v{vXA}, s{sL0}, v{b}
    v_add_u32 v{vRW}, s{sM0b}, v{vL16}
    v_xor_b32 v{vRR}, 0x4000, v{vRW}
    v_xor_b32 v{vRR+1}, 0x6000, v{vRW}
    v_xor_b32 v{vRR+2}, 0x2000, v{vRW}
    """)
    return S

def setup_b():
    if OPT['packb']:
        pk = f"s_mul_i32 s{sT1}, s{sT0}, 37\ns_lshr_b32 s{sT1}, s{sT1}, 8\ns_lshr_b32 s{sFBo}, s{sFBo}, 3\ns_add_u32 s{sFBo}, s{sFBo}, s{sT1}\ns_lshl_b32 s{sFBo}, s{sFBo}, 7\ns_mul_i32 s{sT1}, s{sT1}, 7\ns_sub_u32 s{sT0}, s{sT0}, s{sT1}\ns_lshl_b32 s{sT0}, s{sT0}, 2\ns_add_u32 s{sFBo}, s{sFBo}, s{sT0}\ns_add_u32 s{sFBo}, s{sFBo}, {FLB}"
    else:
        pk = f"s_add_u32 s{sFBo}, s{sFBo}, s{sT0}\ns_lshl_b32 s{sFBo}, s{sFBo}, 7\ns_add_u32 s{sFBo}, s{sFBo}, {FLB}"
    if OPT['packa']:
        pa = f"s_lshl_b32 s{sFAo}, s{sT0}, 1\ns_lshr_b32 s{sT1}, s{sRB2}, 4\ns_add_u32 s{sFAo}, s{sFAo}, s{sT1}\ns_lshl_b32 s{sFAo}, s{sFAo}, 7\ns_and_b32 s{sT1}, s{sRB2}, 15\ns_lshl_b32 s{sT1}, s{sT1}, 2\ns_add_u32 s{sFAo}, s{sFAo}, s{sT1}\ns_add_u32 s{sFAo}, s{sFAo}, {FLA}\n"
        pa += f"s_lshr_b32 s{sFAp}, s{sCH}, 4\ns_lshl_b32 s{sFAp}, s{sFAp}, 8\ns_lshl_b32 s{sT0}, s{sFH}, 7\ns_sub_u32 s{sFAp}, s{sFAp}, s{sT0}\ns_add_u32 s{sFAp}, s{sFAp}, {FLA + 128}"
    else:
        pa = f"s_lshl_b32 s{sFAo}, s{sT0}, 5\ns_add_u32 s{sFAo}, s{sFAo}, s{sRB2}\ns_lshl_b32 s{sFAo}, s{sFAo}, 7\ns_add_u32 s{sFAo}, s{sFAo}, {FLA}\n"
        pa += f"s_lshr_b32 s{sFAp}, s{sCH}, 4\ns_lshl_b32 s{sFAp}, s{sFAp}, 12\ns_lshl_b32 s{sT0}, s{sFH}, 11\ns_sub_u32 s{sFAp}, s{sFAp}, s{sT0}\ns_add_u32 s{sFAp}, s{sFAp}, {FLA + 2048}"
    class SS(Stream):
        def __call__(self, text, tag=None): return Stream.__call__(self, text.replace('PACKB', pk).replace('PACKA', pa), tag)
    S = SS()
    S(f"""
    s_lshl_b32 s{sFBo}, s{sRB1}, 1
    s_add_u32 s{sFBo}, s{sFBo}, s{sTH}
    s_lshl_b32 s{sFBo}, s{sFBo}, 5
    s_lshl_b32 s{sT0}, s{sCB1}, 1
    s_add_u32 s{sT0}, s{sT0}, s{sFH}
    PACKB
    s_lshl_b32 s{sT0}, s{sCB2}, 2
    s_add_u32 s{sT0}, s{sT0}, s{sW}
    s_lshl_b32 s{sKV0}, s{sT0}, 16
    s_lshl_b32 s{sT1}, s{sRB2}, 7
    s_sub_u32 s{sKV0}, s{sKV0}, s{sT1}
    s_add_u32 s{sKV0}, s{sKV0}, {KVR + 1984*2}
    s_add_u32 s{sKV1}, s{sKV0}, 4096
    PACKA
    s_lshl_b32 s{sT0}, s{sFH}, 11
    s_lshl_b32 s{sHC}, s{sCH}, 12
    s_add_u32 s{sU}, s{sHC}, s{sT0}
    s_add_u32 s{sYs}, s{sU}, {YT}
    s_add_u32 s{sU}, s{sU}, {KVR}
    s_lshl_b32 s{sT0}, s{sFH}, 1
    s_add_u32 s{sHC}, s{sHC}, s{sT0}
    """)
    return S
def setup_c():
    S = Stream()
    S(f"""
    s_lshl_b32 s{sFBp}, s{sRB2}, {2 if OPT['packb'] else 5}
    s_mul_i32 s42, s{sW}, {1 if OPT['packb'] else 7}
    s_add_u32 s{sFBp}, s{sFBp}, s42
    s_lshl_b32 s{sFBp}, s{sFBp}, 7
    s_add_u32 s{sFBp}, s{sFBp}, {FLB}
    s_lshr_b32 s{sFCo}, s{sCH}, {5 if OPT['packc'] else 0}
    s_lshl_b32 s{sFCo}, s{sFCo}, 1
    s_add_u32 s{sFCo}, s{sFCo}, s{sFH}
    s_lshl_b32 s{sFCo}, s{sFCo}, 7
    s_and_b32 s42, s{sCH}, {31 if OPT['packc'] else 0}
    s_lshl_b32 s42, s42, 2
    s_add_u32 s{sFCo}, s{sFCo}, s42
    s_add_u32 s{sFCo}, s{sFCo}, {FLC}
    s_lshl_b32 s42, s{sCB2}, 1
    s_add_u32 s42, s42, s{sFH}
    s_lshl_b32 s{sFCp}, s42, {8 if OPT['packc'] else 13}
    s_lshr_b32 s43, s{sRB2}, 4
    s_lshl_b32 s43, s43, 7
    s_add_u32 s{sFCp}, s{sFCp}, s43
    s_add_u32 s{sFCp}, s{sFCp}, {FLC}
    s_lshl_b32 s{sYl}, s42, 17
    s_lshl_b32 s{sXO}, s42, 6
    s_lshl_b32 s42, s{sRB2}, 1
    s_add_u32 s42, s42, s{sTH}
    s_lshl_b32 s43, s42, 6
    s_add_u32 s{sYl}, s{sYl}, s43
    s_add_u32 s{sYl}, s{sYl}, {YT}
    s_lshl_b32 s43, s42, 15
    s_add_u32 s{sXO}, s{sXO}, s43
    s_lshl_b32 s{sStatF}, s42, 9
    s_add_u32 s{sStatF}, s{sStatF}, {STATS}
    s_mul_i32 s{sHLo}, s42, {112*1024}
    s_xor_b32 s42, s42, 1
    s_mul_i32 s{sHL}, s42, {112*1024}
    s_mul_i32 s42, s{sW}, {28*1024}
    s_lshl_b32 s43, s{sRot}, 12
    s_add_u32 s42, s42, s43
    s_add_u32 s{sHL}, s{sHL}, s42
    s_add_u32 s{sHLo}, s{sHLo}, s42
    """)
    return S

def hoffs2():
    return Stream()
sNeg = 92
def hoffs():
    S = Stream()
    g = Stream(); g(f"s_mov_b64 s[{WSO}:{WSO+1}], s[{WS}:{WS+1}]\ns_mov_b32 s{sNeg}, {-6*4096 & 0xffffffff:#x}\ns_mov_b32 s{sN2}, s{sN}\ns_mov_b32 s{sN2+1}, s{sN}"); S.atomic(g)
    return S

def nonce_get():
    S = Stream()
    S(f"s_load_dword s{sN}, s[{DBG}:{DBG+1}], 0")
    return S
def nonce_use(N='N'):
    S = Stream(); g = Stream()
    g(f"s_waitcnt lgkmcnt(0)\ns_cmp_eq_u32 s{sN}, 0\ns_cbranch_scc1 L_rare{N}\nL_back{N}:\nv_mov_b32 v{vN}, s{sN}")
    S.atomic(g)
    rare(f"""
    L_rare{N}:
    s_mov_b32 s{sCnt}, 0
    {"v_writelane_b32 v62, 1, 51" if OPT['prof'] else ""}
    L_rl{N}:
    s_sleep 2
    buffer_load_dword v{vN}, off, {srd(DBG)}, 0 sc1
    s_waitcnt vmcnt(0)
    v_readfirstlane_b32 s{sN}, v{vN}
    s_cmp_lg_u32 s{sN}, 0
    s_cbranch_scc1 L_back{N}
    s_add_u32 s{sCnt}, s{sCnt}, 1
    s_cmp_lt_u32 s{sCnt}, 0x4000
    s_cbranch_scc1 L_rl{N}
    s_branch L_back{N}
    """)
    return S

def stats():
    pr = lambda b: f"v[{b}:{b+1}]"
    S = Stream(); X = 176; A = 192; B = 193; C = 194
    for i in range(8): S(f"v_lshlrev_b32 v{X+2*i}, 16, v{vROW+i}\nv_and_b32 v{X+2*i+1}, 0xffff0000, v{vROW+i}")
    def allred(r):
        for m in ("quad_perm:[1,0,3,2]", "quad_perm:[2,3,0,1]", "row_half_mirror", "row_mirror"):
            S(f"v_add_f32_dpp v{r}, v{r}, v{r} {m} row_mask:0xf bank_mask:0xf")
        S(f"v_mov_b32 v{C}, v{r}\nv_permlane16_swap_b32 v{r}, v{C}\nv_add_f32 v{r}, v{r}, v{C}")
    for i in range(4): S(f"v_pk_add_f32 {pr(200+2*i)}, {pr(X+4*i)}, {pr(X+4*i+2)}")
    S(f"v_pk_add_f32 {pr(200)}, {pr(200)}, {pr(202)}\nv_pk_add_f32 {pr(204)}, {pr(204)}, {pr(206)}\nv_pk_add_f32 {pr(200)}, {pr(200)}, {pr(204)}\nv_add_f32 v{A}, v200, v201")
    allred(A)
    S(f"v_mul_f32 v{A}, {f2u(1/512):#x}, v{A}")
    for i in range(8): S(f"v_pk_add_f32 {pr(X+2*i)}, {pr(X+2*i)}, {pr(A)} op_sel_hi:[1,0] neg_lo:[0,1] neg_hi:[0,1]")
    S(f"v_pk_mul_f32 {pr(200)}, {pr(X)}, {pr(X)}\nv_pk_mul_f32 {pr(202)}, {pr(X+2)}, {pr(X+2)}")
    for i in range(2, 8): S(f"v_pk_fma_f32 {pr(200+2*(i&1))}, {pr(X+2*i)}, {pr(X+2*i)}, {pr(200+2*(i&1))}")
    S(f"v_pk_add_f32 {pr(200)}, {pr(200)}, {pr(202)}\nv_add_f32 v{B}, v200, v201")
    allred(B)
    S(f"""
    v_mul_f32 v{B}, {f2u(1/512):#x}, v{B}
    v_cvt_pk_bf16_f32 v{B}, v{B}, v{B}
    v_lshlrev_b32 v{B}, 16, v{B}
    v_add_f32 v{B}, {f2u(1e-5):#x}, v{B}
    v_cvt_pk_bf16_f32 v{B}, v{B}, v{B}
    v_lshlrev_b32 v{B}, 16, v{B}
    v_sqrt_f32 v{B}, v{B}
    v_and_b32 v{C}, 31, v{vL}
    v_cvt_pk_bf16_f32 v196, v{A}, v{B}
    v_lshrrev_b32 v{A}, 2, v{vL}
    v_mov_b32 v{B}, {OOB}
    """)
    g = Stream(); g(f"v_cmp_eq_u32 vcc, 0, v{C}\nv_cndmask_b32 v198, v{B}, v{A}, vcc"); S.atomic(g)
    return S
def stats_store():
    S = Stream()
    S(f"v_mov_b32 v197, v{vN}\nbuffer_store_dwordx2 v[196:197], v198, {srd(WS)}, s{sStatW} offen sc1")
    return S

def flag_store(soff, srdb, tag):
    S = Stream(); S.waitvm(tag)
    S(f"buffer_store_dword v{vN}, v{vL0}, {srd(srdb)}, s{soff} offen sc1")
    return S

def kv_addr():
    S = Stream(); a1, a2, a3 = 252, 253, 254
    S(f"""
    v_and_b32 v{a1}, 7, v{vL}
    v_mul_u32_u24 v{a2}, 1040, v{a1}
    v_lshrrev_b32 v{a3}, 3, v{vL}
    v_lshl_add_u32 v{a2}, v{a3}, 2, v{a2}
    s_lshl_b32 s{sT0}, s{sW}, 5
    s_add_u32 s{sT0}, s{sT0}, {KT}
    v_add_u32 v{a2}, s{sT0}, v{a2}
    v_add_u32 v255, 1040, v{a2}
    v_xor_b32 v{a1}, 7, v{a1}
    v_lshlrev_b32 v{a1}, 4, v{a1}
    v_lshl_add_u32 v{a1}, v{a3}, 13, v{a1}
    v_add_u32 v{a3}, {VT-KT}, v{a2}
    """)
    return S
def kvpre():
    S = Stream()
    KR = 232; VR = 244; KP = 176; WF = 220; O = 200
    S(f"ds_read2_b32 v[{KR}:{KR+1}], v253 offset0:160 offset1:192\nds_read_b32 v{KR+2}, v253 offset:896")
    for p in range(4): S(f"ds_read2_b32 v[{KR+4+2*p}:{KR+5+2*p}], v255 offset0:{64*p} offset1:{64*p+32}")
    for p in range(4): S(f"ds_read2_b32 v[{VR+2*p}:{VR+1+2*p}], v254 offset0:{64*p} offset1:{64*p+32}")
    for j in range(4):
        for c in range(2):
            src = vSHK + 2*c + (j >> 1)
            S(f"v_and_b32 v{WF+2*j+c}, 0xffff0000, v{src}" if j & 1 else f"v_lshlrev_b32 v{WF+2*j+c}, 16, v{src}")
    ri = lambda r: r + 3 if r < 0 else r + 4
    pr = lambda b: f"v[{b}:{b+1}]"
    for r in range(-3, 8):
        S(f"v_lshlrev_b32 v{KP+2*ri(r)}, 16, v{KR+ri(r)}\nv_and_b32 v{KP+2*ri(r)+1}, 0xffff0000, v{KR+ri(r)}")
    for t in range(8): S(f"v_pk_mul_f32 {pr(O+2*t)}, {pr(KP+2*ri(t))}, {pr(WF)}")
    for jj in range(1, 4):
        for t in range(8): S(f"v_pk_fma_f32 {pr(O+2*t)}, {pr(KP+2*ri(t-jj))}, {pr(WF+2*jj)}, {pr(O+2*t)}")
    for t in range(8): S(f"v_lshlrev_b32 v{KP+2*t}, 16, v{VR+t}\nv_and_b32 v{KP+2*t+1}, 0xffff0000, v{VR+t}")
    for t in range(8): S(f"v_pk_mul_f32 {pr(O+2*t)}, {pr(O+2*t)}, {pr(KP+2*t)}")
    for ch, Pk in enumerate((232, 236)):
        for q in range(4): S(f"v_cvt_pk_bf16_f32 v{Pk+q}, v{O+2*(7-2*q)+ch}, v{O+2*(6-2*q)+ch}")
        S(f"buffer_store_dwordx4 v[{Pk}:{Pk+3}], v252, {srd(WS)}, s{sKV0+ch} offen sc1", f"kv{ch}")
    return S

def kvpre_np():
    S = Stream()
    KR = 232; VR = 244; KL = 176; WF = 188; OA = 200; OB = 220
    S(f"ds_read2_b32 v[{KR}:{KR+1}], v253 offset0:160 offset1:192\nds_read_b32 v{KR+2}, v253 offset:896")
    for p in range(4): S(f"ds_read2_b32 v[{KR+4+2*p}:{KR+5+2*p}], v255 offset0:{64*p} offset1:{64*p+32}")
    for p in range(4): S(f"ds_read2_b32 v[{VR+2*p}:{VR+1+2*p}], v254 offset0:{64*p} offset1:{64*p+32}")
    for i in range(4):
        S(f"v_lshlrev_b32 v{WF+2*i}, 16, v{vSHK+i}\nv_and_b32 v{WF+2*i+1}, 0xffff0000, v{vSHK+i}")
    ri = lambda r: r + 3 if r < 0 else r + 4
    for r in range(-3, 8):
        S(f"v_lshlrev_b32 v{KL+ri(r)}, 16, v{KR+ri(r)}\nv_and_b32 v{KR+ri(r)}, 0xffff0000, v{KR+ri(r)}")
    for ch, (K, Oo) in enumerate(((KL, OA), (KR, OB))):
        for t in range(8): S(f"v_mul_f32 v{Oo+t}, v{K+ri(t)}, v{WF+4*ch}")
        for jj in range(1, 4):
            for t in range(8): S(f"v_fmac_f32 v{Oo+t}, v{K+ri(t-jj)}, v{WF+4*ch+jj}")
    for t in range(8):
        S(f"v_lshlrev_b32 v{KL+t}, 16, v{VR+t}\nv_and_b32 v{VR+t}, 0xffff0000, v{VR+t}")
    for t in range(8):
        S(f"v_mul_f32 v{OA+t}, v{OA+t}, v{KL+t}\nv_mul_f32 v{OB+t}, v{OB+t}, v{VR+t}")
    for ch, (Oo, Pk) in enumerate(((OA, 232), (OB, 236))):
        for q in range(4): S(f"v_cvt_pk_bf16_f32 v{Pk+q}, v{Oo+7-2*q}, v{Oo+6-2*q}")
        S(f"buffer_store_dwordx4 v[{Pk}:{Pk+3}], v252, {srd(WS)}, s{sKV0+ch} offen sc1", f"kv{ch}")
    return S

def stouch(S):
    S(f"v_lshlrev_b32 v5, 10, v{vL}\ns_lshl_b32 s66, s{sW}, 8\ns_add_u32 s72, s64, s66\ns_lshl_b32 s66, s{sW}, 1\ns_add_u32 s73, s65, s66")
    for p in range(OPT['st0'], 7):
        for c in range(2):
            S(f"""
            s_add_u32 s67, s73, {p + c}
            s_mul_i32 s69, s67, 37
            s_lshr_b32 s69, s69, 8
            s_mul_i32 s69, s69, 7
            s_sub_u32 s67, s67, s69
            s_lshl_b32 s67, s67, 16
            s_add_u32 s67, s67, s72
            buffer_load_dword a236, v5, {srd(W2)}, s67 offen offset:{128*c}
            """)
            S[-1].wr = set()

def msweep(S):
    S(f"""
    v_lshlrev_b32 v6, 7, v{vL}
    s_lshl_b32 s66, s{sX}, 2
    s_and_b32 s67, s{sJ}, 3
    s_add_u32 s66, s66, s67
    s_lshl_b32 s66, s66, 2
    s_add_u32 s66, s66, s{sW}
    s_mul_i32 s66, s66, 14336
    s_add_u32 s67, s66, 6144
    buffer_load_dword a237, v6, {srd(W2)}, s66 offen
    buffer_load_dword a238, v6, {srd(W2)}, s67 offen
    """)

def spare1():
    S = Stream()
    S("L_spare1:")
    if OPT['spb'] == 1: S("s_waitcnt vmcnt(0)\ns_barrier")
    S(f"""
    s_lshl_b32 s64, s{sX}, 2
    s_and_b32 s65, s{sJ}, 3
    s_add_u32 s64, s64, s65
    s_lshl_b32 s64, s64, 16
    s_lshl_b32 s66, s{sW}, 13
    s_add_u32 s64, s64, s66
    s_add_u32 s64, s64, 384
    s_add_u32 s66, s64, 32768
    """)
    if OPT['c3pf']:
        S(f"""
        buffer_load_dwordx4 a[64:67], v237, {srd(SKK)}, s64 offen
        buffer_load_dwordx4 a[68:71], v237, {srd(SVV)}, s64 offen
        buffer_load_dwordx4 a[72:75], v237, {srd(SKK)}, s66 offen
        buffer_load_dwordx4 a[76:79], v237, {srd(SVV)}, s66 offen
        """)
    if OPT['kvpos'] >= 2: S.extend(kv_dma())
    S(f"v_mov_b32 v4, v237")
    S.extend(nonce_get()); S.extend(setup_b()); S.extend(setup_c()); S.extend(nonce_use('M')); S.extend(stats_store())
    S.extend(kv_addr())
    S(f"""
    s_mul_i32 s64, s65, {448*1024}
    s_lshl_b32 s66, s{sW}, 14
    s_add_u32 s70, s64, s66
    s_add_u32 s70, s70, 384
    s_mul_i32 s65, s{sX}, {OPT['rotx']}
    s_add_u32 s71, s65, 3
    """)
    def c3(n):
        for i in range(n):
            S(f"""
            s_mul_i32 s69, s71, 37
            s_lshr_b32 s69, s69, 8
            s_mul_i32 s69, s69, 7
            s_sub_u32 s67, s71, s69
            s_lshl_b32 s67, s67, 16
            s_add_u32 s67, s67, s70
            s_add_u32 s68, s67, 8192
            s_add_u32 s71, s71, 1
            buffer_load_dwordx4 a[80:83], v4, {srd(W2)}, s67 offen
            buffer_load_dwordx4 a[84:87], v4, {srd(W2)}, s68 offen
            """)
            S[-1].wr = set(); S[-2].wr = set()
    if OPT['kvpos'] >= 2:
        if OPT['msw'] == 1: msweep(S)
        c3(OPT['c3a'])
        if OPT['msw'] == 2: msweep(S)
        if OPT['stch'] == 3: stouch(S)
        if OPT['spb'] == 2: S(f"s_waitcnt vmcnt({2*OPT['c3a'] + 6 + (4 if OPT['c3pf'] else 0)})\ns_barrier")
        if OPT['ownw2']: S.extend(SPARE_W2[5:5+OPT['ownw2']])
        S.waitvm("kvd")
    else:
        c3(OPT['c3a']); S(f"s_waitcnt vmcnt({2*OPT['c3a'] + 1 + (4 if OPT['c3pf'] else 0)})")
    S("s_barrier")
    S.extend(kvpre())
    S.extend(flag_init()); S(f"s_mov_b32 s{sDone}, 0x80000000")
    if OPT['msw'] == 3: msweep(S)
    S("s_barrier")
    if OPT['kvpos'] >= 2: S.extend(dh_loads())
    S.extend(SPARE_W2[:5] if OPT['ownw2'] else SPARE_W2[:8])
    S.extend(flag_store(sFAo, WS, "kv1"))
    stamp(S, "kvpub")
    if OPT['stch'] == 2: stouch(S)
    S.extend(SPARE_W2[5+OPT['ownw2']:] if OPT['ownw2'] else SPARE_W2[8:])
    c3(OPT['c3b'])
    if OPT['stch'] == 1: stouch(S)
    if OPT['tp'] >= 0: S.extend(w2touch(range(OPT['tp'], 7)))
    if OPT['sweep']:
        S(f"""
        s_lshl_b32 s66, s{sW}, 7
        s_add_u32 s64, s64, s66
        s_add_u32 s65, s65, s{sW}
        s_mov_b32 s66, {OPT['swn']}
        s_cmp_eq_u32 s{sW}, 3
        s_cbranch_scc1 L_swe
        L_sw:
        s_mul_i32 s69, s65, 37
        s_lshr_b32 s69, s69, 8
        s_mul_i32 s69, s69, 7
        s_sub_u32 s67, s65, s69
        s_lshl_b32 s67, s67, 16
        s_add_u32 s67, s67, s64
        """)
        for n in range(8):
            S(f"buffer_load_dwordx4 a[232:235], v4, {srd(W2)}, s67 offen\ns_add_u32 s67, s67, 8192"); S[-2].cls = 'other'
        S(f"""
        s_add_u32 s65, s65, 1
        s_sub_u32 s66, s66, 1
        s_cmp_lg_u32 s66, 0
        s_cbranch_scc1 L_sw
        L_swe:
        s_waitcnt vmcnt(0)
        """)
    S.extend(setup_late() if OPT['defer'] else Stream()); S.extend(hcopy_wr() if OPT['hcreg'] else Stream()); S.extend(htouch_pro() if OPT['hto'] else Stream()); S.extend(hpad()); S.extend(hoffs()[:1] if OPT['packa'] else hoffs())
    if OPT['stch'] == 5:
        S("s_waitcnt vmcnt(0)"); stouch(S)
    S(pollA_load()); S.extend(u_loads(True))
    S("s_waitcnt vmcnt(0) lgkmcnt(0)")
    if OPT['stch'] == 4: stouch(S)
    S("s_branch L_join")
    return S

def w2touch(ps):
    S = Stream(); a, b = 250, 251
    g = Stream(); g(f"""v_cmp_gt_u32 vcc, 16, v{vL}
    v_lshlrev_b32 v{a}, 10, v{vL}
    v_mov_b32 v{b}, {OOB}
    v_cndmask_b32 v{a}, v{b}, v{a}, vcc"""); S.atomic(g)
    S(f"""s_lshr_b32 s79, s{sJ}, 3
    s_lshl_b32 s79, s79, 14
    s_mul_i32 s71, s{sW}, {448*1024}
    s_add_u32 s79, s79, s71
    s_lshl_b32 s71, s{sCB2}, 7
    s_add_u32 s79, s79, s71""")
    for p in ps:
        g = Stream(); g(f"""s_add_u32 s{sCnt}, s{sRot}, {p}
        s_cmp_ge_u32 s{sCnt}, 7
        s_cselect_b32 s71, 7, 0
        s_sub_u32 s{sCnt}, s{sCnt}, s71
        s_lshl_b32 s{sCnt}, s{sCnt}, 16
        s_add_u32 s{sCnt}, s{sCnt}, s79
        buffer_load_dword a236, v{a}, {srd(W2)}, s{sCnt} offen"""); g[-1].wr = set(); S.atomic(g)
    return S

def htouch():
    S = Stream()
    if OPT['htouch']:
        S(f"v_and_b32 v230, 31, v{vL}\nv_lshrrev_b32 v231, 5, v{vL}\nv_mul_u32_u24 v231, {112*1024}, v231\nv_lshl_add_u32 v230, v230, 7, v231\ns_lshl_b32 s87, s{sTH}, 11\ns_sub_u32 s87, s{sHst}, s87")
        S(f"buffer_load_dword a236, v230, {srd(WS)}, s87 offen")
        if OPT['htouch'] > 1: S(f"buffer_load_dword a237, v230, {srd(WS)}, s87 offen offset:64")
    return S

WSF = 48; sDone = 87
def flag_try(soff, tag, last=False, first=False):
    S = Stream(); g = Stream()
    if last:
        g.waitvm(tag); g(f"s_cmp_eq_u32 s{sDone}, 0")
    else:
        g(f"s_getreg_b32 s{WSF+2}, hwreg(HW_REG_IB_STS)\ns_and_b32 s{WSF+2}, s{WSF+2}, 0xc0000f\ns_or_b32 s{WSF+2}, s{WSF+2}, s{sDone}")
        g.append(Pseudo('CMPVM', (tag, WSF+2)))
    g(f"s_cselect_b32 s{WSF+2}, {WS_SIZE}, 0")
    g(f"s_mov_b32 s{sDone}, 0" if last else f"s_cselect_b32 s{sDone}, 0x80000000, s{sDone}")
    g(f"buffer_store_dword v{vN}, v{vL0}, {srd(WSF)}, s{soff} offen sc1")
    S.atomic(g)
    return S
def flag_init():
    S = Stream(); S(f"s_mov_b64 s[{WSF}:{WSF+1}], s[{WS}:{WS+1}]\ns_mov_b32 s{sDone}, 0\ns_mov_b32 s{sW2neg}, {(32768 - 7*65536) & 0xffffffff:#x}"); return S

def dh_loads():
    S = Stream()
    if OPT['tiny']: return S
    g = Stream(); g(f"s_lshl_b32 s{sDv}, s2, 2\nv_mov_b32 v219, s{sDv}\nglobal_load_dword a248, v219, s[{sDptr}:{sDptr+1}]"); S.atomic(g)
    g = Stream(); g(f"s_lshl_b32 s{sDv}, s{sCH}, 12\nbuffer_load_dword a249, off, {srd(SSK)}, s{sDv}"); S.atomic(g)
    return S

def hcopy_ld():
    S = one(f"s_sub_u32 s{sHC}, s{sYs}, {YT:#x}")
    for t in (f"buffer_load_dwordx4 v[232:235], v{vL16}, {srd(SSK)}, s{sHC} offen nt", f"buffer_load_dword v240, v{vL16}, {srd(SSK)}, s{sHC} offen offset:16",
              f"buffer_load_dwordx4 v[236:239], v{vL16}, {srd(SSK)}, s{sHC} offen offset:1024 nt", f"buffer_load_dword v241, v{vL16}, {srd(SSK)}, s{sHC} offen offset:1040"):
        g = Stream(); g(t, "hc"); S.atomic(g)
    return S
def hcopy_wr():
    S = one(f"s_mul_i32 s{sT1}, s{sTH}, 8320\ns_lshl_b32 s{sT0}, s{sFH}, 11\ns_add_u32 s{sT1}, s{sT1}, s{sT0}\ns_add_u32 s{sT1}, s{sT1}, {HC+32}\nv_add_u32 v242, s{sT1}, v{vL16}")
    for i in range(2):
        e = 232 + 4*i; o = 244 + 4*i
        S(f"ds_write_b128 v242, v[{e}:{e+3}] offset:{1024*i}")
        for j in range(4): S(f"v_alignbit_b32 v{o+j}, v{e+j+1 if j < 3 else 240+i}, v{e+j}, 16")
        S(f"ds_write_b128 v242, v[{o}:{o+3}] offset:{4160+1024*i}")
    return S
def hcopy_dma():
    if OPT['hcreg']: return hcopy_ld()
    S = Stream()
    S(f"s_mul_i32 s{sT0}, s{sW}, 4160")
    dma_n(S, vL16, SSK, sHC, f"s_add_u32 m0, s{sT0}, {HC+32}", "hc", samev=True, nt=OPT['hcnt'])
    return S
def hpad():
    S = Stream()
    S(f"v_accvgpr_read_b32 v230, a248\nv_accvgpr_read_b32 v231, a249\ns_lshl_b32 s{sT1}, s{sTH}, 4\nv_lshrrev_b32 v230, s{sT1}, v230\nv_lshlrev_b32 v230, 16, v230\nv_lshlrev_b32 v231, 16, v231\nv_mul_lo_u32 v231, v231, s{sFH}\nv_readfirstlane_b32 s{sDv}, v230")
    S(f"s_mul_i32 s{sT1}, s{sW}, 4160\nv_and_b32 v230, 7, v{vL}")
    g = Stream(); g(f"v_cmp_eq_u32 vcc, 7, v230\nv_lshlrev_b32 v230, 2, v230\ns_add_u32 s{sT1}, s{sT1}, {HC}\nv_cndmask_b32 v231, 0, v231, vcc\nv_add_u32 v230, s{sT1}, v230\nds_write_b32 v230, v231")
    S.atomic(g)
    return S

def g1_set(n): return FR + 16 * (n % 3)
def g1_reads(n):
    if n >= 32: return []
    i, ks = divmod(n, 4)
    st = g1_set(n); slot = i & 3; hi = slot >> 1; off = (slot & 1) * 32768
    L = []
    for u in range(2):
        for rd in range(2):
            L.append(f"ds_read_b64_tr_b16 v[{st+4*u+2*rd}:{st+4*u+2*rd+1}], v{vWA+2*hi+u} offset:{off+16384+ks*4096+rd*1024}")
    for tt in range(2):
        L.append(f"ds_read_b128 v[{st+8+4*tt}:{st+11+4*tt}], v{vQA+4*hi+ks} offset:{off+tt*4096}")
    return [L[0], L[1], L[4], L[5], L[2], L[3]]

def stat_loads(att):
    return [f"buffer_load_dwordx2 v[{STL+4*att+2*tt}:{STL+4*att+2*tt+1}], v{vSTV}, {srd(WS)}, s{sStatC} offen offset:{tt*512} sc1" for tt in range(2)]

def gemm1():
    S = Stream(); CAP = OPT['cap']
    S.waitvm("c0"); S("s_barrier")
    stamp(S, "c0")
    for t in g1_reads(0): S(t)
    for t in g1_reads(1): S(t, 'fr1')
    for i in range(8):
        S.mark(f"c{i}a")
        for ks in range(4):
            n0 = 4*i + ks; st = g1_set(n0); first = n0 == 0
            rds = g1_reads(n0 + 2)
            bar = (ks == 1 and i < 7) or n0 == 30
            if n0 == 1: S.mark("c0h")
            if n0 > 0: S.waitlg(f'fr{n0}')
            small = [st] if n0 < 30 else ([st, g1_set(31)] if n0 == 30 else [])
            if OPT['cshare'] and n0 >= 4: small = []
            for n, (u, tt) in enumerate([(0, 0), (0, 1), (1, 0), (1, 1)]):
                acc = ACC + 16 * (2*u + tt)
                c = "0" if first else vr(acc, 16)
                if bar and n == 3:
                    if OPT['prof'] == 4 and OPT['fine'] and i in (1, 2): stamp(S, f"f{i}")
                    S.mark(f"c{i}m")
                    if i == OPT['kvpos'] and not OPT['kvfill'] and not OPT['kvaft']:
                        if OPT['cshare'] and OPT['cspub'] == 2: S.extend(cs_publish())
                        if OPT['prof'] == 4 and OPT['fine']: stamp(S, "k_a")
                        S.waitvm("kvd")
                        if OPT['prof'] == 4 and OPT['fine']: stamp(S, "k_w")
                        S("s_barrier")
                        if OPT['prof'] == 4 and OPT['fine']: stamp(S, "k_b")
                        S.extend(kvpre())
                        if OPT['prof'] in (2, 4): stamp(S, "kvp")
                    if i < 7: S.waitvm(f"c{i+1}")
                    if OPT['prof'] in (2, 4) or OPT['x_meas'] or OPT['x_jit']: stamp(S, f"w{i}")
                    S.waitlg()
                S(f"v_mfma_f32_32x32x16_bf16 {vr(acc,16)}, v[{st+4*u}:{st+4*u+3}], v[{st+8+4*tt}:{st+11+4*tt}], {c}")
                k = 0
                if bar and n == 3:
                    S("s_barrier"); S.mark(f"c{i}b"); k = 2
                while rds and k < (3 if bar else 2): S(rds.pop(0), f'fr{n0+2}'); k += 1
                if n0 == 30 and n == 2 and not OPT['cshare']:
                    S(f"ds_write_b128 v{vCSW}, a[{CSACC}:{CSACC+3}]"); k += 1
                S.fill(CAP - k)
                if OPT['kvaft'] and n0 == 4*OPT['kvpos'] + 2 and n == 3:
                    S.mark("kvr"); S.extend(spread(Stream(kvpre()[10:]), chunk_dma(OPT['kvd']) if OPT['kvd'] else Stream(), OPT['kvs']))
                    if OPT['prof'] in (2, 4): stamp(S, "kvp")
                if n == 0 and not (OPT['x_nocs'] and n0 > 0):
                    for sm in small:
                        c = "0" if first else ar(CSACC, 4)
                        S(f"v_mfma_f32_16x16x32_bf16 {ar(CSACC,4)}, v[{sm}:{sm+3}], {ar(SEL,4)}, {c}")
                        S.fill(1)
        S.mark(f"c{i}e")
    return S

CSL = 200
def cs_publish():
    S = Stream(); a, b = 250, 251; T = 240
    S(f"""
    s_and_b32 s{sCsN}, s{sJ}, 1
    s_xor_b32 s{sCsN}, s{sCsN}, 1
    s_lshl_b32 s{sCsN}, s{sCsN}, 1
    v_and_b32 v{a}, 15, v{vL}
    v_lshrrev_b32 v{b}, 4, v{vL}
    v_lshlrev_b32 v{b}, 5, v{b}
    v_lshl_add_u32 v{b}, v{a}, 7, v{b}
    v_mov_b32 v{T+1}, v{vN}
    v_mov_b32 v{T+3}, v{vN}
    v_mov_b32 v{T+5}, v{vN}
    v_mov_b32 v{T+7}, v{vN}
    """)
    g = Stream(); g(f"v_cmp_gt_u32 vcc, s{sCsN}, v{a}\nv_mov_b32 v{a}, {OOB}\nv_cndmask_b32 v{b}, v{a}, v{b}, vcc"); S.atomic(g)
    for r in range(4): S(f"v_accvgpr_read_b32 v{T+2*r}, a{CSACC+r}")
    S(f"buffer_store_dwordx4 v[{T}:{T+3}], v{b}, {srd(WS)}, s{sCsW} offen sc1\nbuffer_store_dwordx4 v[{T+4}:{T+7}], v{b}, {srd(WS)}, s{sCsW} offen offset:16 sc1")
    return S
def cs_loads():
    return [f"buffer_load_dwordx2 v[{CSL+2*i}:{CSL+2*i+1}], v{vCSW}, {srd(WS)}, s{sCsR} offen offset:{1024*i} sc1" for i in range(4)]
def cs_gather():
    S = Stream(); t = CSL + 1
    check_poll(S, cs_loads(), [CSL+1, CSL+3, CSL+5, CSL+7])
    S(f"""
    v_add_f32 v{CSL}, v{CSL}, v{CSL+2}
    v_add_f32 v{CSL+4}, v{CSL+4}, v{CSL+6}
    v_and_b32 v{CSL+2}, 31, v{vL}
    v_add_f32 v{CSL}, v{CSL}, v{CSL+4}
    v_lshlrev_b32 v{CSL+2}, 2, v{CSL+2}
    v_mov_b32 v{t}, v{CSL}
    s_lshl_b32 s{sCsN}, s{sW}, 7
    s_add_u32 s{sCsN}, s{sCsN}, {CS}
    v_permlane32_swap_b32 v{CSL}, v{t}
    v_add_u32 v{CSL+2}, s{sCsN}, v{CSL+2}
    v_add_f32 v{CSL}, v{CSL}, v{t}
    ds_write_b32 v{CSL+2}, v{CSL}
    """)
    return S

def cs_reads():
    S = Stream()
    for u in range(2):
        for j in range(4): S(f"ds_read_b128 v[{CSV+16*u+4*j}:{CSV+16*u+4*j+3}], v{vCSA+u} offset:{32*j}")
    return S

def stats_consume():
    S = Stream()
    check_poll(S, stat_loads(1), [STL+5, STL+7])
    for tt in range(2):
        a1 = STL + 4 + 2*tt
        S(f"v_and_b32 v{MR+2*tt+1}, 0xffff0000, v{a1}\nv_rcp_f32 v{MR+2*tt+1}, v{MR+2*tt+1}\nv_lshlrev_b32 v{MR+2*tt}, 16, v{a1}\nv_mul_f32 v{MR+2*tt+1}, {NLOG2E:#x}, v{MR+2*tt+1}")
    return S

def epi1(inserts):
    S = Stream(); n = 0; held = []
    for u in range(2):
        for tt in range(2):
            for s in range(2):
                acc = ACC + 16*(2*u+tt) + 8*s; cs = CSV + 16*u + 8*s; W = FR + 8*(n & 1); P = FR + 16 + 4*n
                mr = f"v[{MR+2*tt}:{MR+2*tt+1}]"
                for p in range(4): S(f"v_pk_fma_f32 v[{acc+2*p}:{acc+2*p+1}], v[{cs+2*p}:{cs+2*p+1}], {mr}, v[{acc+2*p}:{acc+2*p+1}] op_sel_hi:[1,0,1] neg_lo:[0,1,0] neg_hi:[0,1,0]")
                for p in range(4): S(f"v_pk_mul_f32 v[{W+2*p}:{W+2*p+1}], v[{acc+2*p}:{acc+2*p+1}], {mr} op_sel:[0,1] op_sel_hi:[1,1]")
                for p in range(8): S(f"v_exp_f32_e64 v{W+p}, v{W+p}")
                if held and n > OPT['uat']: S(held.pop(0), "hst")
                for p in range(4): S(f"v_pk_add_f32 v[{W+2*p}:{W+2*p+1}], v[{W+2*p}:{W+2*p+1}], 1.0 op_sel_hi:[1,0]")
                for p in range(8): S(f"v_rcp_f32_e64 v{W+p}, v{W+p}")
                if held and n > OPT['uat']: S(held.pop(0), "hst")
                for p in range(4): S(f"v_pk_mul_f32 v[{W+2*p}:{W+2*p+1}], v[{acc+2*p}:{acc+2*p+1}], v[{W+2*p}:{W+2*p+1}]")
                for p in range(4): S(f"v_cvt_pk_bf16_f32 v{P+p}, v{W+2*p}, v{W+2*p+1}")
                st = f"buffer_store_dwordx4 v[{P}:{P+3}], v{vL16}, {srd(WS)}, s{sHst+2*u+tt} offen" + (" offset:1024" if s else "") + [" sc1", "", " nt", " sc0"][OPT['x_hplain']]
                if OPT['hold'] and n <= OPT['uat']: held.append(st)
                else: S(st, "hst")
                if OPT['prof'] == 3: stamp(S, f"e{n}")
                if n in inserts: S.extend(inserts[n])
                n += 1
    for st in held: S(st, "hst")
    return S

CB = 128; CACC = 64; CAF = 96; NA = 6; UST = 220
def pollA_load(): return f"buffer_load_dword v228, v{vPA}, {srd(WS)}, s{sFAp} offen sc1"
sResA = 40; sResC = 41; SA = 64
def spollA_load(): return one(f"s_load_dwordx16 s[{SA}:{SA+15}], s[{WS}:{WS+1}], s{sFAp} glc")
def u_loads(block=False):
    S = Stream()
    if block: check_poll(S, [pollA_load()], [228]); S(f"s_mov_b32 s{sResA}, 0\ns_mov_b32 s{WSO+2}, {WS_SIZE}")
    elif block is False and OPT['packa']:
        pr = lambda r: f"s[{r}:{r+1}]"
        g = Stream(); g(f"s_xor_b64 {pr(SA)}, {pr(SA)}, {pr(sN2)}")
        for r in range(2, 16, 2): g(f"s_xor_b64 {pr(SA+r)}, {pr(SA+r)}, {pr(sN2)}\ns_or_b64 {pr(SA)}, {pr(SA)}, {pr(SA+r)}")
        g(f"s_cselect_b32 s{WSO+2}, 0, {WS_SIZE}\ns_cselect_b32 s{sResA}, 1, 0"); S.atomic(g)
    elif block is False: note_poll(S, 228, sResA)
    S(f"buffer_load_dwordx4 v[{UST}:{UST+3}], v{vL16}, {srd(WSO)}, s{sU} offen sc1")
    S(f"buffer_load_dwordx4 v[{UST+4}:{UST+7}], v{vL16}, {srd(WSO)}, s{sU} offen offset:1024 sc1")
    return S

DU = 96
def conv():
    S = Stream()
    repair(S, sResA, one(f"s_mov_b32 s{WSF+2}, {WS_SIZE}\ns_mov_b32 s{sDone}, 0x80000000\nbuffer_store_dword v{vN}, v{vL0}, {srd(WSF)}, s{sFBo} offen sc1"), pollA_load(), 228, u_loads(None))
    if OPT['prof'] == 3: stamp(S, "rep")
    S(f"ds_write_b128 v{vCU}, v[{UST}:{UST+3}]\nds_write_b128 v{vCU}, v[{UST+4}:{UST+7}] offset:1024")
    S.waitvm("hc"); S.waitlg(); S("s_barrier")
    stamp(S, "conv0")
    rA = lambda c, a: CB + 64*(c & 1) + 4*a
    rB = lambda c, b: CB + 64*(c & 1) + 32 + 4*b
    def ldA(c, a):
        m = 4*a + c
        return [f"ds_read2_b32 v[{rA(c,a)+2*h}:{rA(c,a)+2*h+1}], v{vCA+(m>>3)} offset0:{32*(m&7)+2*h} offset1:{32*(m&7)+2*h+1}" for h in range(2)]
    ldB = lambda c, b: [f"ds_read_b128 v[{rB(c,b)}:{rB(c,b)+3}], v{vCB} offset:{128*(4*b+c)}"]
    pairs = [(a, b) for a in range(8) for b in range(7, a - 1, -1)]
    def loads(c):
        L = ldA(c, 0)
        for b in range(7, -1, -1): L += ldB(c, b)
        for a in range(1, 8): L += ldA(c, a)
        return L
    q = loads(0)
    for t in q[:6]: S(t)
    q = q[6:]
    S.mark("cva"); seenT = set(); p = 0
    for c in range(4):
        nq = loads(c + 1) if c < 3 else []
        if c > 0 and OPT['cvwait']: S.waitlg(f"cl{c}")
        for i, (a, b) in enumerate(pairs):
            T = a + 7 - b; acc = CACC + 4*T
            cc = vr(acc, 4) if T in seenT else "0"; seenT.add(T)
            S(f"v_mfma_f32_16x16x32_bf16 {vr(acc,4)}, v[{rA(c,a)}:{rA(c,a)+3}], v[{rB(c,b)}:{rB(c,b)+3}], {cc}")
            k = 0
            if q:
                for _ in range(2 if len(q) > 14 else 1):
                    if q: S(q.pop(0)); k += 1
            elif nq and (c == 0 or i % 4 != 3) and i >= 1: S(nq.pop(0), f"cl{c+1}"); k += 1
            S.fill(2 - k)
            S.mark(f"cv{p}")
            if OPT['prof'] == 3 and p in (35, 71, 107): stamp(S, f"cv{p}")
            p += 1
        for t in nq: S(t, f"cl{c+1}")
    S.mark("cve")
    stamp(S, "conv1")
    return S

def conv_du():
    S = Stream(); U = 112
    for T in range(4): S(f"ds_read_b64 v[{U+2*T}:{U+2*T+1}], v{vCD} offset:{(3-T)*512}", "du")
    S(f"v_mov_b32 v120, s{sDv}")
    return S

def conv_epi(tail):
    S = Stream(); R = 224; Y = 120; U = 112
    S.waitlg("du")
    for T in range(4):
        a = DU + 4*T
        S(f"""v_and_b32 v{a}, 0xffff0000, v{U+2*T+1}
        v_lshlrev_b32 v{a+1}, 16, v{U+2*T+1}
        v_and_b32 v{a+2}, 0xffff0000, v{U+2*T}
        v_lshlrev_b32 v{a+3}, 16, v{U+2*T}""")
        if T == 1: S(f"s_cmp_eq_u32 s{sFH}, 0\ns_cbranch_scc0 L_odd"); break
    def half(T_, keep, send):
        for T in range(4): T_(f"ds_write_b128 v{vCX}, v[{send+4*T}:{send+4*T+3}] offset:{1024*T}")
        for T in (2, 3):
            a = DU + 4*T
            T_(f"""v_and_b32 v{a}, 0xffff0000, v{U+2*T+1}
            v_lshlrev_b32 v{a+1}, 16, v{U+2*T+1}
            v_and_b32 v{a+2}, 0xffff0000, v{U+2*T}
            v_lshlrev_b32 v{a+3}, 16, v{U+2*T}""")
        for p in range(8): T_(f"v_pk_fma_f32 v[{DU+2*p}:{DU+2*p+1}], v[{DU+2*p}:{DU+2*p+1}], v[120:121], v[{keep+2*p}:{keep+2*p+1}] op_sel_hi:[1,0,1]")
    half(S, CACC, CACC + 16)
    if OPT['oddin']:
        O = Stream(); O("s_branch L_oddback\nL_odd:"); half(O, CACC + 16, CACC)
        for x in O:
            if x.cls == 'ds_st': x.cls = 'other'
        S.extend(O); S("L_oddback:")
    else:
        S("L_oddback:")
        O = Stream(); O("L_odd:"); half(O, CACC + 16, CACC); O("s_branch L_oddback"); rare.extend(O)
    S.waitlg(); S("s_barrier")
    for T in range(4): S(f"ds_read_b128 v[{R+4*T}:{R+4*T+3}], v{vCXR} offset:{1024*T}")
    S.extend(tail)
    for pr in range(2):
        for T in (2*pr, 2*pr+1):
            a = DU + 4*T
            S(f"v_pk_add_f32 v[{a}:{a+1}], v[{a}:{a+1}], v[{R+4*T}:{R+4*T+1}]\nv_pk_add_f32 v[{a+2}:{a+3}], v[{a+2}:{a+3}], v[{R+4*T+2}:{R+4*T+3}]")
            y = Y + 4*pr + 2*(T & 1)
            S(f"v_cvt_pk_bf16_f32 v{y}, v{a}, v{a+1}\nv_cvt_pk_bf16_f32 v{y+1}, v{a+2}, v{a+3}")
        y = Y + 4*pr
        S(f"v_permlane16_swap_b32 v{y}, v{y+2}\nv_permlane16_swap_b32 v{y+1}, v{y+3}")
        S(f"buffer_store_dwordx4 v[{y}:{y+3}], v{vCY}, {srd(WS)}, s{sYs} offen" + (" offset:1024" if pr else "") + " sc1", "yst")
    return S

HR = 128; XF = 224; SF = 240; TP = 192
def pollB_load(): return f"buffer_load_dword v4, v{vPB}, {srd(WS)}, s{sFBp} offen sc1"
def pollC_load(): return f"buffer_load_dword v5, v{vPC}, {srd(WS)}, s{sFCp} offen sc1"
sFBq = sFBp
def spollB_load():
    return one(f"s_load_dwordx4 s[8:11], s[{WS}:{WS+1}], s{sFBp} glc\ns_load_dwordx4 s[88:91], s[{WS}:{WS+1}], s{sFBp} offset:16 glc")
def spollB_check(S):
    k = nrare[0]; nrare[0] += 1
    g = Stream()
    n2 = f"s[{sN2}:{sN2+1}]"
    if OPT['hto']: g("s_cmp_lg_u64 s[8:9], 0")
    else:
        g(f"s_mov_b32 s91, s90\ns_xor_b64 s[8:9], s[8:9], {n2}")
        for r in (10, 88, 90): g(f"s_xor_b64 s[{r}:{r+1}], s[{r}:{r+1}], {n2}\ns_or_b64 s[8:9], s[8:9], s[{r}:{r+1}]")
    g(f"s_cbranch_scc1 L_rare{k}\nL_back{k}:")
    S.atomic(g)
    rare(f"L_rare{k}:\ns_mov_b32 s{sCnt}, 0")
    if OPT['prof']: rare(f"v_writelane_b32 v{vPROF}, 1, {52+k}")
    if OPT['srare']:
        rare(f"L_rl{k}:"); rare.extend(spollB_load()); rare("s_waitcnt lgkmcnt(0)")
        rare(f"s_mov_b32 s91, s90\ns_xor_b64 s[8:9], s[8:9], {n2}")
        for r in (10, 88, 90): rare(f"s_xor_b64 s[{r}:{r+1}], s[{r}:{r+1}], {n2}\ns_or_b64 s[8:9], s[8:9], s[{r}:{r+1}]")
        rare(f"s_cbranch_scc0 L_back{k}\ns_sleep 1\ns_add_u32 s{sCnt}, s{sCnt}, 1\ns_cmp_lt_u32 s{sCnt}, 0x4000\ns_cbranch_scc1 L_rl{k}\ns_branch L_back{k}")
        return
    rare(f"L_rl{k}:\ns_sleep 1\nbuffer_load_dword v4, v{vPB}, {srd(WS)}, s{sFBq} offen sc1\ns_waitcnt vmcnt(0)\nv_cmp_ne_u32 vcc, s{sN}, v4")
    rare(f"s_nop 1\ns_cbranch_vccz L_back{k}\ns_add_u32 s{sCnt}, s{sCnt}, 1\ns_cmp_lt_u32 s{sCnt}, 0x4000\ns_cbranch_scc1 L_rl{k}\ns_branch L_back{k}")
def htouch_pro():
    S = Stream(); a, b = 6, 7
    g = Stream(); g(f"v_cmp_lt_u32 vcc, 27, v{vL}\nv_lshlrev_b32 v{a}, 10, v{vL}\nv_mov_b32 v{b}, {112*1024 - 28*1024}\nv_cndmask_b32 v{b}, 0, v{b}, vcc\nv_add_u32 v{a}, v{a}, v{b}"); S.atomic(g)
    g = Stream(); g(f"v_cmp_lt_u32 vcc, 55, v{vL}\nv_mov_b32 v{b}, {OOB}\ns_min_u32 s93, s{sHL}, s{sHLo}\nv_cndmask_b32 v{a}, v{a}, v{b}, vcc"); S.atomic(g)
    S(f"s_lshl_b32 s{sT1}, s{sRot}, 12\ns_sub_u32 s93, s93, s{sT1}\ns_lshl_b32 s{sT1}, s{sCB2}, 7\ns_add_u32 s93, s93, s{sT1}")
    return S
def htouch_go():
    S = Stream(); g = Stream(); n2 = f"s[{sN2}:{sN2+1}]"
    g(f"s_mov_b32 s91, s90\ns_xor_b64 s[8:9], s[8:9], {n2}")
    for r in (10, 88, 90): g(f"s_xor_b64 s[{r}:{r+1}], s[{r}:{r+1}], {n2}\ns_or_b64 s[8:9], s[8:9], s[{r}:{r+1}]")
    g(f"s_cselect_b32 s{WSO+2}, 0, {WS_SIZE}\nbuffer_load_dword a236, v6, {srd(WSO)}, s93 offen sc1")
    S.atomic(g)
    return S
def hload(n):
    D = OPT['hring']; p, k = divmod(n, 28); so = sHL if p == 0 else sHLo
    T = Stream(); g = Stream()
    g(f"buffer_load_dwordx4 v[{HR+4*(n%D)}:{HR+4*(n%D)+3}], v{vL16}, {srd(WS)}, s{so} offen" + (f" offset:{(k&3)*1024}" if k & 3 else "") + " sc1")
    if k & 3 == 3 and k < 27: g(f"s_cmp_eq_u32 s{sRot}, {6-(k>>2)}\ns_cselect_b32 s{sCnt}, s{sNeg}, 4096\ns_add_u32 s{so}, s{so}, s{sCnt}")
    T.atomic(g)
    return T
def gemm2():
    S = Stream(); D = OPT['hring']; NT = OPT['ntail']
    S.mark("g2s")
    def mf(n, u):
        p, k = divmod(n, 28); h = HR + 4*(n % D)
        acc = ACC + 32*(1-p) + 16*u; a = (2*k + u) * 4
        S(f"v_mfma_f32_32x32x16_bf16 {vr(acc,16)}, {ar(a,4)}, v[{h}:{h+3}], {'0' if k == 0 else vr(acc, 16)}")
    for n in range(56 - NT):
        for u in range(2):
            mf(n, u); used = 0
            if u == 1 and n + D < 56:
                T = flatten(hload(n + D)); S.extend(T); used = len(T)
            S.fill(5 - used)
        S.mark(f"g2_{n}")
        if (OPT['prof'] > 1 or OPT['x_meas']) and n in (0, 13, 27, 34, 41, 46, 51): stamp(S, f"g2_{n}")
    for n in range(56 - NT, 56): mf(n, 1); S.fill(5)
    S.mark("g2t")
    F = ACC + 16; Ee = ACC + 32
    tail = [f"ds_write_b128 v{vRW}, v[{F+4*j}:{F+4*j+3}] offset:{32768+1024*j}" for j in range(4)]
    for i, n in enumerate(range(56 - NT, 56)):
        mf(n, 0)
        if i == min(1, NT - 1):
            for t in tail: S(t)
        else: S.fill(5)
    S.mark("g2u")
    S.waitlg(); S("s_barrier")
    for j in range(4): S(f"ds_read_b128 v[{F+4*j}:{F+4*j+3}], v{vRR+2} offset:{32768+1024*j}")
    return S

def red_early_w():
    S = Stream()
    for u in range(2):
        for j in range(4): S(f"ds_write_b128 v{vRW}, v[{ACC+32+16*u+4*j}:{ACC+35+16*u+4*j}] offset:{4096*u+1024*j}")
    g = Stream(); g.waitlg(); g("s_barrier"); S.atomic(g)
    return S
def red_early_r():
    S = Stream(); A = ACC + 32; B = ACC + 48
    for j in range(4): S(f"ds_read_b128 v[{A+4*j}:{A+4*j+3}], v{vRR} offset:{1024*j}")
    for j in range(4): S(f"ds_read_b128 v[{B+4*j}:{B+4*j+3}], v{vRR+1} offset:{4096+1024*j}")
    for r in range(16): S(f"v_add_f32 v{A+r}, v{A+r}, v{B+r}")
    return S

FS = 8
def prep_x():
    S = Stream()
    g = Stream()
    g(f"s_add_u32 m0, s{sM0b}, {E}\ns_add_u32 s{sT0}, s{sXO}, 15360\nbuffer_load_dwordx4 v{vXD}, {srd(QF)}, s{sXO} offen lds")
    g(f"buffer_load_dwordx4 v{vXD}, {srd(QF)}, s{sT0} offen offset:1024 lds", "xd")
    S.atomic(g)
    S(f"buffer_load_dwordx2 v[{FS}:{FS+1}], v{vSTV}, {srd(WS)}, s{sStatF} offen sc1")
    return S
def prep_x2():
    S = Stream(); XR = 16
    check_poll(S, [f"buffer_load_dwordx2 v[{FS}:{FS+1}], v{vSTV}, {srd(WS)}, s{sStatF} offen sc1"], [FS+1])
    S(f"v_and_b32 v{FS+1}, 0xffff0000, v{FS}\nv_rcp_f32 v{FS+1}, v{FS+1}\nv_lshlrev_b32 v{FS}, 16, v{FS}\nv_mul_f32 v{FS+2}, v{FS+1}, v{FS+1}\nv_mul_f32 v{FS+1}, {NLOG2E:#x}, v{FS+1}")
    S.waitvm("xd")
    for j in range(4):
        if j: S(f"v_xor_b32 v{FS+3}, {16*j}, v{vXA}")
        S(f"ds_read_b64 v[{XR+2*j}:{XR+2*j+1}], v{FS+3 if j else vXA}")
    for q in range(8):
        S(f"v_lshlrev_b32 v{XF+2*q}, 16, v{XR+q}\nv_and_b32 v{XF+2*q+1}, 0xffff0000, v{XR+q}")
    for r in range(16): S(f"v_sub_f32 v{SF+r}, v{XF+r}, v{FS}")
    for r in range(16): S(f"v_mul_f32 v{SF+r}, v{SF+r}, v{FS+2}")
    return S
YSR = 192
def prep_y(note=True):
    S = Stream(); YS = YSR
    if note: note_poll(S, 5, sResC)
    S(f"s_add_u32 s{sT0}, s{sYl}, 65536")
    S(f"buffer_load_dwordx4 v[{YS}:{YS+3}], v{vYL}, {srd(WSO)}, s{sYl} offen sc1\nbuffer_load_dwordx4 v[{YS+4}:{YS+7}], v{vYL}, {srd(WSO)}, s{sT0} offen sc1")
    return S
YR = 16
def prep_y2():
    S = Stream(); YS = YSR
    S(f"ds_write_b128 v{vYW}, v[{YS}:{YS+3}]\nds_write_b128 v{vYW}, v[{YS+4}:{YS+7}] offset:1024")
    for j in range(4): S(f"ds_read_b64_tr_b16 v[{YR+2*j}:{YR+2*j+1}], v{vYA} offset:{512*j}")
    return S

S2 = 200
OFL = ['', ' sc1', ' nt', ' sc0 sc1'][OPT['ofl']]
def prep_y3():
    S = prep_y2(); t = 216
    for q in range(8):
        S(f"v_lshlrev_b32 v{t+(q&1)*2}, 16, v{YR+q}\nv_and_b32 v{t+(q&1)*2+1}, 0xffff0000, v{YR+q}")
        S(f"v_mul_f32 v{S2+2*q}, v{SF+2*q}, v{t+(q&1)*2}\nv_mul_f32 v{S2+2*q+1}, v{SF+2*q+1}, v{t+(q&1)*2+1}")
    return S
def final():
    S = Stream(); A = ACC; F = ACC + 16; Ee = ACC + 32; W = HR; P = HR + 16; Yf = HR + 32
    stamp(S, "g2end")
    pr = lambda b, p: f"v[{b+2*p}:{b+2*p+1}]"
    mr = f"v[{FS}:{FS+1}]"
    for p in range(8): S(f"v_pk_add_f32 {pr(A,p)}, {pr(A,p)}, {pr(Ee,p)}")
    if OPT['ypre']:
        repair(S, sResC, Stream(), pollC_load(), 5, cat(prep_y(False), prep_y3()))
        S(f"s_add_u32 s{sT0}, s{sXO}, 16384")
        for h in range(2):
            ps = range(4*h, 4*h + 4)
            for p in ps: S(f"v_pk_add_f32 {pr(A,p)}, {pr(A,p)}, {pr(F,p)}")
            for p in ps: S(f"v_pk_mul_f32 {pr(W,p)}, {pr(A,p)}, {mr} op_sel:[0,1] op_sel_hi:[1,1]")
            for p in ps: S(f"v_exp_f32_e64 v{W+2*p}, v{W+2*p}\nv_exp_f32_e64 v{W+2*p+1}, v{W+2*p+1}")
            for p in ps: S(f"v_pk_mul_f32 {pr(A,p)}, {pr(A,p)}, {pr(S2,p)}")
            for p in ps: S(f"v_pk_add_f32 {pr(W,p)}, {pr(W,p)}, 1.0 op_sel_hi:[1,0]")
            for p in ps: S(f"v_rcp_f32_e64 v{W+2*p}, v{W+2*p}\nv_rcp_f32_e64 v{W+2*p+1}, v{W+2*p+1}")
            for p in ps: S(f"v_pk_fma_f32 {pr(W,p)}, {pr(A,p)}, {pr(W,p)}, {pr(XF,p)}")
            for p in ps: S(f"v_cvt_pk_bf16_f32 v{P+p}, v{W+2*p}, v{W+2*p+1}")
            for j in (2*h, 2*h+1): S(f"ds_write_b64 v{vOW}, v[{P+2*j}:{P+2*j+1}] offset:{16*j}")
    else:
        for p in range(8): S(f"v_pk_add_f32 {pr(A,p)}, {pr(A,p)}, {pr(F,p)}")
        for p in range(8): S(f"v_pk_mul_f32 {pr(W,p)}, {pr(A,p)}, {mr} op_sel:[0,1] op_sel_hi:[1,1]")
        for p in range(16): S(f"v_exp_f32_e64 v{W+p}, v{W+p}")
        S.extend(prep_y2())
        for p in range(8): S(f"v_pk_add_f32 {pr(W,p)}, {pr(W,p)}, 1.0 op_sel_hi:[1,0]")
        for p in range(16): S(f"v_rcp_f32_e64 v{W+p}, v{W+p}")
        for p in range(8): S(f"v_pk_mul_f32 {pr(A,p)}, {pr(A,p)}, {pr(SF,p)}")
        for p in range(8): S(f"v_pk_mul_f32 {pr(A,p)}, {pr(A,p)}, {pr(W,p)}")
        repair(S, sResC, Stream(), pollC_load(), 5, cat(prep_y(False), prep_y2()))
        for j in range(4):
            for q in (2*j, 2*j+1): S(f"v_lshlrev_b32 v{Yf+2*q}, 16, v{YR+q}\nv_and_b32 v{Yf+2*q+1}, 0xffff0000, v{YR+q}")
            for p in (2*j, 2*j+1): S(f"v_pk_fma_f32 {pr(W,p)}, {pr(A,p)}, {pr(Yf,p)}, {pr(XF,p)}")
            for p in (2*j, 2*j+1): S(f"v_cvt_pk_bf16_f32 v{P+p}, v{W+2*p}, v{W+2*p+1}")
            S(f"ds_write_b64 v{vOW}, v[{P+2*j}:{P+2*j+1}] offset:{16*j}")
        S(f"s_add_u32 s{sT0}, s{sXO}, 16384")
    S(f"ds_read_b128 v[{W}:{W+3}], v{vOR}\nds_read_b128 v[{W+4}:{W+7}], v{vOR} offset:1280")
    S(f"buffer_store_dwordx4 v[{W}:{W+3}], v{vOS}, {srd(OUT)}, s{sXO} offen{OFL}\nbuffer_store_dwordx4 v[{W+4}:{W+7}], v{vOS}, {srd(OUT)}, s{sT0} offen{OFL}")
    if OPT['prof']:
        stamp(S, "outst"); S("s_waitcnt vmcnt(0)"); stamp(S, "end")
        S(f"s_lshl_b32 s{sT0}, s2, 2\ns_add_u32 s{sT0}, s{sT0}, s{sW}\ns_lshl_b32 s{sT0}, s{sT0}, 8\ns_add_u32 s{sT0}, s{sT0}, {PROF}\nv_lshlrev_b32 v{vT}, 2, v{vL}")
        S(f"buffer_store_dword v{vPROF}, v{vT}, {srd(WS)}, s{sT0} offen")
    return S

def stS(name):
    s = Stream(); stamp(s, name); return s
def cat(*ss):
    o = Stream()
    for s in ss: o.extend(s)
    return o
def one(t, tag=None):
    s = Stream(); s(t, tag); return s

def group_vcc(S):
    o = Stream(); i = 0
    while i < len(S):
        if 'vcc_lo' in S[i].wr:
            j = i + 1
            while 'vcc_lo' not in S[j].rd: j += 1
            o.atomic(S[i:j+1]); i = j + 1
        else: o.append(S[i]); i += 1
    return o
def spread(S, items, every):
    o = Stream(); items = list(items); n = 0
    for x in S:
        o.append(x); n += 1
        if items and n % every == 0:
            while items and items[0].cls == 'pseudo' and items[0].op != 'GROUP': o.append(items.pop(0))
            if items: o.append(items.pop(0))
    o.extend(items)
    return o

def build():
    assert not (OPT['cshare'] and OPT['map47'])
    P = Stream()
    P.extend(entry())
    c1 = chunk_dma(1); c2 = chunk_dma(2); kp = OPT['kvpos']; g1f = []
    st = stats()
    pre = cat(one(pollA_load().replace("v228,", "a233,")), one(pollB_load().replace("v4,", "a234,")), one(pollC_load().replace("v5,", "a235,"))) if OPT['pretouch'] else Stream()
    br = one(f"s_cmp_ge_u32 s{sCB1}, 14\ns_cbranch_scc1 L_spare1")
    if kp >= 2:
        P.extend(spread(cat(*[coff(i) for i in range(2, 8)], setup(), kv_pro()), c1[:OPT['c1n']], 20))
        stamp(P, "setup")
        P.extend(st[:16])
        if OPT['fine']: stamp(P, "rows")
        P.extend(spread(Stream(st[16:]), cat(c1[OPT['c1n']:], c2[:OPT['c2n']]), OPT['ssp']))
        if OPT['fine']: stamp(P, "stats")
        P.extend(br)
        seq = cat(c2[OPT['c2n']:], kv_dma(), dh_loads(), chunk_dma(3), Stream([Pseudo('GATE', 'c0b')]), chunk_dma(4), Stream([Pseudo('GATE', 'c1b')]), chunk_dma(5) if OPT['c5e'] else Stream())
        isl = lambda it: any(y.cls in ('dma', 'vmem_ld') for y in (it.arg if (it.cls == 'pseudo' and it.op == 'GROUP') else [it]))
        li = [i for i, it in enumerate(seq) if isl(it)]
        a0 = li[OPT['r0']]; a1 = li[OPT['r1'] - (3 if OPT['tiny'] else 0)]
        ng = lambda st: Stream([x for x in st if not (x.cls == 'pseudo' and x.op == 'GATE')])
        assert not any(x.op == 'GATE' for x in seq[:a0]) and not any(x.op == 'GATE' and x.arg == 'c1b' for x in seq[:a1])
        g1f.append(("c0a", "c0m", Stream(seq[:a0]), (OPT['p0'],)))
        g1f.append(("c0b", "c1m", ng(seq[a0:a1]), (OPT['p1'],)))
        g1f.append(("c1b", "c2m", ng(seq[a1:]), (OPT['p2'],)))
        g1f.append(("c1b", "c2m", cat(setup_b(), kv_addr())))
    else:
        kd = kv_dma(); n0 = OPT['kvn']
        P.extend(kv_pro())
        early = Stream(kd[:n0]) if kp == 0 else Stream(c1[:OPT['c1n']])
        P.extend(spread(cat(*[coff(i) for i in range(2, 8)], setup(), kv_addr()), early, 20))
        stamp(P, "setup")
        late = cat(kd[n0:], dh_loads(), c1) if kp == 0 else cat(c1[OPT['c1n']:], kd, dh_loads())
        P.extend(st[:16]); P.extend(spread(Stream(st[16:]), late, 6)); P.extend(br)
        g1f.append(("c0a", "c0m", setup_b()))
        if kp == 0:
            g1f.append(("c0a", "c0m", c2, (OPT['p0'],)))
            g1f.append(("c0b", "c1m", chunk_dma(3), (OPT['p1'],)))
            g1f.append(("c1b", "c2m", chunk_dma(4), (OPT['p2'],)))
        else:
            g1f.append(("c0a", "c0m", Stream(c2[:4]), (OPT['p0'],)))
            g1f.append(("c0b", "c1m", cat(c2[4:], chunk_dma(3)), (OPT['p1'],)))
            g1f.append(("c1b", "c2m", chunk_dma(4), (OPT['p2'],)))
    D = Stream()
    if OPT['kvd']: D.gate("kvr")
    for c in range(OPT['kvd'] + 1 if OPT['kvd'] else (6 if OPT['c5e'] else 5), 8):
        D.gate(f"c{c-4}b"); D.extend(chunk_dma(c))
    D.gate(OPT['stat_at']); D.pace(OPT['tpp']); D.extend(cat(*[one(t) for t in stat_loads(1) + (cs_loads() if OPT['cshare'] and OPT['cspub'] == 1 else [])], pre, htouch(), w2touch(range(OPT['tp'], 7)) if OPT['tp'] >= 0 else Stream())); D.pace(OPT['w2pace'])
    W2S = cat(Stream([Pseudo('GATE', 'c3b' if (OPT['kvfill'] or OPT['kvaft']) else f'c{kp}b')]), hcopy_dma(), Stream([Pseudo('GATE', 'c4b')]), w2_dma(0), Stream([Pseudo('GATE', 'c5b')]), Stream([Pseudo('CSL')]), w2_dma(1), Stream([Pseudo('GATE', 'c6b')]), w2_dma(2), w2_dma(3), cat(Stream([Pseudo('WAITLG', 'tr0')]), w2_dma(4)) if OPT['n2'] > 36 else Stream())
    isld = lambda it: it.cls == 'pseudo' and it.op == 'GROUP' and any(y.cls in ('dma', 'vmem_ld') for y in it.arg)
    idx = [i for i, it in enumerate(W2S) if isld(it)]
    cut1 = idx[OPT['n1']] if OPT['n1'] < len(idx) else len(W2S); cut2 = idx[OPT['n2']] if OPT['n2'] < len(idx) else len(W2S)
    for it in W2S[:cut1]:
        if it.cls == 'pseudo' and it.op == 'CSL':
            if OPT['cshare'] and OPT['cspub'] > 1:
                D.pace(1); D.extend(cat(*[one(t) for t in cs_loads()])); D.pace(OPT['w2pace'])
        else: D.append(it)
    g1f.append((OPT['dstart'], "c7m", D, (OPT['dp'],)))
    na, nb = (("c0a", "c0m"), ("c0b", "c1a")) if OPT['nonce_at'] == 0 else (("c0b", "c1a"), ("c1b", "c2a"))
    g1f.append((*na, nonce_get(), 1))
    g1f.append((*nb, cat(nonce_use(), stats_store()), 1))
    g1f.append(("c1a", "c1m", flag_init(), 1))
    if OPT['cshare']:
        if OPT['cspub'] == 1: g1f.append(("c1a", "c1m", cs_publish()))
        if OPT['cspub'] == 3: g1f.append(("c2b", "c3a", cs_publish()))
        g1f.append((OPT['csg'], "c7m", cs_gather()))
    ke = kp
    if OPT['kvaft']: g1f.append((f"c{kp}b", "kvr", Stream(kvpre()[:10]), 1))
    if OPT['kvfill']:
        ke = OPT['kvend']; g1f.append(("c2b", f"c{ke}m", kvpre_np()))
    pts = [(f"c{c}{x}", f"c{c}{y}") for c in range(ke + 1, 8) for x, y in (("a", "m"), ("b", "e"))][OPT['ft0']:OPT['ft0'] + 4]
    lastA = len(pts) == 4
    for i, (a, b) in enumerate(pts): g1f.append((a, b, flag_try(sFAo, "kv1", lastA and i == 3), 1))
    g1f.append(((f"c{ke}b", "c7a") if OPT['kvfill'] else ("c3a", "c5a")) + (setup_c(),) if not OPT['x_late'] else ("c7b", "c7e", setup_c())); g1f.append(("c6a", "c7m", hoffs()[:1] if OPT['packa'] else hoffs()))
    g1f.append(("c7a", "c7m", stats_consume()))
    if OPT['defer']: g1f.append(("kvr", "c5b", group_vcc(setup_late())))
    if OPT['hcreg']: g1f.append((OPT['hcw'], "c7m", hcopy_wr()))
    if OPT['hto']: g1f.append(("c5b", "c6m", htouch_pro()))
    if OPT['trg1'] >= 1: g1f.append((OPT['tr0at'], "c7e", w2_tr(0)))
    g1f.append((f"c{max(4, ke)}b", f"c{max(4, ke)+1}m", hpad()))
    g1f.append(("c7b", "c7e", cat(cs_reads(), spollA_load() if OPT['packa'] else one(pollA_load())) if OPT['pat'] < 0 else cs_reads(), 1))
    P.extend(merge(gemm1(), g1f))
    stamp(P, "g1end")
    ins = {OPT['uat']: u_loads()}
    if OPT['pat'] >= 0: ins[OPT['pat']] = spollA_load() if OPT['packa'] else one(pollA_load())
    if not lastA: P.extend(flag_try(sFAo, "kv1", True))
    if OPT['packa']: ins[OPT['uat']].extend(hoffs2())

    nog = lambda st: Stream([x for x in st if not (x.cls == 'pseudo' and x.op in ('GATE', 'CSL'))])
    P.extend(spread(epi1(ins), nog(W2S[cut1:cut2]), OPT['esp']))
    stamp(P, "epi1")
    P("L_join:")
    W = lambda t: Stream([Pseudo('WAITLG', t)])
    G = lambda m: Stream([Pseudo('GATE', m)])
    fb = OPT['flagB_at']; t0, t1, t2, t3 = OPT['t0'], OPT['t1'], OPT['t2'], OPT['t3']; fs = OPT['fbs']; fn = OPT['fbn']
    cf = [(f"cv{fb+fs*i}", f"cv{fb+fs*i+6}", flag_try(sFBo, "hst", i == fn - 1), 1) for i in range(fn)]
    cf += [("cva", "cve", cat(G(f"cv{OPT['d3']}"), nog(W2S[cut2:]), G(f"cv{OPT['d4']}"), cat(W('tr0'), w2_dma(4)) if (OPT['n2'] <= 36 and OPT['g2w'] > 4) else Stream(), cat(W('tr1'), w2_dma(5)) if OPT['g2w'] > 5 else Stream(), cat(W('tr2'), w2_dma(6)) if OPT['g2w'] > 6 else Stream()), (OPT['cvpace'],)),
          (f"cv{OPT['pb']}", "cve", spollB_load() if OPT['packb'] else one(pollB_load()), 1)]
    if OPT['hto']: cf.append((f"cv{OPT['hto']}", "cve", htouch_go(), 1))
    if OPT['trg1'] < 1: cf.append((f"cv{t0}", f"cv{t1}", w2_tr(0)))
    if OPT['trg1'] < 2: cf.append((f"cv{t1}", f"cv{t2}", w2_tr(1)))
    cf += [(f"cv{t2}", f"cv{t3}", w2_tr(2)), (f"cv{OPT['t4']}", "cv140", w2_tr(3)), ("cv130", "cve", conv_du())]
    if OPT['trg1'] == 2: P.extend(w2_tr(1))
    HL = cat(*[hload(n) for n in range(OPT['hring'])])
    chk = Stream()
    if OPT['packb']: spollB_check(chk)
    else: check_poll(chk, [pollB_load()], [4])
    stamp(chk, "hflag")
    hc = OPT['hcv']
    if hc: cf.insert(0, (f"cv{OPT['hcat']}", "cve", cat(chk, HL[:hc]), (OPT['hcp'],)))
    post = Stream()
    if OPT['x_cv']:
        keep = []
        for f in cf:
            txt = " ".join(x.text for x in flatten(f[2]) if x.cls != 'pseudo')
            kind = 1 if " lds" in txt else 2 if "tr_b16" in txt else 4 if "s_getreg" in txt or "s_cmp_eq_u32 s87" in txt else 8
            if OPT['x_cv'] & kind: post.append((kind, f[2]))
            else: keep.append(f)
        cf = keep
    P.extend(merge(conv(), cf))
    for kind in (4, 2, 1, 8):
        for k2, st2 in post:
            if k2 == kind and not (kind == 2 and any(x.tag == 'tr3' for x in st2)): P.extend(nog(st2))
    for k2, st2 in post:
        if k2 == 2 and any(x.tag == 'tr3' for x in st2): P.extend(nog(st2))
    P.extend(W('tr3'))
    if OPT['hearly']:
        P.extend(Stream() if hc else chk)
        ce = conv_epi(Stream()); ia = [i for i, x in enumerate(ce) if x.op == 's_cmp_eq_u32'][0]; ib = [i for i, x in enumerate(ce) if x.text.startswith('L_oddback')][0]
        h1 = max(hc, OPT['he1'])
        P.extend(spread(Stream(ce[:ia]), HL[hc:h1], 3)); P.extend(ce[ia:ib+1]); P.extend(spread(Stream(ce[ib+1:]), HL[h1:OPT['hearly']], OPT['hesp']))
        stamp(P, "conv2"); P.extend(HL[OPT['hearly']:])
    else:
        P.extend(conv_epi(prep_x())); stamp(P, "conv2")
        P.extend(chk)
        if OPT['pre2']:
            work = cat(w2_tr(4) if OPT['pre2'] > 1 else Stream(), prep_x2())
            P.extend(HL[:OPT['hl1']]); P.extend(spread(work, HL[OPT['hl1']:OPT['hl0']], OPT['psp']))
        else:
            P.extend(HL[:OPT['hl0']])
            if OPT['trmid']: P.extend(cat(w2_tr(4), w2_tr(5), w2_tr(6)))
            if OPT['xmid']: P.extend(prep_x2())
            P.extend(HL[OPT['hl0']:]); P.extend(flag_store(sFCo, WS, "yst"))
    global SPARE_W2
    SPARE_W2 = nog(W2S[:cut2])
    if OPT['trg1'] >= 1:
        iw = [i for i, x in enumerate(SPARE_W2) if x.cls == 'pseudo' and x.op == 'WAITLG']
        iw = iw[0] if iw else len(SPARE_W2)
        SPARE_W2 = cat(SPARE_W2[:iw], w2_tr(0), SPARE_W2[iw:])
    D = OPT['ylag']
    gf = [(f"g2_{x}", f"g2_{x+1}", flag_try(sFCo, "yst", x == 12), 1) for x in (2, 5, 8, 12)] if OPT['hearly'] else []
    if OPT['hearly']:
        px = Stream(); px.atomic(prep_x()); gf.append(("g2_0", "g2_2", px, 1)); gf.append(("g2s", "g2_14", cat(w2_tr(4), w2_tr(5), w2_tr(6))))
    gw = OPT['g2w']
    if OPT['hearly']: pass
    elif OPT['pre2']:
        gf.append(("g2s", "g2_8", Stream(HL[OPT['hl0']:]), (2,)))
        gf += [(f"g2_{x}", f"g2_{x+1}", flag_try(sFCo, "yst", x == 2), 1) for x in (2,)]
        gf.append(("g2_1", "g2_14", cat(*[w2_tr(b) for b in range(4 + (OPT['pre2'] > 1), 7)])))
    elif OPT['trmid'] and not OPT['hearly']: pass
    elif OPT['trpre']: P.extend(cat(*[w2_tr(b) for b in range(4, gw)]))
    else: gf.append(("g2s", "g2_14", cat(*[w2_tr(b) for b in range(4, gw)])))
    if gw < 7:
        gf.append((f"g2_{OPT['gw0']}", "g2_20", cat(*[w2_dma(b) for b in range(gw, 7)]), (OPT['gwp'],)))
        for b in range(gw, 7): gf.append((f"g2_{4*b-5}", f"g2_{4*b-1}", w2_tr(b)))
    gf += [
          ("g2_14", "g2_27", Stream() if (OPT['xmid'] and not OPT['hearly']) else prep_x2()),
          ("g2_28", f"g2_{OPT['rw1']}", Stream(red_early_w()[:8])), (f"g2_{OPT['rw1']+OPT['rwl']}", f"g2_{OPT['rw1']+OPT['rwl']+1}", Stream(red_early_w()[8:]), 1),
          (f"g2_{OPT['rw1']+OPT['rwl']+1}", "g2_49", red_early_r()),
          (f"g2_{OPT['yat']}", f"g2_{OPT['yat']+1}", one(pollC_load())),
          (f"g2_{OPT['yat']+D}", "g2t", prep_y(), 1)]
    if OPT['ypre']: gf.append((f"g2_{OPT['ypre']}", "g2u", prep_y3()))
    P.extend(merge(gemm2(), gf))
    P.extend(final())
    if OPT['x_meas']:
        P(f"s_cmp_ge_u32 s{sCB1}, 14\ns_cbranch_scc1 L_end")
        if OPT['x_wg'] >= 0: P(f"s_and_b32 s64, s2, {OPT['x_wgm']}\ns_cmp_lg_u32 s64, {OPT['x_wg']}\ns_cbranch_scc1 L_end")
        P(f"v_readlane_b32 s66, v{vPROF}, 0\nL_pad:\ns_memrealtime s[64:65]\ns_waitcnt lgkmcnt(0)\ns_sub_u32 s64, s64, s66\ns_cmp_lt_u32 s64, 2000\ns_cbranch_scc1 L_pad")
    if OPT['x_pad']:
        P(f"L_pad:\ns_memrealtime s[64:65]\ns_waitcnt lgkmcnt(0)\ns_sub_u32 s64, s64, s{sN}\ns_cmp_lt_u32 s64, {OPT['x_pad']}\ns_cbranch_scc1 L_pad")
    P("L_end:\ns_endpgm")
    P = flatten(P)
    kv_last = max(i for i, x in enumerate(P) if x.tag == 'kvd')
    sb_first = min(i for i, x in enumerate(P) if x.cls == 'salu' and f"s{sFBo}" in x.wr and 'mov' not in x.op)
    assert kv_last < sb_first, "k/v SRDs overwritten before use"
    last = None
    for x in P:
        if x.cls == 'salu' and 'm0' in x.wr: last = x.text
        if x.cls == 'dma' and x.arg is not None: assert x.arg == last, ("m0 changed under a DMA group", x.text, last)
        if x.cls == 'label' and x.text.startswith('L_join'): last = None
    c7_last = max(i for i, x in enumerate(P) if x.tag == 'c7')
    ho_first = min(i for i, x in enumerate(P) if x.text.startswith(f"s_mov_b64 s[{WSO}:{WSO+1}], s[{WS}"))
    assert c7_last < ho_first, "GEMM1 SRDs / offsets overwritten before the last chunk load"
    P = autowait(P); P = hazards(P)
    P.extend(hazards(autowait(flatten(spare1()))))
    R = hazards(flatten(rare))
    P.extend(R); P("L_codeend:")
    P = align8(P)
    return P

HEAD = open("cdna_kernels/" + NAME + ".s.ref").read().split("; Override launch")[0]
DOC = """; One persistent launch, 256 workgroups (one per CU), 4 waves each. Per workgroup, in order:
"""
def emit():
    P = build()
    size = sum(x.size for x in P)
    o = HEAD + f"; @launch grid=(256,1,1) block=(256,1,1) lds={LDS_BYTES}\n"
    o += DOC
    o += f'.amdgcn_target "amdgcn-amd-amdhsa--gfx950"\n.text\n.globl {NAME}_kernel\n.p2align 8\n.type {NAME}_kernel,@function\n{NAME}_kernel:\n'
    o += "\n".join(l for l in text(P).split("\n") if not l.strip().startswith("; MARK"))
    o += f""".section .rodata,"a"
.p2align 6
.amdhsa_kernel {NAME}_kernel
  .amdhsa_next_free_vgpr 512
  .amdhsa_next_free_sgpr 102
  .amdhsa_accum_offset 256
  .amdhsa_group_segment_fixed_size 0
  .amdhsa_kernarg_size 96
  .amdhsa_user_sgpr_count 2
  .amdhsa_user_sgpr_kernarg_segment_ptr 1
  .amdhsa_system_sgpr_workgroup_id_x 1
.end_amdhsa_kernel
"""
    return o, size

if __name__ == "__main__":
    o, size = emit()
    open(sys.argv[1], "w").write(o)
    print("code bytes (estimate):", size, "stamps:", stamp_names)
    open(sys.argv[1] + ".stamps", "w").write(",".join(stamp_names))
```

```python
import sys, struct
from ir import *

NAME = "recurrent_scan__ssm_conv_h3__dense_activation_silu__prompt"
OPT = dict(kvd=5, kvs=8, px=0, pg=2, ofl=0, x_jit=0, hesp=3, srare=1, ypre=0, rw1=38, rwl=1, packc=1, hto=0, pre2=1, hl1=1, psp=5, hcreg=1, hcw='c6b', kvaft=1, spb=0, t4=100, kvfill=0, fine=0, tiny=2, x_kvnull=0, x_w1null=0, hl0=12, trmid=1, xmid=1, x_meas=0, x_wg=-1, x_wgm=255, pk=0, g2w=7, gw0=0, gwp=2, x_pad=0, tr0at='c7a', hcv=0, hcat=108, hcp=4, msw=0, cspub=2, csg='c7a', cshare=0, ownw2=0, stch=0, st0=6, r0=4, r1=20, c4e=0, packa=1, hold=1, tpp=2, packb=1, he1=4, he2=10, x_cv=0, cvwait=1, fbs=25, fbn=3, trg1=0, trpre=1, tp=-1, pb=125, d3=0, c5e=0, stat_at='c4a', x_notry=0, x_late=0, dp=2, dstart='c2b', kvn=1, ft0=2, c3b=0, c3a=7, sw3=7, swn=1, swflag=0, c3pf=1, hcnt=1, qnt=0, hearly=0, ntail=4, dbgout=0, rotk=2, rotx=1, htouch=0, x_w2null=0, x_hcnull=0, x_hplain=0, n1=16, n2=28, d4=40, fa=6, pat=0, cvpace=4, t0=8, t1=24, t2=40, t3=56, pretouch=0, c2n=4, p0=2, p1=2, p2=2, b1n=5, b2n=5, esp=8, yat=40, ylag=8, ylate=1, map47=0, tlb=0, nonce_at=0, slowat=4, nt=1, c1n=1, kvpos=2, w2pace=5, sweep=0, uat=3, x_nokv=0, x_nocs=0, x_nodma=0, x_nobar=0, x_now2=0, onewait=1, kvend=4, cap=5, spare=1, prof=0, stats_fill=0, hring=12, flagB_at=45, codepf=1)
for a in sys.argv[2:]:
    k, v = a.split('='); OPT[k] = int(v) if v.lstrip('-').isdigit() else v

HWS = 0; KVR = 0x700000; YT = 0x900000; STATS = 0xB00000; FLA = 0xB10000; FLB = 0xB30000; FLC = 0xB50000; CSP = 0xB70000
PROF = 0xB80000; WS_SIZE = 0xC00000
E = 131072; KT = E; VT = E + 9360; HC = E; UR = E + 17680; CS = E + 26896; DUMP = CS + 512
LDS_BYTES = 163840
OOB = 0x80000000
f2u = lambda f: struct.unpack('<I', struct.pack('<f', f))[0]
NLOG2E = f2u(-1.4426950408889634)

sX, sJ, sW, sT0, sT1 = 3, 4, 5, 6, 7
Q1, QF, SKK, SVV, W1, W2, SSK, WS, WSH, OUT, DBG, SHK, KZ = 8, 12, 16, 20, 24, 28, 32, 36, 40, 44, 48, 52, 60
sDptr = 56; sN = 58; sDv = 59; sN2 = 56; sW2neg = 84
sCsW = 64; sCsR = 72; sCsN = 95
WSB = 8
sQoff = 64; sWoff = 72
sM0b = 80; sW2off = 81; sStatC = 82; sRot = 83; sStatW = 84; sFH = 85; sTH = 86; sH0 = 87
CODE = 88; sHst = 88
sM0q = 92; sM0w = 93; sP = 94; sCnt = 96; sC0 = sT0
sRB1, sCB1, sRB2, sCB2, sCH = 97, 98, 99, 100, 101
sKV0, sKV1, sFAo, sFAp, sU, sFBo, sFBp, sYs = 16, 17, 18, 19, 20, 21, 22, 23
sFCo, sFCp, sHL, sYl = 52, 53, 54, 55
sXO, sStatF, sHC, sHLo = 60, 61, 62, 63
def srd(b): return f"s[{b}:{b+3}]"

vL = 1; vL16 = 2; vL0 = 3
vQD = 4; vWD = 8; vBD = 12
vQA = 16; vWA = 24
vN = 28; vSTV = 29; vCSW = 30; vCSA = 31
vTA = 33; vCA = 37
vCB = 41; vCU = 42; vCD = 43; vCX = 44; vCXR = 45; vCY = 46
vPA = 47; vPB = 48; vPC = 49
vXD = 50; vYL = 51; vOS = 52
vXA = 53; vYW = 54; vYA = 55; vOW = 56; vOR = 57; vRW = 58; vRR = 59
vPROF = 62; vT = 63
vDV = 215; vH0 = 214
ACC = 64; FR = 128
CSACC = 244; SEL = 240; CSV = 176
STL = 208; MR = 216
def vr(b, n=1): return f"v{b}" if n == 1 else f"v[{b}:{b+n-1}]"
def ar(b, n): return f"a[{b}:{b+n-1}]"

rare = Stream(); nrare = [0]
def check_poll(S, reloads, tagregs):
    k = nrare[0]; nrare[0] += 1
    def cmp(T):
        if len(tagregs) == 1:
            T(f"v_cmp_ne_u32 vcc, s{sN}, v{tagregs[0]}")
        else:
            T(f"v_xor_b32 v{vT}, s{sN}, v{tagregs[0]}")
            for r in tagregs[1:]:
                T(f"v_xor_b32 v{r}, s{sN}, v{r}\nv_or_b32 v{vT}, v{vT}, v{r}")
            T(f"v_cmp_ne_u32 vcc, 0, v{vT}")
    g = Stream(); cmp(g); g(f"s_cbranch_vccnz L_rare{k}\nL_back{k}:")
    S.atomic(g)
    rare(f"L_rare{k}:\ns_mov_b32 s{sCnt}, 0")
    if OPT['prof']: rare(f"v_writelane_b32 v{vPROF}, 1, {52+k}")
    rare(f"L_rl{k}:\ns_sleep 1")
    for t in reloads: rare(t)
    rare("s_waitcnt vmcnt(0)")
    cmp(rare)
    rare(f"s_nop 1\ns_cbranch_vccz L_back{k}\ns_add_u32 s{sCnt}, s{sCnt}, 1\ns_cmp_lt_u32 s{sCnt}, 0x4000\ns_cbranch_scc1 L_rl{k}\ns_branch L_back{k}")

WSO = 24
def note_poll(S, tagreg, sres):
    g = Stream(); g(f"v_cmp_ne_u32 vcc, s{sN}, v{tagreg}\ns_or_b32 s{sres}, vcc_lo, vcc_hi\ns_cselect_b32 s{WSO+2}, 0, {WS_SIZE}"); S.atomic(g)
def repair(S, sres, first, reload, tagreg, redo):
    k = nrare[0]; nrare[0] += 1
    g = Stream(); g(f"s_cmp_lg_u32 s{sres}, 0\ns_cbranch_scc1 L_rare{k}\nL_back{k}:"); S.atomic(g)
    R = Stream()
    R(f"L_rare{k}:\ns_mov_b32 s{sCnt}, 0\ns_waitcnt vmcnt(0) lgkmcnt(0)")
    if OPT['prof']: R(f"v_writelane_b32 v{vPROF}, 1, {52+k}")
    R.extend(first)
    R(f"L_rl{k}:\n{reload}\ns_waitcnt vmcnt(0)\nv_cmp_ne_u32 vcc, s{sN}, v{tagreg}\ns_nop 1\ns_cbranch_vccz L_ok{k}\ns_sleep 1\ns_add_u32 s{sCnt}, s{sCnt}, 1\ns_cmp_lt_u32 s{sCnt}, 0x4000\ns_cbranch_scc1 L_rl{k}\nL_ok{k}:")
    R(f"s_mov_b32 s{WSO+2}, {WS_SIZE}")
    R.extend(autowait(flatten(redo)))
    R(f"s_waitcnt vmcnt(0) lgkmcnt(0)\ns_nop 4\ns_branch L_back{k}")
    rare.extend(R)

stamp_names = []
def stamp(S, name):
    if OPT['x_jit'] == name:
        g = Stream(); g(f"s_and_b32 s{sP}, s2, 15\ns_add_u32 s{sP}, s{sP}, s{sW}\ns_cmp_lg_u32 s{sP}, 5\ns_cbranch_scc1 L_jit\ns_sleep 127\ns_sleep 40\nL_jit:"); S.atomic(g)
    if OPT['x_meas'] == name:
        g = Stream(); g(f"s_memrealtime s[{sP}:{sP+1}]\ns_waitcnt lgkmcnt(0)\nv_writelane_b32 v{vPROF}, s{sP}, 0"); S.atomic(g)
    if not OPT['prof']: return
    k = len(stamp_names); stamp_names.append(name)
    g = Stream()
    if OPT['prof'] == 1:
        g(f"s_memrealtime s[{sP}:{sP+1}]\ns_waitcnt lgkmcnt(0)\nv_writelane_b32 v{vPROF}, s{sP}, {k}")
        g(f"s_memtime s[{sP}:{sP+1}]\ns_waitcnt lgkmcnt(0)\nv_writelane_b32 v{vPROF}, s{sP}, {k+32}")
    elif OPT['prof'] == 4:
        g(f"s_memrealtime s[{sP}:{sP+1}]\ns_waitcnt lgkmcnt(0)\nv_writelane_b32 v{vPROF}, s{sP}, {k}")
    else:
        g(f"s_memtime s[{sP}:{sP+1}]\ns_waitcnt lgkmcnt(0)\nv_writelane_b32 v{vPROF}, s{sP}, {k}")
    S.atomic(g)

def dma_n(S, vbase, srdb, soff, m0txt, tag, n=4, samev=False, nt=False):
    for i in range(n):
        g = Stream()
        if i == 0: g(m0txt)
        g(f"buffer_load_dwordx4 v{vbase + (0 if samev else i)}, {srd(srdb)}, s{soff} offen" + (f" offset:{i*1024}" if i else "") + (" nt" if nt else "") + " lds", tag if i == n-1 else None)
        g[-1].arg = m0txt
        S.atomic(g)

def chunk_dma(i, sq=None, sw=None):
    S = Stream(); slot = i & 3
    dma_n(S, vQD, Q1, sQoff + i if sq is None else sq, f"s_add_u32 m0, s{sM0q}, {slot*32768}", None, nt=OPT['qnt'])
    dma_n(S, vWD, W1, sWoff + i if sw is None else sw, f"s_add_u32 m0, s{sM0w}, {slot*32768}", f"c{i}")
    return S

def w2_half(b, h):
    S = Stream(); slot = b & 3
    dma_n(S, vBD, W2, sW2off, f"s_add_u32 m0, s{sM0b}, {slot*32768 + 4096*h}", f"b{b}" if h else None)
    first = S[0].arg
    if h == 1: first.insert(1, Ins(f"s_add_u32 s{sW2off}, s{sW2off}, 32768"))
    elif b > 0:
        first[0:0] = [Ins(f"s_cmp_eq_u32 s{sRot}, {7-b}"), Ins(f"s_cselect_b32 s{sCnt}, s{sW2neg}, 0x8000")]
        first.insert(3, Ins(f"s_add_u32 s{sW2off}, s{sW2off}, s{sCnt}"))
    return S
def w2_dma(b):
    S = w2_half(b, 0); S.extend(w2_half(b, 1)); return S

def w2_tr(b):
    S = Stream(); slot = b & 3; hi = slot >> 1
    S.waitvm(f"b{b}")
    for k4 in range(4):
        for u in range(2):
            a = ((4*b + k4) * 2 + u) * 4
            for rd in range(2):
                off = (slot & 1) * 32768 + k4 * 2048 + rd * 1024
                S(f"ds_read_b64_tr_b16 {ar(a+2*rd, 2)}, v{vTA+2*hi+u} offset:{off}", f"tr{b}")
    return S

vROW = 220
vSHK = 228
MAP = [f"""
    s_lshr_b32 s{sCB1}, s{sJ}, 1
    s_and_b32 s{sT0}, s{sJ}, 1
    s_lshl_b32 s{sRB1}, s{sX}, 1
    s_add_u32 s{sRB1}, s{sRB1}, s{sT0}
    s_mul_i32 s{sT0}, s{sT0}, {OPT['pk']}
    s_add_u32 s{sT0}, s{sT0}, s{sCB1}
    s_add_u32 s{sT0}, s{sT0}, s{sX}
    s_and_b32 s{sT0}, s{sT0}, 7
""", f"""
    s_and_b32 s{sT0}, s{sJ}, 3
    s_lshr_b32 s{sT1}, s{sX}, 1
    s_lshl_b32 s{sRB1}, s{sT1}, 2
    s_add_u32 s{sRB1}, s{sRB1}, s{sT0}
    s_mul_i32 s{sT0}, s{sT0}, {OPT['pk']}
    s_mul_i32 s{sT1}, s{sT1}, {OPT['pg']}
    s_add_u32 s{sT0}, s{sT0}, s{sT1}
    s_lshr_b32 s{sT1}, s{sJ}, 2
    s_add_u32 s{sT0}, s{sT0}, s{sT1}
    s_and_b32 s{sT0}, s{sT0}, 7
    s_and_b32 s{sCB1}, s{sX}, 1
    s_mul_i32 s{sCB1}, s{sCB1}, 7
    s_add_u32 s{sCB1}, s{sCB1}, s{sT1}
    s_cmp_eq_u32 s{sT1}, 7
    s_cselect_b32 s{sCB1}, 14, s{sCB1}
"""]
def entry():
    class SS(Stream):
        def __call__(self, text, tag=None): return Stream.__call__(self, text.replace(' NT', ' nt' if OPT['nt'] else '').replace('MAPPING', MAP[OPT['map47']]), tag)
    S = SS()
    S(f"""
    s_load_dwordx16 s[64:79], s[0:1], 0
    s_load_dwordx8 s[80:87], s[0:1], 64
    s_memrealtime s[40:41]
    s_cmp_ge_u32 s2, 256
    s_cbranch_scc1 L_end
    v_lshrrev_b32 v{vT}, 6, v0
    v_and_b32 v{vL}, 63, v0
    s_and_b32 s{sX}, s2, 7
    v_readfirstlane_b32 s{sW}, v{vT}
    s_lshr_b32 s{sJ}, s2, 3
    MAPPING
    s_mov_b32 s{QF+2}, 0x200000
    s_mov_b32 s{QF+3}, 0x20000
    s_cmp_lt_u32 s{sCB1}, 14
    s_cselect_b32 s{Q1+2}, 0x200000, 0
    s_cselect_b32 s{W1+2}, {0 if OPT['x_w1null'] else 0x1c0000}, 0
    s_mov_b32 s{Q1+3}, 0x20000
    s_mov_b32 s{W1+3}, 0x20000
    s_lshl_b32 s88, s{sX}, 5
    s_add_u32 s88, s88, s{sJ}
    s_lshl_b32 s88, s88, 2
    s_add_u32 s88, s88, s{sW}
    s_lshl_b32 s88, s88, 11
    s_lshl_b32 s89, s{sRB1}, 2
    s_add_u32 s89, s89, s{sW}
    s_lshl_b32 s89, s89, 15
    s_mul_i32 s90, s{sW}, {16*3584}
    s_lshl_b32 s{sT1}, s{sCB1}, 8
    s_add_u32 s90, s90, s{sT1}
    s_and_b32 s59, s{sJ}, 1
    s_mul_i32 s59, s59, {OPT['px']}
    s_add_u32 s59, s59, s{sT0}
    s_and_b32 s59, s59, 7
    s_lshl_b32 s58, s59, 7
    s_add_u32 s58, s58, s89
    s_mul_i32 s59, s59, {64*3584}
    s_add_u32 s59, s59, s90
    s_lshl_b32 s{sM0q}, s{sW}, 12
    s_add_u32 s{sM0w}, s{sM0q}, 16384
    s_lshr_b32 s{sT1}, s{sJ}, 3
    s_lshl_b32 s{sRB2}, s{sX}, 2
    s_add_u32 s{sRB2}, s{sRB2}, s{sT1}
    s_and_b32 s{sCB2}, s{sJ}, 7
    s_lshl_b32 s42, s{sW}, 3
    s_or_b32 s42, s42, s2
    """)
    if OPT['prof']: S(f"v_mov_b32 v{vPROF}, 0")
    S.extend(codepf())
    a, b, c, d = 232, 233, 234, 235
    S(f"""
    v_lshlrev_b32 v{vL16}, 4, v{vL}
    v_lshrrev_b32 v{a}, 5, v{vL}
    v_and_b32 v{b}, 31, v{vL}
    v_lshlrev_b32 v{b}, 4, v{b}
    v_lshl_add_u32 v236, v{a}, 10, v{b}
    v_lshrrev_b32 v{a}, 3, v{vL}
    v_and_b32 v{b}, 7, v{vL}
    v_lshrrev_b32 v{c}, 4, v{vL}
    v_xor_b32 v{d}, v{b}, v{c}
    v_lshlrev_b32 v{d}, 4, v{d}
    v_lshl_add_u32 v{vQD}, v{a}, 10, v{d}
    v_xor_b32 v{d}, 64, v{vQD}
    v_add_u32 v{vQD+1}, 7168, v{d}
    v_add_u32 v{vQD+2}, 14336, v{vQD}
    v_add_u32 v{vQD+3}, 21504, v{d}
    v_and_b32 v{d}, 15, v{vL}
    v_lshlrev_b32 v237, 2, v{c}
    v_xor_b32 v{d}, v{d}, v237
    v_lshlrev_b32 v{d}, 4, v{d}
    v_mul_u32_u24 v237, 3584, v{c}
    v_add_u32 v{vWD}, v237, v{d}
    v_add_u32 v{vWD+1}, {4*3584-1024}, v{vWD}
    v_add_u32 v{vWD+2}, {8*3584-2048}, v{vWD}
    v_add_u32 v{vWD+3}, {12*3584-3072}, v{vWD}
    v_lshlrev_b32 v{b}, 4, v{b}
    v_lshl_add_u32 v237, v{a}, 10, v{b}
    v_lshlrev_b32 v238, 4, v{a}
    """)
    if OPT['tiny']:
        S(f"""
        s_lshl_b32 s43, s{sCB2}, 2
        s_add_u32 s43, s43, s{sW}
        s_lshl_b32 s43, s43, 7
        v_add_u32 v238, s43, v238
        s_lshl_b32 s43, s2, 2
        v_mov_b32 v240, s43
        s_lshr_b32 s43, s{sW}, 1
        s_lshl_b32 s43, s43, 12
        s_lshl_b32 s91, s2, 13
        s_add_u32 s43, s43, s91
        v_mov_b32 v241, s43
        v_mov_b32 v242, 0
        v_min_u32 v243, 5, v{vL}
        v_lshlrev_b32 v243, 21, v243
        """)
    for bb, n in ((W2, 0x1c0000), (SSK, 0x200000), (WS, WS_SIZE), (OUT, 0x200000), (DBG, 256)):
        S(f"s_mov_b32 s{bb+2}, {0 if (bb == W2 and OPT['x_w2null']) or (bb == SSK and OPT['x_hcnull']) else n}")
    for bb in (W2, SSK, WS, OUT, DBG):
        S(f"s_mov_b32 s{bb+3}, 0x20000")
    S.waitlg()
    stamp(S, "karg")
    S(f"""
    s_cmp_gt_u32 s42, 7
    s_cbranch_scc1 L_nonce_done
    s_or_b32 s40, s40, 1
    v_mov_b32 v245, 0
    v_mov_b32 v244, s40
    s_mov_b64 exec, 1
    global_atomic_cmpswap v245, v[244:245], s[84:85] sc1
    s_mov_b64 exec, -1
    L_nonce_done:
    """)
    S[-3].cls = 'other'
    if OPT['tiny']:
        S(f"""
        global_load_dwordx4 v[{vSHK}:{vSHK+3}], v238, s[70:71]
        global_load_dword a248, v240, s[74:75]
        global_load_dword a249, v241, s[72:73]
        """)
        if OPT['tiny'] > 1: S(f"global_load_dword a230, v242, s[66:67]\nglobal_load_dword a231, v242, s[68:69]")
        if OPT['tiny'] > 2: S(f"global_load_dword a232, v242, s[80:81]\nglobal_load_dword a233, v243, s[86:87]")
    S(f"""
    s_mov_b64 s[{QF}:{QF+1}], s[64:65]
    s_mov_b64 s[{Q1}:{Q1+1}], s[64:65]
    s_mov_b64 s[{W1}:{W1+1}], s[78:79]
    buffer_load_dwordx4 v[{vROW}:{vROW+3}], v236, {srd(QF)}, s88 offen NT
    buffer_load_dwordx4 v[{vROW+4}:{vROW+7}], v236, {srd(QF)}, s88 offen offset:512 NT
    """)
    mv = Stream()
    mv(f"""
    s_mov_b64 s[{SKK}:{SKK+1}], s[66:67]
    s_mov_b64 s[{KZ}:{KZ+1}], s[66:67]
    s_mov_b64 s[{SVV}:{SVV+1}], s[68:69]
    s_mov_b64 s[{SHK}:{SHK+1}], s[70:71]
    s_mov_b64 s[{SSK}:{SSK+1}], s[72:73]
    s_mov_b64 s[{sDptr}:{sDptr+1}], s[74:75]
    s_mov_b64 s[{W2}:{W2+1}], s[80:81]
    s_mov_b64 s[{OUT}:{OUT+1}], s[82:83]
    s_mov_b64 s[{DBG}:{DBG+1}], s[84:85]
    s_mov_b64 s[{WS}:{WS+1}], s[86:87]
    """)
    S.extend(chunk_dma(0, 58, 59)); S.extend(mv)
    if OPT['tlb']:
        S(f"""
        v_min_u32 v240, 5, v{vL}
        v_lshlrev_b32 v240, 21, v240
        v_mov_b32 v241, 0
        buffer_load_dword a240, v240, {srd(WS)}, 0 offen
        global_load_dword a241, v241, s[66:67]
        global_load_dword a242, v241, s[68:69]
        global_load_dword a243, v241, s[80:81]
        global_load_dword a244, v241, s[82:83]
        """.replace("a24", "a23"))
    S.extend(coff(1))
    return S

def coff(i):
    S = Stream()
    S(f"""
    s_and_b32 s{sT1}, s{sJ}, {1 if OPT['px'] else 0}
    s_mul_i32 s{sT1}, s{sT1}, {OPT['px']}
    s_xor_b32 s{sT1}, s{sT1}, {i}
    s_add_u32 s{sT1}, s{sT1}, s{sC0}
    s_and_b32 s{sT1}, s{sT1}, 7
    s_lshl_b32 s{sQoff+i}, s{sT1}, 7
    s_add_u32 s{sQoff+i}, s{sQoff+i}, s89
    s_mul_i32 s{sWoff+i}, s{sT1}, {64*3584}
    s_add_u32 s{sWoff+i}, s{sWoff+i}, s90
    """)
    return S
def codepf():
    S = Stream()
    if OPT['codepf']:
        S(f"""
        s_getpc_b64 s[16:17]
        L_pc:
        s_mov_b32 s18, L_codeend-L_pc
        s_mov_b32 s19, 0x20000
        s_lshl_b32 s20, s{sJ}, 2
        s_add_u32 s20, s20, s{sW}
        s_lshl_b32 s20, s20, 8
        v_lshlrev_b32 v238, 2, v{vL}
        buffer_load_dword a252, v238, s[16:19], s20 offen
        """)
    return S

def kv_pro():
    S = Stream()
    S(f"""
    s_cmp_lg_u32 s{sRB2}, 0
    s_cselect_b32 s{KZ+2}, 0x200000, 0
    s_mov_b32 s{KZ+3}, 0x20000
    s_mov_b32 s{SKK+2}, {0 if OPT['x_kvnull'] else 0x200000}
    s_mov_b32 s{SKK+3}, 0x20000
    s_mov_b32 s{SVV+2}, {0 if OPT['x_kvnull'] else 0x200000}
    s_mov_b32 s{SVV+3}, 0x20000
    s_mov_b32 s{SHK+2}, 4096
    s_mov_b32 s{SHK+3}, 0x20000
    s_lshl_b32 s40, s{sRB2}, 16
    s_lshl_b32 s41, s{sCB2}, 7
    s_add_u32 s40, s40, s41
    s_lshl_b32 s41, s{sW}, 13
    s_add_u32 s41, s41, s40
    s_add_u32 s42, s41, 32768
    s_sub_u32 s40, s40, 8192
    s_max_i32 s40, s40, 0
    s_mul_i32 s43, s{sW}, 1040
    s_lshl_b32 s87, s{sCB2}, 9
    s_lshl_b32 s{sT1}, s{sW}, 7
    s_add_u32 s87, s87, s{sT1}
    v_cmp_gt_u32 vcc, 40, v{vL}
    v_mov_b32 v239, {OOB}
    v_cndmask_b32 v239, v237, v239, vcc
    """)
    return S
def kv_dma():
    S = Stream(); nt = "nt " if OPT['nt'] else ""
    for m0, v, sr, so in ((f"s_add_u32 m0, s43, {KT+1040}", 237, SKK, 41), (f"s_add_u32 m0, s43, {VT}", 237, SVV, 41),
                          (f"s_add_u32 m0, s43, {KT+5*1040}", 237, SKK, 42), (f"s_add_u32 m0, s43, {VT+4*1040}", 237, SVV, 42),
                          (f"s_mov_b32 m0, {KT}", 239, KZ, 40)):
        g = Stream(); g(f"{m0}\nbuffer_load_dwordx4 v{v}, {srd(sr)}, s{so} offen {nt}lds"); S.atomic(g)
    if OPT['tiny']: S[-1].arg[-1].tag = "kvd"
    else: S(f"buffer_load_dwordx4 v[{vSHK}:{vSHK+3}], v238, {srd(SHK)}, s87 offen", "kvd")
    return S

def setup():
    S = Stream()
    if OPT['cshare']:
        S(f"""
        s_lshl_b32 s{sCsR}, s{sCB1}, 13
        s_add_u32 s{sCsR}, s{sCsR}, {CSP}
        s_lshl_b32 s{sCsW}, s{sC0}, 10
        s_add_u32 s{sCsW}, s{sCsW}, s{sCsR}
        s_and_b32 s{sT1}, s{sW}, 1
        s_lshl_b32 s{sT1}, s{sT1}, 9
        s_add_u32 s{sCsW}, s{sCsW}, s{sT1}
        s_lshr_b32 s{sT1}, s{sW}, 1
        s_lshl_b32 s{sT1}, s{sT1}, 8
        s_add_u32 s{sCsW}, s{sCsW}, s{sT1}
        s_lshl_b32 s{sT1}, s{sW}, 8
        s_add_u32 s{sCsR}, s{sCsR}, s{sT1}
        """)
    S(f"""
    s_and_b32 s{sFH}, s{sW}, 1
    s_lshr_b32 s{sTH}, s{sW}, 1
    s_lshl_b32 s{sCH}, s2, 1
    s_add_u32 s{sCH}, s{sCH}, s{sTH}
    s_lshl_b32 s{sM0b}, s{sW}, 13
    s_mul_i32 s{sW2off}, s{sW}, {448*1024}
    s_lshl_b32 s{sT0}, s{sCB2}, 7
    s_add_u32 s{sW2off}, s{sW2off}, s{sT0}
    s_lshr_b32 s{sRot}, s{sJ}, 3
    s_mul_i32 s{sRot}, s{sRot}, {OPT['rotk']}
    s_add_u32 s{sRot}, s{sRot}, s{sCB2}
    s_mul_i32 s{sT0}, s{sX}, {OPT['rotx']}
    s_add_u32 s{sRot}, s{sRot}, s{sT0}
    s_mul_i32 s{sT0}, s{sRot}, 37
    s_lshr_b32 s{sT0}, s{sT0}, 8
    s_mul_i32 s{sT0}, s{sT0}, 7
    s_sub_u32 s{sRot}, s{sRot}, s{sT0}
    s_lshl_b32 s{sT0}, s{sRot}, 16
    s_add_u32 s{sW2off}, s{sW2off}, s{sT0}
    s_lshl_b32 s{sStatC}, s{sRB1}, 1
    s_add_u32 s{sStatC}, s{sStatC}, s{sTH}
    s_mul_i32 s{sHst}, s{sStatC}, {2*112*1024}
    s_lshl_b32 s{sStatC}, s{sStatC}, 10
    s_add_u32 s{sStatC}, s{sStatC}, {STATS}
    s_lshl_b32 s{sT0}, s{sCB1}, 1
    s_add_u32 s{sT0}, s{sT0}, s{sFH}
    s_lshl_b32 s{sT0}, s{sT0}, 12
    s_add_u32 s{sHst}, s{sHst}, s{sT0}
    s_lshl_b32 s{sT0}, s{sTH}, 11
    s_xor_b32 s{sT1}, s{sT0}, 2048
    s_add_u32 s{sHst+2}, s{sHst}, s{sT1}
    s_add_u32 s{sHst}, s{sHst}, s{sT0}
    s_add_u32 s{sHst+1}, s{sHst}, {112*1024}
    s_add_u32 s{sHst+3}, s{sHst+2}, {112*1024}
    s_lshl_b32 s{sStatW}, s{sX}, 5
    s_add_u32 s{sStatW}, s{sStatW}, s{sJ}
    s_lshl_b32 s{sStatW}, s{sStatW}, 7
    s_lshl_b32 s{sT0}, s{sW}, 4
    s_add_u32 s{sStatW}, s{sStatW}, s{sT0}
    s_add_u32 s{sStatW}, s{sStatW}, {STATS}
    """)
    a, b, c, d, e, f = 240, 241, 242, 243, 244, 245
    a, b, c, d, e, f = 244, 245, 246, 247, 248, 249
    S(f"""
    v_mov_b32 v{a}, {OOB}
    v_cmp_eq_u32 vcc, 0, v{vL}
    v_and_b32 v{b}, 31, v{vL}
    v_lshrrev_b32 v{c}, 5, v{vL}
    v_cndmask_b32 v{vL0}, v{a}, 0, vcc
    v_lshrrev_b32 v{d}, 3, v{b}
    v_and_b32 v{e}, 7, v{vL}
    v_lshlrev_b32 v{e}, 3, v{e}
    v_lshl_add_u32 v{vSTV}, v{d}, 7, v{e}
    """)
    S(f"""
    v_lshrrev_b32 v{d}, 1, v{b}
    v_and_b32 v{d}, 7, v{d}
    v_xor_b32 v{d}, v{d}, v{c}
    v_lshlrev_b32 v{d}, 4, v{d}
    v_lshl_add_u32 v{d}, v{b}, 7, v{d}
    s_lshl_b32 s{sT0}, s{sTH}, 13
    v_add_u32 v{vQA}, s{sT0}, v{d}
    v_xor_b32 v{vQA+1}, 32, v{vQA}
    v_xor_b32 v{vQA+2}, 64, v{vQA}
    v_xor_b32 v{vQA+3}, 0x60, v{vQA}
    """)
    for k in range(4): S(f"v_add_u32 v{vQA+4+k}, 0x10000, v{vQA+k}")
    S(f"""
    v_bfe_u32 v{d}, v{vL}, 2, 2
    v_and_b32 v{e}, 3, v{vL}
    v_lshlrev_b32 v{e}, 3, v{e}
    v_bfe_u32 v{f}, v{vL}, 4, 1
    v_lshl_add_u32 v{e}, v{f}, 5, v{e}
    s_lshl_b32 s{sT0}, s{sFH}, 1
    s_add_u32 s{sT0}, s{sT0}, s{sTH}
    v_xor_b32 v{f}, s{sT0}, v{d}
    v_lshl_add_u32 v{f}, v{f}, 6, v{e}
    v_lshl_add_u32 v{f}, v{d}, 8, v{f}
    v_lshl_add_u32 v{vWA}, v{c}, 11, v{f}
    v_xor_b32 v{vWA+1}, 64, v{vWA}
    v_add_u32 v{vWA+2}, 0x10000, v{vWA}
    v_add_u32 v{vWA+3}, 0x10000, v{vWA+1}
    v_lshrrev_b32 v{f}, 1, v{d}
    v_xor_b32 v{f}, s{sFH}, v{f}
    v_lshl_add_u32 v{f}, v{f}, 6, v{e}
    v_lshl_add_u32 v{f}, v{d}, 7, v{f}
    v_lshl_add_u32 v{f}, v{c}, 9, v{f}
    v_add_u32 v{vTA}, s{sM0b}, v{f}
    v_xor_b32 v{vTA+1}, 64, v{vTA}
    v_add_u32 v{vTA+2}, 0x10000, v{vTA}
    v_add_u32 v{vTA+3}, 0x10000, v{vTA+1}
    v_lshl_add_u32 v{f}, v{d}, 6, v{e}
    v_lshl_add_u32 v{f}, v{c}, 8, v{f}
    s_add_u32 s{sT0}, s{sM0b}, {E + 2048}
    v_add_u32 v{vYA}, s{sT0}, v{f}
    v_add_u32 v{vYW}, s{sT0}, v{vL16}
    """)
    n, g = d, e
    S0 = S
    class SX(Stream):
        def __call__(self, text, tag=None):
            r = f"v_and_b32 v{a}, 31, v{vL}\nv_lshlrev_b32 v{a}, 3, v{a}\nv_lshl_add_u32 v{vCSW}, v{c}, 12, v{a}" if OPT['cshare'] else f"v_cndmask_b32 v{vCSW}, v{f}, v{a}, vcc"
            return S0(text.replace("CSWDEF", r), tag)
    SX()(f"""
    v_and_b32 v{n}, 15, v{vL}
    v_lshrrev_b32 v{g}, 4, v{vL}
    v_and_b32 v{f}, 1, v{g}
    v_cmp_eq_u32 vcc, v{n}, v{f}
    v_mov_b32 v{f}, 0x3f803f80
    v_lshlrev_b32 v{a}, 4, v{g}
    v_cndmask_b32 v{f}, 0, v{f}, vcc
    v_lshl_add_u32 v{a}, v{n}, 6, v{a}
    v_accvgpr_write_b32 a{SEL}, v{f}
    v_accvgpr_write_b32 a{SEL+1}, v{f}
    v_accvgpr_write_b32 a{SEL+2}, v{f}
    v_accvgpr_write_b32 a{SEL+3}, v{f}
    s_lshl_b32 s{sT0}, s{sFH}, 8
    s_lshl_b32 s{sT1}, s{sTH}, 7
    s_add_u32 s{sT0}, s{sT0}, s{sT1}
    s_add_u32 s{sT0}, s{sT0}, {CS}
    v_add_u32 v{a}, s{sT0}, v{a}
    v_add_u32 v{f}, {DUMP}, v{vL16}
    v_cmp_gt_u32 vcc, 2, v{n}
    v_lshlrev_b32 v{b}, 4, v{c}
    v_add_u32 v{vCSA}, s{sT0}, v{b}
    CSWDEF
    v_xor_b32 v{vCSA+1}, 0x80, v{vCSA}
    """)
    assert CS % 256 == 16 or True
    S(f"""
    v_lshrrev_b32 v{a}, 3, v{vL}
    v_and_b32 v{b}, 7, v{vL}
    v_bfe_u32 v{f}, v{vL}, 4, 1
    v_lshlrev_b32 v{f}, 2, v{f}
    v_xor_b32 v{b}, v{b}, v{f}
    v_lshlrev_b32 v{b}, 4, v{b}
    v_lshl_add_u32 v{vBD}, v{a}, 10, v{b}
    v_add_u32 v{vBD+1}, 7168, v{vBD}
    v_add_u32 v{vBD+2}, 14336, v{vBD}
    v_add_u32 v{vBD+3}, 21504, v{vBD}
    """)
    S(f"""
    v_lshlrev_b32 v{a}, 1, v{n}
    v_lshl_add_u32 v{a}, v{g}, 4, v{a}
    v_and_b32 v{b}, 1, v{n}
    v_cmp_eq_u32 vcc, 0, v{b}
    v_mov_b32 v{f}, {4160 - 2}
    s_mul_i32 s{sT0}, s{sTH}, 8320
    s_lshl_b32 s{sT1}, s{sFH}, 6
    v_cndmask_b32 v{b}, 0, v{f}, vcc
    s_add_u32 s{sT0}, s{sT0}, s{sT1}
    s_add_u32 s{sT0}, s{sT0}, {HC + 32 - 30}
    v_add3_u32 v{vCA}, v{a}, v{b}, s{sT0}
    v_add_u32 v{vCA+1}, 1024, v{vCA}
    v_add_u32 v{vCA+2}, 2048, v{vCA}
    v_add_u32 v{vCA+3}, 3072, v{vCA}
    s_mul_i32 s{sT0}, s{sTH}, 4608
    s_add_u32 s{sT0}, s{sT0}, {UR}
    v_lshlrev_b32 v{a}, 5, v{n}
    v_lshlrev_b32 v{b}, 4, v{g}
    v_sub_u32 v{b}, v{b}, v{a}
    s_add_u32 s{sT1}, s{sT1}, s{sT0}
    s_add_u32 s{sT1}, s{sT1}, 480
    v_add_u32 v{vCB}, s{sT1}, v{b}
    v_lshl_add_u32 v{b}, v{g}, 3, v{a}
    s_lshl_b32 s{sT1}, s{sFH}, 11
    s_sub_u32 s{sCnt}, s{sT0}, s{sT1}
    s_add_u32 s{sCnt}, s{sCnt}, {4088 - 1536}
    v_sub_u32 v{vCD}, s{sCnt}, v{b}
    s_add_u32 s{sT1}, s{sT1}, s{sT0}
    v_add_u32 v{vCU}, s{sT1}, v{vL16}
    v_and_b32 v{b}, 0x1f0, v{vL16}
    s_add_u32 s{sT0}, s{sT0}, 4096
    v_add_u32 v{b}, s{sT0}, v{b}
    v_mov_b32 v252, 0
    v_mov_b32 v253, 0
    v_mov_b32 v254, 0
    v_mov_b32 v255, 0
    ds_write_b128 v{b}, v[252:255]
    s_add_u32 s{sT0}, s{sM0b}, {3*32768}
    v_add_u32 v{vCX}, s{sT0}, v{vL16}
    v_xor_b32 v{vCXR}, 0x2000, v{vCX}
    v_and_b32 v{b}, 1, v{g}
    v_lshl_add_u32 v{a}, v{b}, 9, v{a}
    v_lshrrev_b32 v{b}, 1, v{g}
    v_lshl_add_u32 v{vCY}, v{b}, 4, v{a}
    v_lshlrev_b32 v{vPA}, {2 if OPT['packa'] else 7}, v{n}
    v_min_u32 v{a}, 6, v{vL}
    v_lshlrev_b32 v{vPB}, {2 if OPT['packb'] else 7}, v{a}
    v_and_b32 v{a}, 31, v{vL}
    v_lshlrev_b32 v{vPC}, {2 if OPT['packc'] else 8}, v{a}
    """)
    S(f"""
    v_lshrrev_b32 v{b}, 2, v{vL}
    v_and_b32 v{f}, 3, v{vL}
    v_lshlrev_b32 v{f}, 4, v{f}
    v_lshl_add_u32 v{vOS}, v{b}, 10, v{f}
    v_lshl_add_u32 v{vYL}, v{b}, 12, v{f}
    v_lshlrev_b32 v{d}, 4, v{g}
    v_xor_b32 v{vXD}, v{vOS}, v{d}
    v_mul_u32_u24 v{b}, 80, v{b}
    s_add_u32 s{sT0}, s{sM0b}, {E + 4096}
    v_add3_u32 v{vOR}, v{b}, v{f}, s{sT0}
    v_mul_u32_u24 v{b}, 80, v{a}
    v_lshl_add_u32 v{b}, v{c}, 3, v{b}
    v_add_u32 v{vOW}, s{sT0}, v{b}
    v_bfe_u32 v{b}, v{vL}, 2, 2
    v_lshlrev_b32 v{b}, 4, v{b}
    v_lshl_add_u32 v{b}, v{a}, 6, v{b}
    v_lshl_add_u32 v{b}, v{c}, 3, v{b}
    s_add_u32 s{sT0}, s{sM0b}, {E}
    v_add_u32 v{vXA}, s{sT0}, v{b}
    v_add_u32 v{vRW}, s{sM0b}, v{vL16}
    v_xor_b32 v{vRR}, 0x4000, v{vRW}
    v_xor_b32 v{vRR+1}, 0x6000, v{vRW}
    v_xor_b32 v{vRR+2}, 0x2000, v{vRW}
    """)
    return S

def setup_b():
    if OPT['packb']:
        pk = f"s_mul_i32 s{sT1}, s{sT0}, 37\ns_lshr_b32 s{sT1}, s{sT1}, 8\ns_lshr_b32 s{sFBo}, s{sFBo}, 3\ns_add_u32 s{sFBo}, s{sFBo}, s{sT1}\ns_lshl_b32 s{sFBo}, s{sFBo}, 7\ns_mul_i32 s{sT1}, s{sT1}, 7\ns_sub_u32 s{sT0}, s{sT0}, s{sT1}\ns_lshl_b32 s{sT0}, s{sT0}, 2\ns_add_u32 s{sFBo}, s{sFBo}, s{sT0}\ns_add_u32 s{sFBo}, s{sFBo}, {FLB}"
    else:
        pk = f"s_add_u32 s{sFBo}, s{sFBo}, s{sT0}\ns_lshl_b32 s{sFBo}, s{sFBo}, 7\ns_add_u32 s{sFBo}, s{sFBo}, {FLB}"
    if OPT['packa']:
        pa = f"s_lshl_b32 s{sFAo}, s{sT0}, 1\ns_lshr_b32 s{sT1}, s{sRB2}, 4\ns_add_u32 s{sFAo}, s{sFAo}, s{sT1}\ns_lshl_b32 s{sFAo}, s{sFAo}, 7\ns_and_b32 s{sT1}, s{sRB2}, 15\ns_lshl_b32 s{sT1}, s{sT1}, 2\ns_add_u32 s{sFAo}, s{sFAo}, s{sT1}\ns_add_u32 s{sFAo}, s{sFAo}, {FLA}\n"
        pa += f"s_lshr_b32 s{sFAp}, s{sCH}, 4\ns_lshl_b32 s{sFAp}, s{sFAp}, 8\ns_lshl_b32 s{sT0}, s{sFH}, 7\ns_sub_u32 s{sFAp}, s{sFAp}, s{sT0}\ns_add_u32 s{sFAp}, s{sFAp}, {FLA + 128}"
    else:
        pa = f"s_lshl_b32 s{sFAo}, s{sT0}, 5\ns_add_u32 s{sFAo}, s{sFAo}, s{sRB2}\ns_lshl_b32 s{sFAo}, s{sFAo}, 7\ns_add_u32 s{sFAo}, s{sFAo}, {FLA}\n"
        pa += f"s_lshr_b32 s{sFAp}, s{sCH}, 4\ns_lshl_b32 s{sFAp}, s{sFAp}, 12\ns_lshl_b32 s{sT0}, s{sFH}, 11\ns_sub_u32 s{sFAp}, s{sFAp}, s{sT0}\ns_add_u32 s{sFAp}, s{sFAp}, {FLA + 2048}"
    class SS(Stream):
        def __call__(self, text, tag=None): return Stream.__call__(self, text.replace('PACKB', pk).replace('PACKA', pa), tag)
    S = SS()
    S(f"""
    s_lshl_b32 s{sFBo}, s{sRB1}, 1
    s_add_u32 s{sFBo}, s{sFBo}, s{sTH}
    s_lshl_b32 s{sFBo}, s{sFBo}, 5
    s_lshl_b32 s{sT0}, s{sCB1}, 1
    s_add_u32 s{sT0}, s{sT0}, s{sFH}
    PACKB
    s_lshl_b32 s{sT0}, s{sCB2}, 2
    s_add_u32 s{sT0}, s{sT0}, s{sW}
    s_lshl_b32 s{sKV0}, s{sT0}, 16
    s_lshl_b32 s{sT1}, s{sRB2}, 7
    s_sub_u32 s{sKV0}, s{sKV0}, s{sT1}
    s_add_u32 s{sKV0}, s{sKV0}, {KVR + 1984*2}
    s_add_u32 s{sKV1}, s{sKV0}, 4096
    PACKA
    s_lshl_b32 s{sT0}, s{sFH}, 11
    s_lshl_b32 s{sHC}, s{sCH}, 12
    s_add_u32 s{sU}, s{sHC}, s{sT0}
    s_add_u32 s{sYs}, s{sU}, {YT}
    s_add_u32 s{sU}, s{sU}, {KVR}
    s_lshl_b32 s{sT0}, s{sFH}, 1
    s_add_u32 s{sHC}, s{sHC}, s{sT0}
    """)
    return S
def setup_c():
    S = Stream()
    S(f"""
    s_lshl_b32 s{sFBp}, s{sRB2}, {2 if OPT['packb'] else 5}
    s_mul_i32 s42, s{sW}, {1 if OPT['packb'] else 7}
    s_add_u32 s{sFBp}, s{sFBp}, s42
    s_lshl_b32 s{sFBp}, s{sFBp}, 7
    s_add_u32 s{sFBp}, s{sFBp}, {FLB}
    s_lshr_b32 s{sFCo}, s{sCH}, {5 if OPT['packc'] else 0}
    s_lshl_b32 s{sFCo}, s{sFCo}, 1
    s_add_u32 s{sFCo}, s{sFCo}, s{sFH}
    s_lshl_b32 s{sFCo}, s{sFCo}, 7
    s_and_b32 s42, s{sCH}, {31 if OPT['packc'] else 0}
    s_lshl_b32 s42, s42, 2
    s_add_u32 s{sFCo}, s{sFCo}, s42
    s_add_u32 s{sFCo}, s{sFCo}, {FLC}
    s_lshl_b32 s42, s{sCB2}, 1
    s_add_u32 s42, s42, s{sFH}
    s_lshl_b32 s{sFCp}, s42, {8 if OPT['packc'] else 13}
    s_lshr_b32 s43, s{sRB2}, 4
    s_lshl_b32 s43, s43, 7
    s_add_u32 s{sFCp}, s{sFCp}, s43
    s_add_u32 s{sFCp}, s{sFCp}, {FLC}
    s_lshl_b32 s{sYl}, s42, 17
    s_lshl_b32 s{sXO}, s42, 6
    s_lshl_b32 s42, s{sRB2}, 1
    s_add_u32 s42, s42, s{sTH}
    s_lshl_b32 s43, s42, 6
    s_add_u32 s{sYl}, s{sYl}, s43
    s_add_u32 s{sYl}, s{sYl}, {YT}
    s_lshl_b32 s43, s42, 15
    s_add_u32 s{sXO}, s{sXO}, s43
    s_lshl_b32 s{sStatF}, s42, 9
    s_add_u32 s{sStatF}, s{sStatF}, {STATS}
    s_mul_i32 s{sHLo}, s42, {112*1024}
    s_xor_b32 s42, s42, 1
    s_mul_i32 s{sHL}, s42, {112*1024}
    s_mul_i32 s42, s{sW}, {28*1024}
    s_lshl_b32 s43, s{sRot}, 12
    s_add_u32 s42, s42, s43
    s_add_u32 s{sHL}, s{sHL}, s42
    s_add_u32 s{sHLo}, s{sHLo}, s42
    """)
    return S

def hoffs2():
    return Stream()
sNeg = 92
def hoffs():
    S = Stream()
    g = Stream(); g(f"s_mov_b64 s[{WSO}:{WSO+1}], s[{WS}:{WS+1}]\ns_mov_b32 s{sNeg}, {-6*4096 & 0xffffffff:#x}\ns_mov_b32 s{sN2}, s{sN}\ns_mov_b32 s{sN2+1}, s{sN}"); S.atomic(g)
    return S

def nonce_get():
    S = Stream()
    S(f"s_load_dword s{sN}, s[{DBG}:{DBG+1}], 0")
    return S
def nonce_use(N='N'):
    S = Stream(); g = Stream()
    g(f"s_waitcnt lgkmcnt(0)\ns_cmp_eq_u32 s{sN}, 0\ns_cbranch_scc1 L_rare{N}\nL_back{N}:\nv_mov_b32 v{vN}, s{sN}")
    S.atomic(g)
    rare(f"""
    L_rare{N}:
    s_mov_b32 s{sCnt}, 0
    {"v_writelane_b32 v62, 1, 51" if OPT['prof'] else ""}
    L_rl{N}:
    s_sleep 2
    buffer_load_dword v{vN}, off, {srd(DBG)}, 0 sc1
    s_waitcnt vmcnt(0)
    v_readfirstlane_b32 s{sN}, v{vN}
    s_cmp_lg_u32 s{sN}, 0
    s_cbranch_scc1 L_back{N}
    s_add_u32 s{sCnt}, s{sCnt}, 1
    s_cmp_lt_u32 s{sCnt}, 0x4000
    s_cbranch_scc1 L_rl{N}
    s_branch L_back{N}
    """)
    return S

def stats():
    pr = lambda b: f"v[{b}:{b+1}]"
    S = Stream(); X = 176; A = 192; B = 193; C = 194
    for i in range(8): S(f"v_lshlrev_b32 v{X+2*i}, 16, v{vROW+i}\nv_and_b32 v{X+2*i+1}, 0xffff0000, v{vROW+i}")
    def allred(r):
        for m in ("quad_perm:[1,0,3,2]", "quad_perm:[2,3,0,1]", "row_half_mirror", "row_mirror"):
            S(f"v_add_f32_dpp v{r}, v{r}, v{r} {m} row_mask:0xf bank_mask:0xf")
        S(f"v_mov_b32 v{C}, v{r}\nv_permlane16_swap_b32 v{r}, v{C}\nv_add_f32 v{r}, v{r}, v{C}")
    for i in range(4): S(f"v_pk_add_f32 {pr(200+2*i)}, {pr(X+4*i)}, {pr(X+4*i+2)}")
    S(f"v_pk_add_f32 {pr(200)}, {pr(200)}, {pr(202)}\nv_pk_add_f32 {pr(204)}, {pr(204)}, {pr(206)}\nv_pk_add_f32 {pr(200)}, {pr(200)}, {pr(204)}\nv_add_f32 v{A}, v200, v201")
    allred(A)
    S(f"v_mul_f32 v{A}, {f2u(1/512):#x}, v{A}")
    for i in range(8): S(f"v_pk_add_f32 {pr(X+2*i)}, {pr(X+2*i)}, {pr(A)} op_sel_hi:[1,0] neg_lo:[0,1] neg_hi:[0,1]")
    S(f"v_pk_mul_f32 {pr(200)}, {pr(X)}, {pr(X)}\nv_pk_mul_f32 {pr(202)}, {pr(X+2)}, {pr(X+2)}")
    for i in range(2, 8): S(f"v_pk_fma_f32 {pr(200+2*(i&1))}, {pr(X+2*i)}, {pr(X+2*i)}, {pr(200+2*(i&1))}")
    S(f"v_pk_add_f32 {pr(200)}, {pr(200)}, {pr(202)}\nv_add_f32 v{B}, v200, v201")
    allred(B)
    S(f"""
    v_mul_f32 v{B}, {f2u(1/512):#x}, v{B}
    v_cvt_pk_bf16_f32 v{B}, v{B}, v{B}
    v_lshlrev_b32 v{B}, 16, v{B}
    v_add_f32 v{B}, {f2u(1e-5):#x}, v{B}
    v_cvt_pk_bf16_f32 v{B}, v{B}, v{B}
    v_lshlrev_b32 v{B}, 16, v{B}
    v_sqrt_f32 v{B}, v{B}
    v_and_b32 v{C}, 31, v{vL}
    v_cvt_pk_bf16_f32 v196, v{A}, v{B}
    v_lshrrev_b32 v{A}, 2, v{vL}
    v_mov_b32 v{B}, {OOB}
    """)
    g = Stream(); g(f"v_cmp_eq_u32 vcc, 0, v{C}\nv_cndmask_b32 v198, v{B}, v{A}, vcc"); S.atomic(g)
    return S
def stats_store():
    S = Stream()
    S(f"v_mov_b32 v197, v{vN}\nbuffer_store_dwordx2 v[196:197], v198, {srd(WS)}, s{sStatW} offen sc1")
    return S

def flag_store(soff, srdb, tag):
    S = Stream(); S.waitvm(tag)
    S(f"buffer_store_dword v{vN}, v{vL0}, {srd(srdb)}, s{soff} offen sc1")
    return S

def kv_addr():
    S = Stream(); a1, a2, a3 = 252, 253, 254
    S(f"""
    v_and_b32 v{a1}, 7, v{vL}
    v_mul_u32_u24 v{a2}, 1040, v{a1}
    v_lshrrev_b32 v{a3}, 3, v{vL}
    v_lshl_add_u32 v{a2}, v{a3}, 2, v{a2}
    s_lshl_b32 s{sT0}, s{sW}, 5
    s_add_u32 s{sT0}, s{sT0}, {KT}
    v_add_u32 v{a2}, s{sT0}, v{a2}
    v_add_u32 v255, 1040, v{a2}
    v_xor_b32 v{a1}, 7, v{a1}
    v_lshlrev_b32 v{a1}, 4, v{a1}
    v_lshl_add_u32 v{a1}, v{a3}, 13, v{a1}
    v_add_u32 v{a3}, {VT-KT}, v{a2}
    """)
    return S
def kvpre():
    S = Stream()
    KR = 232; VR = 244; KP = 176; WF = 220; O = 200
    S(f"ds_read2_b32 v[{KR}:{KR+1}], v253 offset0:160 offset1:192\nds_read_b32 v{KR+2}, v253 offset:896")
    for p in range(4): S(f"ds_read2_b32 v[{KR+4+2*p}:{KR+5+2*p}], v255 offset0:{64*p} offset1:{64*p+32}")
    for p in range(4): S(f"ds_read2_b32 v[{VR+2*p}:{VR+1+2*p}], v254 offset0:{64*p} offset1:{64*p+32}")
    for j in range(4):
        for c in range(2):
            src = vSHK + 2*c + (j >> 1)
            S(f"v_and_b32 v{WF+2*j+c}, 0xffff0000, v{src}" if j & 1 else f"v_lshlrev_b32 v{WF+2*j+c}, 16, v{src}")
    ri = lambda r: r + 3 if r < 0 else r + 4
    pr = lambda b: f"v[{b}:{b+1}]"
    for r in range(-3, 8):
        S(f"v_lshlrev_b32 v{KP+2*ri(r)}, 16, v{KR+ri(r)}\nv_and_b32 v{KP+2*ri(r)+1}, 0xffff0000, v{KR+ri(r)}")
    for t in range(8): S(f"v_pk_mul_f32 {pr(O+2*t)}, {pr(KP+2*ri(t))}, {pr(WF)}")
    for jj in range(1, 4):
        for t in range(8): S(f"v_pk_fma_f32 {pr(O+2*t)}, {pr(KP+2*ri(t-jj))}, {pr(WF+2*jj)}, {pr(O+2*t)}")
    for t in range(8): S(f"v_lshlrev_b32 v{KP+2*t}, 16, v{VR+t}\nv_and_b32 v{KP+2*t+1}, 0xffff0000, v{VR+t}")
    for t in range(8): S(f"v_pk_mul_f32 {pr(O+2*t)}, {pr(O+2*t)}, {pr(KP+2*t)}")
    for ch, Pk in enumerate((232, 236)):
        for q in range(4): S(f"v_cvt_pk_bf16_f32 v{Pk+q}, v{O+2*(7-2*q)+ch}, v{O+2*(6-2*q)+ch}")
        S(f"buffer_store_dwordx4 v[{Pk}:{Pk+3}], v252, {srd(WS)}, s{sKV0+ch} offen sc1", f"kv{ch}")
    return S

def kvpre_np():
    S = Stream()
    KR = 232; VR = 244; KL = 176; WF = 188; OA = 200; OB = 220
    S(f"ds_read2_b32 v[{KR}:{KR+1}], v253 offset0:160 offset1:192\nds_read_b32 v{KR+2}, v253 offset:896")
    for p in range(4): S(f"ds_read2_b32 v[{KR+4+2*p}:{KR+5+2*p}], v255 offset0:{64*p} offset1:{64*p+32}")
    for p in range(4): S(f"ds_read2_b32 v[{VR+2*p}:{VR+1+2*p}], v254 offset0:{64*p} offset1:{64*p+32}")
    for i in range(4):
        S(f"v_lshlrev_b32 v{WF+2*i}, 16, v{vSHK+i}\nv_and_b32 v{WF+2*i+1}, 0xffff0000, v{vSHK+i}")
    ri = lambda r: r + 3 if r < 0 else r + 4
    for r in range(-3, 8):
        S(f"v_lshlrev_b32 v{KL+ri(r)}, 16, v{KR+ri(r)}\nv_and_b32 v{KR+ri(r)}, 0xffff0000, v{KR+ri(r)}")
    for ch, (K, Oo) in enumerate(((KL, OA), (KR, OB))):
        for t in range(8): S(f"v_mul_f32 v{Oo+t}, v{K+ri(t)}, v{WF+4*ch}")
        for jj in range(1, 4):
            for t in range(8): S(f"v_fmac_f32 v{Oo+t}, v{K+ri(t-jj)}, v{WF+4*ch+jj}")
    for t in range(8):
        S(f"v_lshlrev_b32 v{KL+t}, 16, v{VR+t}\nv_and_b32 v{VR+t}, 0xffff0000, v{VR+t}")
    for t in range(8):
        S(f"v_mul_f32 v{OA+t}, v{OA+t}, v{KL+t}\nv_mul_f32 v{OB+t}, v{OB+t}, v{VR+t}")
    for ch, (Oo, Pk) in enumerate(((OA, 232), (OB, 236))):
        for q in range(4): S(f"v_cvt_pk_bf16_f32 v{Pk+q}, v{Oo+7-2*q}, v{Oo+6-2*q}")
        S(f"buffer_store_dwordx4 v[{Pk}:{Pk+3}], v252, {srd(WS)}, s{sKV0+ch} offen sc1", f"kv{ch}")
    return S

def stouch(S):
    S(f"v_lshlrev_b32 v5, 10, v{vL}\ns_lshl_b32 s66, s{sW}, 8\ns_add_u32 s72, s64, s66\ns_lshl_b32 s66, s{sW}, 1\ns_add_u32 s73, s65, s66")
    for p in range(OPT['st0'], 7):
        for c in range(2):
            S(f"""
            s_add_u32 s67, s73, {p + c}
            s_mul_i32 s69, s67, 37
            s_lshr_b32 s69, s69, 8
            s_mul_i32 s69, s69, 7
            s_sub_u32 s67, s67, s69
            s_lshl_b32 s67, s67, 16
            s_add_u32 s67, s67, s72
            buffer_load_dword a236, v5, {srd(W2)}, s67 offen offset:{128*c}
            """)
            S[-1].wr = set()

def msweep(S):
    S(f"""
    v_lshlrev_b32 v6, 7, v{vL}
    s_lshl_b32 s66, s{sX}, 2
    s_and_b32 s67, s{sJ}, 3
    s_add_u32 s66, s66, s67
    s_lshl_b32 s66, s66, 2
    s_add_u32 s66, s66, s{sW}
    s_mul_i32 s66, s66, 14336
    s_add_u32 s67, s66, 6144
    buffer_load_dword a237, v6, {srd(W2)}, s66 offen
    buffer_load_dword a238, v6, {srd(W2)}, s67 offen
    """)

def spare1():
    S = Stream()
    S("L_spare1:")
    if OPT['spb'] == 1: S("s_waitcnt vmcnt(0)\ns_barrier")
    S(f"""
    s_lshl_b32 s64, s{sX}, 2
    s_and_b32 s65, s{sJ}, 3
    s_add_u32 s64, s64, s65
    s_lshl_b32 s64, s64, 16
    s_lshl_b32 s66, s{sW}, 13
    s_add_u32 s64, s64, s66
    s_add_u32 s64, s64, 384
    s_add_u32 s66, s64, 32768
    """)
    if OPT['c3pf']:
        S(f"""
        buffer_load_dwordx4 a[64:67], v237, {srd(SKK)}, s64 offen
        buffer_load_dwordx4 a[68:71], v237, {srd(SVV)}, s64 offen
        buffer_load_dwordx4 a[72:75], v237, {srd(SKK)}, s66 offen
        buffer_load_dwordx4 a[76:79], v237, {srd(SVV)}, s66 offen
        """)
    if OPT['kvpos'] >= 2: S.extend(kv_dma())
    S(f"v_mov_b32 v4, v237")
    S.extend(nonce_get()); S.extend(setup_b()); S.extend(setup_c()); S.extend(nonce_use('M')); S.extend(stats_store())
    S.extend(kv_addr())
    S(f"""
    s_mul_i32 s64, s65, {448*1024}
    s_lshl_b32 s66, s{sW}, 14
    s_add_u32 s70, s64, s66
    s_add_u32 s70, s70, 384
    s_mul_i32 s65, s{sX}, {OPT['rotx']}
    s_add_u32 s71, s65, 3
    """)
    def c3(n):
        for i in range(n):
            S(f"""
            s_mul_i32 s69, s71, 37
            s_lshr_b32 s69, s69, 8
            s_mul_i32 s69, s69, 7
            s_sub_u32 s67, s71, s69
            s_lshl_b32 s67, s67, 16
            s_add_u32 s67, s67, s70
            s_add_u32 s68, s67, 8192
            s_add_u32 s71, s71, 1
            buffer_load_dwordx4 a[80:83], v4, {srd(W2)}, s67 offen
            buffer_load_dwordx4 a[84:87], v4, {srd(W2)}, s68 offen
            """)
            S[-1].wr = set(); S[-2].wr = set()
    if OPT['kvpos'] >= 2:
        if OPT['msw'] == 1: msweep(S)
        c3(OPT['c3a'])
        if OPT['msw'] == 2: msweep(S)
        if OPT['stch'] == 3: stouch(S)
        if OPT['spb'] == 2: S(f"s_waitcnt vmcnt({2*OPT['c3a'] + 6 + (4 if OPT['c3pf'] else 0)})\ns_barrier")
        if OPT['ownw2']: S.extend(SPARE_W2[5:5+OPT['ownw2']])
        S.waitvm("kvd")
    else:
        c3(OPT['c3a']); S(f"s_waitcnt vmcnt({2*OPT['c3a'] + 1 + (4 if OPT['c3pf'] else 0)})")
    S("s_barrier")
    S.extend(kvpre())
    S.extend(flag_init()); S(f"s_mov_b32 s{sDone}, 0x80000000")
    if OPT['msw'] == 3: msweep(S)
    S("s_barrier")
    if OPT['kvpos'] >= 2: S.extend(dh_loads())
    S.extend(SPARE_W2[:5] if OPT['ownw2'] else SPARE_W2[:8])
    S.extend(flag_store(sFAo, WS, "kv1"))
    stamp(S, "kvpub")
    if OPT['stch'] == 2: stouch(S)
    S.extend(SPARE_W2[5+OPT['ownw2']:] if OPT['ownw2'] else SPARE_W2[8:])
    c3(OPT['c3b'])
    if OPT['stch'] == 1: stouch(S)
    if OPT['tp'] >= 0: S.extend(w2touch(range(OPT['tp'], 7)))
    if OPT['sweep']:
        S(f"""
        s_lshl_b32 s66, s{sW}, 7
        s_add_u32 s64, s64, s66
        s_add_u32 s65, s65, s{sW}
        s_mov_b32 s66, {OPT['swn']}
        s_cmp_eq_u32 s{sW}, 3
        s_cbranch_scc1 L_swe
        L_sw:
        s_mul_i32 s69, s65, 37
        s_lshr_b32 s69, s69, 8
        s_mul_i32 s69, s69, 7
        s_sub_u32 s67, s65, s69
        s_lshl_b32 s67, s67, 16
        s_add_u32 s67, s67, s64
        """)
        for n in range(8):
            S(f"buffer_load_dwordx4 a[232:235], v4, {srd(W2)}, s67 offen\ns_add_u32 s67, s67, 8192"); S[-2].cls = 'other'
        S(f"""
        s_add_u32 s65, s65, 1
        s_sub_u32 s66, s66, 1
        s_cmp_lg_u32 s66, 0
        s_cbranch_scc1 L_sw
        L_swe:
        s_waitcnt vmcnt(0)
        """)
    S.extend(hcopy_wr() if OPT['hcreg'] else Stream()); S.extend(htouch_pro() if OPT['hto'] else Stream()); S.extend(hpad()); S.extend(hoffs()[:1] if OPT['packa'] else hoffs())
    if OPT['stch'] == 5:
        S("s_waitcnt vmcnt(0)"); stouch(S)
    S(pollA_load()); S.extend(u_loads(True))
    S("s_waitcnt vmcnt(0) lgkmcnt(0)")
    if OPT['stch'] == 4: stouch(S)
    S("s_branch L_join")
    return S

def w2touch(ps):
    S = Stream(); a, b = 250, 251
    g = Stream(); g(f"""v_cmp_gt_u32 vcc, 16, v{vL}
    v_lshlrev_b32 v{a}, 10, v{vL}
    v_mov_b32 v{b}, {OOB}
    v_cndmask_b32 v{a}, v{b}, v{a}, vcc"""); S.atomic(g)
    S(f"""s_lshr_b32 s79, s{sJ}, 3
    s_lshl_b32 s79, s79, 14
    s_mul_i32 s71, s{sW}, {448*1024}
    s_add_u32 s79, s79, s71
    s_lshl_b32 s71, s{sCB2}, 7
    s_add_u32 s79, s79, s71""")
    for p in ps:
        g = Stream(); g(f"""s_add_u32 s{sCnt}, s{sRot}, {p}
        s_cmp_ge_u32 s{sCnt}, 7
        s_cselect_b32 s71, 7, 0
        s_sub_u32 s{sCnt}, s{sCnt}, s71
        s_lshl_b32 s{sCnt}, s{sCnt}, 16
        s_add_u32 s{sCnt}, s{sCnt}, s79
        buffer_load_dword a236, v{a}, {srd(W2)}, s{sCnt} offen"""); g[-1].wr = set(); S.atomic(g)
    return S

def htouch():
    S = Stream()
    if OPT['htouch']:
        S(f"v_and_b32 v230, 31, v{vL}\nv_lshrrev_b32 v231, 5, v{vL}\nv_mul_u32_u24 v231, {112*1024}, v231\nv_lshl_add_u32 v230, v230, 7, v231\ns_lshl_b32 s87, s{sTH}, 11\ns_sub_u32 s87, s{sHst}, s87")
        S(f"buffer_load_dword a236, v230, {srd(WS)}, s87 offen")
        if OPT['htouch'] > 1: S(f"buffer_load_dword a237, v230, {srd(WS)}, s87 offen offset:64")
    return S

WSF = 48; sDone = 87
def flag_try(soff, tag, last=False, first=False):
    S = Stream(); g = Stream()
    if last:
        g.waitvm(tag); g(f"s_cmp_eq_u32 s{sDone}, 0")
    else:
        g(f"s_getreg_b32 s{WSF+2}, hwreg(HW_REG_IB_STS)\ns_and_b32 s{WSF+2}, s{WSF+2}, 0xc0000f\ns_or_b32 s{WSF+2}, s{WSF+2}, s{sDone}")
        g.append(Pseudo('CMPVM', (tag, WSF+2)))
    g(f"s_cselect_b32 s{WSF+2}, {WS_SIZE}, 0")
    g(f"s_mov_b32 s{sDone}, 0" if last else f"s_cselect_b32 s{sDone}, 0x80000000, s{sDone}")
    g(f"buffer_store_dword v{vN}, v{vL0}, {srd(WSF)}, s{soff} offen sc1")
    S.atomic(g)
    return S
def flag_init():
    S = Stream(); S(f"s_mov_b64 s[{WSF}:{WSF+1}], s[{WS}:{WS+1}]\ns_mov_b32 s{sDone}, 0\ns_mov_b32 s{sW2neg}, {(32768 - 7*65536) & 0xffffffff:#x}"); return S

def dh_loads():
    S = Stream()
    if OPT['tiny']: return S
    g = Stream(); g(f"s_lshl_b32 s{sDv}, s2, 2\nv_mov_b32 v219, s{sDv}\nglobal_load_dword a248, v219, s[{sDptr}:{sDptr+1}]"); S.atomic(g)
    g = Stream(); g(f"s_lshl_b32 s{sDv}, s{sCH}, 12\nbuffer_load_dword a249, off, {srd(SSK)}, s{sDv}"); S.atomic(g)
    return S

def hcopy_ld():
    S = one(f"s_sub_u32 s{sHC}, s{sYs}, {YT:#x}")
    for t in (f"buffer_load_dwordx4 v[232:235], v{vL16}, {srd(SSK)}, s{sHC} offen nt", f"buffer_load_dword v240, v{vL16}, {srd(SSK)}, s{sHC} offen offset:16",
              f"buffer_load_dwordx4 v[236:239], v{vL16}, {srd(SSK)}, s{sHC} offen offset:1024 nt", f"buffer_load_dword v241, v{vL16}, {srd(SSK)}, s{sHC} offen offset:1040"):
        g = Stream(); g(t, "hc"); S.atomic(g)
    return S
def hcopy_wr():
    S = one(f"s_mul_i32 s{sT1}, s{sTH}, 8320\ns_lshl_b32 s{sT0}, s{sFH}, 11\ns_add_u32 s{sT1}, s{sT1}, s{sT0}\ns_add_u32 s{sT1}, s{sT1}, {HC+32}\nv_add_u32 v242, s{sT1}, v{vL16}")
    for i in range(2):
        e = 232 + 4*i; o = 244 + 4*i
        S(f"ds_write_b128 v242, v[{e}:{e+3}] offset:{1024*i}")
        for j in range(4): S(f"v_alignbit_b32 v{o+j}, v{e+j+1 if j < 3 else 240+i}, v{e+j}, 16")
        S(f"ds_write_b128 v242, v[{o}:{o+3}] offset:{4160+1024*i}")
    return S
def hcopy_dma():
    if OPT['hcreg']: return hcopy_ld()
    S = Stream()
    S(f"s_mul_i32 s{sT0}, s{sW}, 4160")
    dma_n(S, vL16, SSK, sHC, f"s_add_u32 m0, s{sT0}, {HC+32}", "hc", samev=True, nt=OPT['hcnt'])
    return S
def hpad():
    S = Stream()
    S(f"v_accvgpr_read_b32 v230, a248\nv_accvgpr_read_b32 v231, a249\ns_lshl_b32 s{sT1}, s{sTH}, 4\nv_lshrrev_b32 v230, s{sT1}, v230\nv_lshlrev_b32 v230, 16, v230\nv_lshlrev_b32 v231, 16, v231\nv_mul_lo_u32 v231, v231, s{sFH}\nv_readfirstlane_b32 s{sDv}, v230")
    S(f"s_mul_i32 s{sT1}, s{sW}, 4160\nv_and_b32 v230, 7, v{vL}")
    g = Stream(); g(f"v_cmp_eq_u32 vcc, 7, v230\nv_lshlrev_b32 v230, 2, v230\ns_add_u32 s{sT1}, s{sT1}, {HC}\nv_cndmask_b32 v231, 0, v231, vcc\nv_add_u32 v230, s{sT1}, v230\nds_write_b32 v230, v231")
    S.atomic(g)
    return S

def g1_set(n): return FR + 16 * (n % 3)
def g1_reads(n):
    if n >= 32: return []
    i, ks = divmod(n, 4)
    st = g1_set(n); slot = i & 3; hi = slot >> 1; off = (slot & 1) * 32768
    L = []
    for u in range(2):
        for rd in range(2):
            L.append(f"ds_read_b64_tr_b16 v[{st+4*u+2*rd}:{st+4*u+2*rd+1}], v{vWA+2*hi+u} offset:{off+16384+ks*4096+rd*1024}")
    for tt in range(2):
        L.append(f"ds_read_b128 v[{st+8+4*tt}:{st+11+4*tt}], v{vQA+4*hi+ks} offset:{off+tt*4096}")
    return [L[0], L[1], L[4], L[5], L[2], L[3]]

def stat_loads(att):
    return [f"buffer_load_dwordx2 v[{STL+4*att+2*tt}:{STL+4*att+2*tt+1}], v{vSTV}, {srd(WS)}, s{sStatC} offen offset:{tt*512} sc1" for tt in range(2)]

def gemm1():
    S = Stream(); CAP = OPT['cap']
    S.waitvm("c0"); S("s_barrier")
    stamp(S, "c0")
    for t in g1_reads(0): S(t)
    for t in g1_reads(1): S(t, 'fr1')
    for i in range(8):
        S.mark(f"c{i}a")
        for ks in range(4):
            n0 = 4*i + ks; st = g1_set(n0); first = n0 == 0
            rds = g1_reads(n0 + 2)
            bar = (ks == 1 and i < 7) or n0 == 30
            if n0 == 1: S.mark("c0h")
            if n0 > 0: S.waitlg(f'fr{n0}')
            small = [st] if n0 < 30 else ([st, g1_set(31)] if n0 == 30 else [])
            if OPT['cshare'] and n0 >= 4: small = []
            for n, (u, tt) in enumerate([(0, 0), (0, 1), (1, 0), (1, 1)]):
                acc = ACC + 16 * (2*u + tt)
                c = "0" if first else vr(acc, 16)
                if bar and n == 3:
                    if OPT['prof'] == 4 and OPT['fine'] and i in (1, 2): stamp(S, f"f{i}")
                    S.mark(f"c{i}m")
                    if i == OPT['kvpos'] and not OPT['kvfill'] and not OPT['kvaft']:
                        if OPT['cshare'] and OPT['cspub'] == 2: S.extend(cs_publish())
                        if OPT['prof'] == 4 and OPT['fine']: stamp(S, "k_a")
                        S.waitvm("kvd")
                        if OPT['prof'] == 4 and OPT['fine']: stamp(S, "k_w")
                        S("s_barrier")
                        if OPT['prof'] == 4 and OPT['fine']: stamp(S, "k_b")
                        S.extend(kvpre())
                        if OPT['prof'] in (2, 4): stamp(S, "kvp")
                    if i < 7: S.waitvm(f"c{i+1}")
                    if OPT['prof'] in (2, 4) or OPT['x_meas'] or OPT['x_jit']: stamp(S, f"w{i}")
                    S.waitlg()
                S(f"v_mfma_f32_32x32x16_bf16 {vr(acc,16)}, v[{st+4*u}:{st+4*u+3}], v[{st+8+4*tt}:{st+11+4*tt}], {c}")
                k = 0
                if bar and n == 3:
                    S("s_barrier"); S.mark(f"c{i}b"); k = 2
                while rds and k < (3 if bar else 2): S(rds.pop(0), f'fr{n0+2}'); k += 1
                if n0 == 30 and n == 2 and not OPT['cshare']:
                    S(f"ds_write_b128 v{vCSW}, a[{CSACC}:{CSACC+3}]"); k += 1
                S.fill(CAP - k)
                if OPT['kvaft'] and n0 == 4*OPT['kvpos'] + 2 and n == 3:
                    S.mark("kvr"); S.extend(spread(Stream(kvpre()[10:]), chunk_dma(OPT['kvd']) if OPT['kvd'] else Stream(), OPT['kvs']))
                    if OPT['prof'] in (2, 4): stamp(S, "kvp")
                if n == 0 and not (OPT['x_nocs'] and n0 > 0):
                    for sm in small:
                        c = "0" if first else ar(CSACC, 4)
                        S(f"v_mfma_f32_16x16x32_bf16 {ar(CSACC,4)}, v[{sm}:{sm+3}], {ar(SEL,4)}, {c}")
                        S.fill(1)
        S.mark(f"c{i}e")
    return S

CSL = 200
def cs_publish():
    S = Stream(); a, b = 250, 251; T = 240
    S(f"""
    s_and_b32 s{sCsN}, s{sJ}, 1
    s_xor_b32 s{sCsN}, s{sCsN}, 1
    s_lshl_b32 s{sCsN}, s{sCsN}, 1
    v_and_b32 v{a}, 15, v{vL}
    v_lshrrev_b32 v{b}, 4, v{vL}
    v_lshlrev_b32 v{b}, 5, v{b}
    v_lshl_add_u32 v{b}, v{a}, 7, v{b}
    v_mov_b32 v{T+1}, v{vN}
    v_mov_b32 v{T+3}, v{vN}
    v_mov_b32 v{T+5}, v{vN}
    v_mov_b32 v{T+7}, v{vN}
    """)
    g = Stream(); g(f"v_cmp_gt_u32 vcc, s{sCsN}, v{a}\nv_mov_b32 v{a}, {OOB}\nv_cndmask_b32 v{b}, v{a}, v{b}, vcc"); S.atomic(g)
    for r in range(4): S(f"v_accvgpr_read_b32 v{T+2*r}, a{CSACC+r}")
    S(f"buffer_store_dwordx4 v[{T}:{T+3}], v{b}, {srd(WS)}, s{sCsW} offen sc1\nbuffer_store_dwordx4 v[{T+4}:{T+7}], v{b}, {srd(WS)}, s{sCsW} offen offset:16 sc1")
    return S
def cs_loads():
    return [f"buffer_load_dwordx2 v[{CSL+2*i}:{CSL+2*i+1}], v{vCSW}, {srd(WS)}, s{sCsR} offen offset:{1024*i} sc1" for i in range(4)]
def cs_gather():
    S = Stream(); t = CSL + 1
    check_poll(S, cs_loads(), [CSL+1, CSL+3, CSL+5, CSL+7])
    S(f"""
    v_add_f32 v{CSL}, v{CSL}, v{CSL+2}
    v_add_f32 v{CSL+4}, v{CSL+4}, v{CSL+6}
    v_and_b32 v{CSL+2}, 31, v{vL}
    v_add_f32 v{CSL}, v{CSL}, v{CSL+4}
    v_lshlrev_b32 v{CSL+2}, 2, v{CSL+2}
    v_mov_b32 v{t}, v{CSL}
    s_lshl_b32 s{sCsN}, s{sW}, 7
    s_add_u32 s{sCsN}, s{sCsN}, {CS}
    v_permlane32_swap_b32 v{CSL}, v{t}
    v_add_u32 v{CSL+2}, s{sCsN}, v{CSL+2}
    v_add_f32 v{CSL}, v{CSL}, v{t}
    ds_write_b32 v{CSL+2}, v{CSL}
    """)
    return S

def cs_reads():
    S = Stream()
    for u in range(2):
        for j in range(4): S(f"ds_read_b128 v[{CSV+16*u+4*j}:{CSV+16*u+4*j+3}], v{vCSA+u} offset:{32*j}")
    return S

def stats_consume():
    S = Stream()
    check_poll(S, stat_loads(1), [STL+5, STL+7])
    for tt in range(2):
        a1 = STL + 4 + 2*tt
        S(f"v_and_b32 v{MR+2*tt+1}, 0xffff0000, v{a1}\nv_rcp_f32 v{MR+2*tt+1}, v{MR+2*tt+1}\nv_lshlrev_b32 v{MR+2*tt}, 16, v{a1}\nv_mul_f32 v{MR+2*tt+1}, {NLOG2E:#x}, v{MR+2*tt+1}")
    return S

def epi1(inserts):
    S = Stream(); n = 0; held = []
    for u in range(2):
        for tt in range(2):
            for s in range(2):
                acc = ACC + 16*(2*u+tt) + 8*s; cs = CSV + 16*u + 8*s; W = FR + 8*(n & 1); P = FR + 16 + 4*n
                mr = f"v[{MR+2*tt}:{MR+2*tt+1}]"
                for p in range(4): S(f"v_pk_fma_f32 v[{acc+2*p}:{acc+2*p+1}], v[{cs+2*p}:{cs+2*p+1}], {mr}, v[{acc+2*p}:{acc+2*p+1}] op_sel_hi:[1,0,1] neg_lo:[0,1,0] neg_hi:[0,1,0]")
                for p in range(4): S(f"v_pk_mul_f32 v[{W+2*p}:{W+2*p+1}], v[{acc+2*p}:{acc+2*p+1}], {mr} op_sel:[0,1] op_sel_hi:[1,1]")
                for p in range(8): S(f"v_exp_f32_e64 v{W+p}, v{W+p}")
                if held and n > OPT['uat']: S(held.pop(0), "hst")
                for p in range(4): S(f"v_pk_add_f32 v[{W+2*p}:{W+2*p+1}], v[{W+2*p}:{W+2*p+1}], 1.0 op_sel_hi:[1,0]")
                for p in range(8): S(f"v_rcp_f32_e64 v{W+p}, v{W+p}")
                if held and n > OPT['uat']: S(held.pop(0), "hst")
                for p in range(4): S(f"v_pk_mul_f32 v[{W+2*p}:{W+2*p+1}], v[{acc+2*p}:{acc+2*p+1}], v[{W+2*p}:{W+2*p+1}]")
                for p in range(4): S(f"v_cvt_pk_bf16_f32 v{P+p}, v{W+2*p}, v{W+2*p+1}")
                st = f"buffer_store_dwordx4 v[{P}:{P+3}], v{vL16}, {srd(WS)}, s{sHst+2*u+tt} offen" + (" offset:1024" if s else "") + [" sc1", "", " nt", " sc0"][OPT['x_hplain']]
                if OPT['hold'] and n <= OPT['uat']: held.append(st)
                else: S(st, "hst")
                if OPT['prof'] == 3: stamp(S, f"e{n}")
                if n in inserts: S.extend(inserts[n])
                n += 1
    for st in held: S(st, "hst")
    return S

CB = 128; CACC = 64; CAF = 96; NA = 6; UST = 220
def pollA_load(): return f"buffer_load_dword v228, v{vPA}, {srd(WS)}, s{sFAp} offen sc1"
sResA = 40; sResC = 41; SA = 64
def spollA_load(): return one(f"s_load_dwordx16 s[{SA}:{SA+15}], s[{WS}:{WS+1}], s{sFAp} glc")
def u_loads(block=False):
    S = Stream()
    if block: check_poll(S, [pollA_load()], [228]); S(f"s_mov_b32 s{sResA}, 0\ns_mov_b32 s{WSO+2}, {WS_SIZE}")
    elif block is False and OPT['packa']:
        pr = lambda r: f"s[{r}:{r+1}]"
        g = Stream(); g(f"s_xor_b64 {pr(SA)}, {pr(SA)}, {pr(sN2)}")
        for r in range(2, 16, 2): g(f"s_xor_b64 {pr(SA+r)}, {pr(SA+r)}, {pr(sN2)}\ns_or_b64 {pr(SA)}, {pr(SA)}, {pr(SA+r)}")
        g(f"s_cselect_b32 s{WSO+2}, 0, {WS_SIZE}\ns_cselect_b32 s{sResA}, 1, 0"); S.atomic(g)
    elif block is False: note_poll(S, 228, sResA)
    S(f"buffer_load_dwordx4 v[{UST}:{UST+3}], v{vL16}, {srd(WSO)}, s{sU} offen sc1")
    S(f"buffer_load_dwordx4 v[{UST+4}:{UST+7}], v{vL16}, {srd(WSO)}, s{sU} offen offset:1024 sc1")
    return S

DU = 96
def conv():
    S = Stream()
    repair(S, sResA, one(f"s_mov_b32 s{WSF+2}, {WS_SIZE}\ns_mov_b32 s{sDone}, 0x80000000\nbuffer_store_dword v{vN}, v{vL0}, {srd(WSF)}, s{sFBo} offen sc1"), pollA_load(), 228, u_loads(None))
    if OPT['prof'] == 3: stamp(S, "rep")
    S(f"ds_write_b128 v{vCU}, v[{UST}:{UST+3}]\nds_write_b128 v{vCU}, v[{UST+4}:{UST+7}] offset:1024")
    S.waitvm("hc"); S.waitlg(); S("s_barrier")
    stamp(S, "conv0")
    rA = lambda c, a: CB + 64*(c & 1) + 4*a
    rB = lambda c, b: CB + 64*(c & 1) + 32 + 4*b
    def ldA(c, a):
        m = 4*a + c
        return [f"ds_read2_b32 v[{rA(c,a)+2*h}:{rA(c,a)+2*h+1}], v{vCA+(m>>3)} offset0:{32*(m&7)+2*h} offset1:{32*(m&7)+2*h+1}" for h in range(2)]
    ldB = lambda c, b: [f"ds_read_b128 v[{rB(c,b)}:{rB(c,b)+3}], v{vCB} offset:{128*(4*b+c)}"]
    pairs = [(a, b) for a in range(8) for b in range(7, a - 1, -1)]
    def loads(c):
        L = ldA(c, 0)
        for b in range(7, -1, -1): L += ldB(c, b)
        for a in range(1, 8): L += ldA(c, a)
        return L
    q = loads(0)
    for t in q[:6]: S(t)
    q = q[6:]
    S.mark("cva"); seenT = set(); p = 0
    for c in range(4):
        nq = loads(c + 1) if c < 3 else []
        if c > 0 and OPT['cvwait']: S.waitlg(f"cl{c}")
        for i, (a, b) in enumerate(pairs):
            T = a + 7 - b; acc = CACC + 4*T
            cc = vr(acc, 4) if T in seenT else "0"; seenT.add(T)
            S(f"v_mfma_f32_16x16x32_bf16 {vr(acc,4)}, v[{rA(c,a)}:{rA(c,a)+3}], v[{rB(c,b)}:{rB(c,b)+3}], {cc}")
            k = 0
            if q:
                for _ in range(2 if len(q) > 14 else 1):
                    if q: S(q.pop(0)); k += 1
            elif nq and (c == 0 or i % 4 != 3) and i >= 1: S(nq.pop(0), f"cl{c+1}"); k += 1
            S.fill(2 - k)
            S.mark(f"cv{p}")
            if OPT['prof'] == 3 and p in (35, 71, 107): stamp(S, f"cv{p}")
            p += 1
        for t in nq: S(t, f"cl{c+1}")
    S.mark("cve")
    stamp(S, "conv1")
    return S

def conv_du():
    S = Stream(); U = 112
    for T in range(4): S(f"ds_read_b64 v[{U+2*T}:{U+2*T+1}], v{vCD} offset:{(3-T)*512}")
    S(f"v_mov_b32 v120, s{sDv}")
    return S

def conv_epi(tail):
    S = Stream(); R = 224; Y = 120; U = 112
    for T in range(4):
        a = DU + 4*T
        S(f"""v_and_b32 v{a}, 0xffff0000, v{U+2*T+1}
        v_lshlrev_b32 v{a+1}, 16, v{U+2*T+1}
        v_and_b32 v{a+2}, 0xffff0000, v{U+2*T}
        v_lshlrev_b32 v{a+3}, 16, v{U+2*T}""")
        if T == 1: S(f"s_cmp_eq_u32 s{sFH}, 0\ns_cbranch_scc0 L_odd"); break
    def half(T_, keep, send):
        for T in range(4): T_(f"ds_write_b128 v{vCX}, v[{send+4*T}:{send+4*T+3}] offset:{1024*T}")
        for T in (2, 3):
            a = DU + 4*T
            T_(f"""v_and_b32 v{a}, 0xffff0000, v{U+2*T+1}
            v_lshlrev_b32 v{a+1}, 16, v{U+2*T+1}
            v_and_b32 v{a+2}, 0xffff0000, v{U+2*T}
            v_lshlrev_b32 v{a+3}, 16, v{U+2*T}""")
        for p in range(8): T_(f"v_pk_fma_f32 v[{DU+2*p}:{DU+2*p+1}], v[{DU+2*p}:{DU+2*p+1}], v[120:121], v[{keep+2*p}:{keep+2*p+1}] op_sel_hi:[1,0,1]")
    half(S, CACC, CACC + 16)
    S("L_oddback:")
    O = Stream(); O("L_odd:"); half(O, CACC + 16, CACC); O("s_branch L_oddback"); rare.extend(O)
    S.waitlg(); S("s_barrier")
    for T in range(4): S(f"ds_read_b128 v[{R+4*T}:{R+4*T+3}], v{vCXR} offset:{1024*T}")
    S.extend(tail)
    for pr in range(2):
        for T in (2*pr, 2*pr+1):
            a = DU + 4*T
            S(f"v_pk_add_f32 v[{a}:{a+1}], v[{a}:{a+1}], v[{R+4*T}:{R+4*T+1}]\nv_pk_add_f32 v[{a+2}:{a+3}], v[{a+2}:{a+3}], v[{R+4*T+2}:{R+4*T+3}]")
            y = Y + 4*pr + 2*(T & 1)
            S(f"v_cvt_pk_bf16_f32 v{y}, v{a}, v{a+1}\nv_cvt_pk_bf16_f32 v{y+1}, v{a+2}, v{a+3}")
        y = Y + 4*pr
        S(f"v_permlane16_swap_b32 v{y}, v{y+2}\nv_permlane16_swap_b32 v{y+1}, v{y+3}")
        S(f"buffer_store_dwordx4 v[{y}:{y+3}], v{vCY}, {srd(WS)}, s{sYs} offen" + (" offset:1024" if pr else "") + " sc1", "yst")
    return S

HR = 128; XF = 224; SF = 240; TP = 192
def pollB_load(): return f"buffer_load_dword v4, v{vPB}, {srd(WS)}, s{sFBp} offen sc1"
def pollC_load(): return f"buffer_load_dword v5, v{vPC}, {srd(WS)}, s{sFCp} offen sc1"
sFBq = sFBp
def spollB_load():
    return one(f"s_load_dwordx4 s[8:11], s[{WS}:{WS+1}], s{sFBp} glc\ns_load_dwordx4 s[88:91], s[{WS}:{WS+1}], s{sFBp} offset:16 glc")
def spollB_check(S):
    k = nrare[0]; nrare[0] += 1
    g = Stream()
    n2 = f"s[{sN2}:{sN2+1}]"
    if OPT['hto']: g("s_cmp_lg_u64 s[8:9], 0")
    else:
        g(f"s_mov_b32 s91, s90\ns_xor_b64 s[8:9], s[8:9], {n2}")
        for r in (10, 88, 90): g(f"s_xor_b64 s[{r}:{r+1}], s[{r}:{r+1}], {n2}\ns_or_b64 s[8:9], s[8:9], s[{r}:{r+1}]")
    g(f"s_cbranch_scc1 L_rare{k}\nL_back{k}:")
    S.atomic(g)
    rare(f"L_rare{k}:\ns_mov_b32 s{sCnt}, 0")
    if OPT['prof']: rare(f"v_writelane_b32 v{vPROF}, 1, {52+k}")
    if OPT['srare']:
        rare(f"L_rl{k}:"); rare.extend(spollB_load()); rare("s_waitcnt lgkmcnt(0)")
        rare(f"s_mov_b32 s91, s90\ns_xor_b64 s[8:9], s[8:9], {n2}")
        for r in (10, 88, 90): rare(f"s_xor_b64 s[{r}:{r+1}], s[{r}:{r+1}], {n2}\ns_or_b64 s[8:9], s[8:9], s[{r}:{r+1}]")
        rare(f"s_cbranch_scc0 L_back{k}\ns_sleep 1\ns_add_u32 s{sCnt}, s{sCnt}, 1\ns_cmp_lt_u32 s{sCnt}, 0x4000\ns_cbranch_scc1 L_rl{k}\ns_branch L_back{k}")
        return
    rare(f"L_rl{k}:\ns_sleep 1\nbuffer_load_dword v4, v{vPB}, {srd(WS)}, s{sFBq} offen sc1\ns_waitcnt vmcnt(0)\nv_cmp_ne_u32 vcc, s{sN}, v4")
    rare(f"s_nop 1\ns_cbranch_vccz L_back{k}\ns_add_u32 s{sCnt}, s{sCnt}, 1\ns_cmp_lt_u32 s{sCnt}, 0x4000\ns_cbranch_scc1 L_rl{k}\ns_branch L_back{k}")
def htouch_pro():
    S = Stream(); a, b = 6, 7
    g = Stream(); g(f"v_cmp_lt_u32 vcc, 27, v{vL}\nv_lshlrev_b32 v{a}, 10, v{vL}\nv_mov_b32 v{b}, {112*1024 - 28*1024}\nv_cndmask_b32 v{b}, 0, v{b}, vcc\nv_add_u32 v{a}, v{a}, v{b}"); S.atomic(g)
    g = Stream(); g(f"v_cmp_lt_u32 vcc, 55, v{vL}\nv_mov_b32 v{b}, {OOB}\ns_min_u32 s93, s{sHL}, s{sHLo}\nv_cndmask_b32 v{a}, v{a}, v{b}, vcc"); S.atomic(g)
    S(f"s_lshl_b32 s{sT1}, s{sRot}, 12\ns_sub_u32 s93, s93, s{sT1}\ns_lshl_b32 s{sT1}, s{sCB2}, 7\ns_add_u32 s93, s93, s{sT1}")
    return S
def htouch_go():
    S = Stream(); g = Stream(); n2 = f"s[{sN2}:{sN2+1}]"
    g(f"s_mov_b32 s91, s90\ns_xor_b64 s[8:9], s[8:9], {n2}")
    for r in (10, 88, 90): g(f"s_xor_b64 s[{r}:{r+1}], s[{r}:{r+1}], {n2}\ns_or_b64 s[8:9], s[8:9], s[{r}:{r+1}]")
    g(f"s_cselect_b32 s{WSO+2}, 0, {WS_SIZE}\nbuffer_load_dword a236, v6, {srd(WSO)}, s93 offen sc1")
    S.atomic(g)
    return S
def hload(n):
    D = OPT['hring']; p, k = divmod(n, 28); so = sHL if p == 0 else sHLo
    T = Stream(); g = Stream()
    g(f"buffer_load_dwordx4 v[{HR+4*(n%D)}:{HR+4*(n%D)+3}], v{vL16}, {srd(WS)}, s{so} offen" + (f" offset:{(k&3)*1024}" if k & 3 else "") + " sc1")
    if k & 3 == 3 and k < 27: g(f"s_cmp_eq_u32 s{sRot}, {6-(k>>2)}\ns_cselect_b32 s{sCnt}, s{sNeg}, 4096\ns_add_u32 s{so}, s{so}, s{sCnt}")
    T.atomic(g)
    return T
def gemm2():
    S = Stream(); D = OPT['hring']; NT = OPT['ntail']
    S.mark("g2s")
    def mf(n, u):
        p, k = divmod(n, 28); h = HR + 4*(n % D)
        acc = ACC + 32*(1-p) + 16*u; a = (2*k + u) * 4
        S(f"v_mfma_f32_32x32x16_bf16 {vr(acc,16)}, {ar(a,4)}, v[{h}:{h+3}], {'0' if k == 0 else vr(acc, 16)}")
    for n in range(56 - NT):
        for u in range(2):
            mf(n, u); used = 0
            if u == 1 and n + D < 56:
                T = flatten(hload(n + D)); S.extend(T); used = len(T)
            S.fill(5 - used)
        S.mark(f"g2_{n}")
        if (OPT['prof'] > 1 or OPT['x_meas']) and n in (0, 13, 27, 34, 41, 46, 51): stamp(S, f"g2_{n}")
    for n in range(56 - NT, 56): mf(n, 1); S.fill(5)
    S.mark("g2t")
    F = ACC + 16; Ee = ACC + 32
    tail = [f"ds_write_b128 v{vRW}, v[{F+4*j}:{F+4*j+3}] offset:{32768+1024*j}" for j in range(4)]
    for i, n in enumerate(range(56 - NT, 56)):
        mf(n, 0)
        if i == min(1, NT - 1):
            for t in tail: S(t)
        else: S.fill(5)
    S.mark("g2u")
    S.waitlg(); S("s_barrier")
    for j in range(4): S(f"ds_read_b128 v[{F+4*j}:{F+4*j+3}], v{vRR+2} offset:{32768+1024*j}")
    return S

def red_early_w():
    S = Stream()
    for u in range(2):
        for j in range(4): S(f"ds_write_b128 v{vRW}, v[{ACC+32+16*u+4*j}:{ACC+35+16*u+4*j}] offset:{4096*u+1024*j}")
    g = Stream(); g.waitlg(); g("s_barrier"); S.atomic(g)
    return S
def red_early_r():
    S = Stream(); A = ACC + 32; B = ACC + 48
    for j in range(4): S(f"ds_read_b128 v[{A+4*j}:{A+4*j+3}], v{vRR} offset:{1024*j}")
    for j in range(4): S(f"ds_read_b128 v[{B+4*j}:{B+4*j+3}], v{vRR+1} offset:{4096+1024*j}")
    for r in range(16): S(f"v_add_f32 v{A+r}, v{A+r}, v{B+r}")
    return S

FS = 8
def prep_x():
    S = Stream()
    g = Stream()
    g(f"s_add_u32 m0, s{sM0b}, {E}\ns_add_u32 s{sT0}, s{sXO}, 15360\nbuffer_load_dwordx4 v{vXD}, {srd(QF)}, s{sXO} offen lds")
    g(f"buffer_load_dwordx4 v{vXD}, {srd(QF)}, s{sT0} offen offset:1024 lds", "xd")
    S.atomic(g)
    S(f"buffer_load_dwordx2 v[{FS}:{FS+1}], v{vSTV}, {srd(WS)}, s{sStatF} offen sc1")
    return S
def prep_x2():
    S = Stream(); XR = 16
    check_poll(S, [f"buffer_load_dwordx2 v[{FS}:{FS+1}], v{vSTV}, {srd(WS)}, s{sStatF} offen sc1"], [FS+1])
    S(f"v_and_b32 v{FS+1}, 0xffff0000, v{FS}\nv_rcp_f32 v{FS+1}, v{FS+1}\nv_lshlrev_b32 v{FS}, 16, v{FS}\nv_mul_f32 v{FS+2}, v{FS+1}, v{FS+1}\nv_mul_f32 v{FS+1}, {NLOG2E:#x}, v{FS+1}")
    S.waitvm("xd")
    for j in range(4):
        if j: S(f"v_xor_b32 v{FS+3}, {16*j}, v{vXA}")
        S(f"ds_read_b64 v[{XR+2*j}:{XR+2*j+1}], v{FS+3 if j else vXA}")
    for q in range(8):
        S(f"v_lshlrev_b32 v{XF+2*q}, 16, v{XR+q}\nv_and_b32 v{XF+2*q+1}, 0xffff0000, v{XR+q}")
    for r in range(16): S(f"v_sub_f32 v{SF+r}, v{XF+r}, v{FS}")
    for r in range(16): S(f"v_mul_f32 v{SF+r}, v{SF+r}, v{FS+2}")
    return S
YSR = 192
def prep_y(note=True):
    S = Stream(); YS = YSR
    if note: note_poll(S, 5, sResC)
    S(f"s_add_u32 s{sT0}, s{sYl}, 65536")
    S(f"buffer_load_dwordx4 v[{YS}:{YS+3}], v{vYL}, {srd(WSO)}, s{sYl} offen sc1\nbuffer_load_dwordx4 v[{YS+4}:{YS+7}], v{vYL}, {srd(WSO)}, s{sT0} offen sc1")
    return S
YR = 16
def prep_y2():
    S = Stream(); YS = YSR
    S(f"ds_write_b128 v{vYW}, v[{YS}:{YS+3}]\nds_write_b128 v{vYW}, v[{YS+4}:{YS+7}] offset:1024")
    for j in range(4): S(f"ds_read_b64_tr_b16 v[{YR+2*j}:{YR+2*j+1}], v{vYA} offset:{512*j}")
    return S

S2 = 200
OFL = ['', ' sc1', ' nt', ' sc0 sc1'][OPT['ofl']]
def prep_y3():
    S = prep_y2(); t = 216
    for q in range(8):
        S(f"v_lshlrev_b32 v{t+(q&1)*2}, 16, v{YR+q}\nv_and_b32 v{t+(q&1)*2+1}, 0xffff0000, v{YR+q}")
        S(f"v_mul_f32 v{S2+2*q}, v{SF+2*q}, v{t+(q&1)*2}\nv_mul_f32 v{S2+2*q+1}, v{SF+2*q+1}, v{t+(q&1)*2+1}")
    return S
def final():
    S = Stream(); A = ACC; F = ACC + 16; Ee = ACC + 32; W = HR; P = HR + 16; Yf = HR + 32
    stamp(S, "g2end")
    pr = lambda b, p: f"v[{b+2*p}:{b+2*p+1}]"
    mr = f"v[{FS}:{FS+1}]"
    for p in range(8): S(f"v_pk_add_f32 {pr(A,p)}, {pr(A,p)}, {pr(Ee,p)}")
    if OPT['ypre']:
        repair(S, sResC, Stream(), pollC_load(), 5, cat(prep_y(False), prep_y3()))
        S(f"s_add_u32 s{sT0}, s{sXO}, 16384")
        for h in range(2):
            ps = range(4*h, 4*h + 4)
            for p in ps: S(f"v_pk_add_f32 {pr(A,p)}, {pr(A,p)}, {pr(F,p)}")
            for p in ps: S(f"v_pk_mul_f32 {pr(W,p)}, {pr(A,p)}, {mr} op_sel:[0,1] op_sel_hi:[1,1]")
            for p in ps: S(f"v_exp_f32_e64 v{W+2*p}, v{W+2*p}\nv_exp_f32_e64 v{W+2*p+1}, v{W+2*p+1}")
            for p in ps: S(f"v_pk_mul_f32 {pr(A,p)}, {pr(A,p)}, {pr(S2,p)}")
            for p in ps: S(f"v_pk_add_f32 {pr(W,p)}, {pr(W,p)}, 1.0 op_sel_hi:[1,0]")
            for p in ps: S(f"v_rcp_f32_e64 v{W+2*p}, v{W+2*p}\nv_rcp_f32_e64 v{W+2*p+1}, v{W+2*p+1}")
            for p in ps: S(f"v_pk_fma_f32 {pr(W,p)}, {pr(A,p)}, {pr(W,p)}, {pr(XF,p)}")
            for p in ps: S(f"v_cvt_pk_bf16_f32 v{P+p}, v{W+2*p}, v{W+2*p+1}")
            for j in (2*h, 2*h+1): S(f"ds_write_b64 v{vOW}, v[{P+2*j}:{P+2*j+1}] offset:{16*j}")
    else:
        for p in range(8): S(f"v_pk_add_f32 {pr(A,p)}, {pr(A,p)}, {pr(F,p)}")
        for p in range(8): S(f"v_pk_mul_f32 {pr(W,p)}, {pr(A,p)}, {mr} op_sel:[0,1] op_sel_hi:[1,1]")
        for p in range(16): S(f"v_exp_f32_e64 v{W+p}, v{W+p}")
        S.extend(prep_y2())
        for p in range(8): S(f"v_pk_add_f32 {pr(W,p)}, {pr(W,p)}, 1.0 op_sel_hi:[1,0]")
        for p in range(16): S(f"v_rcp_f32_e64 v{W+p}, v{W+p}")
        for p in range(8): S(f"v_pk_mul_f32 {pr(A,p)}, {pr(A,p)}, {pr(SF,p)}")
        for p in range(8): S(f"v_pk_mul_f32 {pr(A,p)}, {pr(A,p)}, {pr(W,p)}")
        repair(S, sResC, Stream(), pollC_load(), 5, cat(prep_y(False), prep_y2()))
        for j in range(4):
            for q in (2*j, 2*j+1): S(f"v_lshlrev_b32 v{Yf+2*q}, 16, v{YR+q}\nv_and_b32 v{Yf+2*q+1}, 0xffff0000, v{YR+q}")
            for p in (2*j, 2*j+1): S(f"v_pk_fma_f32 {pr(W,p)}, {pr(A,p)}, {pr(Yf,p)}, {pr(XF,p)}")
            for p in (2*j, 2*j+1): S(f"v_cvt_pk_bf16_f32 v{P+p}, v{W+2*p}, v{W+2*p+1}")
            S(f"ds_write_b64 v{vOW}, v[{P+2*j}:{P+2*j+1}] offset:{16*j}")
        S(f"s_add_u32 s{sT0}, s{sXO}, 16384")
    S(f"ds_read_b128 v[{W}:{W+3}], v{vOR}\nds_read_b128 v[{W+4}:{W+7}], v{vOR} offset:1280")
    S(f"buffer_store_dwordx4 v[{W}:{W+3}], v{vOS}, {srd(OUT)}, s{sXO} offen{OFL}\nbuffer_store_dwordx4 v[{W+4}:{W+7}], v{vOS}, {srd(OUT)}, s{sT0} offen{OFL}")
    if OPT['prof']:
        stamp(S, "outst"); S("s_waitcnt vmcnt(0)"); stamp(S, "end")
        S(f"s_lshl_b32 s{sT0}, s2, 2\ns_add_u32 s{sT0}, s{sT0}, s{sW}\ns_lshl_b32 s{sT0}, s{sT0}, 8\ns_add_u32 s{sT0}, s{sT0}, {PROF}\nv_lshlrev_b32 v{vT}, 2, v{vL}")
        S(f"buffer_store_dword v{vPROF}, v{vT}, {srd(WS)}, s{sT0} offen")
    return S

def stS(name):
    s = Stream(); stamp(s, name); return s
def cat(*ss):
    o = Stream()
    for s in ss: o.extend(s)
    return o
def one(t, tag=None):
    s = Stream(); s(t, tag); return s

def spread(S, items, every):
    o = Stream(); items = list(items); n = 0
    for x in S:
        o.append(x); n += 1
        if items and n % every == 0:
            while items and items[0].cls == 'pseudo' and items[0].op != 'GROUP': o.append(items.pop(0))
            if items: o.append(items.pop(0))
    o.extend(items)
    return o

def build():
    assert not (OPT['cshare'] and OPT['map47'])
    P = Stream()
    P.extend(entry())
    c1 = chunk_dma(1); c2 = chunk_dma(2); kp = OPT['kvpos']; g1f = []
    st = stats()
    pre = cat(one(pollA_load().replace("v228,", "a233,")), one(pollB_load().replace("v4,", "a234,")), one(pollC_load().replace("v5,", "a235,"))) if OPT['pretouch'] else Stream()
    br = one(f"s_cmp_ge_u32 s{sCB1}, 14\ns_cbranch_scc1 L_spare1")
    if kp >= 2:
        P.extend(spread(cat(*[coff(i) for i in range(2, 8)], setup(), kv_pro()), c1[:OPT['c1n']], 20))
        stamp(P, "setup")
        P.extend(st[:16]); P.extend(spread(Stream(st[16:]), cat(c1[OPT['c1n']:], c2[:OPT['c2n']]), 7)); P.extend(br)
        seq = cat(c2[OPT['c2n']:], kv_dma(), dh_loads(), chunk_dma(3), Stream([Pseudo('GATE', 'c0b')]), chunk_dma(4), Stream([Pseudo('GATE', 'c1b')]), chunk_dma(5) if OPT['c5e'] else Stream())
        isl = lambda it: any(y.cls in ('dma', 'vmem_ld') for y in (it.arg if (it.cls == 'pseudo' and it.op == 'GROUP') else [it]))
        li = [i for i, it in enumerate(seq) if isl(it)]
        a0 = li[OPT['r0']]; a1 = li[OPT['r1'] - (3 if OPT['tiny'] else 0)]
        ng = lambda st: Stream([x for x in st if not (x.cls == 'pseudo' and x.op == 'GATE')])
        assert not any(x.op == 'GATE' for x in seq[:a0]) and not any(x.op == 'GATE' and x.arg == 'c1b' for x in seq[:a1])
        g1f.append(("c0a", "c0m", Stream(seq[:a0]), (OPT['p0'],)))
        g1f.append(("c0b", "c1m", ng(seq[a0:a1]), (OPT['p1'],)))
        g1f.append(("c1b", "c2m", ng(seq[a1:]), (OPT['p2'],)))
        g1f.append(("c1b", "c2m", cat(setup_b(), kv_addr())))
    else:
        kd = kv_dma(); n0 = OPT['kvn']
        P.extend(kv_pro())
        early = Stream(kd[:n0]) if kp == 0 else Stream(c1[:OPT['c1n']])
        P.extend(spread(cat(*[coff(i) for i in range(2, 8)], setup(), kv_addr()), early, 20))
        stamp(P, "setup")
        late = cat(kd[n0:], dh_loads(), c1) if kp == 0 else cat(c1[OPT['c1n']:], kd, dh_loads())
        P.extend(st[:16]); P.extend(spread(Stream(st[16:]), late, 6)); P.extend(br)
        g1f.append(("c0a", "c0m", setup_b()))
        if kp == 0:
            g1f.append(("c0a", "c0m", c2, (OPT['p0'],)))
            g1f.append(("c0b", "c1m", chunk_dma(3), (OPT['p1'],)))
            g1f.append(("c1b", "c2m", chunk_dma(4), (OPT['p2'],)))
        else:
            g1f.append(("c0a", "c0m", Stream(c2[:4]), (OPT['p0'],)))
            g1f.append(("c0b", "c1m", cat(c2[4:], chunk_dma(3)), (OPT['p1'],)))
            g1f.append(("c1b", "c2m", chunk_dma(4), (OPT['p2'],)))
    D = Stream()
    if OPT['kvd']: D.gate("kvr")
    for c in range(OPT['kvd'] + 1 if OPT['kvd'] else (6 if OPT['c5e'] else 5), 8):
        D.gate(f"c{c-4}b"); D.extend(chunk_dma(c))
    D.gate(OPT['stat_at']); D.pace(OPT['tpp']); D.extend(cat(*[one(t) for t in stat_loads(1) + (cs_loads() if OPT['cshare'] and OPT['cspub'] == 1 else [])], pre, htouch(), w2touch(range(OPT['tp'], 7)) if OPT['tp'] >= 0 else Stream())); D.pace(OPT['w2pace'])
    W2S = cat(Stream([Pseudo('GATE', 'c3b' if (OPT['kvfill'] or OPT['kvaft']) else f'c{kp}b')]), hcopy_dma(), Stream([Pseudo('GATE', 'c4b')]), w2_dma(0), Stream([Pseudo('GATE', 'c5b')]), Stream([Pseudo('CSL')]), w2_dma(1), Stream([Pseudo('GATE', 'c6b')]), w2_dma(2), w2_dma(3), cat(Stream([Pseudo('WAITLG', 'tr0')]), w2_dma(4)) if OPT['n2'] > 36 else Stream())
    isld = lambda it: it.cls == 'pseudo' and it.op == 'GROUP' and any(y.cls in ('dma', 'vmem_ld') for y in it.arg)
    idx = [i for i, it in enumerate(W2S) if isld(it)]
    cut1 = idx[OPT['n1']] if OPT['n1'] < len(idx) else len(W2S); cut2 = idx[OPT['n2']] if OPT['n2'] < len(idx) else len(W2S)
    for it in W2S[:cut1]:
        if it.cls == 'pseudo' and it.op == 'CSL':
            if OPT['cshare'] and OPT['cspub'] > 1:
                D.pace(1); D.extend(cat(*[one(t) for t in cs_loads()])); D.pace(OPT['w2pace'])
        else: D.append(it)
    g1f.append((OPT['dstart'], "c7m", D, (OPT['dp'],)))
    na, nb = (("c0a", "c0m"), ("c0b", "c1a")) if OPT['nonce_at'] == 0 else (("c0b", "c1a"), ("c1b", "c2a"))
    g1f.append((*na, nonce_get(), 1))
    g1f.append((*nb, cat(nonce_use(), stats_store()), 1))
    g1f.append(("c1a", "c1m", flag_init(), 1))
    if OPT['cshare']:
        if OPT['cspub'] == 1: g1f.append(("c1a", "c1m", cs_publish()))
        if OPT['cspub'] == 3: g1f.append(("c2b", "c3a", cs_publish()))
        g1f.append((OPT['csg'], "c7m", cs_gather()))
    ke = kp
    if OPT['kvaft']: g1f.append((f"c{kp}b", "kvr", Stream(kvpre()[:10]), 1))
    if OPT['kvfill']:
        ke = OPT['kvend']; g1f.append(("c2b", f"c{ke}m", kvpre_np()))
    pts = [(f"c{c}{x}", f"c{c}{y}") for c in range(ke + 1, 8) for x, y in (("a", "m"), ("b", "e"))][OPT['ft0']:OPT['ft0'] + 4]
    lastA = len(pts) == 4
    for i, (a, b) in enumerate(pts): g1f.append((a, b, flag_try(sFAo, "kv1", lastA and i == 3), 1))
    g1f.append(((f"c{ke}b", "c7a") if OPT['kvfill'] else ("c3a", "c5a")) + (setup_c(),) if not OPT['x_late'] else ("c7b", "c7e", setup_c())); g1f.append(("c6a", "c7m", hoffs()[:1] if OPT['packa'] else hoffs()))
    g1f.append(("c7a", "c7m", stats_consume()))
    if OPT['hcreg']: g1f.append((OPT['hcw'], "c7m", hcopy_wr()))
    if OPT['hto']: g1f.append(("c5b", "c6m", htouch_pro()))
    if OPT['trg1'] >= 1: g1f.append((OPT['tr0at'], "c7e", w2_tr(0)))
    g1f.append((f"c{max(4, ke)}b", f"c{max(4, ke)+1}m", hpad()))
    g1f.append(("c7b", "c7e", cat(cs_reads(), spollA_load() if OPT['packa'] else one(pollA_load())) if OPT['pat'] < 0 else cs_reads(), 1))
    P.extend(merge(gemm1(), g1f))
    stamp(P, "g1end")
    ins = {OPT['uat']: u_loads()}
    if OPT['pat'] >= 0: ins[OPT['pat']] = spollA_load() if OPT['packa'] else one(pollA_load())
    if not lastA: P.extend(flag_try(sFAo, "kv1", True))
    if OPT['packa']: ins[OPT['uat']].extend(hoffs2())

    nog = lambda st: Stream([x for x in st if not (x.cls == 'pseudo' and x.op in ('GATE', 'CSL'))])
    P.extend(spread(epi1(ins), nog(W2S[cut1:cut2]), OPT['esp']))
    stamp(P, "epi1")
    P("L_join:")
    W = lambda t: Stream([Pseudo('WAITLG', t)])
    G = lambda m: Stream([Pseudo('GATE', m)])
    fb = OPT['flagB_at']; t0, t1, t2, t3 = OPT['t0'], OPT['t1'], OPT['t2'], OPT['t3']; fs = OPT['fbs']; fn = OPT['fbn']
    cf = [(f"cv{fb+fs*i}", f"cv{fb+fs*i+6}", flag_try(sFBo, "hst", i == fn - 1), 1) for i in range(fn)]
    cf += [("cva", "cve", cat(G(f"cv{OPT['d3']}"), nog(W2S[cut2:]), G(f"cv{OPT['d4']}"), cat(W('tr0'), w2_dma(4)) if (OPT['n2'] <= 36 and OPT['g2w'] > 4) else Stream(), cat(W('tr1'), w2_dma(5)) if OPT['g2w'] > 5 else Stream(), cat(W('tr2'), w2_dma(6)) if OPT['g2w'] > 6 else Stream()), (OPT['cvpace'],)),
          (f"cv{OPT['pb']}", "cve", spollB_load() if OPT['packb'] else one(pollB_load()), 1)]
    if OPT['hto']: cf.append((f"cv{OPT['hto']}", "cve", htouch_go(), 1))
    if OPT['trg1'] < 1: cf.append((f"cv{t0}", f"cv{t1}", w2_tr(0)))
    if OPT['trg1'] < 2: cf.append((f"cv{t1}", f"cv{t2}", w2_tr(1)))
    cf += [(f"cv{t2}", f"cv{t3}", w2_tr(2)), (f"cv{OPT['t4']}", "cv140", w2_tr(3)), ("cv130", "cve", conv_du())]
    if OPT['trg1'] == 2: P.extend(w2_tr(1))
    HL = cat(*[hload(n) for n in range(OPT['hring'])])
    chk = Stream()
    if OPT['packb']: spollB_check(chk)
    else: check_poll(chk, [pollB_load()], [4])
    stamp(chk, "hflag")
    hc = OPT['hcv']
    if hc: cf.insert(0, (f"cv{OPT['hcat']}", "cve", cat(chk, HL[:hc]), (OPT['hcp'],)))
    post = Stream()
    if OPT['x_cv']:
        keep = []
        for f in cf:
            txt = " ".join(x.text for x in flatten(f[2]) if x.cls != 'pseudo')
            kind = 1 if " lds" in txt else 2 if "tr_b16" in txt else 4 if "s_getreg" in txt or "s_cmp_eq_u32 s87" in txt else 8
            if OPT['x_cv'] & kind: post.append((kind, f[2]))
            else: keep.append(f)
        cf = keep
    P.extend(merge(conv(), cf))
    for kind in (4, 2, 1, 8):
        for k2, st2 in post:
            if k2 == kind and not (kind == 2 and any(x.tag == 'tr3' for x in st2)): P.extend(nog(st2))
    for k2, st2 in post:
        if k2 == 2 and any(x.tag == 'tr3' for x in st2): P.extend(nog(st2))
    P.extend(W('tr3'))
    if OPT['hearly']:
        P.extend(Stream() if hc else chk)
        ce = conv_epi(Stream()); ia = [i for i, x in enumerate(ce) if x.op == 's_cmp_eq_u32'][0]; ib = [i for i, x in enumerate(ce) if x.text.startswith('L_oddback')][0]
        h1 = max(hc, OPT['he1'])
        P.extend(spread(Stream(ce[:ia]), HL[hc:h1], 3)); P.extend(ce[ia:ib+1]); P.extend(spread(Stream(ce[ib+1:]), HL[h1:OPT['hearly']], OPT['hesp']))
        stamp(P, "conv2"); P.extend(HL[OPT['hearly']:])
    else:
        P.extend(conv_epi(prep_x())); stamp(P, "conv2")
        P.extend(chk)
        if OPT['pre2']:
            work = cat(w2_tr(4) if OPT['pre2'] > 1 else Stream(), prep_x2())
            P.extend(HL[:OPT['hl1']]); P.extend(spread(work, HL[OPT['hl1']:OPT['hl0']], OPT['psp']))
        else:
            P.extend(HL[:OPT['hl0']])
            if OPT['trmid']: P.extend(cat(w2_tr(4), w2_tr(5), w2_tr(6)))
            if OPT['xmid']: P.extend(prep_x2())
            P.extend(HL[OPT['hl0']:]); P.extend(flag_store(sFCo, WS, "yst"))
    global SPARE_W2
    SPARE_W2 = nog(W2S[:cut2])
    if OPT['trg1'] >= 1:
        iw = [i for i, x in enumerate(SPARE_W2) if x.cls == 'pseudo' and x.op == 'WAITLG']
        iw = iw[0] if iw else len(SPARE_W2)
        SPARE_W2 = cat(SPARE_W2[:iw], w2_tr(0), SPARE_W2[iw:])
    D = OPT['ylag']
    gf = [(f"g2_{x}", f"g2_{x+1}", flag_try(sFCo, "yst", x == 12), 1) for x in (2, 5, 8, 12)] if OPT['hearly'] else []
    if OPT['hearly']:
        px = Stream(); px.atomic(prep_x()); gf.append(("g2_0", "g2_2", px, 1)); gf.append(("g2s", "g2_14", cat(w2_tr(4), w2_tr(5), w2_tr(6))))
    gw = OPT['g2w']
    if OPT['hearly']: pass
    elif OPT['pre2']:
        gf.append(("g2s", "g2_8", Stream(HL[OPT['hl0']:]), (2,)))
        gf += [(f"g2_{x}", f"g2_{x+1}", flag_try(sFCo, "yst", x == 2), 1) for x in (2,)]
        gf.append(("g2_1", "g2_14", cat(*[w2_tr(b) for b in range(4 + (OPT['pre2'] > 1), 7)])))
    elif OPT['trmid'] and not OPT['hearly']: pass
    elif OPT['trpre']: P.extend(cat(*[w2_tr(b) for b in range(4, gw)]))
    else: gf.append(("g2s", "g2_14", cat(*[w2_tr(b) for b in range(4, gw)])))
    if gw < 7:
        gf.append((f"g2_{OPT['gw0']}", "g2_20", cat(*[w2_dma(b) for b in range(gw, 7)]), (OPT['gwp'],)))
        for b in range(gw, 7): gf.append((f"g2_{4*b-5}", f"g2_{4*b-1}", w2_tr(b)))
    gf += [
          ("g2_14", "g2_27", Stream() if (OPT['xmid'] and not OPT['hearly']) else prep_x2()),
          ("g2_28", f"g2_{OPT['rw1']}", Stream(red_early_w()[:8])), (f"g2_{OPT['rw1']+OPT['rwl']}", f"g2_{OPT['rw1']+OPT['rwl']+1}", Stream(red_early_w()[8:]), 1),
          (f"g2_{OPT['rw1']+OPT['rwl']+1}", "g2_49", red_early_r()),
          (f"g2_{OPT['yat']}", f"g2_{OPT['yat']+1}", one(pollC_load())),
          (f"g2_{OPT['yat']+D}", "g2t", prep_y(), 1)]
    if OPT['ypre']: gf.append((f"g2_{OPT['ypre']}", "g2u", prep_y3()))
    P.extend(merge(gemm2(), gf))
    P.extend(final())
    if OPT['x_meas']:
        P(f"s_cmp_ge_u32 s{sCB1}, 14\ns_cbranch_scc1 L_end")
        if OPT['x_wg'] >= 0: P(f"s_and_b32 s64, s2, {OPT['x_wgm']}\ns_cmp_lg_u32 s64, {OPT['x_wg']}\ns_cbranch_scc1 L_end")
        P(f"v_readlane_b32 s66, v{vPROF}, 0\nL_pad:\ns_memrealtime s[64:65]\ns_waitcnt lgkmcnt(0)\ns_sub_u32 s64, s64, s66\ns_cmp_lt_u32 s64, 2000\ns_cbranch_scc1 L_pad")
    if OPT['x_pad']:
        P(f"L_pad:\ns_memrealtime s[64:65]\ns_waitcnt lgkmcnt(0)\ns_sub_u32 s64, s64, s{sN}\ns_cmp_lt_u32 s64, {OPT['x_pad']}\ns_cbranch_scc1 L_pad")
    P("L_end:\ns_endpgm")
    P = flatten(P)
    kv_last = max(i for i, x in enumerate(P) if x.tag == 'kvd')
    sb_first = min(i for i, x in enumerate(P) if x.cls == 'salu' and f"s{sFBo}" in x.wr and 'mov' not in x.op)
    assert kv_last < sb_first, "k/v SRDs overwritten before use"
    last = None
    for x in P:
        if x.cls == 'salu' and 'm0' in x.wr: last = x.text
        if x.cls == 'dma' and x.arg is not None: assert x.arg == last, ("m0 changed under a DMA group", x.text, last)
        if x.cls == 'label' and x.text.startswith('L_join'): last = None
    c7_last = max(i for i, x in enumerate(P) if x.tag == 'c7')
    ho_first = min(i for i, x in enumerate(P) if x.text.startswith(f"s_mov_b64 s[{WSO}:{WSO+1}], s[{WS}"))
    assert c7_last < ho_first, "GEMM1 SRDs / offsets overwritten before the last chunk load"
    P = autowait(P); P = hazards(P)
    P.extend(hazards(autowait(flatten(spare1()))))
    R = hazards(flatten(rare))
    P.extend(R); P("L_codeend:")
    P = align8(P)
    return P

HEAD = open("cdna_kernels/" + NAME + ".s.ref").read().split("; Override launch")[0]
DOC = """; One persistent launch, 256 workgroups (one per CU), 4 waves each. Per workgroup, in order:
;   2. GEMM1 128x128 tile on raw x (LayerNorm folded into the epilogue via the column sums of w1), SiLU, h in MFMA fragment order
"""
def emit():
    P = build()
    size = sum(x.size for x in P)
    o = HEAD + f"; @launch grid=(256,1,1) block=(256,1,1) lds={LDS_BYTES}\n"
    o += DOC
    o += f'.amdgcn_target "amdgcn-amd-amdhsa--gfx950"\n.text\n.globl {NAME}_kernel\n.p2align 8\n.type {NAME}_kernel,@function\n{NAME}_kernel:\n'
    o += "\n".join(l for l in text(P).split("\n") if not l.strip().startswith("; MARK"))
    o += f""".section .rodata,"a"
.p2align 6
.amdhsa_kernel {NAME}_kernel
  .amdhsa_next_free_vgpr 512
  .amdhsa_next_free_sgpr 102
  .amdhsa_accum_offset 256
  .amdhsa_group_segment_fixed_size 0
  .amdhsa_kernarg_size 96
  .amdhsa_user_sgpr_count 2
  .amdhsa_user_sgpr_kernarg_segment_ptr 1
  .amdhsa_system_sgpr_workgroup_id_x 1
.end_amdhsa_kernel
"""
    return o, size

if __name__ == "__main__":
    o, size = emit()
    open(sys.argv[1], "w").write(o)
    print("code bytes (estimate):", size, "stamps:", stamp_names)
    open(sys.argv[1] + ".stamps", "w").write(",".join(stamp_names))
```
